```python
import torch

def _softmax(x, axis=-1):
    return torch.softmax(x, dim=axis)
def _gelu(x):
    return torch.nn.functional.gelu(x, approximate="tanh")
def _silu(x):
    return torch.nn.functional.silu(x)
def _sigmoid(x):
    return torch.sigmoid(x)
def _layernorm(x, axis=-1, eps=1e-5):
    m = x.mean(dim=axis, keepdim=True)
    v = x.var(dim=axis, keepdim=True, unbiased=False)
    return (x - m) / torch.sqrt(v + eps)
def _scatter_add(tgt, idx, src, axis=0):
    return tgt.clone().index_add_(axis, idx, src)
def _segment_sum(src, seg, n):
    out = torch.zeros((n,) + src.shape[1:], dtype=src.dtype)
    return out.index_add_(0, seg, src)
def _pad(x, pw):
    flat = tuple(v for pair in reversed(pw) for v in pair)
    return torch.nn.functional.pad(x, flat)

kernel_name = 'gated_mix__sliding_local_dilated__softmax_full_mha__prompt'

def setup_inputs():

    _w = (lambda a: (lambda t: t.to(torch.bfloat16) if t.is_floating_point() else t)(torch.as_tensor(a)))
    def _A_setup():
        B, S, D = 1, 2048, 640
        return {
            "x": _w((lambda *s: torch.randn(*s, dtype=torch.bfloat16) * 0.05)(B, S, D)),
            "wqkv": _w((lambda *s: torch.randn(*s, dtype=torch.bfloat16) * 1.6)(D, 3 * D)),
            "wo": _w((lambda *s: torch.randn(*s, dtype=torch.bfloat16) * 0.05)(D, D)),
        }
    _A_in = _A_setup()

    def _B_setup():
        B, S, D = 1, 2048, 640
        return {
            "x": _w((lambda *s: torch.randn(*s, dtype=torch.bfloat16) * 0.05)(B, S, D)),
            "wqkv": _w((lambda *s: torch.randn(*s, dtype=torch.bfloat16) * 1.6)(D, 3 * D)),
            "wo": _w((lambda *s: torch.randn(*s, dtype=torch.bfloat16) * 0.1)(D, D)),
        }
    _B_in = _B_setup()

    return {
        "A_x": _A_in["x"],
        "A_wqkv": _A_in["wqkv"],
        "A_wo": _A_in["wo"],
        "B_x": _B_in["x"],
        "B_wqkv": _B_in["wqkv"],
        "B_wo": _B_in["wo"],
        "gate_w": _w((lambda *s: torch.randn(*s, dtype=torch.bfloat16) * 0.05)(640) * 16.0),
    }

def reference(A_x, A_wqkv, A_wo, B_x, B_wqkv, B_wo, gate_w):
    def _A_ref(x, wqkv, wo):
        B, S, D = x.shape
        H = 32; Dh = D // H
        W, dil = 8, 2
        qkv = (lambda x, *d: x.permute(*d))((x @ wqkv).reshape(B, S, 3, H, Dh), 2, 0, 3, 1, 4)
        q, k, v = qkv[0], qkv[1], qkv[2]
        scale = Dh ** -0.5
        pos = torch.arange(S)
        off = torch.arange(W) * dil
        idx = pos[:, None] - off[None, :]
        mask = idx >= 0
        idx_c = torch.where(mask, idx, 0).reshape(-1)
        kg = k[:, :, idx_c, :].reshape(B, H, S, W, Dh)
        vg = v[:, :, idx_c, :].reshape(B, H, S, W, Dh)
        logits = torch.einsum("bhsd,bhswd->bhsw", q, kg) * scale
        logits = torch.where(mask[None, None, :, :], logits, -1e9)
        attn = _softmax(logits, axis=-1)
        o = torch.einsum("bhsw,bhswd->bhsd", attn, vg)
        return (lambda x, *d: x.permute(*d))(o, 0, 2, 1, 3).reshape(B, S, D) @ wo

    def _B_ref(x, wqkv, wo):
        B, S, D = x.shape
        H = 32; Dh = D // H
        qkv = (lambda x, *d: x.permute(*d))((x @ wqkv).reshape(B, S, 3, H, Dh), 2, 0, 3, 1, 4)
        q, k, v = qkv[0], qkv[1], qkv[2]
        scale = Dh ** -0.5
        scores = torch.einsum("bhqd,bhkd->bhqk", q, k) * scale
        p = _softmax(scores, axis=-1)
        o = torch.einsum("bhqk,bhkd->bhqd", p, v)
        return (lambda x, *d: x.permute(*d))(o, 0, 2, 1, 3).reshape(B, S, D) @ wo

    x = A_x
    g = _sigmoid((x * gate_w).sum(-1, keepdims=True))
    a = _A_ref(x, A_wqkv, A_wo)
    b = _B_ref(x, B_wqkv, B_wo)
    return g * a + (1 - g) * b
```

```python
import sys, struct

NAME = "gated_mix__sliding_local_dilated__softmax_full_mha__prompt"

KV_HEAD = 163840
KV_CH = 20480
Q_HEAD = 81920
Q_CH = 10240
KVA_OFF = 0
KVB_OFF = 32 * KV_HEAD
QA_OFF = 2 * 32 * KV_HEAD
QB_OFF = QA_OFF + 32 * Q_HEAD
G_OFF = QB_OFF + 32 * Q_HEAD
O_OFF = 0x1000000
O_SIZE = 128 * 40 * 1024
WS_USED = O_OFF + O_SIZE
QSCALE = (20 ** -0.5) * 1.4426950408889634

def f2u(x):
    return struct.unpack("<I", struct.pack("<f", x))[0]

class Asm:
    def __init__(self):
        self.l = []
    def __call__(self, s):
        for x in s.strip("\n").split("\n"):
            self.l.append("    " + x.strip())
    def lab(self, s):
        self.l.append(s + ":")
    def raw(self, s):
        self.l.append(s)
    def text(self):
        return "\n".join(self.l) + "\n"

def vr(b, n=1):
    return f"v{b}" if n == 1 else f"v[{b}:{b+n-1}]"
def sr(b, n=1):
    return f"s{b}" if n == 1 else f"s[{b}:{b+n-1}]"

def kernel_head(a, name):
    a.raw(f".globl {name}")
    a.raw(".p2align 8")
    a.raw(f".type {name},@function")
    a.lab(name)

def kernel_desc(name, nv, ns=102):
    acc = (nv + 3) // 4 * 4
    return f""".amdhsa_kernel {name}
  .amdhsa_next_free_vgpr {nv}
  .amdhsa_next_free_sgpr {ns}
  .amdhsa_accum_offset {acc}
  .amdhsa_group_segment_fixed_size 0
  .amdhsa_kernarg_size 80
  .amdhsa_user_sgpr_count 2
  .amdhsa_user_sgpr_kernarg_segment_ptr 1
  .amdhsa_system_sgpr_workgroup_id_x 1
  .amdhsa_float_denorm_mode_32 3
  .amdhsa_float_denorm_mode_16_64 3
.end_amdhsa_kernel
"""

def srd(a, d, lo, hi, size):
    a(f"s_mov_b32 s{d}, s{lo}")
    a(f"s_and_b32 s{d+1}, s{hi}, 0xffff")
    a(f"s_mov_b32 s{d+2}, {size}")
    a(f"s_mov_b32 s{d+3}, 0x00020000")

K1_BUF = 8192 + 32 * 480 + 4 * 128
K1_NBUF = 6
K1_LDS = K1_BUF * K1_NBUF

def gen_k1(a):
    name = "k1_qkv_kernel"
    kernel_head(a, name)
    sWS = 4; sGATE = 6; sXW = 8
    SX = 12; SW = 16; SWS = 20; SG = 24; SAX = 28
    sW = 32; sWM = 33; sWN = 34; sT = 35; sRD = 36; sWR = 37
    sXS = 38; sWS1 = 39; sWS2 = 40; sXM0 = 41; sWM0 = 42; sMT = 43; sNT = 44; sBR = 45
    sTMP = 46; sTMP2 = 47; sTMP3 = 48; sTMP4 = 49
    sEX = 50
    sEO = 52
    sSC = 60
    sUAQ = 68; sUAK = 69; sD = 70; sUV = 71; sAXP = 72
    vLANE = 1; vXO = 2; vWO = 3; vXR = 4; vWR = 5; vXA = 6; vWA = 7
    vT = 8
    vG = 24
    vEO = 26
    vXF = 36
    vWF = 52
    vACC = 116
    NV = 180

    a("s_cmp_ge_u32 s2, 256")
    a("s_cbranch_scc1 K1_END")
    a("s_lshr_b32 s45, s2, 2")
    a("s_and_b32 s45, s45, 1")
    a("s_mul_i32 s46, s45, 24")
    a(f"s_load_dwordx4 s[8:11], s[0:1], s46")
    a(f"s_load_dwordx2 s[72:73], s[0:1], 0")
    a(f"s_load_dwordx2 s[6:7], s[0:1], 48")
    a(f"s_load_dwordx2 s[4:5], s[0:1], 72")
    a(f"v_and_b32 v{vLANE}, 63, v0")
    a(f"v_lshrrev_b32 v{vT}, 6, v0")
    a("s_nop 0")
    a(f"v_readfirstlane_b32 s{sW}, v{vT}")
    a(f"s_lshr_b32 s{sTMP}, s2, 3")
    a(f"s_and_b32 s{sMT}, s{sTMP}, 7")
    a(f"s_and_b32 s{sTMP2}, s2, 1")
    a(f"s_lshl_b32 s{sTMP2}, s{sTMP2}, 3")
    a(f"s_add_u32 s{sMT}, s{sMT}, s{sTMP2}")
    a(f"s_lshr_b32 s{sNT}, s{sTMP}, 3")
    a(f"s_and_b32 s{sTMP2}, s2, 2")
    a(f"s_lshl_b32 s{sTMP2}, s{sTMP2}, 1")
    a(f"s_add_u32 s{sNT}, s{sNT}, s{sTMP2}")
    a(f"s_and_b32 s{sWM}, s{sW}, 3")
    a(f"s_lshr_b32 s{sWN}, s{sW}, 2")
    a(f"s_mov_b32 s{sEX}, -1")
    a(f"s_mov_b32 s{sEX+1}, 0x0fffffff")
    a(f"v_lshrrev_b32 v{vT}, 2, v{vLANE}")
    a(f"s_lshl_b32 s{sTMP}, s{sMT}, 7")
    a(f"s_lshl_b32 s{sTMP2}, s{sW}, 4")
    a(f"s_add_u32 s{sTMP}, s{sTMP}, s{sTMP2}")
    a(f"v_add_u32 v{vT}, s{sTMP}, v{vT}")
    a(f"v_mul_u32_u24 v{vT}, 1280, v{vT}")
    a(f"v_lshrrev_b32 v{vT+1}, 4, v{vLANE}")
    a(f"v_sub_u32 v{vT+1}, 0, v{vT+1}")
    a(f"v_xor_b32 v{vT+1}, v{vT+1}, v{vLANE}")
    a(f"v_and_b32 v{vT+1}, 3, v{vT+1}")
    a(f"v_lshl_add_u32 v{vXO}, v{vT+1}, 4, v{vT}")
    a(f"v_cmp_le_u32 vcc, 30, v{vLANE}")
    a(f"v_mov_b32 v{vT}, 0")
    a(f"v_mov_b32 v{vT+1}, {3840 - 480}")
    a(f"v_cndmask_b32 v{vT}, v{vT}, v{vT+1}, vcc")
    a(f"v_lshl_add_u32 v{vT}, v{vLANE}, 4, v{vT}")
    a(f"s_mul_i32 s{sTMP}, s{sW}, {4*3840}")
    a(f"s_mul_i32 s{sTMP2}, s{sNT}, 480")
    a(f"s_add_u32 s{sTMP}, s{sTMP}, s{sTMP2}")
    a(f"v_add_u32 v{vWO}, s{sTMP}, v{vT}")
    a(f"s_lshl_b32 s{sXM0}, s{sW}, 10")
    a(f"s_mul_i32 s{sWM0}, s{sW}, {4*480}")
    a(f"s_lshr_b32 s{sTMP}, s{sW}, 1")
    a(f"s_lshl_b32 s{sTMP}, s{sTMP}, 7")
    a(f"s_add_u32 s{sWM0}, s{sWM0}, s{sTMP}")
    a(f"s_add_u32 s{sWM0}, s{sWM0}, 8192")
    a(f"v_and_b32 v{vT}, 15, v{vLANE}")
    a(f"v_lshrrev_b32 v{vT+1}, 2, v{vT}")
    a(f"v_sub_u32 v{vT+1}, 0, v{vT+1}")
    a(f"v_lshrrev_b32 v{vT+2}, 4, v{vLANE}")
    a(f"v_xor_b32 v{vT+1}, v{vT+1}, v{vT+2}")
    a(f"v_and_b32 v{vT+1}, 3, v{vT+1}")
    a(f"v_lshlrev_b32 v{vT+1}, 4, v{vT+1}")
    a(f"v_lshl_add_u32 v{vXR}, v{vT}, 6, v{vT+1}")
    a(f"s_lshl_b32 s{sTMP}, s{sWM}, 11")
    a(f"v_add_u32 v{vXR}, s{sTMP}, v{vXR}")
    a(f"v_mul_u32_u24 v{vWR}, 3968, v{vT+2}")
    a(f"v_lshrrev_b32 v{vT+1}, 2, v{vT}")
    a(f"v_mul_u32_u24 v{vT+1}, 480, v{vT+1}")
    a(f"v_add_u32 v{vWR}, v{vWR}, v{vT+1}")
    a(f"v_and_b32 v{vT+1}, 3, v{vLANE}")
    a(f"v_lshl_add_u32 v{vWR}, v{vT+1}, 3, v{vWR}")
    a(f"s_lshl_b32 s{sTMP}, s{sWN}, 8")
    a(f"s_add_u32 s{sTMP}, s{sTMP}, 8192")
    a(f"v_add_u32 v{vWR}, s{sTMP}, v{vWR}")
    a("s_waitcnt lgkmcnt(0)")
    srd(a, SX, 72, 73, 2048 * 1280)
    srd(a, SW, 10, 11, 640 * 3840)
    srd(a, SWS, 4, 5, WS_USED)
    srd(a, SG, 6, 7, 1280)
    srd(a, SAX, 72, 73, 2048 * 1280)
    a(f"s_lshl_b32 s{sTMP}, s2, 3")
    a(f"s_add_u32 s{sTMP}, s{sTMP}, s{sW}")
    a(f"s_mul_i32 s{sTMP4}, s{sTMP}, 1280")
    a(f"v_lshlrev_b32 v{vT}, 2, v{vLANE}")
    for j in range(5):
        a(f"buffer_load_dword v{vT+2+j}, v{vT}, s[{SAX}:{SAX+3}], s{sTMP4} offen offset:{j*256}")
    for j in range(5):
        a(f"buffer_load_dword v{vT+7+j}, v{vT}, s[{SG}:{SG+3}], 0 offen offset:{j*256}")

    def dma(step_s_x, step_s_w, wr):
        a(f"s_add_u32 m0, s{wr}, s{sXM0}")
        a(f"s_add_u32 s{sTMP3}, s{wr}, s{sWM0}")
        a(f"buffer_load_dwordx4 v{vXO}, s[{SX}:{SX+3}], s{sXS} offen lds")
        a(f"s_mov_b32 m0, s{sTMP3}")
        a(f"s_mov_b64 exec, s[{sEX}:{sEX+1}]")
        a(f"buffer_load_dwordx4 v{vWO}, s[{SW}:{SW+3}], s{sWS1} offen lds")
        a(f"s_add_u32 m0, s{sTMP3}, 960")
        a(f"s_add_u32 s{sXS}, s{sXS}, 64")
        a(f"buffer_load_dwordx4 v{vWO}, s[{SW}:{SW+3}], s{sWS2} offen lds")
        a(f"s_mov_b64 exec, -1")
        a(f"s_add_u32 s{sWS1}, s{sWS1}, {32*3840}")
        a(f"s_add_u32 s{sWS2}, s{sWS2}, {32*3840}")

    a(f"s_mov_b32 s{sXS}, 0")
    a(f"s_mov_b32 s{sWS1}, 0")
    a(f"s_mov_b32 s{sWS2}, {2*3840}")
    for st in range(5):
        a(f"s_mov_b32 s{sWR}, {st*K1_BUF}")
        dma(None, None, sWR)
    for i in range(64):
        a(f"v_mov_b32 v{vACC+i}, 0")
    a("s_waitcnt vmcnt(15)")
    a(f"v_mov_b32 v{vG}, 0")
    for j in range(5):
        x = vT + 2 + j; w = vT + 7 + j
        a(f"v_lshlrev_b32 v{vT}, 16, v{x}")
        a(f"v_lshlrev_b32 v{vT+1}, 16, v{w}")
        a(f"v_fmac_f32 v{vG}, v{vT}, v{vT+1}")
        a(f"v_and_b32 v{x}, 0xffff0000, v{x}")
        a(f"v_and_b32 v{w}, 0xffff0000, v{w}")
        a(f"v_fmac_f32 v{vG}, v{x}, v{w}")
    for r in (8, 4, 2, 1):
        a("s_nop 1")
        a(f"v_add_f32_dpp v{vG}, v{vG}, v{vG} row_ror:{r} row_mask:0xf bank_mask:0xf")
    a("s_nop 1")
    a(f"v_readlane_b32 s{sTMP}, v{vG}, 0")
    a(f"v_readlane_b32 s{sTMP2}, v{vG}, 16")
    a(f"v_readlane_b32 s{sTMP3}, v{vG}, 32")
    a(f"v_readlane_b32 s{sTMP4}, v{vG}, 48")
    a("s_nop 1")
    a(f"v_mov_b32 v{vG}, s{sTMP}")
    a(f"v_add_f32 v{vG}, s{sTMP2}, v{vG}")
    a(f"v_add_f32 v{vG}, s{sTMP3}, v{vG}")
    a(f"v_add_f32 v{vG}, s{sTMP4}, v{vG}")
    a(f"v_mul_f32 v{vG}, {f2u(-1.4426950408889634):#x}, v{vG}")
    a(f"v_exp_f32 v{vG}, v{vG}")
    a("s_nop 0")
    a(f"v_add_f32 v{vG}, 1.0, v{vG}")
    a(f"v_rcp_f32 v{vG}, v{vG}")
    a(f"s_lshl_b32 s{sTMP}, s{sMT}, 7")
    a(f"s_lshl_b32 s{sTMP2}, s{sWM}, 5")
    a(f"s_add_u32 s{sTMP}, s{sTMP}, s{sTMP2}")
    a(f"s_lshr_b32 s{sTMP2}, s{sTMP}, 8")
    a(f"s_lshr_b32 s{sTMP3}, s{sTMP}, 5")
    a(f"s_and_b32 s{sTMP3}, s{sTMP3}, 7")
    a(f"s_lshl_b32 s{sTMP4}, s{sTMP3}, 10")
    a(f"s_mul_i32 s{sUAQ}, s{sTMP2}, {Q_CH}")
    a(f"s_add_u32 s{sUAQ}, s{sUAQ}, s{sTMP4}")
    a(f"s_mul_i32 s{sUAK}, s{sTMP2}, {KV_CH}")
    a(f"s_mul_i32 s{sUV}, s{sTMP3}, 1280")
    a(f"s_add_u32 s{sUV}, s{sUV}, s{sUAK}")
    a(f"s_add_u32 s{sUV}, s{sUV}, 10240")
    a(f"s_add_u32 s{sUAK}, s{sUAK}, s{sTMP4}")
    a(f"s_lshr_b32 s{sD}, s{sTMP3}, 1")
    a(f"s_lshl_b32 s{sD}, s{sD}, 9")
    a(f"s_and_b32 s{sTMP2}, s{sTMP3}, 1")
    a(f"s_lshl_b32 s{sTMP2}, s{sTMP2}, 3")
    a(f"s_add_u32 s{sD}, s{sD}, s{sTMP2}")
    a(f"s_add_u32 s{sD}, s{sD}, 8192")
    a(f"s_sub_u32 s{sD}, s{sD}, s{sTMP4}")
    a(f"s_mul_i32 s{sTMP}, s{sBR}, {QB_OFF - QA_OFF}")
    a(f"s_add_u32 s{sTMP}, s{sTMP}, {QA_OFF}")
    a(f"s_add_u32 s{sUAQ}, s{sUAQ}, s{sTMP}")
    a(f"s_mul_i32 s{sTMP}, s{sBR}, {KVB_OFF - KVA_OFF}")
    a(f"s_add_u32 s{sUAK}, s{sUAK}, s{sTMP}")
    a(f"s_add_u32 s{sUV}, s{sUV}, s{sTMP}")
    a(f"s_mul_i32 s{sTMP}, s{sNT}, 15")
    a(f"s_lshl_b32 s{sTMP2}, s{sWN}, 3")
    a(f"s_add_u32 s{sBR}, s{sTMP}, s{sTMP2}")
    a(f"s_mov_b32 s74, {KV_HEAD}")
    a(f"s_mov_b32 s75, {Q_HEAD}")
    a(f"s_cmp_ge_u32 s{sNT}, 6")
    a("s_cbranch_scc1 K1_V")
    a(f"s_cmp_eq_u32 s{sNT}, 5")
    a("s_cbranch_scc1 K1_M")
    a(f"s_cmp_eq_u32 s{sWN}, 0")
    a("s_cbranch_scc1 K1_T8")
    a("s_branch K1_T7")
    a.lab("K1_M")
    a(f"s_cmp_eq_u32 s{sWN}, 0")
    a("s_cbranch_scc1 K1_T5C3")
    a("s_branch K1_C7")
    a.lab("K1_V")
    a(f"s_cmp_eq_u32 s{sWN}, 0")
    a("s_cbranch_scc1 K1_C8")
    a("s_branch K1_C7")

    sFB = sBR
    def variant(tag, kinds):
        NB = len(kinds)
        a.lab(f"K1_{tag}")
        for b, kd in enumerate(kinds):
            if kd == "T":
                a(f"s_add_u32 s{sTMP}, s{sFB}, {b}")
                a(f"s_cmp_ge_u32 s{sTMP}, 40")
                a(f"s_cselect_b32 s{sTMP2}, 40, 0")
                a(f"s_cselect_b32 s{sEO+b}, s{sUAK}, s{sUAQ}")
                a(f"s_cselect_b32 s{sTMP3}, s74, s75")
                a(f"s_cselect_b32 s{sSC+b}, 1.0, {f2u(QSCALE):#x}")
                a(f"s_sub_u32 s{sTMP}, s{sTMP}, s{sTMP2}")
                a(f"s_lshl_b32 s{sTMP}, s{sTMP}, 2")
                a(f"v_lshrrev_b32 v{vT}, 4, v{vLANE}")
                a(f"v_add_u32 v{vT}, s{sTMP}, v{vT}")
                a(f"v_mul_u32_u24 v{vT+1}, 52429, v{vT}")
                a(f"v_lshrrev_b32 v{vT+1}, 18, v{vT+1}")
                a(f"v_mul_u32_u24 v{vT+2}, 5, v{vT+1}")
                a(f"v_sub_u32 v{vT+2}, v{vT}, v{vT+2}")
                a(f"v_lshrrev_b32 v{vT+3}, 1, v{vT+2}")
                a(f"v_lshlrev_b32 v{vT+3}, 9, v{vT+3}")
                a(f"v_and_b32 v{vT+4}, 1, v{vT+2}")
                a(f"v_lshl_add_u32 v{vT+3}, v{vT+4}, 3, v{vT+3}")
                a(f"v_mov_b32 v{vT+4}, s{sD}")
                a(f"v_cmp_eq_u32 vcc, 4, v{vT+2}")
                a(f"v_mul_lo_u32 v{vT+1}, v{vT+1}, s{sTMP3}")
                a(f"v_and_b32 v{vT+5}, 15, v{vLANE}")
                a(f"v_cndmask_b32 v{vT+3}, v{vT+3}, v{vT+4}, vcc")
                a(f"v_mov_b32 v{vT+4}, v{vT+5}")
                a(f"v_lshl_add_u32 v{vT+3}, v{vT+4}, 4, v{vT+3}")
                a(f"v_add_u32 v{vEO+b}, v{vT+1}, v{vT+3}")
            else:
                a(f"s_add_u32 s{sTMP}, s{sFB}, {b - 80}")
                a(f"s_lshl_b32 s{sTMP}, s{sTMP}, 4")
                a(f"s_mov_b32 s{sEO+b}, s{sUV}")
                a(f"s_mov_b32 s{sTMP3}, {KV_HEAD}")
                a(f"v_and_b32 v{vT}, 15, v{vLANE}")
                a(f"v_add_u32 v{vT}, s{sTMP}, v{vT}")
                a(f"v_mul_u32_u24 v{vT+1}, 52429, v{vT}")
                a(f"v_lshrrev_b32 v{vT+1}, 20, v{vT+1}")
                a(f"v_mul_u32_u24 v{vT+2}, 20, v{vT+1}")
                a(f"v_sub_u32 v{vT+2}, v{vT}, v{vT+2}")
                a(f"v_lshrrev_b32 v{vT+3}, 4, v{vLANE}")
                a(f"v_and_b32 v{vT+4}, 1, v{vT+3}")
                a(f"v_mul_u32_u24 v{vT+4}, 320, v{vT+4}")
                a(f"v_lshrrev_b32 v{vT+3}, 1, v{vT+3}")
                a(f"v_lshl_add_u32 v{vT+4}, v{vT+3}, 3, v{vT+4}")
                a(f"v_lshl_add_u32 v{vT+4}, v{vT+2}, 4, v{vT+4}")
                a(f"v_mul_lo_u32 v{vT+1}, v{vT+1}, s{sTMP3}")
                a(f"v_add_u32 v{vEO+b}, v{vT+1}, v{vT+4}")
        def reads(st):
            out = []
            for mb in range(2):
                out.append(f"ds_read_b128 v[{vXF+st*8+mb*4}:{vXF+st*8+mb*4+3}], v{vXA} offset:{mb*1024}")
            for b in range(NB):
                r = vWF + st * 32 + b * 4
                out.append(f"ds_read_b64_tr_b16 v[{r}:{r+1}], v{vWA} offset:{b*32}")
                out.append(f"ds_read_b64_tr_b16 v[{r+2}:{r+3}], v{vWA} offset:{b*32+1920}")
            return out
        def mfmas(st):
            out = []
            for b in range(NB):
                for mb in range(2):
                    acc = vACC + (b * 2 + mb) * 4
                    xf = f"v[{vXF+st*8+mb*4}:{vXF+st*8+mb*4+3}]"
                    wf = f"v[{vWF+st*32+b*4}:{vWF+st*32+b*4+3}]"
                    if kinds[b] == "T":
                        out.append(f"v_mfma_f32_16x16x32_bf16 v[{acc}:{acc+3}], {wf}, {xf}, v[{acc}:{acc+3}]")
                    else:
                        out.append(f"v_mfma_f32_16x16x32_bf16 v[{acc}:{acc+3}], {xf}, {wf}, v[{acc}:{acc+3}]")
            return out
        a("s_waitcnt vmcnt(12)")
        a("s_barrier")
        a(f"v_mov_b32 v{vXA}, v{vXR}")
        a(f"v_mov_b32 v{vWA}, v{vWR}")
        for r in reads(0):
            a(r)
        a(f"s_mov_b32 s{sT}, 0")
        a(f"s_mov_b32 s{sRD}, {K1_BUF}")
        a(f"s_mov_b32 s{sWR}, {5*K1_BUF}")
        a.lab(f"K1_{tag}_LOOP")
        for half in range(2):
            a(f"s_cmp_ge_u32 s{sT}, 16")
            a(f"s_cbranch_scc1 K1_{tag}_W0_{half}")
            a("s_waitcnt vmcnt(9) lgkmcnt(0)")
            a.lab(f"K1_{tag}_WB_{half}")
            a("s_barrier")
            a(f"v_add_u32 v{vXA}, s{sRD}, v{vXR}")
            a(f"v_add_u32 v{vWA}, s{sRD}, v{vWR}")
            mf = mfmas(half)
            rd = reads(half ^ 1)
            a(mf[0]); a(mf[1])
            a(f"s_cmp_ge_u32 s{sT}, 15")
            a(f"s_cbranch_scc1 K1_{tag}_ND_{half}")
            dma(None, None, sWR)
            a.lab(f"K1_{tag}_ND_{half}")
            rest = mf[2:]
            k = 0
            for i, m in enumerate(rest):
                tgt = min(len(rd), ((i + 1) * len(rd) + len(rest) - 3) // (len(rest) - 2))
                while k < tgt:
                    a(rd[k]); k += 1
                a(m)
            while k < len(rd):
                a(rd[k]); k += 1
            a(f"s_add_u32 s{sRD}, s{sRD}, {K1_BUF}")
            a(f"s_cmp_eq_u32 s{sRD}, {K1_LDS}")
            a(f"s_cselect_b32 s{sRD}, 0, s{sRD}")
            a(f"s_add_u32 s{sWR}, s{sWR}, {K1_BUF}")
            a(f"s_cmp_eq_u32 s{sWR}, {K1_LDS}")
            a(f"s_cselect_b32 s{sWR}, 0, s{sWR}")
            a(f"s_add_u32 s{sT}, s{sT}, 1")
        a(f"s_cmp_lt_u32 s{sT}, 20")
        a(f"s_cbranch_scc1 K1_{tag}_LOOP")
        a("s_nop 7")
        a("s_nop 1")
        for b, kd in enumerate(kinds):
            for mb in range(2):
                acc = vACC + (b * 2 + mb) * 4
                t = vT + ((b * 2 + mb) % 4) * 2
                if kd == "T":
                    for i in range(4):
                        a(f"v_mul_f32 v{acc+i}, s{sSC+b}, v{acc+i}")
                a(f"v_cvt_pk_bf16_f32 v{t}, v{acc}, v{acc+1}")
                a(f"v_cvt_pk_bf16_f32 v{t+1}, v{acc+2}, v{acc+3}")
                off = mb * 256 if kd == "T" else mb * 640
                a(f"buffer_store_dwordx2 v[{t}:{t+1}], v{vEO+b}, s[{SWS}:{SWS+3}], s{sEO+b} offen offset:{off}")
        a("s_branch K1_GST")
        for half in range(2):
            a.lab(f"K1_{tag}_W0_{half}")
            a("s_waitcnt vmcnt(0) lgkmcnt(0)")
            a(f"s_branch K1_{tag}_WB_{half}")

    variant("T8", "T" * 8)
    variant("T7", "T" * 7)
    variant("T5C3", "TTTTTCCC")
    variant("C7", "C" * 7)
    variant("C8", "C" * 8)
    a.lab("K1_GST")
    a(f"s_lshl_b32 s{sTMP}, s2, 3")
    a(f"s_add_u32 s{sTMP}, s{sTMP}, s{sW}")
    a(f"s_lshl_b32 s{sTMP}, s{sTMP}, 2")
    a(f"s_add_u32 s{sTMP}, s{sTMP}, {G_OFF}")
    a(f"v_mov_b32 v{vT+8}, 0")
    a("s_mov_b64 exec, 1")
    a(f"buffer_store_dword v{vG}, v{vT+8}, s[{SWS}:{SWS+3}], s{sTMP} offen")
    a.lab("K1_END")
    a("s_endpgm")
    return name, NV


K2_LDS = 163840
NEGBIG = -1.0e30

def mask_table():
    vals = []
    for j in range(6):
        for l in range(64):
            c = l & 31; h = l >> 5
            for i in range(4):
                if j < 4:
                    r = j * 4 + i
                    row = (r & 3) + 8 * (r >> 2) + 4 * h
                    diff = c + 16 - row
                else:
                    r = (j - 4) * 4 + i
                    row = (r & 3) + 8 * (r >> 2) + 4 * h
                    diff = c - 16 - row
                ok = 0 <= diff <= 14 and diff % 2 == 0
                vals.append(0 if ok else f2u(NEGBIG))
    return vals

def gen_k2(a):
    name = "k2_attn_kernel"
    kernel_head(a, name)
    SWS = 8
    sW = 12; sHEAD = 13; sQB = 14; sS0 = 15; sT0 = 16; sT1 = 17; sT2 = 18; sT3 = 19
    sC = 20; sPASS = 21; sVM = 22
    sLO = 24
    sTAB = 26
    sDM = 28; sDS = 29
    vLANE = 1; vL16 = 2; vK4A = 3; vVA = 4; vKc = 5; vK4c = 6; vVc = 7
    vT = 8
    vGATE = 16
    vOA = 18
    vQ16 = 24; vQ8 = 28
    vQA16 = 32; vQA8 = 36
    vKA = 40
    vKB = 48
    vV1 = 56
    vV2 = 64
    vP = 72
    vS0 = 84
    vS1 = 100
    vNEG = 116
    vO = 132
    vAK = 148
    vAV = 160
    NV = 172
    S = [vS0, vS1]
    ONES = 0x3f803f80

    a("s_cmp_ge_u32 s2, 256")
    a("s_cbranch_scc1 K2_END")
    a("s_load_dwordx2 s[4:5], s[0:1], 72")
    a(f"v_and_b32 v{vLANE}, 63, v0")
    a(f"v_lshrrev_b32 v{vT}, 6, v0")
    a("s_nop 0")
    a(f"v_readfirstlane_b32 s{sW}, v{vT}")
    a(f"s_and_b32 s{sHEAD}, s2, 7")
    a(f"s_lshl_b32 s{sHEAD}, s{sHEAD}, 2")
    a(f"s_lshr_b32 s{sT0}, s2, 6")
    a(f"s_add_u32 s{sHEAD}, s{sHEAD}, s{sT0}")
    a(f"s_lshr_b32 s{sQB}, s2, 3")
    a(f"s_and_b32 s{sQB}, s{sQB}, 7")
    a(f"s_mov_b32 s{sVM}, 0x000fffff")
    a(f"s_mov_b32 s{sVM+1}, 0x000fffff")
    a(f"s_mov_b32 s{sLO}, -1")
    a(f"s_mov_b32 s{sLO+1}, 0")
    a(f"v_lshlrev_b32 v{vL16}, 4, v{vLANE}")
    a(f"v_and_b32 v{vT}, 31, v{vLANE}")
    a(f"v_lshlrev_b32 v{vK4A}, 4, v{vT}")
    a(f"v_lshrrev_b32 v{vT+1}, 5, v{vLANE}")
    a(f"v_mul_u32_u24 v{vVA}, 20, v{vT+1}")
    a(f"v_add_u32 v{vVA}, v{vVA}, v{vT}")
    a(f"v_lshlrev_b32 v{vVA}, 4, v{vVA}")
    a(f"s_lshl_b32 s{sS0}, s{sQB}, 8")
    a(f"s_lshl_b32 s{sT0}, s{sW}, 5")
    a(f"s_add_u32 s{sS0}, s{sS0}, s{sT0}")
    a(f"s_getpc_b64 s[{sTAB}:{sTAB+1}]")
    a.lab("K2_PC")
    a(f"s_add_u32 s{sTAB}, s{sTAB}, K2_TABLE-K2_PC")
    a(f"s_addc_u32 s{sTAB+1}, s{sTAB+1}, 0")
    a("s_waitcnt lgkmcnt(0)")
    srd(a, SWS, 4, 5, WS_USED)
    a(f"s_mul_i32 s{sDS}, s{sHEAD}, {KV_HEAD}")
    a(f"s_add_u32 s{sDS}, s{sDS}, {KVB_OFF}")
    a(f"s_lshl_b32 s{sDM}, s{sW}, 10")
    a(f"s_add_u32 s{sDS}, s{sDS}, s{sDM}")
    def dma1():
        a(f"s_mov_b32 m0, s{sDM}")
        a(f"s_add_u32 s{sDM}, s{sDM}, 8192")
        a(f"buffer_load_dwordx4 v{vL16}, s[{SWS}:{SWS+3}], s{sDS} offen lds")
        a(f"s_add_u32 s{sDS}, s{sDS}, 8192")
    for j in range(3):
        dma1()
    a(f"s_mul_i32 s{sT0}, s{sHEAD}, {Q_HEAD}")
    a(f"s_mul_i32 s{sT1}, s{sQB}, {Q_CH}")
    a(f"s_add_u32 s{sT0}, s{sT0}, s{sT1}")
    a(f"s_lshl_b32 s{sT1}, s{sW}, 10")
    a(f"s_add_u32 s{sT1}, s{sT1}, s{sT0}")
    a(f"s_lshr_b32 s{sT2}, s{sW}, 1")
    a(f"s_lshl_b32 s{sT2}, s{sT2}, 9")
    a(f"s_and_b32 s{sT3}, s{sW}, 1")
    a(f"s_lshl_b32 s{sT3}, s{sT3}, 3")
    a(f"s_add_u32 s{sT2}, s{sT2}, s{sT3}")
    a(f"s_add_u32 s{sT2}, s{sT2}, s{sT0}")
    a(f"s_add_u32 s{sT2}, s{sT2}, 8192")
    a(f"s_add_u32 s{sT0}, s{sT1}, {QA_OFF}")
    a(f"buffer_load_dwordx4 v[{vQA16}:{vQA16+3}], v{vL16}, s[{SWS}:{SWS+3}], s{sT0} offen")
    a(f"s_add_u32 s{sT0}, s{sT2}, {QA_OFF}")
    a(f"buffer_load_dwordx2 v[{vQA8}:{vQA8+1}], v{vK4A}, s[{SWS}:{SWS+3}], s{sT0} offen")
    a(f"s_add_u32 s{sT0}, s{sT1}, {QB_OFF}")
    a(f"buffer_load_dwordx4 v[{vQ16}:{vQ16+3}], v{vL16}, s[{SWS}:{SWS+3}], s{sT0} offen")
    a(f"s_add_u32 s{sT0}, s{sT2}, {QB_OFF}")
    a(f"buffer_load_dwordx2 v[{vQ8}:{vQ8+1}], v{vK4A}, s[{SWS}:{SWS+3}], s{sT0} offen")
    a(f"s_lshl_b32 s{sT0}, s{sHEAD}, 11")
    a(f"s_add_u32 s{sT0}, s{sT0}, s{sS0}")
    a(f"s_sub_u32 s{sT0}, s{sT0}, 16")
    a(f"v_and_b32 v{vT}, 31, v{vLANE}")
    a(f"v_lshrrev_b32 v{vT+7}, 5, v{vLANE}")
    a(f"v_lshlrev_b32 v{vT+7}, 9, v{vT+7}")
    a(f"s_mov_b32 s{sT1}, {KV_CH}")
    for y in range(2):
        a(f"v_add_u32 v{vT+1}, s{sT0}, v{vT}")
        if y: a(f"v_add_u32 v{vT+1}, 32, v{vT+1}")
        a(f"v_ashrrev_i32 v{vT+2}, 8, v{vT+1}")
        a(f"v_mul_lo_u32 v{vT+2}, v{vT+2}, s{sT1}")
        a(f"v_and_b32 v{vT+3}, 31, v{vT+1}")
        a(f"v_lshl_add_u32 v{vT+2}, v{vT+3}, 4, v{vT+2}")
        a(f"v_bfe_u32 v{vT+3}, v{vT+1}, 5, 3")
        a(f"v_lshl_add_u32 v{vT+4}, v{vT+3}, 10, v{vT+2}")
        a(f"v_add_u32 v{vT+4}, v{vT+4}, v{vT+7}")
        a(f"buffer_load_dwordx4 v[{vAK+4*y}:{vAK+4*y+3}], v{vT+4}, s[{SWS}:{SWS+3}], 0 offen")
        a(f"v_bfe_u32 v{vT+3}, v{vT+1}, 6, 2")
        a(f"v_lshl_add_u32 v{vT+5}, v{vT+3}, 9, v{vT+2}")
        a(f"v_bfe_u32 v{vT+3}, v{vT+1}, 5, 1")
        a(f"v_lshl_add_u32 v{vT+5}, v{vT+3}, 3, v{vT+5}")
        a(f"v_add_u32 v{vT+5}, 8192, v{vT+5}")
        a(f"buffer_load_dwordx2 v[{vAK+8+2*y}:{vAK+8+2*y+1}], v{vT+5}, s[{SWS}:{SWS+3}], 0 offen")
    for i in range(12):
        a(f"v_mov_b32 v{vAV+i}, {ONES:#x}")
    for i in range(16):
        a(f"v_mov_b32 v{vV1+i}, {ONES:#x}")
    a(f"s_lshl_b32 s{sT0}, s{sHEAD}, 7")
    a(f"s_lshr_b32 s{sT1}, s{sS0}, 4")
    a(f"s_add_u32 s{sT0}, s{sT0}, s{sT1}")
    a(f"s_mov_b64 exec, s[{sVM}:{sVM+1}]")
    for j in range(3):
        a(f"s_add_i32 s{sT1}, s{sT0}, {j-1}")
        a(f"s_max_i32 s{sT1}, s{sT1}, 0")
        a(f"s_lshr_b32 s{sT2}, s{sT1}, 4")
        a(f"s_mul_i32 s{sT2}, s{sT2}, {KV_CH}")
        a(f"s_and_b32 s{sT1}, s{sT1}, 15")
        a(f"s_mul_i32 s{sT1}, s{sT1}, 640")
        a(f"s_add_u32 s{sT1}, s{sT1}, s{sT2}")
        a(f"s_add_u32 s{sT1}, s{sT1}, 10240")
        a(f"buffer_load_dwordx4 v[{vAV+4*j}:{vAV+4*j+3}], v{vVA}, s[{SWS}:{SWS+3}], s{sT1} offen")
    a("s_mov_b64 exec, -1")
    for j in range(6):
        d = vS0 + 4 * j if j < 4 else vS1 + 4 * (j - 4)
        a(f"global_load_dwordx4 v[{d}:{d+3}], v{vL16}, s[{sTAB}:{sTAB+1}] offset:{j*1024 if j < 4 else 0}" if j < 4 else
          f"global_load_dwordx4 v[{d}:{d+3}], v{vT+6}, s[{sTAB}:{sTAB+1}] offset:{(j-4)*1024}")
        if j == 3:
            a(f"v_add_u32 v{vT+6}, 4096, v{vL16}")
    a(f"v_and_b32 v{vT}, 31, v{vLANE}")
    a(f"v_lshlrev_b32 v{vT}, 2, v{vT}")
    a(f"s_lshl_b32 s{sT0}, s{sS0}, 2")
    a(f"s_add_u32 s{sT0}, s{sT0}, {G_OFF}")
    a(f"buffer_load_dword v{vGATE}, v{vT}, s[{SWS}:{SWS+3}], s{sT0} offen")
    for j in range(3, 20):
        dma1()
    a("s_waitcnt vmcnt(17)")
    a(f"s_mov_b64 exec, s[{sLO}:{sLO+1}]")
    a(f"s_not_b64 exec, exec")
    for r in (vQA8, vQA8 + 1, vQ8, vQ8 + 1):
        a(f"v_mov_b32 v{r}, 0")
    a("s_mov_b64 exec, -1")
    a(f"s_cmp_lg_u32 s{sS0}, 0")
    a("s_cbranch_scc1 K2_NOFIX")
    for i in range(8):
        a(f"v_mov_b32 v{vS0+i}, {f2u(NEGBIG):#x}")
    a.lab("K2_NOFIX")
    a("s_nop 1")
    a(f"v_mfma_f32_32x32x16_bf16 v[{vS0}:{vS0+15}], v[{vAK}:{vAK+3}], v[{vQA16}:{vQA16+3}], v[{vS0}:{vS0+15}]")
    a(f"v_mfma_f32_32x32x16_bf16 v[{vS1}:{vS1+15}], v[{vAK+4}:{vAK+7}], v[{vQA16}:{vQA16+3}], v[{vS1}:{vS1+15}]")
    a(f"v_mfma_f32_32x32x8_bf16 v[{vS0}:{vS0+15}], v[{vAK+8}:{vAK+9}], v[{vQA8}:{vQA8+1}], v[{vS0}:{vS0+15}]")
    a(f"v_mfma_f32_32x32x8_bf16 v[{vS1}:{vS1+15}], v[{vAK+10}:{vAK+11}], v[{vQA8}:{vQA8+1}], v[{vS1}:{vS1+15}]")
    for i in range(16):
        a(f"v_mov_b32 v{vO+i}, 0")
    a("s_nop 7")
    regs = [vS0 + i for i in range(16)] + [vS1 + i for i in range(8)]
    m = vT
    a(f"v_max3_f32 v{m}, v{regs[0]}, v{regs[1]}, v{regs[2]}")
    for i in range(3, 23, 2):
        a(f"v_max3_f32 v{m}, v{m}, v{regs[i]}, v{regs[i+1]}")
    a(f"v_max_f32 v{m}, v{m}, v{regs[23]}")
    a(f"v_mov_b32 v{m+1}, v{m}")
    a("s_nop 1")
    a(f"v_permlane32_swap_b32 v{m}, v{m+1}")
    a("s_nop 1")
    a(f"v_max_f32 v{m}, v{m}, v{m+1}")
    a(f"v_sub_f32 v{m+2}, 0, v{m}")
    a(f"v_sub_f32 v{m+3}, 0, v{m}")
    for i in range(0, 24, 2):
        a(f"v_pk_add_f32 v[{regs[i]}:{regs[i]+1}], v[{regs[i]}:{regs[i]+1}], v[{m+2}:{m+3}]")
    for i in range(24):
        a(f"v_exp_f32 v{regs[i]}, v{regs[i]}")
    a("s_nop 0")
    for i in range(12):
        a(f"v_cvt_pk_bf16_f32 v{vP+i}, v{regs[2*i]}, v{regs[2*i+1]}")
    a("s_nop 1")
    for j in range(3):
        a(f"v_mfma_f32_32x32x16_bf16 v[{vO}:{vO+15}], v[{vAV+4*j}:{vAV+4*j+3}], v[{vP+4*j}:{vP+4*j+3}], v[{vO}:{vO+15}]")
    a("s_nop 15")
    a(f"v_rcp_f32 v{vT}, v{vO+12}")
    a("s_nop 0")
    a(f"v_mul_f32 v{vT}, v{vT}, v{vGATE}")
    for i in range(12):
        a(f"v_mul_f32 v{vO+i}, v{vO+i}, v{vT}")
    for i in range(6):
        a(f"v_cvt_pk_bf16_f32 v{vOA+i}, v{vO+2*i}, v{vO+2*i+1}")
    a(f"s_mov_b32 s{sPASS}, 0")
    a("s_barrier")
    a.lab("K2_START")
    a(f"v_mov_b32 v{vKc}, v{vL16}")
    a(f"v_mov_b32 v{vK4c}, v{vK4A}")
    a(f"v_mov_b32 v{vVc}, v{vVA}")
    a(f"ds_read_b128 v[{vKA}:{vKA+3}], v{vKc}")
    a(f"ds_read_b128 v[{vKB}:{vKB+3}], v{vK4c} offset:8192")
    a(f"ds_read_b128 v[{vKA+4}:{vKA+7}], v{vKc} offset:1024")
    a(f"s_mov_b64 exec, s[{sVM}:{sVM+1}]")
    a(f"ds_read_b128 v[{vV1}:{vV1+3}], v{vVc} offset:10240")
    a("s_mov_b64 exec, -1")
    for i in range(16):
        a(f"v_mov_b32 v{vO+i}, 0")
    for i in range(4):
        a(f"v_mov_b32 v{vP+4+i}, 0")
    a(f"s_cmp_lg_u32 s{sPASS}, 0")
    a("s_cbranch_scc1 K2_HAVEM")
    a("s_waitcnt lgkmcnt(0)")
    a(f"v_mfma_f32_32x32x16_bf16 v[{vS0}:{vS0+15}], v[{vKA}:{vKA+3}], v[{vQ16}:{vQ16+3}], 0")
    a(f"v_mfma_f32_32x32x8_bf16 v[{vS0}:{vS0+15}], v[{vKB}:{vKB+1}], v[{vQ8}:{vQ8+1}], v[{vS0}:{vS0+15}]")
    a("s_nop 15")
    m = vT
    a(f"v_max3_f32 v{m}, v{vS0}, v{vS0+1}, v{vS0+2}")
    for i in range(3, 15, 2):
        a(f"v_max3_f32 v{m}, v{m}, v{vS0+i}, v{vS0+i+1}")
    a(f"v_max_f32 v{m}, v{m}, v{vS0+15}")
    a(f"v_mov_b32 v{m+1}, v{m}")
    a("s_nop 1")
    a(f"v_permlane32_swap_b32 v{m}, v{m+1}")
    a("s_nop 1")
    a(f"v_max_f32 v{m}, v{m}, v{m+1}")
    for i in range(16):
        a(f"v_sub_f32 v{vNEG+i}, 0, v{m}")
    a.lab("K2_HAVEM")
    a("s_waitcnt lgkmcnt(0)")
    a("s_nop 1")
    a(f"v_mfma_f32_32x32x16_bf16 v[{vS0}:{vS0+15}], v[{vKA}:{vKA+3}], v[{vQ16}:{vQ16+3}], v[{vNEG}:{vNEG+15}]")
    a(f"v_mfma_f32_32x32x8_bf16 v[{vS0}:{vS0+15}], v[{vKB}:{vKB+1}], v[{vQ8}:{vQ8+1}], v[{vS0}:{vS0+15}]")
    a(f"s_mov_b32 s{sC}, 0")
    a("s_nop 15")
    a.lab("K2_LOOP")
    def koff(tt):
        return (tt // 8) * KV_CH + (tt % 8) * 1024
    def k4off(tt):
        return (tt // 8) * KV_CH + 8192 + ((tt % 8) // 2) * 512
    def voff(g):
        return (g // 16) * KV_CH + 10240 + (g % 16) * 640
    for tt in range(8):
        cur = S[tt & 1]; nxt = S[(tt + 1) & 1]
        ka = vKA + 4 * ((tt + 1) & 1)
        kb = vKB + 4 * (((tt + 1) >> 1) & 1) + 2 * ((tt + 1) & 1)
        if tt == 6:
            a(f"s_cmp_lg_u32 s{sPASS}, 0")
            a(f"s_cbranch_scc1 K2_NOSYNC")
            a(f"s_cmp_eq_u32 s{sC}, 0")
            a(f"s_cbranch_scc1 K2_SYNC0")
            a(f"s_cmp_eq_u32 s{sC}, 2")
            a(f"s_cbranch_scc1 K2_SYNC2")
            a.lab("K2_NOSYNC")
        a("s_waitcnt lgkmcnt(0)")
        a(f"v_mfma_f32_32x32x16_bf16 v[{nxt}:{nxt+15}], v[{ka}:{ka+3}], v[{vQ16}:{vQ16+3}], v[{vNEG}:{vNEG+15}]")
        d = vKA + 4 * (tt & 1)
        a(f"ds_read_b128 v[{d}:{d+3}], v{vKc} offset:{koff(tt+2)}")
        if tt % 2 == 0:
            d = vKB + 4 * (((tt + 2) >> 1) & 1)
            a(f"ds_read_b128 v[{d}:{d+3}], v{vK4c} offset:{k4off(tt+2)}")
        for i in range(0, 4):
            a(f"v_exp_f32 v{cur+i}, v{cur+i}")
        v2p = vV2 + 4 * ((tt + 1) & 1)
        a(f"v_mfma_f32_32x32x16_bf16 v[{vO}:{vO+15}], v[{v2p}:{v2p+3}], v[{vP+4}:{vP+7}], v[{vO}:{vO+15}]")
        a(f"s_mov_b64 exec, s[{sVM}:{sVM+1}]")
        d = vV2 + 4 * (tt & 1)
        a(f"ds_read_b128 v[{d}:{d+3}], v{vVc} offset:{voff(2*tt+1)}")
        d = vV1 + 4 * ((tt + 1) & 1)
        a(f"ds_read_b128 v[{d}:{d+3}], v{vVc} offset:{voff(2*tt+2)}")
        a("s_mov_b64 exec, -1")
        for i in range(4, 8):
            a(f"v_exp_f32 v{cur+i}, v{cur+i}")
        for i in range(4):
            a(f"v_cvt_pk_bf16_f32 v{vP+i}, v{cur+2*i}, v{cur+2*i+1}")
        a(f"v_mfma_f32_32x32x8_bf16 v[{nxt}:{nxt+15}], v[{kb}:{kb+1}], v[{vQ8}:{vQ8+1}], v[{nxt}:{nxt+15}]")
        for i in range(8, 12):
            a(f"v_exp_f32 v{cur+i}, v{cur+i}")
        v1 = vV1 + 4 * (tt & 1)
        a(f"v_mfma_f32_32x32x16_bf16 v[{vO}:{vO+15}], v[{v1}:{v1+3}], v[{vP}:{vP+3}], v[{vO}:{vO+15}]")
        for i in range(12, 16):
            a(f"v_exp_f32 v{cur+i}, v{cur+i}")
        for i in range(4, 8):
            a(f"v_cvt_pk_bf16_f32 v{vP+i}, v{cur+2*i}, v{cur+2*i+1}")
    a(f"v_add_u32 v{vKc}, {KV_CH}, v{vKc}")
    a(f"v_add_u32 v{vK4c}, {KV_CH}, v{vK4c}")
    a(f"v_add_u32 v{vVc}, {KV_CH}, v{vVc}")
    a(f"s_add_u32 s{sC}, s{sC}, 1")
    a(f"s_cmp_lt_u32 s{sC}, 8")
    a("s_cbranch_scc1 K2_LOOP")
    a("s_waitcnt lgkmcnt(0)")
    a(f"v_mfma_f32_32x32x16_bf16 v[{vO}:{vO+15}], v[{vV2+4}:{vV2+7}], v[{vP+4}:{vP+7}], v[{vO}:{vO+15}]")
    a("s_nop 15")
    a(f"s_cmp_lg_u32 s{sPASS}, 0")
    a("s_cbranch_scc1 K2_FIN")
    a(f"v_mov_b32 v{vT}, 0")
    for i in range(12):
        a(f"v_fma_f32 v{vT}, v{vO+i}, 0, v{vT}")
    a(f"v_add_f32 v{vT}, v{vT}, v{vO+12}")
    a(f"v_cmp_nlt_f32 vcc, v{vT}, v{vT+7}" if False else f"v_mov_b32 v{vT+1}, {f2u(2.0**64):#x}")
    a("s_nop 0")
    a(f"v_cmp_nlt_f32 vcc, v{vT}, v{vT+1}")
    a("s_nop 4")
    a("s_cbranch_vccz K2_FIN")
    a(f"s_mov_b32 s{sPASS}, 1")
    a(f"v_mov_b32 v{vT}, {f2u(-3.0e38):#x}")
    a(f"v_mov_b32 v{vKc}, v{vL16}")
    a(f"v_mov_b32 v{vK4c}, v{vK4A}")
    a(f"s_mov_b32 s{sC}, 0")
    a.lab("K2_MAXLOOP")
    for tt in range(8):
        a(f"ds_read_b128 v[{vKA}:{vKA+3}], v{vKc} offset:{koff(tt)}")
        a(f"ds_read_b64 v[{vKB}:{vKB+1}], v{vK4c} offset:{k4off(tt - tt % 2) + 8 * (tt % 2)}")
        a("s_waitcnt lgkmcnt(0)")
        a(f"v_mfma_f32_32x32x16_bf16 v[{vS0}:{vS0+15}], v[{vKA}:{vKA+3}], v[{vQ16}:{vQ16+3}], 0")
        a(f"v_mfma_f32_32x32x8_bf16 v[{vS0}:{vS0+15}], v[{vKB}:{vKB+1}], v[{vQ8}:{vQ8+1}], v[{vS0}:{vS0+15}]")
        a("s_nop 15")
        for i in range(0, 16, 2):
            a(f"v_max3_f32 v{vT}, v{vT}, v{vS0+i}, v{vS0+i+1}")
    a(f"v_add_u32 v{vKc}, {KV_CH}, v{vKc}")
    a(f"v_add_u32 v{vK4c}, {KV_CH}, v{vK4c}")
    a(f"s_add_u32 s{sC}, s{sC}, 1")
    a(f"s_cmp_lt_u32 s{sC}, 8")
    a("s_cbranch_scc1 K2_MAXLOOP")
    a(f"v_mov_b32 v{vT+1}, v{vT}")
    a("s_nop 1")
    a(f"v_permlane32_swap_b32 v{vT}, v{vT+1}")
    a("s_nop 1")
    a(f"v_max_f32 v{vT}, v{vT}, v{vT+1}")
    for i in range(16):
        a(f"v_sub_f32 v{vNEG+i}, 0, v{vT}")
    a("s_branch K2_START")
    a.lab("K2_SYNC0")
    a("s_waitcnt vmcnt(12)")
    a("s_barrier")
    a("s_branch K2_NOSYNC")
    a.lab("K2_SYNC2")
    a("s_waitcnt vmcnt(0)")
    a("s_barrier")
    a("s_branch K2_NOSYNC")
    a.lab("K2_FIN")
    a(f"v_rcp_f32 v{vT}, v{vO+12}")
    a(f"v_sub_f32 v{vT+1}, 1.0, v{vGATE}")
    a("s_nop 0")
    a(f"v_mul_f32 v{vT}, v{vT}, v{vT+1}")
    for i in range(12):
        a(f"v_mul_f32 v{vO+i}, v{vO+i}, v{vT}")
    for i in range(6):
        a(f"v_cvt_pk_bf16_f32 v{vO+i}, v{vO+2*i}, v{vO+2*i+1}")
    a(f"v_and_b32 v{vT}, 31, v{vLANE}")
    a(f"v_add_u32 v{vT}, s{sS0}, v{vT}")
    a(f"v_lshrrev_b32 v{vT+1}, 4, v{vT}")
    a(f"v_mul_u32_u24 v{vT+1}, {40*1024}, v{vT+1}")
    a(f"v_and_b32 v{vT}, 15, v{vT}")
    a(f"v_lshl_add_u32 v{vT+1}, v{vT}, 4, v{vT+1}")
    a(f"v_lshrrev_b32 v{vT+2}, 5, v{vLANE}")
    a(f"v_lshlrev_b32 v{vT+2}, 2, v{vT+2}")
    a(f"s_mul_i32 s{sT0}, s{sHEAD}, 20")
    a(f"v_add_u32 v{vT+2}, s{sT0}, v{vT+2}")
    a(f"s_mov_b32 s{sT1}, {O_OFF}")
    for br, src in ((0, vOA), (1, vO)):
        for j in range(3):
            a(f"v_add_u32 v{vT+3}, {br*640 + 8*j}, v{vT+2}")
            a(f"v_lshrrev_b32 v{vT+4}, 5, v{vT+3}")
            a(f"v_lshl_add_u32 v{vT+4}, v{vT+4}, 10, v{vT+1}")
            a(f"v_bfe_u32 v{vT+5}, v{vT+3}, 3, 2")
            a(f"v_lshl_add_u32 v{vT+4}, v{vT+5}, 8, v{vT+4}")
            a(f"v_and_b32 v{vT+5}, 4, v{vT+3}")
            a(f"v_lshl_add_u32 v{vT+4}, v{vT+5}, 1, v{vT+4}")
            if j == 2:
                a(f"s_mov_b64 exec, s[{sLO}:{sLO+1}]")
            a(f"buffer_store_dwordx2 v[{src+2*j}:{src+2*j+1}], v{vT+4}, s[{SWS}:{SWS+3}], s{sT1} offen")
            if j == 2:
                a("s_mov_b64 exec, -1")
    a.lab("K2_END")
    a("s_endpgm")
    a.raw(".p2align 4")
    a.lab("K2_TABLE")
    tab = mask_table()
    for i in range(0, len(tab), 8):
        a.raw("    .long " + ", ".join(f"{x:#x}" for x in tab[i:i+8]))
    return name, NV

K3_BUF = 16 * 1408
K3_NBUF = 6
K3_LDS = K3_BUF * K3_NBUF

def gen_k3(a):
    name = "k3_proj_kernel"
    kernel_head(a, name)
    SWS = 8; SWA = 12; SWB = 16; SOUT = 20
    sW = 24; sWM = 25; sWK = 26; sMT = 27; sNT = 28; sT0 = 29; sT1 = 30; sT2 = 31; sOB = 32
    vLANE = 1; vL16 = 2; vWO = 3
    vWR = 6; vWA = 7; vT = 8
    vOF = 20
    vWF = 100
    vACC = 140
    NV = 180
    a("s_cmp_ge_u32 s2, 256")
    a("s_cbranch_scc1 K3_END")
    a("s_load_dwordx2 s[4:5], s[0:1], 72")
    a("s_load_dwordx2 s[6:7], s[0:1], 16")
    a("s_load_dwordx2 s[34:35], s[0:1], 40")
    a("s_load_dwordx2 s[36:37], s[0:1], 56")
    a(f"v_and_b32 v{vLANE}, 63, v0")
    a(f"v_lshrrev_b32 v{vT}, 6, v0")
    a("s_nop 0")
    a(f"v_readfirstlane_b32 s{sW}, v{vT}")
    a(f"s_and_b32 s{sMT}, s2, 7")
    a(f"s_lshl_b32 s{sMT}, s{sMT}, 2")
    a(f"s_lshr_b32 s{sT0}, s2, 6")
    a(f"s_add_u32 s{sMT}, s{sMT}, s{sT0}")
    a(f"s_lshr_b32 s{sNT}, s2, 3")
    a(f"s_and_b32 s{sNT}, s{sNT}, 7")
    a(f"v_lshlrev_b32 v{vL16}, 4, v{vLANE}")
    a(f"s_and_b32 s{sWM}, s{sW}, 1")
    a(f"s_lshr_b32 s{sWK}, s{sW}, 1")
    for j in range(3):
        a(f"s_add_u32 s{sT0}, s{sW}, {8*j}")
        a(f"s_min_u32 s{sT0}, s{sT0}, 21")
        a(f"s_lshl_b32 s{sT0}, s{sT0}, 6")
        a(f"v_add_u32 v{vT}, s{sT0}, v{vLANE}")
        a(f"v_mul_u32_u24 v{vT+1}, 47663, v{vT}")
        a(f"v_lshrrev_b32 v{vT+1}, 22, v{vT+1}")
        a(f"v_mul_u32_u24 v{vT+2}, 88, v{vT+1}")
        a(f"v_sub_u32 v{vT+2}, v{vT}, v{vT+2}")
        a(f"v_min_u32 v{vT+2}, 79, v{vT+2}")
        a(f"v_mul_u32_u24 v{vT+3}, 52429, v{vT+2}")
        a(f"v_lshrrev_b32 v{vT+3}, 19, v{vT+3}")
        a(f"v_mul_u32_u24 v{vT+4}, 10, v{vT+3}")
        a(f"v_sub_u32 v{vT+4}, v{vT+2}, v{vT+4}")
        a(f"v_lshl_add_u32 v{vT+3}, v{vT+1}, 3, v{vT+3}")
        a(f"v_mul_u32_u24 v{vT+3}, 1280, v{vT+3}")
        a(f"v_lshl_add_u32 v{vT+3}, v{vT+4}, 4, v{vT+3}")
        a(f"s_mul_i32 s{sT1}, s{sNT}, 160")
        a(f"v_add_u32 v{vWO+j}, s{sT1}, v{vT+3}")
    a(f"v_lshrrev_b32 v{vT}, 4, v{vLANE}")
    a(f"v_mul_u32_u24 v{vWR}, 1408, v{vT}")
    a(f"v_bfe_u32 v{vT}, v{vLANE}, 2, 2")
    a(f"v_mul_u32_u24 v{vT}, 160, v{vT}")
    a(f"v_add_u32 v{vWR}, v{vWR}, v{vT}")
    a(f"v_and_b32 v{vT}, 3, v{vLANE}")
    a(f"v_lshl_add_u32 v{vWR}, v{vT}, 3, v{vWR}")
    a(f"s_mul_i32 s{sT0}, s{sWK}, {4*1408}")
    a(f"v_add_u32 v{vWR}, s{sT0}, v{vWR}")
    a(f"s_lshl_b32 s{sOB}, s{sMT}, 2")
    a(f"s_lshl_b32 s{sT0}, s{sWM}, 1")
    a(f"s_add_u32 s{sOB}, s{sOB}, s{sT0}")
    a(f"s_mul_i32 s{sOB}, s{sOB}, 40")
    a(f"s_add_u32 s{sOB}, s{sOB}, s{sWK}")
    a(f"s_lshl_b32 s{sOB}, s{sOB}, 10")
    a(f"s_add_u32 s{sOB}, s{sOB}, {O_OFF}")
    a("s_waitcnt lgkmcnt(0)")
    srd(a, SWS, 4, 5, WS_USED)
    srd(a, SWA, 6, 7, 640 * 1280)
    srd(a, SWB, 34, 35, 640 * 1280)
    srd(a, SOUT, 36, 37, 2048 * 1280)

    def loads(ss):
        for mb in range(2):
            d = vOF + (ss * 2 + mb) * 4
            a(f"s_add_u32 s{sT0}, s{sOB}, {(mb*40 + ss*4)*1024}")
            a(f"buffer_load_dwordx4 v[{d}:{d+3}], v{vL16}, s[{SWS}:{SWS+3}], s{sT0} offen")
        srdw = SWA if ss < 5 else SWB
        so = (ss % 5) * 128 * 1280
        buf = (ss % K3_NBUF) * K3_BUF
        a(f"s_mov_b32 s{sT1}, {so}")
        for j in range(3):
            a(f"s_add_u32 s{sT0}, s{sW}, {8*j}")
            a(f"s_min_u32 s{sT0}, s{sT0}, 21")
            a(f"s_lshl_b32 s{sT0}, s{sT0}, 10")
            a(f"s_add_u32 m0, s{sT0}, {buf}")
            a("s_nop 0")
            a(f"buffer_load_dwordx4 v{vWO+j}, s[{srdw}:{srdw+3}], s{sT1} offen lds")
    def reads(ss):
        st = ss & 1
        buf = (ss % K3_NBUF) * K3_BUF
        out = [f"v_add_u32 v{vWA}, {buf}, v{vWR}"]
        for b in range(5):
            r = vWF + st * 20 + b * 4
            out.append(f"ds_read_b64_tr_b16 v[{r}:{r+1}], v{vWA} offset:{b*32}")
            out.append(f"ds_read_b64_tr_b16 v[{r+2}:{r+3}], v{vWA} offset:{b*32+640}")
        return out
    for ss in range(5):
        loads(ss)
    for i in range(40):
        a(f"v_mov_b32 v{vACC+i}, 0")
    a("s_waitcnt vmcnt(20)")
    a("s_barrier")
    for r in reads(0):
        a(r)
    for ss in range(10):
        out_after = max(0, min(ss + 4, 9) - (ss + 1)) * 5
        a(f"s_waitcnt vmcnt({out_after}) lgkmcnt(0)")
        a("s_barrier")
        mf = []
        for b in range(5):
            for mb in range(2):
                acc = vACC + (mb * 5 + b) * 4
                wf = vWF + (ss & 1) * 20 + b * 4
                of = vOF + (ss * 2 + mb) * 4
                mf.append(f"v_mfma_f32_16x16x32_bf16 v[{acc}:{acc+3}], v[{wf}:{wf+3}], v[{of}:{of+3}], v[{acc}:{acc+3}]")
        rd = reads(ss + 1) if ss < 9 else []
        a(mf[0]); a(mf[1])
        if ss + 5 < 10:
            loads(ss + 5)
        k = 0
        for i, m in enumerate(mf[2:]):
            tgt = min(len(rd), (i + 1) * 2)
            while k < tgt:
                a(rd[k]); k += 1
            a(m)
        while k < len(rd):
            a(rd[k]); k += 1
    a("s_nop 7")
    a("s_barrier")
    a(f"s_mul_i32 s{sT0}, s{sW}, {10*1024}")
    a(f"v_add_u32 v{vT}, s{sT0}, v{vL16}")
    for blk in range(10):
        a(f"ds_write_b128 v{vT}, v[{vACC+blk*4}:{vACC+blk*4+3}] offset:{blk*1024}")
    a("s_waitcnt lgkmcnt(0)")
    a("s_barrier")
    for r in range(3):
        if r == 2:
            a(f"s_cmp_ge_u32 s{sW}, 4")
            a("s_cbranch_scc1 K3_END")
        a(f"s_add_u32 s{sT0}, s{sW}, {8*r}")
        a(f"s_cmp_ge_u32 s{sT0}, 10")
        a(f"s_cselect_b32 s{sT1}, 1, 0")
        a(f"s_cselect_b32 s{sT2}, 10, 0")
        a(f"s_sub_u32 s{sT0}, s{sT0}, s{sT2}")
        a(f"s_mul_i32 s{sT2}, s{sT1}, 10")
        a(f"s_add_u32 s{sT2}, s{sT2}, s{sT0}")
        a(f"s_lshl_b32 s{sT2}, s{sT2}, 10")
        a(f"v_add_u32 v{vT}, s{sT2}, v{vL16}")
        for k in range(4):
            a(f"ds_read_b128 v[{vOF+4*k}:{vOF+4*k+3}], v{vT} offset:{k*20*1024}")
        a(f"s_cmp_ge_u32 s{sT0}, 5")
        a(f"s_cselect_b32 s{sT2}, 1, 0")
        a(f"s_mul_i32 s{sOB}, s{sT2}, 5")
        a(f"s_sub_u32 s{sT0}, s{sT0}, s{sOB}")
        a(f"s_lshl_b32 s{sT1}, s{sT1}, 1")
        a(f"s_add_u32 s{sT1}, s{sT1}, s{sT2}")
        a(f"s_lshl_b32 s{sT2}, s{sMT}, 2")
        a(f"s_add_u32 s{sT1}, s{sT1}, s{sT2}")
        a(f"s_mul_i32 s{sT1}, s{sT1}, {16*1280}")
        a(f"s_mul_i32 s{sT2}, s{sNT}, 160")
        a(f"s_add_u32 s{sT1}, s{sT1}, s{sT2}")
        a(f"s_lshl_b32 s{sT0}, s{sT0}, 5")
        a(f"s_add_u32 s{sT1}, s{sT1}, s{sT0}")
        a(f"v_and_b32 v{vT+1}, 15, v{vLANE}")
        a(f"v_mul_u32_u24 v{vT+1}, 1280, v{vT+1}")
        a(f"v_lshrrev_b32 v{vT+2}, 4, v{vLANE}")
        a(f"v_lshl_add_u32 v{vT+1}, v{vT+2}, 3, v{vT+1}")
        a("s_waitcnt lgkmcnt(0)")
        for i in range(4):
            a(f"v_add_f32 v{vOF+i}, v{vOF+i}, v{vOF+4+i}")
            a(f"v_add_f32 v{vOF+8+i}, v{vOF+8+i}, v{vOF+12+i}")
        for i in range(4):
            a(f"v_add_f32 v{vOF+i}, v{vOF+i}, v{vOF+8+i}")
        a(f"v_cvt_pk_bf16_f32 v{vT+4}, v{vOF}, v{vOF+1}")
        a(f"v_cvt_pk_bf16_f32 v{vT+5}, v{vOF+2}, v{vOF+3}")
        a(f"buffer_store_dwordx2 v[{vT+4}:{vT+5}], v{vT+1}, s[{SOUT}:{SOUT+3}], s{sT1} offen")
    a.lab("K3_END")
    a("s_endpgm")
    return name, NV

def build(kernels=("k1", "k2", "k3")):
    a = Asm()
    hdr = f"""; Gated mix of sliding-window dilated attention (A) and full softmax MHA (B): three launches.
; @launch kernel=k1_qkv_kernel grid=(256,1,1) block=(512,1,1) lds={K1_LDS}
; @launch kernel=k2_attn_kernel grid=(256,1,1) block=(512,1,1) lds={K2_LDS}
; @launch kernel=k3_proj_kernel grid=(256,1,1) block=(512,1,1) lds={K3_LDS}
.amdgcn_target "amdgcn-amd-amdhsa--gfx950"
.text
"""
    descs = []
    for g in (gen_k1, gen_k2, gen_k3):
        n, nv = g(a)
        descs.append(kernel_desc(n, nv))
    return hdr + a.text() + '.section .rodata,"a"\n' + "".join(".p2align 6\n" + d for d in descs)

if __name__ == "__main__":
    out = sys.argv[1] if len(sys.argv) > 1 else f"cdna_kernels/{NAME}.s"
    open(out, "w").write(build())
    print("wrote", out)
```

```python
import sys, struct

NAME = "gated_mix__sliding_local_dilated__softmax_full_mha__prompt"

KV_HEAD = 163840
KV_CH = 20480
Q_HEAD = 81920
Q_CH = 10240
KVA_OFF = 0
KVB_OFF = 32 * KV_HEAD
QA_OFF = 2 * 32 * KV_HEAD
QB_OFF = QA_OFF + 32 * Q_HEAD
G_OFF = QB_OFF + 32 * Q_HEAD
WT_OFF = 0xF10000
O_OFF = 0x1100000
O_SIZE = 128 * 40 * 1024
WS_USED = 0x2400000
QSCALE = (20 ** -0.5) * 1.4426950408889634

def f2u(x):
    return struct.unpack("<I", struct.pack("<f", x))[0]

class Asm:
    def __init__(self):
        self.l = []
    def __call__(self, s):
        for x in s.strip("\n").split("\n"):
            self.l.append("    " + x.strip())
    def lab(self, s):
        self.l.append(s + ":")
    def raw(self, s):
        self.l.append(s)
    def text(self):
        return "\n".join(self.l) + "\n"

def vr(b, n=1):
    return f"v{b}" if n == 1 else f"v[{b}:{b+n-1}]"
def sr(b, n=1):
    return f"s{b}" if n == 1 else f"s[{b}:{b+n-1}]"

def kernel_head(a, name):
    a.raw(f".globl {name}")
    a.raw(".p2align 8")
    a.raw(f".type {name},@function")
    a.lab(name)

def kernel_desc(name, nv, ns=102):
    acc = (nv + 3) // 4 * 4
    return f""".amdhsa_kernel {name}
  .amdhsa_next_free_vgpr {nv}
  .amdhsa_next_free_sgpr {ns}
  .amdhsa_accum_offset {acc}
  .amdhsa_group_segment_fixed_size 0
  .amdhsa_kernarg_size 80
  .amdhsa_user_sgpr_count 2
  .amdhsa_user_sgpr_kernarg_segment_ptr 1
  .amdhsa_system_sgpr_workgroup_id_x 1
  .amdhsa_float_denorm_mode_32 3
  .amdhsa_float_denorm_mode_16_64 3
.end_amdhsa_kernel
"""

PROF = False
OPT = set()
STORE_FLAGS = ""
PROF_OFF = 0x2000000
def optval(name, default):
    for o in OPT:
        if o.startswith(name + "="): return int(o.split("=")[1])
    return default
def stamp(a, i):
    if PROF:
        a(f"s_memtime s[{80+2*i}:{81+2*i}]")
        if i == 0: a("s_memrealtime s[76:77]")
def stamp_flush(a, kidx, n, srdreg, wave_sgpr, vtmp):
    if not PROF: return
    a("s_memrealtime s[98:99]")
    a("s_waitcnt lgkmcnt(0)")
    a(f"s_lshl_b32 s97, s2, 3")
    a(f"s_add_u32 s97, s97, s{wave_sgpr}")
    a(f"s_lshl_b32 s97, s97, 6")
    a(f"s_add_u32 s97, s97, {PROF_OFF + kidx * 0x100000}")
    a("s_mov_b64 exec, 1")
    a(f"v_mov_b32 v{vtmp+1}, 0")
    for i in range(n):
        a(f"v_mov_b32 v{vtmp}, s{80+2*i}")
        a(f"buffer_store_dword v{vtmp}, v{vtmp+1}, s[{srdreg}:{srdreg+3}], s97 offen offset:{4*i}")
    a(f"v_mov_b32 v{vtmp}, s76")
    a(f"buffer_store_dword v{vtmp}, v{vtmp+1}, s[{srdreg}:{srdreg+3}], s97 offen offset:56")
    a(f"v_mov_b32 v{vtmp}, s98")
    a(f"buffer_store_dword v{vtmp}, v{vtmp+1}, s[{srdreg}:{srdreg+3}], s97 offen offset:60")

def srd(a, d, lo, hi, size):
    a(f"s_mov_b32 s{d}, s{lo}")
    a(f"s_and_b32 s{d+1}, s{hi}, 0xffff")
    a(f"s_mov_b32 s{d+2}, {size}")
    a(f"s_mov_b32 s{d+3}, 0x00020000")

K1_XB = 32768
K1_BUF = 32768 + 16384
K1_NBUF = 3
K1_LDS = K1_BUF * K1_NBUF

def gen_k1(a):
    name = "k1_qkv_kernel"
    kernel_head(a, name)
    SX = 12; SW = 16; SWS = 20; SG = 24
    sW = 32; sWM = 33; sWN = 34; sI = 35; sRD = 36; sWRB = 37
    sXS = 38; sWS1 = 39; sXM0 = 41; sWM0 = 42; sMT = 43; sNT = 44; sBR = 45
    sTMP = 46; sTMP2 = 47; sTMP3 = 48; sTMP4 = 49
    sSEC = 50; sFB = 51; sEO = 52; sD = 53; sHS = 54; sSC = 56
    vLANE = 1; vXO = 2; vWO = 4
    vXR = 6
    vWR = 10
    vXA = 12
    vWA = 16
    vT = 18
    vXF = 32
    vWF = 64
    vACC = 96
    vEO = 160
    vPF = 176
    NV = 180

    a("s_cmp_ge_u32 s2, 256")
    a("s_cbranch_scc1 K1_END")
    stamp(a, 0)
    a("s_lshr_b32 s45, s2, 2")
    a("s_and_b32 s45, s45, 1")
    a("s_mul_i32 s46, s45, 24")
    a("s_add_u32 s46, s46, 8")
    a("s_load_dwordx2 s[10:11], s[0:1], s46")
    a("s_load_dwordx2 s[8:9], s[0:1], 0")
    a("s_load_dwordx2 s[4:5], s[0:1], 72")
    a("s_load_dwordx2 s[6:7], s[0:1], 48")
    a(f"v_and_b32 v{vLANE}, 63, v0")
    a(f"v_lshrrev_b32 v{vT}, 6, v0")
    a(f"s_lshr_b32 s{sTMP}, s2, 3")
    a(f"v_readfirstlane_b32 s{sW}, v{vT}")
    a(f"s_and_b32 s{sMT}, s2, 3")
    a(f"s_lshl_b32 s{sMT}, s{sMT}, 1")
    a(f"s_and_b32 s{sTMP2}, s{sTMP}, 1")
    a(f"s_add_u32 s{sMT}, s{sMT}, s{sTMP2}")
    a(f"s_lshr_b32 s{sNT}, s{sTMP}, 1")
    a(f"s_cmp_ge_u32 s{sNT}, 15")
    a("s_cbranch_scc1 K1_GATE")
    a(f"s_and_b32 s{sWM}, s{sW}, 3")
    a(f"s_lshr_b32 s{sWN}, s{sW}, 2")
    a(f"v_lshrrev_b32 v{vT}, 3, v{vLANE}")
    a(f"v_lshrrev_b32 v{vT+1}, 4, v{vLANE}")
    a(f"v_xor_b32 v{vT+1}, v{vT+1}, v{vLANE}")
    a(f"v_and_b32 v{vT+1}, 7, v{vT+1}")
    a(f"s_lshl_b32 s{sTMP}, s{sMT}, 8")
    a(f"s_lshl_b32 s{sTMP2}, s{sW}, 5")
    a(f"s_add_u32 s{sTMP}, s{sTMP}, s{sTMP2}")
    a(f"v_add_u32 v{vT}, s{sTMP}, v{vT}")
    a(f"v_mul_u32_u24 v{vT}, 1280, v{vT}")
    a(f"v_lshl_add_u32 v{vXO}, v{vT+1}, 4, v{vT}")
    a(f"v_xor_b32 v{vXO+1}, 64, v{vXO}")
    a(f"v_lshrrev_b32 v{vT}, 4, v{vLANE}")
    a(f"v_lshlrev_b32 v{vT+1}, 2, v{vT}")
    a(f"v_xor_b32 v{vT+1}, v{vT+1}, v{vLANE}")
    a(f"v_and_b32 v{vT+1}, 15, v{vT+1}")
    a(f"s_lshl_b32 s{sTMP}, s{sW}, 3")
    a(f"v_add_u32 v{vT}, s{sTMP}, v{vT}")
    a(f"v_mul_u32_u24 v{vT}, 3840, v{vT}")
    a(f"v_lshl_add_u32 v{vT}, v{vT+1}, 4, v{vT}")
    a(f"s_lshl_b32 s{sTMP}, s{sNT}, 8")
    a(f"v_add_u32 v{vWO}, s{sTMP}, v{vT}")
    a(f"s_lshl_b32 s{sXM0}, s{sW}, 12")
    a(f"s_lshl_b32 s{sWM0}, s{sW}, 11")
    a(f"s_add_u32 s{sWM0}, s{sWM0}, {K1_XB}")
    a("s_waitcnt lgkmcnt(0)")
    srd(a, SX, 8, 9, 2048 * 1280)
    srd(a, SW, 10, 11, 640 * 3840)

    def dma_list(buf_s, inloop=False):
        g = []
        if "k1nodma" in OPT and inloop: return [["s_nop 0"]] * 6
        for i in range(4):
            g.append([f"s_add_u32 m0, s{buf_s}, s{sXM0}" if i == 0 else f"s_add_u32 m0, m0, 1024",
                      f"s_add_u32 s{sTMP3}, s{sXS}, {i*8*1280}",
                      f"buffer_load_dwordx4 v{vXO + (i & 1)}, s[{SX}:{SX+3}], s{sTMP3} offen lds"])
        for i in range(2):
            g.append([f"s_add_u32 m0, s{buf_s}, s{sWM0}" if i == 0 else f"s_add_u32 m0, m0, 1024",
                      f"s_add_u32 s{sTMP3}, s{sWS1}, {i*4*3840}",
                      f"buffer_load_dwordx4 v{vWO}, s[{SW}:{SW+3}], s{sTMP3} offen lds"])
        g[-1] = g[-1] + [f"s_add_u32 s{sXS}, s{sXS}, 128", f"s_add_u32 s{sWS1}, s{sWS1}, {64*3840}"]
        return g
    a(f"s_mov_b32 s{sXS}, 0")
    a(f"s_mov_b32 s{sWS1}, 0")
    a(f"s_mov_b32 s{sWRB}, 0")
    for g in dma_list(sWRB):
        for x in g: a(x)
    srd(a, SWS, 4, 5, WS_USED)
    a(f"v_and_b32 v{vT}, 31, v{vLANE}")
    a(f"v_lshrrev_b32 v{vT+1}, 5, v{vLANE}")
    a(f"v_bfe_u32 v{vT+2}, v{vLANE}, 1, 3")
    a(f"v_xor_b32 v{vT+2}, v{vT+2}, v{vT+1}")
    a(f"v_lshlrev_b32 v{vT+2}, 4, v{vT+2}")
    a(f"v_lshl_add_u32 v{vXR}, v{vT}, 7, v{vT+2}")
    a(f"s_lshl_b32 s{sTMP}, s{sWM}, 13")
    a(f"v_add_u32 v{vXR}, s{sTMP}, v{vXR}")
    for kk in range(1, 4):
        a(f"v_xor_b32 v{vXR+kk}, {kk << 5}, v{vXR}")
    a(f"v_bfe_u32 v{vT+2}, v{vLANE}, 2, 2")
    a(f"v_lshl_add_u32 v{vT+3}, v{vT+1}, 3, v{vT+2}")
    a(f"v_lshlrev_b32 v{vT+3}, 8, v{vT+3}")
    a(f"v_and_b32 v{vT+4}, 3, v{vLANE}")
    a(f"v_lshl_add_u32 v{vT+3}, v{vT+4}, 3, v{vT+3}")
    a(f"v_bfe_u32 v{vT+4}, v{vLANE}, 4, 1")
    a(f"v_lshl_add_u32 v{vT+3}, v{vT+4}, 5, v{vT+3}")
    a(f"v_add_u32 v{vT+3}, {K1_XB}, v{vT+3}")
    a(f"s_lshl_b32 s{sTMP}, s{sWN}, 1")
    for bl in range(2):
        a(f"s_add_u32 s{sTMP2}, s{sTMP}, {bl}")
        a(f"v_xor_b32 v{vT+5}, s{sTMP2}, v{vT+2}")
        a(f"v_lshl_add_u32 v{vWR+bl}, v{vT+5}, 6, v{vT+3}")
    a(f"s_mul_i32 s{sSEC}, s{sNT}, 52")
    a(f"s_lshr_b32 s{sSEC}, s{sSEC}, 8")
    a(f"s_mul_i32 s{sTMP}, s{sSEC}, 5")
    a(f"s_sub_u32 s{sFB}, s{sNT}, s{sTMP}")
    a(f"s_lshl_b32 s{sFB}, s{sFB}, 7")
    a(f"s_lshl_b32 s{sTMP}, s{sWN}, 6")
    a(f"s_add_u32 s{sFB}, s{sFB}, s{sTMP}")
    a(f"s_cmp_eq_u32 s{sSEC}, 2")
    a("s_cbranch_scc1 K1_VPREP")
    a(f"s_cmp_eq_u32 s{sSEC}, 0")
    a(f"s_cselect_b32 s{sSC}, {f2u(QSCALE):#x}, 1.0")
    a(f"s_mov_b32 s{sSC+1}, s{sSC}")
    a(f"s_mov_b32 s{sTMP}, {KV_HEAD}")
    a(f"s_cselect_b32 s{sHS}, {Q_HEAD}, s{sTMP}")
    a(f"s_mov_b32 s{sTMP}, {KV_CH}")
    a(f"s_cselect_b32 s{sTMP2}, {Q_CH}, s{sTMP}")
    a(f"s_mul_i32 s{sEO}, s{sMT}, s{sTMP2}")
    a(f"s_mul_i32 s{sTMP2}, s{sBR}, {QB_OFF - QA_OFF}")
    a(f"s_add_u32 s{sTMP2}, s{sTMP2}, {QA_OFF}")
    a(f"s_mul_i32 s{sTMP3}, s{sBR}, {KVB_OFF - KVA_OFF}")
    a(f"s_cmp_eq_u32 s{sSEC}, 0")
    a(f"s_cselect_b32 s{sTMP2}, s{sTMP2}, s{sTMP3}")
    a(f"s_add_u32 s{sEO}, s{sEO}, s{sTMP2}")
    a(f"s_mul_i32 s{sTMP}, s{sWM}, 2560")
    a(f"s_add_u32 s{sEO}, s{sEO}, s{sTMP}")
    a(f"s_lshr_b32 s{sTMP}, s{sFB}, 2")
    a(f"v_lshrrev_b32 v{vT+6}, 5, v{vLANE}")
    a(f"v_add_u32 v{vT+6}, s{sTMP}, v{vT+6}")
    a(f"v_and_b32 v{vT+7}, 31, v{vLANE}")
    a(f"v_lshlrev_b32 v{vT+7}, 3, v{vT+7}")
    a(f"v_mov_b32 v{vT+8}, 0x43120")
    for e in range(8):
        a(f"v_add_u32 v{vT}, {2*e}, v{vT+6}")
        a(f"v_mul_u32_u24 v{vT+1}, 52429, v{vT}")
        a(f"v_lshrrev_b32 v{vT+1}, 18, v{vT+1}")
        a(f"v_mul_u32_u24 v{vT+2}, 5, v{vT+1}")
        a(f"v_sub_u32 v{vT+2}, v{vT}, v{vT+2}")
        a(f"v_lshlrev_b32 v{vT+2}, 2, v{vT+2}")
        a(f"v_bfe_u32 v{vT+2}, v{vT+8}, v{vT+2}, 4")
        a(f"v_lshl_add_u32 v{vT+2}, v{vT+2}, 8, v{vT+7}")
        a(f"v_mad_u32_u24 v{vEO+e}, v{vT+1}, s{sHS}, v{vT+2}")
    a("s_branch K1_T")
    a.lab("K1_VPREP")
    a(f"s_mul_i32 s{sEO}, s{sMT}, {KV_CH}")
    a(f"s_mul_i32 s{sTMP}, s{sBR}, {KVB_OFF - KVA_OFF}")
    a(f"s_add_u32 s{sEO}, s{sEO}, s{sTMP}")
    a(f"s_mul_i32 s{sTMP}, s{sWM}, {4*640}")
    a(f"s_add_u32 s{sEO}, s{sEO}, s{sTMP}")
    a(f"s_add_u32 s{sEO}, s{sEO}, 10240")
    a(f"s_mov_b32 s{sHS}, {KV_HEAD}")
    for bl in range(2):
        a(f"s_add_u32 s{sTMP}, s{sFB}, {32*bl}")
        a(f"v_and_b32 v{vT}, 31, v{vLANE}")
        a(f"v_add_u32 v{vT}, s{sTMP}, v{vT}")
        a(f"v_mul_u32_u24 v{vT+1}, 52429, v{vT}")
        a(f"v_lshrrev_b32 v{vT+1}, 20, v{vT+1}")
        a(f"v_mul_u32_u24 v{vT+2}, 20, v{vT+1}")
        a(f"v_sub_u32 v{vT+2}, v{vT}, v{vT+2}")
        a(f"v_lshrrev_b32 v{vT+3}, 5, v{vLANE}")
        a(f"v_mul_u32_u24 v{vT+3}, 320, v{vT+3}")
        a(f"v_lshl_add_u32 v{vT+3}, v{vT+2}, 4, v{vT+3}")
        a(f"v_mad_u32_u24 v{vEO+bl}, v{vT+1}, s{sHS}, v{vT+3}")
    a("s_branch K1_C")

    def variant(tag):
        a.lab(f"K1_{tag}")
        def reads(st, ph):
            out = []
            if "k1noread" in OPT: return ["s_nop 0"] * 12
            for q in range(2):
                kk = 2 * ph + q
                for j in range(2):
                    r = vXF + st * 16 + (q * 2 + j) * 4
                    out.append(f"ds_read_b128 v[{r}:{r+3}], v{vXA+kk} offset:{j*4096}")
                    r = vWF + st * 16 + (q * 2 + j) * 4
                    out.append(f"ds_read_b64_tr_b16 v[{r}:{r+1}], v{vWA+j} offset:{kk*4096}")
                    out.append(f"ds_read_b64_tr_b16 v[{r+2}:{r+3}], v{vWA+j} offset:{kk*4096+1024}")
            return out
        def mfmas(st, zero=False):
            out = []
            if "k1nomfma" in OPT: return ["s_nop 0"] * 8
            for q in range(2):
                for bl in range(2):
                    for mb in range(2):
                        acc = vACC + (bl * 2 + mb) * 16
                        xf = f"v[{vXF+st*16+(q*2+mb)*4}:{vXF+st*16+(q*2+mb)*4+3}]"
                        wf = f"v[{vWF+st*16+(q*2+bl)*4}:{vWF+st*16+(q*2+bl)*4+3}]"
                        c = "0" if (zero and q == 0) else f"v[{acc}:{acc+15}]"
                        if tag == "T":
                            out.append(f"v_mfma_f32_32x32x16_bf16 v[{acc}:{acc+15}], {wf}, {xf}, {c}")
                        else:
                            out.append(f"v_mfma_f32_32x32x16_bf16 v[{acc}:{acc+15}], {xf}, {wf}, {c}")
            return out
        def setaddr(sreg):
            return [f"v_add_u32 v{vXA+i}, s{sreg}, v{vXR+i}" for i in range(4)] + [f"v_add_u32 v{vWA+i}, s{sreg}, v{vWR+i}" for i in range(2)]
        def weave(mf, extras, upto=None):
            n = upto or len(mf); m = len(extras)
            k = 0
            for i, x in enumerate(mf):
                a(x)
                tgt = min(m, ((i + 1) * m + n - 1) // n)
                while k < tgt:
                    for y in extras[k]: a(y)
                    k += 1
        def mix(rd, dm, tail):
            ex = []
            nd = len(dm)
            for i, r in enumerate(rd):
                ex.append([r])
                if nd == 3 and i % 4 == 3: ex.append(dm[i // 4])
                if nd == 6 and i % 2 == 1: ex.append(dm[i // 2])
            return ex + tail
        def phaseA(zero, dm):
            ring = [[f"s_add_u32 s{sRD}, s{sRD}, {K1_BUF}", f"s_cmp_eq_u32 s{sRD}, {K1_LDS}", f"s_cselect_b32 s{sRD}, 0, s{sRD}"]]
            mf = mfmas(0, zero)
            weave(mf[:7], mix(reads(1, 1), dm, ring), upto=6)
            return mf[7:]
        a(f"s_mov_b32 s{sWRB}, {K1_BUF}")
        for g in dma_list(sWRB):
            for x in g: a(x)
        a(f"s_mov_b32 s{sWRB}, {2*K1_BUF}")
        stamp(a, 2)
        a("s_waitcnt vmcnt(6)")
        a("s_barrier")
        stamp(a, 3)
        a(f"s_mov_b32 s{sRD}, 0")
        for x in setaddr(sRD): a(x)
        for r in reads(0, 0): a(r)
        a(f"s_mov_b32 s{sI}, 0")
        adv = [f"s_add_u32 s{sWRB}, s{sWRB}, {K1_BUF}", f"s_cmp_eq_u32 s{sWRB}, {K1_LDS}", f"s_cselect_b32 s{sWRB}, 0, s{sWRB}"]
        a("s_waitcnt lgkmcnt(0)")
        last = phaseA(True, dma_list(sWRB, True))
        for x in last: a(x)
        a(f"s_branch K1_{tag}_B")
        a.lab(f"K1_{tag}_LOOP")
        a("s_waitcnt lgkmcnt(0)")
        a(f"s_cmp_ge_u32 s{sI}, 8")
        a(f"s_cbranch_scc1 K1_{tag}_AND")
        last = phaseA(False, dma_list(sWRB, True)[3:])
        for x in last: a(x)
        a.lab(f"K1_{tag}_B")
        a("s_waitcnt vmcnt(6) lgkmcnt(0)")
        a.lab(f"K1_{tag}_WB")
        if "k1nobar" not in OPT: a("s_barrier")
        mf = mfmas(1)
        a(mf[0])
        for x in setaddr(sRD): a(x)
        for x in adv: a(x)
        rd = reads(0, 0)
        a(f"s_cmp_ge_u32 s{sI}, 7")
        a(f"s_cbranch_scc1 K1_{tag}_ND")
        cnt = [[f"s_add_u32 s{sI}, s{sI}, 1"]]
        weave(mf[1:], mix(rd, dma_list(sWRB, True)[:3], cnt), upto=6)
        a(f"s_branch K1_{tag}_LOOP")
        a.lab(f"K1_{tag}_ND")
        weave(mf[1:], mix(rd, [], cnt), upto=6)
        a(f"s_cmp_lt_u32 s{sI}, 10")
        a(f"s_cbranch_scc1 K1_{tag}_LOOP")
        stamp(a, 4)
        a("s_nop 7")
        a("s_nop 3")
        n = 0
        for bl in range(2):
            for mb in range(2):
                acc = vACC + (bl * 2 + mb) * 16
                if tag == "T":
                    for i in range(4):
                        q = acc + 4 * i
                        t = vXF + (n % 16) * 2; n += 1
                        a(f"v_pk_mul_f32 v[{q}:{q+1}], v[{q}:{q+1}], s[{sSC}:{sSC+1}]")
                        a(f"v_pk_mul_f32 v[{q+2}:{q+3}], v[{q+2}:{q+3}], s[{sSC}:{sSC+1}]")
                        a(f"v_cvt_pk_bf16_f32 v{t}, v{q}, v{q+1}")
                        a(f"v_cvt_pk_bf16_f32 v{t+1}, v{q+2}, v{q+3}")
                        a(f"buffer_store_dwordx2 v[{t}:{t+1}], v{vEO + 4*bl + i}, s[{SWS}:{SWS+3}], s{sEO} offen offset:{mb*1280}{STORE_FLAGS}")
                else:
                    for g2 in range(2):
                        q = acc + 8 * g2
                        t = vXF + (n % 8) * 4; n += 1
                        for i in range(4):
                            a(f"v_cvt_pk_bf16_f32 v{t+i}, v{q+2*i}, v{q+2*i+1}")
                        a(f"buffer_store_dwordx4 v[{t}:{t+3}], v{vEO+bl}, s[{SWS}:{SWS+3}], s{sEO} offen offset:{(2*mb+g2)*640}{STORE_FLAGS}")
        a("s_branch K1_FIN")
        a.lab(f"K1_{tag}_AND")
        last = phaseA(False, [])
        for x in last: a(x)
        a("s_waitcnt vmcnt(0) lgkmcnt(0)")
        a(f"s_branch K1_{tag}_WB")
    variant("T")
    variant("C")

    GPF0 = optval("gpf0", 3)
    a.lab("K1_GATE")
    a("s_waitcnt lgkmcnt(0)")
    srd(a, SX, 8, 9, 2048 * 1280)
    srd(a, SG, 6, 7, 1280)
    srd(a, SWS, 4, 5, WS_USED)
    TS = optval("tlbin", 0)
    if TS:
        srd(a, SW, 10, 11, 640 * 3840)
        sh = {4: 12, 16: 14, 64: 16}[TS]
        a(f"s_lshr_b32 s{sTMP}, s2, 3")
        a(f"s_and_b32 s{sTMP}, s{sTMP}, 1")
        a(f"s_lshl_b32 s{sTMP}, s{sTMP}, 3")
        a(f"s_add_u32 s{sTMP}, s{sTMP}, s{sW}")
        a(f"s_lshl_b32 s{sTMP}, s{sTMP}, 6")
        a(f"v_add_u32 v{vT+1}, s{sTMP}, v{vLANE}")
        a(f"v_lshlrev_b32 v{vT+1}, {sh}, v{vT+1}")
        n = max(1, -(-2621440 // ((1024) << sh)))
        for i in range(n):
            a(f"s_mov_b32 s{sTMP2}, {i * (1024 << sh)}")
            a(f"buffer_load_dword v{vPF}, v{vT+1}, s[{SW}:{SW+3}], s{sTMP2} offen")
            a(f"buffer_load_dword v{vPF+1}, v{vT+1}, s[{SX}:{SX+3}], s{sTMP2} offen")
    if "gpf" in OPT:
        srd(a, SW, 10, 11, 640 * 3840)
        a(f"s_lshr_b32 s{sTMP}, s2, 3")
        a(f"s_and_b32 s{sTMP}, s{sTMP}, 1")
        a(f"v_cmp_le_u32 vcc, 30, v{vLANE}")
        a(f"v_mov_b32 v{vT+1}, 0")
        a(f"v_mov_b32 v{vT+2}, {3840 - 30*128}")
        a(f"v_cndmask_b32 v{vT+1}, v{vT+1}, v{vT+2}, vcc")
        a(f"v_min_u32 v{vT+2}, 59, v{vLANE}")
        a(f"v_lshl_add_u32 v{vT+1}, v{vT+2}, 7, v{vT+1}")
        a(f"s_lshl_b32 s{sTMP2}, s{sTMP}, 5")
        a(f"s_lshl_b32 s{sTMP3}, s{sW}, 2")
        a(f"s_add_u32 s{sTMP2}, s{sTMP2}, s{sTMP3}")
        a(f"s_add_u32 s{sTMP2}, s{sTMP2}, {64*GPF0}")
        a(f"s_mul_i32 s{sTMP2}, s{sTMP2}, 3840")
        a(f"s_and_b32 s{sTMP3}, s2, 3")
        a(f"s_lshl_b32 s{sTMP3}, s{sTMP3}, 9")
        a(f"s_lshl_b32 s{sTMP}, s{sTMP}, 8")
        a(f"s_add_u32 s{sTMP3}, s{sTMP3}, s{sTMP}")
        a(f"s_and_b32 s{sTMP}, s{sW}, 3")
        a(f"s_lshl_b32 s{sTMP}, s{sTMP}, 6")
        a(f"s_add_u32 s{sTMP3}, s{sTMP3}, s{sTMP}")
        a(f"v_add_u32 v{vT+2}, s{sTMP3}, v{vLANE}")
        a(f"v_mul_u32_u24 v{vT+2}, 1280, v{vT+2}")
        a(f"s_mov_b32 s{sTMP3}, {128*GPF0}")
        for st in range(GPF0, 10):
            a(f"buffer_load_dword v{vPF}, v{vT+1}, s[{SW}:{SW+3}], s{sTMP2} offen")
            a(f"s_add_u32 s{sTMP}, s{sTMP2}, {2*3840}")
            a(f"buffer_load_dword v{vPF+1}, v{vT+1}, s[{SW}:{SW+3}], s{sTMP} offen")
            a(f"buffer_load_dword v{vPF+2}, v{vT+2}, s[{SX}:{SX+3}], s{sTMP3} offen")
            a(f"s_add_u32 s{sTMP2}, s{sTMP2}, {64*3840}")
            a(f"s_add_u32 s{sTMP3}, s{sTMP3}, 128")
    if "notlb" not in OPT:
        a(f"v_lshlrev_b32 v{vT+1}, 16, v{vLANE}")
        a(f"s_lshl_b32 s{sTMP}, s{sW}, 22")
        a(f"s_cmp_lt_u32 s{sW}, 6")
        a(f"s_cbranch_scc0 K1_NOTLB")
        a(f"buffer_load_dword v{vPF}, v{vT+1}, s[{SWS}:{SWS+3}], s{sTMP} offen")
        a.lab("K1_NOTLB")
    a(f"s_sub_u32 s{sTMP}, s2, 240")
    a(f"s_lshl_b32 s{sTMP}, s{sTMP}, 3")
    a(f"s_add_u32 s{sTMP}, s{sTMP}, s{sW}")
    a(f"s_cmp_ge_u32 s{sTMP}, 120")
    a("s_cbranch_scc1 K1_GATE2")
    a(f"s_mul_i32 s{sTMP2}, s{sTMP}, 171")
    a(f"s_lshr_b32 s{sTMP2}, s{sTMP2}, 9")
    a(f"s_mul_i32 s{sTMP3}, s{sTMP2}, 3")
    a(f"s_sub_u32 s{sTMP3}, s{sTMP}, s{sTMP3}")
    a(f"s_cmp_ge_u32 s{sTMP2}, 20")
    a(f"s_cselect_b32 s{sTMP4}, 40, 16")
    a(f"s_load_dwordx2 s[58:59], s[0:1], s{sTMP4}")
    a(f"s_cselect_b32 s{sTMP4}, 20, 0")
    a(f"s_sub_u32 s{sTMP4}, s{sTMP2}, s{sTMP4}")
    a(f"s_mul_i32 s{sTMP4}, s{sTMP4}, {32*1280}")
    a(f"s_mul_i32 s{sD}, s{sTMP3}, 448")
    a(f"s_add_u32 s{sTMP4}, s{sTMP4}, s{sD}")
    a(f"v_lshrrev_b32 v{vT+1}, 5, v{vLANE}")
    a(f"v_mul_u32_u24 v{vT+1}, 1280, v{vT+1}")
    a(f"v_and_b32 v{vT+2}, 31, v{vLANE}")
    a(f"v_lshl_add_u32 v{vT+1}, v{vT+2}, 4, v{vT+1}")
    a(f"s_lshl_b32 s{sEO}, s{sW}, 14")
    a("s_waitcnt lgkmcnt(0)")
    srd(a, 60, 58, 59, 640 * 1280)
    for i in range(16):
        a(f"s_add_u32 m0, s{sEO}, {i*1024}")
        a(f"s_add_u32 s{sD}, s{sTMP4}, {i*2*1280}")
        a(f"buffer_load_dwordx4 v{vT+1}, s[60:63], s{sD} offen lds")
    a(f"v_lshrrev_b32 v{vT+2}, 4, v{vLANE}")
    a(f"v_bfe_u32 v{vT+3}, v{vLANE}, 2, 2")
    a(f"v_lshl_add_u32 v{vT+2}, v{vT+2}, 3, v{vT+3}")
    a(f"v_lshlrev_b32 v{vT+2}, 9, v{vT+2}")
    a(f"v_and_b32 v{vT+3}, 3, v{vLANE}")
    a(f"v_lshl_add_u32 v{vT+2}, v{vT+3}, 3, v{vT+2}")
    a(f"v_add_u32 v{vT+2}, s{sEO}, v{vT+2}")
    a(f"v_lshlrev_b32 v{vT+3}, 4, v{vLANE}")
    a("s_waitcnt vmcnt(0)")
    for j in range(14):
        a(f"ds_read_b64_tr_b16 v[{vXF+4*j}:{vXF+4*j+1}], v{vT+2} offset:{j*32}")
        a(f"ds_read_b64_tr_b16 v[{vXF+4*j+2}:{vXF+4*j+3}], v{vT+2} offset:{j*32+2048}")
    a(f"s_mul_i32 s{sTMP3}, s{sTMP3}, 14")
    a("s_waitcnt lgkmcnt(0)")
    for j in range(14):
        a(f"s_add_u32 s{sTMP4}, s{sTMP3}, {j}")
        a(f"s_cmp_ge_u32 s{sTMP4}, 40")
        a("s_cbranch_scc1 K1_GATE2")
        a(f"s_mul_i32 s{sD}, s{sTMP4}, 52")
        a(f"s_lshr_b32 s{sD}, s{sD}, 8")
        a(f"s_mul_i32 s{sEO}, s{sD}, 5")
        a(f"s_sub_u32 s{sEO}, s{sTMP4}, s{sEO}")
        a(f"s_mul_i32 s{sD}, s{sD}, 40")
        a(f"s_add_u32 s{sD}, s{sD}, s{sTMP2}")
        a(f"s_mul_i32 s{sD}, s{sD}, 5")
        a(f"s_add_u32 s{sD}, s{sD}, s{sEO}")
        a(f"s_lshl_b32 s{sD}, s{sD}, 10")
        a(f"s_add_u32 s{sD}, s{sD}, {WT_OFF}")
        a(f"buffer_store_dwordx4 v[{vXF+4*j}:{vXF+4*j+3}], v{vT+3}, s[{SWS}:{SWS+3}], s{sD} offen")
    a.lab("K1_GATE2")
    a("s_nop 1")
    a(f"s_sub_u32 s{sTMP}, s2, 240")
    a(f"s_lshl_b32 s{sTMP}, s{sTMP}, 7")
    a(f"s_lshl_b32 s{sTMP2}, s{sW}, 4")
    a(f"s_add_u32 s{sI}, s{sTMP}, s{sTMP2}")
    a(f"v_lshlrev_b32 v{vT}, 2, v{vLANE}")
    for j in range(5):
        a(f"buffer_load_dword v{vT+7+j}, v{vT}, s[{SG}:{SG+3}], 0 offen offset:{j*256}")
    a(f"s_mul_i32 s{sTMP4}, s{sI}, 1280")
    for r in range(16):
        for j in range(5):
            a(f"buffer_load_dword v{vXF+r*5+j}, v{vT}, s[{SX}:{SX+3}], s{sTMP4} offen offset:{j*256}")
        a(f"s_add_u32 s{sTMP4}, s{sTMP4}, 1280")
        if r == 9: a("s_waitcnt vmcnt(20)")
    a("s_waitcnt vmcnt(0)")
    gw = vT + 7
    for j in range(5):
        a(f"v_lshlrev_b32 v{vT+2+j}, 16, v{gw+j}")
        a(f"v_and_b32 v{gw+j}, 0xffff0000, v{gw+j}")
    vG = 112
    for r in range(16):
        a(f"v_mov_b32 v{vG+r}, 0")
        for j in range(5):
            x = vXF + r * 5 + j
            a(f"v_lshlrev_b32 v{vT}, 16, v{x}")
            a(f"v_and_b32 v{x}, 0xffff0000, v{x}")
            a(f"v_fmac_f32 v{vG+r}, v{vT}, v{vT+2+j}")
            a(f"v_fmac_f32 v{vG+r}, v{x}, v{gw+j}")
    for rr in (8, 4, 2, 1):
        a("s_nop 1")
        for r in range(16):
            a(f"v_add_f32_dpp v{vG+r}, v{vG+r}, v{vG+r} row_ror:{rr} row_mask:0xf bank_mask:0xf")
    for r in range(16):
        a(f"v_mov_b32 v{vG+16+r}, v{vG+r}")
    a("s_nop 1")
    for r in range(16):
        a(f"v_permlane32_swap_b32 v{vG+r}, v{vG+16+r}")
    a("s_nop 1")
    for r in range(16):
        a(f"v_add_f32 v{vG+r}, v{vG+r}, v{vG+16+r}")
        a(f"v_mov_b32 v{vG+16+r}, v{vG+r}")
    a("s_nop 1")
    for r in range(16):
        a(f"v_permlane16_swap_b32 v{vG+r}, v{vG+16+r}")
    a("s_nop 1")
    for r in range(16):
        a(f"v_add_f32 v{vG+r}, v{vG+r}, v{vG+16+r}")
    a(f"v_and_b32 v{vT}, 15, v{vLANE}")
    a(f"v_mov_b32 v{vT+1}, v{vG}")
    for r in range(1, 16):
        a(f"v_cmp_eq_u32 vcc, {r}, v{vT}")
        a("s_nop 1")
        a(f"v_cndmask_b32 v{vT+1}, v{vT+1}, v{vG+r}, vcc")
    a(f"v_mul_f32 v{vT+1}, {f2u(-1.4426950408889634):#x}, v{vT+1}")
    a(f"v_exp_f32 v{vT+1}, v{vT+1}")
    a("s_nop 0")
    a(f"v_add_f32 v{vT+1}, 1.0, v{vT+1}")
    a(f"v_rcp_f32 v{vT+1}, v{vT+1}")
    a(f"s_lshl_b32 s{sTMP}, s{sI}, 2")
    a(f"s_add_u32 s{sTMP}, s{sTMP}, {G_OFF}")
    a(f"v_lshlrev_b32 v{vT}, 2, v{vT}")
    a("s_mov_b64 exec, 0xffff")
    a(f"buffer_store_dword v{vT+1}, v{vT}, s[{SWS}:{SWS+3}], s{sTMP} offen")
    a("s_branch K1_END")
    a.lab("K1_FIN")
    stamp(a, 5)
    if PROF: a("s_waitcnt vmcnt(0)")
    stamp(a, 6)
    stamp_flush(a, 0, 7, SWS, sW, vT)
    a.lab("K1_END")
    a("s_endpgm")
    return name, NV

K2_LDS = 163840
NEGBIG = -1.0e30

def mask_table():
    vals = []
    for j in range(6):
        for l in range(64):
            c = l & 31; h = l >> 5
            for i in range(4):
                if j < 4:
                    r = j * 4 + i
                    row = (r & 3) + 8 * (r >> 2) + 4 * h
                    diff = c + 16 - row
                else:
                    r = (j - 4) * 4 + i
                    row = (r & 3) + 8 * (r >> 2) + 4 * h
                    diff = c - 16 - row
                ok = 0 <= diff <= 14 and diff % 2 == 0
                vals.append(0 if ok else f2u(NEGBIG))
    return vals

K2_PRIO_TILE = 5
def gen_k2(a):
    name = "k2_attn_kernel"
    kernel_head(a, name)
    SWS = 8
    sW = 12; sHEAD = 13; sQB = 14; sS0 = 15; sT0 = 16; sT1 = 17; sT2 = 18; sT3 = 19
    sC = 20; sPASS = 21; sVM = 22
    sLO = 24
    sGRP = 26; sPR = 27
    sDS = 28; sDG = 29
    sAV = 30
    sQA = 33; sGO = 35
    sDO = 44
    vLANE = 1; vL16 = 2; vK8 = 3; vVA = 4; vKe = 5; vKo = 6; vK4c = 7
    vT = 8
    vGATE = 16; vVc = 17
    vAKO = 18
    vPFA = 22; vQO = 23
    vQ16 = [24, 28]; vQ8 = [32, 34]
    vQA16 = 36; vQA8 = 40
    vKA = 44; vKB = 52; vV1 = 56; vV2 = 64; vP = 72
    S = [84, 100]; NEG = [116, 132]; O = [148, 164]
    vAK = 180; vAV = 192; vMX = 204; vMY = 220
    vOB = 236; vDUM = 242
    NV = 244
    ONES = 0x3f803f80
    vS0, vS1 = S

    a("s_cmp_ge_u32 s2, 256")
    a("s_cbranch_scc1 K2_END")
    stamp(a, 0)
    a("s_load_dwordx2 s[4:5], s[0:1], 72")
    a(f"v_and_b32 v{vLANE}, 63, v0")
    a(f"v_lshrrev_b32 v{vT}, 6, v0")
    a(f"s_and_b32 s{sHEAD}, s2, 7")
    a(f"v_readfirstlane_b32 s{sW}, v{vT}")
    a(f"s_lshl_b32 s{sHEAD}, s{sHEAD}, 2")
    a(f"s_lshr_b32 s{sT0}, s2, 6")
    a(f"s_add_u32 s{sHEAD}, s{sHEAD}, s{sT0}")
    a(f"s_lshr_b32 s{sQB}, s2, 3")
    a(f"s_and_b32 s{sQB}, s{sQB}, 7")
    a(f"v_lshlrev_b32 v{vL16}, 4, v{vLANE}")
    a(f"v_and_b32 v{vT}, 31, v{vLANE}")
    a(f"v_lshlrev_b32 v{vK8}, 3, v{vT}")
    a(f"v_lshrrev_b32 v{vT+1}, 5, v{vLANE}")
    a(f"v_lshl_add_u32 v{vQO}, v{vT+1}, 8, v{vK8}")
    a(f"s_lshr_b32 s{sGRP}, s{sW}, 2")
    a(f"s_and_b32 s{sPR}, s{sW}, 3")
    a(f"s_mul_i32 s{sDS}, s{sHEAD}, {KV_HEAD}")
    a(f"s_add_u32 s{sDS}, s{sDS}, {KVB_OFF}")
    for j in range(5):
        a(f"s_add_u32 s{sT0}, s{sW}, {8*j}")
        a(f"s_lshl_b32 s{sDO+j}, s{sT0}, 10")
        a(f"s_cmp_ge_u32 s{sT0}, 20")
        a(f"s_cselect_b32 s{sT1}, {4*KV_CH - 20*1024}, 0")
        a(f"s_add_u32 s{sDO+j}, s{sDO+j}, s{sT1}")
    a(f"s_mul_i32 s{sQA}, s{sHEAD}, {Q_HEAD}")
    a(f"s_lshl_b32 s{sT1}, s{sQB}, 3")
    a(f"s_lshl_b32 s{sT2}, s{sPR}, 1")
    a(f"s_add_u32 s{sT1}, s{sT1}, s{sT2}")
    a(f"s_mul_i32 s{sT1}, s{sT1}, 1280")
    a(f"s_add_u32 s{sQA}, s{sQA}, s{sT1}")
    a(f"s_add_u32 s{sT0}, s{sQA}, {QB_OFF}")
    a(f"s_mov_b32 s{sDG}, 0")
    a("s_waitcnt lgkmcnt(0)")
    srd(a, SWS, 4, 5, WS_USED)
    def dma1(j):
        return [f"s_add_u32 m0, s{sDO+j}, s{sDG}",
                f"s_add_u32 s{sT3}, m0, s{sDS}",
                f"buffer_load_dwordx4 v{vL16}, s[{SWS}:{SWS+3}], s{sT3} offen lds"]
    def qloads(q16, q8, sreg, off):
        return [f"buffer_load_dwordx2 v[{q16}:{q16+1}], v{vQO}, s[{SWS}:{SWS+3}], s{sreg} offen offset:{off}",
                f"buffer_load_dwordx2 v[{q16+2}:{q16+3}], v{vQO}, s[{SWS}:{SWS+3}], s{sreg} offen offset:{off+512}",
                f"buffer_load_dwordx2 v[{q8}:{q8+1}], v{vK8}, s[{SWS}:{SWS+3}], s{sreg} offen offset:{off+1024}"]
    for j in range(5):
        for x in dma1(j): a(x)
    for sg in range(2):
        for x in qloads(vQ16[sg], vQ8[sg], sT0, sg * 1280): a(x)
    a(f"s_add_u32 s{sDG}, s{sDG}, {KV_CH}")
    for j in range(5):
        for x in dma1(j): a(x)
    a(f"s_add_u32 s{sDG}, s{sDG}, {KV_CH}")
    stamp(a, 1)
    a(f"s_mov_b32 s{sVM}, 0x000fffff")
    a(f"s_mov_b32 s{sVM+1}, 0x000fffff")
    a(f"s_mov_b32 s{sLO}, -1")
    a(f"s_mov_b32 s{sLO+1}, 0")
    a(f"v_and_b32 v{vT}, 31, v{vLANE}")
    a(f"v_lshrrev_b32 v{vT+1}, 5, v{vLANE}")
    a(f"v_mul_u32_u24 v{vVA}, 20, v{vT+1}")
    a(f"v_add_u32 v{vVA}, v{vVA}, v{vT}")
    a(f"v_lshlrev_b32 v{vVA}, 4, v{vVA}")
    a(f"s_lshl_b32 s{sS0}, s{sQB}, 8")
    a(f"s_lshl_b32 s{sT0}, s{sPR}, 6")
    a(f"s_add_u32 s{sS0}, s{sS0}, s{sT0}")
    a(f"s_lshl_b32 s{sT0}, s{sGRP}, 5")
    a(f"s_add_u32 s{sS0}, s{sS0}, s{sT0}")
    a(f"s_mul_i32 s{sT0}, s{sGRP}, 1280")
    a(f"s_add_u32 s{sQA}, s{sQA}, s{sT0}")
    a(f"s_add_u32 s{sQA}, s{sQA}, {QA_OFF}")
    a(f"s_lshl_b32 s{sT0}, s{sHEAD}, 11")
    a(f"s_add_u32 s{sT0}, s{sT0}, s{sS0}")
    a(f"s_sub_u32 s{sT0}, s{sT0}, 16")
    a(f"v_lshlrev_b32 v{vT+7}, 8, v{vT+1}")
    a(f"s_mov_b32 s{sT1}, {KV_CH}")
    for y in range(2):
        a(f"v_add_u32 v{vT+1}, s{sT0}, v{vT}")
        if y: a(f"v_add_u32 v{vT+1}, 32, v{vT+1}")
        a(f"v_ashrrev_i32 v{vT+2}, 8, v{vT+1}")
        a(f"v_mul_lo_u32 v{vT+2}, v{vT+2}, s{sT1}")
        a(f"v_and_b32 v{vT+3}, 31, v{vT+1}")
        a(f"v_lshl_add_u32 v{vT+2}, v{vT+3}, 3, v{vT+2}")
        a(f"v_bfe_u32 v{vT+3}, v{vT+1}, 5, 3")
        a(f"v_mul_u32_u24 v{vT+3}, 1280, v{vT+3}")
        a(f"v_add_u32 v{vAKO+2*y+1}, v{vT+2}, v{vT+3}")
        a(f"v_add_u32 v{vAKO+2*y}, v{vAKO+2*y+1}, v{vT+7}")
    a(f"s_lshl_b32 s{sT0}, s{sHEAD}, 7")
    a(f"s_lshr_b32 s{sT1}, s{sS0}, 4")
    a(f"s_add_u32 s{sT0}, s{sT0}, s{sT1}")
    for j in range(3):
        a(f"s_add_i32 s{sT1}, s{sT0}, {j-1}")
        a(f"s_max_i32 s{sT1}, s{sT1}, 0")
        a(f"s_lshr_b32 s{sT2}, s{sT1}, 4")
        a(f"s_mul_i32 s{sT2}, s{sT2}, {KV_CH}")
        a(f"s_and_b32 s{sT1}, s{sT1}, 15")
        a(f"s_mul_i32 s{sT1}, s{sT1}, 640")
        a(f"s_add_u32 s{sT1}, s{sT1}, s{sT2}")
        a(f"s_add_u32 s{sAV+j}, s{sT1}, 10240")
    a(f"s_lshl_b32 s{sGO}, s{sS0}, 2")
    a(f"s_add_u32 s{sGO}, s{sGO}, {G_OFF}")
    a(f"v_mov_b32 v{vT+2}, 0")
    a(f"v_mov_b32 v{vT+3}, {ONES:#x}")
    if "vones" in OPT:
        a(f"v_mov_b32 v{vT+2}, {ONES:#x}")
    else:
        a(f"v_and_b32 v{vT+4}, 27, v{vT}")
        a.l.pop()
        a(f"v_cmp_eq_u32 vcc, 20, v{vT}")
        a(f"v_cmp_eq_u32 s[38:39], 24, v{vT}")
        a("s_nop 1")
        a("s_or_b64 vcc, vcc, s[38:39]")
        a("s_nop 1")
        a(f"v_cndmask_b32 v{vT+2}, v{vT+2}, v{vT+3}, vcc")
    for i in range(12):
        a(f"v_mov_b32 v{vAV+i}, v{vT+2}")
    for i in range(16):
        a(f"v_mov_b32 v{vV1+i}, v{vT+2}")
    a(f"v_add_u32 v{vT+1}, 2, v{vT}")
    a(f"v_mov_b32 v{vT+2}, 0x5555")
    a(f"v_mov_b32 v{vT+3}, 0")
    a(f"v_lshlrev_b64 v[{vT+2}:{vT+3}], v{vT+1}, v[{vT+2}:{vT+3}]")
    a(f"s_cmp_eq_u32 s{sS0}, 0")
    a(f"s_cselect_b32 s{sT0}, 0xffff0000, -1")
    a(f"v_and_b32 v{vT+2}, s{sT0}, v{vT+2}")
    a(f"v_lshrrev_b32 v{vT+1}, 5, v{vLANE}")
    a(f"v_lshlrev_b32 v{vT+1}, 2, v{vT+1}")
    a(f"v_lshrrev_b64 v[{vT+2}:{vT+3}], v{vT+1}, v[{vT+2}:{vT+3}]")
    a(f"v_mov_b32 v{vT+4}, {f2u(NEGBIG):#x}")
    for r in range(16):
        bit = (r & 3) + 8 * (r >> 2)
        a(f"v_bfe_i32 v{vT+5+(r&1)}, v{vT+2}, {bit}, 1")
        a(f"v_bfi_b32 v{vMX+r}, v{vT+5+(r&1)}, 0, v{vT+4}")
    for r in range(8):
        bit = (r & 3) + 8 * (r >> 2)
        a(f"v_bfe_i32 v{vT+5+(r&1)}, v{vT+3}, {bit}, 1")
        a(f"v_bfi_b32 v{vMY+r}, v{vT+5+(r&1)}, 0, v{vT+4}")
    for r in range(8, 16):
        a(f"v_mov_b32 v{vMY+r}, 0")
    a("s_lshr_b32 s36, s2, 3")
    a("s_lshl_b32 s36, s36, 3")
    a(f"s_add_u32 s36, s36, s{sW}")
    a("s_mul_i32 s36, s36, 50")
    a(f"v_min_u32 v{vPFA}, 49, v{vLANE}")
    a(f"v_add_u32 v{vPFA}, s36, v{vPFA}")
    a(f"v_lshlrev_b32 v{vPFA}, 7, v{vPFA}")
    a(f"v_add_u32 v{vPFA}, {WT_OFF}, v{vPFA}")
    a(f"s_mov_b32 s{sPASS}, 0")
    a(f"s_mul_i32 s37, s{sGRP}, {4*KV_CH}")
    stamp(a, 2)
    a("s_waitcnt vmcnt(5)")
    a(f"s_mov_b64 exec, s[{sLO}:{sLO+1}]")
    a(f"s_not_b64 exec, exec")
    for sg in range(2):
        a(f"v_mov_b32 v{vQ8[sg]}, 0")
        a(f"v_mov_b32 v{vQ8[sg]+1}, 0")
    a("s_mov_b64 exec, -1")
    a("s_barrier")
    stamp(a, 3)
    def rdK16(dst, rel_chunk, tt):
        base = vKe if tt % 2 == 0 else vKo
        o0 = rel_chunk * 40 + (tt >> 1) * 5
        return f"ds_read2st64_b64 v[{dst}:{dst+3}], v{base} offset0:{o0} offset1:{o0+1}"
    def rdK4(dst, rel_chunk, tt):
        return f"ds_read_b64 v[{dst}:{dst+1}], v{vK4c} offset:{rel_chunk*KV_CH + tt*1280 + 1024}"
    def voff(g):
        return (g // 16) * KV_CH + (g % 16) * 640
    def setbases():
        a(f"v_add_u32 v{vKe}, s37, v{vQO}")
        a(f"v_add_u32 v{vKo}, 1280, v{vKe}")
        a(f"v_add_u32 v{vK4c}, s37, v{vK8}")
        a(f"v_add_u32 v{vVc}, s37, v{vVA}")
        a(f"v_add_u32 v{vVc}, 10240, v{vVc}")
    def qk(dst, ka, kb, sg, c):
        return [f"v_mfma_f32_32x32x16_bf16 v[{dst}:{dst+15}], v[{ka}:{ka+3}], v[{vQ16[sg]}:{vQ16[sg]+3}], {c}",
                f"v_mfma_f32_32x32x8_bf16 v[{dst}:{dst+15}], v[{kb}:{kb+1}], v[{vQ8[sg]}:{vQ8[sg]+1}], v[{dst}:{dst+15}]"]
    def rowmax(m, regs, first=None):
        if first is None:
            a(f"v_max3_f32 v{m}, v{regs[0]}, v{regs[1]}, v{regs[2]}")
            rest = regs[3:]
        else:
            rest = regs
        i = 0
        while i + 1 < len(rest):
            a(f"v_max3_f32 v{m}, v{m}, v{rest[i]}, v{rest[i+1]}")
            i += 2
        if i < len(rest):
            a(f"v_max_f32 v{m}, v{m}, v{rest[i]}")
    a.lab("K2_START")
    setbases()
    a(rdK16(vKA, 0, 0))
    a(rdK4(vKB, 0, 0))
    a(f"s_mov_b64 exec, s[{sVM}:{sVM+1}]")
    a(f"ds_read_b128 v[{vV1}:{vV1+3}], v{vVc}")
    a("s_mov_b64 exec, -1")
    for sg in range(2):
        for i in range(16):
            a(f"v_mov_b32 v{O[sg]+i}, 0")
    for i in range(4):
        a(f"v_mov_b32 v{vP+4+i}, 0")
    a(f"s_cmp_lg_u32 s{sPASS}, 0")
    a("s_cbranch_scc1 K2_HAVEM")
    a("s_waitcnt lgkmcnt(0)")
    for sg in range(2):
        for x in qk(S[sg], vKA, vKB, sg, "0"): a(x)
    a("s_nop 7")
    for sg in range(2):
        m = vT + 2 * sg
        rowmax(m, [S[sg] + i for i in range(16)])
        a(f"v_mov_b32 v{m+1}, v{m}")
    a("s_nop 1")
    for sg in range(2):
        m = vT + 2 * sg
        a(f"v_permlane32_swap_b32 v{m}, v{m+1}")
    a("s_nop 1")
    for sg in range(2):
        m = vT + 2 * sg
        a(f"v_max_f32 v{m}, v{m}, v{m+1}")
        for i in range(16):
            a(f"v_sub_f32 v{NEG[sg]+i}, 0, v{m}")
    a.lab("K2_HAVEM")
    a("s_waitcnt lgkmcnt(0)")
    a("s_nop 1")
    for x in qk(S[0], vKA, vKB, 0, f"v[{NEG[0]}:{NEG[0]+15}]"): a(x)
    a(f"s_mov_b32 s{sC}, 0")
    a("s_nop 15")
    stamp(a, 4)
    a.lab("K2_LOOP")
    if "chunkstamp" in OPT:
        a("s_memtime s[78:79]")
        a("s_waitcnt lgkmcnt(0)")
        a(f"s_mov_b32 s79, m0")
        a(f"s_mov_b32 m0, s{sC}")
        a("s_nop 0")
        a(f"v_writelane_b32 v243, s78, m0")
        a(f"s_mov_b32 m0, s79")
    aloads = [
        qloads(vQA16, vQA8, sQA, 0),
        [f"buffer_load_dwordx2 v[{vAK}:{vAK+1}], v{vAKO}, s[{SWS}:{SWS+3}], 0 offen",
         f"buffer_load_dwordx2 v[{vAK+2}:{vAK+3}], v{vAKO}, s[{SWS}:{SWS+3}], 0 offen offset:512",
         f"buffer_load_dwordx2 v[{vAK+8}:{vAK+9}], v{vAKO+1}, s[{SWS}:{SWS+3}], 0 offen offset:1024"],
        [f"buffer_load_dwordx2 v[{vAK+4}:{vAK+5}], v{vAKO+2}, s[{SWS}:{SWS+3}], 0 offen",
         f"buffer_load_dwordx2 v[{vAK+6}:{vAK+7}], v{vAKO+2}, s[{SWS}:{SWS+3}], 0 offen offset:512",
         f"buffer_load_dwordx2 v[{vAK+10}:{vAK+11}], v{vAKO+3}, s[{SWS}:{SWS+3}], 0 offen offset:1024"],
        [f"s_mov_b64 exec, s[{sVM}:{sVM+1}]"] +
        [f"buffer_load_dwordx4 v[{vAV+4*j}:{vAV+4*j+3}], v{vVA}, s[{SWS}:{SWS+3}], s{sAV+j} offen" for j in range(3)] +
        ["s_mov_b64 exec, -1"],
        [f"v_lshrrev_b32 v{vT+7}, 1, v{vK8}",
         f"buffer_load_dword v{vGATE}, v{vT+7}, s[{SWS}:{SWS+3}], s{sGO} offen"] +
        ([] if "k2nopf" in OPT else [f"buffer_load_dword v{vDUM}, v{vPFA}, s[{SWS}:{SWS+3}], 0 offen"]),
    ]
    ool = []
    ptile = optval("ptile", 6)
    for tt in range(8):
        for sg in range(2):
            cur = S[sg]; nsg = sg ^ 1; nxt = S[nsg]
            nt = tt if sg == 0 else tt + 1
            ka = vKA + 4 * (nt & 1); kb = vKB + 2 * (nt & 1)
            if sg == 0 and tt == 7:
                a(f"s_cmp_lg_u32 s{sPASS}, 0")
                a(f"s_cbranch_scc1 K2_NOSYNC")
                a(f"s_cmp_ge_u32 s{sC}, 2")
                a(f"s_cbranch_scc1 K2_SYNC0")
                a("s_waitcnt vmcnt(5)")
                a.lab("K2_SYNCB")
                a("s_barrier")
                a.lab("K2_NOSYNC")
                if ptile >= 0: a("s_setprio 2")
            if sg == 0 and tt == ptile:
                a("s_setprio 0")
            if sg == 1:
                a("s_waitcnt lgkmcnt(0)")
            q = qk(nxt, ka, kb, nsg, f"v[{NEG[nsg]}:{NEG[nsg]+15}]")
            a(q[0])
            if sg == 0:
                n1 = tt + 1
                a(rdK16(vKA + 4 * (n1 & 1), n1 // 8, n1 % 8))
                a(rdK4(vKB + 2 * (n1 & 1), n1 // 8, n1 % 8))
            for i in range(0, 4):
                a(f"v_exp_f32 v{cur+i}, v{cur+i}")
            pt = tt - 1 if sg == 0 else tt
            v2p = vV2 + 4 * (pt & 1)
            a(f"v_mfma_f32_32x32x16_bf16 v[{O[nsg]}:{O[nsg]+15}], v[{v2p}:{v2p+3}], v[{vP+4}:{vP+7}], v[{O[nsg]}:{O[nsg]+15}]")
            if sg == 0:
                a(f"s_mov_b64 exec, s[{sVM}:{sVM+1}]")
                d = vV2 + 4 * (tt & 1)
                a(f"ds_read_b128 v[{d}:{d+3}], v{vVc} offset:{voff(2*tt+1)}")
                d = vV1 + 4 * ((tt + 1) & 1)
                a(f"ds_read_b128 v[{d}:{d+3}], v{vVc} offset:{voff(2*tt+2)}")
                a("s_mov_b64 exec, -1")
            if sg == 1 and tt < 5:
                a(f"s_cmp_lt_u32 s{sC}, 2")
                a(f"s_cbranch_scc0 K2_X{tt}")
                a(f"s_cmp_lg_u32 s{sPASS}, 0")
                a(f"s_cbranch_scc1 K2_XR{tt}")
                for x in dma1(tt): a(x)
                if tt == 4: a(f"s_add_u32 s{sDG}, s{sDG}, {KV_CH}")
                ool.append((f"K2_X{tt}", [f"s_cmp_lg_u32 s{sC}, 3", f"s_cbranch_scc1 K2_XR{tt}"] + aloads[tt] + [f"s_branch K2_XR{tt}"]))
                a.lab(f"K2_XR{tt}")
            for i in range(4, 8):
                a(f"v_exp_f32 v{cur+i}, v{cur+i}")
            for i in range(4):
                a(f"v_cvt_pk_bf16_f32 v{vP+i}, v{cur+2*i}, v{cur+2*i+1}")
            a(q[1])
            for i in range(8, 12):
                a(f"v_exp_f32 v{cur+i}, v{cur+i}")
            v1 = vV1 + 4 * (tt & 1)
            a(f"v_mfma_f32_32x32x16_bf16 v[{O[sg]}:{O[sg]+15}], v[{v1}:{v1+3}], v[{vP}:{vP+3}], v[{O[sg]}:{O[sg]+15}]")
            for i in range(12, 16):
                a(f"v_exp_f32 v{cur+i}, v{cur+i}")
            for i in range(4, 8):
                a(f"v_cvt_pk_bf16_f32 v{vP+i}, v{cur+2*i}, v{cur+2*i+1}")
    for r in (vKe, vKo, vK4c, vVc):
        a(f"v_add_u32 v{r}, {KV_CH}, v{r}")
    a(f"s_add_u32 s{sC}, s{sC}, 1")
    a(f"s_cmp_lt_u32 s{sC}, 4")
    a("s_cbranch_scc1 K2_LOOP")
    stamp(a, 5)
    a(f"v_mfma_f32_32x32x16_bf16 v[{O[1]}:{O[1]+15}], v[{vV2+4}:{vV2+7}], v[{vP+4}:{vP+7}], v[{O[1]}:{O[1]+15}]")
    a("s_waitcnt vmcnt(0) lgkmcnt(0)" if "k2nopf" in OPT else "s_waitcnt vmcnt(1) lgkmcnt(0)")
    a(f"s_mov_b64 exec, s[{sLO}:{sLO+1}]")
    a(f"s_not_b64 exec, exec")
    a(f"v_mov_b32 v{vQA8}, 0")
    a(f"v_mov_b32 v{vQA8+1}, 0")
    a("s_mov_b64 exec, -1")
    a("s_nop 7")
    a(f"s_cmp_lg_u32 s{sPASS}, 0")
    a("s_cbranch_scc1 K2_FIN")
    a(f"v_mov_b32 v{vT}, 0")
    a(f"v_mov_b32 v{vT+1}, {f2u(2.0**64):#x}")
    a(f"v_mov_b32 v{vT+2}, 0")
    a("s_nop 2")
    for i in range(12):
        a(f"v_fma_f32 v{vT}, v{O[0]+i}, 0, v{vT}")
        a(f"v_fma_f32 v{vT+2}, v{O[1]+i}, 0, v{vT+2}")
    a(f"v_max_f32 v{vT+3}, v{O[0]+12}, v{O[1]+12}")
    a(f"v_add_f32 v{vT}, v{vT}, v{vT+2}")
    a(f"v_add_f32 v{vT}, v{vT}, v{vT+3}")
    a(f"v_add_f32 v{vT+2}, v{O[0]+12}, v{O[1]+12}")
    a(f"v_add_f32 v{vT}, v{vT}, v{vT+2}")
    a(f"v_cmp_nlt_f32 vcc, v{vT}, v{vT+1}")
    a("s_nop 4")
    a("s_cbranch_vccz K2_FIN")
    a(f"s_mov_b32 s{sPASS}, 1")
    a(f"v_mov_b32 v{vT}, {f2u(-3.0e38):#x}")
    a(f"v_mov_b32 v{vT+2}, {f2u(-3.0e38):#x}")
    setbases()
    a(f"s_mov_b32 s{sC}, 0")
    a.lab("K2_MAXLOOP")
    for tt in range(8):
        a(rdK16(vKA, 0, tt))
        a(rdK4(vKB, 0, tt))
        a("s_waitcnt lgkmcnt(0)")
        for sg in range(2):
            for x in qk(S[sg], vKA, vKB, sg, "0"): a(x)
        a("s_nop 15")
        for sg in range(2):
            rowmax(vT + 2 * sg, [S[sg] + i for i in range(16)], first=True)
    for r in (vKe, vKo, vK4c):
        a(f"v_add_u32 v{r}, {KV_CH}, v{r}")
    a(f"s_add_u32 s{sC}, s{sC}, 1")
    a(f"s_cmp_lt_u32 s{sC}, 4")
    a("s_cbranch_scc1 K2_MAXLOOP")
    for sg in range(2):
        a(f"v_mov_b32 v{vT+2*sg+1}, v{vT+2*sg}")
    a("s_nop 1")
    for sg in range(2):
        a(f"v_permlane32_swap_b32 v{vT+2*sg}, v{vT+2*sg+1}")
    a("s_nop 1")
    for sg in range(2):
        a(f"v_max_f32 v{vT+2*sg}, v{vT+2*sg}, v{vT+2*sg+1}")
        for i in range(16):
            a(f"v_sub_f32 v{NEG[sg]+i}, 0, v{vT+2*sg}")
    a("s_branch K2_START")
    a.lab("K2_SYNC0")
    a(f"s_cmp_lg_u32 s{sC}, 2")
    a("s_cbranch_scc1 K2_NOSYNC" if "nolatebar" in OPT else "s_cbranch_scc1 K2_SYNCB")
    a("s_waitcnt vmcnt(0)")
    a("s_branch K2_SYNCB")
    for lab, body in ool:
        a.lab(lab)
        for x in body: a(x)
    a.lab("K2_FIN")
    a("s_setprio 0")
    a(f"v_mfma_f32_32x32x16_bf16 v[{vS0}:{vS0+15}], v[{vAK}:{vAK+3}], v[{vQA16}:{vQA16+3}], v[{vMX}:{vMX+15}]")
    a(f"v_mfma_f32_32x32x16_bf16 v[{vS1}:{vS1+15}], v[{vAK+4}:{vAK+7}], v[{vQA16}:{vQA16+3}], v[{vMY}:{vMY+15}]")
    a(f"v_mfma_f32_32x32x8_bf16 v[{vS0}:{vS0+15}], v[{vAK+8}:{vAK+9}], v[{vQA8}:{vQA8+1}], v[{vS0}:{vS0+15}]")
    a(f"v_mfma_f32_32x32x8_bf16 v[{vS1}:{vS1+15}], v[{vAK+10}:{vAK+11}], v[{vQA8}:{vQA8+1}], v[{vS1}:{vS1+15}]")
    a(f"v_mov_b32 v{O[0]+13}, v{NEG[0]}")
    a(f"v_mov_b32 v{O[1]+13}, v{NEG[1]}")
    a(f"s_lshl_b32 s{sT0}, s{sW}, 12")
    a(f"v_add_u32 v{vT}, s{sT0}, v{vL16}")
    a(f"v_xor_b32 v{vT+1}, {4 << 12}, v{vT}")
    a("s_barrier")
    a(f"s_cmp_eq_u32 s{sGRP}, 0")
    a("s_cbranch_scc1 K2_XA")
    for j in range(4):
        a(f"ds_write_b128 v{vT}, v[{O[0]+4*j}:{O[0]+4*j+3}] offset:{j*1024}")
    a("s_branch K2_XB")
    a.lab("K2_XA")
    for j in range(4):
        a(f"ds_write_b128 v{vT}, v[{O[1]+4*j}:{O[1]+4*j+3}] offset:{j*1024}")
    a.lab("K2_XB")
    regs = [vS0 + i for i in range(16)] + [vS1 + i for i in range(8)]
    m = vT + 6
    rowmax(m, regs)
    a(f"v_mov_b32 v{m+1}, v{m}")
    a("s_waitcnt lgkmcnt(0)")
    a("s_barrier")
    a(f"s_cmp_eq_u32 s{sGRP}, 0")
    a("s_cbranch_scc1 K2_XC")
    for j in range(4):
        a(f"ds_read_b128 v[{O[0]+4*j}:{O[0]+4*j+3}], v{vT+1} offset:{j*1024}")
    a("s_branch K2_XD")
    a.lab("K2_XC")
    for j in range(4):
        a(f"ds_read_b128 v[{O[1]+4*j}:{O[1]+4*j+3}], v{vT+1} offset:{j*1024}")
    a.lab("K2_XD")
    a(f"v_permlane32_swap_b32 v{m}, v{m+1}")
    a("s_nop 1")
    a(f"v_max_f32 v{m}, v{m}, v{m+1}")
    a(f"v_sub_f32 v{vKo}, 0, v{m}")
    a(f"v_sub_f32 v{vK4c}, 0, v{m}")
    for i in range(0, 24, 2):
        a(f"v_pk_add_f32 v[{regs[i]}:{regs[i]+1}], v[{regs[i]}:{regs[i]+1}], v[{vKo}:{vK4c}]")
    for i in range(24):
        a(f"v_exp_f32 v{regs[i]}, v{regs[i]}")
    a("s_nop 0")
    for i in range(12):
        a(f"v_cvt_pk_bf16_f32 v{vP+i}, v{regs[2*i]}, v{regs[2*i+1]}")
    OA = NEG[0]
    a("s_nop 1")
    for j in range(3):
        c = "0" if j == 0 else f"v[{OA}:{OA+15}]"
        a(f"v_mfma_f32_32x32x16_bf16 v[{OA}:{OA+15}], v[{vAV+4*j}:{vAV+4*j+3}], v[{vP+4*j}:{vP+4*j+3}], {c}")
    a("s_waitcnt lgkmcnt(0)")
    a(f"v_sub_f32 v{vT+2}, v{O[1]+13}, v{O[0]+13}")
    a(f"v_sub_f32 v{vT+3}, 0, v{vT+2}")
    a(f"v_min_f32 v{vT+2}, 0, v{vT+2}")
    a(f"v_min_f32 v{vT+3}, 0, v{vT+3}")
    a(f"v_exp_f32 v{vT+2}, v{vT+2}")
    a(f"v_exp_f32 v{vT+3}, v{vT+3}")
    a("s_nop 0")
    for i in range(13):
        a(f"v_mul_f32 v{O[0]+i}, v{O[0]+i}, v{vT+2}")
        a(f"v_fmac_f32 v{O[0]+i}, v{O[1]+i}, v{vT+3}")
    def rowsum(dst, acc):
        a(f"v_mov_b32 v{dst}, v{acc+12}")
        a(f"s_not_b64 exec, s[{sLO}:{sLO+1}]")
        a(f"v_mov_b32 v{dst}, v{acc+8}")
        a("s_mov_b64 exec, -1")
    rowsum(vT + 4, O[0])
    a(f"v_rcp_f32 v{vT+4}, v{vT+4}")
    a(f"v_sub_f32 v{vT+5}, 1.0, v{vGATE}")
    a("s_nop 0")
    a(f"v_mul_f32 v{vT+4}, v{vT+4}, v{vT+5}")
    for i in range(12):
        a(f"v_mul_f32 v{O[0]+i}, v{O[0]+i}, v{vT+4}")
    for i in range(6):
        a(f"v_cvt_pk_bf16_f32 v{vOB+i}, v{O[0]+2*i}, v{O[0]+2*i+1}")
    a(f"v_and_b32 v{vT}, 31, v{vLANE}")
    a(f"v_add_u32 v{vT}, s{sS0}, v{vT}")
    a(f"v_lshrrev_b32 v{vT+1}, 4, v{vT}")
    a(f"v_mul_u32_u24 v{vT+1}, {40*1024}, v{vT+1}")
    a(f"v_and_b32 v{vT}, 15, v{vT}")
    a(f"v_lshl_add_u32 v{vT+1}, v{vT}, 4, v{vT+1}")
    a(f"v_lshrrev_b32 v{vT+2}, 5, v{vLANE}")
    a(f"v_lshlrev_b32 v{vT+2}, 2, v{vT+2}")
    a(f"s_mul_i32 s{sT0}, s{sHEAD}, 20")
    a(f"v_add_u32 v{vT+2}, s{sT0}, v{vT+2}")
    a(f"s_mov_b32 s{sT1}, {O_OFF}")
    def ostore(br, src):
        for j in range(3):
            a(f"v_add_u32 v{vT+3}, {br*640 + 8*j}, v{vT+2}")
            a(f"v_lshrrev_b32 v{vT+4}, 5, v{vT+3}")
            a(f"v_lshl_add_u32 v{vT+4}, v{vT+4}, 10, v{vT+1}")
            a(f"v_bfe_u32 v{vT+5}, v{vT+3}, 3, 2")
            a(f"v_lshl_add_u32 v{vT+4}, v{vT+5}, 8, v{vT+4}")
            a(f"v_and_b32 v{vT+5}, 4, v{vT+3}")
            a(f"v_lshl_add_u32 v{vT+4}, v{vT+5}, 1, v{vT+4}")
            if j == 2:
                a(f"s_mov_b64 exec, s[{sLO}:{sLO+1}]")
            a(f"buffer_store_dwordx2 v[{src+2*j}:{src+2*j+1}], v{vT+4}, s[{SWS}:{SWS+3}], s{sT1} offen{STORE_FLAGS}")
            if j == 2:
                a("s_mov_b64 exec, -1")
    ostore(1, vOB)
    rowsum(vT + 6, OA)
    a(f"v_rcp_f32 v{vT+6}, v{vT+6}")
    a("s_nop 0")
    a(f"v_mul_f32 v{vT+6}, v{vT+6}, v{vGATE}")
    for i in range(12):
        a(f"v_mul_f32 v{OA+i}, v{OA+i}, v{vT+6}")
    for i in range(6):
        a(f"v_cvt_pk_bf16_f32 v{vP+i}, v{OA+2*i}, v{OA+2*i+1}")
    ostore(0, vP)
    stamp(a, 6)
    if PROF: a("s_waitcnt vmcnt(0)")
    stamp(a, 7)
    if "chunkstamp" in OPT:
        a(f"s_lshl_b32 s97, s2, 3")
        a(f"s_add_u32 s97, s97, s{sW}")
        a(f"s_lshl_b32 s97, s97, 6")
        a(f"s_add_u32 s97, s97, {PROF_OFF + 3 * 0x100000}")
        a(f"v_lshlrev_b32 v{vT}, 2, v{vLANE}")
        a("s_mov_b64 exec, 0xff")
        a(f"buffer_store_dword v243, v{vT}, s[{SWS}:{SWS+3}], s97 offen")
        a("s_mov_b64 exec, -1")
    stamp_flush(a, 1, 8, SWS, sW, vT)
    a.lab("K2_END")
    a("s_endpgm")
    return name, NV

K3_BUF = 40 * 1024
K3_NBUF = 3
K3_LDS = K3_BUF * K3_NBUF

def gen_k3(a):
    name = "k3_proj_kernel"
    kernel_head(a, name)
    SWS = 8; SOUT = 20
    sW = 24; sMB = 25; sKH = 26; sMT = 27; sNT = 28; sT0 = 29; sT1 = 30; sT2 = 31; sOB = 32; sWB = 33; sM0 = 34
    vLANE = 1; vL16 = 2; vWR = 6; vWA = 7; vT = 8
    vOF = 20
    vWF = 100
    vACC = 180
    NV = 200
    a("s_cmp_ge_u32 s2, 256")
    a("s_cbranch_scc1 K3_END")
    stamp(a, 0)
    a("s_load_dwordx2 s[4:5], s[0:1], 72")
    a("s_load_dwordx2 s[36:37], s[0:1], 56")
    a(f"v_and_b32 v{vLANE}, 63, v0")
    a(f"v_lshrrev_b32 v{vT}, 6, v0")
    a(f"s_and_b32 s{sMT}, s2, 7")
    a(f"v_readfirstlane_b32 s{sW}, v{vT}")
    a(f"s_lshl_b32 s{sMT}, s{sMT}, 2")
    a(f"s_lshr_b32 s{sT0}, s2, 6")
    a(f"s_add_u32 s{sMT}, s{sMT}, s{sT0}")
    a(f"s_lshr_b32 s{sNT}, s2, 3")
    a(f"s_and_b32 s{sNT}, s{sNT}, 7")
    a(f"v_lshlrev_b32 v{vL16}, 4, v{vLANE}")
    a(f"s_and_b32 s{sMB}, s{sW}, 3")
    a(f"s_lshr_b32 s{sKH}, s{sW}, 2")
    a(f"s_lshl_b32 s{sM0}, s{sW}, 10")
    a(f"s_mul_i32 s{sWB}, s{sNT}, {200*1024}")
    a(f"s_add_u32 s{sWB}, s{sWB}, s{sM0}")
    a(f"s_add_u32 s{sWB}, s{sWB}, {WT_OFF}")
    a(f"s_lshl_b32 s{sOB}, s{sMT}, 2")
    a(f"s_add_u32 s{sOB}, s{sOB}, s{sMB}")
    a(f"s_mul_i32 s{sOB}, s{sOB}, 40")
    a(f"s_lshl_b32 s{sT0}, s{sKH}, 1")
    a(f"s_add_u32 s{sOB}, s{sOB}, s{sT0}")
    a(f"s_lshl_b32 s{sOB}, s{sOB}, 10")
    a(f"s_add_u32 s{sOB}, s{sOB}, {O_OFF}")
    a(f"s_mul_i32 s{sT0}, s{sKH}, {10*1024}")
    a(f"v_add_u32 v{vWR}, s{sT0}, v{vL16}")
    a("s_waitcnt lgkmcnt(0)")
    srd(a, SWS, 4, 5, WS_USED)
    issued = []
    def wgroup(p):
        g = []
        for j in range(5):
            g.append(([f"s_add_u32 m0, s{sM0}, {(p % K3_NBUF)*K3_BUF + j*8192}",
                       f"s_add_u32 s{sT1}, s{sWB}, {p*K3_BUF + j*8192}",
                       f"buffer_load_dwordx4 v{vL16}, s[{SWS}:{SWS+3}], s{sT1} offen lds"], ("W", p)))
        return g
    def ogroup(ss):
        g = []
        for i in range(2):
            d = vOF + (ss * 2 + i) * 4
            g.append(([f"s_add_u32 s{sT0}, s{sOB}, {(ss*4 + i)*1024}",
                       f"buffer_load_dwordx4 v[{d}:{d+3}], v{vL16}, s[{SWS}:{SWS+3}], s{sT0} offen"], ("o", ss)))
        return g
    def emit(item):
        for x in item[0]: a(x)
        issued.append(item[1])
    def vm(need):
        last = max([i for i, t in enumerate(issued) if t in need], default=-1)
        return len(issued) - 1 - last
    def reads(ss):
        st = ss & 1
        p = ss // 2
        off = (p % K3_NBUF) * K3_BUF + (ss & 1) * 20 * 1024
        out = [f"v_add_u32 v{vWA}, {off}, v{vWR}"]
        for i in range(2):
            for b in range(5):
                r = vWF + st * 40 + (i * 5 + b) * 4
                out.append(f"ds_read_b128 v[{r}:{r+3}], v{vWA} offset:{(i*5 + b)*1024}")
        return out
    OPRE = optval("k3opre", 4)
    for it in wgroup(0) + ogroup(0) + ogroup(1) + wgroup(1): emit(it)
    for ss in range(2, OPRE):
        for it in ogroup(ss): emit(it)
    srd(a, SOUT, 36, 37, 2048 * 1280)
    stamp(a, 1)
    a(f"s_waitcnt vmcnt({vm({('W', 0)})})")
    a("s_barrier")
    stamp(a, 2)
    for r in reads(0): a(r)
    for ss in range(10):
        p = ss // 2
        need = {("o", ss)}
        if ss % 2 == 1 and p + 1 < 5: need.add(("W", p + 1))
        a(f"s_waitcnt vmcnt({vm(need)}) lgkmcnt(0)")
        if ss % 2 == 1 and ss < 9: a("s_barrier")
        mf = []
        for i in range(2):
            for b in range(5):
                acc = vACC + b * 4
                wf = vWF + (ss & 1) * 40 + (i * 5 + b) * 4
                of = vOF + (ss * 2 + i) * 4
                c = "0" if (ss == 0 and i == 0) else f"v[{acc}:{acc+3}]"
                mf.append(f"v_mfma_f32_16x16x32_bf16 v[{acc}:{acc+3}], v[{wf}:{wf+3}], v[{of}:{of+3}], {c}")
        rd = reads(ss + 1) if ss < 9 else []
        ld = []
        if ss == 0: ld += wgroup(2)
        if ss % 2 == 1 and p + 3 < 5: ld += wgroup(p + 3)
        if ss + OPRE < 10: ld += ogroup(ss + OPRE)
        ex = [("r", r) for r in rd]
        mixed = []
        step = max(1, len(ex) // max(1, len(ld))) if ld else 0
        k = 0
        for i, e in enumerate(ex):
            mixed.append(e)
            if ld and k < len(ld) and (i + 1) % step == 0:
                mixed.append(("l", ld[k])); k += 1
        while k < len(ld):
            mixed.append(("l", ld[k])); k += 1
        k = 0
        for i, m in enumerate(mf):
            a(m)
            tgt = min(len(mixed), ((i + 1) * len(mixed) + 8) // 9)
            while k < tgt:
                if mixed[k][0] == "r": a(mixed[k][1])
                else: emit(mixed[k][1])
                k += 1
    stamp(a, 3)
    a(f"s_lshl_b32 s{sT0}, s{sMB}, 13")
    a(f"v_add_u32 v{vT}, s{sT0}, v{vL16}")
    a("s_barrier")
    a(f"s_cmp_eq_u32 s{sKH}, 0")
    a("s_cbranch_scc1 K3_RED")
    a("s_nop 4")
    for b in range(5):
        a(f"ds_write_b128 v{vT}, v[{vACC+b*4}:{vACC+b*4+3}] offset:{b*1024}")
    a("s_waitcnt lgkmcnt(0)")
    a("s_barrier")
    a("s_branch K3_FIN")
    a.lab("K3_RED")
    a(f"s_lshl_b32 s{sT1}, s{sMT}, 2")
    a(f"s_add_u32 s{sT1}, s{sT1}, s{sMB}")
    a(f"s_mul_i32 s{sT1}, s{sT1}, {16*1280}")
    a(f"s_mul_i32 s{sT2}, s{sNT}, 160")
    a(f"s_add_u32 s{sT1}, s{sT1}, s{sT2}")
    a(f"v_and_b32 v{vT+1}, 15, v{vLANE}")
    a(f"v_mul_u32_u24 v{vT+1}, 1280, v{vT+1}")
    a(f"v_lshrrev_b32 v{vT+2}, 4, v{vLANE}")
    a(f"v_lshl_add_u32 v{vT+1}, v{vT+2}, 3, v{vT+1}")
    a("s_barrier")
    for b in range(5):
        a(f"ds_read_b128 v[{vOF+4*b}:{vOF+4*b+3}], v{vT} offset:{b*1024}")
    for b in range(5):
        a(f"s_waitcnt lgkmcnt({4-b})")
        for i in range(4):
            a(f"v_add_f32 v{vOF+4*b+i}, v{vOF+4*b+i}, v{vACC+4*b+i}")
        a(f"v_cvt_pk_bf16_f32 v{vWF+2*b}, v{vOF+4*b}, v{vOF+4*b+1}")
        a(f"v_cvt_pk_bf16_f32 v{vWF+2*b+1}, v{vOF+4*b+2}, v{vOF+4*b+3}")
        a(f"buffer_store_dwordx2 v[{vWF+2*b}:{vWF+2*b+1}], v{vT+1}, s[{SOUT}:{SOUT+3}], s{sT1} offen offset:{b*32}")
    a.lab("K3_FIN")
    stamp(a, 4)
    if PROF: a("s_waitcnt vmcnt(0)")
    stamp(a, 5)
    stamp_flush(a, 2, 6, SWS, sW, vT)
    a.lab("K3_END")
    a("s_endpgm")
    return name, NV

def build(kernels=("k1", "k2", "k3")):
    a = Asm()
    hdr = f"""; Gated mix of sliding-window dilated attention (A) and full softmax MHA (B): three launches.
; @launch kernel=k1_qkv_kernel grid=(256,1,1) block=(512,1,1) lds={K1_LDS}
; @launch kernel=k2_attn_kernel grid=(256,1,1) block=(512,1,1) lds={K2_LDS}
; @launch kernel=k3_proj_kernel grid=(256,1,1) block=(512,1,1) lds={K3_LDS}
.amdgcn_target "amdgcn-amd-amdhsa--gfx950"
.text
"""
    descs = []
    for g in (gen_k1, gen_k2, gen_k3):
        n, nv = g(a)
        descs.append(kernel_desc(n, nv))
    return hdr + a.text() + '.section .rodata,"a"\n' + "".join(".p2align 6\n" + d for d in descs)

if __name__ == "__main__":
    if len(sys.argv) > 2 and sys.argv[2] == "prof":
        PROF = True
    OPT.update(sys.argv[3:])
    if "st_sc1" in OPT: STORE_FLAGS = " sc1"
    if "st_nt" in OPT: STORE_FLAGS = " nt"
    if "st_sc01" in OPT: STORE_FLAGS = " sc0 sc1"
    if "st_sc1nt" in OPT: STORE_FLAGS = " sc1 nt"
    out = sys.argv[1] if len(sys.argv) > 1 else f"cdna_kernels/{NAME}.s"
    open(out, "w").write(build())
    print("wrote", out)
```

```python
import sys, struct

NAME = "gated_mix__sliding_local_dilated__softmax_full_mha__prompt"

KV_HEAD = 163840
KV_CH = 20480
Q_HEAD = 81920
Q_CH = 10240
KVA_OFF = 0
KVB_OFF = 32 * KV_HEAD
QA_OFF = 2 * 32 * KV_HEAD
QB_OFF = QA_OFF + 32 * Q_HEAD
G_OFF = QB_OFF + 32 * Q_HEAD
FL_OFF = 0xF04000
WT_OFF = 0xF10000
O_OFF = 0x1100000
O_SIZE = 128 * 40 * 1024
WS_USED = 0x2400000
QSCALE = (20 ** -0.5) * 1.4426950408889634

def f2u(x):
    return struct.unpack("<I", struct.pack("<f", x))[0]

class Asm:
    def __init__(self):
        self.l = []
    def __call__(self, s):
        for x in s.strip("\n").split("\n"):
            self.l.append("    " + x.strip())
    def lab(self, s):
        self.l.append(s + ":")
    def raw(self, s):
        self.l.append(s)
    def text(self):
        return "\n".join(self.l) + "\n"

def vr(b, n=1):
    return f"v{b}" if n == 1 else f"v[{b}:{b+n-1}]"
def sr(b, n=1):
    return f"s{b}" if n == 1 else f"s[{b}:{b+n-1}]"

def kernel_head(a, name):
    a.raw(f".globl {name}")
    a.raw(".p2align 8")
    a.raw(f".type {name},@function")
    a.lab(name)

def kernel_desc(name, nv, ns=102):
    acc = (nv + 3) // 4 * 4
    return f""".amdhsa_kernel {name}
  .amdhsa_next_free_vgpr {nv}
  .amdhsa_next_free_sgpr {ns}
  .amdhsa_accum_offset {acc}
  .amdhsa_group_segment_fixed_size 0
  .amdhsa_kernarg_size 80
  .amdhsa_user_sgpr_count 2
  .amdhsa_user_sgpr_kernarg_segment_ptr 1
  .amdhsa_system_sgpr_workgroup_id_x 1
  .amdhsa_float_denorm_mode_32 3
  .amdhsa_float_denorm_mode_16_64 3
.end_amdhsa_kernel
"""

PROF = False
OPT = set()
STORE_FLAGS = ""
PROF_OFF = 0x2000000
def optval(name, default):
    for o in OPT:
        if o.startswith(name + "="): return int(o.split("=")[1])
    return default
def stamp(a, i):
    if PROF:
        a(f"s_memtime s[{80+2*i}:{81+2*i}]")
        if i == 0: a("s_memrealtime s[76:77]")
def stamp_flush(a, kidx, n, srdreg, wave_sgpr, vtmp):
    if not PROF: return
    a("s_memrealtime s[98:99]")
    a("s_waitcnt lgkmcnt(0)")
    a(f"s_lshl_b32 s75, s2, 3")
    a(f"s_add_u32 s75, s75, s{wave_sgpr}")
    a(f"s_lshl_b32 s75, s75, 6")
    a(f"s_add_u32 s75, s75, {PROF_OFF + kidx * 0x100000}")
    a("s_mov_b64 exec, 1")
    a(f"v_mov_b32 v{vtmp+1}, 0")
    for i in range(n):
        a(f"v_mov_b32 v{vtmp}, s{80+2*i}")
        a(f"buffer_store_dword v{vtmp}, v{vtmp+1}, s[{srdreg}:{srdreg+3}], s75 offen offset:{4*i}")
    a(f"v_mov_b32 v{vtmp}, s76")
    a(f"buffer_store_dword v{vtmp}, v{vtmp+1}, s[{srdreg}:{srdreg+3}], s75 offen offset:56")
    a(f"v_mov_b32 v{vtmp}, s98")
    a(f"buffer_store_dword v{vtmp}, v{vtmp+1}, s[{srdreg}:{srdreg+3}], s75 offen offset:60")

def srd(a, d, lo, hi, size):
    a(f"s_mov_b32 s{d}, s{lo}")
    a(f"s_and_b32 s{d+1}, s{hi}, 0xffff")
    a(f"s_mov_b32 s{d+2}, {size}")
    a(f"s_mov_b32 s{d+3}, 0x00020000")

K1_XB = 32768
K1_BUF = 32768 + 16384
K1_NBUF = 3
K1_LDS = K1_BUF * K1_NBUF

def gen_k1(a):
    PF0 = optval("pf0", 3)
    name = "k1_qkv_kernel"
    kernel_head(a, name)
    SX = 12; SW = 16; SWS = 20; SG = 24
    sW = 32; sWM = 33; sWN = 34; sI = 35; sRD = 36; sWRB = 37
    sXS = 38; sWS1 = 39; sXM0 = 41; sWM0 = 42; sMT = 43; sNT = 44; sBR = 45
    sTMP = 46; sTMP2 = 47; sTMP3 = 48; sTMP4 = 49
    sSEC = 50; sFB = 51; sEO = 52; sD = 53; sHS = 54; sSC = 56
    vLANE = 1; vXO = 2; vWO = 4
    vXR = 6
    vWR = 10
    vXA = 12
    vWA = 16
    vT = 18
    vXF = 32
    vWF = 64
    vACC = 96
    vEO = 160
    vPF = 176
    NV = 180

    a("s_cmp_ge_u32 s2, 256")
    a("s_cbranch_scc1 K1_END")
    stamp(a, 0)
    a("s_lshr_b32 s45, s2, 2")
    a("s_and_b32 s45, s45, 1")
    a("s_mul_i32 s46, s45, 24")
    a("s_add_u32 s46, s46, 8")
    a("s_load_dwordx2 s[10:11], s[0:1], s46")
    a("s_load_dwordx2 s[8:9], s[0:1], 0")
    a("s_load_dwordx2 s[4:5], s[0:1], 72")
    a("s_load_dwordx2 s[6:7], s[0:1], 48")
    a(f"v_and_b32 v{vLANE}, 63, v0")
    a(f"v_lshrrev_b32 v{vT}, 6, v0")
    a(f"s_lshr_b32 s{sTMP}, s2, 3")
    a(f"v_readfirstlane_b32 s{sW}, v{vT}")
    a(f"s_and_b32 s{sMT}, s2, 3")
    a(f"s_lshl_b32 s{sMT}, s{sMT}, 1")
    a(f"s_and_b32 s{sTMP2}, s{sTMP}, 1")
    a(f"s_add_u32 s{sMT}, s{sMT}, s{sTMP2}")
    a(f"s_lshr_b32 s{sNT}, s{sTMP}, 1")
    a(f"s_cmp_ge_u32 s{sNT}, 15")
    a("s_cbranch_scc1 K1_GATE")
    a(f"s_and_b32 s{sWM}, s{sW}, 3")
    a(f"s_lshr_b32 s{sWN}, s{sW}, 2")
    a(f"v_lshrrev_b32 v{vT}, 3, v{vLANE}")
    a(f"v_lshrrev_b32 v{vT+1}, 4, v{vLANE}")
    a(f"v_xor_b32 v{vT+1}, v{vT+1}, v{vLANE}")
    a(f"v_and_b32 v{vT+1}, 7, v{vT+1}")
    a(f"s_lshl_b32 s{sTMP}, s{sMT}, 8")
    a(f"s_lshl_b32 s{sTMP2}, s{sW}, 5")
    a(f"s_add_u32 s{sTMP}, s{sTMP}, s{sTMP2}")
    a(f"v_add_u32 v{vT}, s{sTMP}, v{vT}")
    a(f"v_mul_u32_u24 v{vT}, 1280, v{vT}")
    a(f"v_lshl_add_u32 v{vXO}, v{vT+1}, 4, v{vT}")
    a(f"v_xor_b32 v{vXO+1}, 64, v{vXO}")
    a(f"v_lshrrev_b32 v{vT}, 4, v{vLANE}")
    a(f"v_lshlrev_b32 v{vT+1}, 2, v{vT}")
    a(f"v_xor_b32 v{vT+1}, v{vT+1}, v{vLANE}")
    a(f"v_and_b32 v{vT+1}, 15, v{vT+1}")
    a(f"s_lshl_b32 s{sTMP}, s{sW}, 3")
    a(f"v_add_u32 v{vT}, s{sTMP}, v{vT}")
    a(f"v_mul_u32_u24 v{vT}, 3840, v{vT}")
    a(f"v_lshl_add_u32 v{vT}, v{vT+1}, 4, v{vT}")
    a(f"s_lshl_b32 s{sTMP}, s{sNT}, 8")
    a(f"v_add_u32 v{vWO}, s{sTMP}, v{vT}")
    a(f"s_lshl_b32 s{sXM0}, s{sW}, 12")
    a(f"s_lshl_b32 s{sWM0}, s{sW}, 11")
    a(f"s_add_u32 s{sWM0}, s{sWM0}, {K1_XB}")
    a("s_waitcnt lgkmcnt(0)")
    srd(a, SX, 8, 9, 2048 * 1280)
    srd(a, SW, 10, 11, 640 * 3840)

    def dma_list(buf_s, inloop=False):
        g = []
        if "k1nodma" in OPT and inloop: return [["s_nop 0"]] * 6
        for i in range(4):
            g.append([f"s_add_u32 m0, s{buf_s}, s{sXM0}" if i == 0 else f"s_add_u32 m0, m0, 1024",
                      f"s_add_u32 s{sTMP3}, s{sXS}, {i*8*1280}",
                      f"buffer_load_dwordx4 v{vXO + (i & 1)}, s[{SX}:{SX+3}], s{sTMP3} offen lds"])
        for i in range(2):
            g.append([f"s_add_u32 m0, s{buf_s}, s{sWM0}" if i == 0 else f"s_add_u32 m0, m0, 1024",
                      f"s_add_u32 s{sTMP3}, s{sWS1}, {i*4*3840}",
                      f"buffer_load_dwordx4 v{vWO}, s[{SW}:{SW+3}], s{sTMP3} offen lds"])
        g[-1] = g[-1] + [f"s_add_u32 s{sXS}, s{sXS}, 128", f"s_add_u32 s{sWS1}, s{sWS1}, {64*3840}"]
        return g
    a(f"s_mov_b32 s{sXS}, 0")
    a(f"s_mov_b32 s{sWS1}, 0")
    a(f"s_mov_b32 s{sWRB}, 0")
    for g in dma_list(sWRB):
        for x in g: a(x)
    srd(a, SWS, 4, 5, WS_USED)
    a(f"v_and_b32 v{vT}, 31, v{vLANE}")
    a(f"v_lshrrev_b32 v{vT+1}, 5, v{vLANE}")
    a(f"v_bfe_u32 v{vT+2}, v{vLANE}, 1, 3")
    a(f"v_xor_b32 v{vT+2}, v{vT+2}, v{vT+1}")
    a(f"v_lshlrev_b32 v{vT+2}, 4, v{vT+2}")
    a(f"v_lshl_add_u32 v{vXR}, v{vT}, 7, v{vT+2}")
    a(f"s_lshl_b32 s{sTMP}, s{sWM}, 13")
    a(f"v_add_u32 v{vXR}, s{sTMP}, v{vXR}")
    for kk in range(1, 4):
        a(f"v_xor_b32 v{vXR+kk}, {kk << 5}, v{vXR}")
    a(f"v_bfe_u32 v{vT+2}, v{vLANE}, 2, 2")
    a(f"v_lshl_add_u32 v{vT+3}, v{vT+1}, 3, v{vT+2}")
    a(f"v_lshlrev_b32 v{vT+3}, 8, v{vT+3}")
    a(f"v_and_b32 v{vT+4}, 3, v{vLANE}")
    a(f"v_lshl_add_u32 v{vT+3}, v{vT+4}, 3, v{vT+3}")
    a(f"v_bfe_u32 v{vT+4}, v{vLANE}, 4, 1")
    a(f"v_lshl_add_u32 v{vT+3}, v{vT+4}, 5, v{vT+3}")
    a(f"v_add_u32 v{vT+3}, {K1_XB}, v{vT+3}")
    a(f"s_lshl_b32 s{sTMP}, s{sWN}, 1")
    for bl in range(2):
        a(f"s_add_u32 s{sTMP2}, s{sTMP}, {bl}")
        a(f"v_xor_b32 v{vT+5}, s{sTMP2}, v{vT+2}")
        a(f"v_lshl_add_u32 v{vWR+bl}, v{vT+5}, 6, v{vT+3}")
    PF = "k1pf" in OPT
    if PF:
        a(f"s_lshr_b32 s{sTMP}, s2, 3")
        a(f"s_cmp_lt_u32 s{sW}, 6")
        a("s_cbranch_scc0 K1_PFX")
        a(f"s_mul_i32 s{sTMP}, s{sTMP}, 6")
        a(f"s_add_u32 s{sTMP}, s{sTMP}, s{sW}")
        a(f"s_mul_i32 s{sTMP}, s{sTMP}, 11")
        a(f"v_min_u32 v{vT}, 10, v{vLANE}")
        a(f"v_add_u32 v{vT}, s{sTMP}, v{vT}")
        a(f"v_min_u32 v{vT}, 1919, v{vT}")
        a(f"v_mul_u32_u24 v{vT+1}, 34953, v{vT}")
        a(f"v_lshrrev_b32 v{vT+1}, 20, v{vT+1}")
        a(f"v_mul_u32_u24 v{vT+2}, 30, v{vT+1}")
        a(f"v_sub_u32 v{vT+2}, v{vT}, v{vT+2}")
        a(f"v_mul_u32_u24 v{vT+1}, 3840, v{vT+1}")
        a(f"v_lshl_add_u32 v{vPF}, v{vT+2}, 7, v{vT+1}")
        for i in range(4): a(f"s_mov_b32 s{64+i}, s{SW+i}")
        a(f"s_mov_b32 s68, {64*3840}")
        a("s_branch K1_PFD")
        a.lab("K1_PFX")
        a(f"s_lshl_b32 s{sTMP}, s{sTMP}, 1")
        a(f"s_add_u32 s{sTMP}, s{sTMP}, s{sW}")
        a(f"s_sub_u32 s{sTMP}, s{sTMP}, 6")
        a(f"s_mul_i32 s{sTMP}, s{sTMP}, 9")
        a(f"v_min_u32 v{vT}, 8, v{vLANE}")
        a(f"v_add_u32 v{vT}, s{sTMP}, v{vT}")
        a(f"v_min_u32 v{vT}, 511, v{vT}")
        a(f"s_and_b32 s{sTMP}, s2, 3")
        a(f"s_lshl_b32 s{sTMP}, s{sTMP}, 9")
        a(f"v_add_u32 v{vT}, s{sTMP}, v{vT}")
        a(f"v_mul_u32_u24 v{vPF}, 1280, v{vT}")
        for i in range(4): a(f"s_mov_b32 s{64+i}, s{SX+i}")
        a(f"s_mov_b32 s68, 128")
        a.lab("K1_PFD")
        a(f"s_mul_i32 s69, s68, {PF0}")
    def pf_group():
        return [f"buffer_load_dword v{vPF+1}, v{vPF}, s[64:67], s69 offen", f"s_add_u32 s69, s69, s68"]
    a(f"s_mul_i32 s{sSEC}, s{sNT}, 52")
    a(f"s_lshr_b32 s{sSEC}, s{sSEC}, 8")
    a(f"s_mul_i32 s{sTMP}, s{sSEC}, 5")
    a(f"s_sub_u32 s{sFB}, s{sNT}, s{sTMP}")
    a(f"s_lshl_b32 s{sFB}, s{sFB}, 7")
    a(f"s_lshl_b32 s{sTMP}, s{sWN}, 6")
    a(f"s_add_u32 s{sFB}, s{sFB}, s{sTMP}")
    a(f"s_cmp_eq_u32 s{sSEC}, 2")
    a("s_cbranch_scc1 K1_VPREP")
    a(f"s_cmp_eq_u32 s{sSEC}, 0")
    a(f"s_cselect_b32 s{sSC}, {f2u(QSCALE):#x}, 1.0")
    a(f"s_mov_b32 s{sSC+1}, s{sSC}")
    a(f"s_mov_b32 s{sTMP}, {KV_HEAD}")
    a(f"s_cselect_b32 s{sHS}, {Q_HEAD}, s{sTMP}")
    a(f"s_mov_b32 s{sTMP}, {KV_CH}")
    a(f"s_cselect_b32 s{sTMP2}, {Q_CH}, s{sTMP}")
    a(f"s_mul_i32 s{sEO}, s{sMT}, s{sTMP2}")
    a(f"s_mul_i32 s{sTMP2}, s{sBR}, {QB_OFF - QA_OFF}")
    a(f"s_add_u32 s{sTMP2}, s{sTMP2}, {QA_OFF}")
    a(f"s_mul_i32 s{sTMP3}, s{sBR}, {KVB_OFF - KVA_OFF}")
    a(f"s_cmp_eq_u32 s{sSEC}, 0")
    a(f"s_cselect_b32 s{sTMP2}, s{sTMP2}, s{sTMP3}")
    a(f"s_add_u32 s{sEO}, s{sEO}, s{sTMP2}")
    a(f"s_mul_i32 s{sTMP}, s{sWM}, 2560")
    a(f"s_add_u32 s{sEO}, s{sEO}, s{sTMP}")
    a(f"s_lshr_b32 s{sTMP}, s{sFB}, 2")
    a(f"v_lshrrev_b32 v{vT+6}, 5, v{vLANE}")
    a(f"v_add_u32 v{vT+6}, s{sTMP}, v{vT+6}")
    a(f"v_and_b32 v{vT+7}, 31, v{vLANE}")
    a(f"v_lshlrev_b32 v{vT+7}, 3, v{vT+7}")
    a(f"v_mov_b32 v{vT+8}, 0x43120")
    for e in range(8):
        a(f"v_add_u32 v{vT}, {2*e}, v{vT+6}")
        a(f"v_mul_u32_u24 v{vT+1}, 52429, v{vT}")
        a(f"v_lshrrev_b32 v{vT+1}, 18, v{vT+1}")
        a(f"v_mul_u32_u24 v{vT+2}, 5, v{vT+1}")
        a(f"v_sub_u32 v{vT+2}, v{vT}, v{vT+2}")
        a(f"v_lshlrev_b32 v{vT+2}, 2, v{vT+2}")
        a(f"v_bfe_u32 v{vT+2}, v{vT+8}, v{vT+2}, 4")
        a(f"v_lshl_add_u32 v{vT+2}, v{vT+2}, 8, v{vT+7}")
        a(f"v_mad_u32_u24 v{vEO+e}, v{vT+1}, s{sHS}, v{vT+2}")
    a("s_branch K1_T")
    a.lab("K1_VPREP")
    a(f"s_mul_i32 s{sEO}, s{sMT}, {KV_CH}")
    a(f"s_mul_i32 s{sTMP}, s{sBR}, {KVB_OFF - KVA_OFF}")
    a(f"s_add_u32 s{sEO}, s{sEO}, s{sTMP}")
    a(f"s_mul_i32 s{sTMP}, s{sWM}, {4*640}")
    a(f"s_add_u32 s{sEO}, s{sEO}, s{sTMP}")
    a(f"s_add_u32 s{sEO}, s{sEO}, 10240")
    a(f"s_mov_b32 s{sHS}, {KV_HEAD}")
    for bl in range(2):
        a(f"s_add_u32 s{sTMP}, s{sFB}, {32*bl}")
        a(f"v_and_b32 v{vT}, 31, v{vLANE}")
        a(f"v_add_u32 v{vT}, s{sTMP}, v{vT}")
        a(f"v_mul_u32_u24 v{vT+1}, 52429, v{vT}")
        a(f"v_lshrrev_b32 v{vT+1}, 20, v{vT+1}")
        a(f"v_mul_u32_u24 v{vT+2}, 20, v{vT+1}")
        a(f"v_sub_u32 v{vT+2}, v{vT}, v{vT+2}")
        a(f"v_lshrrev_b32 v{vT+3}, 5, v{vLANE}")
        a(f"v_mul_u32_u24 v{vT+3}, 320, v{vT+3}")
        a(f"v_lshl_add_u32 v{vT+3}, v{vT+2}, 4, v{vT+3}")
        a(f"v_mad_u32_u24 v{vEO+bl}, v{vT+1}, s{sHS}, v{vT+3}")
    a("s_branch K1_C")

    def variant(tag):
        a.lab(f"K1_{tag}")
        def reads(st, ph):
            out = []
            if "k1noread" in OPT: return ["s_nop 0"] * 12
            for q in range(2):
                kk = 2 * ph + q
                for j in range(2):
                    r = vXF + st * 16 + (q * 2 + j) * 4
                    out.append(f"ds_read_b128 v[{r}:{r+3}], v{vXA+kk} offset:{j*4096}")
                    r = vWF + st * 16 + (q * 2 + j) * 4
                    out.append(f"ds_read_b64_tr_b16 v[{r}:{r+1}], v{vWA+j} offset:{kk*4096}")
                    out.append(f"ds_read_b64_tr_b16 v[{r+2}:{r+3}], v{vWA+j} offset:{kk*4096+1024}")
            return out
        def mfmas(st, zero=False):
            out = []
            if "k1nomfma" in OPT: return ["s_nop 0"] * 8
            for q in range(2):
                for bl in range(2):
                    for mb in range(2):
                        acc = vACC + (bl * 2 + mb) * 16
                        xf = f"v[{vXF+st*16+(q*2+mb)*4}:{vXF+st*16+(q*2+mb)*4+3}]"
                        wf = f"v[{vWF+st*16+(q*2+bl)*4}:{vWF+st*16+(q*2+bl)*4+3}]"
                        c = "0" if (zero and q == 0) else f"v[{acc}:{acc+15}]"
                        if tag == "T":
                            out.append(f"v_mfma_f32_32x32x16_bf16 v[{acc}:{acc+15}], {wf}, {xf}, {c}")
                        else:
                            out.append(f"v_mfma_f32_32x32x16_bf16 v[{acc}:{acc+15}], {xf}, {wf}, {c}")
            return out
        def setaddr(sreg):
            return [f"v_add_u32 v{vXA+i}, s{sreg}, v{vXR+i}" for i in range(4)] + [f"v_add_u32 v{vWA+i}, s{sreg}, v{vWR+i}" for i in range(2)]
        def weave(mf, extras, upto=None):
            n = upto or len(mf); m = len(extras)
            k = 0
            for i, x in enumerate(mf):
                a(x)
                tgt = min(m, ((i + 1) * m + n - 1) // n)
                while k < tgt:
                    for y in extras[k]: a(y)
                    k += 1
        def mix(rd, dm, tail):
            ex = []
            nd = len(dm)
            for i, r in enumerate(rd):
                ex.append([r])
                if nd == 3 and i % 4 == 3: ex.append(dm[i // 4])
                if nd == 6 and i % 2 == 1: ex.append(dm[i // 2])
            return ex + tail
        def phaseA(zero, dm):
            ring = [[f"s_add_u32 s{sRD}, s{sRD}, {K1_BUF}", f"s_cmp_eq_u32 s{sRD}, {K1_LDS}", f"s_cselect_b32 s{sRD}, 0, s{sRD}"]]
            mf = mfmas(0, zero)
            weave(mf[:7], mix(reads(1, 1), dm, ring), upto=6)
            return mf[7:]
        a(f"s_mov_b32 s{sWRB}, {K1_BUF}")
        for g in dma_list(sWRB):
            for x in g: a(x)
        a(f"s_mov_b32 s{sWRB}, {2*K1_BUF}")
        NP0 = (5 - PF0) if PF else 0
        for i in range(NP0):
            for x in pf_group(): a(x)
        NP = 1 if PF else 0
        stamp(a, 2)
        a(f"s_waitcnt vmcnt({6+NP0})")
        a("s_barrier")
        stamp(a, 3)
        a(f"s_mov_b32 s{sRD}, 0")
        for x in setaddr(sRD): a(x)
        for r in reads(0, 0): a(r)
        a(f"s_mov_b32 s{sI}, 0")
        adv = [f"s_add_u32 s{sWRB}, s{sWRB}, {K1_BUF}", f"s_cmp_eq_u32 s{sWRB}, {K1_LDS}", f"s_cselect_b32 s{sWRB}, 0, s{sWRB}"]
        a("s_waitcnt lgkmcnt(0)")
        last = phaseA(True, dma_list(sWRB, True))
        for x in last: a(x)
        a(f"s_waitcnt vmcnt({6+NP0}) lgkmcnt(0)")
        a(f"s_branch K1_{tag}_WB")
        a.lab(f"K1_{tag}_LOOP")
        a("s_waitcnt lgkmcnt(0)")
        a(f"s_cmp_ge_u32 s{sI}, 8")
        a(f"s_cbranch_scc1 K1_{tag}_AND")
        last = phaseA(False, [] if "k1allc" in OPT else dma_list(sWRB, True)[3:])
        for x in last: a(x)
        a.lab(f"K1_{tag}_B")
        a(f"s_waitcnt vmcnt({6+NP}) lgkmcnt(0)")
        a.lab(f"K1_{tag}_WB")
        if "k1stamp" in OPT:
            a("s_memtime s[78:79]")
        if "k1nobar" not in OPT: a("s_barrier")
        if "k1stamp" in OPT:
            a("s_memtime s[74:75]")
            a("s_waitcnt lgkmcnt(0)")
            a(f"s_mov_b32 s79, m0")
            a(f"s_mov_b32 m0, s{sI}")
            a("s_nop 0")
            a(f"v_writelane_b32 v179, s74, m0")
            a(f"s_add_u32 m0, m0, 16")
            a("s_nop 0")
            a(f"v_writelane_b32 v179, s78, m0")
            a(f"s_mov_b32 m0, s79")
        mf = mfmas(1)
        a(mf[0])
        for x in setaddr(sRD): a(x)
        for x in adv: a(x)
        rd = reads(0, 0)
        a(f"s_cmp_ge_u32 s{sI}, 7")
        a(f"s_cbranch_scc1 K1_{tag}_ND")
        cnt = [[f"s_add_u32 s{sI}, s{sI}, 1"]]
        weave(mf[1:], mix(rd, dma_list(sWRB, True)[:3], ([pf_group()] if PF else []) + cnt), upto=6)
        a(f"s_branch K1_{tag}_LOOP")
        a.lab(f"K1_{tag}_ND")
        weave(mf[1:], mix(rd, [], cnt), upto=6)
        a(f"s_cmp_lt_u32 s{sI}, 10")
        a(f"s_cbranch_scc1 K1_{tag}_LOOP")
        stamp(a, 4)
        a("s_nop 7")
        a("s_nop 3")
        n = 0
        for bl in range(2):
            for mb in range(2):
                acc = vACC + (bl * 2 + mb) * 16
                if tag == "T":
                    for i in range(4):
                        q = acc + 4 * i
                        t = vXF + (n % 16) * 2; n += 1
                        a(f"v_pk_mul_f32 v[{q}:{q+1}], v[{q}:{q+1}], s[{sSC}:{sSC+1}]")
                        a(f"v_pk_mul_f32 v[{q+2}:{q+3}], v[{q+2}:{q+3}], s[{sSC}:{sSC+1}]")
                        a(f"v_cvt_pk_bf16_f32 v{t}, v{q}, v{q+1}")
                        a(f"v_cvt_pk_bf16_f32 v{t+1}, v{q+2}, v{q+3}")
                        a(f"buffer_store_dwordx2 v[{t}:{t+1}], v{vEO + 4*bl + i}, s[{SWS}:{SWS+3}], s{sEO} offen offset:{mb*1280}{STORE_FLAGS}")
                else:
                    for g2 in range(2):
                        q = acc + 8 * g2
                        t = vXF + (n % 8) * 4; n += 1
                        for i in range(4):
                            a(f"v_cvt_pk_bf16_f32 v{t+i}, v{q+2*i}, v{q+2*i+1}")
                        a(f"buffer_store_dwordx4 v[{t}:{t+3}], v{vEO+bl}, s[{SWS}:{SWS+3}], s{sEO} offen offset:{(2*mb+g2)*640}{STORE_FLAGS}")
        a("s_branch K1_FIN")
        a.lab(f"K1_{tag}_AND")
        last = phaseA(False, [])
        for x in last: a(x)
        a("s_waitcnt vmcnt(0) lgkmcnt(0)")
        a(f"s_branch K1_{tag}_WB")
    variant("T")
    variant("C")

    GPF0 = optval("gpf0", 3)
    a.lab("K1_GATE")
    a("s_waitcnt lgkmcnt(0)")
    srd(a, SX, 8, 9, 2048 * 1280)
    srd(a, SG, 6, 7, 1280)
    srd(a, SWS, 4, 5, WS_USED)
    TS = optval("tlbin", 0)
    if TS:
        srd(a, SW, 10, 11, 640 * 3840)
        sh = {4: 12, 16: 14, 64: 16}[TS]
        a(f"s_lshr_b32 s{sTMP}, s2, 3")
        a(f"s_and_b32 s{sTMP}, s{sTMP}, 1")
        a(f"s_lshl_b32 s{sTMP}, s{sTMP}, 3")
        a(f"s_add_u32 s{sTMP}, s{sTMP}, s{sW}")
        a(f"s_lshl_b32 s{sTMP}, s{sTMP}, 6")
        a(f"v_add_u32 v{vT+1}, s{sTMP}, v{vLANE}")
        a(f"v_lshlrev_b32 v{vT+1}, {sh}, v{vT+1}")
        n = max(1, -(-2621440 // ((1024) << sh)))
        for i in range(n):
            a(f"s_mov_b32 s{sTMP2}, {i * (1024 << sh)}")
            a(f"buffer_load_dword v{vPF}, v{vT+1}, s[{SW}:{SW+3}], s{sTMP2} offen")
            a(f"buffer_load_dword v{vPF+1}, v{vT+1}, s[{SX}:{SX+3}], s{sTMP2} offen")
    if "gpf" in OPT:
        srd(a, SW, 10, 11, 640 * 3840)
        a(f"s_lshr_b32 s{sTMP}, s2, 3")
        a(f"s_and_b32 s{sTMP}, s{sTMP}, 1")
        a(f"v_cmp_le_u32 vcc, 30, v{vLANE}")
        a(f"v_mov_b32 v{vT+1}, 0")
        a(f"v_mov_b32 v{vT+2}, {3840 - 30*128}")
        a(f"v_cndmask_b32 v{vT+1}, v{vT+1}, v{vT+2}, vcc")
        a(f"v_min_u32 v{vT+2}, 59, v{vLANE}")
        a(f"v_lshl_add_u32 v{vT+1}, v{vT+2}, 7, v{vT+1}")
        a(f"s_lshl_b32 s{sTMP2}, s{sTMP}, 5")
        a(f"s_lshl_b32 s{sTMP3}, s{sW}, 2")
        a(f"s_add_u32 s{sTMP2}, s{sTMP2}, s{sTMP3}")
        a(f"s_add_u32 s{sTMP2}, s{sTMP2}, {64*GPF0}")
        a(f"s_mul_i32 s{sTMP2}, s{sTMP2}, 3840")
        a(f"s_and_b32 s{sTMP3}, s2, 3")
        a(f"s_lshl_b32 s{sTMP3}, s{sTMP3}, 9")
        a(f"s_lshl_b32 s{sTMP}, s{sTMP}, 8")
        a(f"s_add_u32 s{sTMP3}, s{sTMP3}, s{sTMP}")
        a(f"s_and_b32 s{sTMP}, s{sW}, 3")
        a(f"s_lshl_b32 s{sTMP}, s{sTMP}, 6")
        a(f"s_add_u32 s{sTMP3}, s{sTMP3}, s{sTMP}")
        a(f"v_add_u32 v{vT+2}, s{sTMP3}, v{vLANE}")
        a(f"v_mul_u32_u24 v{vT+2}, 1280, v{vT+2}")
        a(f"s_mov_b32 s{sTMP3}, {128*GPF0}")
        for st in range(GPF0, 10):
            a(f"buffer_load_dword v{vPF}, v{vT+1}, s[{SW}:{SW+3}], s{sTMP2} offen")
            a(f"s_add_u32 s{sTMP}, s{sTMP2}, {2*3840}")
            a(f"buffer_load_dword v{vPF+1}, v{vT+1}, s[{SW}:{SW+3}], s{sTMP} offen")
            a(f"buffer_load_dword v{vPF+2}, v{vT+2}, s[{SX}:{SX+3}], s{sTMP3} offen")
            a(f"s_add_u32 s{sTMP2}, s{sTMP2}, {64*3840}")
            a(f"s_add_u32 s{sTMP3}, s{sTMP3}, 128")
    if "notlb" not in OPT:
        a(f"v_lshlrev_b32 v{vT+1}, 16, v{vLANE}")
        a(f"s_lshl_b32 s{sTMP}, s{sW}, 22")
        a(f"s_cmp_lt_u32 s{sW}, 6")
        a(f"s_cbranch_scc0 K1_NOTLB")
        a(f"buffer_load_dword v{vPF}, v{vT+1}, s[{SWS}:{SWS+3}], s{sTMP} offen")
        a.lab("K1_NOTLB")
    a(f"s_cmp_lg_u32 s2, 240")
    a("s_cbranch_scc1 K1_NOZ")
    a(f"s_cmp_ge_u32 s{sW}, 4")
    a("s_cbranch_scc1 K1_NOZ")
    a(f"v_lshlrev_b32 v{vT+1}, 7, v{vLANE}")
    a(f"v_mov_b32 v{vT+2}, 0")
    a(f"s_lshl_b32 s{sTMP}, s{sW}, 13")
    a(f"s_add_u32 s{sTMP}, s{sTMP}, {FL_OFF}")
    a(f"buffer_store_dword v{vT+2}, v{vT+1}, s[{SWS}:{SWS+3}], s{sTMP} offen")
    a.lab("K1_NOZ")
    a(f"s_sub_u32 s{sTMP}, s2, 240")
    a(f"s_lshl_b32 s{sTMP}, s{sTMP}, 3")
    a(f"s_add_u32 s{sTMP}, s{sTMP}, s{sW}")
    a(f"s_cmp_ge_u32 s{sTMP}, 120")
    a("s_cbranch_scc1 K1_GATE2")
    a(f"s_mul_i32 s{sTMP2}, s{sTMP}, 171")
    a(f"s_lshr_b32 s{sTMP2}, s{sTMP2}, 9")
    a(f"s_mul_i32 s{sTMP3}, s{sTMP2}, 3")
    a(f"s_sub_u32 s{sTMP3}, s{sTMP}, s{sTMP3}")
    a("s_load_dwordx2 s[58:59], s[0:1], 16")
    a("s_load_dwordx2 s[70:71], s[0:1], 40")
    a(f"s_mul_i32 s{sD}, s{sTMP3}, 448")
    a(f"v_lshrrev_b32 v{vT+1}, 5, v{vLANE}")
    a(f"v_mul_u32_u24 v{vT+1}, 1280, v{vT+1}")
    a(f"v_and_b32 v{vT+2}, 31, v{vLANE}")
    a(f"v_lshl_add_u32 v{vT+1}, v{vT+2}, 4, v{vT+1}")
    a(f"v_add_u32 v{vT+1}, s{sD}, v{vT+1}")
    a(f"s_lshl_b32 s{sEO}, s{sW}, 14")
    a("s_waitcnt lgkmcnt(0)")
    srd(a, 60, 58, 59, 640 * 1280)
    srd(a, 64, 70, 71, 640 * 1280)
    for g in range(4):
        a(f"s_lshl_b32 s72, s{sTMP2}, 2")
        a(f"s_add_u32 s72, s72, {g}")
        a(f"s_mul_i32 s73, s72, 205")
        a(f"s_lshr_b32 s73, s73, 10")
        a(f"s_mul_i32 s74, s73, 5")
        a(f"s_sub_u32 s74, s72, s74")
        a(f"s_mul_i32 s73, s73, 20")
        for quad in range(2):
            a(f"s_and_b32 s76, s74, 1")
            a(f"s_lshl_b32 s76, s76, 3")
            a(f"s_add_u32 s76, s76, {4*quad}")
            a(f"s_lshr_b32 s77, s74, 1")
            a(f"s_cmp_eq_u32 s74, 4")
            a(f"s_cselect_b32 s76, 16, s76")
            a(f"s_cselect_b32 s77, {quad}, s77")
            a(f"s_add_u32 s76, s76, s73")
            a(f"s_mul_i32 s76, s76, 1280")
            a(f"s_cmp_eq_u32 s77, 0")
            a(f"s_cbranch_scc0 K1_WB{g}{quad}")
            for r2 in range(2):
                a(f"s_add_u32 m0, s{sEO}, {(g*4 + quad*2 + r2)*1024}")
                a(f"s_add_u32 s{sD}, s76, {r2*2*1280}")
                a(f"buffer_load_dwordx4 v{vT+1}, s[60:63], s{sD} offen lds")
            a(f"s_branch K1_WD{g}{quad}")
            a.lab(f"K1_WB{g}{quad}")
            for r2 in range(2):
                a(f"s_add_u32 m0, s{sEO}, {(g*4 + quad*2 + r2)*1024}")
                a(f"s_add_u32 s{sD}, s76, {r2*2*1280}")
                a(f"buffer_load_dwordx4 v{vT+1}, s[64:67], s{sD} offen lds")
            a.lab(f"K1_WD{g}{quad}")
    a(f"v_lshrrev_b32 v{vT+2}, 4, v{vLANE}")
    a(f"v_bfe_u32 v{vT+3}, v{vLANE}, 2, 2")
    a(f"v_lshl_add_u32 v{vT+2}, v{vT+2}, 3, v{vT+3}")
    a(f"v_lshlrev_b32 v{vT+2}, 9, v{vT+2}")
    a(f"v_and_b32 v{vT+3}, 3, v{vLANE}")
    a(f"v_lshl_add_u32 v{vT+2}, v{vT+3}, 3, v{vT+2}")
    a(f"v_add_u32 v{vT+2}, s{sEO}, v{vT+2}")
    a(f"v_lshlrev_b32 v{vT+3}, 4, v{vLANE}")
    a("s_waitcnt vmcnt(0)")
    for j in range(14):
        a(f"ds_read_b64_tr_b16 v[{vXF+4*j}:{vXF+4*j+1}], v{vT+2} offset:{j*32}")
        a(f"ds_read_b64_tr_b16 v[{vXF+4*j+2}:{vXF+4*j+3}], v{vT+2} offset:{j*32+2048}")
    a(f"s_mul_i32 s{sTMP3}, s{sTMP3}, 14")
    a("s_waitcnt lgkmcnt(0)")
    for j in range(14):
        a(f"s_add_u32 s{sTMP4}, s{sTMP3}, {j}")
        a(f"s_cmp_ge_u32 s{sTMP4}, 40")
        a("s_cbranch_scc1 K1_GATE2")
        a(f"s_mul_i32 s{sD}, s{sTMP4}, 52")
        a(f"s_lshr_b32 s{sD}, s{sD}, 8")
        a(f"s_mul_i32 s{sEO}, s{sD}, 5")
        a(f"s_sub_u32 s{sEO}, s{sTMP4}, s{sEO}")
        a(f"s_mul_i32 s{sD}, s{sD}, 40")
        a(f"s_add_u32 s{sD}, s{sD}, s{sTMP2}")
        a(f"s_mul_i32 s{sD}, s{sD}, 5")
        a(f"s_add_u32 s{sD}, s{sD}, s{sEO}")
        a(f"s_lshl_b32 s{sD}, s{sD}, 10")
        a(f"s_add_u32 s{sD}, s{sD}, {WT_OFF}")
        a(f"buffer_store_dwordx4 v[{vXF+4*j}:{vXF+4*j+3}], v{vT+3}, s[{SWS}:{SWS+3}], s{sD} offen")
    a.lab("K1_GATE2")
    a("s_nop 1")
    a(f"s_sub_u32 s{sTMP}, s2, 240")
    a(f"s_lshl_b32 s{sTMP}, s{sTMP}, 7")
    a(f"s_lshl_b32 s{sTMP2}, s{sW}, 4")
    a(f"s_add_u32 s{sI}, s{sTMP}, s{sTMP2}")
    a(f"v_lshlrev_b32 v{vT}, 2, v{vLANE}")
    for j in range(5):
        a(f"buffer_load_dword v{vT+7+j}, v{vT}, s[{SG}:{SG+3}], 0 offen offset:{j*256}")
    a(f"s_mul_i32 s{sTMP4}, s{sI}, 1280")
    for r in range(16):
        for j in range(5):
            a(f"buffer_load_dword v{vXF+r*5+j}, v{vT}, s[{SX}:{SX+3}], s{sTMP4} offen offset:{j*256}")
        a(f"s_add_u32 s{sTMP4}, s{sTMP4}, 1280")
        if r == 9: a("s_waitcnt vmcnt(20)")
    a("s_waitcnt vmcnt(0)")
    gw = vT + 7
    for j in range(5):
        a(f"v_lshlrev_b32 v{vT+2+j}, 16, v{gw+j}")
        a(f"v_and_b32 v{gw+j}, 0xffff0000, v{gw+j}")
    vG = 112
    for r in range(16):
        a(f"v_mov_b32 v{vG+r}, 0")
        for j in range(5):
            x = vXF + r * 5 + j
            a(f"v_lshlrev_b32 v{vT}, 16, v{x}")
            a(f"v_and_b32 v{x}, 0xffff0000, v{x}")
            a(f"v_fmac_f32 v{vG+r}, v{vT}, v{vT+2+j}")
            a(f"v_fmac_f32 v{vG+r}, v{x}, v{gw+j}")
    for rr in (8, 4, 2, 1):
        a("s_nop 1")
        for r in range(16):
            a(f"v_add_f32_dpp v{vG+r}, v{vG+r}, v{vG+r} row_ror:{rr} row_mask:0xf bank_mask:0xf")
    for r in range(16):
        a(f"v_mov_b32 v{vG+16+r}, v{vG+r}")
    a("s_nop 1")
    for r in range(16):
        a(f"v_permlane32_swap_b32 v{vG+r}, v{vG+16+r}")
    a("s_nop 1")
    for r in range(16):
        a(f"v_add_f32 v{vG+r}, v{vG+r}, v{vG+16+r}")
        a(f"v_mov_b32 v{vG+16+r}, v{vG+r}")
    a("s_nop 1")
    for r in range(16):
        a(f"v_permlane16_swap_b32 v{vG+r}, v{vG+16+r}")
    a("s_nop 1")
    for r in range(16):
        a(f"v_add_f32 v{vG+r}, v{vG+r}, v{vG+16+r}")
    a(f"v_and_b32 v{vT}, 15, v{vLANE}")
    a(f"v_mov_b32 v{vT+1}, v{vG}")
    for r in range(1, 16):
        a(f"v_cmp_eq_u32 vcc, {r}, v{vT}")
        a("s_nop 1")
        a(f"v_cndmask_b32 v{vT+1}, v{vT+1}, v{vG+r}, vcc")
    a(f"v_mul_f32 v{vT+1}, {f2u(-1.4426950408889634):#x}, v{vT+1}")
    a(f"v_exp_f32 v{vT+1}, v{vT+1}")
    a("s_nop 0")
    a(f"v_add_f32 v{vT+1}, 1.0, v{vT+1}")
    a(f"v_rcp_f32 v{vT+1}, v{vT+1}")
    a(f"s_lshl_b32 s{sTMP}, s{sI}, 2")
    a(f"s_add_u32 s{sTMP}, s{sTMP}, {G_OFF}")
    a(f"v_lshlrev_b32 v{vT}, 2, v{vT}")
    a("s_mov_b64 exec, 0xffff")
    a(f"buffer_store_dword v{vT+1}, v{vT}, s[{SWS}:{SWS+3}], s{sTMP} offen")
    a("s_branch K1_END")
    a.lab("K1_FIN")
    if "k1stamp" in OPT:
        a(f"s_lshl_b32 s97, s2, 3")
        a(f"s_add_u32 s97, s97, s{sW}")
        a(f"s_lshl_b32 s97, s97, 7")
        a(f"s_add_u32 s97, s97, {PROF_OFF + 3 * 0x100000}")
        a(f"v_lshlrev_b32 v{vT}, 2, v{vLANE}")
        a("s_mov_b64 exec, 0xffffffff")
        a(f"buffer_store_dword v179, v{vT}, s[{SWS}:{SWS+3}], s97 offen")
        a("s_mov_b64 exec, -1")
    stamp(a, 5)
    if PROF: a("s_waitcnt vmcnt(0)")
    stamp(a, 6)
    stamp_flush(a, 0, 7, SWS, sW, vT)
    a.lab("K1_END")
    a("s_endpgm")
    return name, NV

K2_LDS = 163840
NEGBIG = -1.0e30

def mask_table():
    vals = []
    for j in range(6):
        for l in range(64):
            c = l & 31; h = l >> 5
            for i in range(4):
                if j < 4:
                    r = j * 4 + i
                    row = (r & 3) + 8 * (r >> 2) + 4 * h
                    diff = c + 16 - row
                else:
                    r = (j - 4) * 4 + i
                    row = (r & 3) + 8 * (r >> 2) + 4 * h
                    diff = c - 16 - row
                ok = 0 <= diff <= 14 and diff % 2 == 0
                vals.append(0 if ok else f2u(NEGBIG))
    return vals

K2_PRIO_TILE = 5
def gen_k2(a):
    FUSE = "nofuse" not in OPT
    name = "k2_attn_kernel"
    kernel_head(a, name)
    SWS = 8
    sW = 12; sHEAD = 13; sQB = 14; sS0 = 15; sT0 = 16; sT1 = 17; sT2 = 18; sT3 = 19
    sC = 20; sPASS = 21; sVM = 22
    sLO = 24
    sGRP = 26; sPR = 27
    sDS = 28; sDG = 29
    sAV = 30
    sQA = 33; sGO = 35
    sDO = 44
    sWL = 49; sWS = 58; sWS0 = 59; sWC = 66; sFAIL = 67
    vLANE = 1; vL16 = 2; vK8 = 3; vVA = 4; vKe = 5; vKo = 6; vK4c = 7
    vT = 8
    vGATE = 16; vVc = 17
    vAKO = 18
    vPFA = 22; vQO = 23
    vQ16 = [24, 28]; vQ8 = [32, 34]
    vQA16 = 36; vQA8 = 40
    vKA = 44; vKB = 52; vV1 = 56; vV2 = 64; vP = 72
    S = [84, 100]; NEG = [116, 132]; O = [148, 164]
    vAK = 180; vAV = 192; vMX = 204; vMY = 220
    vOB = 236; vDUM = 244; vOSA = 245
    NV = 248
    ONES = 0x3f803f80
    vS0, vS1 = S

    a("s_cmp_ge_u32 s2, 256")
    a("s_cbranch_scc1 K2_END")
    stamp(a, 0)
    a("s_load_dwordx2 s[4:5], s[0:1], 72")
    if FUSE:
        a("s_load_dwordx2 s[60:61], s[0:1], 56")
    a(f"v_and_b32 v{vLANE}, 63, v0")
    a(f"v_lshrrev_b32 v{vT}, 6, v0")
    a(f"s_and_b32 s{sHEAD}, s2, 7")
    a(f"v_readfirstlane_b32 s{sW}, v{vT}")
    a(f"s_lshl_b32 s{sHEAD}, s{sHEAD}, 2")
    a(f"s_lshr_b32 s{sT0}, s2, 6")
    a(f"s_add_u32 s{sHEAD}, s{sHEAD}, s{sT0}")
    a(f"s_lshr_b32 s{sQB}, s2, 3")
    a(f"s_and_b32 s{sQB}, s{sQB}, 7")
    a(f"v_lshlrev_b32 v{vL16}, 4, v{vLANE}")
    a(f"v_and_b32 v{vT}, 31, v{vLANE}")
    a(f"v_lshlrev_b32 v{vK8}, 3, v{vT}")
    a(f"v_lshrrev_b32 v{vT+1}, 5, v{vLANE}")
    a(f"v_lshl_add_u32 v{vQO}, v{vT+1}, 8, v{vK8}")
    a(f"s_lshr_b32 s{sGRP}, s{sW}, 2")
    a(f"s_and_b32 s{sPR}, s{sW}, 3")
    a(f"s_mul_i32 s{sDS}, s{sHEAD}, {KV_HEAD}")
    a(f"s_add_u32 s{sDS}, s{sDS}, {KVB_OFF}")
    for j in range(5):
        a(f"s_add_u32 s{sT0}, s{sW}, {8*j}")
        a(f"s_lshl_b32 s{sDO+j}, s{sT0}, 10")
        a(f"s_cmp_ge_u32 s{sT0}, 20")
        a(f"s_cselect_b32 s{sT1}, {4*KV_CH - 20*1024}, 0")
        a(f"s_add_u32 s{sDO+j}, s{sDO+j}, s{sT1}")
    a(f"s_mul_i32 s{sQA}, s{sHEAD}, {Q_HEAD}")
    a(f"s_lshl_b32 s{sT1}, s{sQB}, 3")
    a(f"s_lshl_b32 s{sT2}, s{sPR}, 1")
    a(f"s_add_u32 s{sT1}, s{sT1}, s{sT2}")
    a(f"s_mul_i32 s{sT1}, s{sT1}, 1280")
    a(f"s_add_u32 s{sQA}, s{sQA}, s{sT1}")
    a(f"s_add_u32 s{sT0}, s{sQA}, {QB_OFF}")
    a(f"s_mov_b32 s{sDG}, 0")
    a("s_waitcnt lgkmcnt(0)")
    srd(a, SWS, 4, 5, WS_USED)
    def dma1(j):
        return [f"s_add_u32 m0, s{sDO+j}, s{sDG}",
                f"s_add_u32 s{sT3}, m0, s{sDS}",
                f"buffer_load_dwordx4 v{vL16}, s[{SWS}:{SWS+3}], s{sT3} offen lds"]
    def qloads(q16, q8, sreg, off):
        return [f"buffer_load_dwordx2 v[{q16}:{q16+1}], v{vQO}, s[{SWS}:{SWS+3}], s{sreg} offen offset:{off}",
                f"buffer_load_dwordx2 v[{q16+2}:{q16+3}], v{vQO}, s[{SWS}:{SWS+3}], s{sreg} offen offset:{off+512}",
                f"buffer_load_dwordx2 v[{q8}:{q8+1}], v{vK8}, s[{SWS}:{SWS+3}], s{sreg} offen offset:{off+1024}"]
    for j in range(5):
        for x in dma1(j): a(x)
    for sg in range(2):
        for x in qloads(vQ16[sg], vQ8[sg], sT0, sg * 1280): a(x)
    a(f"s_add_u32 s{sDG}, s{sDG}, {KV_CH}")
    stamp(a, 1)
    a(f"s_mov_b32 s{sVM}, 0x000fffff")
    a(f"s_mov_b32 s{sVM+1}, 0x000fffff")
    a(f"s_mov_b32 s{sLO}, -1")
    a(f"s_mov_b32 s{sLO+1}, 0")
    a(f"v_and_b32 v{vT}, 31, v{vLANE}")
    a(f"v_lshrrev_b32 v{vT+1}, 5, v{vLANE}")
    a(f"v_mul_u32_u24 v{vVA}, 20, v{vT+1}")
    a(f"v_add_u32 v{vVA}, v{vVA}, v{vT}")
    a(f"v_lshlrev_b32 v{vVA}, 4, v{vVA}")
    for sg in range(2):
        for i in range(0, 16, 2):
            a(f"v_mov_b64 v[{O[sg]+i}:{O[sg]+i+1}], 0")
    a(f"v_mov_b64 v[{vP+4}:{vP+5}], 0")
    a(f"v_mov_b64 v[{vP+6}:{vP+7}], 0")
    a(f"s_lshl_b32 s{sS0}, s{sQB}, 8")
    a(f"s_lshl_b32 s{sT0}, s{sPR}, 6")
    a(f"s_add_u32 s{sS0}, s{sS0}, s{sT0}")
    a(f"s_lshl_b32 s{sT0}, s{sGRP}, 5")
    a(f"s_add_u32 s{sS0}, s{sS0}, s{sT0}")
    a(f"s_mul_i32 s{sT0}, s{sGRP}, 1280")
    a(f"s_add_u32 s{sQA}, s{sQA}, s{sT0}")
    a(f"s_add_u32 s{sQA}, s{sQA}, {QA_OFF}")
    a(f"s_lshl_b32 s{sT0}, s{sHEAD}, 6")
    a(f"s_lshr_b32 s{sT1}, s{sS0}, 5")
    a(f"s_add_u32 s{sT0}, s{sT0}, s{sT1}")
    for k, dT in enumerate((-1, 0, 1)):
        a(f"s_add_i32 s{sT1}, s{sT0}, {dT}")
        a(f"s_ashr_i32 s{sT2}, s{sT1}, 3")
        a(f"s_mul_i32 s{sT2}, s{sT2}, {KV_CH}")
        a(f"s_and_b32 s{sT1}, s{sT1}, 7")
        a(f"s_mul_i32 s{sT1}, s{sT1}, 1280")
        a(f"s_add_u32 s{50+k}, s{sT1}, s{sT2}")
    a(f"s_add_u32 s50, s50, 128")
    a(f"s_sub_u32 s53, s51, 128")
    a(f"s_add_u32 s51, s51, 128")
    a(f"s_sub_u32 s52, s52, 128")
    a(f"s_mov_b32 s54, 0xffff")
    a(f"s_mov_b32 s55, 0xffff")
    a(f"v_add_u32 v{vAKO+1}, s53, v{vK8}")
    a(f"v_add_u32 v{vAKO+3}, s52, v{vK8}")
    a(f"s_mov_b64 exec, s[54:55]")
    a(f"v_add_u32 v{vAKO+1}, s50, v{vK8}")
    a(f"v_add_u32 v{vAKO+3}, s51, v{vK8}")
    a("s_mov_b64 exec, -1")
    a(f"v_sub_u32 v{vT+7}, v{vQO}, v{vK8}")
    a(f"v_add_u32 v{vAKO}, v{vAKO+1}, v{vT+7}")
    a(f"v_add_u32 v{vAKO+2}, v{vAKO+3}, v{vT+7}")
    a(f"s_lshl_b32 s{sT0}, s{sHEAD}, 7")
    a(f"s_lshr_b32 s{sT1}, s{sS0}, 4")
    a(f"s_add_u32 s{sT0}, s{sT0}, s{sT1}")
    for j in range(3):
        a(f"s_add_i32 s{sT1}, s{sT0}, {j-1}")
        a(f"s_max_i32 s{sT1}, s{sT1}, 0")
        a(f"s_lshr_b32 s{sT2}, s{sT1}, 4")
        a(f"s_mul_i32 s{sT2}, s{sT2}, {KV_CH}")
        a(f"s_and_b32 s{sT1}, s{sT1}, 15")
        a(f"s_mul_i32 s{sT1}, s{sT1}, 640")
        a(f"s_add_u32 s{sT1}, s{sT1}, s{sT2}")
        a(f"s_add_u32 s{sAV+j}, s{sT1}, 10240")
    a(f"s_lshl_b32 s{sGO}, s{sS0}, 2")
    a(f"s_add_u32 s{sGO}, s{sGO}, {G_OFF}")
    a(f"v_mov_b32 v{vT+2}, 0")
    a(f"v_mov_b32 v{vT+3}, {ONES:#x}")
    if "vones" in OPT:
        a(f"v_mov_b32 v{vT+2}, {ONES:#x}")
    else:
        a(f"v_and_b32 v{vT+4}, 27, v{vT}")
        a.l.pop()
        a(f"v_cmp_eq_u32 vcc, 20, v{vT}")
        a(f"v_cmp_eq_u32 s[38:39], 24, v{vT}")
        a("s_nop 1")
        a("s_or_b64 vcc, vcc, s[38:39]")
        a("s_nop 1")
        a(f"v_cndmask_b32 v{vT+2}, v{vT+2}, v{vT+3}, vcc")
    a(f"v_mov_b32 v{vT+3}, v{vT+2}")
    for i in range(0, 12, 2):
        a(f"v_mov_b64 v[{vAV+i}:{vAV+i+1}], v[{vT+2}:{vT+3}]")
    for i in range(0, 16, 2):
        a(f"v_mov_b64 v[{vV1+i}:{vV1+i+1}], v[{vT+2}:{vT+3}]")
    a(f"s_lshr_b32 s{sT0}, s{sS0}, 4")
    a(f"s_mul_i32 s{sT0}, s{sT0}, {40*1024}")
    a(f"s_mul_i32 s{sT1}, s{sHEAD}, {5*256}")
    a(f"s_add_u32 s{sT0}, s{sT0}, s{sT1}")
    a(f"v_bfe_u32 v{vT+2}, v{vLANE}, 4, 1")
    a(f"v_mul_u32_u24 v{vT+2}, {40*1024}, v{vT+2}")
    a(f"v_and_b32 v{vT+3}, 15, v{vLANE}")
    a(f"v_lshl_add_u32 v{vT+3}, v{vT+3}, 4, v{vT+2}")
    a(f"v_lshrrev_b32 v{vT+2}, 5, v{vLANE}")
    a(f"v_lshl_add_u32 v{vT+3}, v{vT+2}, 8, v{vT+3}")
    a(f"v_add_u32 v{vOSA}, s{sT0}, v{vT+3}")
    a(f"s_getpc_b64 s[56:57]")
    a.lab("K2_PC")
    a(f"s_add_u32 s56, s56, K2_TABLE-K2_PC")
    a(f"s_addc_u32 s57, s57, 0")
    if not FUSE:
        a("s_lshr_b32 s36, s2, 3")
        a("s_lshl_b32 s36, s36, 3")
        a(f"s_add_u32 s36, s36, s{sW}")
        a("s_mul_i32 s36, s36, 50")
        a(f"v_min_u32 v{vPFA}, 49, v{vLANE}")
        a(f"v_add_u32 v{vPFA}, s36, v{vPFA}")
        a(f"v_lshlrev_b32 v{vPFA}, 7, v{vPFA}")
        a(f"v_add_u32 v{vPFA}, {WT_OFF}, v{vPFA}")
    if FUSE:
        a(f"s_mov_b32 s64, s{sHEAD}")
        a(f"s_mov_b32 s65, s{sQB}")
        a(f"s_mul_i32 s{sWS0}, s65, {200*1024}")
        a(f"s_lshl_b32 s{sT0}, s{sW}, 10")
        a(f"s_add_u32 s{sWS0}, s{sWS0}, s{sT0}")
        a(f"s_add_u32 s{sWS0}, s{sWS0}, {WT_OFF}")
        a(f"s_mov_b32 s{sWS}, s{sWS0}")
        a(f"s_mov_b32 s{sWL}, 0")
        a(f"s_mov_b32 s{sWC}, 2")
    a(f"s_mov_b32 s{sPASS}, 0")
    a(f"s_mul_i32 s37, s{sGRP}, {4*KV_CH}")
    stamp(a, 2)
    a("s_waitcnt vmcnt(0)")
    a(f"s_mov_b64 exec, s[{sLO}:{sLO+1}]")
    a(f"s_not_b64 exec, exec")
    for sg in range(2):
        a(f"v_mov_b32 v{vQ8[sg]}, 0")
        a(f"v_mov_b32 v{vQ8[sg]+1}, 0")
    a("s_mov_b64 exec, -1")
    a("s_barrier")
    stamp(a, 3)
    def rdK16(dst, rel_chunk, tt):
        base = vKe if tt % 2 == 0 else vKo
        o0 = rel_chunk * 40 + (tt >> 1) * 5
        return f"ds_read2st64_b64 v[{dst}:{dst+3}], v{base} offset0:{o0} offset1:{o0+1}"
    def rdK4(dst, rel_chunk, tt):
        return f"ds_read_b64 v[{dst}:{dst+1}], v{vK4c} offset:{rel_chunk*KV_CH + tt*1280 + 1024}"
    def voff(g):
        return (g // 16) * KV_CH + (g % 16) * 640
    def setbases():
        a(f"v_add_u32 v{vKe}, s37, v{vQO}")
        a(f"v_add_u32 v{vKo}, 1280, v{vKe}")
        a(f"v_add_u32 v{vK4c}, s37, v{vK8}")
        a(f"v_add_u32 v{vVc}, s37, v{vVA}")
        a(f"v_add_u32 v{vVc}, 10240, v{vVc}")
    def qk(dst, ka, kb, sg, c):
        return [f"v_mfma_f32_32x32x16_bf16 v[{dst}:{dst+15}], v[{ka}:{ka+3}], v[{vQ16[sg]}:{vQ16[sg]+3}], {c}",
                f"v_mfma_f32_32x32x8_bf16 v[{dst}:{dst+15}], v[{kb}:{kb+1}], v[{vQ8[sg]}:{vQ8[sg]+1}], v[{dst}:{dst+15}]"]
    def rowmax(m, regs, first=None):
        if first is None:
            a(f"v_max3_f32 v{m}, v{regs[0]}, v{regs[1]}, v{regs[2]}")
            rest = regs[3:]
        else:
            rest = regs
        i = 0
        while i + 1 < len(rest):
            a(f"v_max3_f32 v{m}, v{m}, v{rest[i]}, v{rest[i+1]}")
            i += 2
        if i < len(rest):
            a(f"v_max_f32 v{m}, v{m}, v{rest[i]}")
    a.lab("K2_START")
    setbases()
    a(rdK16(vKA, 0, 0))
    a(rdK4(vKB, 0, 0))
    a(f"s_mov_b64 exec, s[{sVM}:{sVM+1}]")
    a(f"ds_read_b128 v[{vV1}:{vV1+3}], v{vVc}")
    a("s_mov_b64 exec, -1")
    a(f"s_cmp_lg_u32 s{sPASS}, 0")
    a("s_cbranch_scc1 K2_HAVEM")
    a("s_waitcnt lgkmcnt(0)")
    for sg in range(2):
        for x in qk(S[sg], vKA, vKB, sg, "0"): a(x)
    a("s_nop 9")
    for sg in range(2):
        m = vT + 2 * sg
        rowmax(m, [S[sg] + i for i in range(16)])
        a(f"v_mov_b32 v{m+1}, v{m}")
    a("s_nop 1")
    for sg in range(2):
        m = vT + 2 * sg
        a(f"v_permlane32_swap_b32 v{m}, v{m+1}")
    a("s_nop 1")
    for sg in range(2):
        m = vT + 2 * sg
        a(f"v_max_f32 v{m}, v{m}, v{m+1}")
        a(f"v_sub_f32 v{NEG[sg]}, 0, v{m}")
        a(f"v_sub_f32 v{NEG[sg]+1}, 0, v{m}")
        for i in range(2, 16, 2):
            a(f"v_mov_b64 v[{NEG[sg]+i}:{NEG[sg]+i+1}], v[{NEG[sg]}:{NEG[sg]+1}]")
    a.lab("K2_HAVEM")
    a("s_waitcnt lgkmcnt(0)")
    a("s_nop 1")
    for x in qk(S[0], vKA, vKB, 0, f"v[{NEG[0]}:{NEG[0]+15}]"): a(x)
    a(f"s_mov_b32 s{sC}, 0")
    a("s_nop 15")
    stamp(a, 4)
    a.lab("K2_LOOP")
    if "chunkstamp" in OPT:
        a("s_memtime s[78:79]")
        a("s_waitcnt lgkmcnt(0)")
        a(f"s_mov_b32 s79, m0")
        a(f"s_mov_b32 m0, s{sC}")
        a("s_nop 0")
        a(f"v_writelane_b32 v247, s78, m0")
        a(f"s_mov_b32 m0, s79")
    aloads = [
        qloads(vQA16, vQA8, sQA, 0),
        [f"buffer_load_dwordx2 v[{vAK}:{vAK+1}], v{vAKO}, s[{SWS}:{SWS+3}], 0 offen",
         f"buffer_load_dwordx2 v[{vAK+2}:{vAK+3}], v{vAKO}, s[{SWS}:{SWS+3}], 0 offen offset:512",
         f"buffer_load_dwordx2 v[{vAK+8}:{vAK+9}], v{vAKO+1}, s[{SWS}:{SWS+3}], 0 offen offset:1024"],
        [f"buffer_load_dwordx2 v[{vAK+4}:{vAK+5}], v{vAKO+2}, s[{SWS}:{SWS+3}], 0 offen",
         f"buffer_load_dwordx2 v[{vAK+6}:{vAK+7}], v{vAKO+2}, s[{SWS}:{SWS+3}], 0 offen offset:512",
         f"buffer_load_dwordx2 v[{vAK+10}:{vAK+11}], v{vAKO+3}, s[{SWS}:{SWS+3}], 0 offen offset:1024"],
        [f"s_mov_b64 exec, s[{sVM}:{sVM+1}]"] +
        [f"buffer_load_dwordx4 v[{vAV+4*j}:{vAV+4*j+3}], v{vVA}, s[{SWS}:{SWS+3}], s{sAV+j} offen" for j in range(3)] +
        ["s_mov_b64 exec, -1"],
        [f"global_load_dwordx4 v[{vMX+4*j}:{vMX+4*j+3}], v{vL16}, s[56:57] offset:{j*1024}" for j in range(4)] +
        [f"v_add_u32 v{vT+7}, 4096, v{vL16}"] +
        [f"global_load_dwordx4 v[{vMY+4*j}:{vMY+4*j+3}], v{vT+7}, s[56:57] offset:{j*1024}" for j in range(2)] +
        [f"v_lshrrev_b32 v{vT+7}, 1, v{vK8}",
         f"buffer_load_dword v{vGATE}, v{vT+7}, s[{SWS}:{SWS+3}], s{sGO} offen"] +
        ([] if FUSE else [f"buffer_load_dword v{vDUM}, v{vPFA}, s[{SWS}:{SWS+3}], 0 offen"]),
    ]
    ool = []
    ptile = optval("ptile", 6)
    def wdma(j, p_expr_sgpr):
        return [f"s_add_u32 m0, s{sDO+j}, s{p_expr_sgpr}",
                f"s_add_u32 s{sT3}, s{sWS}, {j*8192}",
                f"buffer_load_dwordx4 v{vL16}, s[{SWS}:{SWS+3}], s{sT3} offen lds"]
    for tt in range(8):
        for sg in range(2):
            cur = S[sg]; nsg = sg ^ 1; nxt = S[nsg]
            nt = tt if sg == 0 else tt + 1
            ka = vKA + 4 * (nt & 1); kb = vKB + 2 * (nt & 1)
            if sg == 0 and tt == 7:
                a(f"s_cmp_lg_u32 s{sPASS}, 0")
                a(f"s_cbranch_scc1 K2_NOSYNC")
                a(f"s_cmp_ge_u32 s{sC}, 3")
                a(f"s_cbranch_scc1 K2_SYNC3" if FUSE else f"s_cbranch_scc1 K2_NOSYNC")
                a("s_waitcnt vmcnt(0)")
                a("s_barrier")
                a.lab("K2_NOSYNC")
                if ptile >= 0: a("s_setprio 2")
                if FUSE:
                    body = ["s_barrier"]
                    for j in range(5): body += wdma(j, sWL)
                    body += [f"s_add_u32 s{sWL}, s{sWL}, {KV_CH}", f"s_add_u32 s{sWS}, s{sWS}, {K3_BUF}", "s_branch K2_NOSYNC"]
                    ool.append(("K2_SYNC3", body))
            if sg == 0 and tt == ptile:
                a("s_setprio 0")
            if sg == 1:
                a("s_waitcnt lgkmcnt(0)")
            q = qk(nxt, ka, kb, nsg, f"v[{NEG[nsg]}:{NEG[nsg]+15}]")
            a(q[0])
            if sg == 0:
                n1 = tt + 1
                a(rdK16(vKA + 4 * (n1 & 1), n1 // 8, n1 % 8))
                a(rdK4(vKB + 2 * (n1 & 1), n1 // 8, n1 % 8))
            for i in range(0, 4):
                a(f"v_exp_f32 v{cur+i}, v{cur+i}")
            pt = tt - 1 if sg == 0 else tt
            v2p = vV2 + 4 * (pt & 1)
            a(f"v_mfma_f32_32x32x16_bf16 v[{O[nsg]}:{O[nsg]+15}], v[{v2p}:{v2p+3}], v[{vP+4}:{vP+7}], v[{O[nsg]}:{O[nsg]+15}]")
            if sg == 0:
                a(f"s_mov_b64 exec, s[{sVM}:{sVM+1}]")
                d = vV2 + 4 * (tt & 1)
                a(f"ds_read_b128 v[{d}:{d+3}], v{vVc} offset:{voff(2*tt+1)}")
                d = vV1 + 4 * ((tt + 1) & 1)
                a(f"ds_read_b128 v[{d}:{d+3}], v{vVc} offset:{voff(2*tt+2)}")
                a("s_mov_b64 exec, -1")
            if FUSE and sg == 0 and 1 <= tt < 6:
                j = tt - 1
                a(f"s_cmp_ge_u32 s{sC}, s{sWC}")
                a(f"s_cbranch_scc1 K2_Y{tt}")
                body = wdma(j, sWL)
                if j == 4: body += [f"s_add_u32 s{sWL}, s{sWL}, {KV_CH}", f"s_add_u32 s{sWS}, s{sWS}, {K3_BUF}"]
                ool.append((f"K2_Y{tt}", body + [f"s_branch K2_YR{tt}"]))
                a.lab(f"K2_YR{tt}")
            if sg == 1 and tt < 5:
                a(f"s_cmp_lg_u32 s{sPASS}, 0")
                a(f"s_cbranch_scc1 K2_XR{tt}")
                a(f"s_cmp_lt_u32 s{sC}, 3")
                a(f"s_cbranch_scc0 K2_X{tt}")
                for x in dma1(tt): a(x)
                if tt == 4: a(f"s_add_u32 s{sDG}, s{sDG}, {KV_CH}")
                ool.append((f"K2_X{tt}", aloads[tt] + [f"s_branch K2_XR{tt}"]))
                a.lab(f"K2_XR{tt}")
            for i in range(4, 8):
                a(f"v_exp_f32 v{cur+i}, v{cur+i}")
            for i in range(4):
                a(f"v_cvt_pk_bf16_f32 v{vP+i}, v{cur+2*i}, v{cur+2*i+1}")
            a(q[1])
            for i in range(8, 12):
                a(f"v_exp_f32 v{cur+i}, v{cur+i}")
            v1 = vV1 + 4 * (tt & 1)
            a(f"v_mfma_f32_32x32x16_bf16 v[{O[sg]}:{O[sg]+15}], v[{v1}:{v1+3}], v[{vP}:{vP+3}], v[{O[sg]}:{O[sg]+15}]")
            for i in range(12, 16):
                a(f"v_exp_f32 v{cur+i}, v{cur+i}")
            for i in range(4, 8):
                a(f"v_cvt_pk_bf16_f32 v{vP+i}, v{cur+2*i}, v{cur+2*i+1}")
    for r in (vKe, vKo, vK4c, vVc):
        a(f"v_add_u32 v{r}, {KV_CH}, v{r}")
    a(f"s_add_u32 s{sC}, s{sC}, 1")
    a(f"s_cmp_lt_u32 s{sC}, 4")
    a("s_cbranch_scc1 K2_LOOP")
    stamp(a, 5)
    a(f"v_mfma_f32_32x32x16_bf16 v[{O[1]}:{O[1]+15}], v[{vV2+4}:{vV2+7}], v[{vP+4}:{vP+7}], v[{O[1]}:{O[1]+15}]")
    a("s_setprio 0")
    a(f"s_mov_b32 s{sFAIL}, 0")
    a(f"s_cmp_lg_u32 s{sPASS}, 0")
    a("s_cbranch_scc1 K2_XCHG")
    a(f"s_waitcnt vmcnt({5 if FUSE else 1}) lgkmcnt(0)")
    a(f"s_mov_b64 exec, s[{sLO}:{sLO+1}]")
    a(f"s_not_b64 exec, exec")
    a(f"v_mov_b32 v{vQA8}, 0")
    a(f"v_mov_b32 v{vQA8+1}, 0")
    a("s_mov_b64 exec, -1")
    a(f"s_cmp_lg_u32 s{sS0}, 0")
    a("s_cbranch_scc1 K2_NOFIX")
    for i in range(8):
        a(f"v_mov_b32 v{vMX+i}, {f2u(NEGBIG):#x}")
    a.lab("K2_NOFIX")
    a(f"v_mfma_f32_32x32x16_bf16 v[{vS0}:{vS0+15}], v[{vAK}:{vAK+3}], v[{vQA16}:{vQA16+3}], v[{vMX}:{vMX+15}]")
    a(f"v_mfma_f32_32x32x16_bf16 v[{vS1}:{vS1+15}], v[{vAK+4}:{vAK+7}], v[{vQA16}:{vQA16+3}], v[{vMY}:{vMY+15}]")
    a(f"v_mfma_f32_32x32x8_bf16 v[{vS0}:{vS0+15}], v[{vAK+8}:{vAK+9}], v[{vQA8}:{vQA8+1}], v[{vS0}:{vS0+15}]")
    a(f"v_mfma_f32_32x32x8_bf16 v[{vS1}:{vS1+15}], v[{vAK+10}:{vAK+11}], v[{vQA8}:{vQA8+1}], v[{vS1}:{vS1+15}]")
    a(f"v_mov_b64 v[{vT+2}:{vT+3}], 0")
    a(f"v_mov_b64 v[{vT+4}:{vT+5}], 0")
    a(f"v_mov_b32 v{vT+1}, {f2u(2.0**64):#x}")
    a("s_nop 3")
    for i in range(0, 12, 2):
        for sg in range(2):
            a(f"v_pk_fma_f32 v[{vT+2}:{vT+3}], v[{O[sg]+i}:{O[sg]+i+1}], v[{vT+4}:{vT+5}], v[{vT+2}:{vT+3}]")
    a(f"v_add_f32 v{vT}, v{O[0]+12}, v{O[1]+12}")
    a(f"v_add_f32 v{vT+2}, v{vT+2}, v{vT+3}")
    a(f"v_add_f32 v{vT}, v{vT}, v{vT+2}")
    a(f"v_cmp_nlt_f32 vcc, v{vT}, v{vT+1}")
    a(f"v_mov_b32 v{O[0]+13}, v{NEG[0]}")
    a(f"v_mov_b32 v{O[1]+13}, v{NEG[1]}")
    a("s_nop 1")
    a("s_cmp_lg_u64 vcc, 0")
    a(f"s_cselect_b32 s{sFAIL}, 1, 0")
    if "forcefail" in OPT:
        a(f"s_cmp_eq_u32 s{sW}, 3")
        a(f"s_cselect_b32 s{sFAIL}, 1, s{sFAIL}")
    regs = [vS0 + i for i in range(16)] + [vS1 + i for i in range(8)]
    m = vT + 6
    rowmax(m, regs)
    a(f"v_mov_b32 v{m+1}, v{m}")
    a("s_nop 1")
    a(f"v_permlane32_swap_b32 v{m}, v{m+1}")
    a("s_nop 1")
    a(f"v_max_f32 v{m}, v{m}, v{m+1}")
    a(f"v_sub_f32 v{vKo}, 0, v{m}")
    a(f"v_sub_f32 v{vK4c}, 0, v{m}")
    for i in range(0, 24, 2):
        a(f"v_pk_add_f32 v[{regs[i]}:{regs[i]+1}], v[{regs[i]}:{regs[i]+1}], v[{vKo}:{vK4c}]")
    for i in range(24):
        a(f"v_exp_f32 v{regs[i]}, v{regs[i]}")
    a("s_nop 0")
    for i in range(12):
        a(f"v_cvt_pk_bf16_f32 v{vP+i}, v{regs[2*i]}, v{regs[2*i+1]}")
    OA = NEG[0]
    a("s_nop 1")
    for j in range(3):
        c = "0" if j == 0 else f"v[{OA}:{OA+15}]"
        a(f"v_mfma_f32_32x32x16_bf16 v[{OA}:{OA+15}], v[{vAV+4*j}:{vAV+4*j+3}], v[{vP+4*j}:{vP+4*j+3}], {c}")
    def rowsum(dst, acc):
        a(f"v_mov_b32 v{dst}, v{acc+12}")
        a(f"s_not_b64 exec, s[{sLO}:{sLO+1}]")
        a(f"v_mov_b32 v{dst}, v{acc+8}")
        a("s_mov_b64 exec, -1")
    OFL = " sc1" if FUSE else STORE_FLAGS
    def ostore(br, src):
        a("s_nop 1")
        a(f"v_permlane32_swap_b32 v{src}, v{src+2}")
        a(f"v_permlane32_swap_b32 v{src+1}, v{src+3}")
        a(f"s_mov_b32 s{sT1}, {O_OFF}")
        a(f"buffer_store_dwordx4 v[{src}:{src+3}], v{vOSA}, s[{SWS}:{SWS+3}], s{sT1} offen offset:{br*512}{OFL}")
    a("s_nop 15")
    rowsum(vT + 6, OA)
    a(f"v_rcp_f32 v{vT+6}, v{vT+6}")
    a("s_nop 0")
    a(f"v_mul_f32 v{vT+6}, v{vT+6}, v{vGATE}")
    for i in range(0, 12, 2):
        a(f"v_pk_mul_f32 v[{OA+i}:{OA+i+1}], v[{OA+i}:{OA+i+1}], v[{vT+6}:{vT+7}] op_sel_hi:[1,0]")
    for i in range(4):
        a(f"v_cvt_pk_bf16_f32 v{vP+i}, v{OA+2*i}, v{OA+2*i+1}")
    for i in range(2):
        a(f"v_cvt_pk_bf16_f32 v{vOB+4+i}, v{OA+8+2*i}, v{OA+9+2*i}")
    ostore(0, vP)
    a("s_branch K2_XCHG1")
    a.lab("K2_XCHG")
    a("s_nop 15")
    a(f"v_mov_b32 v{O[0]+13}, v{NEG[0]}")
    a(f"v_mov_b32 v{O[1]+13}, v{NEG[1]}")
    a.lab("K2_XCHG1")
    a(f"s_mul_i32 s{sT0}, s{sGRP}, {4*KV_CH}")
    a(f"s_lshl_b32 s{sT2}, s{sPR}, 12")
    a(f"s_add_u32 s{sT2}, s{sT2}, {3*KV_CH}")
    a(f"s_add_u32 s{sT0}, s{sT0}, s{sT2}")
    a(f"v_add_u32 v{vT}, s{sT0}, v{vL16}")
    a(f"s_xor_b32 s{sT0}, s{sGRP}, 1")
    a(f"s_mul_i32 s{sT0}, s{sT0}, {4*KV_CH}")
    a(f"s_add_u32 s{sT0}, s{sT0}, s{sT2}")
    a(f"v_add_u32 v{vT+1}, s{sT0}, v{vL16}")
    a(f"s_lshl_b32 s{sT0}, s{sW}, 2")
    a(f"s_add_u32 s{sT0}, s{sT0}, {3*KV_CH + 16384}")
    a(f"v_mov_b32 v{vT+2}, s{sT0}")
    a(f"v_mov_b32 v{vT+3}, s{sFAIL}")
    a("s_barrier")
    a(f"s_cmp_eq_u32 s{sGRP}, 0")
    a("s_cbranch_scc1 K2_XA")
    for j in range(4):
        a(f"ds_write_b128 v{vT}, v[{O[0]+4*j}:{O[0]+4*j+3}] offset:{j*1024}")
    a("s_branch K2_XB")
    a.lab("K2_XA")
    for j in range(4):
        a(f"ds_write_b128 v{vT}, v[{O[1]+4*j}:{O[1]+4*j+3}] offset:{j*1024}")
    a.lab("K2_XB")
    a(f"ds_write_b32 v{vT+2}, v{vT+3}")
    a(f"v_mov_b32 v{vT+2}, {3*KV_CH + 16384}")
    a("s_waitcnt lgkmcnt(0)")
    a("s_barrier")
    a(f"ds_read_b128 v[{vT+4}:{vT+7}], v{vT+2}")
    a(f"ds_read_b128 v[{vS0}:{vS0+3}], v{vT+2} offset:16")
    a(f"s_cmp_eq_u32 s{sGRP}, 0")
    a("s_cbranch_scc1 K2_XC")
    for j in range(4):
        a(f"ds_read_b128 v[{O[0]+4*j}:{O[0]+4*j+3}], v{vT+1} offset:{j*1024}")
    a("s_branch K2_XD")
    a.lab("K2_XC")
    for j in range(4):
        a(f"ds_read_b128 v[{O[1]+4*j}:{O[1]+4*j+3}], v{vT+1} offset:{j*1024}")
    a.lab("K2_XD")
    a("s_waitcnt lgkmcnt(4)")
    a(f"v_or3_b32 v{vT+4}, v{vT+4}, v{vT+5}, v{vT+6}")
    a(f"v_or3_b32 v{vT+4}, v{vT+4}, v{vT+7}, v{vS0}")
    a(f"v_or3_b32 v{vT+4}, v{vT+4}, v{vS0+1}, v{vS0+2}")
    a(f"v_or_b32 v{vT+4}, v{vT+4}, v{vS0+3}")
    a("s_nop 0")
    a(f"v_readfirstlane_b32 s{sT0}, v{vT+4}")
    a("s_nop 3")
    a(f"s_cmp_lg_u32 s{sT0}, 0")
    a("s_cbranch_scc1 K2_REDO")
    a("s_waitcnt lgkmcnt(0)")
    a(f"v_sub_f32 v{vT+2}, v{O[1]+13}, v{O[0]+13}")
    a(f"v_sub_f32 v{vT+3}, 0, v{vT+2}")
    a(f"v_min_f32 v{vT+2}, 0, v{vT+2}")
    a(f"v_min_f32 v{vT+3}, 0, v{vT+3}")
    a(f"v_exp_f32 v{vT+2}, v{vT+2}")
    a(f"v_exp_f32 v{vT+3}, v{vT+3}")
    rowsum(vT + 4, O[0])
    rowsum(vT + 5, O[1])
    a(f"v_mul_f32 v{vT+4}, v{vT+4}, v{vT+2}")
    a(f"v_fmac_f32 v{vT+4}, v{vT+5}, v{vT+3}")
    a(f"v_rcp_f32 v{vT+4}, v{vT+4}")
    a(f"v_sub_f32 v{vT+5}, 1.0, v{vGATE}")
    a("s_nop 0")
    a(f"v_mul_f32 v{vT+4}, v{vT+4}, v{vT+5}")
    a(f"v_mul_f32 v{vT+2}, v{vT+2}, v{vT+4}")
    a(f"v_mul_f32 v{vT+3}, v{vT+3}, v{vT+4}")
    for i in range(0, 12, 2):
        a(f"v_pk_mul_f32 v[{O[0]+i}:{O[0]+i+1}], v[{O[0]+i}:{O[0]+i+1}], v[{vT+2}:{vT+3}] op_sel_hi:[1,0]")
        a(f"v_pk_fma_f32 v[{O[0]+i}:{O[0]+i+1}], v[{O[1]+i}:{O[1]+i+1}], v[{vT+2}:{vT+3}], v[{O[0]+i}:{O[0]+i+1}] op_sel:[0,1,0] op_sel_hi:[1,1,1]")
    for i in range(4):
        a(f"v_cvt_pk_bf16_f32 v{vOB+i}, v{O[0]+2*i}, v{O[0]+2*i+1}")
    for i in range(2):
        a(f"v_cvt_pk_bf16_f32 v{vOB+6+i}, v{O[0]+8+2*i}, v{O[0]+9+2*i}")
    ostore(1, vOB)
    a(f"s_mov_b64 exec, s[{sLO}:{sLO+1}]")
    a(f"buffer_store_dwordx4 v[{vOB+4}:{vOB+7}], v{vOSA}, s[{SWS}:{SWS+3}], s{sT1} offen offset:1024{OFL}")
    a("s_mov_b64 exec, -1")
    if FUSE:
        a(f"s_cmp_eq_u32 s{sPASS}, 0")
        a("s_cbranch_scc1 K2_WOK")
        a("s_barrier")
        a(f"s_mov_b32 s{sWL}, 0")
        a(f"s_mov_b32 s{sWS}, s{sWS0}")
        for p in range(3):
            for j in range(5):
                for x in wdma(j, sWL): a(x)
            a(f"s_add_u32 s{sWL}, s{sWL}, {KV_CH}")
            a(f"s_add_u32 s{sWS}, s{sWS}, {K3_BUF}")
        a.lab("K2_WOK")
        stamp(a, 6)
        a("s_barrier")
        a(f"s_mov_b32 s{sWL}, {3*KV_CH}")
        for j in range(5):
            for x in wdma(j, sWL): a(x)
        a("s_waitcnt vmcnt(5)")
        if "tailstamps" in OPT: stamp(a, 1)
        a("s_barrier")
        if "tailstamps" in OPT: stamp(a, 2)
        a(f"s_cmp_lg_u32 s{sW}, 0")
        a("s_cbranch_scc1 K2_NOPOLL0")
        a(f"s_lshl_b32 s{sT0}, s{sQB}, 12")
        a(f"s_add_u32 s{sT0}, s{sT0}, {FL_OFF}")
        a(f"s_mov_b64 exec, s[{sLO}:{sLO+1}]")
        a(f"v_mov_b32 v{vT}, 1")
        a(f"v_lshlrev_b32 v{vT+5}, 7, v{vLANE}")
        a(f"buffer_atomic_add v{vT}, v{vT+5}, s[{SWS}:{SWS+3}], s{sT0} offen")
        a("s_mov_b64 exec, -1")
        a.lab("K2_NOPOLL0")
        bufss = [((ss // 2) % 4) * KV_CH + (ss & 1) * 4 * KV_CH for ss in range(10)]
        pc = proj_core(a, "K2", SWS, 68, sW, 64, 65, 50, bufss,
                       lambda p, j, sM0: f"s_add_u32 m0, s{sDO+j}, {(p % 4)*KV_CH}", {1: [4]}, optval("k2opre", 4))
        pc.setup()
        srd(a, 68, 60, 61, 2048 * 1280)
        pc.addr_setup(0)
        if "tailstamps" in OPT: stamp(a, 3)
        a(f"s_cmp_lg_u32 s{sW}, 0")
        a("s_cbranch_scc1 K2_NOPOLL")
        a(f"s_lshl_b32 s{sT0}, s{sHEAD}, 3")
        a(f"s_add_u32 s{sT0}, s{sT0}, s{sQB}")
        a(f"s_lshl_b32 s{sT0}, s{sT0}, 7")
        a(f"s_add_u32 s{sT0}, s{sT0}, {FL_OFF}")
        a("s_mov_b64 exec, 1")
        a(f"v_mov_b32 v{vT+5}, 0")
        a(f"s_mov_b32 s{sT1}, 0")
        a.lab("K2_POLL")
        a(f"buffer_load_dword v{vT+4}, v{vT+5}, s[{SWS}:{SWS+3}], s{sT0} offen sc1")
        a("s_waitcnt vmcnt(0)")
        a(f"v_readfirstlane_b32 s{sT2}, v{vT+4}")
        a(f"s_add_u32 s{sT1}, s{sT1}, 1")
        a(f"s_cmp_ge_u32 s{sT2}, 32")
        a("s_cbranch_scc1 K2_POLLED")
        a(f"s_sleep {optval('psleep', 2)}")
        a(f"s_cmp_lt_u32 s{sT1}, 0x40000")
        a("s_cbranch_scc1 K2_POLL")
        a.lab("K2_POLLED")
        a("s_waitcnt vmcnt(0)")
        if "tailstamps" in OPT:
            stamp(a, 4)
        a("s_mov_b64 exec, -1")
        a.lab("K2_NOPOLL")
        a("s_waitcnt vmcnt(0)")
        a("s_barrier")
        stamp(a, 7)
        pc.body([("o", 0), ("o", 1), ("o", 2), ("o", 3)])
        if PROF: a("s_waitcnt vmcnt(0)")
        stamp(a, 8)
        stamp_flush(a, 1, 9, SWS, sW, vT)
        a("s_endpgm")
    else:
        a("s_branch K2_DONE")
    a.lab("K2_REDO")
    a("s_waitcnt vmcnt(0) lgkmcnt(0)")
    a("s_barrier")
    a(f"s_mov_b32 s{sDG}, 0")
    for p in range(4):
        for j in range(5):
            for x in dma1(j): a(x)
        a(f"s_add_u32 s{sDG}, s{sDG}, {KV_CH}")
    a(f"s_mov_b32 s{sPASS}, 1")
    if FUSE: a(f"s_mov_b32 s{sWC}, 99")
    a(f"v_mov_b32 v{vT}, {f2u(-3.0e38):#x}")
    a(f"v_mov_b32 v{vT+2}, {f2u(-3.0e38):#x}")
    setbases()
    a(f"s_mov_b32 s{sC}, 0")
    a("s_waitcnt vmcnt(0)")
    a("s_barrier")
    a.lab("K2_MAXLOOP")
    for tt in range(8):
        a(rdK16(vKA, 0, tt))
        a(rdK4(vKB, 0, tt))
        a("s_waitcnt lgkmcnt(0)")
        for sg in range(2):
            for x in qk(S[sg], vKA, vKB, sg, "0"): a(x)
        a("s_nop 15")
        for sg in range(2):
            rowmax(vT + 2 * sg, [S[sg] + i for i in range(16)], first=True)
    for r in (vKe, vKo, vK4c):
        a(f"v_add_u32 v{r}, {KV_CH}, v{r}")
    a(f"s_add_u32 s{sC}, s{sC}, 1")
    a(f"s_cmp_lt_u32 s{sC}, 4")
    a("s_cbranch_scc1 K2_MAXLOOP")
    for sg in range(2):
        a(f"v_mov_b32 v{vT+2*sg+1}, v{vT+2*sg}")
    a("s_nop 1")
    for sg in range(2):
        a(f"v_permlane32_swap_b32 v{vT+2*sg}, v{vT+2*sg+1}")
    a("s_nop 1")
    for sg in range(2):
        a(f"v_max_f32 v{vT+2*sg}, v{vT+2*sg}, v{vT+2*sg+1}")
        for i in range(16):
            a(f"v_sub_f32 v{NEG[sg]+i}, 0, v{vT+2*sg}")
            a(f"v_mov_b32 v{O[sg]+i}, 0")
    for i in range(4):
        a(f"v_mov_b32 v{vP+4+i}, 0")
    a("s_branch K2_START")
    for lab, body in ool:
        a.lab(lab)
        for x in body: a(x)
    a.lab("K2_DONE")
    stamp(a, 6)
    if PROF: a("s_waitcnt vmcnt(0)")
    stamp(a, 7)
    if "chunkstamp" in OPT:
        a(f"s_lshl_b32 s97, s2, 3")
        a(f"s_add_u32 s97, s97, s{sW}")
        a(f"s_lshl_b32 s97, s97, 6")
        a(f"s_add_u32 s97, s97, {PROF_OFF + 3 * 0x100000}")
        a(f"v_lshlrev_b32 v{vT}, 2, v{vLANE}")
        a("s_mov_b64 exec, 0xff")
        a(f"buffer_store_dword v247, v{vT}, s[{SWS}:{SWS+3}], s97 offen")
        a("s_mov_b64 exec, -1")
    stamp_flush(a, 1, 8, SWS, sW, vT)
    a.lab("K2_END")
    a("s_endpgm")
    a.raw(".p2align 4")
    a.lab("K2_TABLE")
    tab = mask_table()
    for i in range(0, len(tab), 8):
        a.raw("    .long " + ", ".join(f"{x:#x}" for x in tab[i:i+8]))
    return name, NV

K3_BUF = 40 * 1024
K3_NBUF = 3
K3_LDS = K3_BUF * K3_NBUF

K3_GRID = 256
def proj_core(a, pfx, SWS, SOUT, sW, sMT, sNT, sbase, bufss, wm0, wplan, OPRE, vLANE=1, vL16=2):
    sMB, sKH, sT0, sT1, sT2, sOB, sWB, sM0, sOUT = [sbase + i for i in range(9)]
    vWR = 6; vWA = 7; vT = 8
    vOF = 20; vWF = 100; vACC = 180
    oflags = " sc1" if pfx == "K2" else ""
    issued = []
    def setup():
        a(f"s_and_b32 s{sMB}, s{sW}, 3")
        a(f"s_lshr_b32 s{sKH}, s{sW}, 2")
        a(f"s_lshl_b32 s{sM0}, s{sW}, 10")
        a(f"s_mul_i32 s{sWB}, s{sNT}, {200*1024}")
        a(f"s_add_u32 s{sWB}, s{sWB}, s{sM0}")
        a(f"s_add_u32 s{sWB}, s{sWB}, {WT_OFF}")
        a(f"s_lshl_b32 s{sOB}, s{sMT}, 2")
        a(f"s_add_u32 s{sOB}, s{sOB}, s{sMB}")
        a(f"s_mul_i32 s{sOUT}, s{sOB}, {16*1280}")
        a(f"s_mul_i32 s{sOB}, s{sOB}, 40")
        a(f"s_lshl_b32 s{sT0}, s{sKH}, 1")
        a(f"s_add_u32 s{sOB}, s{sOB}, s{sT0}")
        a(f"s_lshl_b32 s{sOB}, s{sOB}, 10")
        a(f"s_add_u32 s{sOB}, s{sOB}, {O_OFF}")
        a(f"s_mul_i32 s{sT2}, s{sNT}, 160")
        a(f"s_add_u32 s{sOUT}, s{sOUT}, s{sT2}")
    def wgroup(p):
        g = []
        for j in range(5):
            g.append(([wm0(p, j, sM0),
                       f"s_add_u32 s{sT1}, s{sWB}, {p*K3_BUF + j*8192}",
                       f"buffer_load_dwordx4 v{vL16}, s[{SWS}:{SWS+3}], s{sT1} offen lds"], ("W", p)))
        return g
    def ogroup(ss):
        g = []
        for i in range(2):
            d = vOF + (ss * 2 + i) * 4
            g.append(([f"s_add_u32 s{sT0}, s{sOB}, {(ss*4 + i)*1024}",
                       f"buffer_load_dwordx4 v[{d}:{d+3}], v{vL16}, s[{SWS}:{SWS+3}], s{sT0} offen{oflags}"], ("o", ss)))
        return g
    def emit(item):
        for x in item[0]: a(x)
        issued.append(item[1])
    def vm(need):
        last = max([i for i, t in enumerate(issued) if t in need], default=-1)
        return min(63, len(issued) - 1 - last)
    def reads(ss):
        st = ss & 1
        off = bufss[ss]
        out = [f"v_add_u32 v{vWA}, {off}, v{vWR}"]
        for i in range(2):
            for b in range(5):
                r = vWF + st * 40 + (i * 5 + b) * 4
                out.append(f"ds_read_b128 v[{r}:{r+3}], v{vWA} offset:{(i*5 + b)*1024}")
        return out
    def addr_setup(xbase):
        a(f"s_mul_i32 s{sT0}, s{sKH}, {10*1024}")
        a(f"v_add_u32 v{vWR}, s{sT0}, v{vL16}")
        a(f"v_and_b32 v{vT+1}, 15, v{vLANE}")
        a(f"v_mul_u32_u24 v{vT+1}, 1280, v{vT+1}")
        a(f"v_lshrrev_b32 v{vT+2}, 4, v{vLANE}")
        a(f"v_lshl_add_u32 v{vT+1}, v{vT+2}, 3, v{vT+1}")
        a(f"s_mul_i32 s{sT0}, s{sW}, {3*1024}")
        a(f"s_add_u32 s{sT0}, s{sT0}, {xbase}")
        a(f"v_add_u32 v{vT}, s{sT0}, v{vL16}")
        a(f"s_xor_b32 s{sT2}, s{sW}, 4")
        a(f"s_mul_i32 s{sT2}, s{sT2}, {3*1024}")
        a(f"s_add_u32 s{sT2}, s{sT2}, {xbase}")
        a(f"v_add_u32 v{vT+3}, s{sT2}, v{vL16}")
    def body(first):
        for kind, idx in first:
            for it in (wgroup(idx) if kind == "W" else ogroup(idx)): emit(it)
        nxt_o = max([idx for kind, idx in first if kind == "o"], default=-1) + 1
        if pfx == "K3": stamp(a, 1)
        a(f"s_waitcnt vmcnt({vm({('W', 0)})})")
        a("s_barrier")
        if pfx == "K3": stamp(a, 2)
        for r in reads(0): a(r)
        for ss in range(10):
            p = ss // 2
            need = {("o", ss)}
            if ss % 2 == 1 and p + 1 < 5: need.add(("W", p + 1))
            a(f"s_waitcnt vmcnt({vm(need)}) lgkmcnt(0)")
            if ss % 2 == 1 and ss < 9: a("s_barrier")
            mf = []
            for i in range(2):
                for b in range(5):
                    acc = vACC + b * 4
                    wf = vWF + (ss & 1) * 40 + (i * 5 + b) * 4
                    of = vOF + (ss * 2 + i) * 4
                    c = "0" if (ss == 0 and i == 0) else f"v[{acc}:{acc+3}]"
                    mf.append(f"v_mfma_f32_16x16x32_bf16 v[{acc}:{acc+3}], v[{wf}:{wf+3}], v[{of}:{of+3}], {c}")
            rd = reads(ss + 1) if ss < 9 else []
            ld = []
            for p2 in wplan.get(ss, []): ld += wgroup(p2)
            while nxt_o < 10 and nxt_o <= ss + OPRE:
                ld += ogroup(nxt_o); nxt_o += 1
            ex = [("r", r) for r in rd]
            mixed = []
            step = max(1, len(ex) // max(1, len(ld))) if ld else 0
            k = 0
            for i, e in enumerate(ex):
                mixed.append(e)
                if ld and k < len(ld) and (i + 1) % step == 0:
                    mixed.append(("l", ld[k])); k += 1
            while k < len(ld):
                mixed.append(("l", ld[k])); k += 1
            k = 0
            for i, m in enumerate(mf):
                a(m)
                tgt = min(len(mixed), ((i + 1) * len(mixed) + 8) // 9)
                while k < tgt:
                    if mixed[k][0] == "r": a(mixed[k][1])
                    else: emit(mixed[k][1])
                    k += 1
        if pfx == "K3": stamp(a, 3)
        a("s_barrier")
        a(f"s_cmp_eq_u32 s{sKH}, 0")
        a(f"s_cbranch_scc1 {pfx}_PW0")
        a("s_nop 4")
        for b in range(3):
            a(f"ds_write_b128 v{vT}, v[{vACC+b*4}:{vACC+b*4+3}] offset:{b*1024}")
        a("s_waitcnt lgkmcnt(0)")
        a("s_barrier")
        def fin(blocks):
            for n, b in enumerate(blocks):
                a(f"ds_read_b128 v[{vOF+4*n}:{vOF+4*n+3}], v{vT+3} offset:{n*1024}")
            for n, b in enumerate(blocks):
                a(f"s_waitcnt lgkmcnt({len(blocks)-1-n})")
                for i in range(0, 4, 2):
                    a(f"v_pk_add_f32 v[{vOF+4*n+i}:{vOF+4*n+i+1}], v[{vOF+4*n+i}:{vOF+4*n+i+1}], v[{vACC+4*b+i}:{vACC+4*b+i+1}]")
                a(f"v_cvt_pk_bf16_f32 v{vWF+2*n}, v{vOF+4*n}, v{vOF+4*n+1}")
                a(f"v_cvt_pk_bf16_f32 v{vWF+2*n+1}, v{vOF+4*n+2}, v{vOF+4*n+3}")
                a(f"buffer_store_dwordx2 v[{vWF+2*n}:{vWF+2*n+1}], v{vT+1}, s[{SOUT}:{SOUT+3}], s{sOUT} offen offset:{b*32}")
        fin([3, 4])
        a(f"s_branch {pfx}_PFIN")
        a.lab(f"{pfx}_PW0")
        a("s_nop 4")
        for n, b in enumerate((3, 4)):
            a(f"ds_write_b128 v{vT}, v[{vACC+b*4}:{vACC+b*4+3}] offset:{n*1024}")
        a("s_waitcnt lgkmcnt(0)")
        a("s_barrier")
        fin([0, 1, 2])
        a.lab(f"{pfx}_PFIN")
    class C: pass
    c = C(); c.setup = setup; c.wgroup = wgroup; c.emit = emit; c.addr_setup = addr_setup; c.body = body; c.issued = issued
    return c

def gen_k3(a):
    name = "k3_proj_kernel"
    kernel_head(a, name)
    SWS = 8; SOUT = 20
    sW = 24; sMT = 27; sNT = 28
    vLANE = 1; vL16 = 2; vT = 8
    NV = 200
    a(f"s_cmp_ge_u32 s2, {K3_GRID}")
    a("s_cbranch_scc1 K3_END")
    stamp(a, 0)
    a("s_load_dwordx2 s[4:5], s[0:1], 72")
    a("s_load_dwordx2 s[36:37], s[0:1], 56")
    a(f"v_and_b32 v{vLANE}, 63, v0")
    a(f"v_lshrrev_b32 v{vT}, 6, v0")
    a(f"s_and_b32 s{sMT}, s2, 7")
    a(f"v_readfirstlane_b32 s{sW}, v{vT}")
    a(f"s_lshl_b32 s{sMT}, s{sMT}, 2")
    a(f"s_lshr_b32 s29, s2, 6")
    a(f"s_add_u32 s{sMT}, s{sMT}, s29")
    a(f"s_lshr_b32 s{sNT}, s2, 3")
    a(f"s_and_b32 s{sNT}, s{sNT}, 7")
    a(f"v_lshlrev_b32 v{vL16}, 4, v{vLANE}")
    bufss = [((ss // 2) % 3) * K3_BUF + (ss & 1) * 20 * 1024 for ss in range(10)]
    c = proj_core(a, "K3", SWS, SOUT, sW, sMT, sNT, 40, bufss, lambda p, j, sM0: f"s_add_u32 m0, s{sM0}, {(p % 3)*K3_BUF + j*8192}",
                  {0: [2], 1: [3], 3: [4]}, optval("k3opre", 4))
    c.setup()
    a("s_waitcnt lgkmcnt(0)")
    srd(a, SWS, 4, 5, WS_USED)
    srd(a, SOUT, 36, 37, 2048 * 1280)
    c.addr_setup(0)
    c.body([("W", 0), ("o", 0), ("o", 1), ("W", 1), ("o", 2), ("o", 3)])
    stamp(a, 4)
    if PROF: a("s_waitcnt vmcnt(0)")
    stamp(a, 5)
    stamp_flush(a, 2, 6, SWS, sW, vT)
    a.lab("K3_END")
    a("s_endpgm")
    return name, NV

def build(kernels=("k1", "k2", "k3")):
    a = Asm()
    fuse = "nofuse" not in OPT
    k3line = "" if fuse else f"; @launch kernel=k3_proj_kernel grid=({K3_GRID},1,1) block=(512,1,1) lds={K3_LDS}\n"
    hdr = f"""; Gated mix of sliding-window dilated attention (A) and full softmax MHA (B): three launches.
; @launch kernel=k1_qkv_kernel grid=(256,1,1) block=(512,1,1) lds={K1_LDS}
; @launch kernel=k2_attn_kernel grid=(256,1,1) block=(512,1,1) lds={K2_LDS}
{k3line}.amdgcn_target "amdgcn-amd-amdhsa--gfx950"
.text
"""
    descs = []
    for g in ((gen_k1, gen_k2) if fuse else (gen_k1, gen_k2, gen_k3)):
        n, nv = g(a)
        descs.append(kernel_desc(n, nv))
    return hdr + a.text() + '.section .rodata,"a"\n' + "".join(".p2align 6\n" + d for d in descs)

if __name__ == "__main__":
    if len(sys.argv) > 2 and sys.argv[2] == "prof":
        PROF = True
    OPT.update(sys.argv[3:])
    if "st_sc1" in OPT: STORE_FLAGS = " sc1"
    if "st_nt" in OPT: STORE_FLAGS = " nt"
    if "st_sc01" in OPT: STORE_FLAGS = " sc0 sc1"
    if "st_sc1nt" in OPT: STORE_FLAGS = " sc1 nt"
    out = sys.argv[1] if len(sys.argv) > 1 else f"cdna_kernels/{NAME}.s"
    open(out, "w").write(build())
    print("wrote", out)
```

```python
import sys, struct

NAME = "gated_mix__sliding_local_dilated__softmax_full_mha__prompt"

KV_HEAD = 163840
KV_CH = 20480
Q_HEAD = 81920
Q_CH = 10240
KVA_OFF = 0
KVB_OFF = 32 * KV_HEAD
QA_OFF = 2 * 32 * KV_HEAD
QB_OFF = QA_OFF + 32 * Q_HEAD
G_OFF = QB_OFF + 32 * Q_HEAD
FL_OFF = 0xF04000
WT_OFF = 0xF10000
O_OFF = 0x1100000
O_SIZE = 128 * 40 * 1024
WS_USED = 0x2400000
QSCALE = (20 ** -0.5) * 1.4426950408889634

def f2u(x):
    return struct.unpack("<I", struct.pack("<f", x))[0]

class Asm:
    def __init__(self):
        self.l = []
    def __call__(self, s):
        for x in s.strip("\n").split("\n"):
            self.l.append("    " + x.strip())
    def lab(self, s):
        self.l.append(s + ":")
    def raw(self, s):
        self.l.append(s)
    def text(self):
        return "\n".join(self.l) + "\n"

def vr(b, n=1):
    return f"v{b}" if n == 1 else f"v[{b}:{b+n-1}]"
def sr(b, n=1):
    return f"s{b}" if n == 1 else f"s[{b}:{b+n-1}]"

def kernel_head(a, name):
    a.raw(f".globl {name}")
    a.raw(".p2align 8")
    a.raw(f".type {name},@function")
    a.lab(name)

def kernel_desc(name, nv, ns=102):
    acc = (nv + 3) // 4 * 4
    return f""".amdhsa_kernel {name}
  .amdhsa_next_free_vgpr {nv}
  .amdhsa_next_free_sgpr {ns}
  .amdhsa_accum_offset {acc}
  .amdhsa_group_segment_fixed_size 0
  .amdhsa_kernarg_size 80
  .amdhsa_user_sgpr_count 2
  .amdhsa_user_sgpr_kernarg_segment_ptr 1
  .amdhsa_system_sgpr_workgroup_id_x 1
  .amdhsa_float_denorm_mode_32 3
  .amdhsa_float_denorm_mode_16_64 3
.end_amdhsa_kernel
"""

PROF = False
OPT = set()
STORE_FLAGS = ""
PROF_OFF = 0x2000000
def optval(name, default):
    for o in OPT:
        if o.startswith(name + "="): return int(o.split("=")[1])
    return default
def stamp(a, i):
    if PROF:
        a(f"s_memtime s[{80+2*i}:{81+2*i}]")
        if i == 0: a("s_memrealtime s[76:77]")
def stamp_flush(a, kidx, n, srdreg, wave_sgpr, vtmp):
    if not PROF: return
    a("s_memrealtime s[98:99]")
    a("s_waitcnt lgkmcnt(0)")
    a(f"s_lshl_b32 s75, s2, 3")
    a(f"s_add_u32 s75, s75, s{wave_sgpr}")
    a(f"s_lshl_b32 s75, s75, 6")
    a(f"s_add_u32 s75, s75, {PROF_OFF + kidx * 0x100000}")
    a("s_mov_b64 exec, 1")
    a(f"v_mov_b32 v{vtmp+1}, 0")
    for i in range(n):
        a(f"v_mov_b32 v{vtmp}, s{80+2*i}")
        a(f"buffer_store_dword v{vtmp}, v{vtmp+1}, s[{srdreg}:{srdreg+3}], s75 offen offset:{4*i}")
    a(f"v_mov_b32 v{vtmp}, s76")
    a(f"buffer_store_dword v{vtmp}, v{vtmp+1}, s[{srdreg}:{srdreg+3}], s75 offen offset:56")
    a(f"v_mov_b32 v{vtmp}, s98")
    a(f"buffer_store_dword v{vtmp}, v{vtmp+1}, s[{srdreg}:{srdreg+3}], s75 offen offset:60")

def srd(a, d, lo, hi, size):
    a(f"s_mov_b32 s{d}, s{lo}")
    a(f"s_and_b32 s{d+1}, s{hi}, 0xffff")
    a(f"s_mov_b32 s{d+2}, {size}")
    a(f"s_mov_b32 s{d+3}, 0x00020000")

K1_XB = 32768
K1_BUF = 32768 + 16384
K1_NBUF = 3
K1_LDS = K1_BUF * K1_NBUF

def gen_k1(a):
    PF0 = optval("pf0", 3)
    name = "k1_qkv_kernel"
    kernel_head(a, name)
    SX = 12; SW = 16; SWS = 20; SG = 24
    sW = 32; sWM = 33; sWN = 34; sI = 35; sRD = 36; sWRB = 37
    sXS = 38; sWS1 = 39; sXM0 = 41; sWM0 = 42; sMT = 43; sNT = 44; sBR = 45
    sTMP = 46; sTMP2 = 47; sTMP3 = 48; sTMP4 = 49
    sSEC = 50; sFB = 51; sEO = 52; sD = 53; sHS = 54; sSC = 56
    vLANE = 1; vXO = 2; vWO = 4
    vXR = 6
    vWR = 10
    vXA = 12
    vWA = 16
    vT = 18
    vXF = 32
    vWF = 64
    vACC = 96
    vEO = 160
    vPF = 176
    NV = 180

    a("s_cmp_ge_u32 s2, 256")
    a("s_cbranch_scc1 K1_END")
    stamp(a, 0)
    a("s_lshr_b32 s45, s2, 2")
    a("s_and_b32 s45, s45, 1")
    a("s_mul_i32 s46, s45, 24")
    a("s_add_u32 s46, s46, 8")
    a("s_load_dwordx2 s[10:11], s[0:1], s46")
    a("s_load_dwordx2 s[8:9], s[0:1], 0")
    a("s_load_dwordx2 s[4:5], s[0:1], 72")
    a("s_load_dwordx2 s[6:7], s[0:1], 48")
    a(f"v_and_b32 v{vLANE}, 63, v0")
    a(f"v_lshrrev_b32 v{vT}, 6, v0")
    a(f"s_lshr_b32 s{sTMP}, s2, 3")
    a(f"v_readfirstlane_b32 s{sW}, v{vT}")
    a(f"s_and_b32 s{sMT}, s2, 3")
    a(f"s_lshl_b32 s{sMT}, s{sMT}, 1")
    a(f"s_and_b32 s{sTMP2}, s{sTMP}, 1")
    a(f"s_add_u32 s{sMT}, s{sMT}, s{sTMP2}")
    a(f"s_lshr_b32 s{sNT}, s{sTMP}, 1")
    a(f"s_cmp_ge_u32 s{sNT}, 15")
    a("s_cbranch_scc1 K1_GATE")
    a(f"s_and_b32 s{sWM}, s{sW}, 3")
    a(f"s_lshr_b32 s{sWN}, s{sW}, 2")
    a(f"v_lshrrev_b32 v{vT}, 3, v{vLANE}")
    a(f"v_lshrrev_b32 v{vT+1}, 4, v{vLANE}")
    a(f"v_xor_b32 v{vT+1}, v{vT+1}, v{vLANE}")
    a(f"v_and_b32 v{vT+1}, 7, v{vT+1}")
    a(f"s_lshl_b32 s{sTMP}, s{sMT}, 8")
    a(f"s_lshl_b32 s{sTMP2}, s{sW}, 5")
    a(f"s_add_u32 s{sTMP}, s{sTMP}, s{sTMP2}")
    a(f"v_add_u32 v{vT}, s{sTMP}, v{vT}")
    a(f"v_mul_u32_u24 v{vT}, 1280, v{vT}")
    a(f"v_lshl_add_u32 v{vXO}, v{vT+1}, 4, v{vT}")
    a(f"v_xor_b32 v{vXO+1}, 64, v{vXO}")
    a(f"v_lshrrev_b32 v{vT}, 4, v{vLANE}")
    a(f"v_lshlrev_b32 v{vT+1}, 2, v{vT}")
    a(f"v_xor_b32 v{vT+1}, v{vT+1}, v{vLANE}")
    a(f"v_and_b32 v{vT+1}, 15, v{vT+1}")
    a(f"s_lshl_b32 s{sTMP}, s{sW}, 3")
    a(f"v_add_u32 v{vT}, s{sTMP}, v{vT}")
    a(f"v_mul_u32_u24 v{vT}, 3840, v{vT}")
    a(f"v_lshl_add_u32 v{vT}, v{vT+1}, 4, v{vT}")
    a(f"s_lshl_b32 s{sTMP}, s{sNT}, 8")
    a(f"v_add_u32 v{vWO}, s{sTMP}, v{vT}")
    a(f"s_lshl_b32 s{sXM0}, s{sW}, 12")
    a(f"s_lshl_b32 s{sWM0}, s{sW}, 11")
    a(f"s_add_u32 s{sWM0}, s{sWM0}, {K1_XB}")
    a("s_waitcnt lgkmcnt(0)")
    srd(a, SX, 8, 9, 2048 * 1280)
    srd(a, SW, 10, 11, 640 * 3840)

    def dma_list(buf_s, inloop=False):
        g = []
        if "k1nodma" in OPT and inloop: return [["s_nop 0"]] * 6
        for i in range(4):
            g.append([f"s_add_u32 m0, s{buf_s}, s{sXM0}" if i == 0 else f"s_add_u32 m0, m0, 1024",
                      f"s_add_u32 s{sTMP3}, s{sXS}, {i*8*1280}",
                      f"buffer_load_dwordx4 v{vXO + (i & 1)}, s[{SX}:{SX+3}], s{sTMP3} offen lds"])
        for i in range(2):
            g.append([f"s_add_u32 m0, s{buf_s}, s{sWM0}" if i == 0 else f"s_add_u32 m0, m0, 1024",
                      f"s_add_u32 s{sTMP3}, s{sWS1}, {i*4*3840}",
                      f"buffer_load_dwordx4 v{vWO}, s[{SW}:{SW+3}], s{sTMP3} offen lds"])
        g[-1] = g[-1] + [f"s_add_u32 s{sXS}, s{sXS}, 128", f"s_add_u32 s{sWS1}, s{sWS1}, {64*3840}"]
        return g
    a(f"s_mov_b32 s{sXS}, 0")
    a(f"s_mov_b32 s{sWS1}, 0")
    a(f"s_mov_b32 s{sWRB}, 0")
    for g in dma_list(sWRB):
        for x in g: a(x)
    srd(a, SWS, 4, 5, WS_USED)
    a(f"v_and_b32 v{vT}, 31, v{vLANE}")
    a(f"v_lshrrev_b32 v{vT+1}, 5, v{vLANE}")
    a(f"v_bfe_u32 v{vT+2}, v{vLANE}, 1, 3")
    a(f"v_xor_b32 v{vT+2}, v{vT+2}, v{vT+1}")
    a(f"v_lshlrev_b32 v{vT+2}, 4, v{vT+2}")
    a(f"v_lshl_add_u32 v{vXR}, v{vT}, 7, v{vT+2}")
    a(f"s_lshl_b32 s{sTMP}, s{sWM}, 13")
    a(f"v_add_u32 v{vXR}, s{sTMP}, v{vXR}")
    for kk in range(1, 4):
        a(f"v_xor_b32 v{vXR+kk}, {kk << 5}, v{vXR}")
    a(f"v_bfe_u32 v{vT+2}, v{vLANE}, 2, 2")
    a(f"v_lshl_add_u32 v{vT+3}, v{vT+1}, 3, v{vT+2}")
    a(f"v_lshlrev_b32 v{vT+3}, 8, v{vT+3}")
    a(f"v_and_b32 v{vT+4}, 3, v{vLANE}")
    a(f"v_lshl_add_u32 v{vT+3}, v{vT+4}, 3, v{vT+3}")
    a(f"v_bfe_u32 v{vT+4}, v{vLANE}, 4, 1")
    a(f"v_lshl_add_u32 v{vT+3}, v{vT+4}, 5, v{vT+3}")
    a(f"v_add_u32 v{vT+3}, {K1_XB}, v{vT+3}")
    a(f"s_lshl_b32 s{sTMP}, s{sWN}, 1")
    for bl in range(2):
        a(f"s_add_u32 s{sTMP2}, s{sTMP}, {bl}")
        a(f"v_xor_b32 v{vT+5}, s{sTMP2}, v{vT+2}")
        a(f"v_lshl_add_u32 v{vWR+bl}, v{vT+5}, 6, v{vT+3}")
    PF = "k1pf" in OPT
    if PF:
        a(f"s_lshr_b32 s{sTMP}, s2, 3")
        a(f"s_cmp_lt_u32 s{sW}, 6")
        a("s_cbranch_scc0 K1_PFX")
        a(f"s_mul_i32 s{sTMP}, s{sTMP}, 6")
        a(f"s_add_u32 s{sTMP}, s{sTMP}, s{sW}")
        a(f"s_mul_i32 s{sTMP}, s{sTMP}, 11")
        a(f"v_min_u32 v{vT}, 10, v{vLANE}")
        a(f"v_add_u32 v{vT}, s{sTMP}, v{vT}")
        a(f"v_min_u32 v{vT}, 1919, v{vT}")
        a(f"v_mul_u32_u24 v{vT+1}, 34953, v{vT}")
        a(f"v_lshrrev_b32 v{vT+1}, 20, v{vT+1}")
        a(f"v_mul_u32_u24 v{vT+2}, 30, v{vT+1}")
        a(f"v_sub_u32 v{vT+2}, v{vT}, v{vT+2}")
        a(f"v_mul_u32_u24 v{vT+1}, 3840, v{vT+1}")
        a(f"v_lshl_add_u32 v{vPF}, v{vT+2}, 7, v{vT+1}")
        for i in range(4): a(f"s_mov_b32 s{64+i}, s{SW+i}")
        a(f"s_mov_b32 s68, {64*3840}")
        a("s_branch K1_PFD")
        a.lab("K1_PFX")
        a(f"s_lshl_b32 s{sTMP}, s{sTMP}, 1")
        a(f"s_add_u32 s{sTMP}, s{sTMP}, s{sW}")
        a(f"s_sub_u32 s{sTMP}, s{sTMP}, 6")
        a(f"s_mul_i32 s{sTMP}, s{sTMP}, 9")
        a(f"v_min_u32 v{vT}, 8, v{vLANE}")
        a(f"v_add_u32 v{vT}, s{sTMP}, v{vT}")
        a(f"v_min_u32 v{vT}, 511, v{vT}")
        a(f"s_and_b32 s{sTMP}, s2, 3")
        a(f"s_lshl_b32 s{sTMP}, s{sTMP}, 9")
        a(f"v_add_u32 v{vT}, s{sTMP}, v{vT}")
        a(f"v_mul_u32_u24 v{vPF}, 1280, v{vT}")
        for i in range(4): a(f"s_mov_b32 s{64+i}, s{SX+i}")
        a(f"s_mov_b32 s68, 128")
        a.lab("K1_PFD")
        a(f"s_mul_i32 s69, s68, {PF0}")
    def pf_group():
        return [f"buffer_load_dword v{vPF+1}, v{vPF}, s[64:67], s69 offen", f"s_add_u32 s69, s69, s68"]
    a(f"s_mul_i32 s{sSEC}, s{sNT}, 52")
    a(f"s_lshr_b32 s{sSEC}, s{sSEC}, 8")
    a(f"s_mul_i32 s{sTMP}, s{sSEC}, 5")
    a(f"s_sub_u32 s{sFB}, s{sNT}, s{sTMP}")
    a(f"s_lshl_b32 s{sFB}, s{sFB}, 7")
    a(f"s_lshl_b32 s{sTMP}, s{sWN}, 6")
    a(f"s_add_u32 s{sFB}, s{sFB}, s{sTMP}")
    a(f"s_cmp_eq_u32 s{sSEC}, 2")
    a("s_cbranch_scc1 K1_VPREP")
    a(f"s_cmp_eq_u32 s{sSEC}, 0")
    a(f"s_cselect_b32 s{sSC}, {f2u(QSCALE):#x}, 1.0")
    a(f"s_mov_b32 s{sSC+1}, s{sSC}")
    a(f"s_mov_b32 s{sTMP}, {KV_HEAD}")
    a(f"s_cselect_b32 s{sHS}, {Q_HEAD}, s{sTMP}")
    a(f"s_mov_b32 s{sTMP}, {KV_CH}")
    a(f"s_cselect_b32 s{sTMP2}, {Q_CH}, s{sTMP}")
    a(f"s_mul_i32 s{sEO}, s{sMT}, s{sTMP2}")
    a(f"s_mul_i32 s{sTMP2}, s{sBR}, {QB_OFF - QA_OFF}")
    a(f"s_add_u32 s{sTMP2}, s{sTMP2}, {QA_OFF}")
    a(f"s_mul_i32 s{sTMP3}, s{sBR}, {KVB_OFF - KVA_OFF}")
    a(f"s_cmp_eq_u32 s{sSEC}, 0")
    a(f"s_cselect_b32 s{sTMP2}, s{sTMP2}, s{sTMP3}")
    a(f"s_add_u32 s{sEO}, s{sEO}, s{sTMP2}")
    a(f"s_mul_i32 s{sTMP}, s{sWM}, 2560")
    a(f"s_add_u32 s{sEO}, s{sEO}, s{sTMP}")
    a(f"s_lshr_b32 s{sTMP}, s{sFB}, 2")
    a(f"v_lshrrev_b32 v{vT+6}, 5, v{vLANE}")
    a(f"v_add_u32 v{vT+6}, s{sTMP}, v{vT+6}")
    a(f"v_and_b32 v{vT+7}, 31, v{vLANE}")
    a(f"v_lshlrev_b32 v{vT+7}, 3, v{vT+7}")
    a(f"v_mov_b32 v{vT+8}, 0x43120")
    for e in range(8):
        a(f"v_add_u32 v{vT}, {2*e}, v{vT+6}")
        a(f"v_mul_u32_u24 v{vT+1}, 52429, v{vT}")
        a(f"v_lshrrev_b32 v{vT+1}, 18, v{vT+1}")
        a(f"v_mul_u32_u24 v{vT+2}, 5, v{vT+1}")
        a(f"v_sub_u32 v{vT+2}, v{vT}, v{vT+2}")
        a(f"v_lshlrev_b32 v{vT+2}, 2, v{vT+2}")
        a(f"v_bfe_u32 v{vT+2}, v{vT+8}, v{vT+2}, 4")
        a(f"v_lshl_add_u32 v{vT+2}, v{vT+2}, 8, v{vT+7}")
        a(f"v_mad_u32_u24 v{vEO+e}, v{vT+1}, s{sHS}, v{vT+2}")
    a("s_branch K1_T")
    a.lab("K1_VPREP")
    a(f"s_mul_i32 s{sEO}, s{sMT}, {KV_CH}")
    a(f"s_mul_i32 s{sTMP}, s{sBR}, {KVB_OFF - KVA_OFF}")
    a(f"s_add_u32 s{sEO}, s{sEO}, s{sTMP}")
    a(f"s_mul_i32 s{sTMP}, s{sWM}, {4*640}")
    a(f"s_add_u32 s{sEO}, s{sEO}, s{sTMP}")
    a(f"s_add_u32 s{sEO}, s{sEO}, 10240")
    a(f"s_mov_b32 s{sHS}, {KV_HEAD}")
    for bl in range(2):
        a(f"s_add_u32 s{sTMP}, s{sFB}, {32*bl}")
        a(f"v_and_b32 v{vT}, 31, v{vLANE}")
        a(f"v_add_u32 v{vT}, s{sTMP}, v{vT}")
        a(f"v_mul_u32_u24 v{vT+1}, 52429, v{vT}")
        a(f"v_lshrrev_b32 v{vT+1}, 20, v{vT+1}")
        a(f"v_mul_u32_u24 v{vT+2}, 20, v{vT+1}")
        a(f"v_sub_u32 v{vT+2}, v{vT}, v{vT+2}")
        a(f"v_lshrrev_b32 v{vT+3}, 5, v{vLANE}")
        a(f"v_mul_u32_u24 v{vT+3}, 320, v{vT+3}")
        a(f"v_lshl_add_u32 v{vT+3}, v{vT+2}, 4, v{vT+3}")
        a(f"v_mad_u32_u24 v{vEO+bl}, v{vT+1}, s{sHS}, v{vT+3}")
    a("s_branch K1_C")

    def variant(tag):
        a.lab(f"K1_{tag}")
        def reads(st, ph):
            out = []
            if "k1noread" in OPT: return ["s_nop 0"] * 12
            for q in range(2):
                kk = 2 * ph + q
                for j in range(2):
                    r = vXF + st * 16 + (q * 2 + j) * 4
                    out.append(f"ds_read_b128 v[{r}:{r+3}], v{vXA+kk} offset:{j*4096}")
                    r = vWF + st * 16 + (q * 2 + j) * 4
                    out.append(f"ds_read_b64_tr_b16 v[{r}:{r+1}], v{vWA+j} offset:{kk*4096}")
                    out.append(f"ds_read_b64_tr_b16 v[{r+2}:{r+3}], v{vWA+j} offset:{kk*4096+1024}")
            return out
        def mfmas(st, zero=False):
            out = []
            if "k1nomfma" in OPT: return ["s_nop 0"] * 8
            for q in range(2):
                for bl in range(2):
                    for mb in range(2):
                        acc = vACC + (bl * 2 + mb) * 16
                        xf = f"v[{vXF+st*16+(q*2+mb)*4}:{vXF+st*16+(q*2+mb)*4+3}]"
                        wf = f"v[{vWF+st*16+(q*2+bl)*4}:{vWF+st*16+(q*2+bl)*4+3}]"
                        c = "0" if (zero and q == 0) else f"v[{acc}:{acc+15}]"
                        if tag == "T":
                            out.append(f"v_mfma_f32_32x32x16_bf16 v[{acc}:{acc+15}], {wf}, {xf}, {c}")
                        else:
                            out.append(f"v_mfma_f32_32x32x16_bf16 v[{acc}:{acc+15}], {xf}, {wf}, {c}")
            return out
        def setaddr(sreg):
            return [f"v_add_u32 v{vXA+i}, s{sreg}, v{vXR+i}" for i in range(4)] + [f"v_add_u32 v{vWA+i}, s{sreg}, v{vWR+i}" for i in range(2)]
        def weave(mf, extras, upto=None):
            n = upto or len(mf); m = len(extras)
            k = 0
            for i, x in enumerate(mf):
                a(x)
                tgt = min(m, ((i + 1) * m + n - 1) // n)
                while k < tgt:
                    for y in extras[k]: a(y)
                    k += 1
        def mix(rd, dm, tail):
            ex = []
            nd = len(dm)
            for i, r in enumerate(rd):
                ex.append([r])
                if nd == 3 and i % 4 == 3: ex.append(dm[i // 4])
                if nd == 6 and i % 2 == 1: ex.append(dm[i // 2])
            return ex + tail
        def phaseA(zero, dm):
            ring = [[f"s_add_u32 s{sRD}, s{sRD}, {K1_BUF}", f"s_cmp_eq_u32 s{sRD}, {K1_LDS}", f"s_cselect_b32 s{sRD}, 0, s{sRD}"]]
            mf = mfmas(0, zero)
            weave(mf[:7], mix(reads(1, 1), dm, ring), upto=6)
            return mf[7:]
        a(f"s_mov_b32 s{sWRB}, {K1_BUF}")
        for g in dma_list(sWRB):
            for x in g: a(x)
        a(f"s_mov_b32 s{sWRB}, {2*K1_BUF}")
        NP0 = (5 - PF0) if PF else 0
        for i in range(NP0):
            for x in pf_group(): a(x)
        NP = 1 if PF else 0
        stamp(a, 2)
        a(f"s_waitcnt vmcnt({6+NP0})")
        a("s_barrier")
        stamp(a, 3)
        a(f"s_mov_b32 s{sRD}, 0")
        for x in setaddr(sRD): a(x)
        for r in reads(0, 0): a(r)
        a(f"s_mov_b32 s{sI}, 0")
        adv = [f"s_add_u32 s{sWRB}, s{sWRB}, {K1_BUF}", f"s_cmp_eq_u32 s{sWRB}, {K1_LDS}", f"s_cselect_b32 s{sWRB}, 0, s{sWRB}"]
        a("s_waitcnt lgkmcnt(0)")
        last = phaseA(True, dma_list(sWRB, True))
        for x in last: a(x)
        a(f"s_waitcnt vmcnt({6+NP0}) lgkmcnt(0)")
        a(f"s_branch K1_{tag}_WB")
        a.lab(f"K1_{tag}_LOOP")
        a("s_waitcnt lgkmcnt(0)")
        a(f"s_cmp_ge_u32 s{sI}, 8")
        a(f"s_cbranch_scc1 K1_{tag}_AND")
        last = phaseA(False, [] if "k1allc" in OPT else dma_list(sWRB, True)[3:])
        for x in last: a(x)
        a.lab(f"K1_{tag}_B")
        a(f"s_waitcnt vmcnt({6+NP}) lgkmcnt(0)")
        a.lab(f"K1_{tag}_WB")
        if "k1stamp" in OPT:
            a("s_memtime s[78:79]")
        if "k1nobar" not in OPT: a("s_barrier")
        if "k1stamp" in OPT:
            a("s_memtime s[74:75]")
            a("s_waitcnt lgkmcnt(0)")
            a(f"s_mov_b32 s79, m0")
            a(f"s_mov_b32 m0, s{sI}")
            a("s_nop 0")
            a(f"v_writelane_b32 v179, s74, m0")
            a(f"s_add_u32 m0, m0, 16")
            a("s_nop 0")
            a(f"v_writelane_b32 v179, s78, m0")
            a(f"s_mov_b32 m0, s79")
        mf = mfmas(1)
        a(mf[0])
        for x in setaddr(sRD): a(x)
        for x in adv: a(x)
        rd = reads(0, 0)
        a(f"s_cmp_ge_u32 s{sI}, 7")
        a(f"s_cbranch_scc1 K1_{tag}_ND")
        cnt = [[f"s_add_u32 s{sI}, s{sI}, 1"]]
        weave(mf[1:], mix(rd, dma_list(sWRB, True)[:3], ([pf_group()] if PF else []) + cnt), upto=6)
        a(f"s_branch K1_{tag}_LOOP")
        a.lab(f"K1_{tag}_ND")
        weave(mf[1:], mix(rd, [], cnt), upto=6)
        a(f"s_cmp_lt_u32 s{sI}, 10")
        a(f"s_cbranch_scc1 K1_{tag}_LOOP")
        stamp(a, 4)
        a("s_nop 7")
        a("s_nop 3")
        n = 0
        for bl in range(2):
            for mb in range(2):
                acc = vACC + (bl * 2 + mb) * 16
                if tag == "T":
                    for i in range(4):
                        q = acc + 4 * i
                        t = vXF + (n % 16) * 2; n += 1
                        a(f"v_pk_mul_f32 v[{q}:{q+1}], v[{q}:{q+1}], s[{sSC}:{sSC+1}]")
                        a(f"v_pk_mul_f32 v[{q+2}:{q+3}], v[{q+2}:{q+3}], s[{sSC}:{sSC+1}]")
                        a(f"v_cvt_pk_bf16_f32 v{t}, v{q}, v{q+1}")
                        a(f"v_cvt_pk_bf16_f32 v{t+1}, v{q+2}, v{q+3}")
                        a(f"buffer_store_dwordx2 v[{t}:{t+1}], v{vEO + 4*bl + i}, s[{SWS}:{SWS+3}], s{sEO} offen offset:{mb*1280}{STORE_FLAGS}")
                else:
                    for g2 in range(2):
                        q = acc + 8 * g2
                        t = vXF + (n % 8) * 4; n += 1
                        for i in range(4):
                            a(f"v_cvt_pk_bf16_f32 v{t+i}, v{q+2*i}, v{q+2*i+1}")
                        a(f"buffer_store_dwordx4 v[{t}:{t+3}], v{vEO+bl}, s[{SWS}:{SWS+3}], s{sEO} offen offset:{(2*mb+g2)*640}{STORE_FLAGS}")
        a("s_branch K1_FIN")
        a.lab(f"K1_{tag}_AND")
        last = phaseA(False, [])
        for x in last: a(x)
        a("s_waitcnt vmcnt(0) lgkmcnt(0)")
        a(f"s_branch K1_{tag}_WB")
    variant("T")
    variant("C")

    GPF0 = optval("gpf0", 3)
    a.lab("K1_GATE")
    a("s_waitcnt lgkmcnt(0)")
    srd(a, SX, 8, 9, 2048 * 1280)
    srd(a, SG, 6, 7, 1280)
    srd(a, SWS, 4, 5, WS_USED)
    TS = optval("tlbin", 0)
    if TS:
        srd(a, SW, 10, 11, 640 * 3840)
        sh = {4: 12, 16: 14, 64: 16}[TS]
        a(f"s_lshr_b32 s{sTMP}, s2, 3")
        a(f"s_and_b32 s{sTMP}, s{sTMP}, 1")
        a(f"s_lshl_b32 s{sTMP}, s{sTMP}, 3")
        a(f"s_add_u32 s{sTMP}, s{sTMP}, s{sW}")
        a(f"s_lshl_b32 s{sTMP}, s{sTMP}, 6")
        a(f"v_add_u32 v{vT+1}, s{sTMP}, v{vLANE}")
        a(f"v_lshlrev_b32 v{vT+1}, {sh}, v{vT+1}")
        n = max(1, -(-2621440 // ((1024) << sh)))
        for i in range(n):
            a(f"s_mov_b32 s{sTMP2}, {i * (1024 << sh)}")
            a(f"buffer_load_dword v{vPF}, v{vT+1}, s[{SW}:{SW+3}], s{sTMP2} offen")
            a(f"buffer_load_dword v{vPF+1}, v{vT+1}, s[{SX}:{SX+3}], s{sTMP2} offen")
    if "gpf" in OPT:
        srd(a, SW, 10, 11, 640 * 3840)
        a(f"s_lshr_b32 s{sTMP}, s2, 3")
        a(f"s_and_b32 s{sTMP}, s{sTMP}, 1")
        a(f"v_cmp_le_u32 vcc, 30, v{vLANE}")
        a(f"v_mov_b32 v{vT+1}, 0")
        a(f"v_mov_b32 v{vT+2}, {3840 - 30*128}")
        a(f"v_cndmask_b32 v{vT+1}, v{vT+1}, v{vT+2}, vcc")
        a(f"v_min_u32 v{vT+2}, 59, v{vLANE}")
        a(f"v_lshl_add_u32 v{vT+1}, v{vT+2}, 7, v{vT+1}")
        a(f"s_lshl_b32 s{sTMP2}, s{sTMP}, 5")
        a(f"s_lshl_b32 s{sTMP3}, s{sW}, 2")
        a(f"s_add_u32 s{sTMP2}, s{sTMP2}, s{sTMP3}")
        a(f"s_add_u32 s{sTMP2}, s{sTMP2}, {64*GPF0}")
        a(f"s_mul_i32 s{sTMP2}, s{sTMP2}, 3840")
        a(f"s_and_b32 s{sTMP3}, s2, 3")
        a(f"s_lshl_b32 s{sTMP3}, s{sTMP3}, 9")
        a(f"s_lshl_b32 s{sTMP}, s{sTMP}, 8")
        a(f"s_add_u32 s{sTMP3}, s{sTMP3}, s{sTMP}")
        a(f"s_and_b32 s{sTMP}, s{sW}, 3")
        a(f"s_lshl_b32 s{sTMP}, s{sTMP}, 6")
        a(f"s_add_u32 s{sTMP3}, s{sTMP3}, s{sTMP}")
        a(f"v_add_u32 v{vT+2}, s{sTMP3}, v{vLANE}")
        a(f"v_mul_u32_u24 v{vT+2}, 1280, v{vT+2}")
        a(f"s_mov_b32 s{sTMP3}, {128*GPF0}")
        for st in range(GPF0, 10):
            a(f"buffer_load_dword v{vPF}, v{vT+1}, s[{SW}:{SW+3}], s{sTMP2} offen")
            a(f"s_add_u32 s{sTMP}, s{sTMP2}, {2*3840}")
            a(f"buffer_load_dword v{vPF+1}, v{vT+1}, s[{SW}:{SW+3}], s{sTMP} offen")
            a(f"buffer_load_dword v{vPF+2}, v{vT+2}, s[{SX}:{SX+3}], s{sTMP3} offen")
            a(f"s_add_u32 s{sTMP2}, s{sTMP2}, {64*3840}")
            a(f"s_add_u32 s{sTMP3}, s{sTMP3}, 128")
    if "notlb" not in OPT:
        a(f"v_lshlrev_b32 v{vT+1}, 16, v{vLANE}")
        a(f"s_lshl_b32 s{sTMP}, s{sW}, 22")
        a(f"s_cmp_lt_u32 s{sW}, 6")
        a(f"s_cbranch_scc0 K1_NOTLB")
        a(f"buffer_load_dword v{vPF}, v{vT+1}, s[{SWS}:{SWS+3}], s{sTMP} offen")
        a.lab("K1_NOTLB")
    if "nocodepf" not in OPT:
        a(f"s_getpc_b64 s[78:79]")
        a.lab("K1_PC")
        a(f"s_add_u32 s78, s78, k2_attn_kernel-K1_PC")
        a(f"s_addc_u32 s79, s79, 0")
        a(f"v_lshlrev_b32 v{vT+1}, 7, v{vLANE}")
        a(f"s_lshl_b32 s{sTMP}, s{sW}, 13")
        a(f"v_add_u32 v{vT+1}, s{sTMP}, v{vT+1}")
        a(f"s_cmp_ge_u32 s{sW}, K2CODE_WAVES")
        a("s_cbranch_scc1 K1_NOCPF")
        a(f"global_load_dword v{vPF+2}, v{vT+1}, s[78:79]")
        a.lab("K1_NOCPF")
    a(f"s_cmp_lg_u32 s2, 240")
    a("s_cbranch_scc1 K1_NOZ")
    a(f"s_cmp_ge_u32 s{sW}, 4")
    a("s_cbranch_scc1 K1_NOZ")
    a(f"v_lshlrev_b32 v{vT+1}, 7, v{vLANE}")
    a(f"v_mov_b32 v{vT+2}, 0")
    a(f"s_lshl_b32 s{sTMP}, s{sW}, 13")
    a(f"s_add_u32 s{sTMP}, s{sTMP}, {FL_OFF}")
    a(f"buffer_store_dword v{vT+2}, v{vT+1}, s[{SWS}:{SWS+3}], s{sTMP} offen")
    a.lab("K1_NOZ")
    a(f"s_sub_u32 s{sTMP}, s2, 240")
    a(f"s_lshl_b32 s{sTMP}, s{sTMP}, 3")
    a(f"s_add_u32 s{sTMP}, s{sTMP}, s{sW}")
    a(f"s_cmp_ge_u32 s{sTMP}, 120")
    a("s_cbranch_scc1 K1_GATE2")
    a(f"s_mul_i32 s{sTMP2}, s{sTMP}, 171")
    a(f"s_lshr_b32 s{sTMP2}, s{sTMP2}, 9")
    a(f"s_mul_i32 s{sTMP3}, s{sTMP2}, 3")
    a(f"s_sub_u32 s{sTMP3}, s{sTMP}, s{sTMP3}")
    a("s_load_dwordx2 s[58:59], s[0:1], 16")
    a("s_load_dwordx2 s[70:71], s[0:1], 40")
    a(f"s_mul_i32 s{sD}, s{sTMP3}, 448")
    a(f"v_lshrrev_b32 v{vT+1}, 5, v{vLANE}")
    a(f"v_mul_u32_u24 v{vT+1}, 1280, v{vT+1}")
    a(f"v_and_b32 v{vT+2}, 31, v{vLANE}")
    a(f"v_lshl_add_u32 v{vT+1}, v{vT+2}, 4, v{vT+1}")
    a(f"v_add_u32 v{vT+1}, s{sD}, v{vT+1}")
    a(f"s_lshl_b32 s{sEO}, s{sW}, 14")
    a("s_waitcnt lgkmcnt(0)")
    srd(a, 60, 58, 59, 640 * 1280)
    srd(a, 64, 70, 71, 640 * 1280)
    for g in range(4):
        a(f"s_lshl_b32 s72, s{sTMP2}, 2")
        a(f"s_add_u32 s72, s72, {g}")
        a(f"s_mul_i32 s73, s72, 205")
        a(f"s_lshr_b32 s73, s73, 10")
        a(f"s_mul_i32 s74, s73, 5")
        a(f"s_sub_u32 s74, s72, s74")
        a(f"s_mul_i32 s73, s73, 20")
        for quad in range(2):
            a(f"s_and_b32 s76, s74, 1")
            a(f"s_lshl_b32 s76, s76, 3")
            a(f"s_add_u32 s76, s76, {4*quad}")
            a(f"s_lshr_b32 s77, s74, 1")
            a(f"s_cmp_eq_u32 s74, 4")
            a(f"s_cselect_b32 s76, 16, s76")
            a(f"s_cselect_b32 s77, {quad}, s77")
            a(f"s_add_u32 s76, s76, s73")
            a(f"s_mul_i32 s76, s76, 1280")
            a(f"s_cmp_eq_u32 s77, 0")
            a(f"s_cbranch_scc0 K1_WB{g}{quad}")
            for r2 in range(2):
                a(f"s_add_u32 m0, s{sEO}, {(g*4 + quad*2 + r2)*1024}")
                a(f"s_add_u32 s{sD}, s76, {r2*2*1280}")
                a(f"buffer_load_dwordx4 v{vT+1}, s[60:63], s{sD} offen lds")
            a(f"s_branch K1_WD{g}{quad}")
            a.lab(f"K1_WB{g}{quad}")
            for r2 in range(2):
                a(f"s_add_u32 m0, s{sEO}, {(g*4 + quad*2 + r2)*1024}")
                a(f"s_add_u32 s{sD}, s76, {r2*2*1280}")
                a(f"buffer_load_dwordx4 v{vT+1}, s[64:67], s{sD} offen lds")
            a.lab(f"K1_WD{g}{quad}")
    a(f"v_lshrrev_b32 v{vT+2}, 4, v{vLANE}")
    a(f"v_bfe_u32 v{vT+3}, v{vLANE}, 2, 2")
    a(f"v_lshl_add_u32 v{vT+2}, v{vT+2}, 3, v{vT+3}")
    a(f"v_lshlrev_b32 v{vT+2}, 9, v{vT+2}")
    a(f"v_and_b32 v{vT+3}, 3, v{vLANE}")
    a(f"v_lshl_add_u32 v{vT+2}, v{vT+3}, 3, v{vT+2}")
    a(f"v_add_u32 v{vT+2}, s{sEO}, v{vT+2}")
    a(f"v_lshlrev_b32 v{vT+3}, 4, v{vLANE}")
    a("s_waitcnt vmcnt(0)")
    for j in range(14):
        a(f"ds_read_b64_tr_b16 v[{vXF+4*j}:{vXF+4*j+1}], v{vT+2} offset:{j*32}")
        a(f"ds_read_b64_tr_b16 v[{vXF+4*j+2}:{vXF+4*j+3}], v{vT+2} offset:{j*32+2048}")
    a(f"s_mul_i32 s{sTMP3}, s{sTMP3}, 14")
    a("s_waitcnt lgkmcnt(0)")
    for j in range(14):
        a(f"s_add_u32 s{sTMP4}, s{sTMP3}, {j}")
        a(f"s_cmp_ge_u32 s{sTMP4}, 40")
        a("s_cbranch_scc1 K1_GATE2")
        a(f"s_mul_i32 s{sD}, s{sTMP4}, 52")
        a(f"s_lshr_b32 s{sD}, s{sD}, 8")
        a(f"s_mul_i32 s{sEO}, s{sD}, 5")
        a(f"s_sub_u32 s{sEO}, s{sTMP4}, s{sEO}")
        a(f"s_mul_i32 s{sD}, s{sD}, 40")
        a(f"s_add_u32 s{sD}, s{sD}, s{sTMP2}")
        a(f"s_mul_i32 s{sD}, s{sD}, 5")
        a(f"s_add_u32 s{sD}, s{sD}, s{sEO}")
        a(f"s_lshl_b32 s{sD}, s{sD}, 10")
        a(f"s_add_u32 s{sD}, s{sD}, {WT_OFF}")
        a(f"buffer_store_dwordx4 v[{vXF+4*j}:{vXF+4*j+3}], v{vT+3}, s[{SWS}:{SWS+3}], s{sD} offen")
    a.lab("K1_GATE2")
    a("s_nop 1")
    a(f"s_sub_u32 s{sTMP}, s2, 240")
    a(f"s_lshl_b32 s{sTMP}, s{sTMP}, 7")
    a(f"s_lshl_b32 s{sTMP2}, s{sW}, 4")
    a(f"s_add_u32 s{sI}, s{sTMP}, s{sTMP2}")
    a(f"v_lshlrev_b32 v{vT}, 2, v{vLANE}")
    for j in range(5):
        a(f"buffer_load_dword v{vT+7+j}, v{vT}, s[{SG}:{SG+3}], 0 offen offset:{j*256}")
    a(f"s_mul_i32 s{sTMP4}, s{sI}, 1280")
    for r in range(16):
        for j in range(5):
            a(f"buffer_load_dword v{vXF+r*5+j}, v{vT}, s[{SX}:{SX+3}], s{sTMP4} offen offset:{j*256}")
        a(f"s_add_u32 s{sTMP4}, s{sTMP4}, 1280")
        if r == 9: a("s_waitcnt vmcnt(20)")
    a("s_waitcnt vmcnt(0)")
    gw = vT + 7
    for j in range(5):
        a(f"v_lshlrev_b32 v{vT+2+j}, 16, v{gw+j}")
        a(f"v_and_b32 v{gw+j}, 0xffff0000, v{gw+j}")
    vG = 112
    for r in range(16):
        a(f"v_mov_b32 v{vG+r}, 0")
        for j in range(5):
            x = vXF + r * 5 + j
            a(f"v_lshlrev_b32 v{vT}, 16, v{x}")
            a(f"v_and_b32 v{x}, 0xffff0000, v{x}")
            a(f"v_fmac_f32 v{vG+r}, v{vT}, v{vT+2+j}")
            a(f"v_fmac_f32 v{vG+r}, v{x}, v{gw+j}")
    for rr in (8, 4, 2, 1):
        a("s_nop 1")
        for r in range(16):
            a(f"v_add_f32_dpp v{vG+r}, v{vG+r}, v{vG+r} row_ror:{rr} row_mask:0xf bank_mask:0xf")
    for r in range(16):
        a(f"v_mov_b32 v{vG+16+r}, v{vG+r}")
    a("s_nop 1")
    for r in range(16):
        a(f"v_permlane32_swap_b32 v{vG+r}, v{vG+16+r}")
    a("s_nop 1")
    for r in range(16):
        a(f"v_add_f32 v{vG+r}, v{vG+r}, v{vG+16+r}")
        a(f"v_mov_b32 v{vG+16+r}, v{vG+r}")
    a("s_nop 1")
    for r in range(16):
        a(f"v_permlane16_swap_b32 v{vG+r}, v{vG+16+r}")
    a("s_nop 1")
    for r in range(16):
        a(f"v_add_f32 v{vG+r}, v{vG+r}, v{vG+16+r}")
    a(f"v_and_b32 v{vT}, 15, v{vLANE}")
    a(f"v_mov_b32 v{vT+1}, v{vG}")
    for r in range(1, 16):
        a(f"v_cmp_eq_u32 vcc, {r}, v{vT}")
        a("s_nop 1")
        a(f"v_cndmask_b32 v{vT+1}, v{vT+1}, v{vG+r}, vcc")
    a(f"v_mul_f32 v{vT+1}, {f2u(-1.4426950408889634):#x}, v{vT+1}")
    a(f"v_exp_f32 v{vT+1}, v{vT+1}")
    a("s_nop 0")
    a(f"v_add_f32 v{vT+1}, 1.0, v{vT+1}")
    a(f"v_rcp_f32 v{vT+1}, v{vT+1}")
    a(f"s_lshl_b32 s{sTMP}, s{sI}, 2")
    a(f"s_add_u32 s{sTMP}, s{sTMP}, {G_OFF}")
    a(f"v_lshlrev_b32 v{vT}, 2, v{vT}")
    a("s_mov_b64 exec, 0xffff")
    a(f"buffer_store_dword v{vT+1}, v{vT}, s[{SWS}:{SWS+3}], s{sTMP} offen")
    a("s_branch K1_END")
    a.lab("K1_FIN")
    if "k1stamp" in OPT:
        a(f"s_lshl_b32 s97, s2, 3")
        a(f"s_add_u32 s97, s97, s{sW}")
        a(f"s_lshl_b32 s97, s97, 7")
        a(f"s_add_u32 s97, s97, {PROF_OFF + 3 * 0x100000}")
        a(f"v_lshlrev_b32 v{vT}, 2, v{vLANE}")
        a("s_mov_b64 exec, 0xffffffff")
        a(f"buffer_store_dword v179, v{vT}, s[{SWS}:{SWS+3}], s97 offen")
        a("s_mov_b64 exec, -1")
    stamp(a, 5)
    if PROF: a("s_waitcnt vmcnt(0)")
    stamp(a, 6)
    stamp_flush(a, 0, 7, SWS, sW, vT)
    a.lab("K1_END")
    a("s_endpgm")
    return name, NV

K2_LDS = 163840
NEGBIG = -1.0e30

def mask_table():
    vals = []
    for j in range(6):
        for l in range(64):
            c = l & 31; h = l >> 5
            for i in range(4):
                if j < 4:
                    r = j * 4 + i
                    row = (r & 3) + 8 * (r >> 2) + 4 * h
                    diff = c + 16 - row
                else:
                    r = (j - 4) * 4 + i
                    row = (r & 3) + 8 * (r >> 2) + 4 * h
                    diff = c - 16 - row
                ok = 0 <= diff <= 14 and diff % 2 == 0
                vals.append(0 if ok else f2u(NEGBIG))
    return vals

K2_PRIO_TILE = 5
def gen_k2(a):
    FUSE = "nofuse" not in OPT
    name = "k2_attn_kernel"
    kernel_head(a, name)
    SWS = 8
    sW = 12; sHEAD = 13; sQB = 14; sS0 = 15; sT0 = 16; sT1 = 17; sT2 = 18; sT3 = 19
    sC = 20; sPASS = 21; sVM = 22
    sLO = 24
    sGRP = 26; sPR = 27
    sDS = 28; sDG = 29
    sAV = 30
    sQA = 33; sGO = 35
    sDO = 44
    sWL = 49; sWS = 58; sWS0 = 59; sWC = 66; sFAIL = 67
    vLANE = 1; vL16 = 2; vK8 = 3; vVA = 4; vKe = 5; vKo = 6; vK4c = 7
    vT = 8
    vGATE = 16; vVc = 17
    vAKO = 18
    vPFA = 22; vQO = 23
    vQ16 = [24, 28]; vQ8 = [32, 34]
    vQA16 = 36; vQA8 = 40
    vKA = 44; vKB = 52; vV1 = 56; vV2 = 64; vP = 72
    S = [84, 100]; NEG = [116, 132]; O = [148, 164]
    vAK = 180; vAV = 192; vMX = 204; vMY = 220
    vOB = 236; vDUM = 244; vOSA = 245
    NV = 248
    ONES = 0x3f803f80
    vS0, vS1 = S

    a("s_cmp_ge_u32 s2, 256")
    a("s_cbranch_scc1 K2_END")
    stamp(a, 0)
    a("s_load_dwordx2 s[4:5], s[0:1], 72")
    if FUSE:
        a("s_load_dwordx2 s[60:61], s[0:1], 56")
    a(f"v_and_b32 v{vLANE}, 63, v0")
    a(f"v_lshrrev_b32 v{vT}, 6, v0")
    a(f"s_and_b32 s{sHEAD}, s2, 7")
    a(f"v_readfirstlane_b32 s{sW}, v{vT}")
    a(f"s_lshl_b32 s{sHEAD}, s{sHEAD}, 2")
    a(f"s_lshr_b32 s{sT0}, s2, 6")
    a(f"s_add_u32 s{sHEAD}, s{sHEAD}, s{sT0}")
    a(f"s_lshr_b32 s{sQB}, s2, 3")
    a(f"s_and_b32 s{sQB}, s{sQB}, 7")
    a(f"v_lshlrev_b32 v{vL16}, 4, v{vLANE}")
    a(f"v_and_b32 v{vT}, 31, v{vLANE}")
    a(f"v_lshlrev_b32 v{vK8}, 3, v{vT}")
    a(f"v_lshrrev_b32 v{vT+1}, 5, v{vLANE}")
    a(f"v_lshl_add_u32 v{vQO}, v{vT+1}, 8, v{vK8}")
    a(f"s_lshr_b32 s{sGRP}, s{sW}, 2")
    a(f"s_and_b32 s{sPR}, s{sW}, 3")
    a(f"s_mul_i32 s{sDS}, s{sHEAD}, {KV_HEAD}")
    a(f"s_add_u32 s{sDS}, s{sDS}, {KVB_OFF}")
    for j in range(5):
        a(f"s_add_u32 s{sT0}, s{sW}, {8*j}")
        a(f"s_lshl_b32 s{sDO+j}, s{sT0}, 10")
        a(f"s_cmp_ge_u32 s{sT0}, 20")
        a(f"s_cselect_b32 s{sT1}, {4*KV_CH - 20*1024}, 0")
        a(f"s_add_u32 s{sDO+j}, s{sDO+j}, s{sT1}")
    a(f"s_mul_i32 s{sQA}, s{sHEAD}, {Q_HEAD}")
    a(f"s_lshl_b32 s{sT1}, s{sQB}, 3")
    a(f"s_lshl_b32 s{sT2}, s{sPR}, 1")
    a(f"s_add_u32 s{sT1}, s{sT1}, s{sT2}")
    a(f"s_mul_i32 s{sT1}, s{sT1}, 1280")
    a(f"s_add_u32 s{sQA}, s{sQA}, s{sT1}")
    a(f"s_add_u32 s{sT0}, s{sQA}, {QB_OFF}")
    a(f"s_mov_b32 s{sDG}, 0")
    a("s_waitcnt lgkmcnt(0)")
    srd(a, SWS, 4, 5, WS_USED)
    def dma1(j):
        return [f"s_add_u32 m0, s{sDO+j}, s{sDG}",
                f"s_add_u32 s{sT3}, m0, s{sDS}",
                f"buffer_load_dwordx4 v{vL16}, s[{SWS}:{SWS+3}], s{sT3} offen lds"]
    def qloads(q16, q8, sreg, off):
        return [f"buffer_load_dwordx2 v[{q16}:{q16+1}], v{vQO}, s[{SWS}:{SWS+3}], s{sreg} offen offset:{off}",
                f"buffer_load_dwordx2 v[{q16+2}:{q16+3}], v{vQO}, s[{SWS}:{SWS+3}], s{sreg} offen offset:{off+512}",
                f"buffer_load_dwordx2 v[{q8}:{q8+1}], v{vK8}, s[{SWS}:{SWS+3}], s{sreg} offen offset:{off+1024}"]
    for j in range(5):
        for x in dma1(j): a(x)
    for sg in range(2):
        for x in qloads(vQ16[sg], vQ8[sg], sT0, sg * 1280): a(x)
    a(f"s_add_u32 s{sDG}, s{sDG}, {KV_CH}")
    stamp(a, 1)
    a(f"s_mov_b32 s{sVM}, 0x000fffff")
    a(f"s_mov_b32 s{sVM+1}, 0x000fffff")
    a(f"s_mov_b32 s{sLO}, -1")
    a(f"s_mov_b32 s{sLO+1}, 0")
    a(f"v_and_b32 v{vT}, 31, v{vLANE}")
    a(f"v_lshrrev_b32 v{vT+1}, 5, v{vLANE}")
    a(f"v_mul_u32_u24 v{vVA}, 20, v{vT+1}")
    a(f"v_add_u32 v{vVA}, v{vVA}, v{vT}")
    a(f"v_lshlrev_b32 v{vVA}, 4, v{vVA}")
    for sg in range(2):
        for i in range(0, 16, 2):
            a(f"v_mov_b64 v[{O[sg]+i}:{O[sg]+i+1}], 0")
    a(f"v_mov_b64 v[{vP+4}:{vP+5}], 0")
    a(f"v_mov_b64 v[{vP+6}:{vP+7}], 0")
    a(f"s_lshl_b32 s{sS0}, s{sQB}, 8")
    a(f"s_lshl_b32 s{sT0}, s{sPR}, 6")
    a(f"s_add_u32 s{sS0}, s{sS0}, s{sT0}")
    a(f"s_lshl_b32 s{sT0}, s{sGRP}, 5")
    a(f"s_add_u32 s{sS0}, s{sS0}, s{sT0}")
    a(f"s_mul_i32 s{sT0}, s{sGRP}, 1280")
    a(f"s_add_u32 s{sQA}, s{sQA}, s{sT0}")
    a(f"s_add_u32 s{sQA}, s{sQA}, {QA_OFF}")
    a(f"s_lshl_b32 s{sT0}, s{sHEAD}, 6")
    a(f"s_lshr_b32 s{sT1}, s{sS0}, 5")
    a(f"s_add_u32 s{sT0}, s{sT0}, s{sT1}")
    for k, dT in enumerate((-1, 0, 1)):
        a(f"s_add_i32 s{sT1}, s{sT0}, {dT}")
        a(f"s_ashr_i32 s{sT2}, s{sT1}, 3")
        a(f"s_mul_i32 s{sT2}, s{sT2}, {KV_CH}")
        a(f"s_and_b32 s{sT1}, s{sT1}, 7")
        a(f"s_mul_i32 s{sT1}, s{sT1}, 1280")
        a(f"s_add_u32 s{50+k}, s{sT1}, s{sT2}")
    a(f"s_add_u32 s50, s50, 128")
    a(f"s_sub_u32 s53, s51, 128")
    a(f"s_add_u32 s51, s51, 128")
    a(f"s_sub_u32 s52, s52, 128")
    a(f"s_mov_b32 s54, 0xffff")
    a(f"s_mov_b32 s55, 0xffff")
    a(f"v_add_u32 v{vAKO+1}, s53, v{vK8}")
    a(f"v_add_u32 v{vAKO+3}, s52, v{vK8}")
    a(f"s_mov_b64 exec, s[54:55]")
    a(f"v_add_u32 v{vAKO+1}, s50, v{vK8}")
    a(f"v_add_u32 v{vAKO+3}, s51, v{vK8}")
    a("s_mov_b64 exec, -1")
    a(f"v_sub_u32 v{vT+7}, v{vQO}, v{vK8}")
    a(f"v_add_u32 v{vAKO}, v{vAKO+1}, v{vT+7}")
    a(f"v_add_u32 v{vAKO+2}, v{vAKO+3}, v{vT+7}")
    a(f"s_lshl_b32 s{sT0}, s{sHEAD}, 7")
    a(f"s_lshr_b32 s{sT1}, s{sS0}, 4")
    a(f"s_add_u32 s{sT0}, s{sT0}, s{sT1}")
    for j in range(3):
        a(f"s_add_i32 s{sT1}, s{sT0}, {j-1}")
        a(f"s_max_i32 s{sT1}, s{sT1}, 0")
        a(f"s_lshr_b32 s{sT2}, s{sT1}, 4")
        a(f"s_mul_i32 s{sT2}, s{sT2}, {KV_CH}")
        a(f"s_and_b32 s{sT1}, s{sT1}, 15")
        a(f"s_mul_i32 s{sT1}, s{sT1}, 640")
        a(f"s_add_u32 s{sT1}, s{sT1}, s{sT2}")
        a(f"s_add_u32 s{sAV+j}, s{sT1}, 10240")
    a(f"s_lshl_b32 s{sGO}, s{sS0}, 2")
    a(f"s_add_u32 s{sGO}, s{sGO}, {G_OFF}")
    a(f"v_mov_b32 v{vT+2}, 0")
    a(f"v_mov_b32 v{vT+3}, {ONES:#x}")
    if "vones" in OPT:
        a(f"v_mov_b32 v{vT+2}, {ONES:#x}")
    else:
        a(f"v_and_b32 v{vT+4}, 27, v{vT}")
        a.l.pop()
        a(f"v_cmp_eq_u32 vcc, 20, v{vT}")
        a(f"v_cmp_eq_u32 s[38:39], 24, v{vT}")
        a("s_nop 1")
        a("s_or_b64 vcc, vcc, s[38:39]")
        a("s_nop 1")
        a(f"v_cndmask_b32 v{vT+2}, v{vT+2}, v{vT+3}, vcc")
    a(f"v_mov_b32 v{vT+3}, v{vT+2}")
    for i in range(0, 12, 2):
        a(f"v_mov_b64 v[{vAV+i}:{vAV+i+1}], v[{vT+2}:{vT+3}]")
    for i in range(0, 16, 2):
        a(f"v_mov_b64 v[{vV1+i}:{vV1+i+1}], v[{vT+2}:{vT+3}]")
    a(f"s_lshr_b32 s{sT0}, s{sS0}, 4")
    a(f"s_mul_i32 s{sT0}, s{sT0}, {40*1024}")
    a(f"s_mul_i32 s{sT1}, s{sHEAD}, {5*256}")
    a(f"s_add_u32 s{sT0}, s{sT0}, s{sT1}")
    a(f"v_bfe_u32 v{vT+2}, v{vLANE}, 4, 1")
    a(f"v_mul_u32_u24 v{vT+2}, {40*1024}, v{vT+2}")
    a(f"v_and_b32 v{vT+3}, 15, v{vLANE}")
    a(f"v_lshl_add_u32 v{vT+3}, v{vT+3}, 4, v{vT+2}")
    a(f"v_lshrrev_b32 v{vT+2}, 5, v{vLANE}")
    a(f"v_lshl_add_u32 v{vT+3}, v{vT+2}, 8, v{vT+3}")
    a(f"v_add_u32 v{vOSA}, s{sT0}, v{vT+3}")
    a(f"s_getpc_b64 s[56:57]")
    a.lab("K2_PC")
    a(f"s_add_u32 s56, s56, K2_TABLE-K2_PC")
    a(f"s_addc_u32 s57, s57, 0")
    if not FUSE:
        a("s_lshr_b32 s36, s2, 3")
        a("s_lshl_b32 s36, s36, 3")
        a(f"s_add_u32 s36, s36, s{sW}")
        a("s_mul_i32 s36, s36, 50")
        a(f"v_min_u32 v{vPFA}, 49, v{vLANE}")
        a(f"v_add_u32 v{vPFA}, s36, v{vPFA}")
        a(f"v_lshlrev_b32 v{vPFA}, 7, v{vPFA}")
        a(f"v_add_u32 v{vPFA}, {WT_OFF}, v{vPFA}")
    if FUSE:
        a(f"s_mov_b32 s64, s{sHEAD}")
        a(f"s_mov_b32 s65, s{sQB}")
        a(f"s_mul_i32 s{sWS0}, s65, {200*1024}")
        a(f"s_lshl_b32 s{sT0}, s{sW}, 10")
        a(f"s_add_u32 s{sWS0}, s{sWS0}, s{sT0}")
        a(f"s_add_u32 s{sWS0}, s{sWS0}, {WT_OFF}")
        a(f"s_mov_b32 s{sWS}, s{sWS0}")
        a(f"s_mov_b32 s{sWL}, 0")
        a(f"s_mov_b32 s{sWC}, 2")
    a(f"s_mov_b32 s{sPASS}, 0")
    a(f"s_mul_i32 s37, s{sGRP}, {4*KV_CH}")
    stamp(a, 2)
    a("s_waitcnt vmcnt(0)")
    a(f"s_mov_b64 exec, s[{sLO}:{sLO+1}]")
    a(f"s_not_b64 exec, exec")
    for sg in range(2):
        a(f"v_mov_b32 v{vQ8[sg]}, 0")
        a(f"v_mov_b32 v{vQ8[sg]+1}, 0")
    a("s_mov_b64 exec, -1")
    a("s_barrier")
    stamp(a, 3)
    def rdK16(dst, rel_chunk, tt):
        base = vKe if tt % 2 == 0 else vKo
        o0 = rel_chunk * 40 + (tt >> 1) * 5
        return f"ds_read2st64_b64 v[{dst}:{dst+3}], v{base} offset0:{o0} offset1:{o0+1}"
    def rdK4(dst, rel_chunk, tt):
        return f"ds_read_b64 v[{dst}:{dst+1}], v{vK4c} offset:{rel_chunk*KV_CH + tt*1280 + 1024}"
    def voff(g):
        return (g // 16) * KV_CH + (g % 16) * 640
    def setbases():
        a(f"v_add_u32 v{vKe}, s37, v{vQO}")
        a(f"v_add_u32 v{vKo}, 1280, v{vKe}")
        a(f"v_add_u32 v{vK4c}, s37, v{vK8}")
        a(f"v_add_u32 v{vVc}, s37, v{vVA}")
        a(f"v_add_u32 v{vVc}, 10240, v{vVc}")
    def qk(dst, ka, kb, sg, c):
        return [f"v_mfma_f32_32x32x16_bf16 v[{dst}:{dst+15}], v[{ka}:{ka+3}], v[{vQ16[sg]}:{vQ16[sg]+3}], {c}",
                f"v_mfma_f32_32x32x8_bf16 v[{dst}:{dst+15}], v[{kb}:{kb+1}], v[{vQ8[sg]}:{vQ8[sg]+1}], v[{dst}:{dst+15}]"]
    def rowmax(m, regs, first=None):
        if first is None:
            a(f"v_max3_f32 v{m}, v{regs[0]}, v{regs[1]}, v{regs[2]}")
            rest = regs[3:]
        else:
            rest = regs
        i = 0
        while i + 1 < len(rest):
            a(f"v_max3_f32 v{m}, v{m}, v{rest[i]}, v{rest[i+1]}")
            i += 2
        if i < len(rest):
            a(f"v_max_f32 v{m}, v{m}, v{rest[i]}")
    a.lab("K2_START")
    setbases()
    a(rdK16(vKA, 0, 0))
    a(rdK4(vKB, 0, 0))
    a(f"s_mov_b64 exec, s[{sVM}:{sVM+1}]")
    a(f"ds_read_b128 v[{vV1}:{vV1+3}], v{vVc}")
    a("s_mov_b64 exec, -1")
    a(f"s_cmp_lg_u32 s{sPASS}, 0")
    a("s_cbranch_scc1 K2_HAVEM")
    a("s_waitcnt lgkmcnt(0)")
    for sg in range(2):
        for x in qk(S[sg], vKA, vKB, sg, "0"): a(x)
    a("s_nop 9")
    for sg in range(2):
        m = vT + 2 * sg
        rowmax(m, [S[sg] + i for i in range(16)])
        a(f"v_mov_b32 v{m+1}, v{m}")
    a("s_nop 1")
    for sg in range(2):
        m = vT + 2 * sg
        a(f"v_permlane32_swap_b32 v{m}, v{m+1}")
    a("s_nop 1")
    for sg in range(2):
        m = vT + 2 * sg
        a(f"v_max_f32 v{m}, v{m}, v{m+1}")
        a(f"v_sub_f32 v{NEG[sg]}, 0, v{m}")
        a(f"v_sub_f32 v{NEG[sg]+1}, 0, v{m}")
        for i in range(2, 16, 2):
            a(f"v_mov_b64 v[{NEG[sg]+i}:{NEG[sg]+i+1}], v[{NEG[sg]}:{NEG[sg]+1}]")
    a.lab("K2_HAVEM")
    a("s_waitcnt lgkmcnt(0)")
    a("s_nop 1")
    for x in qk(S[0], vKA, vKB, 0, f"v[{NEG[0]}:{NEG[0]+15}]"): a(x)
    a(f"s_mov_b32 s{sC}, 0")
    a("s_nop 15")
    stamp(a, 4)
    a.lab("K2_LOOP")
    if "chunkstamp" in OPT:
        a("s_memtime s[78:79]")
        a("s_waitcnt lgkmcnt(0)")
        a(f"s_mov_b32 s79, m0")
        a(f"s_mov_b32 m0, s{sC}")
        a("s_nop 0")
        a(f"v_writelane_b32 v247, s78, m0")
        a(f"s_mov_b32 m0, s79")
    aloads = [
        qloads(vQA16, vQA8, sQA, 0),
        [f"buffer_load_dwordx2 v[{vAK}:{vAK+1}], v{vAKO}, s[{SWS}:{SWS+3}], 0 offen",
         f"buffer_load_dwordx2 v[{vAK+2}:{vAK+3}], v{vAKO}, s[{SWS}:{SWS+3}], 0 offen offset:512",
         f"buffer_load_dwordx2 v[{vAK+8}:{vAK+9}], v{vAKO+1}, s[{SWS}:{SWS+3}], 0 offen offset:1024"],
        [f"buffer_load_dwordx2 v[{vAK+4}:{vAK+5}], v{vAKO+2}, s[{SWS}:{SWS+3}], 0 offen",
         f"buffer_load_dwordx2 v[{vAK+6}:{vAK+7}], v{vAKO+2}, s[{SWS}:{SWS+3}], 0 offen offset:512",
         f"buffer_load_dwordx2 v[{vAK+10}:{vAK+11}], v{vAKO+3}, s[{SWS}:{SWS+3}], 0 offen offset:1024"],
        [f"s_mov_b64 exec, s[{sVM}:{sVM+1}]"] +
        [f"buffer_load_dwordx4 v[{vAV+4*j}:{vAV+4*j+3}], v{vVA}, s[{SWS}:{SWS+3}], s{sAV+j} offen" for j in range(3)] +
        ["s_mov_b64 exec, -1"],
        [f"global_load_dwordx4 v[{vMX+4*j}:{vMX+4*j+3}], v{vL16}, s[56:57] offset:{j*1024}" for j in range(4)] +
        [f"v_add_u32 v{vT+7}, 4096, v{vL16}"] +
        [f"global_load_dwordx4 v[{vMY+4*j}:{vMY+4*j+3}], v{vT+7}, s[56:57] offset:{j*1024}" for j in range(2)] +
        [f"v_lshrrev_b32 v{vT+7}, 1, v{vK8}",
         f"buffer_load_dword v{vGATE}, v{vT+7}, s[{SWS}:{SWS+3}], s{sGO} offen"] +
        ([] if FUSE else [f"buffer_load_dword v{vDUM}, v{vPFA}, s[{SWS}:{SWS+3}], 0 offen"]),
    ]
    ool = []
    ptile = optval("ptile", 6)
    def wdma(j, p_expr_sgpr):
        return [f"s_add_u32 m0, s{sDO+j}, s{p_expr_sgpr}",
                f"s_add_u32 s{sT3}, s{sWS}, {j*8192}",
                f"buffer_load_dwordx4 v{vL16}, s[{SWS}:{SWS+3}], s{sT3} offen lds"]
    for tt in range(8):
        for sg in range(2):
            cur = S[sg]; nsg = sg ^ 1; nxt = S[nsg]
            nt = tt if sg == 0 else tt + 1
            ka = vKA + 4 * (nt & 1); kb = vKB + 2 * (nt & 1)
            if sg == 0 and tt == 7:
                a(f"s_cmp_lg_u32 s{sPASS}, 0")
                a(f"s_cbranch_scc1 K2_NOSYNC")
                a(f"s_cmp_ge_u32 s{sC}, 3")
                a(f"s_cbranch_scc1 K2_SYNC3" if FUSE else f"s_cbranch_scc1 K2_NOSYNC")
                a("s_waitcnt vmcnt(0)")
                a("s_barrier")
                a.lab("K2_NOSYNC")
                if ptile >= 0: a("s_setprio 2")
                if FUSE:
                    body = ["s_barrier"]
                    for j in range(5): body += wdma(j, sWL)
                    body += [f"s_add_u32 s{sWL}, s{sWL}, {KV_CH}", f"s_add_u32 s{sWS}, s{sWS}, {K3_BUF}", "s_branch K2_NOSYNC"]
                    ool.append(("K2_SYNC3", body))
            if sg == 0 and tt == ptile:
                a("s_setprio 0")
            if sg == 1:
                a("s_waitcnt lgkmcnt(0)")
            q = qk(nxt, ka, kb, nsg, f"v[{NEG[nsg]}:{NEG[nsg]+15}]")
            a(q[0])
            if sg == 0:
                n1 = tt + 1
                a(rdK16(vKA + 4 * (n1 & 1), n1 // 8, n1 % 8))
                a(rdK4(vKB + 2 * (n1 & 1), n1 // 8, n1 % 8))
            for i in range(0, 4):
                a(f"v_exp_f32 v{cur+i}, v{cur+i}")
            pt = tt - 1 if sg == 0 else tt
            v2p = vV2 + 4 * (pt & 1)
            a(f"v_mfma_f32_32x32x16_bf16 v[{O[nsg]}:{O[nsg]+15}], v[{v2p}:{v2p+3}], v[{vP+4}:{vP+7}], v[{O[nsg]}:{O[nsg]+15}]")
            if sg == 0:
                a(f"s_mov_b64 exec, s[{sVM}:{sVM+1}]")
                d = vV2 + 4 * (tt & 1)
                a(f"ds_read_b128 v[{d}:{d+3}], v{vVc} offset:{voff(2*tt+1)}")
                d = vV1 + 4 * ((tt + 1) & 1)
                a(f"ds_read_b128 v[{d}:{d+3}], v{vVc} offset:{voff(2*tt+2)}")
                a("s_mov_b64 exec, -1")
            if FUSE and sg == 0 and 1 <= tt < 6:
                j = tt - 1
                a(f"s_cmp_ge_u32 s{sC}, s{sWC}")
                a(f"s_cbranch_scc1 K2_Y{tt}")
                body = wdma(j, sWL)
                if j == 4: body += [f"s_add_u32 s{sWL}, s{sWL}, {KV_CH}", f"s_add_u32 s{sWS}, s{sWS}, {K3_BUF}"]
                ool.append((f"K2_Y{tt}", body + [f"s_branch K2_YR{tt}"]))
                a.lab(f"K2_YR{tt}")
            if sg == 1 and tt < 5:
                a(f"s_cmp_lg_u32 s{sPASS}, 0")
                a(f"s_cbranch_scc1 K2_XR{tt}")
                a(f"s_cmp_lt_u32 s{sC}, 3")
                a(f"s_cbranch_scc0 K2_X{tt}")
                for x in dma1(tt): a(x)
                if tt == 4: a(f"s_add_u32 s{sDG}, s{sDG}, {KV_CH}")
                ool.append((f"K2_X{tt}", aloads[tt] + [f"s_branch K2_XR{tt}"]))
                a.lab(f"K2_XR{tt}")
            for i in range(4, 8):
                a(f"v_exp_f32 v{cur+i}, v{cur+i}")
            for i in range(4):
                a(f"v_cvt_pk_bf16_f32 v{vP+i}, v{cur+2*i}, v{cur+2*i+1}")
            a(q[1])
            for i in range(8, 12):
                a(f"v_exp_f32 v{cur+i}, v{cur+i}")
            v1 = vV1 + 4 * (tt & 1)
            a(f"v_mfma_f32_32x32x16_bf16 v[{O[sg]}:{O[sg]+15}], v[{v1}:{v1+3}], v[{vP}:{vP+3}], v[{O[sg]}:{O[sg]+15}]")
            for i in range(12, 16):
                a(f"v_exp_f32 v{cur+i}, v{cur+i}")
            for i in range(4, 8):
                a(f"v_cvt_pk_bf16_f32 v{vP+i}, v{cur+2*i}, v{cur+2*i+1}")
    for r in (vKe, vKo, vK4c, vVc):
        a(f"v_add_u32 v{r}, {KV_CH}, v{r}")
    a(f"s_add_u32 s{sC}, s{sC}, 1")
    a(f"s_cmp_lt_u32 s{sC}, 4")
    a("s_cbranch_scc1 K2_LOOP")
    stamp(a, 5)
    a(f"v_mfma_f32_32x32x16_bf16 v[{O[1]}:{O[1]+15}], v[{vV2+4}:{vV2+7}], v[{vP+4}:{vP+7}], v[{O[1]}:{O[1]+15}]")
    a("s_setprio 0")
    a(f"s_mov_b32 s{sFAIL}, 0")
    a(f"s_cmp_lg_u32 s{sPASS}, 0")
    a("s_cbranch_scc1 K2_XCHG")
    a(f"s_waitcnt vmcnt({5 if FUSE else 1}) lgkmcnt(0)")
    a(f"s_mov_b64 exec, s[{sLO}:{sLO+1}]")
    a(f"s_not_b64 exec, exec")
    a(f"v_mov_b32 v{vQA8}, 0")
    a(f"v_mov_b32 v{vQA8+1}, 0")
    a("s_mov_b64 exec, -1")
    a(f"s_cmp_lg_u32 s{sS0}, 0")
    a("s_cbranch_scc1 K2_NOFIX")
    for i in range(8):
        a(f"v_mov_b32 v{vMX+i}, {f2u(NEGBIG):#x}")
    a.lab("K2_NOFIX")
    a(f"v_mfma_f32_32x32x16_bf16 v[{vS0}:{vS0+15}], v[{vAK}:{vAK+3}], v[{vQA16}:{vQA16+3}], v[{vMX}:{vMX+15}]")
    a(f"v_mfma_f32_32x32x16_bf16 v[{vS1}:{vS1+15}], v[{vAK+4}:{vAK+7}], v[{vQA16}:{vQA16+3}], v[{vMY}:{vMY+15}]")
    a(f"v_mfma_f32_32x32x8_bf16 v[{vS0}:{vS0+15}], v[{vAK+8}:{vAK+9}], v[{vQA8}:{vQA8+1}], v[{vS0}:{vS0+15}]")
    a(f"v_mfma_f32_32x32x8_bf16 v[{vS1}:{vS1+15}], v[{vAK+10}:{vAK+11}], v[{vQA8}:{vQA8+1}], v[{vS1}:{vS1+15}]")
    a(f"v_mov_b64 v[{vT+2}:{vT+3}], 0")
    a(f"v_mov_b64 v[{vT+4}:{vT+5}], 0")
    a(f"v_mov_b32 v{vT+1}, {f2u(2.0**64):#x}")
    a("s_nop 3")
    for i in range(0, 12, 2):
        for sg in range(2):
            a(f"v_pk_fma_f32 v[{vT+2}:{vT+3}], v[{O[sg]+i}:{O[sg]+i+1}], v[{vT+4}:{vT+5}], v[{vT+2}:{vT+3}]")
    a(f"v_add_f32 v{vT}, v{O[0]+12}, v{O[1]+12}")
    a(f"v_add_f32 v{vT+2}, v{vT+2}, v{vT+3}")
    a(f"v_add_f32 v{vT}, v{vT}, v{vT+2}")
    a(f"v_cmp_nlt_f32 vcc, v{vT}, v{vT+1}")
    a(f"v_mov_b32 v{O[0]+13}, v{NEG[0]}")
    a(f"v_mov_b32 v{O[1]+13}, v{NEG[1]}")
    a("s_nop 1")
    a("s_cmp_lg_u64 vcc, 0")
    a(f"s_cselect_b32 s{sFAIL}, 1, 0")
    if "forcefail" in OPT:
        a(f"s_cmp_eq_u32 s{sW}, 3")
        a(f"s_cselect_b32 s{sFAIL}, 1, s{sFAIL}")
    regs = [vS0 + i for i in range(16)] + [vS1 + i for i in range(8)]
    m = vT + 6
    rowmax(m, regs)
    a(f"v_mov_b32 v{m+1}, v{m}")
    a("s_nop 1")
    a(f"v_permlane32_swap_b32 v{m}, v{m+1}")
    a("s_nop 1")
    a(f"v_max_f32 v{m}, v{m}, v{m+1}")
    a(f"v_sub_f32 v{vKo}, 0, v{m}")
    a(f"v_sub_f32 v{vK4c}, 0, v{m}")
    for i in range(0, 24, 2):
        a(f"v_pk_add_f32 v[{regs[i]}:{regs[i]+1}], v[{regs[i]}:{regs[i]+1}], v[{vKo}:{vK4c}]")
    for i in range(24):
        a(f"v_exp_f32 v{regs[i]}, v{regs[i]}")
    a("s_nop 0")
    for i in range(12):
        a(f"v_cvt_pk_bf16_f32 v{vP+i}, v{regs[2*i]}, v{regs[2*i+1]}")
    OA = NEG[0]
    a("s_nop 1")
    for j in range(3):
        c = "0" if j == 0 else f"v[{OA}:{OA+15}]"
        a(f"v_mfma_f32_32x32x16_bf16 v[{OA}:{OA+15}], v[{vAV+4*j}:{vAV+4*j+3}], v[{vP+4*j}:{vP+4*j+3}], {c}")
    def rowsum(dst, acc):
        a(f"v_mov_b32 v{dst}, v{acc+12}")
        a(f"s_not_b64 exec, s[{sLO}:{sLO+1}]")
        a(f"v_mov_b32 v{dst}, v{acc+8}")
        a("s_mov_b64 exec, -1")
    OFL = " sc1" if FUSE else STORE_FLAGS
    def ostore(br, src):
        a("s_nop 1")
        a(f"v_permlane32_swap_b32 v{src}, v{src+2}")
        a(f"v_permlane32_swap_b32 v{src+1}, v{src+3}")
        a(f"s_mov_b32 s{sT1}, {O_OFF}")
        a(f"buffer_store_dwordx4 v[{src}:{src+3}], v{vOSA}, s[{SWS}:{SWS+3}], s{sT1} offen offset:{br*512}{OFL}")
    a("s_nop 15")
    rowsum(vT + 6, OA)
    a(f"v_rcp_f32 v{vT+6}, v{vT+6}")
    a("s_nop 0")
    a(f"v_mul_f32 v{vT+6}, v{vT+6}, v{vGATE}")
    for i in range(0, 12, 2):
        a(f"v_pk_mul_f32 v[{OA+i}:{OA+i+1}], v[{OA+i}:{OA+i+1}], v[{vT+6}:{vT+7}] op_sel_hi:[1,0]")
    for i in range(4):
        a(f"v_cvt_pk_bf16_f32 v{vP+i}, v{OA+2*i}, v{OA+2*i+1}")
    for i in range(2):
        a(f"v_cvt_pk_bf16_f32 v{vOB+4+i}, v{OA+8+2*i}, v{OA+9+2*i}")
    ostore(0, vP)
    a("s_branch K2_XCHG1")
    a.lab("K2_XCHG")
    a("s_nop 15")
    a(f"v_mov_b32 v{O[0]+13}, v{NEG[0]}")
    a(f"v_mov_b32 v{O[1]+13}, v{NEG[1]}")
    a.lab("K2_XCHG1")
    a(f"s_mul_i32 s{sT0}, s{sGRP}, {4*KV_CH}")
    a(f"s_lshl_b32 s{sT2}, s{sPR}, 12")
    a(f"s_add_u32 s{sT2}, s{sT2}, {3*KV_CH}")
    a(f"s_add_u32 s{sT0}, s{sT0}, s{sT2}")
    a(f"v_add_u32 v{vT}, s{sT0}, v{vL16}")
    a(f"s_xor_b32 s{sT0}, s{sGRP}, 1")
    a(f"s_mul_i32 s{sT0}, s{sT0}, {4*KV_CH}")
    a(f"s_add_u32 s{sT0}, s{sT0}, s{sT2}")
    a(f"v_add_u32 v{vT+1}, s{sT0}, v{vL16}")
    a(f"s_lshl_b32 s{sT0}, s{sW}, 2")
    a(f"s_add_u32 s{sT0}, s{sT0}, {3*KV_CH + 16384}")
    a(f"v_mov_b32 v{vT+2}, s{sT0}")
    a(f"v_mov_b32 v{vT+3}, s{sFAIL}")
    a("s_barrier")
    a(f"s_cmp_eq_u32 s{sGRP}, 0")
    a("s_cbranch_scc1 K2_XA")
    for j in range(4):
        a(f"ds_write_b128 v{vT}, v[{O[0]+4*j}:{O[0]+4*j+3}] offset:{j*1024}")
    a("s_branch K2_XB")
    a.lab("K2_XA")
    for j in range(4):
        a(f"ds_write_b128 v{vT}, v[{O[1]+4*j}:{O[1]+4*j+3}] offset:{j*1024}")
    a.lab("K2_XB")
    a(f"ds_write_b32 v{vT+2}, v{vT+3}")
    a(f"v_mov_b32 v{vT+2}, {3*KV_CH + 16384}")
    a("s_waitcnt lgkmcnt(0)")
    a("s_barrier")
    a(f"ds_read_b128 v[{vT+4}:{vT+7}], v{vT+2}")
    a(f"ds_read_b128 v[{vS0}:{vS0+3}], v{vT+2} offset:16")
    a(f"s_cmp_eq_u32 s{sGRP}, 0")
    a("s_cbranch_scc1 K2_XC")
    for j in range(4):
        a(f"ds_read_b128 v[{O[0]+4*j}:{O[0]+4*j+3}], v{vT+1} offset:{j*1024}")
    a("s_branch K2_XD")
    a.lab("K2_XC")
    for j in range(4):
        a(f"ds_read_b128 v[{O[1]+4*j}:{O[1]+4*j+3}], v{vT+1} offset:{j*1024}")
    a.lab("K2_XD")
    a("s_waitcnt lgkmcnt(4)")
    a(f"v_or3_b32 v{vT+4}, v{vT+4}, v{vT+5}, v{vT+6}")
    a(f"v_or3_b32 v{vT+4}, v{vT+4}, v{vT+7}, v{vS0}")
    a(f"v_or3_b32 v{vT+4}, v{vT+4}, v{vS0+1}, v{vS0+2}")
    a(f"v_or_b32 v{vT+4}, v{vT+4}, v{vS0+3}")
    a("s_nop 0")
    a(f"v_readfirstlane_b32 s{sT0}, v{vT+4}")
    a("s_nop 3")
    a(f"s_cmp_lg_u32 s{sT0}, 0")
    a("s_cbranch_scc1 K2_REDO")
    a("s_waitcnt lgkmcnt(0)")
    a(f"v_sub_f32 v{vT+2}, v{O[1]+13}, v{O[0]+13}")
    a(f"v_sub_f32 v{vT+3}, 0, v{vT+2}")
    a(f"v_min_f32 v{vT+2}, 0, v{vT+2}")
    a(f"v_min_f32 v{vT+3}, 0, v{vT+3}")
    a(f"v_exp_f32 v{vT+2}, v{vT+2}")
    a(f"v_exp_f32 v{vT+3}, v{vT+3}")
    rowsum(vT + 4, O[0])
    rowsum(vT + 5, O[1])
    a(f"v_mul_f32 v{vT+4}, v{vT+4}, v{vT+2}")
    a(f"v_fmac_f32 v{vT+4}, v{vT+5}, v{vT+3}")
    a(f"v_rcp_f32 v{vT+4}, v{vT+4}")
    a(f"v_sub_f32 v{vT+5}, 1.0, v{vGATE}")
    a("s_nop 0")
    a(f"v_mul_f32 v{vT+4}, v{vT+4}, v{vT+5}")
    a(f"v_mul_f32 v{vT+2}, v{vT+2}, v{vT+4}")
    a(f"v_mul_f32 v{vT+3}, v{vT+3}, v{vT+4}")
    for i in range(0, 12, 2):
        a(f"v_pk_mul_f32 v[{O[0]+i}:{O[0]+i+1}], v[{O[0]+i}:{O[0]+i+1}], v[{vT+2}:{vT+3}] op_sel_hi:[1,0]")
        a(f"v_pk_fma_f32 v[{O[0]+i}:{O[0]+i+1}], v[{O[1]+i}:{O[1]+i+1}], v[{vT+2}:{vT+3}], v[{O[0]+i}:{O[0]+i+1}] op_sel:[0,1,0] op_sel_hi:[1,1,1]")
    for i in range(4):
        a(f"v_cvt_pk_bf16_f32 v{vOB+i}, v{O[0]+2*i}, v{O[0]+2*i+1}")
    for i in range(2):
        a(f"v_cvt_pk_bf16_f32 v{vOB+6+i}, v{O[0]+8+2*i}, v{O[0]+9+2*i}")
    ostore(1, vOB)
    a(f"s_mov_b64 exec, s[{sLO}:{sLO+1}]")
    a(f"buffer_store_dwordx4 v[{vOB+4}:{vOB+7}], v{vOSA}, s[{SWS}:{SWS+3}], s{sT1} offen offset:1024{OFL}")
    a("s_mov_b64 exec, -1")
    if FUSE:
        a(f"s_cmp_eq_u32 s{sPASS}, 0")
        a("s_cbranch_scc1 K2_WOK")
        a("s_barrier")
        a(f"s_mov_b32 s{sWL}, 0")
        a(f"s_mov_b32 s{sWS}, s{sWS0}")
        for p in range(3):
            for j in range(5):
                for x in wdma(j, sWL): a(x)
            a(f"s_add_u32 s{sWL}, s{sWL}, {KV_CH}")
            a(f"s_add_u32 s{sWS}, s{sWS}, {K3_BUF}")
        a.lab("K2_WOK")
        stamp(a, 6)
        a("s_barrier")
        a(f"s_mov_b32 s{sWL}, {3*KV_CH}")
        for j in range(5):
            for x in wdma(j, sWL): a(x)
        a("s_waitcnt vmcnt(5)")
        if "tailstamps" in OPT: stamp(a, 1)
        a("s_barrier")
        if "tailstamps" in OPT: stamp(a, 2)
        a(f"s_cmp_lg_u32 s{sW}, 0")
        a("s_cbranch_scc1 K2_NOPOLL0")
        a(f"s_lshl_b32 s{sT0}, s{sQB}, 12")
        a(f"s_add_u32 s{sT0}, s{sT0}, {FL_OFF}")
        a(f"s_mov_b64 exec, s[{sLO}:{sLO+1}]")
        a(f"v_mov_b32 v{vT}, 1")
        a(f"v_lshlrev_b32 v{vT+5}, 7, v{vLANE}")
        a(f"buffer_atomic_add v{vT}, v{vT+5}, s[{SWS}:{SWS+3}], s{sT0} offen")
        a("s_mov_b64 exec, -1")
        a.lab("K2_NOPOLL0")
        bufss = [((ss // 2) % 4) * KV_CH + (ss & 1) * 4 * KV_CH for ss in range(10)]
        pc = proj_core(a, "K2", SWS, 68, sW, 64, 65, 50, bufss,
                       lambda p, j, sM0: f"s_add_u32 m0, s{sDO+j}, {(p % 4)*KV_CH}", {1: [4]}, optval("k2opre", 4))
        pc.setup()
        srd(a, 68, 60, 61, 2048 * 1280)
        pc.addr_setup(0)
        if "tailstamps" in OPT: stamp(a, 3)
        a(f"s_cmp_lg_u32 s{sW}, 0")
        a("s_cbranch_scc1 K2_NOPOLL")
        a(f"s_lshl_b32 s{sT0}, s{sHEAD}, 3")
        a(f"s_add_u32 s{sT0}, s{sT0}, s{sQB}")
        a(f"s_lshl_b32 s{sT0}, s{sT0}, 7")
        a(f"s_add_u32 s{sT0}, s{sT0}, {FL_OFF}")
        a("s_mov_b64 exec, 1")
        a(f"v_mov_b32 v{vT+5}, 0")
        a(f"s_mov_b32 s{sT1}, 0")
        a.lab("K2_POLL")
        a(f"buffer_load_dword v{vT+4}, v{vT+5}, s[{SWS}:{SWS+3}], s{sT0} offen sc1")
        a("s_waitcnt vmcnt(0)")
        a(f"v_readfirstlane_b32 s{sT2}, v{vT+4}")
        a(f"s_add_u32 s{sT1}, s{sT1}, 1")
        a(f"s_cmp_ge_u32 s{sT2}, 32")
        a("s_cbranch_scc1 K2_POLLED")
        a(f"s_sleep {optval('psleep', 2)}")
        a(f"s_cmp_lt_u32 s{sT1}, 0x40000")
        a("s_cbranch_scc1 K2_POLL")
        a.lab("K2_POLLED")
        a("s_waitcnt vmcnt(0)")
        if "tailstamps" in OPT:
            stamp(a, 4)
        a("s_mov_b64 exec, -1")
        a.lab("K2_NOPOLL")
        a("s_waitcnt vmcnt(0)")
        a("s_barrier")
        stamp(a, 7)
        pc.body([("o", 0), ("o", 1), ("o", 2), ("o", 3)])
        if PROF: a("s_waitcnt vmcnt(0)")
        stamp(a, 8)
        stamp_flush(a, 1, 9, SWS, sW, vT)
        a("s_endpgm")
    else:
        a("s_branch K2_DONE")
    a.lab("K2_REDO")
    a("s_waitcnt vmcnt(0) lgkmcnt(0)")
    a("s_barrier")
    a(f"s_mov_b32 s{sDG}, 0")
    for p in range(4):
        for j in range(5):
            for x in dma1(j): a(x)
        a(f"s_add_u32 s{sDG}, s{sDG}, {KV_CH}")
    a(f"s_mov_b32 s{sPASS}, 1")
    if FUSE: a(f"s_mov_b32 s{sWC}, 99")
    a(f"v_mov_b32 v{vT}, {f2u(-3.0e38):#x}")
    a(f"v_mov_b32 v{vT+2}, {f2u(-3.0e38):#x}")
    setbases()
    a(f"s_mov_b32 s{sC}, 0")
    a("s_waitcnt vmcnt(0)")
    a("s_barrier")
    a.lab("K2_MAXLOOP")
    for tt in range(8):
        a(rdK16(vKA, 0, tt))
        a(rdK4(vKB, 0, tt))
        a("s_waitcnt lgkmcnt(0)")
        for sg in range(2):
            for x in qk(S[sg], vKA, vKB, sg, "0"): a(x)
        a("s_nop 15")
        for sg in range(2):
            rowmax(vT + 2 * sg, [S[sg] + i for i in range(16)], first=True)
    for r in (vKe, vKo, vK4c):
        a(f"v_add_u32 v{r}, {KV_CH}, v{r}")
    a(f"s_add_u32 s{sC}, s{sC}, 1")
    a(f"s_cmp_lt_u32 s{sC}, 4")
    a("s_cbranch_scc1 K2_MAXLOOP")
    for sg in range(2):
        a(f"v_mov_b32 v{vT+2*sg+1}, v{vT+2*sg}")
    a("s_nop 1")
    for sg in range(2):
        a(f"v_permlane32_swap_b32 v{vT+2*sg}, v{vT+2*sg+1}")
    a("s_nop 1")
    for sg in range(2):
        a(f"v_max_f32 v{vT+2*sg}, v{vT+2*sg}, v{vT+2*sg+1}")
        for i in range(16):
            a(f"v_sub_f32 v{NEG[sg]+i}, 0, v{vT+2*sg}")
            a(f"v_mov_b32 v{O[sg]+i}, 0")
    for i in range(4):
        a(f"v_mov_b32 v{vP+4+i}, 0")
    a("s_branch K2_START")
    for lab, body in ool:
        a.lab(lab)
        for x in body: a(x)
    a.lab("K2_DONE")
    stamp(a, 6)
    if PROF: a("s_waitcnt vmcnt(0)")
    stamp(a, 7)
    if "chunkstamp" in OPT:
        a(f"s_lshl_b32 s97, s2, 3")
        a(f"s_add_u32 s97, s97, s{sW}")
        a(f"s_lshl_b32 s97, s97, 6")
        a(f"s_add_u32 s97, s97, {PROF_OFF + 3 * 0x100000}")
        a(f"v_lshlrev_b32 v{vT}, 2, v{vLANE}")
        a("s_mov_b64 exec, 0xff")
        a(f"buffer_store_dword v247, v{vT}, s[{SWS}:{SWS+3}], s97 offen")
        a("s_mov_b64 exec, -1")
    stamp_flush(a, 1, 8, SWS, sW, vT)
    a.lab("K2_END")
    a("s_endpgm")
    a.raw(".p2align 4")
    a.lab("K2_TABLE")
    tab = mask_table()
    for i in range(0, len(tab), 8):
        a.raw("    .long " + ", ".join(f"{x:#x}" for x in tab[i:i+8]))
    a.lab("K2_TEXT_END")
    return name, NV

K3_BUF = 40 * 1024
K3_NBUF = 3
K3_LDS = K3_BUF * K3_NBUF

K3_GRID = 256
def proj_core(a, pfx, SWS, SOUT, sW, sMT, sNT, sbase, bufss, wm0, wplan, OPRE, vLANE=1, vL16=2):
    sMB, sKH, sT0, sT1, sT2, sOB, sWB, sM0, sOUT = [sbase + i for i in range(9)]
    vWR = 6; vWA = 7; vT = 8
    vOF = 20; vWF = 100; vACC = 180
    oflags = " sc1" if pfx == "K2" else ""
    issued = []
    def setup():
        a(f"s_and_b32 s{sMB}, s{sW}, 3")
        a(f"s_lshr_b32 s{sKH}, s{sW}, 2")
        a(f"s_lshl_b32 s{sM0}, s{sW}, 10")
        a(f"s_mul_i32 s{sWB}, s{sNT}, {200*1024}")
        a(f"s_add_u32 s{sWB}, s{sWB}, s{sM0}")
        a(f"s_add_u32 s{sWB}, s{sWB}, {WT_OFF}")
        a(f"s_lshl_b32 s{sOB}, s{sMT}, 2")
        a(f"s_add_u32 s{sOB}, s{sOB}, s{sMB}")
        a(f"s_mul_i32 s{sOUT}, s{sOB}, {16*1280}")
        a(f"s_mul_i32 s{sOB}, s{sOB}, 40")
        a(f"s_lshl_b32 s{sT0}, s{sKH}, 1")
        a(f"s_add_u32 s{sOB}, s{sOB}, s{sT0}")
        a(f"s_lshl_b32 s{sOB}, s{sOB}, 10")
        a(f"s_add_u32 s{sOB}, s{sOB}, {O_OFF}")
        a(f"s_mul_i32 s{sT2}, s{sNT}, 160")
        a(f"s_add_u32 s{sOUT}, s{sOUT}, s{sT2}")
    def wgroup(p):
        g = []
        for j in range(5):
            g.append(([wm0(p, j, sM0),
                       f"s_add_u32 s{sT1}, s{sWB}, {p*K3_BUF + j*8192}",
                       f"buffer_load_dwordx4 v{vL16}, s[{SWS}:{SWS+3}], s{sT1} offen lds"], ("W", p)))
        return g
    def ogroup(ss):
        g = []
        for i in range(2):
            d = vOF + (ss * 2 + i) * 4
            g.append(([f"s_add_u32 s{sT0}, s{sOB}, {(ss*4 + i)*1024}",
                       f"buffer_load_dwordx4 v[{d}:{d+3}], v{vL16}, s[{SWS}:{SWS+3}], s{sT0} offen{oflags}"], ("o", ss)))
        return g
    def emit(item):
        for x in item[0]: a(x)
        issued.append(item[1])
    def vm(need):
        last = max([i for i, t in enumerate(issued) if t in need], default=-1)
        return min(63, len(issued) - 1 - last)
    def reads(ss):
        st = ss & 1
        off = bufss[ss]
        out = [f"v_add_u32 v{vWA}, {off}, v{vWR}"]
        for i in range(2):
            for b in range(5):
                r = vWF + st * 40 + (i * 5 + b) * 4
                out.append(f"ds_read_b128 v[{r}:{r+3}], v{vWA} offset:{(i*5 + b)*1024}")
        return out
    def addr_setup(xbase):
        a(f"s_mul_i32 s{sT0}, s{sKH}, {10*1024}")
        a(f"v_add_u32 v{vWR}, s{sT0}, v{vL16}")
        a(f"v_and_b32 v{vT+1}, 15, v{vLANE}")
        a(f"v_mul_u32_u24 v{vT+1}, 1280, v{vT+1}")
        a(f"v_lshrrev_b32 v{vT+2}, 4, v{vLANE}")
        a(f"v_lshl_add_u32 v{vT+1}, v{vT+2}, 3, v{vT+1}")
        a(f"s_mul_i32 s{sT0}, s{sW}, {3*1024}")
        a(f"s_add_u32 s{sT0}, s{sT0}, {xbase}")
        a(f"v_add_u32 v{vT}, s{sT0}, v{vL16}")
        a(f"s_xor_b32 s{sT2}, s{sW}, 4")
        a(f"s_mul_i32 s{sT2}, s{sT2}, {3*1024}")
        a(f"s_add_u32 s{sT2}, s{sT2}, {xbase}")
        a(f"v_add_u32 v{vT+3}, s{sT2}, v{vL16}")
    def body(first):
        for kind, idx in first:
            for it in (wgroup(idx) if kind == "W" else ogroup(idx)): emit(it)
        nxt_o = max([idx for kind, idx in first if kind == "o"], default=-1) + 1
        if pfx == "K3": stamp(a, 1)
        a(f"s_waitcnt vmcnt({vm({('W', 0)})})")
        a("s_barrier")
        if pfx == "K3": stamp(a, 2)
        for r in reads(0): a(r)
        for ss in range(10):
            p = ss // 2
            need = {("o", ss)}
            if ss % 2 == 1 and p + 1 < 5: need.add(("W", p + 1))
            a(f"s_waitcnt vmcnt({vm(need)}) lgkmcnt(0)")
            if ss % 2 == 1 and ss < 9: a("s_barrier")
            mf = []
            for i in range(2):
                for b in range(5):
                    acc = vACC + b * 4
                    wf = vWF + (ss & 1) * 40 + (i * 5 + b) * 4
                    of = vOF + (ss * 2 + i) * 4
                    c = "0" if (ss == 0 and i == 0) else f"v[{acc}:{acc+3}]"
                    mf.append(f"v_mfma_f32_16x16x32_bf16 v[{acc}:{acc+3}], v[{wf}:{wf+3}], v[{of}:{of+3}], {c}")
            rd = reads(ss + 1) if ss < 9 else []
            ld = []
            for p2 in wplan.get(ss, []): ld += wgroup(p2)
            while nxt_o < 10 and nxt_o <= ss + OPRE:
                ld += ogroup(nxt_o); nxt_o += 1
            ex = [("r", r) for r in rd]
            mixed = []
            step = max(1, len(ex) // max(1, len(ld))) if ld else 0
            k = 0
            for i, e in enumerate(ex):
                mixed.append(e)
                if ld and k < len(ld) and (i + 1) % step == 0:
                    mixed.append(("l", ld[k])); k += 1
            while k < len(ld):
                mixed.append(("l", ld[k])); k += 1
            k = 0
            for i, m in enumerate(mf):
                a(m)
                tgt = min(len(mixed), ((i + 1) * len(mixed) + 8) // 9)
                while k < tgt:
                    if mixed[k][0] == "r": a(mixed[k][1])
                    else: emit(mixed[k][1])
                    k += 1
        if pfx == "K3": stamp(a, 3)
        a("s_barrier")
        a(f"s_cmp_eq_u32 s{sKH}, 0")
        a(f"s_cbranch_scc1 {pfx}_PW0")
        a("s_nop 4")
        for b in range(3):
            a(f"ds_write_b128 v{vT}, v[{vACC+b*4}:{vACC+b*4+3}] offset:{b*1024}")
        a("s_waitcnt lgkmcnt(0)")
        a("s_barrier")
        def fin(blocks):
            for n, b in enumerate(blocks):
                a(f"ds_read_b128 v[{vOF+4*n}:{vOF+4*n+3}], v{vT+3} offset:{n*1024}")
            for n, b in enumerate(blocks):
                a(f"s_waitcnt lgkmcnt({len(blocks)-1-n})")
                for i in range(0, 4, 2):
                    a(f"v_pk_add_f32 v[{vOF+4*n+i}:{vOF+4*n+i+1}], v[{vOF+4*n+i}:{vOF+4*n+i+1}], v[{vACC+4*b+i}:{vACC+4*b+i+1}]")
                a(f"v_cvt_pk_bf16_f32 v{vWF+2*n}, v{vOF+4*n}, v{vOF+4*n+1}")
                a(f"v_cvt_pk_bf16_f32 v{vWF+2*n+1}, v{vOF+4*n+2}, v{vOF+4*n+3}")
                a(f"buffer_store_dwordx2 v[{vWF+2*n}:{vWF+2*n+1}], v{vT+1}, s[{SOUT}:{SOUT+3}], s{sOUT} offen offset:{b*32}")
        fin([3, 4])
        a(f"s_branch {pfx}_PFIN")
        a.lab(f"{pfx}_PW0")
        a("s_nop 4")
        for n, b in enumerate((3, 4)):
            a(f"ds_write_b128 v{vT}, v[{vACC+b*4}:{vACC+b*4+3}] offset:{n*1024}")
        a("s_waitcnt lgkmcnt(0)")
        a("s_barrier")
        fin([0, 1, 2])
        a.lab(f"{pfx}_PFIN")
    class C: pass
    c = C(); c.setup = setup; c.wgroup = wgroup; c.emit = emit; c.addr_setup = addr_setup; c.body = body; c.issued = issued
    return c

def gen_k3(a):
    name = "k3_proj_kernel"
    kernel_head(a, name)
    SWS = 8; SOUT = 20
    sW = 24; sMT = 27; sNT = 28
    vLANE = 1; vL16 = 2; vT = 8
    NV = 200
    a(f"s_cmp_ge_u32 s2, {K3_GRID}")
    a("s_cbranch_scc1 K3_END")
    stamp(a, 0)
    a("s_load_dwordx2 s[4:5], s[0:1], 72")
    a("s_load_dwordx2 s[36:37], s[0:1], 56")
    a(f"v_and_b32 v{vLANE}, 63, v0")
    a(f"v_lshrrev_b32 v{vT}, 6, v0")
    a(f"s_and_b32 s{sMT}, s2, 7")
    a(f"v_readfirstlane_b32 s{sW}, v{vT}")
    a(f"s_lshl_b32 s{sMT}, s{sMT}, 2")
    a(f"s_lshr_b32 s29, s2, 6")
    a(f"s_add_u32 s{sMT}, s{sMT}, s29")
    a(f"s_lshr_b32 s{sNT}, s2, 3")
    a(f"s_and_b32 s{sNT}, s{sNT}, 7")
    a(f"v_lshlrev_b32 v{vL16}, 4, v{vLANE}")
    bufss = [((ss // 2) % 3) * K3_BUF + (ss & 1) * 20 * 1024 for ss in range(10)]
    c = proj_core(a, "K3", SWS, SOUT, sW, sMT, sNT, 40, bufss, lambda p, j, sM0: f"s_add_u32 m0, s{sM0}, {(p % 3)*K3_BUF + j*8192}",
                  {0: [2], 1: [3], 3: [4]}, optval("k3opre", 4))
    c.setup()
    a("s_waitcnt lgkmcnt(0)")
    srd(a, SWS, 4, 5, WS_USED)
    srd(a, SOUT, 36, 37, 2048 * 1280)
    c.addr_setup(0)
    c.body([("W", 0), ("o", 0), ("o", 1), ("W", 1), ("o", 2), ("o", 3)])
    stamp(a, 4)
    if PROF: a("s_waitcnt vmcnt(0)")
    stamp(a, 5)
    stamp_flush(a, 2, 6, SWS, sW, vT)
    a.lab("K3_END")
    a("s_endpgm")
    return name, NV

def build(kernels=("k1", "k2", "k3")):
    a = Asm()
    fuse = "nofuse" not in OPT
    k3line = "" if fuse else f"; @launch kernel=k3_proj_kernel grid=({K3_GRID},1,1) block=(512,1,1) lds={K3_LDS}\n"
    hdr = f"""; Gated mix of sliding-window dilated attention (A) and full softmax MHA (B): three launches.
; @launch kernel=k1_qkv_kernel grid=(256,1,1) block=(512,1,1) lds={K1_LDS}
; @launch kernel=k2_attn_kernel grid=(256,1,1) block=(512,1,1) lds={K2_LDS}
{k3line}.amdgcn_target "amdgcn-amd-amdhsa--gfx950"
.text
"""
    descs = []
    for g in ((gen_k1, gen_k2) if fuse else (gen_k1, gen_k2, gen_k3)):
        n, nv = g(a)
        descs.append(kernel_desc(n, nv))
    txt = a.text()
    txt = txt.replace("K2CODE_WAVES", "((K2_TEXT_END-k2_attn_kernel) >> 13)")
    return hdr + txt + '.section .rodata,"a"\n' + "".join(".p2align 6\n" + d for d in descs)

if __name__ == "__main__":
    if len(sys.argv) > 2 and sys.argv[2] == "prof":
        PROF = True
    OPT.update(sys.argv[3:])
    if "st_sc1" in OPT: STORE_FLAGS = " sc1"
    if "st_nt" in OPT: STORE_FLAGS = " nt"
    if "st_sc01" in OPT: STORE_FLAGS = " sc0 sc1"
    if "st_sc1nt" in OPT: STORE_FLAGS = " sc1 nt"
    out = sys.argv[1] if len(sys.argv) > 1 else f"cdna_kernels/{NAME}.s"
    open(out, "w").write(build())
    print("wrote", out)
```

```python
import sys, struct

NAME = "gated_mix__sliding_local_dilated__softmax_full_mha__prompt"

KV_HEAD = 163840
KV_CH = 20480
Q_HEAD = 81920
Q_CH = 10240
KVA_OFF = 0
KVB_OFF = 32 * KV_HEAD
QA_OFF = 2 * 32 * KV_HEAD
QB_OFF = QA_OFF + 32 * Q_HEAD
G_OFF = QB_OFF + 32 * Q_HEAD
FL_OFF = 0xF04000
WT_OFF = 0xF10000
O_OFF = 0x1100000
O_SIZE = 128 * 40 * 1024
WS_USED = 0x2400000
QSCALE = (20 ** -0.5) * 1.4426950408889634

def f2u(x):
    return struct.unpack("<I", struct.pack("<f", x))[0]

class Asm:
    def __init__(self):
        self.l = []
    def __call__(self, s):
        for x in s.strip("\n").split("\n"):
            self.l.append("    " + x.strip())
    def lab(self, s):
        self.l.append(s + ":")
    def raw(self, s):
        self.l.append(s)
    def text(self):
        return "\n".join(self.l) + "\n"

def vr(b, n=1):
    return f"v{b}" if n == 1 else f"v[{b}:{b+n-1}]"
def sr(b, n=1):
    return f"s{b}" if n == 1 else f"s[{b}:{b+n-1}]"

def kernel_head(a, name):
    a.raw(f".globl {name}")
    a.raw(".p2align 8")
    a.raw(f".type {name},@function")
    a.lab(name)

def kernel_desc(name, nv, ns=102):
    acc = (nv + 3) // 4 * 4
    return f""".amdhsa_kernel {name}
  .amdhsa_next_free_vgpr {nv}
  .amdhsa_next_free_sgpr {ns}
  .amdhsa_accum_offset {acc}
  .amdhsa_group_segment_fixed_size 0
  .amdhsa_kernarg_size 80
  .amdhsa_user_sgpr_count 2
  .amdhsa_user_sgpr_kernarg_segment_ptr 1
  .amdhsa_system_sgpr_workgroup_id_x 1
  .amdhsa_float_denorm_mode_32 3
  .amdhsa_float_denorm_mode_16_64 3
.end_amdhsa_kernel
"""

PROF = False
OPT = set()
STORE_FLAGS = ""
PROF_OFF = 0x2000000
def optval(name, default):
    for o in OPT:
        if o.startswith(name + "="): return int(o.split("=")[1])
    return default
def stamp(a, i):
    if PROF:
        a(f"s_memtime s[{80+2*i}:{81+2*i}]")
        if i == 0: a("s_memrealtime s[76:77]")
def stamp_flush(a, kidx, n, srdreg, wave_sgpr, vtmp):
    if not PROF: return
    a("s_memrealtime s[98:99]")
    a("s_waitcnt lgkmcnt(0)")
    a(f"s_lshl_b32 s75, s2, 3")
    a(f"s_add_u32 s75, s75, s{wave_sgpr}")
    a(f"s_lshl_b32 s75, s75, 6")
    a(f"s_add_u32 s75, s75, {PROF_OFF + kidx * 0x100000}")
    a("s_mov_b64 exec, 1")
    a(f"v_mov_b32 v{vtmp+1}, 0")
    for i in range(n):
        a(f"v_mov_b32 v{vtmp}, s{80+2*i}")
        a(f"buffer_store_dword v{vtmp}, v{vtmp+1}, s[{srdreg}:{srdreg+3}], s75 offen offset:{4*i}")
    a(f"v_mov_b32 v{vtmp}, s76")
    a(f"buffer_store_dword v{vtmp}, v{vtmp+1}, s[{srdreg}:{srdreg+3}], s75 offen offset:56")
    a(f"v_mov_b32 v{vtmp}, s98")
    a(f"buffer_store_dword v{vtmp}, v{vtmp+1}, s[{srdreg}:{srdreg+3}], s75 offen offset:60")

def srd(a, d, lo, hi, size):
    a(f"s_mov_b32 s{d}, s{lo}")
    a(f"s_and_b32 s{d+1}, s{hi}, 0xffff")
    a(f"s_mov_b32 s{d+2}, {size}")
    a(f"s_mov_b32 s{d+3}, 0x00020000")

K1_XB = 32768
K1_BUF = 32768 + 16384
K1_NBUF = 3
K1_LDS = K1_BUF * K1_NBUF

def gen_k1(a):
    PF0 = optval("pf0", 3)
    name = "k1_qkv_kernel"
    kernel_head(a, name)
    SX = 12; SW = 16; SWS = 20; SG = 24
    sW = 32; sWM = 33; sWN = 34; sI = 35; sRD = 36; sWRB = 37
    sXS = 38; sWS1 = 39; sXM0 = 41; sWM0 = 42; sMT = 43; sNT = 44; sBR = 45
    sTMP = 46; sTMP2 = 47; sTMP3 = 48; sTMP4 = 49
    sSEC = 50; sFB = 51; sEO = 52; sD = 53; sHS = 54; sSC = 56
    vLANE = 1; vXO = 2; vWO = 4
    vXR = 6
    vWR = 10
    vXA = 12
    vWA = 16
    vT = 18
    vXF = 32
    vWF = 64
    vACC = 96
    vEO = 160
    vPF = 176
    NV = 180

    a("s_cmp_ge_u32 s2, 256")
    a("s_cbranch_scc1 K1_END")
    stamp(a, 0)
    a("s_lshr_b32 s45, s2, 2")
    a("s_and_b32 s45, s45, 1")
    a("s_mul_i32 s46, s45, 24")
    a("s_add_u32 s46, s46, 8")
    a("s_load_dwordx2 s[10:11], s[0:1], s46")
    a("s_load_dwordx2 s[8:9], s[0:1], 0")
    a("s_load_dwordx2 s[4:5], s[0:1], 72")
    a("s_load_dwordx2 s[6:7], s[0:1], 48")
    a(f"v_and_b32 v{vLANE}, 63, v0")
    a(f"v_lshrrev_b32 v{vT}, 6, v0")
    a(f"s_lshr_b32 s{sTMP}, s2, 3")
    a(f"v_readfirstlane_b32 s{sW}, v{vT}")
    a(f"s_and_b32 s{sMT}, s2, 3")
    a(f"s_lshl_b32 s{sMT}, s{sMT}, 1")
    a(f"s_and_b32 s{sTMP2}, s{sTMP}, 1")
    a(f"s_add_u32 s{sMT}, s{sMT}, s{sTMP2}")
    a(f"s_lshr_b32 s{sNT}, s{sTMP}, 1")
    a(f"s_cmp_ge_u32 s{sNT}, 15")
    a("s_cbranch_scc1 K1_GATE")
    a(f"s_and_b32 s{sWM}, s{sW}, 3")
    a(f"s_lshr_b32 s{sWN}, s{sW}, 2")
    a(f"v_lshrrev_b32 v{vT}, 3, v{vLANE}")
    a(f"v_lshrrev_b32 v{vT+1}, 4, v{vLANE}")
    a(f"v_xor_b32 v{vT+1}, v{vT+1}, v{vLANE}")
    a(f"v_and_b32 v{vT+1}, 7, v{vT+1}")
    a(f"s_lshl_b32 s{sTMP}, s{sMT}, 8")
    a(f"s_lshl_b32 s{sTMP2}, s{sW}, 5")
    a(f"s_add_u32 s{sTMP}, s{sTMP}, s{sTMP2}")
    a(f"v_add_u32 v{vT}, s{sTMP}, v{vT}")
    a(f"v_mul_u32_u24 v{vT}, 1280, v{vT}")
    a(f"v_lshl_add_u32 v{vXO}, v{vT+1}, 4, v{vT}")
    a(f"v_xor_b32 v{vXO+1}, 64, v{vXO}")
    a(f"v_lshrrev_b32 v{vT}, 4, v{vLANE}")
    a(f"v_lshlrev_b32 v{vT+1}, 2, v{vT}")
    a(f"v_xor_b32 v{vT+1}, v{vT+1}, v{vLANE}")
    a(f"v_and_b32 v{vT+1}, 15, v{vT+1}")
    a(f"s_lshl_b32 s{sTMP}, s{sW}, 3")
    a(f"v_add_u32 v{vT}, s{sTMP}, v{vT}")
    a(f"v_mul_u32_u24 v{vT}, 3840, v{vT}")
    a(f"v_lshl_add_u32 v{vT}, v{vT+1}, 4, v{vT}")
    a(f"s_lshl_b32 s{sTMP}, s{sNT}, 8")
    a(f"v_add_u32 v{vWO}, s{sTMP}, v{vT}")
    a(f"s_lshl_b32 s{sXM0}, s{sW}, 12")
    a(f"s_lshl_b32 s{sWM0}, s{sW}, 11")
    a(f"s_add_u32 s{sWM0}, s{sWM0}, {K1_XB}")
    a("s_waitcnt lgkmcnt(0)")
    srd(a, SX, 8, 9, 2048 * 1280)
    srd(a, SW, 10, 11, 640 * 3840)

    def dma_list(buf_s, inloop=False):
        g = []
        if "k1nodma" in OPT and inloop: return [["s_nop 0"]] * 6
        for i in range(4):
            g.append([f"s_add_u32 m0, s{buf_s}, s{sXM0}" if i == 0 else f"s_add_u32 m0, m0, 1024",
                      f"s_add_u32 s{sTMP3}, s{sXS}, {i*8*1280}",
                      f"buffer_load_dwordx4 v{vXO + (i & 1)}, s[{SX}:{SX+3}], s{sTMP3} offen lds"])
        for i in range(2):
            g.append([f"s_add_u32 m0, s{buf_s}, s{sWM0}" if i == 0 else f"s_add_u32 m0, m0, 1024",
                      f"s_add_u32 s{sTMP3}, s{sWS1}, {i*4*3840}",
                      f"buffer_load_dwordx4 v{vWO}, s[{SW}:{SW+3}], s{sTMP3} offen lds"])
        g[-1] = g[-1] + [f"s_add_u32 s{sXS}, s{sXS}, 128", f"s_add_u32 s{sWS1}, s{sWS1}, {64*3840}"]
        return g
    a(f"s_mov_b32 s{sXS}, 0")
    a(f"s_mov_b32 s{sWS1}, 0")
    a(f"s_mov_b32 s{sWRB}, 0")
    for g in dma_list(sWRB):
        for x in g: a(x)
    srd(a, SWS, 4, 5, WS_USED)
    a(f"v_and_b32 v{vT}, 31, v{vLANE}")
    a(f"v_lshrrev_b32 v{vT+1}, 5, v{vLANE}")
    a(f"v_bfe_u32 v{vT+2}, v{vLANE}, 1, 3")
    a(f"v_xor_b32 v{vT+2}, v{vT+2}, v{vT+1}")
    a(f"v_lshlrev_b32 v{vT+2}, 4, v{vT+2}")
    a(f"v_lshl_add_u32 v{vXR}, v{vT}, 7, v{vT+2}")
    a(f"s_lshl_b32 s{sTMP}, s{sWM}, 13")
    a(f"v_add_u32 v{vXR}, s{sTMP}, v{vXR}")
    for kk in range(1, 4):
        a(f"v_xor_b32 v{vXR+kk}, {kk << 5}, v{vXR}")
    a(f"v_bfe_u32 v{vT+2}, v{vLANE}, 2, 2")
    a(f"v_lshl_add_u32 v{vT+3}, v{vT+1}, 3, v{vT+2}")
    a(f"v_lshlrev_b32 v{vT+3}, 8, v{vT+3}")
    a(f"v_and_b32 v{vT+4}, 3, v{vLANE}")
    a(f"v_lshl_add_u32 v{vT+3}, v{vT+4}, 3, v{vT+3}")
    a(f"v_bfe_u32 v{vT+4}, v{vLANE}, 4, 1")
    a(f"v_lshl_add_u32 v{vT+3}, v{vT+4}, 5, v{vT+3}")
    a(f"v_add_u32 v{vT+3}, {K1_XB}, v{vT+3}")
    a(f"s_lshl_b32 s{sTMP}, s{sWN}, 1")
    for bl in range(2):
        a(f"s_add_u32 s{sTMP2}, s{sTMP}, {bl}")
        a(f"v_xor_b32 v{vT+5}, s{sTMP2}, v{vT+2}")
        a(f"v_lshl_add_u32 v{vWR+bl}, v{vT+5}, 6, v{vT+3}")
    PF = "k1pf" in OPT
    if PF:
        a(f"s_lshr_b32 s{sTMP}, s2, 3")
        a(f"s_cmp_lt_u32 s{sW}, 6")
        a("s_cbranch_scc0 K1_PFX")
        a(f"s_mul_i32 s{sTMP}, s{sTMP}, 6")
        a(f"s_add_u32 s{sTMP}, s{sTMP}, s{sW}")
        a(f"s_mul_i32 s{sTMP}, s{sTMP}, 11")
        a(f"v_min_u32 v{vT}, 10, v{vLANE}")
        a(f"v_add_u32 v{vT}, s{sTMP}, v{vT}")
        a(f"v_min_u32 v{vT}, 1919, v{vT}")
        a(f"v_mul_u32_u24 v{vT+1}, 34953, v{vT}")
        a(f"v_lshrrev_b32 v{vT+1}, 20, v{vT+1}")
        a(f"v_mul_u32_u24 v{vT+2}, 30, v{vT+1}")
        a(f"v_sub_u32 v{vT+2}, v{vT}, v{vT+2}")
        a(f"v_mul_u32_u24 v{vT+1}, 3840, v{vT+1}")
        a(f"v_lshl_add_u32 v{vPF}, v{vT+2}, 7, v{vT+1}")
        for i in range(4): a(f"s_mov_b32 s{64+i}, s{SW+i}")
        a(f"s_mov_b32 s68, {64*3840}")
        a("s_branch K1_PFD")
        a.lab("K1_PFX")
        a(f"s_lshl_b32 s{sTMP}, s{sTMP}, 1")
        a(f"s_add_u32 s{sTMP}, s{sTMP}, s{sW}")
        a(f"s_sub_u32 s{sTMP}, s{sTMP}, 6")
        a(f"s_mul_i32 s{sTMP}, s{sTMP}, 9")
        a(f"v_min_u32 v{vT}, 8, v{vLANE}")
        a(f"v_add_u32 v{vT}, s{sTMP}, v{vT}")
        a(f"v_min_u32 v{vT}, 511, v{vT}")
        a(f"s_and_b32 s{sTMP}, s2, 3")
        a(f"s_lshl_b32 s{sTMP}, s{sTMP}, 9")
        a(f"v_add_u32 v{vT}, s{sTMP}, v{vT}")
        a(f"v_mul_u32_u24 v{vPF}, 1280, v{vT}")
        for i in range(4): a(f"s_mov_b32 s{64+i}, s{SX+i}")
        a(f"s_mov_b32 s68, 128")
        a.lab("K1_PFD")
        a(f"s_mul_i32 s69, s68, {PF0}")
    def pf_group():
        return [f"buffer_load_dword v{vPF+1}, v{vPF}, s[64:67], s69 offen", f"s_add_u32 s69, s69, s68"]
    a(f"s_mul_i32 s{sSEC}, s{sNT}, 52")
    a(f"s_lshr_b32 s{sSEC}, s{sSEC}, 8")
    a(f"s_mul_i32 s{sTMP}, s{sSEC}, 5")
    a(f"s_sub_u32 s{sFB}, s{sNT}, s{sTMP}")
    a(f"s_lshl_b32 s{sFB}, s{sFB}, 7")
    a(f"s_lshl_b32 s{sTMP}, s{sWN}, 6")
    a(f"s_add_u32 s{sFB}, s{sFB}, s{sTMP}")
    a(f"s_cmp_eq_u32 s{sSEC}, 2")
    a("s_cbranch_scc1 K1_VPREP")
    a(f"s_cmp_eq_u32 s{sSEC}, 0")
    a(f"s_cselect_b32 s{sSC}, {f2u(QSCALE):#x}, 1.0")
    a(f"s_mov_b32 s{sSC+1}, s{sSC}")
    a(f"s_mov_b32 s{sTMP}, {KV_HEAD}")
    a(f"s_cselect_b32 s{sHS}, {Q_HEAD}, s{sTMP}")
    a(f"s_mov_b32 s{sTMP}, {KV_CH}")
    a(f"s_cselect_b32 s{sTMP2}, {Q_CH}, s{sTMP}")
    a(f"s_mul_i32 s{sEO}, s{sMT}, s{sTMP2}")
    a(f"s_mul_i32 s{sTMP2}, s{sBR}, {QB_OFF - QA_OFF}")
    a(f"s_add_u32 s{sTMP2}, s{sTMP2}, {QA_OFF}")
    a(f"s_mul_i32 s{sTMP3}, s{sBR}, {KVB_OFF - KVA_OFF}")
    a(f"s_cmp_eq_u32 s{sSEC}, 0")
    a(f"s_cselect_b32 s{sTMP2}, s{sTMP2}, s{sTMP3}")
    a(f"s_add_u32 s{sEO}, s{sEO}, s{sTMP2}")
    a(f"s_mul_i32 s{sTMP}, s{sWM}, 2560")
    a(f"s_add_u32 s{sEO}, s{sEO}, s{sTMP}")
    a(f"s_lshr_b32 s{sTMP}, s{sFB}, 2")
    a(f"v_lshrrev_b32 v{vT+6}, 5, v{vLANE}")
    a(f"v_add_u32 v{vT+6}, s{sTMP}, v{vT+6}")
    a(f"v_and_b32 v{vT+7}, 31, v{vLANE}")
    a(f"v_lshlrev_b32 v{vT+7}, 3, v{vT+7}")
    a(f"v_mov_b32 v{vT+8}, 0x43120")
    for e in range(8):
        a(f"v_add_u32 v{vT}, {2*e}, v{vT+6}")
        a(f"v_mul_u32_u24 v{vT+1}, 52429, v{vT}")
        a(f"v_lshrrev_b32 v{vT+1}, 18, v{vT+1}")
        a(f"v_mul_u32_u24 v{vT+2}, 5, v{vT+1}")
        a(f"v_sub_u32 v{vT+2}, v{vT}, v{vT+2}")
        a(f"v_lshlrev_b32 v{vT+2}, 2, v{vT+2}")
        a(f"v_bfe_u32 v{vT+2}, v{vT+8}, v{vT+2}, 4")
        a(f"v_lshl_add_u32 v{vT+2}, v{vT+2}, 8, v{vT+7}")
        a(f"v_mad_u32_u24 v{vEO+e}, v{vT+1}, s{sHS}, v{vT+2}")
    a("s_branch K1_T")
    a.lab("K1_VPREP")
    a(f"s_mul_i32 s{sEO}, s{sMT}, {KV_CH}")
    a(f"s_mul_i32 s{sTMP}, s{sBR}, {KVB_OFF - KVA_OFF}")
    a(f"s_add_u32 s{sEO}, s{sEO}, s{sTMP}")
    a(f"s_mul_i32 s{sTMP}, s{sWM}, {4*640}")
    a(f"s_add_u32 s{sEO}, s{sEO}, s{sTMP}")
    a(f"s_add_u32 s{sEO}, s{sEO}, 10240")
    a(f"s_mov_b32 s{sHS}, {KV_HEAD}")
    for bl in range(2):
        a(f"s_add_u32 s{sTMP}, s{sFB}, {32*bl}")
        a(f"v_and_b32 v{vT}, 31, v{vLANE}")
        a(f"v_add_u32 v{vT}, s{sTMP}, v{vT}")
        a(f"v_mul_u32_u24 v{vT+1}, 52429, v{vT}")
        a(f"v_lshrrev_b32 v{vT+1}, 20, v{vT+1}")
        a(f"v_mul_u32_u24 v{vT+2}, 20, v{vT+1}")
        a(f"v_sub_u32 v{vT+2}, v{vT}, v{vT+2}")
        a(f"v_lshrrev_b32 v{vT+3}, 5, v{vLANE}")
        a(f"v_mul_u32_u24 v{vT+3}, 320, v{vT+3}")
        a(f"v_lshl_add_u32 v{vT+3}, v{vT+2}, 4, v{vT+3}")
        a(f"v_mad_u32_u24 v{vEO+bl}, v{vT+1}, s{sHS}, v{vT+3}")
    a("s_branch K1_C")

    def variant(tag):
        a.lab(f"K1_{tag}")
        def reads(st, ph):
            out = []
            if "k1noread" in OPT: return ["s_nop 0"] * 12
            for q in range(2):
                kk = 2 * ph + q
                for j in range(2):
                    r = vXF + st * 16 + (q * 2 + j) * 4
                    out.append(f"ds_read_b128 v[{r}:{r+3}], v{vXA+kk} offset:{j*4096}")
                    r = vWF + st * 16 + (q * 2 + j) * 4
                    out.append(f"ds_read_b64_tr_b16 v[{r}:{r+1}], v{vWA+j} offset:{kk*4096}")
                    out.append(f"ds_read_b64_tr_b16 v[{r+2}:{r+3}], v{vWA+j} offset:{kk*4096+1024}")
            return out
        def mfmas(st, zero=False):
            out = []
            if "k1nomfma" in OPT: return ["s_nop 0"] * 8
            for q in range(2):
                for bl in range(2):
                    for mb in range(2):
                        acc = vACC + (bl * 2 + mb) * 16
                        xf = f"v[{vXF+st*16+(q*2+mb)*4}:{vXF+st*16+(q*2+mb)*4+3}]"
                        wf = f"v[{vWF+st*16+(q*2+bl)*4}:{vWF+st*16+(q*2+bl)*4+3}]"
                        c = "0" if (zero and q == 0) else f"v[{acc}:{acc+15}]"
                        if tag == "T":
                            out.append(f"v_mfma_f32_32x32x16_bf16 v[{acc}:{acc+15}], {wf}, {xf}, {c}")
                        else:
                            out.append(f"v_mfma_f32_32x32x16_bf16 v[{acc}:{acc+15}], {xf}, {wf}, {c}")
            return out
        def setaddr(sreg):
            return [f"v_add_u32 v{vXA+i}, s{sreg}, v{vXR+i}" for i in range(4)] + [f"v_add_u32 v{vWA+i}, s{sreg}, v{vWR+i}" for i in range(2)]
        def weave(mf, extras, upto=None):
            n = upto or len(mf); m = len(extras)
            k = 0
            for i, x in enumerate(mf):
                a(x)
                tgt = min(m, ((i + 1) * m + n - 1) // n)
                while k < tgt:
                    for y in extras[k]: a(y)
                    k += 1
        def mix(rd, dm, tail):
            ex = []
            nd = len(dm)
            for i, r in enumerate(rd):
                ex.append([r])
                if nd == 3 and i % 4 == 3: ex.append(dm[i // 4])
                if nd == 6 and i % 2 == 1: ex.append(dm[i // 2])
            return ex + tail
        def phaseA(zero, dm):
            ring = [[f"s_add_u32 s{sRD}, s{sRD}, {K1_BUF}", f"s_cmp_eq_u32 s{sRD}, {K1_LDS}", f"s_cselect_b32 s{sRD}, 0, s{sRD}"]]
            mf = mfmas(0, zero)
            weave(mf[:7], mix(reads(1, 1), dm, ring), upto=6)
            return mf[7:]
        a(f"s_mov_b32 s{sWRB}, {K1_BUF}")
        for g in dma_list(sWRB):
            for x in g: a(x)
        a(f"s_mov_b32 s{sWRB}, {2*K1_BUF}")
        NP0 = (5 - PF0) if PF else 0
        for i in range(NP0):
            for x in pf_group(): a(x)
        NP = 1 if PF else 0
        stamp(a, 2)
        a(f"s_waitcnt vmcnt({6+NP0})")
        a("s_barrier")
        stamp(a, 3)
        a(f"s_mov_b32 s{sRD}, 0")
        for x in setaddr(sRD): a(x)
        for r in reads(0, 0): a(r)
        a(f"s_mov_b32 s{sI}, 0")
        adv = [f"s_add_u32 s{sWRB}, s{sWRB}, {K1_BUF}", f"s_cmp_eq_u32 s{sWRB}, {K1_LDS}", f"s_cselect_b32 s{sWRB}, 0, s{sWRB}"]
        a("s_waitcnt lgkmcnt(0)")
        last = phaseA(True, dma_list(sWRB, True))
        for x in last: a(x)
        a(f"s_waitcnt vmcnt({6+NP0}) lgkmcnt(0)")
        a(f"s_branch K1_{tag}_WB")
        a.lab(f"K1_{tag}_LOOP")
        a("s_waitcnt lgkmcnt(0)")
        a(f"s_cmp_ge_u32 s{sI}, 8")
        a(f"s_cbranch_scc1 K1_{tag}_AND")
        last = phaseA(False, [] if "k1allc" in OPT else dma_list(sWRB, True)[3:])
        for x in last: a(x)
        a.lab(f"K1_{tag}_B")
        a(f"s_waitcnt vmcnt({6+NP}) lgkmcnt(0)")
        a.lab(f"K1_{tag}_WB")
        if "k1stamp" in OPT:
            a("s_memtime s[78:79]")
        if "k1nobar" not in OPT: a("s_barrier")
        if "k1stamp" in OPT:
            a("s_memtime s[74:75]")
            a("s_waitcnt lgkmcnt(0)")
            a(f"s_mov_b32 s79, m0")
            a(f"s_mov_b32 m0, s{sI}")
            a("s_nop 0")
            a(f"v_writelane_b32 v179, s74, m0")
            a(f"s_add_u32 m0, m0, 16")
            a("s_nop 0")
            a(f"v_writelane_b32 v179, s78, m0")
            a(f"s_mov_b32 m0, s79")
        mf = mfmas(1)
        a(mf[0])
        for x in setaddr(sRD): a(x)
        for x in adv: a(x)
        rd = reads(0, 0)
        a(f"s_cmp_ge_u32 s{sI}, 7")
        a(f"s_cbranch_scc1 K1_{tag}_ND")
        cnt = [[f"s_add_u32 s{sI}, s{sI}, 1"]]
        weave(mf[1:], mix(rd, dma_list(sWRB, True)[:3], ([pf_group()] if PF else []) + cnt), upto=6)
        a(f"s_branch K1_{tag}_LOOP")
        a.lab(f"K1_{tag}_ND")
        weave(mf[1:], mix(rd, [], cnt), upto=6)
        a(f"s_cmp_lt_u32 s{sI}, 10")
        a(f"s_cbranch_scc1 K1_{tag}_LOOP")
        stamp(a, 4)
        a("s_nop 7")
        a("s_nop 3")
        n = 0
        for bl in range(2):
            for mb in range(2):
                acc = vACC + (bl * 2 + mb) * 16
                if tag == "T":
                    for i in range(4):
                        q = acc + 4 * i
                        t = vXF + (n % 16) * 2; n += 1
                        a(f"v_pk_mul_f32 v[{q}:{q+1}], v[{q}:{q+1}], s[{sSC}:{sSC+1}]")
                        a(f"v_pk_mul_f32 v[{q+2}:{q+3}], v[{q+2}:{q+3}], s[{sSC}:{sSC+1}]")
                        a(f"v_cvt_pk_bf16_f32 v{t}, v{q}, v{q+1}")
                        a(f"v_cvt_pk_bf16_f32 v{t+1}, v{q+2}, v{q+3}")
                        a(f"buffer_store_dwordx2 v[{t}:{t+1}], v{vEO + 4*bl + i}, s[{SWS}:{SWS+3}], s{sEO} offen offset:{mb*1280}{STORE_FLAGS}")
                else:
                    for g2 in range(2):
                        q = acc + 8 * g2
                        t = vXF + (n % 8) * 4; n += 1
                        for i in range(4):
                            a(f"v_cvt_pk_bf16_f32 v{t+i}, v{q+2*i}, v{q+2*i+1}")
                        a(f"buffer_store_dwordx4 v[{t}:{t+3}], v{vEO+bl}, s[{SWS}:{SWS+3}], s{sEO} offen offset:{(2*mb+g2)*640}{STORE_FLAGS}")
        a("s_branch K1_FIN")
        a.lab(f"K1_{tag}_AND")
        last = phaseA(False, [])
        for x in last: a(x)
        a("s_waitcnt vmcnt(0) lgkmcnt(0)")
        a(f"s_branch K1_{tag}_WB")
    variant("T")
    variant("C")

    GPF0 = optval("gpf0", 3)
    a.lab("K1_GATE")
    a("s_waitcnt lgkmcnt(0)")
    srd(a, SX, 8, 9, 2048 * 1280)
    srd(a, SG, 6, 7, 1280)
    srd(a, SWS, 4, 5, WS_USED)
    TS = optval("tlbin", 0)
    if TS:
        srd(a, SW, 10, 11, 640 * 3840)
        sh = {4: 12, 16: 14, 64: 16}[TS]
        a(f"s_lshr_b32 s{sTMP}, s2, 3")
        a(f"s_and_b32 s{sTMP}, s{sTMP}, 1")
        a(f"s_lshl_b32 s{sTMP}, s{sTMP}, 3")
        a(f"s_add_u32 s{sTMP}, s{sTMP}, s{sW}")
        a(f"s_lshl_b32 s{sTMP}, s{sTMP}, 6")
        a(f"v_add_u32 v{vT+1}, s{sTMP}, v{vLANE}")
        a(f"v_lshlrev_b32 v{vT+1}, {sh}, v{vT+1}")
        n = max(1, -(-2621440 // ((1024) << sh)))
        for i in range(n):
            a(f"s_mov_b32 s{sTMP2}, {i * (1024 << sh)}")
            a(f"buffer_load_dword v{vPF}, v{vT+1}, s[{SW}:{SW+3}], s{sTMP2} offen")
            a(f"buffer_load_dword v{vPF+1}, v{vT+1}, s[{SX}:{SX+3}], s{sTMP2} offen")
    if "gpf" in OPT:
        srd(a, SW, 10, 11, 640 * 3840)
        a(f"s_lshr_b32 s{sTMP}, s2, 3")
        a(f"s_and_b32 s{sTMP}, s{sTMP}, 1")
        a(f"v_cmp_le_u32 vcc, 30, v{vLANE}")
        a(f"v_mov_b32 v{vT+1}, 0")
        a(f"v_mov_b32 v{vT+2}, {3840 - 30*128}")
        a(f"v_cndmask_b32 v{vT+1}, v{vT+1}, v{vT+2}, vcc")
        a(f"v_min_u32 v{vT+2}, 59, v{vLANE}")
        a(f"v_lshl_add_u32 v{vT+1}, v{vT+2}, 7, v{vT+1}")
        a(f"s_lshl_b32 s{sTMP2}, s{sTMP}, 5")
        a(f"s_lshl_b32 s{sTMP3}, s{sW}, 2")
        a(f"s_add_u32 s{sTMP2}, s{sTMP2}, s{sTMP3}")
        a(f"s_add_u32 s{sTMP2}, s{sTMP2}, {64*GPF0}")
        a(f"s_mul_i32 s{sTMP2}, s{sTMP2}, 3840")
        a(f"s_and_b32 s{sTMP3}, s2, 3")
        a(f"s_lshl_b32 s{sTMP3}, s{sTMP3}, 9")
        a(f"s_lshl_b32 s{sTMP}, s{sTMP}, 8")
        a(f"s_add_u32 s{sTMP3}, s{sTMP3}, s{sTMP}")
        a(f"s_and_b32 s{sTMP}, s{sW}, 3")
        a(f"s_lshl_b32 s{sTMP}, s{sTMP}, 6")
        a(f"s_add_u32 s{sTMP3}, s{sTMP3}, s{sTMP}")
        a(f"v_add_u32 v{vT+2}, s{sTMP3}, v{vLANE}")
        a(f"v_mul_u32_u24 v{vT+2}, 1280, v{vT+2}")
        a(f"s_mov_b32 s{sTMP3}, {128*GPF0}")
        for st in range(GPF0, 10):
            a(f"buffer_load_dword v{vPF}, v{vT+1}, s[{SW}:{SW+3}], s{sTMP2} offen")
            a(f"s_add_u32 s{sTMP}, s{sTMP2}, {2*3840}")
            a(f"buffer_load_dword v{vPF+1}, v{vT+1}, s[{SW}:{SW+3}], s{sTMP} offen")
            a(f"buffer_load_dword v{vPF+2}, v{vT+2}, s[{SX}:{SX+3}], s{sTMP3} offen")
            a(f"s_add_u32 s{sTMP2}, s{sTMP2}, {64*3840}")
            a(f"s_add_u32 s{sTMP3}, s{sTMP3}, 128")
    if "notlb" not in OPT:
        a(f"v_lshlrev_b32 v{vT+1}, 16, v{vLANE}")
        a(f"s_lshl_b32 s{sTMP}, s{sW}, 22")
        a(f"s_cmp_lt_u32 s{sW}, 6")
        a(f"s_cbranch_scc0 K1_NOTLB")
        a(f"buffer_load_dword v{vPF}, v{vT+1}, s[{SWS}:{SWS+3}], s{sTMP} offen")
        a.lab("K1_NOTLB")
    if "nocodepf" not in OPT:
        a(f"s_getpc_b64 s[78:79]")
        a.lab("K1_PC")
        a(f"s_add_u32 s78, s78, k2_attn_kernel-K1_PC")
        a(f"s_addc_u32 s79, s79, 0")
        a(f"v_lshlrev_b32 v{vT+1}, 7, v{vLANE}")
        a(f"s_lshl_b32 s{sTMP}, s{sW}, 13")
        a(f"v_add_u32 v{vT+1}, s{sTMP}, v{vT+1}")
        a(f"s_cmp_ge_u32 s{sW}, K2CODE_WAVES")
        a("s_cbranch_scc1 K1_NOCPF")
        a(f"global_load_dword v{vPF+2}, v{vT+1}, s[78:79]")
        a.lab("K1_NOCPF")
    a(f"s_cmp_lg_u32 s2, 240")
    a("s_cbranch_scc1 K1_NOZ")
    a(f"s_cmp_ge_u32 s{sW}, 4")
    a("s_cbranch_scc1 K1_NOZ")
    a(f"v_lshlrev_b32 v{vT+1}, 7, v{vLANE}")
    a(f"v_mov_b32 v{vT+2}, 0")
    a(f"s_lshl_b32 s{sTMP}, s{sW}, 13")
    a(f"s_add_u32 s{sTMP}, s{sTMP}, {FL_OFF}")
    a(f"buffer_store_dword v{vT+2}, v{vT+1}, s[{SWS}:{SWS+3}], s{sTMP} offen")
    a.lab("K1_NOZ")
    a(f"s_sub_u32 s{sTMP}, s2, 240")
    a(f"s_lshl_b32 s{sTMP}, s{sTMP}, 3")
    a(f"s_add_u32 s{sTMP}, s{sTMP}, s{sW}")
    a(f"s_cmp_ge_u32 s{sTMP}, 120")
    a("s_cbranch_scc1 K1_GATE2")
    a(f"s_mul_i32 s{sTMP2}, s{sTMP}, 171")
    a(f"s_lshr_b32 s{sTMP2}, s{sTMP2}, 9")
    a(f"s_mul_i32 s{sTMP3}, s{sTMP2}, 3")
    a(f"s_sub_u32 s{sTMP3}, s{sTMP}, s{sTMP3}")
    a("s_load_dwordx2 s[58:59], s[0:1], 16")
    a("s_load_dwordx2 s[70:71], s[0:1], 40")
    a(f"s_mul_i32 s{sD}, s{sTMP3}, 448")
    a(f"v_lshrrev_b32 v{vT+1}, 5, v{vLANE}")
    a(f"v_mul_u32_u24 v{vT+1}, 1280, v{vT+1}")
    a(f"v_and_b32 v{vT+2}, 31, v{vLANE}")
    a(f"v_lshl_add_u32 v{vT+1}, v{vT+2}, 4, v{vT+1}")
    a(f"v_add_u32 v{vT+1}, s{sD}, v{vT+1}")
    a(f"s_lshl_b32 s{sEO}, s{sW}, 14")
    a("s_waitcnt lgkmcnt(0)")
    srd(a, 60, 58, 59, 640 * 1280)
    srd(a, 64, 70, 71, 640 * 1280)
    for g in range(4):
        a(f"s_lshl_b32 s72, s{sTMP2}, 2")
        a(f"s_add_u32 s72, s72, {g}")
        a(f"s_mul_i32 s73, s72, 205")
        a(f"s_lshr_b32 s73, s73, 10")
        a(f"s_mul_i32 s74, s73, 5")
        a(f"s_sub_u32 s74, s72, s74")
        a(f"s_mul_i32 s73, s73, 20")
        for quad in range(2):
            a(f"s_and_b32 s76, s74, 1")
            a(f"s_lshl_b32 s76, s76, 3")
            a(f"s_add_u32 s76, s76, {4*quad}")
            a(f"s_lshr_b32 s77, s74, 1")
            a(f"s_cmp_eq_u32 s74, 4")
            a(f"s_cselect_b32 s76, 16, s76")
            a(f"s_cselect_b32 s77, {quad}, s77")
            a(f"s_add_u32 s76, s76, s73")
            a(f"s_mul_i32 s76, s76, 1280")
            a(f"s_cmp_eq_u32 s77, 0")
            a(f"s_cbranch_scc0 K1_WB{g}{quad}")
            for r2 in range(2):
                a(f"s_add_u32 m0, s{sEO}, {(g*4 + quad*2 + r2)*1024}")
                a(f"s_add_u32 s{sD}, s76, {r2*2*1280}")
                a(f"buffer_load_dwordx4 v{vT+1}, s[60:63], s{sD} offen lds")
            a(f"s_branch K1_WD{g}{quad}")
            a.lab(f"K1_WB{g}{quad}")
            for r2 in range(2):
                a(f"s_add_u32 m0, s{sEO}, {(g*4 + quad*2 + r2)*1024}")
                a(f"s_add_u32 s{sD}, s76, {r2*2*1280}")
                a(f"buffer_load_dwordx4 v{vT+1}, s[64:67], s{sD} offen lds")
            a.lab(f"K1_WD{g}{quad}")
    a(f"v_lshrrev_b32 v{vT+2}, 4, v{vLANE}")
    a(f"v_bfe_u32 v{vT+3}, v{vLANE}, 2, 2")
    a(f"v_lshl_add_u32 v{vT+2}, v{vT+2}, 3, v{vT+3}")
    a(f"v_lshlrev_b32 v{vT+2}, 9, v{vT+2}")
    a(f"v_and_b32 v{vT+3}, 3, v{vLANE}")
    a(f"v_lshl_add_u32 v{vT+2}, v{vT+3}, 3, v{vT+2}")
    a(f"v_add_u32 v{vT+2}, s{sEO}, v{vT+2}")
    a(f"v_lshlrev_b32 v{vT+3}, 4, v{vLANE}")
    a("s_waitcnt vmcnt(0)")
    for j in range(14):
        a(f"ds_read_b64_tr_b16 v[{vXF+4*j}:{vXF+4*j+1}], v{vT+2} offset:{j*32}")
        a(f"ds_read_b64_tr_b16 v[{vXF+4*j+2}:{vXF+4*j+3}], v{vT+2} offset:{j*32+2048}")
    a(f"s_mul_i32 s{sTMP3}, s{sTMP3}, 14")
    a("s_waitcnt lgkmcnt(0)")
    for j in range(14):
        a(f"s_add_u32 s{sTMP4}, s{sTMP3}, {j}")
        a(f"s_cmp_ge_u32 s{sTMP4}, 40")
        a("s_cbranch_scc1 K1_GATE2")
        a(f"s_mul_i32 s{sD}, s{sTMP4}, 52")
        a(f"s_lshr_b32 s{sD}, s{sD}, 8")
        a(f"s_mul_i32 s{sEO}, s{sD}, 5")
        a(f"s_sub_u32 s{sEO}, s{sTMP4}, s{sEO}")
        a(f"s_mul_i32 s{sD}, s{sD}, 40")
        a(f"s_add_u32 s{sD}, s{sD}, s{sTMP2}")
        a(f"s_mul_i32 s{sD}, s{sD}, 5")
        a(f"s_add_u32 s{sD}, s{sD}, s{sEO}")
        a(f"s_lshl_b32 s{sD}, s{sD}, 10")
        a(f"s_add_u32 s{sD}, s{sD}, {WT_OFF}")
        a(f"buffer_store_dwordx4 v[{vXF+4*j}:{vXF+4*j+3}], v{vT+3}, s[{SWS}:{SWS+3}], s{sD} offen")
    a.lab("K1_GATE2")
    a("s_nop 1")
    a(f"s_sub_u32 s{sTMP}, s2, 240")
    a(f"s_lshl_b32 s{sTMP}, s{sTMP}, 7")
    a(f"s_lshl_b32 s{sTMP2}, s{sW}, 4")
    a(f"s_add_u32 s{sI}, s{sTMP}, s{sTMP2}")
    a(f"v_lshlrev_b32 v{vT}, 2, v{vLANE}")
    for j in range(5):
        a(f"buffer_load_dword v{vT+7+j}, v{vT}, s[{SG}:{SG+3}], 0 offen offset:{j*256}")
    a(f"s_mul_i32 s{sTMP4}, s{sI}, 1280")
    for r in range(16):
        for j in range(5):
            a(f"buffer_load_dword v{vXF+r*5+j}, v{vT}, s[{SX}:{SX+3}], s{sTMP4} offen offset:{j*256}")
        a(f"s_add_u32 s{sTMP4}, s{sTMP4}, 1280")
        if r == 9: a("s_waitcnt vmcnt(20)")
    a("s_waitcnt vmcnt(0)")
    gw = vT + 7
    for j in range(5):
        a(f"v_lshlrev_b32 v{vT+2+j}, 16, v{gw+j}")
        a(f"v_and_b32 v{gw+j}, 0xffff0000, v{gw+j}")
    vG = 112
    for r in range(16):
        a(f"v_mov_b32 v{vG+r}, 0")
        for j in range(5):
            x = vXF + r * 5 + j
            a(f"v_lshlrev_b32 v{vT}, 16, v{x}")
            a(f"v_and_b32 v{x}, 0xffff0000, v{x}")
            a(f"v_fmac_f32 v{vG+r}, v{vT}, v{vT+2+j}")
            a(f"v_fmac_f32 v{vG+r}, v{x}, v{gw+j}")
    for rr in (8, 4, 2, 1):
        a("s_nop 1")
        for r in range(16):
            a(f"v_add_f32_dpp v{vG+r}, v{vG+r}, v{vG+r} row_ror:{rr} row_mask:0xf bank_mask:0xf")
    for r in range(16):
        a(f"v_mov_b32 v{vG+16+r}, v{vG+r}")
    a("s_nop 1")
    for r in range(16):
        a(f"v_permlane32_swap_b32 v{vG+r}, v{vG+16+r}")
    a("s_nop 1")
    for r in range(16):
        a(f"v_add_f32 v{vG+r}, v{vG+r}, v{vG+16+r}")
        a(f"v_mov_b32 v{vG+16+r}, v{vG+r}")
    a("s_nop 1")
    for r in range(16):
        a(f"v_permlane16_swap_b32 v{vG+r}, v{vG+16+r}")
    a("s_nop 1")
    for r in range(16):
        a(f"v_add_f32 v{vG+r}, v{vG+r}, v{vG+16+r}")
    a(f"v_and_b32 v{vT}, 15, v{vLANE}")
    a(f"v_mov_b32 v{vT+1}, v{vG}")
    for r in range(1, 16):
        a(f"v_cmp_eq_u32 vcc, {r}, v{vT}")
        a("s_nop 1")
        a(f"v_cndmask_b32 v{vT+1}, v{vT+1}, v{vG+r}, vcc")
    a(f"v_mul_f32 v{vT+1}, {f2u(-1.4426950408889634):#x}, v{vT+1}")
    a(f"v_exp_f32 v{vT+1}, v{vT+1}")
    a("s_nop 0")
    a(f"v_add_f32 v{vT+1}, 1.0, v{vT+1}")
    a(f"v_rcp_f32 v{vT+1}, v{vT+1}")
    a(f"s_lshl_b32 s{sTMP}, s{sI}, 2")
    a(f"s_add_u32 s{sTMP}, s{sTMP}, {G_OFF}")
    a(f"v_lshlrev_b32 v{vT}, 2, v{vT}")
    a("s_mov_b64 exec, 0xffff")
    a(f"buffer_store_dword v{vT+1}, v{vT}, s[{SWS}:{SWS+3}], s{sTMP} offen")
    a("s_branch K1_END")
    a.lab("K1_FIN")
    if "k1stamp" in OPT:
        a(f"s_lshl_b32 s97, s2, 3")
        a(f"s_add_u32 s97, s97, s{sW}")
        a(f"s_lshl_b32 s97, s97, 7")
        a(f"s_add_u32 s97, s97, {PROF_OFF + 3 * 0x100000}")
        a(f"v_lshlrev_b32 v{vT}, 2, v{vLANE}")
        a("s_mov_b64 exec, 0xffffffff")
        a(f"buffer_store_dword v179, v{vT}, s[{SWS}:{SWS+3}], s97 offen")
        a("s_mov_b64 exec, -1")
    stamp(a, 5)
    if PROF: a("s_waitcnt vmcnt(0)")
    stamp(a, 6)
    stamp_flush(a, 0, 7, SWS, sW, vT)
    a.lab("K1_END")
    a("s_endpgm")
    return name, NV

K2_LDS = 163840
NEGBIG = -1.0e30

def mask_table():
    vals = []
    for j in range(6):
        for l in range(64):
            c = l & 31; h = l >> 5
            for i in range(4):
                if j < 4:
                    r = j * 4 + i
                    row = (r & 3) + 8 * (r >> 2) + 4 * h
                    diff = c + 16 - row
                else:
                    r = (j - 4) * 4 + i
                    row = (r & 3) + 8 * (r >> 2) + 4 * h
                    diff = c - 16 - row
                ok = 0 <= diff <= 14 and diff % 2 == 0
                vals.append(0 if ok else f2u(NEGBIG))
    return vals

K2_PRIO_TILE = 5
def gen_k2(a):
    FUSE = "nofuse" not in OPT
    name = "k2_attn_kernel"
    kernel_head(a, name)
    SWS = 8
    sW = 12; sHEAD = 13; sQB = 14; sS0 = 15; sT0 = 16; sT1 = 17; sT2 = 18; sT3 = 19
    sC = 20; sPASS = 21; sVM = 22
    sLO = 24
    sGRP = 26; sPR = 27
    sDS = 28; sDG = 29
    sAV = 30
    sQA = 33; sGO = 35
    sDO = 44
    sWL = 49; sWS = 58; sWS0 = 59; sWC = 66; sFAIL = 67
    vLANE = 1; vL16 = 2; vK8 = 3; vVA = 4; vKe = 5; vKo = 6; vK4c = 7
    vT = 8
    vGATE = 16; vVc = 17
    vAKO = 18
    vPFA = 22; vQO = 23
    vQ16 = [24, 28]; vQ8 = [32, 34]
    vQA16 = 36; vQA8 = 40
    vKA = 44; vKB = 52; vV1 = 56; vV2 = 64; vP = 72
    S = [84, 100]; NEG = [116, 132]; O = [148, 164]
    vAK = 180; vAV = 192; vMX = 204; vMY = 220
    vOB = 236; vDUM = 244; vOSA = 245
    NV = 248
    ONES = 0x3f803f80
    vS0, vS1 = S

    a("s_cmp_ge_u32 s2, 256")
    a("s_cbranch_scc1 K2_END")
    stamp(a, 0)
    a("s_load_dwordx2 s[4:5], s[0:1], 72")
    if FUSE:
        a("s_load_dwordx2 s[60:61], s[0:1], 56")
    a(f"v_and_b32 v{vLANE}, 63, v0")
    a(f"v_lshrrev_b32 v{vT}, 6, v0")
    a(f"s_and_b32 s{sHEAD}, s2, 7")
    a(f"v_readfirstlane_b32 s{sW}, v{vT}")
    a(f"s_lshl_b32 s{sHEAD}, s{sHEAD}, 2")
    a(f"s_lshr_b32 s{sT0}, s2, 6")
    a(f"s_add_u32 s{sHEAD}, s{sHEAD}, s{sT0}")
    a(f"s_lshr_b32 s{sQB}, s2, 3")
    a(f"s_and_b32 s{sQB}, s{sQB}, 7")
    a(f"v_lshlrev_b32 v{vL16}, 4, v{vLANE}")
    a(f"v_and_b32 v{vT}, 31, v{vLANE}")
    a(f"v_lshlrev_b32 v{vK8}, 3, v{vT}")
    a(f"v_lshrrev_b32 v{vT+1}, 5, v{vLANE}")
    a(f"v_lshl_add_u32 v{vQO}, v{vT+1}, 8, v{vK8}")
    a(f"s_lshr_b32 s{sGRP}, s{sW}, 2")
    a(f"s_and_b32 s{sPR}, s{sW}, 3")
    a(f"s_mul_i32 s{sDS}, s{sHEAD}, {KV_HEAD}")
    a(f"s_add_u32 s{sDS}, s{sDS}, {KVB_OFF}")
    for j in range(5):
        a(f"s_add_u32 s{sT0}, s{sW}, {8*j}")
        a(f"s_lshl_b32 s{sDO+j}, s{sT0}, 10")
        a(f"s_cmp_ge_u32 s{sT0}, 20")
        a(f"s_cselect_b32 s{sT1}, {4*KV_CH - 20*1024}, 0")
        a(f"s_add_u32 s{sDO+j}, s{sDO+j}, s{sT1}")
    a(f"s_mul_i32 s{sQA}, s{sHEAD}, {Q_HEAD}")
    a(f"s_lshl_b32 s{sT1}, s{sQB}, 3")
    a(f"s_lshl_b32 s{sT2}, s{sPR}, 1")
    a(f"s_add_u32 s{sT1}, s{sT1}, s{sT2}")
    a(f"s_mul_i32 s{sT1}, s{sT1}, 1280")
    a(f"s_add_u32 s{sQA}, s{sQA}, s{sT1}")
    a(f"s_add_u32 s{sT0}, s{sQA}, {QB_OFF}")
    a(f"s_mov_b32 s{sDG}, 0")
    a("s_waitcnt lgkmcnt(0)")
    srd(a, SWS, 4, 5, WS_USED)
    def dma1(j):
        return [f"s_add_u32 m0, s{sDO+j}, s{sDG}",
                f"s_add_u32 s{sT3}, m0, s{sDS}",
                f"buffer_load_dwordx4 v{vL16}, s[{SWS}:{SWS+3}], s{sT3} offen lds"]
    def qloads(q16, q8, sreg, off):
        return [f"buffer_load_dwordx2 v[{q16}:{q16+1}], v{vQO}, s[{SWS}:{SWS+3}], s{sreg} offen offset:{off}",
                f"buffer_load_dwordx2 v[{q16+2}:{q16+3}], v{vQO}, s[{SWS}:{SWS+3}], s{sreg} offen offset:{off+512}",
                f"buffer_load_dwordx2 v[{q8}:{q8+1}], v{vK8}, s[{SWS}:{SWS+3}], s{sreg} offen offset:{off+1024}"]
    for j in range(5):
        for x in dma1(j): a(x)
    for sg in range(2):
        for x in qloads(vQ16[sg], vQ8[sg], sT0, sg * 1280): a(x)
    a(f"s_add_u32 s{sDG}, s{sDG}, {KV_CH}")
    stamp(a, 1)
    a(f"s_mov_b32 s{sVM}, 0x000fffff")
    a(f"s_mov_b32 s{sVM+1}, 0x000fffff")
    a(f"s_mov_b32 s{sLO}, -1")
    a(f"s_mov_b32 s{sLO+1}, 0")
    a(f"v_and_b32 v{vT}, 31, v{vLANE}")
    a(f"v_lshrrev_b32 v{vT+1}, 5, v{vLANE}")
    a(f"v_mul_u32_u24 v{vVA}, 20, v{vT+1}")
    a(f"v_add_u32 v{vVA}, v{vVA}, v{vT}")
    a(f"v_lshlrev_b32 v{vVA}, 4, v{vVA}")
    for sg in range(2):
        for i in range(0, 16, 2):
            a(f"v_mov_b64 v[{O[sg]+i}:{O[sg]+i+1}], 0")
    a(f"v_mov_b64 v[{vP+4}:{vP+5}], 0")
    a(f"v_mov_b64 v[{vP+6}:{vP+7}], 0")
    a(f"s_lshl_b32 s{sS0}, s{sQB}, 8")
    a(f"s_lshl_b32 s{sT0}, s{sPR}, 6")
    a(f"s_add_u32 s{sS0}, s{sS0}, s{sT0}")
    a(f"s_lshl_b32 s{sT0}, s{sGRP}, 5")
    a(f"s_add_u32 s{sS0}, s{sS0}, s{sT0}")
    a(f"s_mul_i32 s{sT0}, s{sGRP}, 1280")
    a(f"s_add_u32 s{sQA}, s{sQA}, s{sT0}")
    a(f"s_add_u32 s{sQA}, s{sQA}, {QA_OFF}")
    a(f"s_lshl_b32 s{sT0}, s{sHEAD}, 6")
    a(f"s_lshr_b32 s{sT1}, s{sS0}, 5")
    a(f"s_add_u32 s{sT0}, s{sT0}, s{sT1}")
    for k, dT in enumerate((-1, 0, 1)):
        a(f"s_add_i32 s{sT1}, s{sT0}, {dT}")
        a(f"s_ashr_i32 s{sT2}, s{sT1}, 3")
        a(f"s_mul_i32 s{sT2}, s{sT2}, {KV_CH}")
        a(f"s_and_b32 s{sT1}, s{sT1}, 7")
        a(f"s_mul_i32 s{sT1}, s{sT1}, 1280")
        a(f"s_add_u32 s{50+k}, s{sT1}, s{sT2}")
    a(f"s_add_u32 s50, s50, 128")
    a(f"s_sub_u32 s53, s51, 128")
    a(f"s_add_u32 s51, s51, 128")
    a(f"s_sub_u32 s52, s52, 128")
    a(f"s_mov_b32 s54, 0xffff")
    a(f"s_mov_b32 s55, 0xffff")
    a(f"v_add_u32 v{vAKO+1}, s53, v{vK8}")
    a(f"v_add_u32 v{vAKO+3}, s52, v{vK8}")
    a(f"s_mov_b64 exec, s[54:55]")
    a(f"v_add_u32 v{vAKO+1}, s50, v{vK8}")
    a(f"v_add_u32 v{vAKO+3}, s51, v{vK8}")
    a("s_mov_b64 exec, -1")
    a(f"v_sub_u32 v{vT+7}, v{vQO}, v{vK8}")
    a(f"v_add_u32 v{vAKO}, v{vAKO+1}, v{vT+7}")
    a(f"v_add_u32 v{vAKO+2}, v{vAKO+3}, v{vT+7}")
    a(f"s_lshl_b32 s{sT0}, s{sHEAD}, 7")
    a(f"s_lshr_b32 s{sT1}, s{sS0}, 4")
    a(f"s_add_u32 s{sT0}, s{sT0}, s{sT1}")
    for j in range(3):
        a(f"s_add_i32 s{sT1}, s{sT0}, {j-1}")
        a(f"s_max_i32 s{sT1}, s{sT1}, 0")
        a(f"s_lshr_b32 s{sT2}, s{sT1}, 4")
        a(f"s_mul_i32 s{sT2}, s{sT2}, {KV_CH}")
        a(f"s_and_b32 s{sT1}, s{sT1}, 15")
        a(f"s_mul_i32 s{sT1}, s{sT1}, 640")
        a(f"s_add_u32 s{sT1}, s{sT1}, s{sT2}")
        a(f"s_add_u32 s{sAV+j}, s{sT1}, 10240")
    a(f"s_lshl_b32 s{sGO}, s{sS0}, 2")
    a(f"s_add_u32 s{sGO}, s{sGO}, {G_OFF}")
    a(f"v_mov_b32 v{vT+2}, 0")
    a(f"v_mov_b32 v{vT+3}, {ONES:#x}")
    if "vones" in OPT:
        a(f"v_mov_b32 v{vT+2}, {ONES:#x}")
    else:
        a(f"v_and_b32 v{vT+4}, 27, v{vT}")
        a.l.pop()
        a(f"v_cmp_eq_u32 vcc, 20, v{vT}")
        a(f"v_cmp_eq_u32 s[38:39], 24, v{vT}")
        a("s_nop 1")
        a("s_or_b64 vcc, vcc, s[38:39]")
        a("s_nop 1")
        a(f"v_cndmask_b32 v{vT+2}, v{vT+2}, v{vT+3}, vcc")
    a(f"v_mov_b32 v{vT+3}, v{vT+2}")
    for i in range(0, 12, 2):
        a(f"v_mov_b64 v[{vAV+i}:{vAV+i+1}], v[{vT+2}:{vT+3}]")
    for i in range(0, 16, 2):
        a(f"v_mov_b64 v[{vV1+i}:{vV1+i+1}], v[{vT+2}:{vT+3}]")
    a(f"s_lshr_b32 s{sT0}, s{sS0}, 4")
    a(f"s_mul_i32 s{sT0}, s{sT0}, {40*1024}")
    a(f"s_mul_i32 s{sT1}, s{sHEAD}, {5*256}")
    a(f"s_add_u32 s{sT0}, s{sT0}, s{sT1}")
    a(f"v_bfe_u32 v{vT+2}, v{vLANE}, 4, 1")
    a(f"v_mul_u32_u24 v{vT+2}, {40*1024}, v{vT+2}")
    a(f"v_and_b32 v{vT+3}, 15, v{vLANE}")
    a(f"v_lshl_add_u32 v{vT+3}, v{vT+3}, 4, v{vT+2}")
    a(f"v_lshrrev_b32 v{vT+2}, 5, v{vLANE}")
    a(f"v_lshl_add_u32 v{vT+3}, v{vT+2}, 8, v{vT+3}")
    a(f"v_add_u32 v{vOSA}, s{sT0}, v{vT+3}")
    a(f"s_getpc_b64 s[56:57]")
    a.lab("K2_PC")
    a(f"s_add_u32 s56, s56, K2_TABLE-K2_PC")
    a(f"s_addc_u32 s57, s57, 0")
    if not FUSE:
        a("s_lshr_b32 s36, s2, 3")
        a("s_lshl_b32 s36, s36, 3")
        a(f"s_add_u32 s36, s36, s{sW}")
        a("s_mul_i32 s36, s36, 50")
        a(f"v_min_u32 v{vPFA}, 49, v{vLANE}")
        a(f"v_add_u32 v{vPFA}, s36, v{vPFA}")
        a(f"v_lshlrev_b32 v{vPFA}, 7, v{vPFA}")
        a(f"v_add_u32 v{vPFA}, {WT_OFF}, v{vPFA}")
    if FUSE:
        a(f"s_mov_b32 s64, s{sHEAD}")
        a(f"s_mov_b32 s65, s{sQB}")
        a(f"s_mul_i32 s{sWS0}, s65, {200*1024}")
        a(f"s_lshl_b32 s{sT0}, s{sW}, 10")
        a(f"s_add_u32 s{sWS0}, s{sWS0}, s{sT0}")
        a(f"s_add_u32 s{sWS0}, s{sWS0}, {WT_OFF}")
        a(f"s_mov_b32 s{sWS}, s{sWS0}")
        a(f"s_mov_b32 s{sWL}, 0")
        a(f"s_mov_b32 s{sWC}, 2")
    a(f"s_mov_b32 s{sPASS}, 0")
    a(f"s_mul_i32 s37, s{sGRP}, {4*KV_CH}")
    stamp(a, 2)
    a("s_waitcnt vmcnt(0)")
    a(f"s_mov_b64 exec, s[{sLO}:{sLO+1}]")
    a(f"s_not_b64 exec, exec")
    for sg in range(2):
        a(f"v_mov_b32 v{vQ8[sg]}, 0")
        a(f"v_mov_b32 v{vQ8[sg]+1}, 0")
    a("s_mov_b64 exec, -1")
    a("s_barrier")
    stamp(a, 3)
    def rdK16(dst, rel_chunk, tt):
        base = vKe if tt % 2 == 0 else vKo
        o0 = rel_chunk * 40 + (tt >> 1) * 5
        return f"ds_read2st64_b64 v[{dst}:{dst+3}], v{base} offset0:{o0} offset1:{o0+1}"
    def rdK4(dst, rel_chunk, tt):
        return f"ds_read_b64 v[{dst}:{dst+1}], v{vK4c} offset:{rel_chunk*KV_CH + tt*1280 + 1024}"
    def voff(g):
        return (g // 16) * KV_CH + (g % 16) * 640
    def setbases():
        a(f"v_add_u32 v{vKe}, s37, v{vQO}")
        a(f"v_add_u32 v{vKo}, 1280, v{vKe}")
        a(f"v_add_u32 v{vK4c}, s37, v{vK8}")
        a(f"v_add_u32 v{vVc}, s37, v{vVA}")
        a(f"v_add_u32 v{vVc}, 10240, v{vVc}")
    def qk(dst, ka, kb, sg, c):
        return [f"v_mfma_f32_32x32x16_bf16 v[{dst}:{dst+15}], v[{ka}:{ka+3}], v[{vQ16[sg]}:{vQ16[sg]+3}], {c}",
                f"v_mfma_f32_32x32x8_bf16 v[{dst}:{dst+15}], v[{kb}:{kb+1}], v[{vQ8[sg]}:{vQ8[sg]+1}], v[{dst}:{dst+15}]"]
    def rowmax(m, regs, first=None):
        if first is None:
            a(f"v_max3_f32 v{m}, v{regs[0]}, v{regs[1]}, v{regs[2]}")
            rest = regs[3:]
        else:
            rest = regs
        i = 0
        while i + 1 < len(rest):
            a(f"v_max3_f32 v{m}, v{m}, v{rest[i]}, v{rest[i+1]}")
            i += 2
        if i < len(rest):
            a(f"v_max_f32 v{m}, v{m}, v{rest[i]}")
    a.lab("K2_START")
    setbases()
    a(rdK16(vKA, 0, 0))
    a(rdK4(vKB, 0, 0))
    a(f"s_mov_b64 exec, s[{sVM}:{sVM+1}]")
    a(f"ds_read_b128 v[{vV1}:{vV1+3}], v{vVc}")
    a("s_mov_b64 exec, -1")
    a(f"s_cmp_lg_u32 s{sPASS}, 0")
    a("s_cbranch_scc1 K2_HAVEM")
    a("s_waitcnt lgkmcnt(0)")
    for sg in range(2):
        for x in qk(S[sg], vKA, vKB, sg, "0"): a(x)
    a("s_nop 9")
    for sg in range(2):
        m = vT + 2 * sg
        rowmax(m, [S[sg] + i for i in range(16)])
        a(f"v_mov_b32 v{m+1}, v{m}")
    a("s_nop 1")
    for sg in range(2):
        m = vT + 2 * sg
        a(f"v_permlane32_swap_b32 v{m}, v{m+1}")
    a("s_nop 1")
    for sg in range(2):
        m = vT + 2 * sg
        a(f"v_max_f32 v{m}, v{m}, v{m+1}")
        a(f"v_sub_f32 v{NEG[sg]}, 0, v{m}")
        a(f"v_sub_f32 v{NEG[sg]+1}, 0, v{m}")
        for i in range(2, 16, 2):
            a(f"v_mov_b64 v[{NEG[sg]+i}:{NEG[sg]+i+1}], v[{NEG[sg]}:{NEG[sg]+1}]")
    a.lab("K2_HAVEM")
    a("s_waitcnt lgkmcnt(0)")
    a("s_nop 1")
    for x in qk(S[0], vKA, vKB, 0, f"v[{NEG[0]}:{NEG[0]+15}]"): a(x)
    a(f"s_mov_b32 s{sC}, 0")
    a("s_nop 15")
    stamp(a, 4)
    a.lab("K2_LOOP")
    if "chunkstamp" in OPT:
        a("s_memtime s[78:79]")
        a("s_waitcnt lgkmcnt(0)")
        a(f"s_mov_b32 s79, m0")
        a(f"s_mov_b32 m0, s{sC}")
        a("s_nop 0")
        a(f"v_writelane_b32 v247, s78, m0")
        a(f"s_mov_b32 m0, s79")
    aloads = [
        qloads(vQA16, vQA8, sQA, 0),
        [f"buffer_load_dwordx2 v[{vAK}:{vAK+1}], v{vAKO}, s[{SWS}:{SWS+3}], 0 offen",
         f"buffer_load_dwordx2 v[{vAK+2}:{vAK+3}], v{vAKO}, s[{SWS}:{SWS+3}], 0 offen offset:512",
         f"buffer_load_dwordx2 v[{vAK+8}:{vAK+9}], v{vAKO+1}, s[{SWS}:{SWS+3}], 0 offen offset:1024"],
        [f"buffer_load_dwordx2 v[{vAK+4}:{vAK+5}], v{vAKO+2}, s[{SWS}:{SWS+3}], 0 offen",
         f"buffer_load_dwordx2 v[{vAK+6}:{vAK+7}], v{vAKO+2}, s[{SWS}:{SWS+3}], 0 offen offset:512",
         f"buffer_load_dwordx2 v[{vAK+10}:{vAK+11}], v{vAKO+3}, s[{SWS}:{SWS+3}], 0 offen offset:1024"],
        [f"s_mov_b64 exec, s[{sVM}:{sVM+1}]"] +
        [f"buffer_load_dwordx4 v[{vAV+4*j}:{vAV+4*j+3}], v{vVA}, s[{SWS}:{SWS+3}], s{sAV+j} offen" for j in range(3)] +
        ["s_mov_b64 exec, -1"],
        [f"global_load_dwordx4 v[{vMX+4*j}:{vMX+4*j+3}], v{vL16}, s[56:57] offset:{j*1024}" for j in range(4)] +
        [f"v_add_u32 v{vT+7}, 4096, v{vL16}"] +
        [f"global_load_dwordx4 v[{vMY+4*j}:{vMY+4*j+3}], v{vT+7}, s[56:57] offset:{j*1024}" for j in range(2)] +
        [f"v_lshrrev_b32 v{vT+7}, 1, v{vK8}",
         f"buffer_load_dword v{vGATE}, v{vT+7}, s[{SWS}:{SWS+3}], s{sGO} offen"] +
        ([] if FUSE else [f"buffer_load_dword v{vDUM}, v{vPFA}, s[{SWS}:{SWS+3}], 0 offen"]),
    ]
    ool = []
    ptile = optval("ptile", 6)
    WIN = optval("win", 2)
    def wdma(j, p_expr_sgpr):
        return [f"s_add_u32 m0, s{sDO+j}, s{p_expr_sgpr}",
                f"s_add_u32 s{sT3}, s{sWS}, {j*8192}",
                f"buffer_load_dwordx4 v{vL16}, s[{SWS}:{SWS+3}], s{sT3} offen lds"]
    for tt in range(8):
        for sg in range(2):
            cur = S[sg]; nsg = sg ^ 1; nxt = S[nsg]
            nt = tt if sg == 0 else tt + 1
            ka = vKA + 4 * (nt & 1); kb = vKB + 2 * (nt & 1)
            if sg == 0 and tt == 7:
                a(f"s_cmp_lg_u32 s{sPASS}, 0")
                a(f"s_cbranch_scc1 K2_NOSYNC")
                a(f"s_cmp_ge_u32 s{sC}, 3")
                a(f"s_cbranch_scc1 K2_SYNC3" if (FUSE and WIN == 3) else f"s_cbranch_scc1 K2_NOSYNC")
                a("s_waitcnt vmcnt(0)")
                a("s_barrier")
                a.lab("K2_NOSYNC")
                if ptile >= 0: a("s_setprio 2")
                if FUSE and WIN == 3:
                    body = ["s_barrier"]
                    for j in range(5): body += wdma(j, sWL)
                    body += [f"s_add_u32 s{sWL}, s{sWL}, {KV_CH}", f"s_add_u32 s{sWS}, s{sWS}, {K3_BUF}", "s_branch K2_NOSYNC"]
                    ool.append(("K2_SYNC3", body))
            if sg == 0 and tt == ptile:
                a("s_setprio 0")
            if sg == 1:
                a("s_waitcnt lgkmcnt(0)")
            q = qk(nxt, ka, kb, nsg, f"v[{NEG[nsg]}:{NEG[nsg]+15}]")
            a(q[0])
            if sg == 0:
                n1 = tt + 1
                a(rdK16(vKA + 4 * (n1 & 1), n1 // 8, n1 % 8))
                a(rdK4(vKB + 2 * (n1 & 1), n1 // 8, n1 % 8))
            for i in range(0, 4):
                a(f"v_exp_f32 v{cur+i}, v{cur+i}")
            pt = tt - 1 if sg == 0 else tt
            v2p = vV2 + 4 * (pt & 1)
            a(f"v_mfma_f32_32x32x16_bf16 v[{O[nsg]}:{O[nsg]+15}], v[{v2p}:{v2p+3}], v[{vP+4}:{vP+7}], v[{O[nsg]}:{O[nsg]+15}]")
            if sg == 0:
                a(f"s_mov_b64 exec, s[{sVM}:{sVM+1}]")
                d = vV2 + 4 * (tt & 1)
                a(f"ds_read_b128 v[{d}:{d+3}], v{vVc} offset:{voff(2*tt+1)}")
                d = vV1 + 4 * ((tt + 1) & 1)
                a(f"ds_read_b128 v[{d}:{d+3}], v{vVc} offset:{voff(2*tt+2)}")
                a("s_mov_b64 exec, -1")
            if FUSE and WIN >= 2 and sg == 0 and 1 <= tt < 6:
                j = tt - 1
                a(f"s_cmp_ge_u32 s{sC}, s{sWC}")
                a(f"s_cbranch_scc1 K2_Y{tt}")
                body = wdma(j, sWL)
                if j == 4: body += [f"s_add_u32 s{sWL}, s{sWL}, {KV_CH}", f"s_add_u32 s{sWS}, s{sWS}, {K3_BUF}"]
                ool.append((f"K2_Y{tt}", body + [f"s_branch K2_YR{tt}"]))
                a.lab(f"K2_YR{tt}")
            if sg == 1 and tt < 5:
                a(f"s_cmp_lg_u32 s{sPASS}, 0")
                a(f"s_cbranch_scc1 K2_XR{tt}")
                a(f"s_cmp_lt_u32 s{sC}, 3")
                a(f"s_cbranch_scc0 K2_X{tt}")
                for x in dma1(tt): a(x)
                if tt == 4: a(f"s_add_u32 s{sDG}, s{sDG}, {KV_CH}")
                ool.append((f"K2_X{tt}", aloads[tt] + [f"s_branch K2_XR{tt}"]))
                a.lab(f"K2_XR{tt}")
            for i in range(4, 8):
                a(f"v_exp_f32 v{cur+i}, v{cur+i}")
            for i in range(4):
                a(f"v_cvt_pk_bf16_f32 v{vP+i}, v{cur+2*i}, v{cur+2*i+1}")
            a(q[1])
            for i in range(8, 12):
                a(f"v_exp_f32 v{cur+i}, v{cur+i}")
            v1 = vV1 + 4 * (tt & 1)
            a(f"v_mfma_f32_32x32x16_bf16 v[{O[sg]}:{O[sg]+15}], v[{v1}:{v1+3}], v[{vP}:{vP+3}], v[{O[sg]}:{O[sg]+15}]")
            for i in range(12, 16):
                a(f"v_exp_f32 v{cur+i}, v{cur+i}")
            for i in range(4, 8):
                a(f"v_cvt_pk_bf16_f32 v{vP+i}, v{cur+2*i}, v{cur+2*i+1}")
    for r in (vKe, vKo, vK4c, vVc):
        a(f"v_add_u32 v{r}, {KV_CH}, v{r}")
    a(f"s_add_u32 s{sC}, s{sC}, 1")
    a(f"s_cmp_lt_u32 s{sC}, 4")
    a("s_cbranch_scc1 K2_LOOP")
    stamp(a, 5)
    a(f"v_mfma_f32_32x32x16_bf16 v[{O[1]}:{O[1]+15}], v[{vV2+4}:{vV2+7}], v[{vP+4}:{vP+7}], v[{O[1]}:{O[1]+15}]")
    a("s_setprio 0")
    a(f"s_mov_b32 s{sFAIL}, 0")
    a(f"s_cmp_lg_u32 s{sPASS}, 0")
    a("s_cbranch_scc1 K2_XCHG")
    a(f"s_waitcnt vmcnt({(5 if WIN == 3 else 0) if FUSE else 1}) lgkmcnt(0)")
    a(f"s_mov_b64 exec, s[{sLO}:{sLO+1}]")
    a(f"s_not_b64 exec, exec")
    a(f"v_mov_b32 v{vQA8}, 0")
    a(f"v_mov_b32 v{vQA8+1}, 0")
    a("s_mov_b64 exec, -1")
    a(f"s_cmp_lg_u32 s{sS0}, 0")
    a("s_cbranch_scc1 K2_NOFIX")
    for i in range(8):
        a(f"v_mov_b32 v{vMX+i}, {f2u(NEGBIG):#x}")
    a.lab("K2_NOFIX")
    if "ts2" in OPT: stamp(a, 4)
    a(f"v_mfma_f32_32x32x16_bf16 v[{vS0}:{vS0+15}], v[{vAK}:{vAK+3}], v[{vQA16}:{vQA16+3}], v[{vMX}:{vMX+15}]")
    a(f"v_mfma_f32_32x32x16_bf16 v[{vS1}:{vS1+15}], v[{vAK+4}:{vAK+7}], v[{vQA16}:{vQA16+3}], v[{vMY}:{vMY+15}]")
    a(f"v_mfma_f32_32x32x8_bf16 v[{vS0}:{vS0+15}], v[{vAK+8}:{vAK+9}], v[{vQA8}:{vQA8+1}], v[{vS0}:{vS0+15}]")
    a(f"v_mfma_f32_32x32x8_bf16 v[{vS1}:{vS1+15}], v[{vAK+10}:{vAK+11}], v[{vQA8}:{vQA8+1}], v[{vS1}:{vS1+15}]")
    a(f"v_mov_b64 v[{vT+2}:{vT+3}], 0")
    a(f"v_mov_b64 v[{vT+4}:{vT+5}], 0")
    a(f"v_mov_b32 v{vT+1}, {f2u(2.0**64):#x}")
    a("s_nop 3")
    for i in range(0, 12, 2):
        for sg in range(2):
            a(f"v_pk_fma_f32 v[{vT+2}:{vT+3}], v[{O[sg]+i}:{O[sg]+i+1}], v[{vT+4}:{vT+5}], v[{vT+2}:{vT+3}]")
    a(f"v_add_f32 v{vT}, v{O[0]+12}, v{O[1]+12}")
    a(f"v_add_f32 v{vT+2}, v{vT+2}, v{vT+3}")
    a(f"v_add_f32 v{vT}, v{vT}, v{vT+2}")
    a(f"v_cmp_nlt_f32 vcc, v{vT}, v{vT+1}")
    a(f"v_mov_b32 v{O[0]+13}, v{NEG[0]}")
    a(f"v_mov_b32 v{O[1]+13}, v{NEG[1]}")
    a("s_nop 1")
    a("s_cmp_lg_u64 vcc, 0")
    a(f"s_cselect_b32 s{sFAIL}, 1, 0")
    if "forcefail" in OPT:
        a(f"s_cmp_eq_u32 s{sW}, 3")
        a(f"s_cselect_b32 s{sFAIL}, 1, s{sFAIL}")
    regs = [vS0 + i for i in range(16)] + [vS1 + i for i in range(8)]
    m = vT + 6
    rowmax(m, regs)
    a(f"v_mov_b32 v{m+1}, v{m}")
    a("s_nop 1")
    a(f"v_permlane32_swap_b32 v{m}, v{m+1}")
    a("s_nop 1")
    a(f"v_max_f32 v{m}, v{m}, v{m+1}")
    a(f"v_sub_f32 v{vKo}, 0, v{m}")
    a(f"v_sub_f32 v{vK4c}, 0, v{m}")
    for i in range(0, 24, 2):
        a(f"v_pk_add_f32 v[{regs[i]}:{regs[i]+1}], v[{regs[i]}:{regs[i]+1}], v[{vKo}:{vK4c}]")
    for i in range(24):
        a(f"v_exp_f32 v{regs[i]}, v{regs[i]}")
    a("s_nop 0")
    for i in range(12):
        a(f"v_cvt_pk_bf16_f32 v{vP+i}, v{regs[2*i]}, v{regs[2*i+1]}")
    OA = NEG[0]
    a("s_nop 1")
    for j in range(3):
        c = "0" if j == 0 else f"v[{OA}:{OA+15}]"
        a(f"v_mfma_f32_32x32x16_bf16 v[{OA}:{OA+15}], v[{vAV+4*j}:{vAV+4*j+3}], v[{vP+4*j}:{vP+4*j+3}], {c}")
    def rowsum(dst, acc):
        a(f"v_mov_b32 v{dst}, v{acc+12}")
        a(f"s_not_b64 exec, s[{sLO}:{sLO+1}]")
        a(f"v_mov_b32 v{dst}, v{acc+8}")
        a("s_mov_b64 exec, -1")
    OFL = " sc1" if FUSE else STORE_FLAGS
    def ostore(br, src):
        a("s_nop 1")
        a(f"v_permlane32_swap_b32 v{src}, v{src+2}")
        a(f"v_permlane32_swap_b32 v{src+1}, v{src+3}")
        a(f"s_mov_b32 s{sT1}, {O_OFF}")
        a(f"buffer_store_dwordx4 v[{src}:{src+3}], v{vOSA}, s[{SWS}:{SWS+3}], s{sT1} offen offset:{br*512}{OFL}")
    a("s_nop 15")
    rowsum(vT + 6, OA)
    a(f"v_rcp_f32 v{vT+6}, v{vT+6}")
    a("s_nop 0")
    a(f"v_mul_f32 v{vT+6}, v{vT+6}, v{vGATE}")
    for i in range(0, 12, 2):
        a(f"v_pk_mul_f32 v[{OA+i}:{OA+i+1}], v[{OA+i}:{OA+i+1}], v[{vT+6}:{vT+7}] op_sel_hi:[1,0]")
    for i in range(4):
        a(f"v_cvt_pk_bf16_f32 v{vP+i}, v{OA+2*i}, v{OA+2*i+1}")
    for i in range(2):
        a(f"v_cvt_pk_bf16_f32 v{vOB+4+i}, v{OA+8+2*i}, v{OA+9+2*i}")
    ostore(0, vP)
    a("s_branch K2_XCHG1")
    a.lab("K2_XCHG")
    a("s_nop 15")
    a(f"v_mov_b32 v{O[0]+13}, v{NEG[0]}")
    a(f"v_mov_b32 v{O[1]+13}, v{NEG[1]}")
    a.lab("K2_XCHG1")
    a(f"s_mul_i32 s{sT0}, s{sGRP}, {4*KV_CH}")
    a(f"s_lshl_b32 s{sT2}, s{sPR}, 12")
    a(f"s_add_u32 s{sT2}, s{sT2}, {3*KV_CH}")
    a(f"s_add_u32 s{sT0}, s{sT0}, s{sT2}")
    a(f"v_add_u32 v{vT}, s{sT0}, v{vL16}")
    a(f"s_xor_b32 s{sT0}, s{sGRP}, 1")
    a(f"s_mul_i32 s{sT0}, s{sT0}, {4*KV_CH}")
    a(f"s_add_u32 s{sT0}, s{sT0}, s{sT2}")
    a(f"v_add_u32 v{vT+1}, s{sT0}, v{vL16}")
    a(f"s_lshl_b32 s{sT0}, s{sW}, 2")
    a(f"s_add_u32 s{sT0}, s{sT0}, {3*KV_CH + 16384}")
    a(f"v_mov_b32 v{vT+2}, s{sT0}")
    a(f"v_mov_b32 v{vT+3}, s{sFAIL}")
    if "ts2" in OPT: stamp(a, 1)
    a("s_barrier")
    if "ts2" in OPT: stamp(a, 2)
    a(f"s_cmp_eq_u32 s{sGRP}, 0")
    a("s_cbranch_scc1 K2_XA")
    for j in range(4):
        a(f"ds_write_b128 v{vT}, v[{O[0]+4*j}:{O[0]+4*j+3}] offset:{j*1024}")
    a("s_branch K2_XB")
    a.lab("K2_XA")
    for j in range(4):
        a(f"ds_write_b128 v{vT}, v[{O[1]+4*j}:{O[1]+4*j+3}] offset:{j*1024}")
    a.lab("K2_XB")
    a(f"ds_write_b32 v{vT+2}, v{vT+3}")
    a(f"v_mov_b32 v{vT+2}, {3*KV_CH + 16384}")
    a("s_waitcnt lgkmcnt(0)")
    a("s_barrier")
    if "ts2" in OPT: stamp(a, 3)
    a(f"ds_read_b128 v[{vT+4}:{vT+7}], v{vT+2}")
    a(f"ds_read_b128 v[{vS0}:{vS0+3}], v{vT+2} offset:16")
    a(f"s_cmp_eq_u32 s{sGRP}, 0")
    a("s_cbranch_scc1 K2_XC")
    for j in range(4):
        a(f"ds_read_b128 v[{O[0]+4*j}:{O[0]+4*j+3}], v{vT+1} offset:{j*1024}")
    a("s_branch K2_XD")
    a.lab("K2_XC")
    for j in range(4):
        a(f"ds_read_b128 v[{O[1]+4*j}:{O[1]+4*j+3}], v{vT+1} offset:{j*1024}")
    a.lab("K2_XD")
    a("s_waitcnt lgkmcnt(4)")
    a(f"v_or3_b32 v{vT+4}, v{vT+4}, v{vT+5}, v{vT+6}")
    a(f"v_or3_b32 v{vT+4}, v{vT+4}, v{vT+7}, v{vS0}")
    a(f"v_or3_b32 v{vT+4}, v{vT+4}, v{vS0+1}, v{vS0+2}")
    a(f"v_or_b32 v{vT+4}, v{vT+4}, v{vS0+3}")
    a("s_nop 0")
    a(f"v_readfirstlane_b32 s{sT0}, v{vT+4}")
    a("s_nop 3")
    a(f"s_cmp_lg_u32 s{sT0}, 0")
    a("s_cbranch_scc1 K2_REDO")
    a("s_waitcnt lgkmcnt(0)")
    a(f"v_sub_f32 v{vT+2}, v{O[1]+13}, v{O[0]+13}")
    a(f"v_sub_f32 v{vT+3}, 0, v{vT+2}")
    a(f"v_min_f32 v{vT+2}, 0, v{vT+2}")
    a(f"v_min_f32 v{vT+3}, 0, v{vT+3}")
    a(f"v_exp_f32 v{vT+2}, v{vT+2}")
    a(f"v_exp_f32 v{vT+3}, v{vT+3}")
    rowsum(vT + 4, O[0])
    rowsum(vT + 5, O[1])
    a(f"v_mul_f32 v{vT+4}, v{vT+4}, v{vT+2}")
    a(f"v_fmac_f32 v{vT+4}, v{vT+5}, v{vT+3}")
    a(f"v_rcp_f32 v{vT+4}, v{vT+4}")
    a(f"v_sub_f32 v{vT+5}, 1.0, v{vGATE}")
    a("s_nop 0")
    a(f"v_mul_f32 v{vT+4}, v{vT+4}, v{vT+5}")
    a(f"v_mul_f32 v{vT+2}, v{vT+2}, v{vT+4}")
    a(f"v_mul_f32 v{vT+3}, v{vT+3}, v{vT+4}")
    for i in range(0, 12, 2):
        a(f"v_pk_mul_f32 v[{O[0]+i}:{O[0]+i+1}], v[{O[0]+i}:{O[0]+i+1}], v[{vT+2}:{vT+3}] op_sel_hi:[1,0]")
        a(f"v_pk_fma_f32 v[{O[0]+i}:{O[0]+i+1}], v[{O[1]+i}:{O[1]+i+1}], v[{vT+2}:{vT+3}], v[{O[0]+i}:{O[0]+i+1}] op_sel:[0,1,0] op_sel_hi:[1,1,1]")
    for i in range(4):
        a(f"v_cvt_pk_bf16_f32 v{vOB+i}, v{O[0]+2*i}, v{O[0]+2*i+1}")
    for i in range(2):
        a(f"v_cvt_pk_bf16_f32 v{vOB+6+i}, v{O[0]+8+2*i}, v{O[0]+9+2*i}")
    ostore(1, vOB)
    a(f"s_mov_b64 exec, s[{sLO}:{sLO+1}]")
    a(f"buffer_store_dwordx4 v[{vOB+4}:{vOB+7}], v{vOSA}, s[{SWS}:{SWS+3}], s{sT1} offen offset:1024{OFL}")
    a("s_mov_b64 exec, -1")
    if FUSE:
        if WIN:
            a(f"s_cmp_eq_u32 s{sPASS}, 0")
            a("s_cbranch_scc1 K2_WOK")
            a("s_barrier")
            a(f"s_mov_b32 s{sWL}, 0")
            a(f"s_mov_b32 s{sWS}, s{sWS0}")
            for p in range(WIN):
                for j in range(5):
                    for x in wdma(j, sWL): a(x)
                a(f"s_add_u32 s{sWL}, s{sWL}, {KV_CH}")
                a(f"s_add_u32 s{sWS}, s{sWS}, {K3_BUF}")
            a("s_waitcnt vmcnt(0)")
            a.lab("K2_WOK")
        stamp(a, 6)
        NPRE = 0
        if WIN == 3:
            a("s_barrier")
            a(f"s_mov_b32 s{sWL}, {3*KV_CH}")
            for j in range(5):
                for x in wdma(j, sWL): a(x)
            NPRE = 5
        elif WIN == 2:
            a(f"s_mov_b32 s{sWL}, {2*KV_CH}")
            for j in range(5):
                for x in wdma(j, sWL): a(x)
            a(f"s_add_u32 s{sWS}, s{sWS}, {K3_BUF}")
            NPRE = 5
        a(f"s_waitcnt vmcnt({NPRE})")
        if "tailstamps" in OPT: stamp(a, 1)
        a("s_barrier")
        if "tailstamps" in OPT: stamp(a, 2)
        a(f"s_cmp_lg_u32 s{sW}, 0")
        a("s_cbranch_scc1 K2_NOPOLL0")
        a(f"s_lshl_b32 s{sT0}, s{sQB}, 12")
        a(f"s_add_u32 s{sT0}, s{sT0}, {FL_OFF}")
        a(f"s_mov_b64 exec, s[{sLO}:{sLO+1}]")
        a(f"v_mov_b32 v{vT}, 1")
        a(f"v_lshlrev_b32 v{vT+5}, 7, v{vLANE}")
        a(f"buffer_atomic_add v{vT}, v{vT+5}, s[{SWS}:{SWS+3}], s{sT0} offen")
        a("s_mov_b64 exec, -1")
        a.lab("K2_NOPOLL0")
        WPOST = 4 if WIN == 3 else optval("wpost", 4)
        if WIN != 3:
            W0P = 3 if WIN == 2 else WIN
            a(f"s_mov_b32 s{sWL}, {W0P*KV_CH}")
            for p in range(W0P, WPOST):
                for j in range(5):
                    for x in wdma(j, sWL): a(x)
                a(f"s_add_u32 s{sWL}, s{sWL}, {KV_CH}")
                a(f"s_add_u32 s{sWS}, s{sWS}, {K3_BUF}")
        bufss = [((ss // 2) % 4) * KV_CH + (ss & 1) * 4 * KV_CH for ss in range(10)]
        pc = proj_core(a, "K2", SWS, 68, sW, 64, 65, 50, bufss,
                       lambda p, j, sM0: f"s_add_u32 m0, s{sDO+j}, {(p % 4)*KV_CH}", ({1: [4]} if WPOST == 4 else {0: [3], 1: [4]}), optval("k2opre", 4))
        pc.setup()
        srd(a, 68, 60, 61, 2048 * 1280)
        pc.addr_setup(0)
        if "tailstamps" in OPT: stamp(a, 3)
        a(f"s_cmp_lg_u32 s{sW}, 0")
        a("s_cbranch_scc1 K2_NOPOLL")
        a(f"s_lshl_b32 s{sT0}, s{sHEAD}, 3")
        a(f"s_add_u32 s{sT0}, s{sT0}, s{sQB}")
        a(f"s_lshl_b32 s{sT0}, s{sT0}, 7")
        a(f"s_add_u32 s{sT0}, s{sT0}, {FL_OFF}")
        a("s_mov_b64 exec, 1")
        a(f"v_mov_b32 v{vT+5}, 0")
        a(f"s_mov_b32 s{sT1}, 0")
        a.lab("K2_POLL")
        a(f"buffer_load_dword v{vT+4}, v{vT+5}, s[{SWS}:{SWS+3}], s{sT0} offen sc1")
        a("s_waitcnt vmcnt(0)")
        a(f"v_readfirstlane_b32 s{sT2}, v{vT+4}")
        a(f"s_add_u32 s{sT1}, s{sT1}, 1")
        a(f"s_cmp_ge_u32 s{sT2}, 32")
        a("s_cbranch_scc1 K2_POLLED")
        a(f"s_sleep {optval('psleep', 2)}")
        a(f"s_cmp_lt_u32 s{sT1}, 0x40000")
        a("s_cbranch_scc1 K2_POLL")
        a.lab("K2_POLLED")
        a("s_waitcnt vmcnt(0)")
        if "tailstamps" in OPT:
            stamp(a, 4)
        a("s_mov_b64 exec, -1")
        a.lab("K2_NOPOLL")
        a("s_waitcnt vmcnt(0)")
        a("s_barrier")
        stamp(a, 7)
        pc.body([("o", 0), ("o", 1), ("o", 2), ("o", 3)])
        if PROF: a("s_waitcnt vmcnt(0)")
        stamp(a, 8)
        stamp_flush(a, 1, 9, SWS, sW, vT)
        a("s_endpgm")
    else:
        a("s_branch K2_DONE")
    a.lab("K2_REDO")
    a("s_waitcnt vmcnt(0) lgkmcnt(0)")
    a("s_barrier")
    a(f"s_mov_b32 s{sDG}, 0")
    for p in range(4):
        for j in range(5):
            for x in dma1(j): a(x)
        a(f"s_add_u32 s{sDG}, s{sDG}, {KV_CH}")
    a(f"s_mov_b32 s{sPASS}, 1")
    if FUSE: a(f"s_mov_b32 s{sWC}, 99")
    a(f"v_mov_b32 v{vT}, {f2u(-3.0e38):#x}")
    a(f"v_mov_b32 v{vT+2}, {f2u(-3.0e38):#x}")
    setbases()
    a(f"s_mov_b32 s{sC}, 0")
    a("s_waitcnt vmcnt(0)")
    a("s_barrier")
    a.lab("K2_MAXLOOP")
    for tt in range(8):
        a(rdK16(vKA, 0, tt))
        a(rdK4(vKB, 0, tt))
        a("s_waitcnt lgkmcnt(0)")
        for sg in range(2):
            for x in qk(S[sg], vKA, vKB, sg, "0"): a(x)
        a("s_nop 15")
        for sg in range(2):
            rowmax(vT + 2 * sg, [S[sg] + i for i in range(16)], first=True)
    for r in (vKe, vKo, vK4c):
        a(f"v_add_u32 v{r}, {KV_CH}, v{r}")
    a(f"s_add_u32 s{sC}, s{sC}, 1")
    a(f"s_cmp_lt_u32 s{sC}, 4")
    a("s_cbranch_scc1 K2_MAXLOOP")
    for sg in range(2):
        a(f"v_mov_b32 v{vT+2*sg+1}, v{vT+2*sg}")
    a("s_nop 1")
    for sg in range(2):
        a(f"v_permlane32_swap_b32 v{vT+2*sg}, v{vT+2*sg+1}")
    a("s_nop 1")
    for sg in range(2):
        a(f"v_max_f32 v{vT+2*sg}, v{vT+2*sg}, v{vT+2*sg+1}")
        for i in range(16):
            a(f"v_sub_f32 v{NEG[sg]+i}, 0, v{vT+2*sg}")
            a(f"v_mov_b32 v{O[sg]+i}, 0")
    for i in range(4):
        a(f"v_mov_b32 v{vP+4+i}, 0")
    a("s_branch K2_START")
    for lab, body in ool:
        a.lab(lab)
        for x in body: a(x)
    a.lab("K2_DONE")
    stamp(a, 6)
    if PROF: a("s_waitcnt vmcnt(0)")
    stamp(a, 7)
    if "chunkstamp" in OPT:
        a(f"s_lshl_b32 s97, s2, 3")
        a(f"s_add_u32 s97, s97, s{sW}")
        a(f"s_lshl_b32 s97, s97, 6")
        a(f"s_add_u32 s97, s97, {PROF_OFF + 3 * 0x100000}")
        a(f"v_lshlrev_b32 v{vT}, 2, v{vLANE}")
        a("s_mov_b64 exec, 0xff")
        a(f"buffer_store_dword v247, v{vT}, s[{SWS}:{SWS+3}], s97 offen")
        a("s_mov_b64 exec, -1")
    stamp_flush(a, 1, 8, SWS, sW, vT)
    a.lab("K2_END")
    a("s_endpgm")
    a.raw(".p2align 4")
    a.lab("K2_TABLE")
    tab = mask_table()
    for i in range(0, len(tab), 8):
        a.raw("    .long " + ", ".join(f"{x:#x}" for x in tab[i:i+8]))
    a.lab("K2_TEXT_END")
    return name, NV

K3_BUF = 40 * 1024
K3_NBUF = 3
K3_LDS = K3_BUF * K3_NBUF

K3_GRID = 256
def proj_core(a, pfx, SWS, SOUT, sW, sMT, sNT, sbase, bufss, wm0, wplan, OPRE, vLANE=1, vL16=2):
    sMB, sKH, sT0, sT1, sT2, sOB, sWB, sM0, sOUT = [sbase + i for i in range(9)]
    vWR = 6; vWA = 7; vT = 8
    vOF = 20; vWF = 100; vACC = 180
    oflags = " sc1" if pfx == "K2" else ""
    issued = []
    def setup():
        a(f"s_and_b32 s{sMB}, s{sW}, 3")
        a(f"s_lshr_b32 s{sKH}, s{sW}, 2")
        a(f"s_lshl_b32 s{sM0}, s{sW}, 10")
        a(f"s_mul_i32 s{sWB}, s{sNT}, {200*1024}")
        a(f"s_add_u32 s{sWB}, s{sWB}, s{sM0}")
        a(f"s_add_u32 s{sWB}, s{sWB}, {WT_OFF}")
        a(f"s_lshl_b32 s{sOB}, s{sMT}, 2")
        a(f"s_add_u32 s{sOB}, s{sOB}, s{sMB}")
        a(f"s_mul_i32 s{sOUT}, s{sOB}, {16*1280}")
        a(f"s_mul_i32 s{sOB}, s{sOB}, 40")
        a(f"s_lshl_b32 s{sT0}, s{sKH}, 1")
        a(f"s_add_u32 s{sOB}, s{sOB}, s{sT0}")
        a(f"s_lshl_b32 s{sOB}, s{sOB}, 10")
        a(f"s_add_u32 s{sOB}, s{sOB}, {O_OFF}")
        a(f"s_mul_i32 s{sT2}, s{sNT}, 160")
        a(f"s_add_u32 s{sOUT}, s{sOUT}, s{sT2}")
    def wgroup(p):
        g = []
        for j in range(5):
            g.append(([wm0(p, j, sM0),
                       f"s_add_u32 s{sT1}, s{sWB}, {p*K3_BUF + j*8192}",
                       f"buffer_load_dwordx4 v{vL16}, s[{SWS}:{SWS+3}], s{sT1} offen lds"], ("W", p)))
        return g
    def ogroup(ss):
        g = []
        for i in range(2):
            d = vOF + (ss * 2 + i) * 4
            g.append(([f"s_add_u32 s{sT0}, s{sOB}, {(ss*4 + i)*1024}",
                       f"buffer_load_dwordx4 v[{d}:{d+3}], v{vL16}, s[{SWS}:{SWS+3}], s{sT0} offen{oflags}"], ("o", ss)))
        return g
    def emit(item):
        for x in item[0]: a(x)
        issued.append(item[1])
    def vm(need):
        last = max([i for i, t in enumerate(issued) if t in need], default=-1)
        return min(63, len(issued) - 1 - last)
    def reads(ss):
        st = ss & 1
        off = bufss[ss]
        out = [f"v_add_u32 v{vWA}, {off}, v{vWR}"]
        for i in range(2):
            for b in range(5):
                r = vWF + st * 40 + (i * 5 + b) * 4
                out.append(f"ds_read_b128 v[{r}:{r+3}], v{vWA} offset:{(i*5 + b)*1024}")
        return out
    def addr_setup(xbase):
        a(f"s_mul_i32 s{sT0}, s{sKH}, {10*1024}")
        a(f"v_add_u32 v{vWR}, s{sT0}, v{vL16}")
        a(f"v_and_b32 v{vT+1}, 15, v{vLANE}")
        a(f"v_mul_u32_u24 v{vT+1}, 1280, v{vT+1}")
        a(f"v_lshrrev_b32 v{vT+2}, 4, v{vLANE}")
        a(f"v_lshl_add_u32 v{vT+1}, v{vT+2}, 3, v{vT+1}")
        a(f"s_mul_i32 s{sT0}, s{sW}, {3*1024}")
        a(f"s_add_u32 s{sT0}, s{sT0}, {xbase}")
        a(f"v_add_u32 v{vT}, s{sT0}, v{vL16}")
        a(f"s_xor_b32 s{sT2}, s{sW}, 4")
        a(f"s_mul_i32 s{sT2}, s{sT2}, {3*1024}")
        a(f"s_add_u32 s{sT2}, s{sT2}, {xbase}")
        a(f"v_add_u32 v{vT+3}, s{sT2}, v{vL16}")
    def body(first):
        for kind, idx in first:
            for it in (wgroup(idx) if kind == "W" else ogroup(idx)): emit(it)
        nxt_o = max([idx for kind, idx in first if kind == "o"], default=-1) + 1
        if pfx == "K3": stamp(a, 1)
        a(f"s_waitcnt vmcnt({vm({('W', 0)})})")
        a("s_barrier")
        if pfx == "K3": stamp(a, 2)
        for r in reads(0): a(r)
        for ss in range(10):
            p = ss // 2
            need = {("o", ss)}
            if ss % 2 == 1 and p + 1 < 5: need.add(("W", p + 1))
            a(f"s_waitcnt vmcnt({vm(need)}) lgkmcnt(0)")
            if ss % 2 == 1 and ss < 9: a("s_barrier")
            mf = []
            for i in range(2):
                for b in range(5):
                    acc = vACC + b * 4
                    wf = vWF + (ss & 1) * 40 + (i * 5 + b) * 4
                    of = vOF + (ss * 2 + i) * 4
                    c = "0" if (ss == 0 and i == 0) else f"v[{acc}:{acc+3}]"
                    mf.append(f"v_mfma_f32_16x16x32_bf16 v[{acc}:{acc+3}], v[{wf}:{wf+3}], v[{of}:{of+3}], {c}")
            rd = reads(ss + 1) if ss < 9 else []
            ld = []
            for p2 in wplan.get(ss, []): ld += wgroup(p2)
            while nxt_o < 10 and nxt_o <= ss + OPRE:
                ld += ogroup(nxt_o); nxt_o += 1
            ex = [("r", r) for r in rd]
            mixed = []
            step = max(1, len(ex) // max(1, len(ld))) if ld else 0
            k = 0
            for i, e in enumerate(ex):
                mixed.append(e)
                if ld and k < len(ld) and (i + 1) % step == 0:
                    mixed.append(("l", ld[k])); k += 1
            while k < len(ld):
                mixed.append(("l", ld[k])); k += 1
            k = 0
            for i, m in enumerate(mf):
                a(m)
                tgt = min(len(mixed), ((i + 1) * len(mixed) + 8) // 9)
                while k < tgt:
                    if mixed[k][0] == "r": a(mixed[k][1])
                    else: emit(mixed[k][1])
                    k += 1
        if pfx == "K3": stamp(a, 3)
        a("s_barrier")
        a(f"s_cmp_eq_u32 s{sKH}, 0")
        a(f"s_cbranch_scc1 {pfx}_PW0")
        a("s_nop 4")
        for b in range(3):
            a(f"ds_write_b128 v{vT}, v[{vACC+b*4}:{vACC+b*4+3}] offset:{b*1024}")
        a("s_waitcnt lgkmcnt(0)")
        a("s_barrier")
        def fin(blocks):
            for n, b in enumerate(blocks):
                a(f"ds_read_b128 v[{vOF+4*n}:{vOF+4*n+3}], v{vT+3} offset:{n*1024}")
            for n, b in enumerate(blocks):
                a(f"s_waitcnt lgkmcnt({len(blocks)-1-n})")
                for i in range(0, 4, 2):
                    a(f"v_pk_add_f32 v[{vOF+4*n+i}:{vOF+4*n+i+1}], v[{vOF+4*n+i}:{vOF+4*n+i+1}], v[{vACC+4*b+i}:{vACC+4*b+i+1}]")
                a(f"v_cvt_pk_bf16_f32 v{vWF+2*n}, v{vOF+4*n}, v{vOF+4*n+1}")
                a(f"v_cvt_pk_bf16_f32 v{vWF+2*n+1}, v{vOF+4*n+2}, v{vOF+4*n+3}")
                a(f"buffer_store_dwordx2 v[{vWF+2*n}:{vWF+2*n+1}], v{vT+1}, s[{SOUT}:{SOUT+3}], s{sOUT} offen offset:{b*32}")
        fin([3, 4])
        a(f"s_branch {pfx}_PFIN")
        a.lab(f"{pfx}_PW0")
        a("s_nop 4")
        for n, b in enumerate((3, 4)):
            a(f"ds_write_b128 v{vT}, v[{vACC+b*4}:{vACC+b*4+3}] offset:{n*1024}")
        a("s_waitcnt lgkmcnt(0)")
        a("s_barrier")
        fin([0, 1, 2])
        a.lab(f"{pfx}_PFIN")
    class C: pass
    c = C(); c.setup = setup; c.wgroup = wgroup; c.emit = emit; c.addr_setup = addr_setup; c.body = body; c.issued = issued
    return c

def gen_k3(a):
    name = "k3_proj_kernel"
    kernel_head(a, name)
    SWS = 8; SOUT = 20
    sW = 24; sMT = 27; sNT = 28
    vLANE = 1; vL16 = 2; vT = 8
    NV = 200
    a(f"s_cmp_ge_u32 s2, {K3_GRID}")
    a("s_cbranch_scc1 K3_END")
    stamp(a, 0)
    a("s_load_dwordx2 s[4:5], s[0:1], 72")
    a("s_load_dwordx2 s[36:37], s[0:1], 56")
    a(f"v_and_b32 v{vLANE}, 63, v0")
    a(f"v_lshrrev_b32 v{vT}, 6, v0")
    a(f"s_and_b32 s{sMT}, s2, 7")
    a(f"v_readfirstlane_b32 s{sW}, v{vT}")
    a(f"s_lshl_b32 s{sMT}, s{sMT}, 2")
    a(f"s_lshr_b32 s29, s2, 6")
    a(f"s_add_u32 s{sMT}, s{sMT}, s29")
    a(f"s_lshr_b32 s{sNT}, s2, 3")
    a(f"s_and_b32 s{sNT}, s{sNT}, 7")
    a(f"v_lshlrev_b32 v{vL16}, 4, v{vLANE}")
    bufss = [((ss // 2) % 3) * K3_BUF + (ss & 1) * 20 * 1024 for ss in range(10)]
    c = proj_core(a, "K3", SWS, SOUT, sW, sMT, sNT, 40, bufss, lambda p, j, sM0: f"s_add_u32 m0, s{sM0}, {(p % 3)*K3_BUF + j*8192}",
                  {0: [2], 1: [3], 3: [4]}, optval("k3opre", 4))
    c.setup()
    a("s_waitcnt lgkmcnt(0)")
    srd(a, SWS, 4, 5, WS_USED)
    srd(a, SOUT, 36, 37, 2048 * 1280)
    c.addr_setup(0)
    c.body([("W", 0), ("o", 0), ("o", 1), ("W", 1), ("o", 2), ("o", 3)])
    stamp(a, 4)
    if PROF: a("s_waitcnt vmcnt(0)")
    stamp(a, 5)
    stamp_flush(a, 2, 6, SWS, sW, vT)
    a.lab("K3_END")
    a("s_endpgm")
    return name, NV

def build(kernels=("k1", "k2", "k3")):
    a = Asm()
    fuse = "nofuse" not in OPT
    k3line = "" if fuse else f"; @launch kernel=k3_proj_kernel grid=({K3_GRID},1,1) block=(512,1,1) lds={K3_LDS}\n"
    hdr = f"""; Gated mix of sliding-window dilated attention (A) and full softmax MHA (B): three launches.
; @launch kernel=k1_qkv_kernel grid=(256,1,1) block=(512,1,1) lds={K1_LDS}
; @launch kernel=k2_attn_kernel grid=(256,1,1) block=(512,1,1) lds={K2_LDS}
{k3line}.amdgcn_target "amdgcn-amd-amdhsa--gfx950"
.text
"""
    descs = []
    for g in ((gen_k1, gen_k2) if fuse else (gen_k1, gen_k2, gen_k3)):
        n, nv = g(a)
        descs.append(kernel_desc(n, nv))
    txt = a.text()
    txt = txt.replace("K2CODE_WAVES", "((K2_TEXT_END-k2_attn_kernel) >> 13)")
    return hdr + txt + '.section .rodata,"a"\n' + "".join(".p2align 6\n" + d for d in descs)

if __name__ == "__main__":
    if len(sys.argv) > 2 and sys.argv[2] == "prof":
        PROF = True
    OPT.update(sys.argv[3:])
    if "st_sc1" in OPT: STORE_FLAGS = " sc1"
    if "st_nt" in OPT: STORE_FLAGS = " nt"
    if "st_sc01" in OPT: STORE_FLAGS = " sc0 sc1"
    if "st_sc1nt" in OPT: STORE_FLAGS = " sc1 nt"
    out = sys.argv[1] if len(sys.argv) > 1 else f"cdna_kernels/{NAME}.s"
    open(out, "w").write(build())
    print("wrote", out)
```

```python
import sys, struct

NAME = "gated_mix__sliding_local_dilated__softmax_full_mha__prompt"

KV_HEAD = 163840
KV_CH = 20480
Q_HEAD = 81920
Q_CH = 10240
KVA_OFF = 0
KVB_OFF = 32 * KV_HEAD
QA_OFF = 2 * 32 * KV_HEAD
QB_OFF = QA_OFF + 32 * Q_HEAD
G_OFF = QB_OFF + 32 * Q_HEAD
FL_OFF = 0xF04000
WT_OFF = 0xF10000
O_OFF = 0x1100000
O_SIZE = 128 * 40 * 1024
WS_USED = 0x2400000
QSCALE = (20 ** -0.5) * 1.4426950408889634

def f2u(x):
    return struct.unpack("<I", struct.pack("<f", x))[0]

class Asm:
    def __init__(self):
        self.l = []
    def __call__(self, s):
        for x in s.strip("\n").split("\n"):
            self.l.append("    " + x.strip())
    def lab(self, s):
        self.l.append(s + ":")
    def raw(self, s):
        self.l.append(s)
    def text(self):
        return "\n".join(self.l) + "\n"

def vr(b, n=1):
    return f"v{b}" if n == 1 else f"v[{b}:{b+n-1}]"
def sr(b, n=1):
    return f"s{b}" if n == 1 else f"s[{b}:{b+n-1}]"

def kernel_head(a, name):
    a.raw(f".globl {name}")
    a.raw(".p2align 8")
    a.raw(f".type {name},@function")
    a.lab(name)

def kernel_desc(name, nv, ns=102):
    acc = (nv + 3) // 4 * 4
    return f""".amdhsa_kernel {name}
  .amdhsa_next_free_vgpr {nv}
  .amdhsa_next_free_sgpr {ns}
  .amdhsa_accum_offset {acc}
  .amdhsa_group_segment_fixed_size 0
  .amdhsa_kernarg_size 80
  .amdhsa_user_sgpr_count 2
  .amdhsa_user_sgpr_kernarg_segment_ptr 1
  .amdhsa_system_sgpr_workgroup_id_x 1
  .amdhsa_float_denorm_mode_32 3
  .amdhsa_float_denorm_mode_16_64 3
.end_amdhsa_kernel
"""

PROF = False
OPT = set()
STORE_FLAGS = ""
PROF_OFF = 0x2000000
def optval(name, default):
    for o in OPT:
        if o.startswith(name + "="): return int(o.split("=")[1])
    return default
def stamp(a, i):
    if PROF:
        a(f"s_memtime s[{80+2*i}:{81+2*i}]")
        if i == 0: a("s_memrealtime s[76:77]")
def stamp_flush(a, kidx, n, srdreg, wave_sgpr, vtmp):
    if not PROF: return
    a("s_memrealtime s[98:99]")
    a("s_waitcnt lgkmcnt(0)")
    a(f"s_lshl_b32 s75, s2, 3")
    a(f"s_add_u32 s75, s75, s{wave_sgpr}")
    a(f"s_lshl_b32 s75, s75, 6")
    a(f"s_add_u32 s75, s75, {PROF_OFF + kidx * 0x100000}")
    a("s_mov_b64 exec, 1")
    a(f"v_mov_b32 v{vtmp+1}, 0")
    for i in range(n):
        a(f"v_mov_b32 v{vtmp}, s{80+2*i}")
        a(f"buffer_store_dword v{vtmp}, v{vtmp+1}, s[{srdreg}:{srdreg+3}], s75 offen offset:{4*i}")
    a(f"v_mov_b32 v{vtmp}, s76")
    a(f"buffer_store_dword v{vtmp}, v{vtmp+1}, s[{srdreg}:{srdreg+3}], s75 offen offset:56")
    a(f"v_mov_b32 v{vtmp}, s98")
    a(f"buffer_store_dword v{vtmp}, v{vtmp+1}, s[{srdreg}:{srdreg+3}], s75 offen offset:60")

def srd(a, d, lo, hi, size):
    a(f"s_mov_b32 s{d}, s{lo}")
    a(f"s_and_b32 s{d+1}, s{hi}, 0xffff")
    a(f"s_mov_b32 s{d+2}, {size}")
    a(f"s_mov_b32 s{d+3}, 0x00020000")

K1_XB = 32768
K1_BUF = 32768 + 16384
K1_NBUF = 3
K1_LDS = K1_BUF * K1_NBUF

def gen_k1(a):
    PF0 = optval("pf0", 3)
    name = "k1_qkv_kernel"
    kernel_head(a, name)
    SX = 12; SW = 16; SWS = 20; SG = 24
    sW = 32; sWM = 33; sWN = 34; sI = 35; sRD = 36; sWRB = 37
    sXS = 38; sWS1 = 39; sXM0 = 41; sWM0 = 42; sMT = 43; sNT = 44; sBR = 45
    sTMP = 46; sTMP2 = 47; sTMP3 = 48; sTMP4 = 49
    sSEC = 50; sFB = 51; sEO = 52; sD = 53; sHS = 54; sSC = 56
    vLANE = 1; vXO = 2; vWO = 4
    vXR = 6
    vWR = 10
    vXA = 12
    vWA = 16
    vT = 18
    vXF = 32
    vWF = 64
    vACC = 96
    vEO = 160
    vPF = 176
    NV = 180

    a("s_cmp_ge_u32 s2, 256")
    a("s_cbranch_scc1 K1_END")
    stamp(a, 0)
    if "dbgtime" in OPT: a("s_memrealtime s[90:91]")
    a("s_lshr_b32 s45, s2, 2")
    a("s_and_b32 s45, s45, 1")
    a("s_mul_i32 s46, s45, 24")
    a("s_add_u32 s46, s46, 8")
    a("s_load_dwordx2 s[10:11], s[0:1], s46")
    a("s_load_dwordx2 s[8:9], s[0:1], 0")
    a("s_load_dwordx2 s[4:5], s[0:1], 72")
    a("s_load_dwordx2 s[6:7], s[0:1], 48")
    a(f"v_and_b32 v{vLANE}, 63, v0")
    a(f"v_lshrrev_b32 v{vT}, 6, v0")
    a(f"s_lshr_b32 s{sTMP}, s2, 3")
    a(f"v_readfirstlane_b32 s{sW}, v{vT}")
    a(f"s_and_b32 s{sMT}, s2, 3")
    a(f"s_lshl_b32 s{sMT}, s{sMT}, 1")
    a(f"s_and_b32 s{sTMP2}, s{sTMP}, 1")
    a(f"s_add_u32 s{sMT}, s{sMT}, s{sTMP2}")
    a(f"s_lshr_b32 s{sNT}, s{sTMP}, 1")
    a(f"s_cmp_ge_u32 s{sNT}, 15")
    a("s_cbranch_scc1 K1_GATE")
    a(f"s_and_b32 s{sWM}, s{sW}, 3")
    a(f"s_lshr_b32 s{sWN}, s{sW}, 2")
    a(f"v_lshrrev_b32 v{vT}, 3, v{vLANE}")
    a(f"v_lshrrev_b32 v{vT+1}, 4, v{vLANE}")
    a(f"v_xor_b32 v{vT+1}, v{vT+1}, v{vLANE}")
    a(f"v_and_b32 v{vT+1}, 7, v{vT+1}")
    a(f"s_lshl_b32 s{sTMP}, s{sMT}, 8")
    a(f"s_lshl_b32 s{sTMP2}, s{sW}, 5")
    a(f"s_add_u32 s{sTMP}, s{sTMP}, s{sTMP2}")
    a(f"v_add_u32 v{vT}, s{sTMP}, v{vT}")
    a(f"v_mul_u32_u24 v{vT}, 1280, v{vT}")
    a(f"v_lshl_add_u32 v{vXO}, v{vT+1}, 4, v{vT}")
    a(f"v_xor_b32 v{vXO+1}, 64, v{vXO}")
    a(f"v_lshrrev_b32 v{vT}, 4, v{vLANE}")
    a(f"v_lshlrev_b32 v{vT+1}, 2, v{vT}")
    a(f"v_xor_b32 v{vT+1}, v{vT+1}, v{vLANE}")
    a(f"v_and_b32 v{vT+1}, 15, v{vT+1}")
    a(f"s_lshl_b32 s{sTMP}, s{sW}, 3")
    a(f"v_add_u32 v{vT}, s{sTMP}, v{vT}")
    a(f"v_mul_u32_u24 v{vT}, 3840, v{vT}")
    a(f"v_lshl_add_u32 v{vT}, v{vT+1}, 4, v{vT}")
    a(f"s_lshl_b32 s{sTMP}, s{sNT}, 8")
    a(f"v_add_u32 v{vWO}, s{sTMP}, v{vT}")
    a(f"s_lshl_b32 s{sXM0}, s{sW}, 12")
    a(f"s_lshl_b32 s{sWM0}, s{sW}, 11")
    a(f"s_add_u32 s{sWM0}, s{sWM0}, {K1_XB}")
    a("s_waitcnt lgkmcnt(0)")
    srd(a, SX, 8, 9, 2048 * 1280)
    srd(a, SW, 10, 11, 640 * 3840)

    def dma_list(buf_s, inloop=False):
        g = []
        if "k1nodma" in OPT and inloop: return [["s_nop 0"]] * 6
        for i in range(4):
            g.append([f"s_add_u32 m0, s{buf_s}, s{sXM0}" if i == 0 else f"s_add_u32 m0, m0, 1024",
                      f"s_add_u32 s{sTMP3}, s{sXS}, {i*8*1280}",
                      f"buffer_load_dwordx4 v{vXO + (i & 1)}, s[{SX}:{SX+3}], s{sTMP3} offen lds"])
        for i in range(2):
            g.append([f"s_add_u32 m0, s{buf_s}, s{sWM0}" if i == 0 else f"s_add_u32 m0, m0, 1024",
                      f"s_add_u32 s{sTMP3}, s{sWS1}, {i*4*3840}",
                      f"buffer_load_dwordx4 v{vWO}, s[{SW}:{SW+3}], s{sTMP3} offen lds"])
        g[-1] = g[-1] + [f"s_add_u32 s{sXS}, s{sXS}, 128", f"s_add_u32 s{sWS1}, s{sWS1}, {64*3840}"]
        return g
    a(f"s_mov_b32 s{sXS}, 0")
    a(f"s_mov_b32 s{sWS1}, 0")
    a(f"s_mov_b32 s{sWRB}, 0")
    for g in dma_list(sWRB):
        for x in g: a(x)
    srd(a, SWS, 4, 5, WS_USED)
    a(f"v_and_b32 v{vT}, 31, v{vLANE}")
    a(f"v_lshrrev_b32 v{vT+1}, 5, v{vLANE}")
    a(f"v_bfe_u32 v{vT+2}, v{vLANE}, 1, 3")
    a(f"v_xor_b32 v{vT+2}, v{vT+2}, v{vT+1}")
    a(f"v_lshlrev_b32 v{vT+2}, 4, v{vT+2}")
    a(f"v_lshl_add_u32 v{vXR}, v{vT}, 7, v{vT+2}")
    a(f"s_lshl_b32 s{sTMP}, s{sWM}, 13")
    a(f"v_add_u32 v{vXR}, s{sTMP}, v{vXR}")
    for kk in range(1, 4):
        a(f"v_xor_b32 v{vXR+kk}, {kk << 5}, v{vXR}")
    a(f"v_bfe_u32 v{vT+2}, v{vLANE}, 2, 2")
    a(f"v_lshl_add_u32 v{vT+3}, v{vT+1}, 3, v{vT+2}")
    a(f"v_lshlrev_b32 v{vT+3}, 8, v{vT+3}")
    a(f"v_and_b32 v{vT+4}, 3, v{vLANE}")
    a(f"v_lshl_add_u32 v{vT+3}, v{vT+4}, 3, v{vT+3}")
    a(f"v_bfe_u32 v{vT+4}, v{vLANE}, 4, 1")
    a(f"v_lshl_add_u32 v{vT+3}, v{vT+4}, 5, v{vT+3}")
    a(f"v_add_u32 v{vT+3}, {K1_XB}, v{vT+3}")
    a(f"s_lshl_b32 s{sTMP}, s{sWN}, 1")
    for bl in range(2):
        a(f"s_add_u32 s{sTMP2}, s{sTMP}, {bl}")
        a(f"v_xor_b32 v{vT+5}, s{sTMP2}, v{vT+2}")
        a(f"v_lshl_add_u32 v{vWR+bl}, v{vT+5}, 6, v{vT+3}")
    PF = "k1pf" in OPT
    if PF:
        a(f"s_lshr_b32 s{sTMP}, s2, 3")
        a(f"s_cmp_lt_u32 s{sW}, 6")
        a("s_cbranch_scc0 K1_PFX")
        a(f"s_mul_i32 s{sTMP}, s{sTMP}, 6")
        a(f"s_add_u32 s{sTMP}, s{sTMP}, s{sW}")
        a(f"s_mul_i32 s{sTMP}, s{sTMP}, 11")
        a(f"v_min_u32 v{vT}, 10, v{vLANE}")
        a(f"v_add_u32 v{vT}, s{sTMP}, v{vT}")
        a(f"v_min_u32 v{vT}, 1919, v{vT}")
        a(f"v_mul_u32_u24 v{vT+1}, 34953, v{vT}")
        a(f"v_lshrrev_b32 v{vT+1}, 20, v{vT+1}")
        a(f"v_mul_u32_u24 v{vT+2}, 30, v{vT+1}")
        a(f"v_sub_u32 v{vT+2}, v{vT}, v{vT+2}")
        a(f"v_mul_u32_u24 v{vT+1}, 3840, v{vT+1}")
        a(f"v_lshl_add_u32 v{vPF}, v{vT+2}, 7, v{vT+1}")
        for i in range(4): a(f"s_mov_b32 s{64+i}, s{SW+i}")
        a(f"s_mov_b32 s68, {64*3840}")
        a("s_branch K1_PFD")
        a.lab("K1_PFX")
        a(f"s_lshl_b32 s{sTMP}, s{sTMP}, 1")
        a(f"s_add_u32 s{sTMP}, s{sTMP}, s{sW}")
        a(f"s_sub_u32 s{sTMP}, s{sTMP}, 6")
        a(f"s_mul_i32 s{sTMP}, s{sTMP}, 9")
        a(f"v_min_u32 v{vT}, 8, v{vLANE}")
        a(f"v_add_u32 v{vT}, s{sTMP}, v{vT}")
        a(f"v_min_u32 v{vT}, 511, v{vT}")
        a(f"s_and_b32 s{sTMP}, s2, 3")
        a(f"s_lshl_b32 s{sTMP}, s{sTMP}, 9")
        a(f"v_add_u32 v{vT}, s{sTMP}, v{vT}")
        a(f"v_mul_u32_u24 v{vPF}, 1280, v{vT}")
        for i in range(4): a(f"s_mov_b32 s{64+i}, s{SX+i}")
        a(f"s_mov_b32 s68, 128")
        a.lab("K1_PFD")
        a(f"s_mul_i32 s69, s68, {PF0}")
    def pf_group():
        return [f"buffer_load_dword v{vPF+1}, v{vPF}, s[64:67], s69 offen", f"s_add_u32 s69, s69, s68"]
    a(f"s_mul_i32 s{sSEC}, s{sNT}, 52")
    a(f"s_lshr_b32 s{sSEC}, s{sSEC}, 8")
    a(f"s_mul_i32 s{sTMP}, s{sSEC}, 5")
    a(f"s_sub_u32 s{sFB}, s{sNT}, s{sTMP}")
    a(f"s_lshl_b32 s{sFB}, s{sFB}, 7")
    a(f"s_lshl_b32 s{sTMP}, s{sWN}, 6")
    a(f"s_add_u32 s{sFB}, s{sFB}, s{sTMP}")
    a(f"s_cmp_eq_u32 s{sSEC}, 2")
    a("s_cbranch_scc1 K1_VPREP")
    a(f"s_cmp_eq_u32 s{sSEC}, 0")
    a(f"s_cselect_b32 s{sSC}, {f2u(QSCALE):#x}, 1.0")
    a(f"s_mov_b32 s{sSC+1}, s{sSC}")
    a(f"s_mov_b32 s{sTMP}, {KV_HEAD}")
    a(f"s_cselect_b32 s{sHS}, {Q_HEAD}, s{sTMP}")
    a(f"s_mov_b32 s{sTMP}, {KV_CH}")
    a(f"s_cselect_b32 s{sTMP2}, {Q_CH}, s{sTMP}")
    a(f"s_mul_i32 s{sEO}, s{sMT}, s{sTMP2}")
    a(f"s_mul_i32 s{sTMP2}, s{sBR}, {QB_OFF - QA_OFF}")
    a(f"s_add_u32 s{sTMP2}, s{sTMP2}, {QA_OFF}")
    a(f"s_mul_i32 s{sTMP3}, s{sBR}, {KVB_OFF - KVA_OFF}")
    a(f"s_cmp_eq_u32 s{sSEC}, 0")
    a(f"s_cselect_b32 s{sTMP2}, s{sTMP2}, s{sTMP3}")
    a(f"s_add_u32 s{sEO}, s{sEO}, s{sTMP2}")
    a(f"s_mul_i32 s{sTMP}, s{sWM}, 2560")
    a(f"s_add_u32 s{sEO}, s{sEO}, s{sTMP}")
    a(f"s_lshr_b32 s{sTMP}, s{sFB}, 2")
    a(f"v_lshrrev_b32 v{vT+6}, 5, v{vLANE}")
    a(f"v_add_u32 v{vT+6}, s{sTMP}, v{vT+6}")
    a(f"v_and_b32 v{vT+7}, 31, v{vLANE}")
    a(f"v_lshlrev_b32 v{vT+7}, 3, v{vT+7}")
    a(f"v_mov_b32 v{vT+8}, 0x43120")
    for e in range(8):
        a(f"v_add_u32 v{vT}, {2*e}, v{vT+6}")
        a(f"v_mul_u32_u24 v{vT+1}, 52429, v{vT}")
        a(f"v_lshrrev_b32 v{vT+1}, 18, v{vT+1}")
        a(f"v_mul_u32_u24 v{vT+2}, 5, v{vT+1}")
        a(f"v_sub_u32 v{vT+2}, v{vT}, v{vT+2}")
        a(f"v_lshlrev_b32 v{vT+2}, 2, v{vT+2}")
        a(f"v_bfe_u32 v{vT+2}, v{vT+8}, v{vT+2}, 4")
        a(f"v_lshl_add_u32 v{vT+2}, v{vT+2}, 8, v{vT+7}")
        a(f"v_mad_u32_u24 v{vEO+e}, v{vT+1}, s{sHS}, v{vT+2}")
    a("s_branch K1_T")
    a.lab("K1_VPREP")
    a(f"s_mul_i32 s{sEO}, s{sMT}, {KV_CH}")
    a(f"s_mul_i32 s{sTMP}, s{sBR}, {KVB_OFF - KVA_OFF}")
    a(f"s_add_u32 s{sEO}, s{sEO}, s{sTMP}")
    a(f"s_mul_i32 s{sTMP}, s{sWM}, {4*640}")
    a(f"s_add_u32 s{sEO}, s{sEO}, s{sTMP}")
    a(f"s_add_u32 s{sEO}, s{sEO}, 10240")
    a(f"s_mov_b32 s{sHS}, {KV_HEAD}")
    for bl in range(2):
        a(f"s_add_u32 s{sTMP}, s{sFB}, {32*bl}")
        a(f"v_and_b32 v{vT}, 31, v{vLANE}")
        a(f"v_add_u32 v{vT}, s{sTMP}, v{vT}")
        a(f"v_mul_u32_u24 v{vT+1}, 52429, v{vT}")
        a(f"v_lshrrev_b32 v{vT+1}, 20, v{vT+1}")
        a(f"v_mul_u32_u24 v{vT+2}, 20, v{vT+1}")
        a(f"v_sub_u32 v{vT+2}, v{vT}, v{vT+2}")
        a(f"v_lshrrev_b32 v{vT+3}, 5, v{vLANE}")
        a(f"v_mul_u32_u24 v{vT+3}, 320, v{vT+3}")
        a(f"v_lshl_add_u32 v{vT+3}, v{vT+2}, 4, v{vT+3}")
        a(f"v_mad_u32_u24 v{vEO+bl}, v{vT+1}, s{sHS}, v{vT+3}")
    a("s_branch K1_C")

    def variant(tag):
        a.lab(f"K1_{tag}")
        def reads(st, ph):
            out = []
            if "k1noread" in OPT: return ["s_nop 0"] * 12
            for q in range(2):
                kk = 2 * ph + q
                for j in range(2):
                    r = vXF + st * 16 + (q * 2 + j) * 4
                    out.append(f"ds_read_b128 v[{r}:{r+3}], v{vXA+kk} offset:{j*4096}")
                    r = vWF + st * 16 + (q * 2 + j) * 4
                    out.append(f"ds_read_b64_tr_b16 v[{r}:{r+1}], v{vWA+j} offset:{kk*4096}")
                    out.append(f"ds_read_b64_tr_b16 v[{r+2}:{r+3}], v{vWA+j} offset:{kk*4096+1024}")
            return out
        def mfmas(st, zero=False):
            out = []
            if "k1nomfma" in OPT: return ["s_nop 0"] * 8
            for q in range(2):
                for bl in range(2):
                    for mb in range(2):
                        acc = vACC + (bl * 2 + mb) * 16
                        xf = f"v[{vXF+st*16+(q*2+mb)*4}:{vXF+st*16+(q*2+mb)*4+3}]"
                        wf = f"v[{vWF+st*16+(q*2+bl)*4}:{vWF+st*16+(q*2+bl)*4+3}]"
                        c = "0" if (zero and q == 0) else f"v[{acc}:{acc+15}]"
                        if tag == "T":
                            out.append(f"v_mfma_f32_32x32x16_bf16 v[{acc}:{acc+15}], {wf}, {xf}, {c}")
                        else:
                            out.append(f"v_mfma_f32_32x32x16_bf16 v[{acc}:{acc+15}], {xf}, {wf}, {c}")
            return out
        def setaddr(sreg):
            return [f"v_add_u32 v{vXA+i}, s{sreg}, v{vXR+i}" for i in range(4)] + [f"v_add_u32 v{vWA+i}, s{sreg}, v{vWR+i}" for i in range(2)]
        def weave(mf, extras, upto=None):
            n = upto or len(mf); m = len(extras)
            k = 0
            for i, x in enumerate(mf):
                a(x)
                tgt = min(m, ((i + 1) * m + n - 1) // n)
                while k < tgt:
                    for y in extras[k]: a(y)
                    k += 1
        def mix(rd, dm, tail):
            ex = []
            nd = len(dm)
            for i, r in enumerate(rd):
                ex.append([r])
                if nd == 3 and i % 4 == 3: ex.append(dm[i // 4])
                if nd == 6 and i % 2 == 1: ex.append(dm[i // 2])
            return ex + tail
        def phaseA(zero, dm):
            ring = [[f"s_add_u32 s{sRD}, s{sRD}, {K1_BUF}", f"s_cmp_eq_u32 s{sRD}, {K1_LDS}", f"s_cselect_b32 s{sRD}, 0, s{sRD}"]]
            mf = mfmas(0, zero)
            weave(mf[:7], mix(reads(1, 1), dm, ring), upto=6)
            return mf[7:]
        a(f"s_mov_b32 s{sWRB}, {K1_BUF}")
        for g in dma_list(sWRB):
            for x in g: a(x)
        a(f"s_mov_b32 s{sWRB}, {2*K1_BUF}")
        NP0 = (5 - PF0) if PF else 0
        for i in range(NP0):
            for x in pf_group(): a(x)
        NP = 1 if PF else 0
        stamp(a, 2)
        a(f"s_waitcnt vmcnt({6+NP0})")
        a("s_barrier")
        stamp(a, 3)
        a(f"s_mov_b32 s{sRD}, 0")
        for x in setaddr(sRD): a(x)
        for r in reads(0, 0): a(r)
        a(f"s_mov_b32 s{sI}, 0")
        adv = [f"s_add_u32 s{sWRB}, s{sWRB}, {K1_BUF}", f"s_cmp_eq_u32 s{sWRB}, {K1_LDS}", f"s_cselect_b32 s{sWRB}, 0, s{sWRB}"]
        a("s_waitcnt lgkmcnt(0)")
        last = phaseA(True, dma_list(sWRB, True))
        for x in last: a(x)
        a(f"s_waitcnt vmcnt({6+NP0}) lgkmcnt(0)")
        a(f"s_branch K1_{tag}_WB")
        a.lab(f"K1_{tag}_LOOP")
        a("s_waitcnt lgkmcnt(0)")
        a(f"s_cmp_ge_u32 s{sI}, 8")
        a(f"s_cbranch_scc1 K1_{tag}_AND")
        last = phaseA(False, [] if "k1allc" in OPT else dma_list(sWRB, True)[3:])
        for x in last: a(x)
        a.lab(f"K1_{tag}_B")
        a(f"s_waitcnt vmcnt({6+NP}) lgkmcnt(0)")
        a.lab(f"K1_{tag}_WB")
        if "k1stamp" in OPT:
            a("s_memtime s[78:79]")
        if "k1nobar" not in OPT: a("s_barrier")
        if "k1stamp" in OPT:
            a("s_memtime s[74:75]")
            a("s_waitcnt lgkmcnt(0)")
            a(f"s_mov_b32 s79, m0")
            a(f"s_mov_b32 m0, s{sI}")
            a("s_nop 0")
            a(f"v_writelane_b32 v179, s74, m0")
            a(f"s_add_u32 m0, m0, 16")
            a("s_nop 0")
            a(f"v_writelane_b32 v179, s78, m0")
            a(f"s_mov_b32 m0, s79")
        mf = mfmas(1)
        a(mf[0])
        for x in setaddr(sRD): a(x)
        for x in adv: a(x)
        rd = reads(0, 0)
        a(f"s_cmp_ge_u32 s{sI}, 7")
        a(f"s_cbranch_scc1 K1_{tag}_ND")
        cnt = [[f"s_add_u32 s{sI}, s{sI}, 1"]]
        weave(mf[1:], mix(rd, dma_list(sWRB, True)[:3], ([pf_group()] if PF else []) + cnt), upto=6)
        a(f"s_branch K1_{tag}_LOOP")
        a.lab(f"K1_{tag}_ND")
        weave(mf[1:], mix(rd, [], cnt), upto=6)
        a(f"s_cmp_lt_u32 s{sI}, 10")
        a(f"s_cbranch_scc1 K1_{tag}_LOOP")
        stamp(a, 4)
        a("s_nop 7")
        a("s_nop 3")
        n = 0
        for bl in range(2):
            for mb in range(2):
                acc = vACC + (bl * 2 + mb) * 16
                if tag == "T":
                    for i in range(4):
                        q = acc + 4 * i
                        t = vXF + (n % 16) * 2; n += 1
                        a(f"v_pk_mul_f32 v[{q}:{q+1}], v[{q}:{q+1}], s[{sSC}:{sSC+1}]")
                        a(f"v_pk_mul_f32 v[{q+2}:{q+3}], v[{q+2}:{q+3}], s[{sSC}:{sSC+1}]")
                        a(f"v_cvt_pk_bf16_f32 v{t}, v{q}, v{q+1}")
                        a(f"v_cvt_pk_bf16_f32 v{t+1}, v{q+2}, v{q+3}")
                        a(f"buffer_store_dwordx2 v[{t}:{t+1}], v{vEO + 4*bl + i}, s[{SWS}:{SWS+3}], s{sEO} offen offset:{mb*1280}{STORE_FLAGS}")
                else:
                    for g2 in range(2):
                        q = acc + 8 * g2
                        t = vXF + (n % 8) * 4; n += 1
                        for i in range(4):
                            a(f"v_cvt_pk_bf16_f32 v{t+i}, v{q+2*i}, v{q+2*i+1}")
                        a(f"buffer_store_dwordx4 v[{t}:{t+3}], v{vEO+bl}, s[{SWS}:{SWS+3}], s{sEO} offen offset:{(2*mb+g2)*640}{STORE_FLAGS}")
        a("s_branch K1_FIN")
        a.lab(f"K1_{tag}_AND")
        last = phaseA(False, [])
        for x in last: a(x)
        a("s_waitcnt vmcnt(0) lgkmcnt(0)")
        a(f"s_branch K1_{tag}_WB")
    variant("T")
    variant("C")

    GPF0 = optval("gpf0", 3)
    a.lab("K1_GATE")
    a("s_waitcnt lgkmcnt(0)")
    srd(a, SX, 8, 9, 2048 * 1280)
    srd(a, SG, 6, 7, 1280)
    srd(a, SWS, 4, 5, WS_USED)
    TS = optval("tlbin", 0)
    if TS:
        srd(a, SW, 10, 11, 640 * 3840)
        sh = {4: 12, 16: 14, 64: 16}[TS]
        a(f"s_lshr_b32 s{sTMP}, s2, 3")
        a(f"s_and_b32 s{sTMP}, s{sTMP}, 1")
        a(f"s_lshl_b32 s{sTMP}, s{sTMP}, 3")
        a(f"s_add_u32 s{sTMP}, s{sTMP}, s{sW}")
        a(f"s_lshl_b32 s{sTMP}, s{sTMP}, 6")
        a(f"v_add_u32 v{vT+1}, s{sTMP}, v{vLANE}")
        a(f"v_lshlrev_b32 v{vT+1}, {sh}, v{vT+1}")
        n = max(1, -(-2621440 // ((1024) << sh)))
        for i in range(n):
            a(f"s_mov_b32 s{sTMP2}, {i * (1024 << sh)}")
            a(f"buffer_load_dword v{vPF}, v{vT+1}, s[{SW}:{SW+3}], s{sTMP2} offen")
            a(f"buffer_load_dword v{vPF+1}, v{vT+1}, s[{SX}:{SX+3}], s{sTMP2} offen")
    if "gpf" in OPT:
        srd(a, SW, 10, 11, 640 * 3840)
        a(f"s_lshr_b32 s{sTMP}, s2, 3")
        a(f"s_and_b32 s{sTMP}, s{sTMP}, 1")
        a(f"v_cmp_le_u32 vcc, 30, v{vLANE}")
        a(f"v_mov_b32 v{vT+1}, 0")
        a(f"v_mov_b32 v{vT+2}, {3840 - 30*128}")
        a(f"v_cndmask_b32 v{vT+1}, v{vT+1}, v{vT+2}, vcc")
        a(f"v_min_u32 v{vT+2}, 59, v{vLANE}")
        a(f"v_lshl_add_u32 v{vT+1}, v{vT+2}, 7, v{vT+1}")
        a(f"s_lshl_b32 s{sTMP2}, s{sTMP}, 5")
        a(f"s_lshl_b32 s{sTMP3}, s{sW}, 2")
        a(f"s_add_u32 s{sTMP2}, s{sTMP2}, s{sTMP3}")
        a(f"s_add_u32 s{sTMP2}, s{sTMP2}, {64*GPF0}")
        a(f"s_mul_i32 s{sTMP2}, s{sTMP2}, 3840")
        a(f"s_and_b32 s{sTMP3}, s2, 3")
        a(f"s_lshl_b32 s{sTMP3}, s{sTMP3}, 9")
        a(f"s_lshl_b32 s{sTMP}, s{sTMP}, 8")
        a(f"s_add_u32 s{sTMP3}, s{sTMP3}, s{sTMP}")
        a(f"s_and_b32 s{sTMP}, s{sW}, 3")
        a(f"s_lshl_b32 s{sTMP}, s{sTMP}, 6")
        a(f"s_add_u32 s{sTMP3}, s{sTMP3}, s{sTMP}")
        a(f"v_add_u32 v{vT+2}, s{sTMP3}, v{vLANE}")
        a(f"v_mul_u32_u24 v{vT+2}, 1280, v{vT+2}")
        a(f"s_mov_b32 s{sTMP3}, {128*GPF0}")
        for st in range(GPF0, 10):
            a(f"buffer_load_dword v{vPF}, v{vT+1}, s[{SW}:{SW+3}], s{sTMP2} offen")
            a(f"s_add_u32 s{sTMP}, s{sTMP2}, {2*3840}")
            a(f"buffer_load_dword v{vPF+1}, v{vT+1}, s[{SW}:{SW+3}], s{sTMP} offen")
            a(f"buffer_load_dword v{vPF+2}, v{vT+2}, s[{SX}:{SX+3}], s{sTMP3} offen")
            a(f"s_add_u32 s{sTMP2}, s{sTMP2}, {64*3840}")
            a(f"s_add_u32 s{sTMP3}, s{sTMP3}, 128")
    if "notlb" not in OPT:
        a(f"v_lshlrev_b32 v{vT+1}, 16, v{vLANE}")
        a(f"s_lshl_b32 s{sTMP}, s{sW}, 22")
        a(f"s_cmp_lt_u32 s{sW}, 6")
        a(f"s_cbranch_scc0 K1_NOTLB")
        a(f"buffer_load_dword v{vPF}, v{vT+1}, s[{SWS}:{SWS+3}], s{sTMP} offen")
        a.lab("K1_NOTLB")
    if "nocodepf" not in OPT:
        a(f"s_getpc_b64 s[78:79]")
        a.lab("K1_PC")
        a(f"s_add_u32 s78, s78, k2_attn_kernel-K1_PC")
        a(f"s_addc_u32 s79, s79, 0")
        a(f"v_lshlrev_b32 v{vT+1}, 7, v{vLANE}")
        a(f"s_lshl_b32 s{sTMP}, s{sW}, 13")
        a(f"v_add_u32 v{vT+1}, s{sTMP}, v{vT+1}")
        a(f"s_cmp_ge_u32 s{sW}, K2CODE_WAVES")
        a("s_cbranch_scc1 K1_NOCPF")
        a(f"global_load_dword v{vPF+2}, v{vT+1}, s[78:79]")
        a.lab("K1_NOCPF")
    a(f"s_cmp_lg_u32 s2, 240")
    a("s_cbranch_scc1 K1_NOZ")
    a(f"s_cmp_ge_u32 s{sW}, 4")
    a("s_cbranch_scc1 K1_NOZ")
    a(f"v_lshlrev_b32 v{vT+1}, 7, v{vLANE}")
    a(f"v_mov_b32 v{vT+2}, 0")
    a(f"s_lshl_b32 s{sTMP}, s{sW}, 13")
    a(f"s_add_u32 s{sTMP}, s{sTMP}, {FL_OFF}")
    a(f"buffer_store_dword v{vT+2}, v{vT+1}, s[{SWS}:{SWS+3}], s{sTMP} offen")
    a.lab("K1_NOZ")
    a(f"s_sub_u32 s{sTMP}, s2, 240")
    a(f"s_lshl_b32 s{sTMP}, s{sTMP}, 3")
    a(f"s_add_u32 s{sTMP}, s{sTMP}, s{sW}")
    a(f"s_cmp_ge_u32 s{sTMP}, 120")
    a("s_cbranch_scc1 K1_GATE2")
    a(f"s_mul_i32 s{sTMP2}, s{sTMP}, 171")
    a(f"s_lshr_b32 s{sTMP2}, s{sTMP2}, 9")
    a(f"s_mul_i32 s{sTMP3}, s{sTMP2}, 3")
    a(f"s_sub_u32 s{sTMP3}, s{sTMP}, s{sTMP3}")
    a("s_load_dwordx2 s[58:59], s[0:1], 16")
    a("s_load_dwordx2 s[70:71], s[0:1], 40")
    a(f"s_mul_i32 s{sD}, s{sTMP3}, 448")
    a(f"v_lshrrev_b32 v{vT+1}, 5, v{vLANE}")
    a(f"v_mul_u32_u24 v{vT+1}, 1280, v{vT+1}")
    a(f"v_and_b32 v{vT+2}, 31, v{vLANE}")
    a(f"v_lshl_add_u32 v{vT+1}, v{vT+2}, 4, v{vT+1}")
    a(f"v_add_u32 v{vT+1}, s{sD}, v{vT+1}")
    a(f"s_lshl_b32 s{sEO}, s{sW}, 14")
    a("s_waitcnt lgkmcnt(0)")
    srd(a, 60, 58, 59, 640 * 1280)
    srd(a, 64, 70, 71, 640 * 1280)
    for g in range(4):
        a(f"s_lshl_b32 s72, s{sTMP2}, 2")
        a(f"s_add_u32 s72, s72, {g}")
        a(f"s_mul_i32 s73, s72, 205")
        a(f"s_lshr_b32 s73, s73, 10")
        a(f"s_mul_i32 s74, s73, 5")
        a(f"s_sub_u32 s74, s72, s74")
        a(f"s_mul_i32 s73, s73, 20")
        for quad in range(2):
            a(f"s_and_b32 s76, s74, 1")
            a(f"s_lshl_b32 s76, s76, 3")
            a(f"s_add_u32 s76, s76, {4*quad}")
            a(f"s_lshr_b32 s77, s74, 1")
            a(f"s_cmp_eq_u32 s74, 4")
            a(f"s_cselect_b32 s76, 16, s76")
            a(f"s_cselect_b32 s77, {quad}, s77")
            a(f"s_add_u32 s76, s76, s73")
            a(f"s_mul_i32 s76, s76, 1280")
            a(f"s_cmp_eq_u32 s77, 0")
            a(f"s_cbranch_scc0 K1_WB{g}{quad}")
            for r2 in range(2):
                a(f"s_add_u32 m0, s{sEO}, {(g*4 + quad*2 + r2)*1024}")
                a(f"s_add_u32 s{sD}, s76, {r2*2*1280}")
                a(f"buffer_load_dwordx4 v{vT+1}, s[60:63], s{sD} offen lds")
            a(f"s_branch K1_WD{g}{quad}")
            a.lab(f"K1_WB{g}{quad}")
            for r2 in range(2):
                a(f"s_add_u32 m0, s{sEO}, {(g*4 + quad*2 + r2)*1024}")
                a(f"s_add_u32 s{sD}, s76, {r2*2*1280}")
                a(f"buffer_load_dwordx4 v{vT+1}, s[64:67], s{sD} offen lds")
            a.lab(f"K1_WD{g}{quad}")
    a(f"v_lshrrev_b32 v{vT+2}, 4, v{vLANE}")
    a(f"v_bfe_u32 v{vT+3}, v{vLANE}, 2, 2")
    a(f"v_lshl_add_u32 v{vT+2}, v{vT+2}, 3, v{vT+3}")
    a(f"v_lshlrev_b32 v{vT+2}, 9, v{vT+2}")
    a(f"v_and_b32 v{vT+3}, 3, v{vLANE}")
    a(f"v_lshl_add_u32 v{vT+2}, v{vT+3}, 3, v{vT+2}")
    a(f"v_add_u32 v{vT+2}, s{sEO}, v{vT+2}")
    a(f"v_lshlrev_b32 v{vT+3}, 4, v{vLANE}")
    a("s_waitcnt vmcnt(0)")
    for j in range(14):
        a(f"ds_read_b64_tr_b16 v[{vXF+4*j}:{vXF+4*j+1}], v{vT+2} offset:{j*32}")
        a(f"ds_read_b64_tr_b16 v[{vXF+4*j+2}:{vXF+4*j+3}], v{vT+2} offset:{j*32+2048}")
    a(f"s_mul_i32 s{sTMP3}, s{sTMP3}, 14")
    a("s_waitcnt lgkmcnt(0)")
    for j in range(14):
        a(f"s_add_u32 s{sTMP4}, s{sTMP3}, {j}")
        a(f"s_cmp_ge_u32 s{sTMP4}, 40")
        a("s_cbranch_scc1 K1_GATE2")
        a(f"s_mul_i32 s{sD}, s{sTMP4}, 52")
        a(f"s_lshr_b32 s{sD}, s{sD}, 8")
        a(f"s_mul_i32 s{sEO}, s{sD}, 5")
        a(f"s_sub_u32 s{sEO}, s{sTMP4}, s{sEO}")
        a(f"s_mul_i32 s{sD}, s{sD}, 40")
        a(f"s_add_u32 s{sD}, s{sD}, s{sTMP2}")
        a(f"s_mul_i32 s{sD}, s{sD}, 5")
        a(f"s_add_u32 s{sD}, s{sD}, s{sEO}")
        a(f"s_lshl_b32 s{sD}, s{sD}, 10")
        a(f"s_add_u32 s{sD}, s{sD}, {WT_OFF}")
        a(f"buffer_store_dwordx4 v[{vXF+4*j}:{vXF+4*j+3}], v{vT+3}, s[{SWS}:{SWS+3}], s{sD} offen")
    a.lab("K1_GATE2")
    a("s_nop 1")
    a(f"s_sub_u32 s{sTMP}, s2, 240")
    a(f"s_lshl_b32 s{sTMP}, s{sTMP}, 7")
    a(f"s_lshl_b32 s{sTMP2}, s{sW}, 4")
    a(f"s_add_u32 s{sI}, s{sTMP}, s{sTMP2}")
    a(f"v_lshlrev_b32 v{vT}, 2, v{vLANE}")
    for j in range(5):
        a(f"buffer_load_dword v{vT+7+j}, v{vT}, s[{SG}:{SG+3}], 0 offen offset:{j*256}")
    a(f"s_mul_i32 s{sTMP4}, s{sI}, 1280")
    for r in range(16):
        for j in range(5):
            a(f"buffer_load_dword v{vXF+r*5+j}, v{vT}, s[{SX}:{SX+3}], s{sTMP4} offen offset:{j*256}")
        a(f"s_add_u32 s{sTMP4}, s{sTMP4}, 1280")
        if r == 9: a("s_waitcnt vmcnt(20)")
    a("s_waitcnt vmcnt(0)")
    gw = vT + 7
    for j in range(5):
        a(f"v_lshlrev_b32 v{vT+2+j}, 16, v{gw+j}")
        a(f"v_and_b32 v{gw+j}, 0xffff0000, v{gw+j}")
    vG = 112
    for r in range(16):
        a(f"v_mov_b32 v{vG+r}, 0")
        for j in range(5):
            x = vXF + r * 5 + j
            a(f"v_lshlrev_b32 v{vT}, 16, v{x}")
            a(f"v_and_b32 v{x}, 0xffff0000, v{x}")
            a(f"v_fmac_f32 v{vG+r}, v{vT}, v{vT+2+j}")
            a(f"v_fmac_f32 v{vG+r}, v{x}, v{gw+j}")
    for rr in (8, 4, 2, 1):
        a("s_nop 1")
        for r in range(16):
            a(f"v_add_f32_dpp v{vG+r}, v{vG+r}, v{vG+r} row_ror:{rr} row_mask:0xf bank_mask:0xf")
    for r in range(16):
        a(f"v_mov_b32 v{vG+16+r}, v{vG+r}")
    a("s_nop 1")
    for r in range(16):
        a(f"v_permlane32_swap_b32 v{vG+r}, v{vG+16+r}")
    a("s_nop 1")
    for r in range(16):
        a(f"v_add_f32 v{vG+r}, v{vG+r}, v{vG+16+r}")
        a(f"v_mov_b32 v{vG+16+r}, v{vG+r}")
    a("s_nop 1")
    for r in range(16):
        a(f"v_permlane16_swap_b32 v{vG+r}, v{vG+16+r}")
    a("s_nop 1")
    for r in range(16):
        a(f"v_add_f32 v{vG+r}, v{vG+r}, v{vG+16+r}")
    a(f"v_and_b32 v{vT}, 15, v{vLANE}")
    a(f"v_mov_b32 v{vT+1}, v{vG}")
    for r in range(1, 16):
        a(f"v_cmp_eq_u32 vcc, {r}, v{vT}")
        a("s_nop 1")
        a(f"v_cndmask_b32 v{vT+1}, v{vT+1}, v{vG+r}, vcc")
    a(f"v_mul_f32 v{vT+1}, {f2u(-1.4426950408889634):#x}, v{vT+1}")
    a(f"v_exp_f32 v{vT+1}, v{vT+1}")
    a("s_nop 0")
    a(f"v_add_f32 v{vT+1}, 1.0, v{vT+1}")
    a(f"v_rcp_f32 v{vT+1}, v{vT+1}")
    a(f"s_lshl_b32 s{sTMP}, s{sI}, 2")
    a(f"s_add_u32 s{sTMP}, s{sTMP}, {G_OFF}")
    a(f"v_lshlrev_b32 v{vT}, 2, v{vT}")
    a("s_mov_b64 exec, 0xffff")
    a(f"buffer_store_dword v{vT+1}, v{vT}, s[{SWS}:{SWS+3}], s{sTMP} offen")
    a("s_branch K1_END")
    a.lab("K1_FIN")
    if "dbgtime" in OPT:
        a("s_load_dwordx2 s[92:93], s[0:1], 64")
        a("s_waitcnt vmcnt(0)")
        a("s_memrealtime s[94:95]")
        a("s_waitcnt lgkmcnt(0)")
        srd(a, 84, 92, 93, 256)
        a("s_mov_b64 exec, 1")
        a("v_mov_b32 v20, 0")
        a("s_not_b32 s90, s90")
        a("v_mov_b32 v21, s90")
        a("buffer_atomic_umax v21, v20, s[84:87], 0 offen")
        a("v_mov_b32 v22, s94")
        a("buffer_atomic_umax v22, v20, s[84:87], 0 offen offset:4")
        a("s_mov_b64 exec, -1")
    if "k1stamp" in OPT:
        a(f"s_lshl_b32 s97, s2, 3")
        a(f"s_add_u32 s97, s97, s{sW}")
        a(f"s_lshl_b32 s97, s97, 7")
        a(f"s_add_u32 s97, s97, {PROF_OFF + 3 * 0x100000}")
        a(f"v_lshlrev_b32 v{vT}, 2, v{vLANE}")
        a("s_mov_b64 exec, 0xffffffff")
        a(f"buffer_store_dword v179, v{vT}, s[{SWS}:{SWS+3}], s97 offen")
        a("s_mov_b64 exec, -1")
    stamp(a, 5)
    if PROF: a("s_waitcnt vmcnt(0)")
    stamp(a, 6)
    stamp_flush(a, 0, 7, SWS, sW, vT)
    a.lab("K1_END")
    a("s_endpgm")
    return name, NV

K2_LDS = 163840
NEGBIG = -1.0e30

def mask_table():
    vals = []
    for j in range(6):
        for l in range(64):
            c = l & 31; h = l >> 5
            for i in range(4):
                if j < 4:
                    r = j * 4 + i
                    row = (r & 3) + 8 * (r >> 2) + 4 * h
                    diff = c + 16 - row
                else:
                    r = (j - 4) * 4 + i
                    row = (r & 3) + 8 * (r >> 2) + 4 * h
                    diff = c - 16 - row
                ok = 0 <= diff <= 14 and diff % 2 == 0
                vals.append(0 if ok else f2u(NEGBIG))
    return vals

K2_PRIO_TILE = 5
def gen_k2(a):
    FUSE = "nofuse" not in OPT
    name = "k2_attn_kernel"
    kernel_head(a, name)
    SWS = 8
    sW = 12; sHEAD = 13; sQB = 14; sS0 = 15; sT0 = 16; sT1 = 17; sT2 = 18; sT3 = 19
    sC = 20; sPASS = 21; sVM = 22
    sLO = 24
    sGRP = 26; sPR = 27
    sDS = 28; sDG = 29
    sAV = 30
    sQA = 33; sGO = 35
    sDO = 44
    sWL = 49; sWS = 58; sWS0 = 59; sWC = 66; sFAIL = 67
    vLANE = 1; vL16 = 2; vK8 = 3; vVA = 4; vKe = 5; vKo = 6; vK4c = 7
    vT = 8
    vGATE = 16; vVc = 17
    vAKO = 18
    vPFA = 22; vQO = 23
    vQ16 = [24, 28]; vQ8 = [32, 34]
    vQA16 = 36; vQA8 = 40
    vKA = 44; vKB = 52; vV1 = 56; vV2 = 64; vP = 72
    S = [84, 100]; NEG = [116, 132]; O = [148, 164]
    vAK = 180; vAV = 192; vMX = 204; vMY = 220
    vOB = 236; vDUM = 244; vOSA = 245
    NV = 248
    ONES = 0x3f803f80
    vS0, vS1 = S

    a("s_cmp_ge_u32 s2, 256")
    a("s_cbranch_scc1 K2_END")
    stamp(a, 0)
    if "dbgtime" in OPT:
        a("s_memrealtime s[90:91]")
        a("s_load_dwordx2 s[92:93], s[0:1], 64")
    a("s_load_dwordx2 s[4:5], s[0:1], 72")
    if FUSE:
        a("s_load_dwordx2 s[60:61], s[0:1], 56")
    a(f"v_and_b32 v{vLANE}, 63, v0")
    a(f"v_lshrrev_b32 v{vT}, 6, v0")
    a(f"s_and_b32 s{sHEAD}, s2, 7")
    a(f"v_readfirstlane_b32 s{sW}, v{vT}")
    a(f"s_lshl_b32 s{sHEAD}, s{sHEAD}, 2")
    a(f"s_lshr_b32 s{sT0}, s2, 6")
    a(f"s_add_u32 s{sHEAD}, s{sHEAD}, s{sT0}")
    a(f"s_lshr_b32 s{sQB}, s2, 3")
    a(f"s_and_b32 s{sQB}, s{sQB}, 7")
    a(f"v_lshlrev_b32 v{vL16}, 4, v{vLANE}")
    a(f"v_and_b32 v{vT}, 31, v{vLANE}")
    a(f"v_lshlrev_b32 v{vK8}, 3, v{vT}")
    a(f"v_lshrrev_b32 v{vT+1}, 5, v{vLANE}")
    a(f"v_lshl_add_u32 v{vQO}, v{vT+1}, 8, v{vK8}")
    a(f"s_lshr_b32 s{sGRP}, s{sW}, 2")
    a(f"s_and_b32 s{sPR}, s{sW}, 3")
    a(f"s_mul_i32 s{sDS}, s{sHEAD}, {KV_HEAD}")
    a(f"s_add_u32 s{sDS}, s{sDS}, {KVB_OFF}")
    for j in range(5):
        a(f"s_add_u32 s{sT0}, s{sW}, {8*j}")
        a(f"s_lshl_b32 s{sDO+j}, s{sT0}, 10")
        a(f"s_cmp_ge_u32 s{sT0}, 20")
        a(f"s_cselect_b32 s{sT1}, {4*KV_CH - 20*1024}, 0")
        a(f"s_add_u32 s{sDO+j}, s{sDO+j}, s{sT1}")
    a(f"s_mul_i32 s{sQA}, s{sHEAD}, {Q_HEAD}")
    a(f"s_lshl_b32 s{sT1}, s{sQB}, 3")
    a(f"s_lshl_b32 s{sT2}, s{sPR}, 1")
    a(f"s_add_u32 s{sT1}, s{sT1}, s{sT2}")
    a(f"s_mul_i32 s{sT1}, s{sT1}, 1280")
    a(f"s_add_u32 s{sQA}, s{sQA}, s{sT1}")
    a(f"s_add_u32 s{sT0}, s{sQA}, {QB_OFF}")
    a(f"s_mov_b32 s{sDG}, 0")
    a("s_waitcnt lgkmcnt(0)")
    srd(a, SWS, 4, 5, WS_USED)
    def dma1(j):
        return [f"s_add_u32 m0, s{sDO+j}, s{sDG}",
                f"s_add_u32 s{sT3}, m0, s{sDS}",
                f"buffer_load_dwordx4 v{vL16}, s[{SWS}:{SWS+3}], s{sT3} offen lds"]
    def qloads(q16, q8, sreg, off):
        return [f"buffer_load_dwordx2 v[{q16}:{q16+1}], v{vQO}, s[{SWS}:{SWS+3}], s{sreg} offen offset:{off}",
                f"buffer_load_dwordx2 v[{q16+2}:{q16+3}], v{vQO}, s[{SWS}:{SWS+3}], s{sreg} offen offset:{off+512}",
                f"buffer_load_dwordx2 v[{q8}:{q8+1}], v{vK8}, s[{SWS}:{SWS+3}], s{sreg} offen offset:{off+1024}"]
    for j in range(5):
        for x in dma1(j): a(x)
    for sg in range(2):
        for x in qloads(vQ16[sg], vQ8[sg], sT0, sg * 1280): a(x)
    a(f"s_add_u32 s{sDG}, s{sDG}, {KV_CH}")
    stamp(a, 1)
    a(f"s_mov_b32 s{sVM}, 0x000fffff")
    a(f"s_mov_b32 s{sVM+1}, 0x000fffff")
    a(f"s_mov_b32 s{sLO}, -1")
    a(f"s_mov_b32 s{sLO+1}, 0")
    a(f"v_and_b32 v{vT}, 31, v{vLANE}")
    a(f"v_lshrrev_b32 v{vT+1}, 5, v{vLANE}")
    a(f"v_mul_u32_u24 v{vVA}, 20, v{vT+1}")
    a(f"v_add_u32 v{vVA}, v{vVA}, v{vT}")
    a(f"v_lshlrev_b32 v{vVA}, 4, v{vVA}")
    for sg in range(2):
        for i in range(0, 16, 2):
            a(f"v_mov_b64 v[{O[sg]+i}:{O[sg]+i+1}], 0")
    a(f"v_mov_b64 v[{vP+4}:{vP+5}], 0")
    a(f"v_mov_b64 v[{vP+6}:{vP+7}], 0")
    a(f"s_lshl_b32 s{sS0}, s{sQB}, 8")
    a(f"s_lshl_b32 s{sT0}, s{sPR}, 6")
    a(f"s_add_u32 s{sS0}, s{sS0}, s{sT0}")
    a(f"s_lshl_b32 s{sT0}, s{sGRP}, 5")
    a(f"s_add_u32 s{sS0}, s{sS0}, s{sT0}")
    a(f"s_mul_i32 s{sT0}, s{sGRP}, 1280")
    a(f"s_add_u32 s{sQA}, s{sQA}, s{sT0}")
    a(f"s_add_u32 s{sQA}, s{sQA}, {QA_OFF}")
    a(f"s_lshl_b32 s{sT0}, s{sHEAD}, 6")
    a(f"s_lshr_b32 s{sT1}, s{sS0}, 5")
    a(f"s_add_u32 s{sT0}, s{sT0}, s{sT1}")
    for k, dT in enumerate((-1, 0, 1)):
        a(f"s_add_i32 s{sT1}, s{sT0}, {dT}")
        a(f"s_ashr_i32 s{sT2}, s{sT1}, 3")
        a(f"s_mul_i32 s{sT2}, s{sT2}, {KV_CH}")
        a(f"s_and_b32 s{sT1}, s{sT1}, 7")
        a(f"s_mul_i32 s{sT1}, s{sT1}, 1280")
        a(f"s_add_u32 s{50+k}, s{sT1}, s{sT2}")
    a(f"s_add_u32 s50, s50, 128")
    a(f"s_sub_u32 s53, s51, 128")
    a(f"s_add_u32 s51, s51, 128")
    a(f"s_sub_u32 s52, s52, 128")
    a(f"s_mov_b32 s54, 0xffff")
    a(f"s_mov_b32 s55, 0xffff")
    a(f"v_add_u32 v{vAKO+1}, s53, v{vK8}")
    a(f"v_add_u32 v{vAKO+3}, s52, v{vK8}")
    a(f"s_mov_b64 exec, s[54:55]")
    a(f"v_add_u32 v{vAKO+1}, s50, v{vK8}")
    a(f"v_add_u32 v{vAKO+3}, s51, v{vK8}")
    a("s_mov_b64 exec, -1")
    a(f"v_sub_u32 v{vT+7}, v{vQO}, v{vK8}")
    a(f"v_add_u32 v{vAKO}, v{vAKO+1}, v{vT+7}")
    a(f"v_add_u32 v{vAKO+2}, v{vAKO+3}, v{vT+7}")
    a(f"s_lshl_b32 s{sT0}, s{sHEAD}, 7")
    a(f"s_lshr_b32 s{sT1}, s{sS0}, 4")
    a(f"s_add_u32 s{sT0}, s{sT0}, s{sT1}")
    for j in range(3):
        a(f"s_add_i32 s{sT1}, s{sT0}, {j-1}")
        a(f"s_max_i32 s{sT1}, s{sT1}, 0")
        a(f"s_lshr_b32 s{sT2}, s{sT1}, 4")
        a(f"s_mul_i32 s{sT2}, s{sT2}, {KV_CH}")
        a(f"s_and_b32 s{sT1}, s{sT1}, 15")
        a(f"s_mul_i32 s{sT1}, s{sT1}, 640")
        a(f"s_add_u32 s{sT1}, s{sT1}, s{sT2}")
        a(f"s_add_u32 s{sAV+j}, s{sT1}, 10240")
    a(f"s_lshl_b32 s{sGO}, s{sS0}, 2")
    a(f"s_add_u32 s{sGO}, s{sGO}, {G_OFF}")
    a(f"v_mov_b32 v{vT+2}, 0")
    a(f"v_mov_b32 v{vT+3}, {ONES:#x}")
    if "vones" in OPT:
        a(f"v_mov_b32 v{vT+2}, {ONES:#x}")
    else:
        a(f"v_and_b32 v{vT+4}, 27, v{vT}")
        a.l.pop()
        a(f"v_cmp_eq_u32 vcc, 20, v{vT}")
        a(f"v_cmp_eq_u32 s[38:39], 24, v{vT}")
        a("s_nop 1")
        a("s_or_b64 vcc, vcc, s[38:39]")
        a("s_nop 1")
        a(f"v_cndmask_b32 v{vT+2}, v{vT+2}, v{vT+3}, vcc")
    a(f"v_mov_b32 v{vT+3}, v{vT+2}")
    for i in range(0, 12, 2):
        a(f"v_mov_b64 v[{vAV+i}:{vAV+i+1}], v[{vT+2}:{vT+3}]")
    for i in range(0, 16, 2):
        a(f"v_mov_b64 v[{vV1+i}:{vV1+i+1}], v[{vT+2}:{vT+3}]")
    a(f"s_lshr_b32 s{sT0}, s{sS0}, 4")
    a(f"s_mul_i32 s{sT0}, s{sT0}, {40*1024}")
    a(f"s_mul_i32 s{sT1}, s{sHEAD}, {5*256}")
    a(f"s_add_u32 s{sT0}, s{sT0}, s{sT1}")
    a(f"v_bfe_u32 v{vT+2}, v{vLANE}, 4, 1")
    a(f"v_mul_u32_u24 v{vT+2}, {40*1024}, v{vT+2}")
    a(f"v_and_b32 v{vT+3}, 15, v{vLANE}")
    a(f"v_lshl_add_u32 v{vT+3}, v{vT+3}, 4, v{vT+2}")
    a(f"v_lshrrev_b32 v{vT+2}, 5, v{vLANE}")
    a(f"v_lshl_add_u32 v{vT+3}, v{vT+2}, 8, v{vT+3}")
    a(f"v_add_u32 v{vOSA}, s{sT0}, v{vT+3}")
    a(f"s_getpc_b64 s[56:57]")
    a.lab("K2_PC")
    a(f"s_add_u32 s56, s56, K2_TABLE-K2_PC")
    a(f"s_addc_u32 s57, s57, 0")
    if not FUSE:
        a("s_lshr_b32 s36, s2, 3")
        a("s_lshl_b32 s36, s36, 3")
        a(f"s_add_u32 s36, s36, s{sW}")
        a("s_mul_i32 s36, s36, 50")
        a(f"v_min_u32 v{vPFA}, 49, v{vLANE}")
        a(f"v_add_u32 v{vPFA}, s36, v{vPFA}")
        a(f"v_lshlrev_b32 v{vPFA}, 7, v{vPFA}")
        a(f"v_add_u32 v{vPFA}, {WT_OFF}, v{vPFA}")
    if FUSE:
        a(f"s_mov_b32 s64, s{sHEAD}")
        a(f"s_mov_b32 s65, s{sQB}")
        a(f"s_mul_i32 s{sWS0}, s65, {200*1024}")
        a(f"s_lshl_b32 s{sT0}, s{sW}, 10")
        a(f"s_add_u32 s{sWS0}, s{sWS0}, s{sT0}")
        a(f"s_add_u32 s{sWS0}, s{sWS0}, {WT_OFF}")
        a(f"s_mov_b32 s{sWS}, s{sWS0}")
        a(f"s_mov_b32 s{sWL}, 0")
        a(f"s_mov_b32 s{sWC}, 2")
    a(f"s_mov_b32 s{sPASS}, 0")
    a(f"s_mul_i32 s37, s{sGRP}, {4*KV_CH}")
    stamp(a, 2)
    a("s_waitcnt vmcnt(0)")
    a(f"s_mov_b64 exec, s[{sLO}:{sLO+1}]")
    a(f"s_not_b64 exec, exec")
    for sg in range(2):
        a(f"v_mov_b32 v{vQ8[sg]}, 0")
        a(f"v_mov_b32 v{vQ8[sg]+1}, 0")
    a("s_mov_b64 exec, -1")
    a("s_barrier")
    stamp(a, 3)
    def rdK16(dst, rel_chunk, tt):
        base = vKe if tt % 2 == 0 else vKo
        o0 = rel_chunk * 40 + (tt >> 1) * 5
        return f"ds_read2st64_b64 v[{dst}:{dst+3}], v{base} offset0:{o0} offset1:{o0+1}"
    def rdK4(dst, rel_chunk, tt):
        return f"ds_read_b64 v[{dst}:{dst+1}], v{vK4c} offset:{rel_chunk*KV_CH + tt*1280 + 1024}"
    def voff(g):
        return (g // 16) * KV_CH + (g % 16) * 640
    def setbases():
        a(f"v_add_u32 v{vKe}, s37, v{vQO}")
        a(f"v_add_u32 v{vKo}, 1280, v{vKe}")
        a(f"v_add_u32 v{vK4c}, s37, v{vK8}")
        a(f"v_add_u32 v{vVc}, s37, v{vVA}")
        a(f"v_add_u32 v{vVc}, 10240, v{vVc}")
    def qk(dst, ka, kb, sg, c):
        return [f"v_mfma_f32_32x32x16_bf16 v[{dst}:{dst+15}], v[{ka}:{ka+3}], v[{vQ16[sg]}:{vQ16[sg]+3}], {c}",
                f"v_mfma_f32_32x32x8_bf16 v[{dst}:{dst+15}], v[{kb}:{kb+1}], v[{vQ8[sg]}:{vQ8[sg]+1}], v[{dst}:{dst+15}]"]
    def rowmax(m, regs, first=None):
        if first is None:
            a(f"v_max3_f32 v{m}, v{regs[0]}, v{regs[1]}, v{regs[2]}")
            rest = regs[3:]
        else:
            rest = regs
        i = 0
        while i + 1 < len(rest):
            a(f"v_max3_f32 v{m}, v{m}, v{rest[i]}, v{rest[i+1]}")
            i += 2
        if i < len(rest):
            a(f"v_max_f32 v{m}, v{m}, v{rest[i]}")
    a.lab("K2_START")
    setbases()
    a(rdK16(vKA, 0, 0))
    a(rdK4(vKB, 0, 0))
    a(f"s_mov_b64 exec, s[{sVM}:{sVM+1}]")
    a(f"ds_read_b128 v[{vV1}:{vV1+3}], v{vVc}")
    a("s_mov_b64 exec, -1")
    a(f"s_cmp_lg_u32 s{sPASS}, 0")
    a("s_cbranch_scc1 K2_HAVEM")
    a("s_waitcnt lgkmcnt(0)")
    for sg in range(2):
        for x in qk(S[sg], vKA, vKB, sg, "0"): a(x)
    a("s_nop 9")
    for sg in range(2):
        m = vT + 2 * sg
        rowmax(m, [S[sg] + i for i in range(16)])
        a(f"v_mov_b32 v{m+1}, v{m}")
    a("s_nop 1")
    for sg in range(2):
        m = vT + 2 * sg
        a(f"v_permlane32_swap_b32 v{m}, v{m+1}")
    a("s_nop 1")
    for sg in range(2):
        m = vT + 2 * sg
        a(f"v_max_f32 v{m}, v{m}, v{m+1}")
        a(f"v_sub_f32 v{NEG[sg]}, 0, v{m}")
        a(f"v_sub_f32 v{NEG[sg]+1}, 0, v{m}")
        for i in range(2, 16, 2):
            a(f"v_mov_b64 v[{NEG[sg]+i}:{NEG[sg]+i+1}], v[{NEG[sg]}:{NEG[sg]+1}]")
    a.lab("K2_HAVEM")
    a("s_waitcnt lgkmcnt(0)")
    a("s_nop 1")
    for x in qk(S[0], vKA, vKB, 0, f"v[{NEG[0]}:{NEG[0]+15}]"): a(x)
    a(f"s_mov_b32 s{sC}, 0")
    a("s_nop 15")
    stamp(a, 4)
    a.lab("K2_LOOP")
    if "chunkstamp" in OPT:
        a("s_memtime s[78:79]")
        a("s_waitcnt lgkmcnt(0)")
        a(f"s_mov_b32 s79, m0")
        a(f"s_mov_b32 m0, s{sC}")
        a("s_nop 0")
        a(f"v_writelane_b32 v247, s78, m0")
        a(f"s_mov_b32 m0, s79")
    aloads = [
        qloads(vQA16, vQA8, sQA, 0),
        [f"buffer_load_dwordx2 v[{vAK}:{vAK+1}], v{vAKO}, s[{SWS}:{SWS+3}], 0 offen",
         f"buffer_load_dwordx2 v[{vAK+2}:{vAK+3}], v{vAKO}, s[{SWS}:{SWS+3}], 0 offen offset:512",
         f"buffer_load_dwordx2 v[{vAK+8}:{vAK+9}], v{vAKO+1}, s[{SWS}:{SWS+3}], 0 offen offset:1024"],
        [f"buffer_load_dwordx2 v[{vAK+4}:{vAK+5}], v{vAKO+2}, s[{SWS}:{SWS+3}], 0 offen",
         f"buffer_load_dwordx2 v[{vAK+6}:{vAK+7}], v{vAKO+2}, s[{SWS}:{SWS+3}], 0 offen offset:512",
         f"buffer_load_dwordx2 v[{vAK+10}:{vAK+11}], v{vAKO+3}, s[{SWS}:{SWS+3}], 0 offen offset:1024"],
        [f"s_mov_b64 exec, s[{sVM}:{sVM+1}]"] +
        [f"buffer_load_dwordx4 v[{vAV+4*j}:{vAV+4*j+3}], v{vVA}, s[{SWS}:{SWS+3}], s{sAV+j} offen" for j in range(3)] +
        ["s_mov_b64 exec, -1"],
        [f"global_load_dwordx4 v[{vMX+4*j}:{vMX+4*j+3}], v{vL16}, s[56:57] offset:{j*1024}" for j in range(4)] +
        [f"v_add_u32 v{vT+7}, 4096, v{vL16}"] +
        [f"global_load_dwordx4 v[{vMY+4*j}:{vMY+4*j+3}], v{vT+7}, s[56:57] offset:{j*1024}" for j in range(2)] +
        [f"v_lshrrev_b32 v{vT+7}, 1, v{vK8}",
         f"buffer_load_dword v{vGATE}, v{vT+7}, s[{SWS}:{SWS+3}], s{sGO} offen"] +
        ([] if FUSE else [f"buffer_load_dword v{vDUM}, v{vPFA}, s[{SWS}:{SWS+3}], 0 offen"]),
    ]
    ool = []
    ptile = optval("ptile", 6)
    WIN = optval("win", 2)
    def wdma(j, p_expr_sgpr):
        return [f"s_add_u32 m0, s{sDO+j}, s{p_expr_sgpr}",
                f"s_add_u32 s{sT3}, s{sWS}, {j*8192}",
                f"buffer_load_dwordx4 v{vL16}, s[{SWS}:{SWS+3}], s{sT3} offen lds"]
    for tt in range(8):
        for sg in range(2):
            cur = S[sg]; nsg = sg ^ 1; nxt = S[nsg]
            nt = tt if sg == 0 else tt + 1
            ka = vKA + 4 * (nt & 1); kb = vKB + 2 * (nt & 1)
            if sg == 0 and tt == 7:
                a(f"s_cmp_lg_u32 s{sPASS}, 0")
                a(f"s_cbranch_scc1 K2_NOSYNC")
                a(f"s_cmp_ge_u32 s{sC}, 3")
                a(f"s_cbranch_scc1 K2_SYNC3" if (FUSE and WIN == 3) else f"s_cbranch_scc1 K2_NOSYNC")
                a("s_waitcnt vmcnt(0)")
                a("s_barrier")
                a.lab("K2_NOSYNC")
                if ptile >= 0: a("s_setprio 2")
                if FUSE and WIN == 3:
                    body = ["s_barrier"]
                    for j in range(5): body += wdma(j, sWL)
                    body += [f"s_add_u32 s{sWL}, s{sWL}, {KV_CH}", f"s_add_u32 s{sWS}, s{sWS}, {K3_BUF}", "s_branch K2_NOSYNC"]
                    ool.append(("K2_SYNC3", body))
            if sg == 0 and tt == ptile:
                a("s_setprio 0")
            if sg == 1:
                a("s_waitcnt lgkmcnt(0)")
            q = qk(nxt, ka, kb, nsg, f"v[{NEG[nsg]}:{NEG[nsg]+15}]")
            a(q[0])
            if sg == 0:
                n1 = tt + 1
                a(rdK16(vKA + 4 * (n1 & 1), n1 // 8, n1 % 8))
                a(rdK4(vKB + 2 * (n1 & 1), n1 // 8, n1 % 8))
            for i in range(0, 4):
                a(f"v_exp_f32 v{cur+i}, v{cur+i}")
            pt = tt - 1 if sg == 0 else tt
            v2p = vV2 + 4 * (pt & 1)
            a(f"v_mfma_f32_32x32x16_bf16 v[{O[nsg]}:{O[nsg]+15}], v[{v2p}:{v2p+3}], v[{vP+4}:{vP+7}], v[{O[nsg]}:{O[nsg]+15}]")
            if sg == 0:
                a(f"s_mov_b64 exec, s[{sVM}:{sVM+1}]")
                d = vV2 + 4 * (tt & 1)
                a(f"ds_read_b128 v[{d}:{d+3}], v{vVc} offset:{voff(2*tt+1)}")
                d = vV1 + 4 * ((tt + 1) & 1)
                a(f"ds_read_b128 v[{d}:{d+3}], v{vVc} offset:{voff(2*tt+2)}")
                a("s_mov_b64 exec, -1")
            if FUSE and WIN >= 2 and sg == 0 and 1 <= tt < 6:
                j = tt - 1
                a(f"s_cmp_ge_u32 s{sC}, s{sWC}")
                a(f"s_cbranch_scc1 K2_Y{tt}")
                body = wdma(j, sWL)
                if j == 4: body += [f"s_add_u32 s{sWL}, s{sWL}, {KV_CH}", f"s_add_u32 s{sWS}, s{sWS}, {K3_BUF}"]
                ool.append((f"K2_Y{tt}", body + [f"s_branch K2_YR{tt}"]))
                a.lab(f"K2_YR{tt}")
            if sg == 1 and tt < 5:
                a(f"s_cmp_lg_u32 s{sPASS}, 0")
                a(f"s_cbranch_scc1 K2_XR{tt}")
                a(f"s_cmp_lt_u32 s{sC}, 3")
                a(f"s_cbranch_scc0 K2_X{tt}")
                for x in dma1(tt): a(x)
                if tt == 4: a(f"s_add_u32 s{sDG}, s{sDG}, {KV_CH}")
                ool.append((f"K2_X{tt}", aloads[tt] + [f"s_branch K2_XR{tt}"]))
                a.lab(f"K2_XR{tt}")
            for i in range(4, 8):
                a(f"v_exp_f32 v{cur+i}, v{cur+i}")
            for i in range(4):
                a(f"v_cvt_pk_bf16_f32 v{vP+i}, v{cur+2*i}, v{cur+2*i+1}")
            a(q[1])
            for i in range(8, 12):
                a(f"v_exp_f32 v{cur+i}, v{cur+i}")
            v1 = vV1 + 4 * (tt & 1)
            a(f"v_mfma_f32_32x32x16_bf16 v[{O[sg]}:{O[sg]+15}], v[{v1}:{v1+3}], v[{vP}:{vP+3}], v[{O[sg]}:{O[sg]+15}]")
            for i in range(12, 16):
                a(f"v_exp_f32 v{cur+i}, v{cur+i}")
            for i in range(4, 8):
                a(f"v_cvt_pk_bf16_f32 v{vP+i}, v{cur+2*i}, v{cur+2*i+1}")
    for r in (vKe, vKo, vK4c, vVc):
        a(f"v_add_u32 v{r}, {KV_CH}, v{r}")
    a(f"s_add_u32 s{sC}, s{sC}, 1")
    a(f"s_cmp_lt_u32 s{sC}, 4")
    a("s_cbranch_scc1 K2_LOOP")
    stamp(a, 5)
    a(f"v_mfma_f32_32x32x16_bf16 v[{O[1]}:{O[1]+15}], v[{vV2+4}:{vV2+7}], v[{vP+4}:{vP+7}], v[{O[1]}:{O[1]+15}]")
    a("s_setprio 0")
    a(f"s_mov_b32 s{sFAIL}, 0")
    a(f"s_cmp_lg_u32 s{sPASS}, 0")
    a("s_cbranch_scc1 K2_XCHG")
    a(f"s_waitcnt vmcnt({(5 if WIN == 3 else 0) if FUSE else 1}) lgkmcnt(0)")
    a(f"s_mov_b64 exec, s[{sLO}:{sLO+1}]")
    a(f"s_not_b64 exec, exec")
    a(f"v_mov_b32 v{vQA8}, 0")
    a(f"v_mov_b32 v{vQA8+1}, 0")
    a("s_mov_b64 exec, -1")
    a(f"s_cmp_lg_u32 s{sS0}, 0")
    a("s_cbranch_scc1 K2_NOFIX")
    for i in range(8):
        a(f"v_mov_b32 v{vMX+i}, {f2u(NEGBIG):#x}")
    a.lab("K2_NOFIX")
    if "ts2" in OPT: stamp(a, 4)
    a(f"v_mfma_f32_32x32x16_bf16 v[{vS0}:{vS0+15}], v[{vAK}:{vAK+3}], v[{vQA16}:{vQA16+3}], v[{vMX}:{vMX+15}]")
    a(f"v_mfma_f32_32x32x16_bf16 v[{vS1}:{vS1+15}], v[{vAK+4}:{vAK+7}], v[{vQA16}:{vQA16+3}], v[{vMY}:{vMY+15}]")
    a(f"v_mfma_f32_32x32x8_bf16 v[{vS0}:{vS0+15}], v[{vAK+8}:{vAK+9}], v[{vQA8}:{vQA8+1}], v[{vS0}:{vS0+15}]")
    a(f"v_mfma_f32_32x32x8_bf16 v[{vS1}:{vS1+15}], v[{vAK+10}:{vAK+11}], v[{vQA8}:{vQA8+1}], v[{vS1}:{vS1+15}]")
    a(f"v_mov_b64 v[{vT+2}:{vT+3}], 0")
    a(f"v_mov_b64 v[{vT+4}:{vT+5}], 0")
    a(f"v_mov_b32 v{vT+1}, {f2u(2.0**64):#x}")
    a("s_nop 3")
    for i in range(0, 12, 2):
        for sg in range(2):
            a(f"v_pk_fma_f32 v[{vT+2}:{vT+3}], v[{O[sg]+i}:{O[sg]+i+1}], v[{vT+4}:{vT+5}], v[{vT+2}:{vT+3}]")
    a(f"v_add_f32 v{vT}, v{O[0]+12}, v{O[1]+12}")
    a(f"v_add_f32 v{vT+2}, v{vT+2}, v{vT+3}")
    a(f"v_add_f32 v{vT}, v{vT}, v{vT+2}")
    a(f"v_cmp_nlt_f32 vcc, v{vT}, v{vT+1}")
    a(f"v_mov_b32 v{O[0]+13}, v{NEG[0]}")
    a(f"v_mov_b32 v{O[1]+13}, v{NEG[1]}")
    a("s_nop 1")
    a("s_cmp_lg_u64 vcc, 0")
    a(f"s_cselect_b32 s{sFAIL}, 1, 0")
    if "forcefail" in OPT:
        a(f"s_cmp_eq_u32 s{sW}, 3")
        a(f"s_cselect_b32 s{sFAIL}, 1, s{sFAIL}")
    regs = [vS0 + i for i in range(16)] + [vS1 + i for i in range(8)]
    m = vT + 6
    rowmax(m, regs)
    a(f"v_mov_b32 v{m+1}, v{m}")
    a("s_nop 1")
    a(f"v_permlane32_swap_b32 v{m}, v{m+1}")
    a("s_nop 1")
    a(f"v_max_f32 v{m}, v{m}, v{m+1}")
    a(f"v_sub_f32 v{vKo}, 0, v{m}")
    a(f"v_sub_f32 v{vK4c}, 0, v{m}")
    for i in range(0, 24, 2):
        a(f"v_pk_add_f32 v[{regs[i]}:{regs[i]+1}], v[{regs[i]}:{regs[i]+1}], v[{vKo}:{vK4c}]")
    for i in range(24):
        a(f"v_exp_f32 v{regs[i]}, v{regs[i]}")
    a("s_nop 0")
    for i in range(12):
        a(f"v_cvt_pk_bf16_f32 v{vP+i}, v{regs[2*i]}, v{regs[2*i+1]}")
    OA = NEG[0]
    a("s_nop 1")
    for j in range(3):
        c = "0" if j == 0 else f"v[{OA}:{OA+15}]"
        a(f"v_mfma_f32_32x32x16_bf16 v[{OA}:{OA+15}], v[{vAV+4*j}:{vAV+4*j+3}], v[{vP+4*j}:{vP+4*j+3}], {c}")
    def rowsum(dst, acc):
        a(f"v_mov_b32 v{dst}, v{acc+12}")
        a(f"s_not_b64 exec, s[{sLO}:{sLO+1}]")
        a(f"v_mov_b32 v{dst}, v{acc+8}")
        a("s_mov_b64 exec, -1")
    OFL = " sc1" if FUSE else STORE_FLAGS
    def ostore(br, src):
        a("s_nop 1")
        a(f"v_permlane32_swap_b32 v{src}, v{src+2}")
        a(f"v_permlane32_swap_b32 v{src+1}, v{src+3}")
        a(f"s_mov_b32 s{sT1}, {O_OFF}")
        a(f"buffer_store_dwordx4 v[{src}:{src+3}], v{vOSA}, s[{SWS}:{SWS+3}], s{sT1} offen offset:{br*512}{OFL}")
    a("s_nop 15")
    rowsum(vT + 6, OA)
    a(f"v_rcp_f32 v{vT+6}, v{vT+6}")
    a("s_nop 0")
    a(f"v_mul_f32 v{vT+6}, v{vT+6}, v{vGATE}")
    for i in range(0, 12, 2):
        a(f"v_pk_mul_f32 v[{OA+i}:{OA+i+1}], v[{OA+i}:{OA+i+1}], v[{vT+6}:{vT+7}] op_sel_hi:[1,0]")
    for i in range(4):
        a(f"v_cvt_pk_bf16_f32 v{vP+i}, v{OA+2*i}, v{OA+2*i+1}")
    for i in range(2):
        a(f"v_cvt_pk_bf16_f32 v{vOB+4+i}, v{OA+8+2*i}, v{OA+9+2*i}")
    ostore(0, vP)
    a("s_branch K2_XCHG1")
    a.lab("K2_XCHG")
    a("s_nop 15")
    a(f"v_mov_b32 v{O[0]+13}, v{NEG[0]}")
    a(f"v_mov_b32 v{O[1]+13}, v{NEG[1]}")
    a.lab("K2_XCHG1")
    a(f"s_mul_i32 s{sT0}, s{sGRP}, {4*KV_CH}")
    a(f"s_lshl_b32 s{sT2}, s{sPR}, 12")
    a(f"s_add_u32 s{sT2}, s{sT2}, {3*KV_CH}")
    a(f"s_add_u32 s{sT0}, s{sT0}, s{sT2}")
    a(f"v_add_u32 v{vT}, s{sT0}, v{vL16}")
    a(f"s_xor_b32 s{sT0}, s{sGRP}, 1")
    a(f"s_mul_i32 s{sT0}, s{sT0}, {4*KV_CH}")
    a(f"s_add_u32 s{sT0}, s{sT0}, s{sT2}")
    a(f"v_add_u32 v{vT+1}, s{sT0}, v{vL16}")
    a(f"s_lshl_b32 s{sT0}, s{sW}, 2")
    a(f"s_add_u32 s{sT0}, s{sT0}, {3*KV_CH + 16384}")
    a(f"v_mov_b32 v{vT+2}, s{sT0}")
    a(f"v_mov_b32 v{vT+3}, s{sFAIL}")
    if "ts2" in OPT: stamp(a, 1)
    a("s_barrier")
    if "ts2" in OPT: stamp(a, 2)
    a(f"s_cmp_eq_u32 s{sGRP}, 0")
    a("s_cbranch_scc1 K2_XA")
    for j in range(4):
        a(f"ds_write_b128 v{vT}, v[{O[0]+4*j}:{O[0]+4*j+3}] offset:{j*1024}")
    a("s_branch K2_XB")
    a.lab("K2_XA")
    for j in range(4):
        a(f"ds_write_b128 v{vT}, v[{O[1]+4*j}:{O[1]+4*j+3}] offset:{j*1024}")
    a.lab("K2_XB")
    a(f"ds_write_b32 v{vT+2}, v{vT+3}")
    a(f"v_mov_b32 v{vT+2}, {3*KV_CH + 16384}")
    a("s_waitcnt lgkmcnt(0)")
    a("s_barrier")
    if "ts2" in OPT: stamp(a, 3)
    a(f"ds_read_b128 v[{vT+4}:{vT+7}], v{vT+2}")
    a(f"ds_read_b128 v[{vS0}:{vS0+3}], v{vT+2} offset:16")
    a(f"s_cmp_eq_u32 s{sGRP}, 0")
    a("s_cbranch_scc1 K2_XC")
    for j in range(4):
        a(f"ds_read_b128 v[{O[0]+4*j}:{O[0]+4*j+3}], v{vT+1} offset:{j*1024}")
    a("s_branch K2_XD")
    a.lab("K2_XC")
    for j in range(4):
        a(f"ds_read_b128 v[{O[1]+4*j}:{O[1]+4*j+3}], v{vT+1} offset:{j*1024}")
    a.lab("K2_XD")
    a("s_waitcnt lgkmcnt(4)")
    a(f"v_or3_b32 v{vT+4}, v{vT+4}, v{vT+5}, v{vT+6}")
    a(f"v_or3_b32 v{vT+4}, v{vT+4}, v{vT+7}, v{vS0}")
    a(f"v_or3_b32 v{vT+4}, v{vT+4}, v{vS0+1}, v{vS0+2}")
    a(f"v_or_b32 v{vT+4}, v{vT+4}, v{vS0+3}")
    a("s_nop 0")
    a(f"v_readfirstlane_b32 s{sT0}, v{vT+4}")
    a("s_nop 3")
    a(f"s_cmp_lg_u32 s{sT0}, 0")
    a("s_cbranch_scc1 K2_REDO")
    a("s_waitcnt lgkmcnt(0)")
    a(f"v_sub_f32 v{vT+2}, v{O[1]+13}, v{O[0]+13}")
    a(f"v_sub_f32 v{vT+3}, 0, v{vT+2}")
    a(f"v_min_f32 v{vT+2}, 0, v{vT+2}")
    a(f"v_min_f32 v{vT+3}, 0, v{vT+3}")
    a(f"v_exp_f32 v{vT+2}, v{vT+2}")
    a(f"v_exp_f32 v{vT+3}, v{vT+3}")
    rowsum(vT + 4, O[0])
    rowsum(vT + 5, O[1])
    a(f"v_mul_f32 v{vT+4}, v{vT+4}, v{vT+2}")
    a(f"v_fmac_f32 v{vT+4}, v{vT+5}, v{vT+3}")
    a(f"v_rcp_f32 v{vT+4}, v{vT+4}")
    a(f"v_sub_f32 v{vT+5}, 1.0, v{vGATE}")
    a("s_nop 0")
    a(f"v_mul_f32 v{vT+4}, v{vT+4}, v{vT+5}")
    a(f"v_mul_f32 v{vT+2}, v{vT+2}, v{vT+4}")
    a(f"v_mul_f32 v{vT+3}, v{vT+3}, v{vT+4}")
    for i in range(0, 12, 2):
        a(f"v_pk_mul_f32 v[{O[0]+i}:{O[0]+i+1}], v[{O[0]+i}:{O[0]+i+1}], v[{vT+2}:{vT+3}] op_sel_hi:[1,0]")
        a(f"v_pk_fma_f32 v[{O[0]+i}:{O[0]+i+1}], v[{O[1]+i}:{O[1]+i+1}], v[{vT+2}:{vT+3}], v[{O[0]+i}:{O[0]+i+1}] op_sel:[0,1,0] op_sel_hi:[1,1,1]")
    for i in range(4):
        a(f"v_cvt_pk_bf16_f32 v{vOB+i}, v{O[0]+2*i}, v{O[0]+2*i+1}")
    for i in range(2):
        a(f"v_cvt_pk_bf16_f32 v{vOB+6+i}, v{O[0]+8+2*i}, v{O[0]+9+2*i}")
    ostore(1, vOB)
    a(f"s_mov_b64 exec, s[{sLO}:{sLO+1}]")
    a(f"buffer_store_dwordx4 v[{vOB+4}:{vOB+7}], v{vOSA}, s[{SWS}:{SWS+3}], s{sT1} offen offset:1024{OFL}")
    a("s_mov_b64 exec, -1")
    if FUSE:
        if WIN:
            a(f"s_cmp_eq_u32 s{sPASS}, 0")
            a("s_cbranch_scc1 K2_WOK")
            a("s_barrier")
            a(f"s_mov_b32 s{sWL}, 0")
            a(f"s_mov_b32 s{sWS}, s{sWS0}")
            for p in range(WIN):
                for j in range(5):
                    for x in wdma(j, sWL): a(x)
                a(f"s_add_u32 s{sWL}, s{sWL}, {KV_CH}")
                a(f"s_add_u32 s{sWS}, s{sWS}, {K3_BUF}")
            a("s_waitcnt vmcnt(0)")
            a.lab("K2_WOK")
        stamp(a, 6)
        NPRE = 0
        if WIN == 3:
            a("s_barrier")
            a(f"s_mov_b32 s{sWL}, {3*KV_CH}")
            for j in range(5):
                for x in wdma(j, sWL): a(x)
            NPRE = 5
        elif WIN == 2:
            a(f"s_mov_b32 s{sWL}, {2*KV_CH}")
            for j in range(5):
                for x in wdma(j, sWL): a(x)
            a(f"s_add_u32 s{sWS}, s{sWS}, {K3_BUF}")
            NPRE = 5
        a(f"s_waitcnt vmcnt({NPRE})")
        if "tailstamps" in OPT: stamp(a, 1)
        a("s_barrier")
        if "tailstamps" in OPT: stamp(a, 2)
        a(f"s_cmp_lg_u32 s{sW}, 0")
        a("s_cbranch_scc1 K2_NOPOLL0")
        a(f"s_lshl_b32 s{sT0}, s{sQB}, 12")
        a(f"s_add_u32 s{sT0}, s{sT0}, {FL_OFF}")
        a(f"s_mov_b64 exec, s[{sLO}:{sLO+1}]")
        a(f"v_mov_b32 v{vT}, 1")
        a(f"v_lshlrev_b32 v{vT+5}, 7, v{vLANE}")
        a(f"buffer_atomic_add v{vT}, v{vT+5}, s[{SWS}:{SWS+3}], s{sT0} offen")
        a("s_mov_b64 exec, -1")
        a.lab("K2_NOPOLL0")
        WPOST = 4 if WIN == 3 else optval("wpost", 4)
        if WIN != 3:
            W0P = 3 if WIN == 2 else WIN
            a(f"s_mov_b32 s{sWL}, {W0P*KV_CH}")
            for p in range(W0P, WPOST):
                for j in range(5):
                    for x in wdma(j, sWL): a(x)
                a(f"s_add_u32 s{sWL}, s{sWL}, {KV_CH}")
                a(f"s_add_u32 s{sWS}, s{sWS}, {K3_BUF}")
        bufss = [((ss // 2) % 4) * KV_CH + (ss & 1) * 4 * KV_CH for ss in range(10)]
        pc = proj_core(a, "K2", SWS, 68, sW, 64, 65, 50, bufss,
                       lambda p, j, sM0: f"s_add_u32 m0, s{sDO+j}, {(p % 4)*KV_CH}", ({1: [4]} if WPOST == 4 else {0: [3], 1: [4]}), optval("k2opre", 4))
        pc.setup()
        srd(a, 68, 60, 61, 2048 * 1280)
        pc.addr_setup(0)
        if "tailstamps" in OPT: stamp(a, 3)
        a(f"s_cmp_lg_u32 s{sW}, 0")
        a("s_cbranch_scc1 K2_NOPOLL")
        a(f"s_lshl_b32 s{sT0}, s{sHEAD}, 3")
        a(f"s_add_u32 s{sT0}, s{sT0}, s{sQB}")
        a(f"s_lshl_b32 s{sT0}, s{sT0}, 7")
        a(f"s_add_u32 s{sT0}, s{sT0}, {FL_OFF}")
        a("s_mov_b64 exec, 1")
        a(f"v_mov_b32 v{vT+5}, 0")
        a(f"s_mov_b32 s{sT1}, 0")
        a.lab("K2_POLL")
        a(f"buffer_load_dword v{vT+4}, v{vT+5}, s[{SWS}:{SWS+3}], s{sT0} offen sc1")
        a("s_waitcnt vmcnt(0)")
        a(f"v_readfirstlane_b32 s{sT2}, v{vT+4}")
        a(f"s_add_u32 s{sT1}, s{sT1}, 1")
        a(f"s_cmp_ge_u32 s{sT2}, 32")
        a("s_cbranch_scc1 K2_POLLED")
        a(f"s_sleep {optval('psleep', 2)}")
        a(f"s_cmp_lt_u32 s{sT1}, 0x40000")
        a("s_cbranch_scc1 K2_POLL")
        a.lab("K2_POLLED")
        a("s_waitcnt vmcnt(0)")
        if "tailstamps" in OPT:
            stamp(a, 4)
        a("s_mov_b64 exec, -1")
        a.lab("K2_NOPOLL")
        a("s_waitcnt vmcnt(0)")
        a("s_barrier")
        stamp(a, 7)
        pc.body([("o", 0), ("o", 1), ("o", 2), ("o", 3)])
        if PROF: a("s_waitcnt vmcnt(0)")
        stamp(a, 8)
        stamp_flush(a, 1, 9, SWS, sW, vT)
        if "dbgtime" in OPT:
            a("s_waitcnt vmcnt(0)")
            a("s_memrealtime s[94:95]")
            a("s_waitcnt lgkmcnt(0)")
            a("s_sub_u32 s92, s92, 512")
            a("s_subb_u32 s93, s93, 0")
            srd(a, 84, 92, 93, 256)
            a("s_mov_b64 exec, 1")
            a("v_mov_b32 v20, 0")
            a("s_not_b32 s90, s90")
            a("v_mov_b32 v21, s90")
            a("buffer_atomic_umax v21, v20, s[84:87], 0 offen offset:8")
            a("v_mov_b32 v22, s94")
            a("buffer_atomic_umax v22, v20, s[84:87], 0 offen offset:12")
        a("s_endpgm")
    else:
        a("s_branch K2_DONE")
    a.lab("K2_REDO")
    a("s_waitcnt vmcnt(0) lgkmcnt(0)")
    a("s_barrier")
    a(f"s_mov_b32 s{sDG}, 0")
    for p in range(4):
        for j in range(5):
            for x in dma1(j): a(x)
        a(f"s_add_u32 s{sDG}, s{sDG}, {KV_CH}")
    a(f"s_mov_b32 s{sPASS}, 1")
    if FUSE: a(f"s_mov_b32 s{sWC}, 99")
    a(f"v_mov_b32 v{vT}, {f2u(-3.0e38):#x}")
    a(f"v_mov_b32 v{vT+2}, {f2u(-3.0e38):#x}")
    setbases()
    a(f"s_mov_b32 s{sC}, 0")
    a("s_waitcnt vmcnt(0)")
    a("s_barrier")
    a.lab("K2_MAXLOOP")
    for tt in range(8):
        a(rdK16(vKA, 0, tt))
        a(rdK4(vKB, 0, tt))
        a("s_waitcnt lgkmcnt(0)")
        for sg in range(2):
            for x in qk(S[sg], vKA, vKB, sg, "0"): a(x)
        a("s_nop 15")
        for sg in range(2):
            rowmax(vT + 2 * sg, [S[sg] + i for i in range(16)], first=True)
    for r in (vKe, vKo, vK4c):
        a(f"v_add_u32 v{r}, {KV_CH}, v{r}")
    a(f"s_add_u32 s{sC}, s{sC}, 1")
    a(f"s_cmp_lt_u32 s{sC}, 4")
    a("s_cbranch_scc1 K2_MAXLOOP")
    for sg in range(2):
        a(f"v_mov_b32 v{vT+2*sg+1}, v{vT+2*sg}")
    a("s_nop 1")
    for sg in range(2):
        a(f"v_permlane32_swap_b32 v{vT+2*sg}, v{vT+2*sg+1}")
    a("s_nop 1")
    for sg in range(2):
        a(f"v_max_f32 v{vT+2*sg}, v{vT+2*sg}, v{vT+2*sg+1}")
        for i in range(16):
            a(f"v_sub_f32 v{NEG[sg]+i}, 0, v{vT+2*sg}")
            a(f"v_mov_b32 v{O[sg]+i}, 0")
    for i in range(4):
        a(f"v_mov_b32 v{vP+4+i}, 0")
    a("s_branch K2_START")
    for lab, body in ool:
        a.lab(lab)
        for x in body: a(x)
    a.lab("K2_DONE")
    stamp(a, 6)
    if PROF: a("s_waitcnt vmcnt(0)")
    stamp(a, 7)
    if "chunkstamp" in OPT:
        a(f"s_lshl_b32 s97, s2, 3")
        a(f"s_add_u32 s97, s97, s{sW}")
        a(f"s_lshl_b32 s97, s97, 6")
        a(f"s_add_u32 s97, s97, {PROF_OFF + 3 * 0x100000}")
        a(f"v_lshlrev_b32 v{vT}, 2, v{vLANE}")
        a("s_mov_b64 exec, 0xff")
        a(f"buffer_store_dword v247, v{vT}, s[{SWS}:{SWS+3}], s97 offen")
        a("s_mov_b64 exec, -1")
    stamp_flush(a, 1, 8, SWS, sW, vT)
    a.lab("K2_END")
    a("s_endpgm")
    a.raw(".p2align 4")
    a.lab("K2_TABLE")
    tab = mask_table()
    for i in range(0, len(tab), 8):
        a.raw("    .long " + ", ".join(f"{x:#x}" for x in tab[i:i+8]))
    a.lab("K2_TEXT_END")
    return name, NV

K3_BUF = 40 * 1024
K3_NBUF = 3
K3_LDS = K3_BUF * K3_NBUF

K3_GRID = 256
def proj_core(a, pfx, SWS, SOUT, sW, sMT, sNT, sbase, bufss, wm0, wplan, OPRE, vLANE=1, vL16=2):
    sMB, sKH, sT0, sT1, sT2, sOB, sWB, sM0, sOUT = [sbase + i for i in range(9)]
    vWR = 6; vWA = 7; vT = 8
    vOF = 20; vWF = 100; vACC = 180
    oflags = " sc1" if pfx == "K2" else ""
    issued = []
    def setup():
        a(f"s_and_b32 s{sMB}, s{sW}, 3")
        a(f"s_lshr_b32 s{sKH}, s{sW}, 2")
        a(f"s_lshl_b32 s{sM0}, s{sW}, 10")
        a(f"s_mul_i32 s{sWB}, s{sNT}, {200*1024}")
        a(f"s_add_u32 s{sWB}, s{sWB}, s{sM0}")
        a(f"s_add_u32 s{sWB}, s{sWB}, {WT_OFF}")
        a(f"s_lshl_b32 s{sOB}, s{sMT}, 2")
        a(f"s_add_u32 s{sOB}, s{sOB}, s{sMB}")
        a(f"s_mul_i32 s{sOUT}, s{sOB}, {16*1280}")
        a(f"s_mul_i32 s{sOB}, s{sOB}, 40")
        a(f"s_lshl_b32 s{sT0}, s{sKH}, 1")
        a(f"s_add_u32 s{sOB}, s{sOB}, s{sT0}")
        a(f"s_lshl_b32 s{sOB}, s{sOB}, 10")
        a(f"s_add_u32 s{sOB}, s{sOB}, {O_OFF}")
        a(f"s_mul_i32 s{sT2}, s{sNT}, 160")
        a(f"s_add_u32 s{sOUT}, s{sOUT}, s{sT2}")
    def wgroup(p):
        g = []
        for j in range(5):
            g.append(([wm0(p, j, sM0),
                       f"s_add_u32 s{sT1}, s{sWB}, {p*K3_BUF + j*8192}",
                       f"buffer_load_dwordx4 v{vL16}, s[{SWS}:{SWS+3}], s{sT1} offen lds"], ("W", p)))
        return g
    def ogroup(ss):
        g = []
        for i in range(2):
            d = vOF + (ss * 2 + i) * 4
            g.append(([f"s_add_u32 s{sT0}, s{sOB}, {(ss*4 + i)*1024}",
                       f"buffer_load_dwordx4 v[{d}:{d+3}], v{vL16}, s[{SWS}:{SWS+3}], s{sT0} offen{oflags}"], ("o", ss)))
        return g
    def emit(item):
        for x in item[0]: a(x)
        issued.append(item[1])
    def vm(need):
        last = max([i for i, t in enumerate(issued) if t in need], default=-1)
        return min(63, len(issued) - 1 - last)
    def reads(ss):
        st = ss & 1
        off = bufss[ss]
        out = [f"v_add_u32 v{vWA}, {off}, v{vWR}"]
        for i in range(2):
            for b in range(5):
                r = vWF + st * 40 + (i * 5 + b) * 4
                out.append(f"ds_read_b128 v[{r}:{r+3}], v{vWA} offset:{(i*5 + b)*1024}")
        return out
    def addr_setup(xbase):
        a(f"s_mul_i32 s{sT0}, s{sKH}, {10*1024}")
        a(f"v_add_u32 v{vWR}, s{sT0}, v{vL16}")
        a(f"v_and_b32 v{vT+1}, 15, v{vLANE}")
        a(f"v_mul_u32_u24 v{vT+1}, 1280, v{vT+1}")
        a(f"v_lshrrev_b32 v{vT+2}, 4, v{vLANE}")
        a(f"v_lshl_add_u32 v{vT+1}, v{vT+2}, 3, v{vT+1}")
        a(f"s_mul_i32 s{sT0}, s{sW}, {3*1024}")
        a(f"s_add_u32 s{sT0}, s{sT0}, {xbase}")
        a(f"v_add_u32 v{vT}, s{sT0}, v{vL16}")
        a(f"s_xor_b32 s{sT2}, s{sW}, 4")
        a(f"s_mul_i32 s{sT2}, s{sT2}, {3*1024}")
        a(f"s_add_u32 s{sT2}, s{sT2}, {xbase}")
        a(f"v_add_u32 v{vT+3}, s{sT2}, v{vL16}")
    def body(first):
        for kind, idx in first:
            for it in (wgroup(idx) if kind == "W" else ogroup(idx)): emit(it)
        nxt_o = max([idx for kind, idx in first if kind == "o"], default=-1) + 1
        if pfx == "K3": stamp(a, 1)
        a(f"s_waitcnt vmcnt({vm({('W', 0)})})")
        a("s_barrier")
        if pfx == "K3": stamp(a, 2)
        for r in reads(0): a(r)
        for ss in range(10):
            p = ss // 2
            need = {("o", ss)}
            if ss % 2 == 1 and p + 1 < 5: need.add(("W", p + 1))
            a(f"s_waitcnt vmcnt({vm(need)}) lgkmcnt(0)")
            if ss % 2 == 1 and ss < 9: a("s_barrier")
            mf = []
            for i in range(2):
                for b in range(5):
                    acc = vACC + b * 4
                    wf = vWF + (ss & 1) * 40 + (i * 5 + b) * 4
                    of = vOF + (ss * 2 + i) * 4
                    c = "0" if (ss == 0 and i == 0) else f"v[{acc}:{acc+3}]"
                    mf.append(f"v_mfma_f32_16x16x32_bf16 v[{acc}:{acc+3}], v[{wf}:{wf+3}], v[{of}:{of+3}], {c}")
            rd = reads(ss + 1) if ss < 9 else []
            ld = []
            for p2 in wplan.get(ss, []): ld += wgroup(p2)
            while nxt_o < 10 and nxt_o <= ss + OPRE:
                ld += ogroup(nxt_o); nxt_o += 1
            ex = [("r", r) for r in rd]
            mixed = []
            step = max(1, len(ex) // max(1, len(ld))) if ld else 0
            k = 0
            for i, e in enumerate(ex):
                mixed.append(e)
                if ld and k < len(ld) and (i + 1) % step == 0:
                    mixed.append(("l", ld[k])); k += 1
            while k < len(ld):
                mixed.append(("l", ld[k])); k += 1
            k = 0
            for i, m in enumerate(mf):
                a(m)
                tgt = min(len(mixed), ((i + 1) * len(mixed) + 8) // 9)
                while k < tgt:
                    if mixed[k][0] == "r": a(mixed[k][1])
                    else: emit(mixed[k][1])
                    k += 1
        if pfx == "K3": stamp(a, 3)
        a("s_barrier")
        a(f"s_cmp_eq_u32 s{sKH}, 0")
        a(f"s_cbranch_scc1 {pfx}_PW0")
        a("s_nop 4")
        for b in range(3):
            a(f"ds_write_b128 v{vT}, v[{vACC+b*4}:{vACC+b*4+3}] offset:{b*1024}")
        a("s_waitcnt lgkmcnt(0)")
        a("s_barrier")
        def fin(blocks):
            for n, b in enumerate(blocks):
                a(f"ds_read_b128 v[{vOF+4*n}:{vOF+4*n+3}], v{vT+3} offset:{n*1024}")
            for n, b in enumerate(blocks):
                a(f"s_waitcnt lgkmcnt({len(blocks)-1-n})")
                for i in range(0, 4, 2):
                    a(f"v_pk_add_f32 v[{vOF+4*n+i}:{vOF+4*n+i+1}], v[{vOF+4*n+i}:{vOF+4*n+i+1}], v[{vACC+4*b+i}:{vACC+4*b+i+1}]")
                a(f"v_cvt_pk_bf16_f32 v{vWF+2*n}, v{vOF+4*n}, v{vOF+4*n+1}")
                a(f"v_cvt_pk_bf16_f32 v{vWF+2*n+1}, v{vOF+4*n+2}, v{vOF+4*n+3}")
                a(f"buffer_store_dwordx2 v[{vWF+2*n}:{vWF+2*n+1}], v{vT+1}, s[{SOUT}:{SOUT+3}], s{sOUT} offen offset:{b*32}")
        fin([3, 4])
        a(f"s_branch {pfx}_PFIN")
        a.lab(f"{pfx}_PW0")
        a("s_nop 4")
        for n, b in enumerate((3, 4)):
            a(f"ds_write_b128 v{vT}, v[{vACC+b*4}:{vACC+b*4+3}] offset:{n*1024}")
        a("s_waitcnt lgkmcnt(0)")
        a("s_barrier")
        fin([0, 1, 2])
        a.lab(f"{pfx}_PFIN")
    class C: pass
    c = C(); c.setup = setup; c.wgroup = wgroup; c.emit = emit; c.addr_setup = addr_setup; c.body = body; c.issued = issued
    return c

def gen_k3(a):
    name = "k3_proj_kernel"
    kernel_head(a, name)
    SWS = 8; SOUT = 20
    sW = 24; sMT = 27; sNT = 28
    vLANE = 1; vL16 = 2; vT = 8
    NV = 200
    a(f"s_cmp_ge_u32 s2, {K3_GRID}")
    a("s_cbranch_scc1 K3_END")
    stamp(a, 0)
    a("s_load_dwordx2 s[4:5], s[0:1], 72")
    a("s_load_dwordx2 s[36:37], s[0:1], 56")
    a(f"v_and_b32 v{vLANE}, 63, v0")
    a(f"v_lshrrev_b32 v{vT}, 6, v0")
    a(f"s_and_b32 s{sMT}, s2, 7")
    a(f"v_readfirstlane_b32 s{sW}, v{vT}")
    a(f"s_lshl_b32 s{sMT}, s{sMT}, 2")
    a(f"s_lshr_b32 s29, s2, 6")
    a(f"s_add_u32 s{sMT}, s{sMT}, s29")
    a(f"s_lshr_b32 s{sNT}, s2, 3")
    a(f"s_and_b32 s{sNT}, s{sNT}, 7")
    a(f"v_lshlrev_b32 v{vL16}, 4, v{vLANE}")
    bufss = [((ss // 2) % 3) * K3_BUF + (ss & 1) * 20 * 1024 for ss in range(10)]
    c = proj_core(a, "K3", SWS, SOUT, sW, sMT, sNT, 40, bufss, lambda p, j, sM0: f"s_add_u32 m0, s{sM0}, {(p % 3)*K3_BUF + j*8192}",
                  {0: [2], 1: [3], 3: [4]}, optval("k3opre", 4))
    c.setup()
    a("s_waitcnt lgkmcnt(0)")
    srd(a, SWS, 4, 5, WS_USED)
    srd(a, SOUT, 36, 37, 2048 * 1280)
    c.addr_setup(0)
    c.body([("W", 0), ("o", 0), ("o", 1), ("W", 1), ("o", 2), ("o", 3)])
    stamp(a, 4)
    if PROF: a("s_waitcnt vmcnt(0)")
    stamp(a, 5)
    stamp_flush(a, 2, 6, SWS, sW, vT)
    a.lab("K3_END")
    a("s_endpgm")
    return name, NV

def build(kernels=("k1", "k2", "k3")):
    a = Asm()
    fuse = "nofuse" not in OPT
    k3line = "" if fuse else f"; @launch kernel=k3_proj_kernel grid=({K3_GRID},1,1) block=(512,1,1) lds={K3_LDS}\n"
    hdr = f"""; Gated mix of sliding-window dilated attention (A) and full softmax MHA (B): three launches.
; @launch kernel=k1_qkv_kernel grid=(256,1,1) block=(512,1,1) lds={K1_LDS}
; @launch kernel=k2_attn_kernel grid=(256,1,1) block=(512,1,1) lds={K2_LDS}
{k3line}.amdgcn_target "amdgcn-amd-amdhsa--gfx950"
.text
"""
    descs = []
    for g in ((gen_k1, gen_k2) if fuse else (gen_k1, gen_k2, gen_k3)):
        n, nv = g(a)
        descs.append(kernel_desc(n, nv))
    txt = a.text()
    txt = txt.replace("K2CODE_WAVES", "((K2_TEXT_END-k2_attn_kernel) >> 13)")
    return hdr + txt + '.section .rodata,"a"\n' + "".join(".p2align 6\n" + d for d in descs)

if __name__ == "__main__":
    if len(sys.argv) > 2 and sys.argv[2] == "prof":
        PROF = True
    OPT.update(sys.argv[3:])
    if "st_sc1" in OPT: STORE_FLAGS = " sc1"
    if "st_nt" in OPT: STORE_FLAGS = " nt"
    if "st_sc01" in OPT: STORE_FLAGS = " sc0 sc1"
    if "st_sc1nt" in OPT: STORE_FLAGS = " sc1 nt"
    out = sys.argv[1] if len(sys.argv) > 1 else f"cdna_kernels/{NAME}.s"
    open(out, "w").write(build())
    print("wrote", out)
```

```python
import sys, struct

NAME = "gated_mix__sliding_local_dilated__softmax_full_mha__prompt"

KV_HEAD = 163840
KV_CH = 20480
Q_HEAD = 81920
Q_CH = 10240
KVA_OFF = 0
KVB_OFF = 32 * KV_HEAD
QA_OFF = 2 * 32 * KV_HEAD
QB_OFF = QA_OFF + 32 * Q_HEAD
G_OFF = QB_OFF + 32 * Q_HEAD
FL_OFF = 0xF04000
WT_OFF = 0xF10000
O_OFF = 0x1100000
O_SIZE = 128 * 40 * 1024
WS_USED = 0x2400000
QSCALE = (20 ** -0.5) * 1.4426950408889634

def f2u(x):
    return struct.unpack("<I", struct.pack("<f", x))[0]

class Asm:
    def __init__(self):
        self.l = []
    def __call__(self, s):
        for x in s.strip("\n").split("\n"):
            self.l.append("    " + x.strip())
    def lab(self, s):
        self.l.append(s + ":")
    def raw(self, s):
        self.l.append(s)
    def text(self):
        return "\n".join(self.l) + "\n"

def vr(b, n=1):
    return f"v{b}" if n == 1 else f"v[{b}:{b+n-1}]"
def sr(b, n=1):
    return f"s{b}" if n == 1 else f"s[{b}:{b+n-1}]"

def kernel_head(a, name):
    a.raw(f".globl {name}")
    a.raw(".p2align 8")
    a.raw(f".type {name},@function")
    a.lab(name)

def kernel_desc(name, nv, ns=102):
    acc = (nv + 3) // 4 * 4
    return f""".amdhsa_kernel {name}
  .amdhsa_next_free_vgpr {nv}
  .amdhsa_next_free_sgpr {ns}
  .amdhsa_accum_offset {acc}
  .amdhsa_group_segment_fixed_size 0
  .amdhsa_kernarg_size 80
  .amdhsa_user_sgpr_count 2
  .amdhsa_user_sgpr_kernarg_segment_ptr 1
  .amdhsa_system_sgpr_workgroup_id_x 1
  .amdhsa_float_denorm_mode_32 3
  .amdhsa_float_denorm_mode_16_64 3
.end_amdhsa_kernel
"""

PROF = False
OPT = set()
STORE_FLAGS = ""
PROF_OFF = 0x2000000
def optval(name, default):
    for o in OPT:
        if o.startswith(name + "="): return int(o.split("=")[1])
    return default
def stamp(a, i):
    if PROF:
        a(f"s_memtime s[{80+2*i}:{81+2*i}]")
        if i == 0: a("s_memrealtime s[76:77]")
def stamp_flush(a, kidx, n, srdreg, wave_sgpr, vtmp):
    if not PROF: return
    a("s_memrealtime s[98:99]")
    a("s_waitcnt lgkmcnt(0)")
    a(f"s_lshl_b32 s75, s2, 3")
    a(f"s_add_u32 s75, s75, s{wave_sgpr}")
    a(f"s_lshl_b32 s75, s75, 6")
    a(f"s_add_u32 s75, s75, {PROF_OFF + kidx * 0x100000}")
    a("s_mov_b64 exec, 1")
    a(f"v_mov_b32 v{vtmp+1}, 0")
    for i in range(n):
        a(f"v_mov_b32 v{vtmp}, s{80+2*i}")
        a(f"buffer_store_dword v{vtmp}, v{vtmp+1}, s[{srdreg}:{srdreg+3}], s75 offen offset:{4*i}")
    a(f"v_mov_b32 v{vtmp}, s76")
    a(f"buffer_store_dword v{vtmp}, v{vtmp+1}, s[{srdreg}:{srdreg+3}], s75 offen offset:56")
    a(f"v_mov_b32 v{vtmp}, s98")
    a(f"buffer_store_dword v{vtmp}, v{vtmp+1}, s[{srdreg}:{srdreg+3}], s75 offen offset:60")

def srd(a, d, lo, hi, size):
    a(f"s_mov_b32 s{d}, s{lo}")
    a(f"s_and_b32 s{d+1}, s{hi}, 0xffff")
    a(f"s_mov_b32 s{d+2}, {size}")
    a(f"s_mov_b32 s{d+3}, 0x00020000")

K1_XB = 32768
K1_BUF = 32768 + 16384
K1_NBUF = 3
K1_LDS = K1_BUF * K1_NBUF

def gen_k1(a):
    PF0 = optval("pf0", 3)
    name = "k1_qkv_kernel"
    kernel_head(a, name)
    SX = 12; SW = 16; SWS = 20; SG = 24
    sW = 32; sWM = 33; sWN = 34; sI = 35; sRD = 36; sWRB = 37
    sXS = 38; sWS1 = 39; sXM0 = 41; sWM0 = 42; sMT = 43; sNT = 44; sBR = 45
    sTMP = 46; sTMP2 = 47; sTMP3 = 48; sTMP4 = 49
    sSEC = 50; sFB = 51; sEO = 52; sD = 53; sHS = 54; sSC = 56
    vLANE = 1; vXO = 2; vWO = 4
    vXR = 6
    vWR = 10
    vXA = 12
    vWA = 16
    vT = 18
    vXF = 32
    vWF = 64
    vACC = 96
    vEO = 160
    vPF = 176
    NV = 184

    a("s_cmp_ge_u32 s2, 256")
    a("s_cbranch_scc1 K1_END")
    stamp(a, 0)
    if "dbgtime" in OPT: a("s_memrealtime s[90:91]")
    a("s_lshr_b32 s45, s2, 2")
    a("s_and_b32 s45, s45, 1")
    a("s_mul_i32 s46, s45, 24")
    a("s_add_u32 s46, s46, 8")
    a("s_load_dwordx2 s[10:11], s[0:1], s46")
    a("s_load_dwordx2 s[8:9], s[0:1], 0")
    a("s_load_dwordx2 s[4:5], s[0:1], 72")
    a("s_load_dwordx2 s[6:7], s[0:1], 48")
    a(f"v_and_b32 v{vLANE}, 63, v0")
    a(f"v_lshrrev_b32 v{vT}, 6, v0")
    a(f"s_lshr_b32 s{sTMP}, s2, 3")
    a(f"v_readfirstlane_b32 s{sW}, v{vT}")
    a(f"s_and_b32 s{sMT}, s2, 3")
    a(f"s_lshl_b32 s{sMT}, s{sMT}, 1")
    a(f"s_and_b32 s{sTMP2}, s{sTMP}, 1")
    a(f"s_add_u32 s{sMT}, s{sMT}, s{sTMP2}")
    a(f"s_lshr_b32 s{sNT}, s{sTMP}, 1")
    a(f"s_cmp_ge_u32 s{sNT}, 15")
    a("s_cbranch_scc1 K1_GATE")
    a(f"s_and_b32 s{sWM}, s{sW}, 3")
    a(f"s_lshr_b32 s{sWN}, s{sW}, 2")
    a(f"v_lshrrev_b32 v{vT}, 3, v{vLANE}")
    a(f"v_lshrrev_b32 v{vT+1}, 4, v{vLANE}")
    a(f"v_xor_b32 v{vT+1}, v{vT+1}, v{vLANE}")
    a(f"v_and_b32 v{vT+1}, 7, v{vT+1}")
    a(f"s_lshl_b32 s{sTMP}, s{sMT}, 8")
    a(f"s_lshl_b32 s{sTMP2}, s{sW}, 5")
    a(f"s_add_u32 s{sTMP}, s{sTMP}, s{sTMP2}")
    a(f"v_add_u32 v{vT}, s{sTMP}, v{vT}")
    a(f"v_mul_u32_u24 v{vT}, 1280, v{vT}")
    a(f"v_lshl_add_u32 v{vXO}, v{vT+1}, 4, v{vT}")
    a(f"v_xor_b32 v{vXO+1}, 64, v{vXO}")
    a(f"v_lshrrev_b32 v{vT}, 4, v{vLANE}")
    a(f"v_lshlrev_b32 v{vT+1}, 2, v{vT}")
    a(f"v_xor_b32 v{vT+1}, v{vT+1}, v{vLANE}")
    a(f"v_and_b32 v{vT+1}, 15, v{vT+1}")
    a(f"s_lshl_b32 s{sTMP}, s{sW}, 3")
    a(f"v_add_u32 v{vT}, s{sTMP}, v{vT}")
    a(f"v_mul_u32_u24 v{vT}, 3840, v{vT}")
    a(f"v_lshl_add_u32 v{vT}, v{vT+1}, 4, v{vT}")
    a(f"s_lshl_b32 s{sTMP}, s{sNT}, 8")
    a(f"v_add_u32 v{vWO}, s{sTMP}, v{vT}")
    a(f"s_lshl_b32 s{sXM0}, s{sW}, 12")
    a(f"s_lshl_b32 s{sWM0}, s{sW}, 11")
    a(f"s_add_u32 s{sWM0}, s{sWM0}, {K1_XB}")
    a("s_waitcnt lgkmcnt(0)")
    srd(a, SX, 8, 9, 2048 * 1280)
    srd(a, SW, 10, 11, 640 * 3840)

    def dma_list(buf_s, inloop=False):
        g = []
        if "k1nodma" in OPT and inloop: return [["s_nop 0"]] * 6
        for i in range(4):
            g.append([f"s_add_u32 m0, s{buf_s}, s{sXM0}" if i == 0 else f"s_add_u32 m0, m0, 1024",
                      f"s_add_u32 s{sTMP3}, s{sXS}, {i*8*1280}",
                      f"buffer_load_dwordx4 v{vXO + (i & 1)}, s[{SX}:{SX+3}], s{sTMP3} offen lds"])
        for i in range(2):
            g.append([f"s_add_u32 m0, s{buf_s}, s{sWM0}" if i == 0 else f"s_add_u32 m0, m0, 1024",
                      f"s_add_u32 s{sTMP3}, s{sWS1}, {i*4*3840}",
                      f"buffer_load_dwordx4 v{vWO}, s[{SW}:{SW+3}], s{sTMP3} offen lds"])
        g[-1] = g[-1] + [f"s_add_u32 s{sXS}, s{sXS}, 128", f"s_add_u32 s{sWS1}, s{sWS1}, {64*3840}"]
        return g
    a(f"s_mov_b32 s{sXS}, 0")
    a(f"s_mov_b32 s{sWS1}, 0")
    a(f"s_mov_b32 s{sWRB}, 0")
    for g in dma_list(sWRB):
        for x in g: a(x)
    srd(a, SWS, 4, 5, WS_USED)
    a(f"v_and_b32 v{vT}, 31, v{vLANE}")
    a(f"v_lshrrev_b32 v{vT+1}, 5, v{vLANE}")
    a(f"v_bfe_u32 v{vT+2}, v{vLANE}, 1, 3")
    a(f"v_xor_b32 v{vT+2}, v{vT+2}, v{vT+1}")
    a(f"v_lshlrev_b32 v{vT+2}, 4, v{vT+2}")
    a(f"v_lshl_add_u32 v{vXR}, v{vT}, 7, v{vT+2}")
    a(f"s_lshl_b32 s{sTMP}, s{sWM}, 13")
    a(f"v_add_u32 v{vXR}, s{sTMP}, v{vXR}")
    for kk in range(1, 4):
        a(f"v_xor_b32 v{vXR+kk}, {kk << 5}, v{vXR}")
    a(f"v_bfe_u32 v{vT+2}, v{vLANE}, 2, 2")
    a(f"v_lshl_add_u32 v{vT+3}, v{vT+1}, 3, v{vT+2}")
    a(f"v_lshlrev_b32 v{vT+3}, 8, v{vT+3}")
    a(f"v_and_b32 v{vT+4}, 3, v{vLANE}")
    a(f"v_lshl_add_u32 v{vT+3}, v{vT+4}, 3, v{vT+3}")
    a(f"v_bfe_u32 v{vT+4}, v{vLANE}, 4, 1")
    a(f"v_lshl_add_u32 v{vT+3}, v{vT+4}, 5, v{vT+3}")
    a(f"v_add_u32 v{vT+3}, {K1_XB}, v{vT+3}")
    a(f"s_lshl_b32 s{sTMP}, s{sWN}, 1")
    for bl in range(2):
        a(f"s_add_u32 s{sTMP2}, s{sTMP}, {bl}")
        a(f"v_xor_b32 v{vT+5}, s{sTMP2}, v{vT+2}")
        a(f"v_lshl_add_u32 v{vWR+bl}, v{vT+5}, 6, v{vT+3}")
    PF = "k1pf" in OPT
    if PF:
        a(f"s_lshr_b32 s{sTMP}, s2, 3")
        a(f"s_cmp_lt_u32 s{sW}, 6")
        a("s_cbranch_scc0 K1_PFX")
        a(f"s_mul_i32 s{sTMP}, s{sTMP}, 6")
        a(f"s_add_u32 s{sTMP}, s{sTMP}, s{sW}")
        a(f"s_mul_i32 s{sTMP}, s{sTMP}, 11")
        a(f"v_min_u32 v{vT}, 10, v{vLANE}")
        a(f"v_add_u32 v{vT}, s{sTMP}, v{vT}")
        a(f"v_min_u32 v{vT}, 1919, v{vT}")
        a(f"v_mul_u32_u24 v{vT+1}, 34953, v{vT}")
        a(f"v_lshrrev_b32 v{vT+1}, 20, v{vT+1}")
        a(f"v_mul_u32_u24 v{vT+2}, 30, v{vT+1}")
        a(f"v_sub_u32 v{vT+2}, v{vT}, v{vT+2}")
        a(f"v_mul_u32_u24 v{vT+1}, 3840, v{vT+1}")
        a(f"v_lshl_add_u32 v{vPF}, v{vT+2}, 7, v{vT+1}")
        for i in range(4): a(f"s_mov_b32 s{64+i}, s{SW+i}")
        a(f"s_mov_b32 s68, {64*3840}")
        a("s_branch K1_PFD")
        a.lab("K1_PFX")
        a(f"s_lshl_b32 s{sTMP}, s{sTMP}, 1")
        a(f"s_add_u32 s{sTMP}, s{sTMP}, s{sW}")
        a(f"s_sub_u32 s{sTMP}, s{sTMP}, 6")
        a(f"s_mul_i32 s{sTMP}, s{sTMP}, 9")
        a(f"v_min_u32 v{vT}, 8, v{vLANE}")
        a(f"v_add_u32 v{vT}, s{sTMP}, v{vT}")
        a(f"v_min_u32 v{vT}, 511, v{vT}")
        a(f"s_and_b32 s{sTMP}, s2, 3")
        a(f"s_lshl_b32 s{sTMP}, s{sTMP}, 9")
        a(f"v_add_u32 v{vT}, s{sTMP}, v{vT}")
        a(f"v_mul_u32_u24 v{vPF}, 1280, v{vT}")
        for i in range(4): a(f"s_mov_b32 s{64+i}, s{SX+i}")
        a(f"s_mov_b32 s68, 128")
        a.lab("K1_PFD")
        a(f"s_mul_i32 s69, s68, {PF0}")
    def pf_group():
        return [f"buffer_load_dword v{vPF+1}, v{vPF}, s[64:67], s69 offen", f"s_add_u32 s69, s69, s68"]
    a(f"s_mul_i32 s{sSEC}, s{sNT}, 52")
    a(f"s_lshr_b32 s{sSEC}, s{sSEC}, 8")
    a(f"s_mul_i32 s{sTMP}, s{sSEC}, 5")
    a(f"s_sub_u32 s{sFB}, s{sNT}, s{sTMP}")
    a(f"s_lshl_b32 s{sFB}, s{sFB}, 7")
    a(f"s_lshl_b32 s{sTMP}, s{sWN}, 6")
    a(f"s_add_u32 s{sFB}, s{sFB}, s{sTMP}")
    a(f"s_cmp_eq_u32 s{sSEC}, 2")
    a("s_cbranch_scc1 K1_VPREP")
    a(f"s_cmp_eq_u32 s{sSEC}, 0")
    a(f"s_cselect_b32 s{sSC}, {f2u(QSCALE):#x}, 1.0")
    a(f"s_mov_b32 s{sSC+1}, s{sSC}")
    a(f"s_mov_b32 s{sTMP}, {KV_HEAD}")
    a(f"s_cselect_b32 s{sHS}, {Q_HEAD}, s{sTMP}")
    a(f"s_mov_b32 s{sTMP}, {KV_CH}")
    a(f"s_cselect_b32 s{sTMP2}, {Q_CH}, s{sTMP}")
    a(f"s_mul_i32 s{sEO}, s{sMT}, s{sTMP2}")
    a(f"s_mul_i32 s{sTMP2}, s{sBR}, {QB_OFF - QA_OFF}")
    a(f"s_add_u32 s{sTMP2}, s{sTMP2}, {QA_OFF}")
    a(f"s_mul_i32 s{sTMP3}, s{sBR}, {KVB_OFF - KVA_OFF}")
    a(f"s_cmp_eq_u32 s{sSEC}, 0")
    a(f"s_cselect_b32 s{sTMP2}, s{sTMP2}, s{sTMP3}")
    a(f"s_add_u32 s{sEO}, s{sEO}, s{sTMP2}")
    a(f"s_mul_i32 s{sTMP}, s{sWM}, 2560")
    a(f"s_add_u32 s{sEO}, s{sEO}, s{sTMP}")
    a(f"s_lshr_b32 s{sTMP}, s{sFB}, 2")
    a(f"v_lshrrev_b32 v{vT+6}, 5, v{vLANE}")
    a(f"v_add_u32 v{vT+6}, s{sTMP}, v{vT+6}")
    a(f"v_and_b32 v{vT+7}, 31, v{vLANE}")
    a(f"v_lshlrev_b32 v{vT+7}, 3, v{vT+7}")
    a(f"v_mov_b32 v{vT+8}, 0x43120")
    for e in range(8):
        a(f"v_add_u32 v{vT}, {2*e}, v{vT+6}")
        a(f"v_mul_u32_u24 v{vT+1}, 52429, v{vT}")
        a(f"v_lshrrev_b32 v{vT+1}, 18, v{vT+1}")
        a(f"v_mul_u32_u24 v{vT+2}, 5, v{vT+1}")
        a(f"v_sub_u32 v{vT+2}, v{vT}, v{vT+2}")
        a(f"v_lshlrev_b32 v{vT+2}, 2, v{vT+2}")
        a(f"v_bfe_u32 v{vT+2}, v{vT+8}, v{vT+2}, 4")
        a(f"v_lshl_add_u32 v{vT+2}, v{vT+2}, 8, v{vT+7}")
        a(f"v_mad_u32_u24 v{vEO+e}, v{vT+1}, s{sHS}, v{vT+2}")
    a("s_branch K1_T")
    a.lab("K1_VPREP")
    a(f"s_mul_i32 s{sEO}, s{sMT}, {KV_CH}")
    a(f"s_mul_i32 s{sTMP}, s{sBR}, {KVB_OFF - KVA_OFF}")
    a(f"s_add_u32 s{sEO}, s{sEO}, s{sTMP}")
    a(f"s_mul_i32 s{sTMP}, s{sWM}, {4*640}")
    a(f"s_add_u32 s{sEO}, s{sEO}, s{sTMP}")
    a(f"s_add_u32 s{sEO}, s{sEO}, 10240")
    a(f"s_mov_b32 s{sHS}, {KV_HEAD}")
    for bl in range(2):
        a(f"s_add_u32 s{sTMP}, s{sFB}, {32*bl}")
        a(f"v_and_b32 v{vT}, 31, v{vLANE}")
        a(f"v_add_u32 v{vT}, s{sTMP}, v{vT}")
        a(f"v_mul_u32_u24 v{vT+1}, 52429, v{vT}")
        a(f"v_lshrrev_b32 v{vT+1}, 20, v{vT+1}")
        a(f"v_mul_u32_u24 v{vT+2}, 20, v{vT+1}")
        a(f"v_sub_u32 v{vT+2}, v{vT}, v{vT+2}")
        a(f"v_lshrrev_b32 v{vT+3}, 5, v{vLANE}")
        a(f"v_mul_u32_u24 v{vT+3}, 320, v{vT+3}")
        a(f"v_lshl_add_u32 v{vT+3}, v{vT+2}, 4, v{vT+3}")
        a(f"v_mad_u32_u24 v{vEO+bl}, v{vT+1}, s{sHS}, v{vT+3}")
    a("s_branch K1_C")

    def variant(tag):
        a.lab(f"K1_{tag}")
        def reads(st, ph):
            out = []
            if "k1noread" in OPT: return ["s_nop 0"] * 12
            for q in range(2):
                kk = 2 * ph + q
                for j in range(2):
                    r = vXF + st * 16 + (q * 2 + j) * 4
                    out.append(f"ds_read_b128 v[{r}:{r+3}], v{vXA+kk} offset:{j*4096}")
                    r = vWF + st * 16 + (q * 2 + j) * 4
                    out.append(f"ds_read_b64_tr_b16 v[{r}:{r+1}], v{vWA+j} offset:{kk*4096}")
                    out.append(f"ds_read_b64_tr_b16 v[{r+2}:{r+3}], v{vWA+j} offset:{kk*4096+1024}")
            return out
        def mfmas(st, zero=False):
            out = []
            if "k1nomfma" in OPT: return ["s_nop 0"] * 8
            for q in range(2):
                for bl in range(2):
                    for mb in range(2):
                        acc = vACC + (bl * 2 + mb) * 16
                        xf = f"v[{vXF+st*16+(q*2+mb)*4}:{vXF+st*16+(q*2+mb)*4+3}]"
                        wf = f"v[{vWF+st*16+(q*2+bl)*4}:{vWF+st*16+(q*2+bl)*4+3}]"
                        c = "0" if (zero and q == 0) else f"v[{acc}:{acc+15}]"
                        if tag == "T":
                            out.append(f"v_mfma_f32_32x32x16_bf16 v[{acc}:{acc+15}], {wf}, {xf}, {c}")
                        else:
                            out.append(f"v_mfma_f32_32x32x16_bf16 v[{acc}:{acc+15}], {xf}, {wf}, {c}")
            return out
        def setaddr(sreg):
            return [f"v_add_u32 v{vXA+i}, s{sreg}, v{vXR+i}" for i in range(4)] + [f"v_add_u32 v{vWA+i}, s{sreg}, v{vWR+i}" for i in range(2)]
        def weave(mf, extras, upto=None):
            n = upto or len(mf); m = len(extras)
            k = 0
            for i, x in enumerate(mf):
                a(x)
                tgt = min(m, ((i + 1) * m + n - 1) // n)
                while k < tgt:
                    for y in extras[k]: a(y)
                    k += 1
        def mix(rd, dm, tail):
            ex = []
            nd = len(dm)
            for i, r in enumerate(rd):
                ex.append([r])
                if nd == 3 and i % 4 == 3: ex.append(dm[i // 4])
                if nd == 6 and i % 2 == 1: ex.append(dm[i // 2])
            return ex + tail
        def phaseA(zero, dm):
            ring = [[f"s_add_u32 s{sRD}, s{sRD}, {K1_BUF}", f"s_cmp_eq_u32 s{sRD}, {K1_LDS}", f"s_cselect_b32 s{sRD}, 0, s{sRD}"]]
            mf = mfmas(0, zero)
            weave(mf[:7], mix(reads(1, 1), dm, ring), upto=6)
            return mf[7:]
        a(f"s_mov_b32 s{sWRB}, {K1_BUF}")
        for g in dma_list(sWRB):
            for x in g: a(x)
        a(f"s_mov_b32 s{sWRB}, {2*K1_BUF}")
        NP0 = (5 - PF0) if PF else 0
        for i in range(NP0):
            for x in pf_group(): a(x)
        SL = "slice" in OPT
        def slice_groups():
            pre = [f"s_lshr_b32 s70, s2, 3", f"s_lshl_b32 s70, s70, 2", f"s_and_b32 s71, s2, 3", f"s_add_u32 s70, s70, s71",
                   f"s_lshl_b32 s70, s70, 3", f"s_add_u32 s70, s70, s{sW}", f"s_lshl_b32 s70, s70, 10", f"v_lshlrev_b32 v{vPF}, 4, v{vLANE}"]
            g = []
            for i in range(3):
                g.append([f"s_add_u32 s71, s70, {i*960*1024}",
                          f"buffer_load_dwordx4 v[{vPF+4}:{vPF+7}], v{vPF}, s[{SW}:{SW+3}], s71 offen"])
            g.append([f"s_mul_i32 s71, s{sBR}, {1280*1024}", f"s_add_u32 s71, s71, s70",
                      f"buffer_load_dwordx4 v[{vPF+4}:{vPF+7}], v{vPF}, s[{SX}:{SX+3}], s71 offen"])
            g.append([f"s_add_u32 s71, s71, {960*1024}", f"s_cmp_lt_u32 s70, {320*1024}", f"s_cselect_b32 s71, s71, s70",
                      f"buffer_load_dwordx4 v[{vPF+4}:{vPF+7}], v{vPF}, s[{SX}:{SX+3}], s71 offen"])
            return pre, g
        NP = 1 if PF else 0
        if SL and 'sliceearly' in OPT:
            pre, g = slice_groups()
            for x in pre: a(x)
            for gg in g:
                for x in gg: a(x)
            NP0 += 5
        stamp(a, 2)
        a(f"s_waitcnt vmcnt({6+NP0})")
        a("s_barrier")
        stamp(a, 3)
        a(f"s_mov_b32 s{sRD}, 0")
        for x in setaddr(sRD): a(x)
        for r in reads(0, 0): a(r)
        a(f"s_mov_b32 s{sI}, 0")
        adv = [f"s_add_u32 s{sWRB}, s{sWRB}, {K1_BUF}", f"s_cmp_eq_u32 s{sWRB}, {K1_LDS}", f"s_cselect_b32 s{sWRB}, 0, s{sWRB}"]
        a("s_waitcnt lgkmcnt(0)")
        LATE = SL and 'sliceearly' not in OPT
        if LATE:
            pre, g = slice_groups()
            for x in pre: a(x)
        last = phaseA(True, dma_list(sWRB, True))
        if LATE:
            for gg in g:
                for x in gg: a(x)
        for x in last: a(x)
        a(f"s_waitcnt vmcnt({6+NP0+(5 if LATE else 0)}) lgkmcnt(0)")
        a(f"s_branch K1_{tag}_WB")
        a.lab(f"K1_{tag}_LOOP")
        a("s_waitcnt lgkmcnt(0)")
        a(f"s_cmp_ge_u32 s{sI}, 8")
        a(f"s_cbranch_scc1 K1_{tag}_AND")
        last = phaseA(False, [] if "k1allc" in OPT else dma_list(sWRB, True)[3:])
        for x in last: a(x)
        a.lab(f"K1_{tag}_B")
        if LATE:
            a(f"s_cmp_eq_u32 s{sI}, 1")
            a(f"s_cbranch_scc1 K1_{tag}_B1")
        a(f"s_waitcnt vmcnt({6+NP}) lgkmcnt(0)")
        a.lab(f"K1_{tag}_WB")
        if "k1stamp" in OPT:
            a("s_memtime s[78:79]")
        if "k1nobar" not in OPT: a("s_barrier")
        if "k1stamp" in OPT:
            a("s_memtime s[74:75]")
            a("s_waitcnt lgkmcnt(0)")
            a(f"s_mov_b32 s79, m0")
            a(f"s_mov_b32 m0, s{sI}")
            a("s_nop 0")
            a(f"v_writelane_b32 v179, s74, m0")
            a(f"s_add_u32 m0, m0, 16")
            a("s_nop 0")
            a(f"v_writelane_b32 v179, s78, m0")
            a(f"s_mov_b32 m0, s79")
        mf = mfmas(1)
        a(mf[0])
        for x in setaddr(sRD): a(x)
        for x in adv: a(x)
        rd = reads(0, 0)
        a(f"s_cmp_ge_u32 s{sI}, 7")
        a(f"s_cbranch_scc1 K1_{tag}_ND")
        cnt = [[f"s_add_u32 s{sI}, s{sI}, 1"]]
        weave(mf[1:], mix(rd, dma_list(sWRB, True)[:3], ([pf_group()] if PF else []) + cnt), upto=6)
        a(f"s_branch K1_{tag}_LOOP")
        a.lab(f"K1_{tag}_ND")
        weave(mf[1:], mix(rd, [], cnt), upto=6)
        a(f"s_cmp_lt_u32 s{sI}, 10")
        a(f"s_cbranch_scc1 K1_{tag}_LOOP")
        stamp(a, 4)
        a("s_nop 7")
        a("s_nop 3")
        n = 0
        for bl in range(2):
            for mb in range(2):
                acc = vACC + (bl * 2 + mb) * 16
                if tag == "T":
                    for i in range(4):
                        q = acc + 4 * i
                        t = vXF + (n % 16) * 2; n += 1
                        a(f"v_pk_mul_f32 v[{q}:{q+1}], v[{q}:{q+1}], s[{sSC}:{sSC+1}]")
                        a(f"v_pk_mul_f32 v[{q+2}:{q+3}], v[{q+2}:{q+3}], s[{sSC}:{sSC+1}]")
                        a(f"v_cvt_pk_bf16_f32 v{t}, v{q}, v{q+1}")
                        a(f"v_cvt_pk_bf16_f32 v{t+1}, v{q+2}, v{q+3}")
                        a(f"buffer_store_dwordx2 v[{t}:{t+1}], v{vEO + 4*bl + i}, s[{SWS}:{SWS+3}], s{sEO} offen offset:{mb*1280}{STORE_FLAGS}")
                else:
                    for g2 in range(2):
                        q = acc + 8 * g2
                        t = vXF + (n % 8) * 4; n += 1
                        for i in range(4):
                            a(f"v_cvt_pk_bf16_f32 v{t+i}, v{q+2*i}, v{q+2*i+1}")
                        a(f"buffer_store_dwordx4 v[{t}:{t+3}], v{vEO+bl}, s[{SWS}:{SWS+3}], s{sEO} offen offset:{(2*mb+g2)*640}{STORE_FLAGS}")
        a("s_branch K1_FIN")
        if LATE:
            a.lab(f"K1_{tag}_B1")
            a(f"s_waitcnt vmcnt({6+NP+5}) lgkmcnt(0)")
            a(f"s_branch K1_{tag}_WB")
        a.lab(f"K1_{tag}_AND")
        last = phaseA(False, [])
        for x in last: a(x)
        a("s_waitcnt vmcnt(0) lgkmcnt(0)")
        a(f"s_branch K1_{tag}_WB")
    variant("T")
    variant("C")

    GPF0 = optval("gpf0", 3)
    a.lab("K1_GATE")
    a("s_waitcnt lgkmcnt(0)")
    srd(a, SX, 8, 9, 2048 * 1280)
    srd(a, SG, 6, 7, 1280)
    srd(a, SWS, 4, 5, WS_USED)
    if "gmall" in OPT:
        a("s_load_dwordx2 s[58:59], s[0:1], 8")
        a("s_load_dwordx2 s[70:71], s[0:1], 32")
        a(f"s_sub_u32 s{sTMP}, s2, 240")
        a(f"s_lshl_b32 s{sTMP}, s{sTMP}, 3")
        a(f"s_add_u32 s{sTMP}, s{sTMP}, s{sW}")
        a(f"v_lshlrev_b32 v{vT+1}, 4, v{vLANE}")
        a(f"v_lshrrev_b32 v{vT+2}, 3, v{vLANE}")
        a(f"s_lshl_b32 s{sTMP2}, s{sTMP}, 4")
        a(f"v_add_u32 v{vT+2}, s{sTMP2}, v{vT+2}")
        a(f"v_mul_u32_u24 v{vT+2}, 1280, v{vT+2}")
        a(f"v_and_b32 v{vT+3}, 7, v{vLANE}")
        a(f"v_lshl_add_u32 v{vT+2}, v{vT+3}, 4, v{vT+2}")
        a("s_waitcnt lgkmcnt(0)")
        srd(a, 60, 58, 59, 640 * 3840)
        srd(a, 64, 70, 71, 640 * 3840)
        a(f"s_lshl_b32 s72, s{sTMP}, 10")
        a(f"s_add_u32 s73, s72, {128*1024}")
        a(f"s_cmp_ge_u32 s{sTMP}, 112")
        a(f"s_cselect_b32 s73, s72, s73")
        a(f"s_mov_b32 s74, 0")
        for st in range(optval("mall0", 1), 10):
            wo = st * 64 * 3840
            a(f"s_add_u32 s76, s72, {wo}")
            a(f"buffer_load_dwordx4 v[{vXF}:{vXF+3}], v{vT+1}, s[60:63], s76 offen")
            a(f"buffer_load_dwordx4 v[{vXF+4}:{vXF+7}], v{vT+1}, s[64:67], s76 offen")
            a(f"s_add_u32 s76, s73, {wo}")
            a(f"buffer_load_dwordx4 v[{vXF+8}:{vXF+11}], v{vT+1}, s[60:63], s76 offen")
            a(f"buffer_load_dwordx4 v[{vXF+12}:{vXF+15}], v{vT+1}, s[64:67], s76 offen")
            a(f"s_mov_b32 s76, {st*128}")
            a(f"buffer_load_dwordx4 v[{vXF+16}:{vXF+19}], v{vT+2}, s[{SX}:{SX+3}], s76 offen")
            a(f"buffer_load_dwordx4 v[{vXF+20}:{vXF+23}], v{vT+2}, s[{SX}:{SX+3}], s76 offen offset:0" if False else
              f"s_add_u32 s76, s76, {8*1280}")
            a(f"buffer_load_dwordx4 v[{vXF+20}:{vXF+23}], v{vT+2}, s[{SX}:{SX+3}], s76 offen")
            a("s_waitcnt vmcnt(36)")
        a("s_waitcnt vmcnt(0)")
    TS = optval("tlbin", 0)
    if TS:
        srd(a, SW, 10, 11, 640 * 3840)
        sh = {4: 12, 16: 14, 64: 16}[TS]
        a(f"s_lshr_b32 s{sTMP}, s2, 3")
        a(f"s_and_b32 s{sTMP}, s{sTMP}, 1")
        a(f"s_lshl_b32 s{sTMP}, s{sTMP}, 3")
        a(f"s_add_u32 s{sTMP}, s{sTMP}, s{sW}")
        a(f"s_lshl_b32 s{sTMP}, s{sTMP}, 6")
        a(f"v_add_u32 v{vT+1}, s{sTMP}, v{vLANE}")
        a(f"v_lshlrev_b32 v{vT+1}, {sh}, v{vT+1}")
        n = max(1, -(-2621440 // ((1024) << sh)))
        for i in range(n):
            a(f"s_mov_b32 s{sTMP2}, {i * (1024 << sh)}")
            a(f"buffer_load_dword v{vPF}, v{vT+1}, s[{SW}:{SW+3}], s{sTMP2} offen")
            a(f"buffer_load_dword v{vPF+1}, v{vT+1}, s[{SX}:{SX+3}], s{sTMP2} offen")
    if "gpf" in OPT:
        srd(a, SW, 10, 11, 640 * 3840)
        a(f"s_lshr_b32 s{sTMP}, s2, 3")
        a(f"s_and_b32 s{sTMP}, s{sTMP}, 1")
        a(f"v_cmp_le_u32 vcc, 30, v{vLANE}")
        a(f"v_mov_b32 v{vT+1}, 0")
        a(f"v_mov_b32 v{vT+2}, {3840 - 30*128}")
        a(f"v_cndmask_b32 v{vT+1}, v{vT+1}, v{vT+2}, vcc")
        a(f"v_min_u32 v{vT+2}, 59, v{vLANE}")
        a(f"v_lshl_add_u32 v{vT+1}, v{vT+2}, 7, v{vT+1}")
        a(f"s_lshl_b32 s{sTMP2}, s{sTMP}, 5")
        a(f"s_lshl_b32 s{sTMP3}, s{sW}, 2")
        a(f"s_add_u32 s{sTMP2}, s{sTMP2}, s{sTMP3}")
        a(f"s_add_u32 s{sTMP2}, s{sTMP2}, {64*GPF0}")
        a(f"s_mul_i32 s{sTMP2}, s{sTMP2}, 3840")
        a(f"s_and_b32 s{sTMP3}, s2, 3")
        a(f"s_lshl_b32 s{sTMP3}, s{sTMP3}, 9")
        a(f"s_lshl_b32 s{sTMP}, s{sTMP}, 8")
        a(f"s_add_u32 s{sTMP3}, s{sTMP3}, s{sTMP}")
        a(f"s_and_b32 s{sTMP}, s{sW}, 3")
        a(f"s_lshl_b32 s{sTMP}, s{sTMP}, 6")
        a(f"s_add_u32 s{sTMP3}, s{sTMP3}, s{sTMP}")
        a(f"v_add_u32 v{vT+2}, s{sTMP3}, v{vLANE}")
        a(f"v_mul_u32_u24 v{vT+2}, 1280, v{vT+2}")
        a(f"s_mov_b32 s{sTMP3}, {128*GPF0}")
        for st in range(GPF0, 10):
            a(f"buffer_load_dword v{vPF}, v{vT+1}, s[{SW}:{SW+3}], s{sTMP2} offen")
            a(f"s_add_u32 s{sTMP}, s{sTMP2}, {2*3840}")
            a(f"buffer_load_dword v{vPF+1}, v{vT+1}, s[{SW}:{SW+3}], s{sTMP} offen")
            a(f"buffer_load_dword v{vPF+2}, v{vT+2}, s[{SX}:{SX+3}], s{sTMP3} offen")
            a(f"s_add_u32 s{sTMP2}, s{sTMP2}, {64*3840}")
            a(f"s_add_u32 s{sTMP3}, s{sTMP3}, 128")
    if "notlb" not in OPT:
        a(f"v_lshlrev_b32 v{vT+1}, 16, v{vLANE}")
        a(f"s_lshl_b32 s{sTMP}, s{sW}, 22")
        a(f"s_cmp_lt_u32 s{sW}, 6")
        a(f"s_cbranch_scc0 K1_NOTLB")
        a(f"buffer_load_dword v{vPF}, v{vT+1}, s[{SWS}:{SWS+3}], s{sTMP} offen")
        a.lab("K1_NOTLB")
    if "nocodepf" not in OPT:
        a(f"s_getpc_b64 s[78:79]")
        a.lab("K1_PC")
        a(f"s_add_u32 s78, s78, k2_attn_kernel-K1_PC")
        a(f"s_addc_u32 s79, s79, 0")
        a(f"v_lshlrev_b32 v{vT+1}, 7, v{vLANE}")
        a(f"s_lshl_b32 s{sTMP}, s{sW}, 13")
        a(f"v_add_u32 v{vT+1}, s{sTMP}, v{vT+1}")
        a(f"s_cmp_ge_u32 s{sW}, K2CODE_WAVES")
        a("s_cbranch_scc1 K1_NOCPF")
        a(f"global_load_dword v{vPF+2}, v{vT+1}, s[78:79]")
        a.lab("K1_NOCPF")
    a(f"s_cmp_lg_u32 s2, 240")
    a("s_cbranch_scc1 K1_NOZ")
    a(f"s_cmp_ge_u32 s{sW}, 4")
    a("s_cbranch_scc1 K1_NOZ")
    a(f"v_lshlrev_b32 v{vT+1}, 7, v{vLANE}")
    a(f"v_mov_b32 v{vT+2}, 0")
    a(f"s_lshl_b32 s{sTMP}, s{sW}, 13")
    a(f"s_add_u32 s{sTMP}, s{sTMP}, {FL_OFF}")
    a(f"buffer_store_dword v{vT+2}, v{vT+1}, s[{SWS}:{SWS+3}], s{sTMP} offen")
    a.lab("K1_NOZ")
    a(f"s_sub_u32 s{sTMP}, s2, 240")
    a(f"s_lshl_b32 s{sTMP}, s{sTMP}, 3")
    a(f"s_add_u32 s{sTMP}, s{sTMP}, s{sW}")
    a(f"s_cmp_ge_u32 s{sTMP}, 120")
    a("s_cbranch_scc1 K1_GATE2")
    a(f"s_mul_i32 s{sTMP2}, s{sTMP}, 171")
    a(f"s_lshr_b32 s{sTMP2}, s{sTMP2}, 9")
    a(f"s_mul_i32 s{sTMP3}, s{sTMP2}, 3")
    a(f"s_sub_u32 s{sTMP3}, s{sTMP}, s{sTMP3}")
    a("s_load_dwordx2 s[58:59], s[0:1], 16")
    a("s_load_dwordx2 s[70:71], s[0:1], 40")
    a(f"s_mul_i32 s{sD}, s{sTMP3}, 448")
    a(f"v_lshrrev_b32 v{vT+1}, 5, v{vLANE}")
    a(f"v_mul_u32_u24 v{vT+1}, 1280, v{vT+1}")
    a(f"v_and_b32 v{vT+2}, 31, v{vLANE}")
    a(f"v_lshl_add_u32 v{vT+1}, v{vT+2}, 4, v{vT+1}")
    a(f"v_add_u32 v{vT+1}, s{sD}, v{vT+1}")
    a(f"s_lshl_b32 s{sEO}, s{sW}, 14")
    a("s_waitcnt lgkmcnt(0)")
    srd(a, 60, 58, 59, 640 * 1280)
    srd(a, 64, 70, 71, 640 * 1280)
    for g in range(4):
        a(f"s_lshl_b32 s72, s{sTMP2}, 2")
        a(f"s_add_u32 s72, s72, {g}")
        a(f"s_mul_i32 s73, s72, 205")
        a(f"s_lshr_b32 s73, s73, 10")
        a(f"s_mul_i32 s74, s73, 5")
        a(f"s_sub_u32 s74, s72, s74")
        a(f"s_mul_i32 s73, s73, 20")
        for quad in range(2):
            a(f"s_and_b32 s76, s74, 1")
            a(f"s_lshl_b32 s76, s76, 3")
            a(f"s_add_u32 s76, s76, {4*quad}")
            a(f"s_lshr_b32 s77, s74, 1")
            a(f"s_cmp_eq_u32 s74, 4")
            a(f"s_cselect_b32 s76, 16, s76")
            a(f"s_cselect_b32 s77, {quad}, s77")
            a(f"s_add_u32 s76, s76, s73")
            a(f"s_mul_i32 s76, s76, 1280")
            a(f"s_cmp_eq_u32 s77, 0")
            a(f"s_cbranch_scc0 K1_WB{g}{quad}")
            for r2 in range(2):
                a(f"s_add_u32 m0, s{sEO}, {(g*4 + quad*2 + r2)*1024}")
                a(f"s_add_u32 s{sD}, s76, {r2*2*1280}")
                a(f"buffer_load_dwordx4 v{vT+1}, s[60:63], s{sD} offen lds")
            a(f"s_branch K1_WD{g}{quad}")
            a.lab(f"K1_WB{g}{quad}")
            for r2 in range(2):
                a(f"s_add_u32 m0, s{sEO}, {(g*4 + quad*2 + r2)*1024}")
                a(f"s_add_u32 s{sD}, s76, {r2*2*1280}")
                a(f"buffer_load_dwordx4 v{vT+1}, s[64:67], s{sD} offen lds")
            a.lab(f"K1_WD{g}{quad}")
    a(f"v_lshrrev_b32 v{vT+2}, 4, v{vLANE}")
    a(f"v_bfe_u32 v{vT+3}, v{vLANE}, 2, 2")
    a(f"v_lshl_add_u32 v{vT+2}, v{vT+2}, 3, v{vT+3}")
    a(f"v_lshlrev_b32 v{vT+2}, 9, v{vT+2}")
    a(f"v_and_b32 v{vT+3}, 3, v{vLANE}")
    a(f"v_lshl_add_u32 v{vT+2}, v{vT+3}, 3, v{vT+2}")
    a(f"v_add_u32 v{vT+2}, s{sEO}, v{vT+2}")
    a(f"v_lshlrev_b32 v{vT+3}, 4, v{vLANE}")
    a("s_waitcnt vmcnt(0)")
    for j in range(14):
        a(f"ds_read_b64_tr_b16 v[{vXF+4*j}:{vXF+4*j+1}], v{vT+2} offset:{j*32}")
        a(f"ds_read_b64_tr_b16 v[{vXF+4*j+2}:{vXF+4*j+3}], v{vT+2} offset:{j*32+2048}")
    a(f"s_mul_i32 s{sTMP3}, s{sTMP3}, 14")
    a("s_waitcnt lgkmcnt(0)")
    for j in range(14):
        a(f"s_add_u32 s{sTMP4}, s{sTMP3}, {j}")
        a(f"s_cmp_ge_u32 s{sTMP4}, 40")
        a("s_cbranch_scc1 K1_GATE2")
        a(f"s_mul_i32 s{sD}, s{sTMP4}, 52")
        a(f"s_lshr_b32 s{sD}, s{sD}, 8")
        a(f"s_mul_i32 s{sEO}, s{sD}, 5")
        a(f"s_sub_u32 s{sEO}, s{sTMP4}, s{sEO}")
        a(f"s_mul_i32 s{sD}, s{sD}, 40")
        a(f"s_add_u32 s{sD}, s{sD}, s{sTMP2}")
        a(f"s_mul_i32 s{sD}, s{sD}, 5")
        a(f"s_add_u32 s{sD}, s{sD}, s{sEO}")
        a(f"s_lshl_b32 s{sD}, s{sD}, 10")
        a(f"s_add_u32 s{sD}, s{sD}, {WT_OFF}")
        a(f"buffer_store_dwordx4 v[{vXF+4*j}:{vXF+4*j+3}], v{vT+3}, s[{SWS}:{SWS+3}], s{sD} offen")
    a.lab("K1_GATE2")
    a("s_nop 1")
    a(f"s_sub_u32 s{sTMP}, s2, 240")
    a(f"s_lshl_b32 s{sTMP}, s{sTMP}, 7")
    a(f"s_lshl_b32 s{sTMP2}, s{sW}, 4")
    a(f"s_add_u32 s{sI}, s{sTMP}, s{sTMP2}")
    a(f"v_lshlrev_b32 v{vT}, 2, v{vLANE}")
    for j in range(5):
        a(f"buffer_load_dword v{vT+7+j}, v{vT}, s[{SG}:{SG+3}], 0 offen offset:{j*256}")
    a(f"s_mul_i32 s{sTMP4}, s{sI}, 1280")
    for r in range(16):
        for j in range(5):
            a(f"buffer_load_dword v{vXF+r*5+j}, v{vT}, s[{SX}:{SX+3}], s{sTMP4} offen offset:{j*256}")
        a(f"s_add_u32 s{sTMP4}, s{sTMP4}, 1280")
        if r == 9: a("s_waitcnt vmcnt(20)")
    a("s_waitcnt vmcnt(0)")
    gw = vT + 7
    for j in range(5):
        a(f"v_lshlrev_b32 v{vT+2+j}, 16, v{gw+j}")
        a(f"v_and_b32 v{gw+j}, 0xffff0000, v{gw+j}")
    vG = 112
    for r in range(16):
        a(f"v_mov_b32 v{vG+r}, 0")
        for j in range(5):
            x = vXF + r * 5 + j
            a(f"v_lshlrev_b32 v{vT}, 16, v{x}")
            a(f"v_and_b32 v{x}, 0xffff0000, v{x}")
            a(f"v_fmac_f32 v{vG+r}, v{vT}, v{vT+2+j}")
            a(f"v_fmac_f32 v{vG+r}, v{x}, v{gw+j}")
    for rr in (8, 4, 2, 1):
        a("s_nop 1")
        for r in range(16):
            a(f"v_add_f32_dpp v{vG+r}, v{vG+r}, v{vG+r} row_ror:{rr} row_mask:0xf bank_mask:0xf")
    for r in range(16):
        a(f"v_mov_b32 v{vG+16+r}, v{vG+r}")
    a("s_nop 1")
    for r in range(16):
        a(f"v_permlane32_swap_b32 v{vG+r}, v{vG+16+r}")
    a("s_nop 1")
    for r in range(16):
        a(f"v_add_f32 v{vG+r}, v{vG+r}, v{vG+16+r}")
        a(f"v_mov_b32 v{vG+16+r}, v{vG+r}")
    a("s_nop 1")
    for r in range(16):
        a(f"v_permlane16_swap_b32 v{vG+r}, v{vG+16+r}")
    a("s_nop 1")
    for r in range(16):
        a(f"v_add_f32 v{vG+r}, v{vG+r}, v{vG+16+r}")
    a(f"v_and_b32 v{vT}, 15, v{vLANE}")
    a(f"v_mov_b32 v{vT+1}, v{vG}")
    for r in range(1, 16):
        a(f"v_cmp_eq_u32 vcc, {r}, v{vT}")
        a("s_nop 1")
        a(f"v_cndmask_b32 v{vT+1}, v{vT+1}, v{vG+r}, vcc")
    a(f"v_mul_f32 v{vT+1}, {f2u(-1.4426950408889634):#x}, v{vT+1}")
    a(f"v_exp_f32 v{vT+1}, v{vT+1}")
    a("s_nop 0")
    a(f"v_add_f32 v{vT+1}, 1.0, v{vT+1}")
    a(f"v_rcp_f32 v{vT+1}, v{vT+1}")
    a(f"s_lshl_b32 s{sTMP}, s{sI}, 2")
    a(f"s_add_u32 s{sTMP}, s{sTMP}, {G_OFF}")
    a(f"v_lshlrev_b32 v{vT}, 2, v{vT}")
    a("s_mov_b64 exec, 0xffff")
    a(f"buffer_store_dword v{vT+1}, v{vT}, s[{SWS}:{SWS+3}], s{sTMP} offen")
    if PROF:
        a("s_mov_b64 exec, -1")
        a("s_waitcnt vmcnt(0)")
        for i in range(1, 7): stamp(a, i)
        stamp_flush(a, 0, 7, SWS, sW, vT)
    a("s_branch K1_END")
    a.lab("K1_FIN")
    if "dbgtime" in OPT:
        a("s_load_dwordx2 s[92:93], s[0:1], 64")
        a("s_waitcnt vmcnt(0)")
        a("s_memrealtime s[94:95]")
        a("s_waitcnt lgkmcnt(0)")
        srd(a, 84, 92, 93, 256)
        a("s_mov_b64 exec, 1")
        a("v_mov_b32 v20, 0")
        a("s_not_b32 s90, s90")
        a("v_mov_b32 v21, s90")
        a("buffer_atomic_umax v21, v20, s[84:87], 0 offen")
        a("v_mov_b32 v22, s94")
        a("buffer_atomic_umax v22, v20, s[84:87], 0 offen offset:4")
        a("s_mov_b64 exec, -1")
    if "k1stamp" in OPT:
        a(f"s_lshl_b32 s97, s2, 3")
        a(f"s_add_u32 s97, s97, s{sW}")
        a(f"s_lshl_b32 s97, s97, 7")
        a(f"s_add_u32 s97, s97, {PROF_OFF + 3 * 0x100000}")
        a(f"v_lshlrev_b32 v{vT}, 2, v{vLANE}")
        a("s_mov_b64 exec, 0xffffffff")
        a(f"buffer_store_dword v179, v{vT}, s[{SWS}:{SWS+3}], s97 offen")
        a("s_mov_b64 exec, -1")
    stamp(a, 5)
    if PROF: a("s_waitcnt vmcnt(0)")
    stamp(a, 6)
    stamp_flush(a, 0, 7, SWS, sW, vT)
    a.lab("K1_END")
    a("s_endpgm")
    return name, NV

K2_LDS = 163840
NEGBIG = -1.0e30

def mask_table():
    vals = []
    for j in range(6):
        for l in range(64):
            c = l & 31; h = l >> 5
            for i in range(4):
                if j < 4:
                    r = j * 4 + i
                    row = (r & 3) + 8 * (r >> 2) + 4 * h
                    diff = c + 16 - row
                else:
                    r = (j - 4) * 4 + i
                    row = (r & 3) + 8 * (r >> 2) + 4 * h
                    diff = c - 16 - row
                ok = 0 <= diff <= 14 and diff % 2 == 0
                vals.append(0 if ok else f2u(NEGBIG))
    return vals

K2_PRIO_TILE = 5
def gen_k2(a):
    FUSE = "nofuse" not in OPT
    name = "k2_attn_kernel"
    kernel_head(a, name)
    SWS = 8
    sW = 12; sHEAD = 13; sQB = 14; sS0 = 15; sT0 = 16; sT1 = 17; sT2 = 18; sT3 = 19
    sC = 20; sPASS = 21; sVM = 22
    sLO = 24
    sGRP = 26; sPR = 27
    sDS = 28; sDG = 29
    sAV = 30
    sQA = 33; sGO = 35
    sDO = 44
    sWL = 49; sWS = 58; sWS0 = 59; sWC = 66; sFAIL = 67
    vLANE = 1; vL16 = 2; vK8 = 3; vVA = 4; vKe = 5; vKo = 6; vK4c = 7
    vT = 8
    vGATE = 16; vVc = 17
    vAKO = 18
    vPFA = 22; vQO = 23
    vQ16 = [24, 28]; vQ8 = [32, 34]
    vQA16 = 36; vQA8 = 40
    vKA = 44; vKB = 52; vV1 = 56; vV2 = 64; vP = 72
    S = [84, 100]; NEG = [116, 132]; O = [148, 164]
    vAK = 180; vAV = 192; vMX = 204; vMY = 220
    vOB = 236; vDUM = 244; vOSA = 245
    NV = 248
    ONES = 0x3f803f80
    vS0, vS1 = S

    a("s_cmp_ge_u32 s2, 256")
    a("s_cbranch_scc1 K2_END")
    stamp(a, 0)
    if "dbgtime" in OPT:
        a("s_memrealtime s[90:91]")
        a("s_load_dwordx2 s[92:93], s[0:1], 64")
    a("s_load_dwordx2 s[4:5], s[0:1], 72")
    if FUSE:
        a("s_load_dwordx2 s[60:61], s[0:1], 56")
    a(f"v_and_b32 v{vLANE}, 63, v0")
    a(f"v_lshrrev_b32 v{vT}, 6, v0")
    a(f"s_and_b32 s{sHEAD}, s2, 7")
    a(f"v_readfirstlane_b32 s{sW}, v{vT}")
    a(f"s_lshl_b32 s{sHEAD}, s{sHEAD}, 2")
    a(f"s_lshr_b32 s{sT0}, s2, 6")
    a(f"s_add_u32 s{sHEAD}, s{sHEAD}, s{sT0}")
    a(f"s_lshr_b32 s{sQB}, s2, 3")
    a(f"s_and_b32 s{sQB}, s{sQB}, 7")
    a(f"v_lshlrev_b32 v{vL16}, 4, v{vLANE}")
    a(f"v_and_b32 v{vT}, 31, v{vLANE}")
    a(f"v_lshlrev_b32 v{vK8}, 3, v{vT}")
    a(f"v_lshrrev_b32 v{vT+1}, 5, v{vLANE}")
    a(f"v_lshl_add_u32 v{vQO}, v{vT+1}, 8, v{vK8}")
    a(f"s_lshr_b32 s{sGRP}, s{sW}, 2")
    a(f"s_and_b32 s{sPR}, s{sW}, 3")
    a(f"s_mul_i32 s{sDS}, s{sHEAD}, {KV_HEAD}")
    a(f"s_add_u32 s{sDS}, s{sDS}, {KVB_OFF}")
    for j in range(5):
        a(f"s_add_u32 s{sT0}, s{sW}, {8*j}")
        a(f"s_lshl_b32 s{sDO+j}, s{sT0}, 10")
        a(f"s_cmp_ge_u32 s{sT0}, 20")
        a(f"s_cselect_b32 s{sT1}, {4*KV_CH - 20*1024}, 0")
        a(f"s_add_u32 s{sDO+j}, s{sDO+j}, s{sT1}")
    a(f"s_mul_i32 s{sQA}, s{sHEAD}, {Q_HEAD}")
    a(f"s_lshl_b32 s{sT1}, s{sQB}, 3")
    a(f"s_lshl_b32 s{sT2}, s{sPR}, 1")
    a(f"s_add_u32 s{sT1}, s{sT1}, s{sT2}")
    a(f"s_mul_i32 s{sT1}, s{sT1}, 1280")
    a(f"s_add_u32 s{sQA}, s{sQA}, s{sT1}")
    a(f"s_add_u32 s{sT0}, s{sQA}, {QB_OFF}")
    a(f"s_mov_b32 s{sDG}, 0")
    a("s_waitcnt lgkmcnt(0)")
    srd(a, SWS, 4, 5, WS_USED)
    def dma1(j):
        return [f"s_add_u32 m0, s{sDO+j}, s{sDG}",
                f"s_add_u32 s{sT3}, m0, s{sDS}",
                f"buffer_load_dwordx4 v{vL16}, s[{SWS}:{SWS+3}], s{sT3} offen lds"]
    def qloads(q16, q8, sreg, off):
        return [f"buffer_load_dwordx2 v[{q16}:{q16+1}], v{vQO}, s[{SWS}:{SWS+3}], s{sreg} offen offset:{off}",
                f"buffer_load_dwordx2 v[{q16+2}:{q16+3}], v{vQO}, s[{SWS}:{SWS+3}], s{sreg} offen offset:{off+512}",
                f"buffer_load_dwordx2 v[{q8}:{q8+1}], v{vK8}, s[{SWS}:{SWS+3}], s{sreg} offen offset:{off+1024}"]
    for j in range(5):
        for x in dma1(j): a(x)
    for sg in range(2):
        for x in qloads(vQ16[sg], vQ8[sg], sT0, sg * 1280): a(x)
    a(f"s_add_u32 s{sDG}, s{sDG}, {KV_CH}")
    stamp(a, 1)
    a(f"s_mov_b32 s{sVM}, 0x000fffff")
    a(f"s_mov_b32 s{sVM+1}, 0x000fffff")
    a(f"s_mov_b32 s{sLO}, -1")
    a(f"s_mov_b32 s{sLO+1}, 0")
    a(f"v_and_b32 v{vT}, 31, v{vLANE}")
    a(f"v_lshrrev_b32 v{vT+1}, 5, v{vLANE}")
    a(f"v_mul_u32_u24 v{vVA}, 20, v{vT+1}")
    a(f"v_add_u32 v{vVA}, v{vVA}, v{vT}")
    a(f"v_lshlrev_b32 v{vVA}, 4, v{vVA}")
    for sg in range(2):
        for i in range(0, 16, 2):
            a(f"v_mov_b64 v[{O[sg]+i}:{O[sg]+i+1}], 0")
    a(f"v_mov_b64 v[{vP+4}:{vP+5}], 0")
    a(f"v_mov_b64 v[{vP+6}:{vP+7}], 0")
    a(f"s_lshl_b32 s{sS0}, s{sQB}, 8")
    a(f"s_lshl_b32 s{sT0}, s{sPR}, 6")
    a(f"s_add_u32 s{sS0}, s{sS0}, s{sT0}")
    a(f"s_lshl_b32 s{sT0}, s{sGRP}, 5")
    a(f"s_add_u32 s{sS0}, s{sS0}, s{sT0}")
    a(f"s_mul_i32 s{sT0}, s{sGRP}, 1280")
    a(f"s_add_u32 s{sQA}, s{sQA}, s{sT0}")
    a(f"s_add_u32 s{sQA}, s{sQA}, {QA_OFF}")
    a(f"s_lshl_b32 s{sT0}, s{sHEAD}, 6")
    a(f"s_lshr_b32 s{sT1}, s{sS0}, 5")
    a(f"s_add_u32 s{sT0}, s{sT0}, s{sT1}")
    for k, dT in enumerate((-1, 0, 1)):
        a(f"s_add_i32 s{sT1}, s{sT0}, {dT}")
        a(f"s_ashr_i32 s{sT2}, s{sT1}, 3")
        a(f"s_mul_i32 s{sT2}, s{sT2}, {KV_CH}")
        a(f"s_and_b32 s{sT1}, s{sT1}, 7")
        a(f"s_mul_i32 s{sT1}, s{sT1}, 1280")
        a(f"s_add_u32 s{50+k}, s{sT1}, s{sT2}")
    a(f"s_add_u32 s50, s50, 128")
    a(f"s_sub_u32 s53, s51, 128")
    a(f"s_add_u32 s51, s51, 128")
    a(f"s_sub_u32 s52, s52, 128")
    a(f"s_mov_b32 s54, 0xffff")
    a(f"s_mov_b32 s55, 0xffff")
    a(f"v_add_u32 v{vAKO+1}, s53, v{vK8}")
    a(f"v_add_u32 v{vAKO+3}, s52, v{vK8}")
    a(f"s_mov_b64 exec, s[54:55]")
    a(f"v_add_u32 v{vAKO+1}, s50, v{vK8}")
    a(f"v_add_u32 v{vAKO+3}, s51, v{vK8}")
    a("s_mov_b64 exec, -1")
    a(f"v_sub_u32 v{vT+7}, v{vQO}, v{vK8}")
    a(f"v_add_u32 v{vAKO}, v{vAKO+1}, v{vT+7}")
    a(f"v_add_u32 v{vAKO+2}, v{vAKO+3}, v{vT+7}")
    a(f"s_lshl_b32 s{sT0}, s{sHEAD}, 7")
    a(f"s_lshr_b32 s{sT1}, s{sS0}, 4")
    a(f"s_add_u32 s{sT0}, s{sT0}, s{sT1}")
    for j in range(3):
        a(f"s_add_i32 s{sT1}, s{sT0}, {j-1}")
        a(f"s_max_i32 s{sT1}, s{sT1}, 0")
        a(f"s_lshr_b32 s{sT2}, s{sT1}, 4")
        a(f"s_mul_i32 s{sT2}, s{sT2}, {KV_CH}")
        a(f"s_and_b32 s{sT1}, s{sT1}, 15")
        a(f"s_mul_i32 s{sT1}, s{sT1}, 640")
        a(f"s_add_u32 s{sT1}, s{sT1}, s{sT2}")
        a(f"s_add_u32 s{sAV+j}, s{sT1}, 10240")
    a(f"s_lshl_b32 s{sGO}, s{sS0}, 2")
    a(f"s_add_u32 s{sGO}, s{sGO}, {G_OFF}")
    a(f"v_mov_b32 v{vT+2}, 0")
    a(f"v_mov_b32 v{vT+3}, {ONES:#x}")
    if "vones" in OPT:
        a(f"v_mov_b32 v{vT+2}, {ONES:#x}")
    else:
        a(f"v_and_b32 v{vT+4}, 27, v{vT}")
        a.l.pop()
        a(f"v_cmp_eq_u32 vcc, 20, v{vT}")
        a(f"v_cmp_eq_u32 s[38:39], 24, v{vT}")
        a("s_nop 1")
        a("s_or_b64 vcc, vcc, s[38:39]")
        a("s_nop 1")
        a(f"v_cndmask_b32 v{vT+2}, v{vT+2}, v{vT+3}, vcc")
    a(f"v_mov_b32 v{vT+3}, v{vT+2}")
    for i in range(0, 12, 2):
        a(f"v_mov_b64 v[{vAV+i}:{vAV+i+1}], v[{vT+2}:{vT+3}]")
    for i in range(0, 16, 2):
        a(f"v_mov_b64 v[{vV1+i}:{vV1+i+1}], v[{vT+2}:{vT+3}]")
    a(f"s_lshr_b32 s{sT0}, s{sS0}, 4")
    a(f"s_mul_i32 s{sT0}, s{sT0}, {40*1024}")
    a(f"s_mul_i32 s{sT1}, s{sHEAD}, {5*256}")
    a(f"s_add_u32 s{sT0}, s{sT0}, s{sT1}")
    a(f"v_bfe_u32 v{vT+2}, v{vLANE}, 4, 1")
    a(f"v_mul_u32_u24 v{vT+2}, {40*1024}, v{vT+2}")
    a(f"v_and_b32 v{vT+3}, 15, v{vLANE}")
    a(f"v_lshl_add_u32 v{vT+3}, v{vT+3}, 4, v{vT+2}")
    a(f"v_lshrrev_b32 v{vT+2}, 5, v{vLANE}")
    a(f"v_lshl_add_u32 v{vT+3}, v{vT+2}, 8, v{vT+3}")
    a(f"v_add_u32 v{vOSA}, s{sT0}, v{vT+3}")
    a(f"s_getpc_b64 s[56:57]")
    a.lab("K2_PC")
    a(f"s_add_u32 s56, s56, K2_TABLE-K2_PC")
    a(f"s_addc_u32 s57, s57, 0")
    if not FUSE:
        a("s_lshr_b32 s36, s2, 3")
        a("s_lshl_b32 s36, s36, 3")
        a(f"s_add_u32 s36, s36, s{sW}")
        a("s_mul_i32 s36, s36, 50")
        a(f"v_min_u32 v{vPFA}, 49, v{vLANE}")
        a(f"v_add_u32 v{vPFA}, s36, v{vPFA}")
        a(f"v_lshlrev_b32 v{vPFA}, 7, v{vPFA}")
        a(f"v_add_u32 v{vPFA}, {WT_OFF}, v{vPFA}")
    if FUSE:
        a(f"s_mov_b32 s64, s{sHEAD}")
        a(f"s_mov_b32 s65, s{sQB}")
        a(f"s_mul_i32 s{sWS0}, s65, {200*1024}")
        a(f"s_lshl_b32 s{sT0}, s{sW}, 10")
        a(f"s_add_u32 s{sWS0}, s{sWS0}, s{sT0}")
        a(f"s_add_u32 s{sWS0}, s{sWS0}, {WT_OFF}")
        a(f"s_mov_b32 s{sWS}, s{sWS0}")
        a(f"s_mov_b32 s{sWL}, 0")
        a(f"s_mov_b32 s{sWC}, 2")
    a(f"s_mov_b32 s{sPASS}, 0")
    a(f"s_mul_i32 s37, s{sGRP}, {4*KV_CH}")
    stamp(a, 2)
    a("s_waitcnt vmcnt(0)")
    a(f"s_mov_b64 exec, s[{sLO}:{sLO+1}]")
    a(f"s_not_b64 exec, exec")
    for sg in range(2):
        a(f"v_mov_b32 v{vQ8[sg]}, 0")
        a(f"v_mov_b32 v{vQ8[sg]+1}, 0")
    a("s_mov_b64 exec, -1")
    a("s_barrier")
    stamp(a, 3)
    def rdK16(dst, rel_chunk, tt):
        base = vKe if tt % 2 == 0 else vKo
        o0 = rel_chunk * 40 + (tt >> 1) * 5
        return f"ds_read2st64_b64 v[{dst}:{dst+3}], v{base} offset0:{o0} offset1:{o0+1}"
    def rdK4(dst, rel_chunk, tt):
        return f"ds_read_b64 v[{dst}:{dst+1}], v{vK4c} offset:{rel_chunk*KV_CH + tt*1280 + 1024}"
    def voff(g):
        return (g // 16) * KV_CH + (g % 16) * 640
    def setbases():
        a(f"v_add_u32 v{vKe}, s37, v{vQO}")
        a(f"v_add_u32 v{vKo}, 1280, v{vKe}")
        a(f"v_add_u32 v{vK4c}, s37, v{vK8}")
        a(f"v_add_u32 v{vVc}, s37, v{vVA}")
        a(f"v_add_u32 v{vVc}, 10240, v{vVc}")
    def qk(dst, ka, kb, sg, c):
        return [f"v_mfma_f32_32x32x16_bf16 v[{dst}:{dst+15}], v[{ka}:{ka+3}], v[{vQ16[sg]}:{vQ16[sg]+3}], {c}",
                f"v_mfma_f32_32x32x8_bf16 v[{dst}:{dst+15}], v[{kb}:{kb+1}], v[{vQ8[sg]}:{vQ8[sg]+1}], v[{dst}:{dst+15}]"]
    def rowmax(m, regs, first=None):
        if first is None:
            a(f"v_max3_f32 v{m}, v{regs[0]}, v{regs[1]}, v{regs[2]}")
            rest = regs[3:]
        else:
            rest = regs
        i = 0
        while i + 1 < len(rest):
            a(f"v_max3_f32 v{m}, v{m}, v{rest[i]}, v{rest[i+1]}")
            i += 2
        if i < len(rest):
            a(f"v_max_f32 v{m}, v{m}, v{rest[i]}")
    a.lab("K2_START")
    setbases()
    a(rdK16(vKA, 0, 0))
    a(rdK4(vKB, 0, 0))
    a(f"s_mov_b64 exec, s[{sVM}:{sVM+1}]")
    a(f"ds_read_b128 v[{vV1}:{vV1+3}], v{vVc}")
    a("s_mov_b64 exec, -1")
    a(f"s_cmp_lg_u32 s{sPASS}, 0")
    a("s_cbranch_scc1 K2_HAVEM")
    a("s_waitcnt lgkmcnt(0)")
    for sg in range(2):
        for x in qk(S[sg], vKA, vKB, sg, "0"): a(x)
    a("s_nop 9")
    for sg in range(2):
        m = vT + 2 * sg
        rowmax(m, [S[sg] + i for i in range(16)])
        a(f"v_mov_b32 v{m+1}, v{m}")
    a("s_nop 1")
    for sg in range(2):
        m = vT + 2 * sg
        a(f"v_permlane32_swap_b32 v{m}, v{m+1}")
    a("s_nop 1")
    for sg in range(2):
        m = vT + 2 * sg
        a(f"v_max_f32 v{m}, v{m}, v{m+1}")
        a(f"v_sub_f32 v{NEG[sg]}, 0, v{m}")
        a(f"v_sub_f32 v{NEG[sg]+1}, 0, v{m}")
        for i in range(2, 16, 2):
            a(f"v_mov_b64 v[{NEG[sg]+i}:{NEG[sg]+i+1}], v[{NEG[sg]}:{NEG[sg]+1}]")
    a.lab("K2_HAVEM")
    a("s_waitcnt lgkmcnt(0)")
    a("s_nop 1")
    for x in qk(S[0], vKA, vKB, 0, f"v[{NEG[0]}:{NEG[0]+15}]"): a(x)
    a(f"s_mov_b32 s{sC}, 0")
    a("s_nop 15")
    stamp(a, 4)
    a.lab("K2_LOOP")
    if "chunkstamp" in OPT:
        a("s_memtime s[78:79]")
        a("s_waitcnt lgkmcnt(0)")
        a(f"s_mov_b32 s79, m0")
        a(f"s_mov_b32 m0, s{sC}")
        a("s_nop 0")
        a(f"v_writelane_b32 v247, s78, m0")
        a(f"s_mov_b32 m0, s79")
    aloads = [
        qloads(vQA16, vQA8, sQA, 0),
        [f"buffer_load_dwordx2 v[{vAK}:{vAK+1}], v{vAKO}, s[{SWS}:{SWS+3}], 0 offen",
         f"buffer_load_dwordx2 v[{vAK+2}:{vAK+3}], v{vAKO}, s[{SWS}:{SWS+3}], 0 offen offset:512",
         f"buffer_load_dwordx2 v[{vAK+8}:{vAK+9}], v{vAKO+1}, s[{SWS}:{SWS+3}], 0 offen offset:1024"],
        [f"buffer_load_dwordx2 v[{vAK+4}:{vAK+5}], v{vAKO+2}, s[{SWS}:{SWS+3}], 0 offen",
         f"buffer_load_dwordx2 v[{vAK+6}:{vAK+7}], v{vAKO+2}, s[{SWS}:{SWS+3}], 0 offen offset:512",
         f"buffer_load_dwordx2 v[{vAK+10}:{vAK+11}], v{vAKO+3}, s[{SWS}:{SWS+3}], 0 offen offset:1024"],
        [f"s_mov_b64 exec, s[{sVM}:{sVM+1}]"] +
        [f"buffer_load_dwordx4 v[{vAV+4*j}:{vAV+4*j+3}], v{vVA}, s[{SWS}:{SWS+3}], s{sAV+j} offen" for j in range(3)] +
        ["s_mov_b64 exec, -1"],
        [f"global_load_dwordx4 v[{vMX+4*j}:{vMX+4*j+3}], v{vL16}, s[56:57] offset:{j*1024}" for j in range(4)] +
        [f"v_add_u32 v{vT+7}, 4096, v{vL16}"] +
        [f"global_load_dwordx4 v[{vMY+4*j}:{vMY+4*j+3}], v{vT+7}, s[56:57] offset:{j*1024}" for j in range(2)] +
        [f"v_lshrrev_b32 v{vT+7}, 1, v{vK8}",
         f"buffer_load_dword v{vGATE}, v{vT+7}, s[{SWS}:{SWS+3}], s{sGO} offen"] +
        ([] if FUSE else [f"buffer_load_dword v{vDUM}, v{vPFA}, s[{SWS}:{SWS+3}], 0 offen"]),
    ]
    ool = []
    ptile = optval("ptile", 6)
    WIN = optval("win", 2)
    def wdma(j, p_expr_sgpr):
        return [f"s_add_u32 m0, s{sDO+j}, s{p_expr_sgpr}",
                f"s_add_u32 s{sT3}, s{sWS}, {j*8192}",
                f"buffer_load_dwordx4 v{vL16}, s[{SWS}:{SWS+3}], s{sT3} offen lds"]
    for tt in range(8):
        for sg in range(2):
            cur = S[sg]; nsg = sg ^ 1; nxt = S[nsg]
            nt = tt if sg == 0 else tt + 1
            ka = vKA + 4 * (nt & 1); kb = vKB + 2 * (nt & 1)
            if sg == 0 and tt == 7:
                a(f"s_cmp_lg_u32 s{sPASS}, 0")
                a(f"s_cbranch_scc1 K2_NOSYNC")
                a(f"s_cmp_ge_u32 s{sC}, 3")
                a(f"s_cbranch_scc1 K2_SYNC3" if (FUSE and WIN == 3) else f"s_cbranch_scc1 K2_NOSYNC")
                a("s_waitcnt vmcnt(0)")
                a("s_barrier")
                a.lab("K2_NOSYNC")
                if ptile >= 0: a("s_setprio 2")
                if FUSE and WIN == 3:
                    body = ["s_barrier"]
                    for j in range(5): body += wdma(j, sWL)
                    body += [f"s_add_u32 s{sWL}, s{sWL}, {KV_CH}", f"s_add_u32 s{sWS}, s{sWS}, {K3_BUF}", "s_branch K2_NOSYNC"]
                    ool.append(("K2_SYNC3", body))
            if sg == 0 and tt == ptile:
                a("s_setprio 0")
            if sg == 1:
                a("s_waitcnt lgkmcnt(0)")
            q = qk(nxt, ka, kb, nsg, f"v[{NEG[nsg]}:{NEG[nsg]+15}]")
            a(q[0])
            if sg == 0:
                n1 = tt + 1
                a(rdK16(vKA + 4 * (n1 & 1), n1 // 8, n1 % 8))
                a(rdK4(vKB + 2 * (n1 & 1), n1 // 8, n1 % 8))
            for i in range(0, 4):
                a(f"v_exp_f32 v{cur+i}, v{cur+i}")
            pt = tt - 1 if sg == 0 else tt
            v2p = vV2 + 4 * (pt & 1)
            a(f"v_mfma_f32_32x32x16_bf16 v[{O[nsg]}:{O[nsg]+15}], v[{v2p}:{v2p+3}], v[{vP+4}:{vP+7}], v[{O[nsg]}:{O[nsg]+15}]")
            if sg == 0:
                a(f"s_mov_b64 exec, s[{sVM}:{sVM+1}]")
                d = vV2 + 4 * (tt & 1)
                a(f"ds_read_b128 v[{d}:{d+3}], v{vVc} offset:{voff(2*tt+1)}")
                d = vV1 + 4 * ((tt + 1) & 1)
                a(f"ds_read_b128 v[{d}:{d+3}], v{vVc} offset:{voff(2*tt+2)}")
                a("s_mov_b64 exec, -1")
            if FUSE and WIN >= 2 and sg == 0 and 1 <= tt < 6:
                j = tt - 1
                a(f"s_cmp_ge_u32 s{sC}, s{sWC}")
                a(f"s_cbranch_scc1 K2_Y{tt}")
                body = wdma(j, sWL)
                if j == 4: body += [f"s_add_u32 s{sWL}, s{sWL}, {KV_CH}", f"s_add_u32 s{sWS}, s{sWS}, {K3_BUF}"]
                ool.append((f"K2_Y{tt}", body + [f"s_branch K2_YR{tt}"]))
                a.lab(f"K2_YR{tt}")
            if sg == 1 and tt < 5:
                a(f"s_cmp_lg_u32 s{sPASS}, 0")
                a(f"s_cbranch_scc1 K2_XR{tt}")
                a(f"s_cmp_lt_u32 s{sC}, 3")
                a(f"s_cbranch_scc0 K2_X{tt}")
                for x in dma1(tt): a(x)
                if tt == 4: a(f"s_add_u32 s{sDG}, s{sDG}, {KV_CH}")
                ool.append((f"K2_X{tt}", aloads[tt] + [f"s_branch K2_XR{tt}"]))
                a.lab(f"K2_XR{tt}")
            for i in range(4, 8):
                a(f"v_exp_f32 v{cur+i}, v{cur+i}")
            for i in range(4):
                a(f"v_cvt_pk_bf16_f32 v{vP+i}, v{cur+2*i}, v{cur+2*i+1}")
            a(q[1])
            for i in range(8, 12):
                a(f"v_exp_f32 v{cur+i}, v{cur+i}")
            v1 = vV1 + 4 * (tt & 1)
            a(f"v_mfma_f32_32x32x16_bf16 v[{O[sg]}:{O[sg]+15}], v[{v1}:{v1+3}], v[{vP}:{vP+3}], v[{O[sg]}:{O[sg]+15}]")
            for i in range(12, 16):
                a(f"v_exp_f32 v{cur+i}, v{cur+i}")
            for i in range(4, 8):
                a(f"v_cvt_pk_bf16_f32 v{vP+i}, v{cur+2*i}, v{cur+2*i+1}")
    for r in (vKe, vKo, vK4c, vVc):
        a(f"v_add_u32 v{r}, {KV_CH}, v{r}")
    a(f"s_add_u32 s{sC}, s{sC}, 1")
    a(f"s_cmp_lt_u32 s{sC}, 4")
    a("s_cbranch_scc1 K2_LOOP")
    stamp(a, 5)
    a(f"v_mfma_f32_32x32x16_bf16 v[{O[1]}:{O[1]+15}], v[{vV2+4}:{vV2+7}], v[{vP+4}:{vP+7}], v[{O[1]}:{O[1]+15}]")
    a("s_setprio 0")
    a(f"s_mov_b32 s{sFAIL}, 0")
    a(f"s_cmp_lg_u32 s{sPASS}, 0")
    a("s_cbranch_scc1 K2_XCHG")
    a(f"s_waitcnt vmcnt({(5 if WIN == 3 else 0) if FUSE else 1}) lgkmcnt(0)")
    a(f"s_mov_b64 exec, s[{sLO}:{sLO+1}]")
    a(f"s_not_b64 exec, exec")
    a(f"v_mov_b32 v{vQA8}, 0")
    a(f"v_mov_b32 v{vQA8+1}, 0")
    a("s_mov_b64 exec, -1")
    a(f"s_cmp_lg_u32 s{sS0}, 0")
    a("s_cbranch_scc1 K2_NOFIX")
    for i in range(8):
        a(f"v_mov_b32 v{vMX+i}, {f2u(NEGBIG):#x}")
    a.lab("K2_NOFIX")
    if "ts2" in OPT: stamp(a, 4)
    a(f"v_mfma_f32_32x32x16_bf16 v[{vS0}:{vS0+15}], v[{vAK}:{vAK+3}], v[{vQA16}:{vQA16+3}], v[{vMX}:{vMX+15}]")
    a(f"v_mfma_f32_32x32x16_bf16 v[{vS1}:{vS1+15}], v[{vAK+4}:{vAK+7}], v[{vQA16}:{vQA16+3}], v[{vMY}:{vMY+15}]")
    a(f"v_mfma_f32_32x32x8_bf16 v[{vS0}:{vS0+15}], v[{vAK+8}:{vAK+9}], v[{vQA8}:{vQA8+1}], v[{vS0}:{vS0+15}]")
    a(f"v_mfma_f32_32x32x8_bf16 v[{vS1}:{vS1+15}], v[{vAK+10}:{vAK+11}], v[{vQA8}:{vQA8+1}], v[{vS1}:{vS1+15}]")
    a(f"v_mov_b64 v[{vT+2}:{vT+3}], 0")
    a(f"v_mov_b64 v[{vT+4}:{vT+5}], 0")
    a(f"v_mov_b32 v{vT+1}, {f2u(2.0**64):#x}")
    a("s_nop 3")
    for i in range(0, 12, 2):
        for sg in range(2):
            a(f"v_pk_fma_f32 v[{vT+2}:{vT+3}], v[{O[sg]+i}:{O[sg]+i+1}], v[{vT+4}:{vT+5}], v[{vT+2}:{vT+3}]")
    a(f"v_add_f32 v{vT}, v{O[0]+12}, v{O[1]+12}")
    a(f"v_add_f32 v{vT+2}, v{vT+2}, v{vT+3}")
    a(f"v_add_f32 v{vT}, v{vT}, v{vT+2}")
    a(f"v_cmp_nlt_f32 vcc, v{vT}, v{vT+1}")
    a(f"v_mov_b32 v{O[0]+13}, v{NEG[0]}")
    a(f"v_mov_b32 v{O[1]+13}, v{NEG[1]}")
    a("s_nop 1")
    a("s_cmp_lg_u64 vcc, 0")
    a(f"s_cselect_b32 s{sFAIL}, 1, 0")
    if "forcefail" in OPT:
        a(f"s_cmp_eq_u32 s{sW}, 3")
        a(f"s_cselect_b32 s{sFAIL}, 1, s{sFAIL}")
    regs = [vS0 + i for i in range(16)] + [vS1 + i for i in range(8)]
    m = vT + 6
    rowmax(m, regs)
    a(f"v_mov_b32 v{m+1}, v{m}")
    a("s_nop 1")
    a(f"v_permlane32_swap_b32 v{m}, v{m+1}")
    a("s_nop 1")
    a(f"v_max_f32 v{m}, v{m}, v{m+1}")
    a(f"v_sub_f32 v{vKo}, 0, v{m}")
    a(f"v_sub_f32 v{vK4c}, 0, v{m}")
    for i in range(0, 24, 2):
        a(f"v_pk_add_f32 v[{regs[i]}:{regs[i]+1}], v[{regs[i]}:{regs[i]+1}], v[{vKo}:{vK4c}]")
    for i in range(24):
        a(f"v_exp_f32 v{regs[i]}, v{regs[i]}")
    a("s_nop 0")
    for i in range(12):
        a(f"v_cvt_pk_bf16_f32 v{vP+i}, v{regs[2*i]}, v{regs[2*i+1]}")
    OA = NEG[0]
    a("s_nop 1")
    for j in range(3):
        c = "0" if j == 0 else f"v[{OA}:{OA+15}]"
        a(f"v_mfma_f32_32x32x16_bf16 v[{OA}:{OA+15}], v[{vAV+4*j}:{vAV+4*j+3}], v[{vP+4*j}:{vP+4*j+3}], {c}")
    def rowsum(dst, acc):
        a(f"v_mov_b32 v{dst}, v{acc+12}")
        a(f"s_not_b64 exec, s[{sLO}:{sLO+1}]")
        a(f"v_mov_b32 v{dst}, v{acc+8}")
        a("s_mov_b64 exec, -1")
    OFL = " sc1" if FUSE else STORE_FLAGS
    def ostore(br, src):
        a("s_nop 1")
        a(f"v_permlane32_swap_b32 v{src}, v{src+2}")
        a(f"v_permlane32_swap_b32 v{src+1}, v{src+3}")
        a(f"s_mov_b32 s{sT1}, {O_OFF}")
        a(f"buffer_store_dwordx4 v[{src}:{src+3}], v{vOSA}, s[{SWS}:{SWS+3}], s{sT1} offen offset:{br*512}{OFL}")
    a("s_nop 15")
    rowsum(vT + 6, OA)
    a(f"v_rcp_f32 v{vT+6}, v{vT+6}")
    a("s_nop 0")
    a(f"v_mul_f32 v{vT+6}, v{vT+6}, v{vGATE}")
    for i in range(0, 12, 2):
        a(f"v_pk_mul_f32 v[{OA+i}:{OA+i+1}], v[{OA+i}:{OA+i+1}], v[{vT+6}:{vT+7}] op_sel_hi:[1,0]")
    for i in range(4):
        a(f"v_cvt_pk_bf16_f32 v{vP+i}, v{OA+2*i}, v{OA+2*i+1}")
    for i in range(2):
        a(f"v_cvt_pk_bf16_f32 v{vOB+4+i}, v{OA+8+2*i}, v{OA+9+2*i}")
    ostore(0, vP)
    a("s_branch K2_XCHG1")
    a.lab("K2_XCHG")
    a("s_nop 15")
    a(f"v_mov_b32 v{O[0]+13}, v{NEG[0]}")
    a(f"v_mov_b32 v{O[1]+13}, v{NEG[1]}")
    a.lab("K2_XCHG1")
    a(f"s_mul_i32 s{sT0}, s{sGRP}, {4*KV_CH}")
    a(f"s_lshl_b32 s{sT2}, s{sPR}, 12")
    a(f"s_add_u32 s{sT2}, s{sT2}, {3*KV_CH}")
    a(f"s_add_u32 s{sT0}, s{sT0}, s{sT2}")
    a(f"v_add_u32 v{vT}, s{sT0}, v{vL16}")
    a(f"s_xor_b32 s{sT0}, s{sGRP}, 1")
    a(f"s_mul_i32 s{sT0}, s{sT0}, {4*KV_CH}")
    a(f"s_add_u32 s{sT0}, s{sT0}, s{sT2}")
    a(f"v_add_u32 v{vT+1}, s{sT0}, v{vL16}")
    a(f"s_lshl_b32 s{sT0}, s{sW}, 2")
    a(f"s_add_u32 s{sT0}, s{sT0}, {3*KV_CH + 16384}")
    a(f"v_mov_b32 v{vT+2}, s{sT0}")
    a(f"v_mov_b32 v{vT+3}, s{sFAIL}")
    if "ts2" in OPT: stamp(a, 1)
    a("s_barrier")
    if "ts2" in OPT: stamp(a, 2)
    a(f"s_cmp_eq_u32 s{sGRP}, 0")
    a("s_cbranch_scc1 K2_XA")
    for j in range(4):
        a(f"ds_write_b128 v{vT}, v[{O[0]+4*j}:{O[0]+4*j+3}] offset:{j*1024}")
    a("s_branch K2_XB")
    a.lab("K2_XA")
    for j in range(4):
        a(f"ds_write_b128 v{vT}, v[{O[1]+4*j}:{O[1]+4*j+3}] offset:{j*1024}")
    a.lab("K2_XB")
    a(f"ds_write_b32 v{vT+2}, v{vT+3}")
    a(f"v_mov_b32 v{vT+2}, {3*KV_CH + 16384}")
    a("s_waitcnt lgkmcnt(0)")
    a("s_barrier")
    if "ts2" in OPT: stamp(a, 3)
    a(f"ds_read_b128 v[{vT+4}:{vT+7}], v{vT+2}")
    a(f"ds_read_b128 v[{vS0}:{vS0+3}], v{vT+2} offset:16")
    a(f"s_cmp_eq_u32 s{sGRP}, 0")
    a("s_cbranch_scc1 K2_XC")
    for j in range(4):
        a(f"ds_read_b128 v[{O[0]+4*j}:{O[0]+4*j+3}], v{vT+1} offset:{j*1024}")
    a("s_branch K2_XD")
    a.lab("K2_XC")
    for j in range(4):
        a(f"ds_read_b128 v[{O[1]+4*j}:{O[1]+4*j+3}], v{vT+1} offset:{j*1024}")
    a.lab("K2_XD")
    a("s_waitcnt lgkmcnt(4)")
    a(f"v_or3_b32 v{vT+4}, v{vT+4}, v{vT+5}, v{vT+6}")
    a(f"v_or3_b32 v{vT+4}, v{vT+4}, v{vT+7}, v{vS0}")
    a(f"v_or3_b32 v{vT+4}, v{vT+4}, v{vS0+1}, v{vS0+2}")
    a(f"v_or_b32 v{vT+4}, v{vT+4}, v{vS0+3}")
    a("s_nop 0")
    a(f"v_readfirstlane_b32 s{sT0}, v{vT+4}")
    a("s_nop 3")
    a(f"s_cmp_lg_u32 s{sT0}, 0")
    a("s_cbranch_scc1 K2_REDO")
    a("s_waitcnt lgkmcnt(0)")
    a(f"v_sub_f32 v{vT+2}, v{O[1]+13}, v{O[0]+13}")
    a(f"v_sub_f32 v{vT+3}, 0, v{vT+2}")
    a(f"v_min_f32 v{vT+2}, 0, v{vT+2}")
    a(f"v_min_f32 v{vT+3}, 0, v{vT+3}")
    a(f"v_exp_f32 v{vT+2}, v{vT+2}")
    a(f"v_exp_f32 v{vT+3}, v{vT+3}")
    rowsum(vT + 4, O[0])
    rowsum(vT + 5, O[1])
    a(f"v_mul_f32 v{vT+4}, v{vT+4}, v{vT+2}")
    a(f"v_fmac_f32 v{vT+4}, v{vT+5}, v{vT+3}")
    a(f"v_rcp_f32 v{vT+4}, v{vT+4}")
    a(f"v_sub_f32 v{vT+5}, 1.0, v{vGATE}")
    a("s_nop 0")
    a(f"v_mul_f32 v{vT+4}, v{vT+4}, v{vT+5}")
    a(f"v_mul_f32 v{vT+2}, v{vT+2}, v{vT+4}")
    a(f"v_mul_f32 v{vT+3}, v{vT+3}, v{vT+4}")
    for i in range(0, 12, 2):
        a(f"v_pk_mul_f32 v[{O[0]+i}:{O[0]+i+1}], v[{O[0]+i}:{O[0]+i+1}], v[{vT+2}:{vT+3}] op_sel_hi:[1,0]")
        a(f"v_pk_fma_f32 v[{O[0]+i}:{O[0]+i+1}], v[{O[1]+i}:{O[1]+i+1}], v[{vT+2}:{vT+3}], v[{O[0]+i}:{O[0]+i+1}] op_sel:[0,1,0] op_sel_hi:[1,1,1]")
    for i in range(4):
        a(f"v_cvt_pk_bf16_f32 v{vOB+i}, v{O[0]+2*i}, v{O[0]+2*i+1}")
    for i in range(2):
        a(f"v_cvt_pk_bf16_f32 v{vOB+6+i}, v{O[0]+8+2*i}, v{O[0]+9+2*i}")
    ostore(1, vOB)
    a(f"s_mov_b64 exec, s[{sLO}:{sLO+1}]")
    a(f"buffer_store_dwordx4 v[{vOB+4}:{vOB+7}], v{vOSA}, s[{SWS}:{SWS+3}], s{sT1} offen offset:1024{OFL}")
    a("s_mov_b64 exec, -1")
    if FUSE:
        if WIN:
            a(f"s_cmp_eq_u32 s{sPASS}, 0")
            a("s_cbranch_scc1 K2_WOK")
            a("s_barrier")
            a(f"s_mov_b32 s{sWL}, 0")
            a(f"s_mov_b32 s{sWS}, s{sWS0}")
            for p in range(WIN):
                for j in range(5):
                    for x in wdma(j, sWL): a(x)
                a(f"s_add_u32 s{sWL}, s{sWL}, {KV_CH}")
                a(f"s_add_u32 s{sWS}, s{sWS}, {K3_BUF}")
            a("s_waitcnt vmcnt(0)")
            a.lab("K2_WOK")
        stamp(a, 6)
        NPRE = 0
        if WIN == 3:
            a("s_barrier")
            a(f"s_mov_b32 s{sWL}, {3*KV_CH}")
            for j in range(5):
                for x in wdma(j, sWL): a(x)
            NPRE = 5
        elif WIN == 2:
            a(f"s_mov_b32 s{sWL}, {2*KV_CH}")
            for j in range(5):
                for x in wdma(j, sWL): a(x)
            a(f"s_add_u32 s{sWS}, s{sWS}, {K3_BUF}")
            NPRE = 5
        a(f"s_waitcnt vmcnt({NPRE})")
        if "tailstamps" in OPT: stamp(a, 1)
        a("s_barrier")
        if "tailstamps" in OPT: stamp(a, 2)
        a(f"s_cmp_lg_u32 s{sW}, 0")
        a("s_cbranch_scc1 K2_NOPOLL0")
        a(f"s_lshl_b32 s{sT0}, s{sQB}, 12")
        a(f"s_add_u32 s{sT0}, s{sT0}, {FL_OFF}")
        a(f"s_mov_b64 exec, s[{sLO}:{sLO+1}]")
        a(f"v_mov_b32 v{vT}, 1")
        a(f"v_lshlrev_b32 v{vT+5}, 7, v{vLANE}")
        a(f"buffer_atomic_add v{vT}, v{vT+5}, s[{SWS}:{SWS+3}], s{sT0} offen")
        a("s_mov_b64 exec, -1")
        a.lab("K2_NOPOLL0")
        WPOST = 4 if WIN == 3 else optval("wpost", 4)
        if WIN != 3:
            W0P = 3 if WIN == 2 else WIN
            a(f"s_mov_b32 s{sWL}, {W0P*KV_CH}")
            for p in range(W0P, WPOST):
                for j in range(5):
                    for x in wdma(j, sWL): a(x)
                a(f"s_add_u32 s{sWL}, s{sWL}, {KV_CH}")
                a(f"s_add_u32 s{sWS}, s{sWS}, {K3_BUF}")
        bufss = [((ss // 2) % 4) * KV_CH + (ss & 1) * 4 * KV_CH for ss in range(10)]
        pc = proj_core(a, "K2", SWS, 68, sW, 64, 65, 50, bufss,
                       lambda p, j, sM0: f"s_add_u32 m0, s{sDO+j}, {(p % 4)*KV_CH}", ({1: [4]} if WPOST == 4 else {0: [3], 1: [4]}), optval("k2opre", 4))
        pc.setup()
        srd(a, 68, 60, 61, 2048 * 1280)
        pc.addr_setup(0)
        if "tailstamps" in OPT: stamp(a, 3)
        a(f"s_cmp_lg_u32 s{sW}, 0")
        a("s_cbranch_scc1 K2_NOPOLL")
        a(f"s_lshl_b32 s{sT0}, s{sHEAD}, 3")
        a(f"s_add_u32 s{sT0}, s{sT0}, s{sQB}")
        a(f"s_lshl_b32 s{sT0}, s{sT0}, 7")
        a(f"s_add_u32 s{sT0}, s{sT0}, {FL_OFF}")
        a("s_mov_b64 exec, 1")
        a(f"v_mov_b32 v{vT+5}, 0")
        a(f"s_mov_b32 s{sT1}, 0")
        a.lab("K2_POLL")
        a(f"buffer_load_dword v{vT+4}, v{vT+5}, s[{SWS}:{SWS+3}], s{sT0} offen sc1")
        a("s_waitcnt vmcnt(0)")
        a(f"v_readfirstlane_b32 s{sT2}, v{vT+4}")
        a(f"s_add_u32 s{sT1}, s{sT1}, 1")
        a(f"s_cmp_ge_u32 s{sT2}, 32")
        a("s_cbranch_scc1 K2_POLLED")
        a(f"s_sleep {optval('psleep', 2)}")
        a(f"s_cmp_lt_u32 s{sT1}, 0x40000")
        a("s_cbranch_scc1 K2_POLL")
        a.lab("K2_POLLED")
        a("s_waitcnt vmcnt(0)")
        if "tailstamps" in OPT:
            stamp(a, 4)
        a("s_mov_b64 exec, -1")
        a.lab("K2_NOPOLL")
        a("s_waitcnt vmcnt(0)")
        a("s_barrier")
        stamp(a, 7)
        pc.body([("o", 0), ("o", 1), ("o", 2), ("o", 3)])
        if PROF: a("s_waitcnt vmcnt(0)")
        stamp(a, 8)
        stamp_flush(a, 1, 9, SWS, sW, vT)
        if "dbgtime" in OPT:
            a("s_waitcnt vmcnt(0)")
            a("s_memrealtime s[94:95]")
            a("s_waitcnt lgkmcnt(0)")
            a("s_sub_u32 s92, s92, 512")
            a("s_subb_u32 s93, s93, 0")
            srd(a, 84, 92, 93, 256)
            a("s_mov_b64 exec, 1")
            a("v_mov_b32 v20, 0")
            a("s_not_b32 s90, s90")
            a("v_mov_b32 v21, s90")
            a("buffer_atomic_umax v21, v20, s[84:87], 0 offen offset:8")
            a("v_mov_b32 v22, s94")
            a("buffer_atomic_umax v22, v20, s[84:87], 0 offen offset:12")
        a("s_endpgm")
    else:
        a("s_branch K2_DONE")
    a.lab("K2_REDO")
    a("s_waitcnt vmcnt(0) lgkmcnt(0)")
    a("s_barrier")
    a(f"s_mov_b32 s{sDG}, 0")
    for p in range(4):
        for j in range(5):
            for x in dma1(j): a(x)
        a(f"s_add_u32 s{sDG}, s{sDG}, {KV_CH}")
    a(f"s_mov_b32 s{sPASS}, 1")
    if FUSE: a(f"s_mov_b32 s{sWC}, 99")
    a(f"v_mov_b32 v{vT}, {f2u(-3.0e38):#x}")
    a(f"v_mov_b32 v{vT+2}, {f2u(-3.0e38):#x}")
    setbases()
    a(f"s_mov_b32 s{sC}, 0")
    a("s_waitcnt vmcnt(0)")
    a("s_barrier")
    a.lab("K2_MAXLOOP")
    for tt in range(8):
        a(rdK16(vKA, 0, tt))
        a(rdK4(vKB, 0, tt))
        a("s_waitcnt lgkmcnt(0)")
        for sg in range(2):
            for x in qk(S[sg], vKA, vKB, sg, "0"): a(x)
        a("s_nop 15")
        for sg in range(2):
            rowmax(vT + 2 * sg, [S[sg] + i for i in range(16)], first=True)
    for r in (vKe, vKo, vK4c):
        a(f"v_add_u32 v{r}, {KV_CH}, v{r}")
    a(f"s_add_u32 s{sC}, s{sC}, 1")
    a(f"s_cmp_lt_u32 s{sC}, 4")
    a("s_cbranch_scc1 K2_MAXLOOP")
    for sg in range(2):
        a(f"v_mov_b32 v{vT+2*sg+1}, v{vT+2*sg}")
    a("s_nop 1")
    for sg in range(2):
        a(f"v_permlane32_swap_b32 v{vT+2*sg}, v{vT+2*sg+1}")
    a("s_nop 1")
    for sg in range(2):
        a(f"v_max_f32 v{vT+2*sg}, v{vT+2*sg}, v{vT+2*sg+1}")
        for i in range(16):
            a(f"v_sub_f32 v{NEG[sg]+i}, 0, v{vT+2*sg}")
            a(f"v_mov_b32 v{O[sg]+i}, 0")
    for i in range(4):
        a(f"v_mov_b32 v{vP+4+i}, 0")
    a("s_branch K2_START")
    for lab, body in ool:
        a.lab(lab)
        for x in body: a(x)
    a.lab("K2_DONE")
    stamp(a, 6)
    if PROF: a("s_waitcnt vmcnt(0)")
    stamp(a, 7)
    if "chunkstamp" in OPT:
        a(f"s_lshl_b32 s97, s2, 3")
        a(f"s_add_u32 s97, s97, s{sW}")
        a(f"s_lshl_b32 s97, s97, 6")
        a(f"s_add_u32 s97, s97, {PROF_OFF + 3 * 0x100000}")
        a(f"v_lshlrev_b32 v{vT}, 2, v{vLANE}")
        a("s_mov_b64 exec, 0xff")
        a(f"buffer_store_dword v247, v{vT}, s[{SWS}:{SWS+3}], s97 offen")
        a("s_mov_b64 exec, -1")
    stamp_flush(a, 1, 8, SWS, sW, vT)
    a.lab("K2_END")
    a("s_endpgm")
    a.raw(".p2align 4")
    a.lab("K2_TABLE")
    tab = mask_table()
    for i in range(0, len(tab), 8):
        a.raw("    .long " + ", ".join(f"{x:#x}" for x in tab[i:i+8]))
    a.lab("K2_TEXT_END")
    return name, NV

K3_BUF = 40 * 1024
K3_NBUF = 3
K3_LDS = K3_BUF * K3_NBUF

K3_GRID = 256
def proj_core(a, pfx, SWS, SOUT, sW, sMT, sNT, sbase, bufss, wm0, wplan, OPRE, vLANE=1, vL16=2):
    sMB, sKH, sT0, sT1, sT2, sOB, sWB, sM0, sOUT = [sbase + i for i in range(9)]
    vWR = 6; vWA = 7; vT = 8
    vOF = 20; vWF = 100; vACC = 180
    oflags = " sc1" if pfx == "K2" else ""
    issued = []
    def setup():
        a(f"s_and_b32 s{sMB}, s{sW}, 3")
        a(f"s_lshr_b32 s{sKH}, s{sW}, 2")
        a(f"s_lshl_b32 s{sM0}, s{sW}, 10")
        a(f"s_mul_i32 s{sWB}, s{sNT}, {200*1024}")
        a(f"s_add_u32 s{sWB}, s{sWB}, s{sM0}")
        a(f"s_add_u32 s{sWB}, s{sWB}, {WT_OFF}")
        a(f"s_lshl_b32 s{sOB}, s{sMT}, 2")
        a(f"s_add_u32 s{sOB}, s{sOB}, s{sMB}")
        a(f"s_mul_i32 s{sOUT}, s{sOB}, {16*1280}")
        a(f"s_mul_i32 s{sOB}, s{sOB}, 40")
        a(f"s_lshl_b32 s{sT0}, s{sKH}, 1")
        a(f"s_add_u32 s{sOB}, s{sOB}, s{sT0}")
        a(f"s_lshl_b32 s{sOB}, s{sOB}, 10")
        a(f"s_add_u32 s{sOB}, s{sOB}, {O_OFF}")
        a(f"s_mul_i32 s{sT2}, s{sNT}, 160")
        a(f"s_add_u32 s{sOUT}, s{sOUT}, s{sT2}")
    def wgroup(p):
        g = []
        for j in range(5):
            g.append(([wm0(p, j, sM0),
                       f"s_add_u32 s{sT1}, s{sWB}, {p*K3_BUF + j*8192}",
                       f"buffer_load_dwordx4 v{vL16}, s[{SWS}:{SWS+3}], s{sT1} offen lds"], ("W", p)))
        return g
    def ogroup(ss):
        g = []
        for i in range(2):
            d = vOF + (ss * 2 + i) * 4
            g.append(([f"s_add_u32 s{sT0}, s{sOB}, {(ss*4 + i)*1024}",
                       f"buffer_load_dwordx4 v[{d}:{d+3}], v{vL16}, s[{SWS}:{SWS+3}], s{sT0} offen{oflags}"], ("o", ss)))
        return g
    def emit(item):
        for x in item[0]: a(x)
        issued.append(item[1])
    def vm(need):
        last = max([i for i, t in enumerate(issued) if t in need], default=-1)
        return min(63, len(issued) - 1 - last)
    def reads(ss):
        st = ss & 1
        off = bufss[ss]
        out = [f"v_add_u32 v{vWA}, {off}, v{vWR}"]
        for i in range(2):
            for b in range(5):
                r = vWF + st * 40 + (i * 5 + b) * 4
                out.append(f"ds_read_b128 v[{r}:{r+3}], v{vWA} offset:{(i*5 + b)*1024}")
        return out
    def addr_setup(xbase):
        a(f"s_mul_i32 s{sT0}, s{sKH}, {10*1024}")
        a(f"v_add_u32 v{vWR}, s{sT0}, v{vL16}")
        a(f"v_and_b32 v{vT+1}, 15, v{vLANE}")
        a(f"v_mul_u32_u24 v{vT+1}, 1280, v{vT+1}")
        a(f"v_lshrrev_b32 v{vT+2}, 4, v{vLANE}")
        a(f"v_lshl_add_u32 v{vT+1}, v{vT+2}, 3, v{vT+1}")
        a(f"s_mul_i32 s{sT0}, s{sW}, {3*1024}")
        a(f"s_add_u32 s{sT0}, s{sT0}, {xbase}")
        a(f"v_add_u32 v{vT}, s{sT0}, v{vL16}")
        a(f"s_xor_b32 s{sT2}, s{sW}, 4")
        a(f"s_mul_i32 s{sT2}, s{sT2}, {3*1024}")
        a(f"s_add_u32 s{sT2}, s{sT2}, {xbase}")
        a(f"v_add_u32 v{vT+3}, s{sT2}, v{vL16}")
    def body(first):
        for kind, idx in first:
            for it in (wgroup(idx) if kind == "W" else ogroup(idx)): emit(it)
        nxt_o = max([idx for kind, idx in first if kind == "o"], default=-1) + 1
        if pfx == "K3": stamp(a, 1)
        a(f"s_waitcnt vmcnt({vm({('W', 0)})})")
        a("s_barrier")
        if pfx == "K3": stamp(a, 2)
        for r in reads(0): a(r)
        for ss in range(10):
            p = ss // 2
            need = {("o", ss)}
            if ss % 2 == 1 and p + 1 < 5: need.add(("W", p + 1))
            a(f"s_waitcnt vmcnt({vm(need)}) lgkmcnt(0)")
            if ss % 2 == 1 and ss < 9: a("s_barrier")
            mf = []
            for i in range(2):
                for b in range(5):
                    acc = vACC + b * 4
                    wf = vWF + (ss & 1) * 40 + (i * 5 + b) * 4
                    of = vOF + (ss * 2 + i) * 4
                    c = "0" if (ss == 0 and i == 0) else f"v[{acc}:{acc+3}]"
                    mf.append(f"v_mfma_f32_16x16x32_bf16 v[{acc}:{acc+3}], v[{wf}:{wf+3}], v[{of}:{of+3}], {c}")
            rd = reads(ss + 1) if ss < 9 else []
            ld = []
            for p2 in wplan.get(ss, []): ld += wgroup(p2)
            while nxt_o < 10 and nxt_o <= ss + OPRE:
                ld += ogroup(nxt_o); nxt_o += 1
            ex = [("r", r) for r in rd]
            mixed = []
            step = max(1, len(ex) // max(1, len(ld))) if ld else 0
            k = 0
            for i, e in enumerate(ex):
                mixed.append(e)
                if ld and k < len(ld) and (i + 1) % step == 0:
                    mixed.append(("l", ld[k])); k += 1
            while k < len(ld):
                mixed.append(("l", ld[k])); k += 1
            k = 0
            for i, m in enumerate(mf):
                a(m)
                tgt = min(len(mixed), ((i + 1) * len(mixed) + 8) // 9)
                while k < tgt:
                    if mixed[k][0] == "r": a(mixed[k][1])
                    else: emit(mixed[k][1])
                    k += 1
        if pfx == "K3": stamp(a, 3)
        a("s_barrier")
        a(f"s_cmp_eq_u32 s{sKH}, 0")
        a(f"s_cbranch_scc1 {pfx}_PW0")
        a("s_nop 4")
        for b in range(3):
            a(f"ds_write_b128 v{vT}, v[{vACC+b*4}:{vACC+b*4+3}] offset:{b*1024}")
        a("s_waitcnt lgkmcnt(0)")
        a("s_barrier")
        def fin(blocks):
            for n, b in enumerate(blocks):
                a(f"ds_read_b128 v[{vOF+4*n}:{vOF+4*n+3}], v{vT+3} offset:{n*1024}")
            for n, b in enumerate(blocks):
                a(f"s_waitcnt lgkmcnt({len(blocks)-1-n})")
                for i in range(0, 4, 2):
                    a(f"v_pk_add_f32 v[{vOF+4*n+i}:{vOF+4*n+i+1}], v[{vOF+4*n+i}:{vOF+4*n+i+1}], v[{vACC+4*b+i}:{vACC+4*b+i+1}]")
                a(f"v_cvt_pk_bf16_f32 v{vWF+2*n}, v{vOF+4*n}, v{vOF+4*n+1}")
                a(f"v_cvt_pk_bf16_f32 v{vWF+2*n+1}, v{vOF+4*n+2}, v{vOF+4*n+3}")
                a(f"buffer_store_dwordx2 v[{vWF+2*n}:{vWF+2*n+1}], v{vT+1}, s[{SOUT}:{SOUT+3}], s{sOUT} offen offset:{b*32}")
        fin([3, 4])
        a(f"s_branch {pfx}_PFIN")
        a.lab(f"{pfx}_PW0")
        a("s_nop 4")
        for n, b in enumerate((3, 4)):
            a(f"ds_write_b128 v{vT}, v[{vACC+b*4}:{vACC+b*4+3}] offset:{n*1024}")
        a("s_waitcnt lgkmcnt(0)")
        a("s_barrier")
        fin([0, 1, 2])
        a.lab(f"{pfx}_PFIN")
    class C: pass
    c = C(); c.setup = setup; c.wgroup = wgroup; c.emit = emit; c.addr_setup = addr_setup; c.body = body; c.issued = issued
    return c

def gen_k3(a):
    name = "k3_proj_kernel"
    kernel_head(a, name)
    SWS = 8; SOUT = 20
    sW = 24; sMT = 27; sNT = 28
    vLANE = 1; vL16 = 2; vT = 8
    NV = 200
    a(f"s_cmp_ge_u32 s2, {K3_GRID}")
    a("s_cbranch_scc1 K3_END")
    stamp(a, 0)
    a("s_load_dwordx2 s[4:5], s[0:1], 72")
    a("s_load_dwordx2 s[36:37], s[0:1], 56")
    a(f"v_and_b32 v{vLANE}, 63, v0")
    a(f"v_lshrrev_b32 v{vT}, 6, v0")
    a(f"s_and_b32 s{sMT}, s2, 7")
    a(f"v_readfirstlane_b32 s{sW}, v{vT}")
    a(f"s_lshl_b32 s{sMT}, s{sMT}, 2")
    a(f"s_lshr_b32 s29, s2, 6")
    a(f"s_add_u32 s{sMT}, s{sMT}, s29")
    a(f"s_lshr_b32 s{sNT}, s2, 3")
    a(f"s_and_b32 s{sNT}, s{sNT}, 7")
    a(f"v_lshlrev_b32 v{vL16}, 4, v{vLANE}")
    bufss = [((ss // 2) % 3) * K3_BUF + (ss & 1) * 20 * 1024 for ss in range(10)]
    c = proj_core(a, "K3", SWS, SOUT, sW, sMT, sNT, 40, bufss, lambda p, j, sM0: f"s_add_u32 m0, s{sM0}, {(p % 3)*K3_BUF + j*8192}",
                  {0: [2], 1: [3], 3: [4]}, optval("k3opre", 4))
    c.setup()
    a("s_waitcnt lgkmcnt(0)")
    srd(a, SWS, 4, 5, WS_USED)
    srd(a, SOUT, 36, 37, 2048 * 1280)
    c.addr_setup(0)
    c.body([("W", 0), ("o", 0), ("o", 1), ("W", 1), ("o", 2), ("o", 3)])
    stamp(a, 4)
    if PROF: a("s_waitcnt vmcnt(0)")
    stamp(a, 5)
    stamp_flush(a, 2, 6, SWS, sW, vT)
    a.lab("K3_END")
    a("s_endpgm")
    return name, NV

def build(kernels=("k1", "k2", "k3")):
    a = Asm()
    fuse = "nofuse" not in OPT
    k3line = "" if fuse else f"; @launch kernel=k3_proj_kernel grid=({K3_GRID},1,1) block=(512,1,1) lds={K3_LDS}\n"
    hdr = f"""; Gated mix of sliding-window dilated attention (A) and full softmax MHA (B): three launches.
; @launch kernel=k1_qkv_kernel grid=(256,1,1) block=(512,1,1) lds={K1_LDS}
; @launch kernel=k2_attn_kernel grid=(256,1,1) block=(512,1,1) lds={K2_LDS}
{k3line}.amdgcn_target "amdgcn-amd-amdhsa--gfx950"
.text
"""
    descs = []
    for g in ((gen_k1, gen_k2) if fuse else (gen_k1, gen_k2, gen_k3)):
        n, nv = g(a)
        descs.append(kernel_desc(n, nv))
    txt = a.text()
    txt = txt.replace("K2CODE_WAVES", "((K2_TEXT_END-k2_attn_kernel) >> 13)")
    return hdr + txt + '.section .rodata,"a"\n' + "".join(".p2align 6\n" + d for d in descs)

if __name__ == "__main__":
    if len(sys.argv) > 2 and sys.argv[2] == "prof":
        PROF = True
    OPT.update(sys.argv[3:])
    if "st_sc1" in OPT: STORE_FLAGS = " sc1"
    if "st_nt" in OPT: STORE_FLAGS = " nt"
    if "st_sc01" in OPT: STORE_FLAGS = " sc0 sc1"
    if "st_sc1nt" in OPT: STORE_FLAGS = " sc1 nt"
    if "st_all" in OPT: STORE_FLAGS = " sc0 sc1 nt"
    out = sys.argv[1] if len(sys.argv) > 1 else f"cdna_kernels/{NAME}.s"
    open(out, "w").write(build())
    print("wrote", out)
```

```python
import sys, struct

NAME = "gated_mix__sliding_local_dilated__softmax_full_mha__prompt"

KV_HEAD = 163840
KV_CH = 20480
Q_HEAD = 81920
Q_CH = 10240
KVA_OFF = 0
KVB_OFF = 32 * KV_HEAD
QA_OFF = 2 * 32 * KV_HEAD
QB_OFF = QA_OFF + 32 * Q_HEAD
G_OFF = QB_OFF + 32 * Q_HEAD
FL_OFF = 0xF04000
WT_OFF = 0xF10000
O_OFF = 0x1100000
O_SIZE = 128 * 40 * 1024
WS_USED = 0x2400000
QSCALE = (20 ** -0.5) * 1.4426950408889634

def f2u(x):
    return struct.unpack("<I", struct.pack("<f", x))[0]

class Asm:
    def __init__(self):
        self.l = []
    def __call__(self, s):
        for x in s.strip("\n").split("\n"):
            self.l.append("    " + x.strip())
    def lab(self, s):
        self.l.append(s + ":")
    def raw(self, s):
        self.l.append(s)
    def text(self):
        return "\n".join(self.l) + "\n"

def vr(b, n=1):
    return f"v{b}" if n == 1 else f"v[{b}:{b+n-1}]"
def sr(b, n=1):
    return f"s{b}" if n == 1 else f"s[{b}:{b+n-1}]"

def kernel_head(a, name):
    a.raw(f".globl {name}")
    a.raw(".p2align 8")
    a.raw(f".type {name},@function")
    a.lab(name)

def kernel_desc(name, nv, ns=102):
    acc = (nv + 3) // 4 * 4
    return f""".amdhsa_kernel {name}
  .amdhsa_next_free_vgpr {nv}
  .amdhsa_next_free_sgpr {ns}
  .amdhsa_accum_offset {acc}
  .amdhsa_group_segment_fixed_size 0
  .amdhsa_kernarg_size 80
  .amdhsa_user_sgpr_count 2
  .amdhsa_user_sgpr_kernarg_segment_ptr 1
  .amdhsa_system_sgpr_workgroup_id_x 1
  .amdhsa_float_denorm_mode_32 3
  .amdhsa_float_denorm_mode_16_64 3
.end_amdhsa_kernel
"""

PROF = False
OPT = set()
STORE_FLAGS = " sc1"
PROF_OFF = 0x2000000
def optval(name, default):
    for o in OPT:
        if o.startswith(name + "="): return int(o.split("=")[1])
    return default
def stamp(a, i):
    if PROF:
        a(f"s_memtime s[{80+2*i}:{81+2*i}]")
        if i == 0: a("s_memrealtime s[76:77]")
def stamp_flush(a, kidx, n, srdreg, wave_sgpr, vtmp):
    if not PROF: return
    a("s_memrealtime s[98:99]")
    a("s_waitcnt lgkmcnt(0)")
    a(f"s_lshl_b32 s75, s2, 3")
    a(f"s_add_u32 s75, s75, s{wave_sgpr}")
    a(f"s_lshl_b32 s75, s75, 6")
    a(f"s_add_u32 s75, s75, {PROF_OFF + kidx * 0x100000}")
    a("s_mov_b64 exec, 1")
    a(f"v_mov_b32 v{vtmp+1}, 0")
    for i in range(n):
        a(f"v_mov_b32 v{vtmp}, s{80+2*i}")
        a(f"buffer_store_dword v{vtmp}, v{vtmp+1}, s[{srdreg}:{srdreg+3}], s75 offen offset:{4*i}")
    a(f"v_mov_b32 v{vtmp}, s76")
    a(f"buffer_store_dword v{vtmp}, v{vtmp+1}, s[{srdreg}:{srdreg+3}], s75 offen offset:56")
    a(f"v_mov_b32 v{vtmp}, s98")
    a(f"buffer_store_dword v{vtmp}, v{vtmp+1}, s[{srdreg}:{srdreg+3}], s75 offen offset:60")

def srd(a, d, lo, hi, size):
    a(f"s_mov_b32 s{d}, s{lo}")
    a(f"s_and_b32 s{d+1}, s{hi}, 0xffff")
    a(f"s_mov_b32 s{d+2}, {size}")
    a(f"s_mov_b32 s{d+3}, 0x00020000")

K1_XB = 32768
K1_BUF = 32768 + 16384
K1_NBUF = 3
K1_LDS = K1_BUF * K1_NBUF

def gen_k1(a):
    PF0 = optval("pf0", 3)
    name = "k1_qkv_kernel"
    kernel_head(a, name)
    SX = 12; SW = 16; SWS = 20; SG = 24
    sW = 32; sWM = 33; sWN = 34; sI = 35; sRD = 36; sWRB = 37
    sXS = 38; sWS1 = 39; sXM0 = 41; sWM0 = 42; sMT = 43; sNT = 44; sBR = 45
    sTMP = 46; sTMP2 = 47; sTMP3 = 48; sTMP4 = 49
    sSEC = 50; sFB = 51; sEO = 52; sD = 53; sHS = 54; sSC = 56
    vLANE = 1; vXO = 2; vWO = 4
    vXR = 6
    vWR = 10
    vXA = 12
    vWA = 16
    vT = 18
    vXF = 32
    vWF = 64
    vACC = 96
    vEO = 160
    vPF = 176
    NV = 184

    a("s_cmp_ge_u32 s2, 256")
    a("s_cbranch_scc1 K1_END")
    stamp(a, 0)
    if "dbgtime" in OPT: a("s_memrealtime s[90:91]")
    a("s_lshr_b32 s45, s2, 2")
    a("s_and_b32 s45, s45, 1")
    a("s_mul_i32 s46, s45, 24")
    a("s_add_u32 s46, s46, 8")
    a("s_load_dwordx2 s[10:11], s[0:1], s46")
    a("s_load_dwordx2 s[8:9], s[0:1], 0")
    a("s_load_dwordx2 s[4:5], s[0:1], 72")
    a("s_load_dwordx2 s[6:7], s[0:1], 48")
    a(f"v_and_b32 v{vLANE}, 63, v0")
    a(f"v_lshrrev_b32 v{vT}, 6, v0")
    a(f"s_lshr_b32 s{sTMP}, s2, 3")
    a(f"v_readfirstlane_b32 s{sW}, v{vT}")
    a(f"s_and_b32 s{sMT}, s2, 3")
    a(f"s_lshl_b32 s{sMT}, s{sMT}, 1")
    a(f"s_and_b32 s{sTMP2}, s{sTMP}, 1")
    a(f"s_add_u32 s{sMT}, s{sMT}, s{sTMP2}")
    a(f"s_lshr_b32 s{sNT}, s{sTMP}, 1")
    a(f"s_cmp_ge_u32 s{sNT}, 15")
    a("s_cbranch_scc1 K1_GATE")
    a(f"s_and_b32 s{sWM}, s{sW}, 3")
    a(f"s_lshr_b32 s{sWN}, s{sW}, 2")
    a(f"v_lshrrev_b32 v{vT}, 3, v{vLANE}")
    a(f"v_lshrrev_b32 v{vT+1}, 4, v{vLANE}")
    a(f"v_xor_b32 v{vT+1}, v{vT+1}, v{vLANE}")
    a(f"v_and_b32 v{vT+1}, 7, v{vT+1}")
    a(f"s_lshl_b32 s{sTMP}, s{sMT}, 8")
    a(f"s_lshl_b32 s{sTMP2}, s{sW}, 5")
    a(f"s_add_u32 s{sTMP}, s{sTMP}, s{sTMP2}")
    a(f"v_add_u32 v{vT}, s{sTMP}, v{vT}")
    a(f"v_mul_u32_u24 v{vT}, 1280, v{vT}")
    a(f"v_lshl_add_u32 v{vXO}, v{vT+1}, 4, v{vT}")
    a(f"v_xor_b32 v{vXO+1}, 64, v{vXO}")
    a(f"v_lshrrev_b32 v{vT}, 4, v{vLANE}")
    a(f"v_lshlrev_b32 v{vT+1}, 2, v{vT}")
    a(f"v_xor_b32 v{vT+1}, v{vT+1}, v{vLANE}")
    a(f"v_and_b32 v{vT+1}, 15, v{vT+1}")
    a(f"s_lshl_b32 s{sTMP}, s{sW}, 3")
    a(f"v_add_u32 v{vT}, s{sTMP}, v{vT}")
    a(f"v_mul_u32_u24 v{vT}, 3840, v{vT}")
    a(f"v_lshl_add_u32 v{vT}, v{vT+1}, 4, v{vT}")
    a(f"s_lshl_b32 s{sTMP}, s{sNT}, 8")
    a(f"v_add_u32 v{vWO}, s{sTMP}, v{vT}")
    a(f"s_lshl_b32 s{sXM0}, s{sW}, 12")
    a(f"s_lshl_b32 s{sWM0}, s{sW}, 11")
    a(f"s_add_u32 s{sWM0}, s{sWM0}, {K1_XB}")
    a("s_waitcnt lgkmcnt(0)")
    srd(a, SX, 8, 9, 2048 * 1280)
    srd(a, SW, 10, 11, 640 * 3840)

    def dma_list(buf_s, inloop=False):
        g = []
        if "k1nodma" in OPT and inloop: return [["s_nop 0"]] * 6
        for i in range(4):
            g.append([f"s_add_u32 m0, s{buf_s}, s{sXM0}" if i == 0 else f"s_add_u32 m0, m0, 1024",
                      f"s_add_u32 s{sTMP3}, s{sXS}, {i*8*1280}",
                      f"buffer_load_dwordx4 v{vXO + (i & 1)}, s[{SX}:{SX+3}], s{sTMP3} offen lds"])
        for i in range(2):
            g.append([f"s_add_u32 m0, s{buf_s}, s{sWM0}" if i == 0 else f"s_add_u32 m0, m0, 1024",
                      f"s_add_u32 s{sTMP3}, s{sWS1}, {i*4*3840}",
                      f"buffer_load_dwordx4 v{vWO}, s[{SW}:{SW+3}], s{sTMP3} offen lds"])
        g[-1] = g[-1] + [f"s_add_u32 s{sXS}, s{sXS}, 128", f"s_add_u32 s{sWS1}, s{sWS1}, {64*3840}"]
        return g
    a(f"s_mov_b32 s{sXS}, 0")
    a(f"s_mov_b32 s{sWS1}, 0")
    a(f"s_mov_b32 s{sWRB}, 0")
    for g in dma_list(sWRB):
        for x in g: a(x)
    srd(a, SWS, 4, 5, WS_USED)
    a(f"v_and_b32 v{vT}, 31, v{vLANE}")
    a(f"v_lshrrev_b32 v{vT+1}, 5, v{vLANE}")
    a(f"v_bfe_u32 v{vT+2}, v{vLANE}, 1, 3")
    a(f"v_xor_b32 v{vT+2}, v{vT+2}, v{vT+1}")
    a(f"v_lshlrev_b32 v{vT+2}, 4, v{vT+2}")
    a(f"v_lshl_add_u32 v{vXR}, v{vT}, 7, v{vT+2}")
    a(f"s_lshl_b32 s{sTMP}, s{sWM}, 13")
    a(f"v_add_u32 v{vXR}, s{sTMP}, v{vXR}")
    for kk in range(1, 4):
        a(f"v_xor_b32 v{vXR+kk}, {kk << 5}, v{vXR}")
    a(f"v_bfe_u32 v{vT+2}, v{vLANE}, 2, 2")
    a(f"v_lshl_add_u32 v{vT+3}, v{vT+1}, 3, v{vT+2}")
    a(f"v_lshlrev_b32 v{vT+3}, 8, v{vT+3}")
    a(f"v_and_b32 v{vT+4}, 3, v{vLANE}")
    a(f"v_lshl_add_u32 v{vT+3}, v{vT+4}, 3, v{vT+3}")
    a(f"v_bfe_u32 v{vT+4}, v{vLANE}, 4, 1")
    a(f"v_lshl_add_u32 v{vT+3}, v{vT+4}, 5, v{vT+3}")
    a(f"v_add_u32 v{vT+3}, {K1_XB}, v{vT+3}")
    a(f"s_lshl_b32 s{sTMP}, s{sWN}, 1")
    for bl in range(2):
        a(f"s_add_u32 s{sTMP2}, s{sTMP}, {bl}")
        a(f"v_xor_b32 v{vT+5}, s{sTMP2}, v{vT+2}")
        a(f"v_lshl_add_u32 v{vWR+bl}, v{vT+5}, 6, v{vT+3}")
    PF = "k1pf" in OPT
    if PF:
        a(f"s_lshr_b32 s{sTMP}, s2, 3")
        a(f"s_cmp_lt_u32 s{sW}, 6")
        a("s_cbranch_scc0 K1_PFX")
        a(f"s_mul_i32 s{sTMP}, s{sTMP}, 6")
        a(f"s_add_u32 s{sTMP}, s{sTMP}, s{sW}")
        a(f"s_mul_i32 s{sTMP}, s{sTMP}, 11")
        a(f"v_min_u32 v{vT}, 10, v{vLANE}")
        a(f"v_add_u32 v{vT}, s{sTMP}, v{vT}")
        a(f"v_min_u32 v{vT}, 1919, v{vT}")
        a(f"v_mul_u32_u24 v{vT+1}, 34953, v{vT}")
        a(f"v_lshrrev_b32 v{vT+1}, 20, v{vT+1}")
        a(f"v_mul_u32_u24 v{vT+2}, 30, v{vT+1}")
        a(f"v_sub_u32 v{vT+2}, v{vT}, v{vT+2}")
        a(f"v_mul_u32_u24 v{vT+1}, 3840, v{vT+1}")
        a(f"v_lshl_add_u32 v{vPF}, v{vT+2}, 7, v{vT+1}")
        for i in range(4): a(f"s_mov_b32 s{64+i}, s{SW+i}")
        a(f"s_mov_b32 s68, {64*3840}")
        a("s_branch K1_PFD")
        a.lab("K1_PFX")
        a(f"s_lshl_b32 s{sTMP}, s{sTMP}, 1")
        a(f"s_add_u32 s{sTMP}, s{sTMP}, s{sW}")
        a(f"s_sub_u32 s{sTMP}, s{sTMP}, 6")
        a(f"s_mul_i32 s{sTMP}, s{sTMP}, 9")
        a(f"v_min_u32 v{vT}, 8, v{vLANE}")
        a(f"v_add_u32 v{vT}, s{sTMP}, v{vT}")
        a(f"v_min_u32 v{vT}, 511, v{vT}")
        a(f"s_and_b32 s{sTMP}, s2, 3")
        a(f"s_lshl_b32 s{sTMP}, s{sTMP}, 9")
        a(f"v_add_u32 v{vT}, s{sTMP}, v{vT}")
        a(f"v_mul_u32_u24 v{vPF}, 1280, v{vT}")
        for i in range(4): a(f"s_mov_b32 s{64+i}, s{SX+i}")
        a(f"s_mov_b32 s68, 128")
        a.lab("K1_PFD")
        a(f"s_mul_i32 s69, s68, {PF0}")
    def pf_group():
        return [f"buffer_load_dword v{vPF+1}, v{vPF}, s[64:67], s69 offen", f"s_add_u32 s69, s69, s68"]
    a(f"s_mul_i32 s{sSEC}, s{sNT}, 52")
    a(f"s_lshr_b32 s{sSEC}, s{sSEC}, 8")
    a(f"s_mul_i32 s{sTMP}, s{sSEC}, 5")
    a(f"s_sub_u32 s{sFB}, s{sNT}, s{sTMP}")
    a(f"s_lshl_b32 s{sFB}, s{sFB}, 7")
    a(f"s_lshl_b32 s{sTMP}, s{sWN}, 6")
    a(f"s_add_u32 s{sFB}, s{sFB}, s{sTMP}")
    a(f"s_cmp_eq_u32 s{sSEC}, 2")
    a("s_cbranch_scc1 K1_VPREP")
    a(f"s_cmp_eq_u32 s{sSEC}, 0")
    a(f"s_cselect_b32 s{sSC}, {f2u(QSCALE):#x}, 1.0")
    a(f"s_mov_b32 s{sSC+1}, s{sSC}")
    a(f"s_mov_b32 s{sTMP}, {KV_HEAD}")
    a(f"s_cselect_b32 s{sHS}, {Q_HEAD}, s{sTMP}")
    a(f"s_mov_b32 s{sTMP}, {KV_CH}")
    a(f"s_cselect_b32 s{sTMP2}, {Q_CH}, s{sTMP}")
    a(f"s_mul_i32 s{sEO}, s{sMT}, s{sTMP2}")
    a(f"s_mul_i32 s{sTMP2}, s{sBR}, {QB_OFF - QA_OFF}")
    a(f"s_add_u32 s{sTMP2}, s{sTMP2}, {QA_OFF}")
    a(f"s_mul_i32 s{sTMP3}, s{sBR}, {KVB_OFF - KVA_OFF}")
    a(f"s_cmp_eq_u32 s{sSEC}, 0")
    a(f"s_cselect_b32 s{sTMP2}, s{sTMP2}, s{sTMP3}")
    a(f"s_add_u32 s{sEO}, s{sEO}, s{sTMP2}")
    a(f"s_mul_i32 s{sTMP}, s{sWM}, 2560")
    a(f"s_add_u32 s{sEO}, s{sEO}, s{sTMP}")
    a(f"s_lshr_b32 s{sTMP}, s{sFB}, 2")
    a(f"v_lshrrev_b32 v{vT+6}, 5, v{vLANE}")
    a(f"v_add_u32 v{vT+6}, s{sTMP}, v{vT+6}")
    a(f"v_and_b32 v{vT+7}, 31, v{vLANE}")
    a(f"v_lshlrev_b32 v{vT+7}, 3, v{vT+7}")
    a(f"v_mov_b32 v{vT+8}, 0x43120")
    for e in range(8):
        a(f"v_add_u32 v{vT}, {2*e}, v{vT+6}")
        a(f"v_mul_u32_u24 v{vT+1}, 52429, v{vT}")
        a(f"v_lshrrev_b32 v{vT+1}, 18, v{vT+1}")
        a(f"v_mul_u32_u24 v{vT+2}, 5, v{vT+1}")
        a(f"v_sub_u32 v{vT+2}, v{vT}, v{vT+2}")
        a(f"v_lshlrev_b32 v{vT+2}, 2, v{vT+2}")
        a(f"v_bfe_u32 v{vT+2}, v{vT+8}, v{vT+2}, 4")
        a(f"v_lshl_add_u32 v{vT+2}, v{vT+2}, 8, v{vT+7}")
        a(f"v_mad_u32_u24 v{vEO+e}, v{vT+1}, s{sHS}, v{vT+2}")
    a(f"v_and_b32 v{vT}, 1, v{vLANE}")
    a(f"v_cmp_eq_u32 vcc, 0, v{vT}")
    a(f"v_lshlrev_b32 v{vT}, 3, v{vT}")
    a("s_nop 0")
    a("s_mov_b64 s[60:61], vcc")
    for p in range(4):
        a(f"v_cndmask_b32 v{vEO+8+p}, v{vEO+2*p+1}, v{vEO+2*p}, vcc")
        a(f"v_sub_u32 v{vEO+8+p}, v{vEO+8+p}, v{vT}")
    a("s_branch K1_T")
    a.lab("K1_VPREP")
    a(f"s_mul_i32 s{sEO}, s{sMT}, {KV_CH}")
    a(f"s_mul_i32 s{sTMP}, s{sBR}, {KVB_OFF - KVA_OFF}")
    a(f"s_add_u32 s{sEO}, s{sEO}, s{sTMP}")
    a(f"s_mul_i32 s{sTMP}, s{sWM}, {4*640}")
    a(f"s_add_u32 s{sEO}, s{sEO}, s{sTMP}")
    a(f"s_add_u32 s{sEO}, s{sEO}, 10240")
    a(f"s_mov_b32 s{sHS}, {KV_HEAD}")
    for bl in range(2):
        a(f"s_add_u32 s{sTMP}, s{sFB}, {32*bl}")
        a(f"v_and_b32 v{vT}, 31, v{vLANE}")
        a(f"v_add_u32 v{vT}, s{sTMP}, v{vT}")
        a(f"v_mul_u32_u24 v{vT+1}, 52429, v{vT}")
        a(f"v_lshrrev_b32 v{vT+1}, 20, v{vT+1}")
        a(f"v_mul_u32_u24 v{vT+2}, 20, v{vT+1}")
        a(f"v_sub_u32 v{vT+2}, v{vT}, v{vT+2}")
        a(f"v_lshrrev_b32 v{vT+3}, 5, v{vLANE}")
        a(f"v_mul_u32_u24 v{vT+3}, 320, v{vT+3}")
        a(f"v_lshl_add_u32 v{vT+3}, v{vT+2}, 4, v{vT+3}")
        a(f"v_mad_u32_u24 v{vEO+bl}, v{vT+1}, s{sHS}, v{vT+3}")
    a("s_branch K1_C")

    def variant(tag):
        a.lab(f"K1_{tag}")
        def reads(st, ph):
            out = []
            if "k1noread" in OPT: return ["s_nop 0"] * 12
            for q in range(2):
                kk = 2 * ph + q
                for j in range(2):
                    r = vXF + st * 16 + (q * 2 + j) * 4
                    out.append(f"ds_read_b128 v[{r}:{r+3}], v{vXA+kk} offset:{j*4096}")
                    r = vWF + st * 16 + (q * 2 + j) * 4
                    out.append(f"ds_read_b64_tr_b16 v[{r}:{r+1}], v{vWA+j} offset:{kk*4096}")
                    out.append(f"ds_read_b64_tr_b16 v[{r+2}:{r+3}], v{vWA+j} offset:{kk*4096+1024}")
            return out
        def mfmas(st, zero=False):
            out = []
            if "k1nomfma" in OPT: return ["s_nop 0"] * 8
            for q in range(2):
                for bl in range(2):
                    for mb in range(2):
                        acc = vACC + (bl * 2 + mb) * 16
                        xf = f"v[{vXF+st*16+(q*2+mb)*4}:{vXF+st*16+(q*2+mb)*4+3}]"
                        wf = f"v[{vWF+st*16+(q*2+bl)*4}:{vWF+st*16+(q*2+bl)*4+3}]"
                        c = "0" if (zero and q == 0) else f"v[{acc}:{acc+15}]"
                        if tag == "T":
                            out.append(f"v_mfma_f32_32x32x16_bf16 v[{acc}:{acc+15}], {wf}, {xf}, {c}")
                        else:
                            out.append(f"v_mfma_f32_32x32x16_bf16 v[{acc}:{acc+15}], {xf}, {wf}, {c}")
            return out
        def setaddr(sreg):
            return [f"v_add_u32 v{vXA+i}, s{sreg}, v{vXR+i}" for i in range(4)] + [f"v_add_u32 v{vWA+i}, s{sreg}, v{vWR+i}" for i in range(2)]
        def weave(mf, extras, upto=None):
            n = upto or len(mf); m = len(extras)
            k = 0
            for i, x in enumerate(mf):
                a(x)
                tgt = min(m, ((i + 1) * m + n - 1) // n)
                while k < tgt:
                    for y in extras[k]: a(y)
                    k += 1
        def mix(rd, dm, tail):
            ex = []
            nd = len(dm)
            for i, r in enumerate(rd):
                ex.append([r])
                if nd == 3 and i % 4 == 3: ex.append(dm[i // 4])
                if nd == 6 and i % 2 == 1: ex.append(dm[i // 2])
            return ex + tail
        def phaseA(zero, dm):
            ring = [[f"s_add_u32 s{sRD}, s{sRD}, {K1_BUF}", f"s_cmp_eq_u32 s{sRD}, {K1_LDS}", f"s_cselect_b32 s{sRD}, 0, s{sRD}"]]
            mf = mfmas(0, zero)
            weave(mf[:7], mix(reads(1, 1), dm, ring), upto=6)
            return mf[7:]
        a(f"s_mov_b32 s{sWRB}, {K1_BUF}")
        for g in dma_list(sWRB):
            for x in g: a(x)
        a(f"s_mov_b32 s{sWRB}, {2*K1_BUF}")
        NP0 = (5 - PF0) if PF else 0
        for i in range(NP0):
            for x in pf_group(): a(x)
        SL = "slice" in OPT
        def slice_groups():
            pre = [f"s_lshr_b32 s70, s2, 3", f"s_lshl_b32 s70, s70, 2", f"s_and_b32 s71, s2, 3", f"s_add_u32 s70, s70, s71",
                   f"s_lshl_b32 s70, s70, 3", f"s_add_u32 s70, s70, s{sW}", f"s_lshl_b32 s70, s70, 10", f"v_lshlrev_b32 v{vPF}, 4, v{vLANE}"]
            g = []
            for i in range(3):
                g.append([f"s_add_u32 s71, s70, {i*960*1024}",
                          f"buffer_load_dwordx4 v[{vPF+4}:{vPF+7}], v{vPF}, s[{SW}:{SW+3}], s71 offen"])
            g.append([f"s_mul_i32 s71, s{sBR}, {1280*1024}", f"s_add_u32 s71, s71, s70",
                      f"buffer_load_dwordx4 v[{vPF+4}:{vPF+7}], v{vPF}, s[{SX}:{SX+3}], s71 offen"])
            g.append([f"s_add_u32 s71, s71, {960*1024}", f"s_cmp_lt_u32 s70, {320*1024}", f"s_cselect_b32 s71, s71, s70",
                      f"buffer_load_dwordx4 v[{vPF+4}:{vPF+7}], v{vPF}, s[{SX}:{SX+3}], s71 offen"])
            return pre, g
        NP = 1 if PF else 0
        if SL and 'sliceearly' in OPT:
            pre, g = slice_groups()
            for x in pre: a(x)
            for gg in g:
                for x in gg: a(x)
            NP0 += 5
        stamp(a, 2)
        a(f"s_waitcnt vmcnt({6+NP0})")
        a("s_barrier")
        stamp(a, 3)
        a(f"s_mov_b32 s{sRD}, 0")
        for x in setaddr(sRD): a(x)
        for r in reads(0, 0): a(r)
        a(f"s_mov_b32 s{sI}, 0")
        adv = [f"s_add_u32 s{sWRB}, s{sWRB}, {K1_BUF}", f"s_cmp_eq_u32 s{sWRB}, {K1_LDS}", f"s_cselect_b32 s{sWRB}, 0, s{sWRB}"]
        a("s_waitcnt lgkmcnt(0)")
        LATE = SL and 'sliceearly' not in OPT
        if LATE:
            pre, g = slice_groups()
            for x in pre: a(x)
        last = phaseA(True, dma_list(sWRB, True))
        if LATE:
            for gg in g:
                for x in gg: a(x)
        for x in last: a(x)
        a(f"s_waitcnt vmcnt({6+NP0+(5 if LATE else 0)}) lgkmcnt(0)")
        a(f"s_branch K1_{tag}_WB")
        a.lab(f"K1_{tag}_LOOP")
        a("s_waitcnt lgkmcnt(0)")
        a(f"s_cmp_ge_u32 s{sI}, 8")
        a(f"s_cbranch_scc1 K1_{tag}_AND")
        last = phaseA(False, [] if "k1allc" in OPT else dma_list(sWRB, True)[3:])
        for x in last: a(x)
        a.lab(f"K1_{tag}_B")
        if LATE:
            a(f"s_cmp_eq_u32 s{sI}, 1")
            a(f"s_cbranch_scc1 K1_{tag}_B1")
        a(f"s_waitcnt vmcnt({6+NP}) lgkmcnt(0)")
        a.lab(f"K1_{tag}_WB")
        if "k1stamp" in OPT:
            a("s_memtime s[78:79]")
        if "k1nobar" not in OPT: a("s_barrier")
        if "k1stamp" in OPT:
            a("s_memtime s[74:75]")
            a("s_waitcnt lgkmcnt(0)")
            a(f"s_mov_b32 s79, m0")
            a(f"s_mov_b32 m0, s{sI}")
            a("s_nop 0")
            a(f"v_writelane_b32 v179, s74, m0")
            a(f"s_add_u32 m0, m0, 16")
            a("s_nop 0")
            a(f"v_writelane_b32 v179, s78, m0")
            a(f"s_mov_b32 m0, s79")
        mf = mfmas(1)
        a(mf[0])
        for x in setaddr(sRD): a(x)
        for x in adv: a(x)
        rd = reads(0, 0)
        a(f"s_cmp_ge_u32 s{sI}, 7")
        a(f"s_cbranch_scc1 K1_{tag}_ND")
        cnt = [[f"s_add_u32 s{sI}, s{sI}, 1"]]
        weave(mf[1:], mix(rd, dma_list(sWRB, True)[:3], ([pf_group()] if PF else []) + cnt), upto=6)
        a(f"s_branch K1_{tag}_LOOP")
        a.lab(f"K1_{tag}_ND")
        weave(mf[1:], mix(rd, [], cnt), upto=6)
        a(f"s_cmp_lt_u32 s{sI}, 10")
        a(f"s_cbranch_scc1 K1_{tag}_LOOP")
        stamp(a, 4)
        a("s_nop 7")
        a("s_nop 3")
        n = 0
        for bl in range(2):
            for mb in range(2):
                acc = vACC + (bl * 2 + mb) * 16
                if tag == "T" and "t8" in OPT:
                    for i in range(4):
                        q = acc + 4 * i
                        t = vXF + (n % 16) * 2; n += 1
                        a(f"v_pk_mul_f32 v[{q}:{q+1}], v[{q}:{q+1}], s[{sSC}:{sSC+1}]")
                        a(f"v_pk_mul_f32 v[{q+2}:{q+3}], v[{q+2}:{q+3}], s[{sSC}:{sSC+1}]")
                        a(f"v_cvt_pk_bf16_f32 v{t}, v{q}, v{q+1}")
                        a(f"v_cvt_pk_bf16_f32 v{t+1}, v{q+2}, v{q+3}")
                        a(f"buffer_store_dwordx2 v[{t}:{t+1}], v{vEO + 4*bl + i}, s[{SWS}:{SWS+3}], s{sEO} offen offset:{mb*1280}{STORE_FLAGS}")
                elif tag == "T":
                    t = vXF + (n % 4) * 16; n += 1
                    for i in range(4):
                        q = acc + 4 * i
                        a(f"v_pk_mul_f32 v[{q}:{q+1}], v[{q}:{q+1}], s[{sSC}:{sSC+1}]")
                        a(f"v_pk_mul_f32 v[{q+2}:{q+3}], v[{q+2}:{q+3}], s[{sSC}:{sSC+1}]")
                        a(f"v_cvt_pk_bf16_f32 v{t+2*i}, v{q}, v{q+1}")
                        a(f"v_cvt_pk_bf16_f32 v{t+2*i+1}, v{q+2}, v{q+3}")
                    DP = "quad_perm:[1,0,3,2] row_mask:0xf bank_mask:0xf"
                    a("s_mov_b64 vcc, s[60:61]")
                    for pr in range(2):
                        A0 = t + 4 * pr; B0 = A0 + 2; o = t + 8 + 4 * pr
                        a(f"v_cndmask_b32_dpp v{o}, v{B0}, v{A0}, vcc {DP}")
                        a(f"v_cndmask_b32_dpp v{o+1}, v{B0+1}, v{A0+1}, vcc {DP}")
                    a("s_not_b64 vcc, vcc")
                    for pr in range(2):
                        A0 = t + 4 * pr; B0 = A0 + 2; o = t + 8 + 4 * pr
                        a(f"v_cndmask_b32_dpp v{o+2}, v{A0}, v{B0}, vcc {DP}")
                        a(f"v_cndmask_b32_dpp v{o+3}, v{A0+1}, v{B0+1}, vcc {DP}")
                    for pr in range(2):
                        o = t + 8 + 4 * pr
                        a(f"buffer_store_dwordx4 v[{o}:{o+3}], v{vEO + 8 + 2*bl + pr}, s[{SWS}:{SWS+3}], s{sEO} offen offset:{mb*1280}{STORE_FLAGS}")
                else:
                    for g2 in range(2):
                        q = acc + 8 * g2
                        t = vXF + (n % 8) * 4; n += 1
                        for i in range(4):
                            a(f"v_cvt_pk_bf16_f32 v{t+i}, v{q+2*i}, v{q+2*i+1}")
                        a(f"buffer_store_dwordx4 v[{t}:{t+3}], v{vEO+bl}, s[{SWS}:{SWS+3}], s{sEO} offen offset:{(2*mb+g2)*640}{STORE_FLAGS}")
        a("s_branch K1_FIN")
        if LATE:
            a.lab(f"K1_{tag}_B1")
            a(f"s_waitcnt vmcnt({6+NP+5}) lgkmcnt(0)")
            a(f"s_branch K1_{tag}_WB")
        a.lab(f"K1_{tag}_AND")
        last = phaseA(False, [])
        for x in last: a(x)
        a("s_waitcnt vmcnt(0) lgkmcnt(0)")
        a(f"s_branch K1_{tag}_WB")
    variant("T")
    variant("C")

    GPF0 = optval("gpf0", 3)
    a.lab("K1_GATE")
    a("s_waitcnt lgkmcnt(0)")
    srd(a, SX, 8, 9, 2048 * 1280)
    srd(a, SG, 6, 7, 1280)
    srd(a, SWS, 4, 5, WS_USED)
    if "gmall" in OPT:
        a("s_load_dwordx2 s[58:59], s[0:1], 8")
        a("s_load_dwordx2 s[70:71], s[0:1], 32")
        a(f"s_sub_u32 s{sTMP}, s2, 240")
        a(f"s_lshl_b32 s{sTMP}, s{sTMP}, 3")
        a(f"s_add_u32 s{sTMP}, s{sTMP}, s{sW}")
        a(f"v_lshlrev_b32 v{vT+1}, 4, v{vLANE}")
        a(f"v_lshrrev_b32 v{vT+2}, 3, v{vLANE}")
        a(f"s_lshl_b32 s{sTMP2}, s{sTMP}, 4")
        a(f"v_add_u32 v{vT+2}, s{sTMP2}, v{vT+2}")
        a(f"v_mul_u32_u24 v{vT+2}, 1280, v{vT+2}")
        a(f"v_and_b32 v{vT+3}, 7, v{vLANE}")
        a(f"v_lshl_add_u32 v{vT+2}, v{vT+3}, 4, v{vT+2}")
        a("s_waitcnt lgkmcnt(0)")
        srd(a, 60, 58, 59, 640 * 3840)
        srd(a, 64, 70, 71, 640 * 3840)
        a(f"s_lshl_b32 s72, s{sTMP}, 10")
        a(f"s_add_u32 s73, s72, {128*1024}")
        a(f"s_cmp_ge_u32 s{sTMP}, 112")
        a(f"s_cselect_b32 s73, s72, s73")
        a(f"s_mov_b32 s74, 0")
        for st in range(optval("mall0", 1), 10):
            wo = st * 64 * 3840
            a(f"s_add_u32 s76, s72, {wo}")
            a(f"buffer_load_dwordx4 v[{vXF}:{vXF+3}], v{vT+1}, s[60:63], s76 offen")
            a(f"buffer_load_dwordx4 v[{vXF+4}:{vXF+7}], v{vT+1}, s[64:67], s76 offen")
            a(f"s_add_u32 s76, s73, {wo}")
            a(f"buffer_load_dwordx4 v[{vXF+8}:{vXF+11}], v{vT+1}, s[60:63], s76 offen")
            a(f"buffer_load_dwordx4 v[{vXF+12}:{vXF+15}], v{vT+1}, s[64:67], s76 offen")
            a(f"s_mov_b32 s76, {st*128}")
            a(f"buffer_load_dwordx4 v[{vXF+16}:{vXF+19}], v{vT+2}, s[{SX}:{SX+3}], s76 offen")
            a(f"buffer_load_dwordx4 v[{vXF+20}:{vXF+23}], v{vT+2}, s[{SX}:{SX+3}], s76 offen offset:0" if False else
              f"s_add_u32 s76, s76, {8*1280}")
            a(f"buffer_load_dwordx4 v[{vXF+20}:{vXF+23}], v{vT+2}, s[{SX}:{SX+3}], s76 offen")
            a("s_waitcnt vmcnt(36)")
        a("s_waitcnt vmcnt(0)")
    TS = optval("tlbin", 0)
    if TS:
        srd(a, SW, 10, 11, 640 * 3840)
        sh = {4: 12, 16: 14, 64: 16}[TS]
        a(f"s_lshr_b32 s{sTMP}, s2, 3")
        a(f"s_and_b32 s{sTMP}, s{sTMP}, 1")
        a(f"s_lshl_b32 s{sTMP}, s{sTMP}, 3")
        a(f"s_add_u32 s{sTMP}, s{sTMP}, s{sW}")
        a(f"s_lshl_b32 s{sTMP}, s{sTMP}, 6")
        a(f"v_add_u32 v{vT+1}, s{sTMP}, v{vLANE}")
        a(f"v_lshlrev_b32 v{vT+1}, {sh}, v{vT+1}")
        n = max(1, -(-2621440 // ((1024) << sh)))
        for i in range(n):
            a(f"s_mov_b32 s{sTMP2}, {i * (1024 << sh)}")
            a(f"buffer_load_dword v{vPF}, v{vT+1}, s[{SW}:{SW+3}], s{sTMP2} offen")
            a(f"buffer_load_dword v{vPF+1}, v{vT+1}, s[{SX}:{SX+3}], s{sTMP2} offen")
    if "gpf" in OPT:
        srd(a, SW, 10, 11, 640 * 3840)
        a(f"s_lshr_b32 s{sTMP}, s2, 3")
        a(f"s_and_b32 s{sTMP}, s{sTMP}, 1")
        a(f"v_cmp_le_u32 vcc, 30, v{vLANE}")
        a(f"v_mov_b32 v{vT+1}, 0")
        a(f"v_mov_b32 v{vT+2}, {3840 - 30*128}")
        a(f"v_cndmask_b32 v{vT+1}, v{vT+1}, v{vT+2}, vcc")
        a(f"v_min_u32 v{vT+2}, 59, v{vLANE}")
        a(f"v_lshl_add_u32 v{vT+1}, v{vT+2}, 7, v{vT+1}")
        a(f"s_lshl_b32 s{sTMP2}, s{sTMP}, 5")
        a(f"s_lshl_b32 s{sTMP3}, s{sW}, 2")
        a(f"s_add_u32 s{sTMP2}, s{sTMP2}, s{sTMP3}")
        a(f"s_add_u32 s{sTMP2}, s{sTMP2}, {64*GPF0}")
        a(f"s_mul_i32 s{sTMP2}, s{sTMP2}, 3840")
        a(f"s_and_b32 s{sTMP3}, s2, 3")
        a(f"s_lshl_b32 s{sTMP3}, s{sTMP3}, 9")
        a(f"s_lshl_b32 s{sTMP}, s{sTMP}, 8")
        a(f"s_add_u32 s{sTMP3}, s{sTMP3}, s{sTMP}")
        a(f"s_and_b32 s{sTMP}, s{sW}, 3")
        a(f"s_lshl_b32 s{sTMP}, s{sTMP}, 6")
        a(f"s_add_u32 s{sTMP3}, s{sTMP3}, s{sTMP}")
        a(f"v_add_u32 v{vT+2}, s{sTMP3}, v{vLANE}")
        a(f"v_mul_u32_u24 v{vT+2}, 1280, v{vT+2}")
        a(f"s_mov_b32 s{sTMP3}, {128*GPF0}")
        for st in range(GPF0, 10):
            a(f"buffer_load_dword v{vPF}, v{vT+1}, s[{SW}:{SW+3}], s{sTMP2} offen")
            a(f"s_add_u32 s{sTMP}, s{sTMP2}, {2*3840}")
            a(f"buffer_load_dword v{vPF+1}, v{vT+1}, s[{SW}:{SW+3}], s{sTMP} offen")
            a(f"buffer_load_dword v{vPF+2}, v{vT+2}, s[{SX}:{SX+3}], s{sTMP3} offen")
            a(f"s_add_u32 s{sTMP2}, s{sTMP2}, {64*3840}")
            a(f"s_add_u32 s{sTMP3}, s{sTMP3}, 128")
    if "notlb" not in OPT:
        a(f"v_lshlrev_b32 v{vT+1}, 16, v{vLANE}")
        a(f"s_lshl_b32 s{sTMP}, s{sW}, 22")
        a(f"s_cmp_lt_u32 s{sW}, 6")
        a(f"s_cbranch_scc0 K1_NOTLB")
        a(f"buffer_load_dword v{vPF}, v{vT+1}, s[{SWS}:{SWS+3}], s{sTMP} offen")
        a.lab("K1_NOTLB")
    if "nocodepf" not in OPT:
        a(f"s_getpc_b64 s[78:79]")
        a.lab("K1_PC")
        a(f"s_add_u32 s78, s78, k2_attn_kernel-K1_PC")
        a(f"s_addc_u32 s79, s79, 0")
        a(f"v_lshlrev_b32 v{vT+1}, 7, v{vLANE}")
        a(f"s_lshl_b32 s{sTMP}, s{sW}, 13")
        a(f"v_add_u32 v{vT+1}, s{sTMP}, v{vT+1}")
        a(f"s_cmp_ge_u32 s{sW}, K2CODE_WAVES")
        a("s_cbranch_scc1 K1_NOCPF")
        a(f"global_load_dword v{vPF+2}, v{vT+1}, s[78:79]")
        a.lab("K1_NOCPF")
    a(f"s_cmp_lg_u32 s2, 240")
    a("s_cbranch_scc1 K1_NOZ")
    a(f"s_cmp_ge_u32 s{sW}, 4")
    a("s_cbranch_scc1 K1_NOZ")
    a(f"v_lshlrev_b32 v{vT+1}, 7, v{vLANE}")
    a(f"v_mov_b32 v{vT+2}, 0")
    a(f"s_lshl_b32 s{sTMP}, s{sW}, 13")
    a(f"s_add_u32 s{sTMP}, s{sTMP}, {FL_OFF}")
    a(f"buffer_store_dword v{vT+2}, v{vT+1}, s[{SWS}:{SWS+3}], s{sTMP} offen")
    a.lab("K1_NOZ")
    a(f"s_sub_u32 s{sTMP}, s2, 240")
    a(f"s_lshl_b32 s{sTMP}, s{sTMP}, 3")
    a(f"s_add_u32 s{sTMP}, s{sTMP}, s{sW}")
    a(f"s_cmp_ge_u32 s{sTMP}, 120")
    a("s_cbranch_scc1 K1_GATE2")
    a(f"s_mul_i32 s{sTMP2}, s{sTMP}, 171")
    a(f"s_lshr_b32 s{sTMP2}, s{sTMP2}, 9")
    a(f"s_mul_i32 s{sTMP3}, s{sTMP2}, 3")
    a(f"s_sub_u32 s{sTMP3}, s{sTMP}, s{sTMP3}")
    a("s_load_dwordx2 s[58:59], s[0:1], 16")
    a("s_load_dwordx2 s[70:71], s[0:1], 40")
    a(f"s_mul_i32 s{sD}, s{sTMP3}, 448")
    a(f"v_lshrrev_b32 v{vT+1}, 5, v{vLANE}")
    a(f"v_mul_u32_u24 v{vT+1}, 1280, v{vT+1}")
    a(f"v_and_b32 v{vT+2}, 31, v{vLANE}")
    a(f"v_lshl_add_u32 v{vT+1}, v{vT+2}, 4, v{vT+1}")
    a(f"v_add_u32 v{vT+1}, s{sD}, v{vT+1}")
    a(f"s_lshl_b32 s{sEO}, s{sW}, 14")
    a("s_waitcnt lgkmcnt(0)")
    srd(a, 60, 58, 59, 640 * 1280)
    srd(a, 64, 70, 71, 640 * 1280)
    for g in range(4):
        a(f"s_lshl_b32 s72, s{sTMP2}, 2")
        a(f"s_add_u32 s72, s72, {g}")
        a(f"s_mul_i32 s73, s72, 205")
        a(f"s_lshr_b32 s73, s73, 10")
        a(f"s_mul_i32 s74, s73, 5")
        a(f"s_sub_u32 s74, s72, s74")
        a(f"s_mul_i32 s73, s73, 20")
        for quad in range(2):
            a(f"s_and_b32 s76, s74, 1")
            a(f"s_lshl_b32 s76, s76, 3")
            a(f"s_add_u32 s76, s76, {4*quad}")
            a(f"s_lshr_b32 s77, s74, 1")
            a(f"s_cmp_eq_u32 s74, 4")
            a(f"s_cselect_b32 s76, 16, s76")
            a(f"s_cselect_b32 s77, {quad}, s77")
            a(f"s_add_u32 s76, s76, s73")
            a(f"s_mul_i32 s76, s76, 1280")
            a(f"s_cmp_eq_u32 s77, 0")
            a(f"s_cbranch_scc0 K1_WB{g}{quad}")
            for r2 in range(2):
                a(f"s_add_u32 m0, s{sEO}, {(g*4 + quad*2 + r2)*1024}")
                a(f"s_add_u32 s{sD}, s76, {r2*2*1280}")
                a(f"buffer_load_dwordx4 v{vT+1}, s[60:63], s{sD} offen lds")
            a(f"s_branch K1_WD{g}{quad}")
            a.lab(f"K1_WB{g}{quad}")
            for r2 in range(2):
                a(f"s_add_u32 m0, s{sEO}, {(g*4 + quad*2 + r2)*1024}")
                a(f"s_add_u32 s{sD}, s76, {r2*2*1280}")
                a(f"buffer_load_dwordx4 v{vT+1}, s[64:67], s{sD} offen lds")
            a.lab(f"K1_WD{g}{quad}")
    a(f"v_lshrrev_b32 v{vT+2}, 4, v{vLANE}")
    a(f"v_bfe_u32 v{vT+3}, v{vLANE}, 2, 2")
    a(f"v_lshl_add_u32 v{vT+2}, v{vT+2}, 3, v{vT+3}")
    a(f"v_lshlrev_b32 v{vT+2}, 9, v{vT+2}")
    a(f"v_and_b32 v{vT+3}, 3, v{vLANE}")
    a(f"v_lshl_add_u32 v{vT+2}, v{vT+3}, 3, v{vT+2}")
    a(f"v_add_u32 v{vT+2}, s{sEO}, v{vT+2}")
    a(f"v_lshlrev_b32 v{vT+3}, 4, v{vLANE}")
    a("s_waitcnt vmcnt(0)")
    for j in range(14):
        a(f"ds_read_b64_tr_b16 v[{vXF+4*j}:{vXF+4*j+1}], v{vT+2} offset:{j*32}")
        a(f"ds_read_b64_tr_b16 v[{vXF+4*j+2}:{vXF+4*j+3}], v{vT+2} offset:{j*32+2048}")
    a(f"s_mul_i32 s{sTMP3}, s{sTMP3}, 14")
    a("s_waitcnt lgkmcnt(0)")
    for j in range(14):
        a(f"s_add_u32 s{sTMP4}, s{sTMP3}, {j}")
        a(f"s_cmp_ge_u32 s{sTMP4}, 40")
        a("s_cbranch_scc1 K1_GATE2")
        a(f"s_mul_i32 s{sD}, s{sTMP4}, 52")
        a(f"s_lshr_b32 s{sD}, s{sD}, 8")
        a(f"s_mul_i32 s{sEO}, s{sD}, 5")
        a(f"s_sub_u32 s{sEO}, s{sTMP4}, s{sEO}")
        a(f"s_mul_i32 s{sD}, s{sD}, 40")
        a(f"s_add_u32 s{sD}, s{sD}, s{sTMP2}")
        a(f"s_mul_i32 s{sD}, s{sD}, 5")
        a(f"s_add_u32 s{sD}, s{sD}, s{sEO}")
        a(f"s_lshl_b32 s{sD}, s{sD}, 10")
        a(f"s_add_u32 s{sD}, s{sD}, {WT_OFF}")
        a(f"buffer_store_dwordx4 v[{vXF+4*j}:{vXF+4*j+3}], v{vT+3}, s[{SWS}:{SWS+3}], s{sD} offen")
    a.lab("K1_GATE2")
    a("s_nop 1")
    a(f"s_sub_u32 s{sTMP}, s2, 240")
    a(f"s_lshl_b32 s{sTMP}, s{sTMP}, 7")
    a(f"s_lshl_b32 s{sTMP2}, s{sW}, 4")
    a(f"s_add_u32 s{sI}, s{sTMP}, s{sTMP2}")
    a(f"v_lshlrev_b32 v{vT}, 2, v{vLANE}")
    for j in range(5):
        a(f"buffer_load_dword v{vT+7+j}, v{vT}, s[{SG}:{SG+3}], 0 offen offset:{j*256}")
    a(f"s_mul_i32 s{sTMP4}, s{sI}, 1280")
    for r in range(16):
        for j in range(5):
            a(f"buffer_load_dword v{vXF+r*5+j}, v{vT}, s[{SX}:{SX+3}], s{sTMP4} offen offset:{j*256}")
        a(f"s_add_u32 s{sTMP4}, s{sTMP4}, 1280")
        if r == 9: a("s_waitcnt vmcnt(20)")
    a("s_waitcnt vmcnt(0)")
    gw = vT + 7
    for j in range(5):
        a(f"v_lshlrev_b32 v{vT+2+j}, 16, v{gw+j}")
        a(f"v_and_b32 v{gw+j}, 0xffff0000, v{gw+j}")
    vG = 112
    for r in range(16):
        a(f"v_mov_b32 v{vG+r}, 0")
        for j in range(5):
            x = vXF + r * 5 + j
            a(f"v_lshlrev_b32 v{vT}, 16, v{x}")
            a(f"v_and_b32 v{x}, 0xffff0000, v{x}")
            a(f"v_fmac_f32 v{vG+r}, v{vT}, v{vT+2+j}")
            a(f"v_fmac_f32 v{vG+r}, v{x}, v{gw+j}")
    for rr in (8, 4, 2, 1):
        a("s_nop 1")
        for r in range(16):
            a(f"v_add_f32_dpp v{vG+r}, v{vG+r}, v{vG+r} row_ror:{rr} row_mask:0xf bank_mask:0xf")
    for r in range(16):
        a(f"v_mov_b32 v{vG+16+r}, v{vG+r}")
    a("s_nop 1")
    for r in range(16):
        a(f"v_permlane32_swap_b32 v{vG+r}, v{vG+16+r}")
    a("s_nop 1")
    for r in range(16):
        a(f"v_add_f32 v{vG+r}, v{vG+r}, v{vG+16+r}")
        a(f"v_mov_b32 v{vG+16+r}, v{vG+r}")
    a("s_nop 1")
    for r in range(16):
        a(f"v_permlane16_swap_b32 v{vG+r}, v{vG+16+r}")
    a("s_nop 1")
    for r in range(16):
        a(f"v_add_f32 v{vG+r}, v{vG+r}, v{vG+16+r}")
    a(f"v_and_b32 v{vT}, 15, v{vLANE}")
    a(f"v_mov_b32 v{vT+1}, v{vG}")
    for r in range(1, 16):
        a(f"v_cmp_eq_u32 vcc, {r}, v{vT}")
        a("s_nop 1")
        a(f"v_cndmask_b32 v{vT+1}, v{vT+1}, v{vG+r}, vcc")
    a(f"v_mul_f32 v{vT+1}, {f2u(-1.4426950408889634):#x}, v{vT+1}")
    a(f"v_exp_f32 v{vT+1}, v{vT+1}")
    a("s_nop 0")
    a(f"v_add_f32 v{vT+1}, 1.0, v{vT+1}")
    a(f"v_rcp_f32 v{vT+1}, v{vT+1}")
    a(f"s_lshl_b32 s{sTMP}, s{sI}, 2")
    a(f"s_add_u32 s{sTMP}, s{sTMP}, {G_OFF}")
    a(f"v_lshlrev_b32 v{vT}, 2, v{vT}")
    a("s_mov_b64 exec, 0xffff")
    a(f"buffer_store_dword v{vT+1}, v{vT}, s[{SWS}:{SWS+3}], s{sTMP} offen")
    if PROF:
        a("s_mov_b64 exec, -1")
        a("s_waitcnt vmcnt(0)")
        for i in range(1, 7): stamp(a, i)
        stamp_flush(a, 0, 7, SWS, sW, vT)
    a("s_branch K1_END")
    a.lab("K1_FIN")
    if "dbgtime" in OPT:
        a("s_load_dwordx2 s[92:93], s[0:1], 64")
        a("s_waitcnt vmcnt(0)")
        a("s_memrealtime s[94:95]")
        a("s_waitcnt lgkmcnt(0)")
        srd(a, 84, 92, 93, 256)
        a("s_mov_b64 exec, 1")
        a("v_mov_b32 v20, 0")
        a("s_not_b32 s90, s90")
        a("v_mov_b32 v21, s90")
        a("buffer_atomic_umax v21, v20, s[84:87], 0 offen")
        a("v_mov_b32 v22, s94")
        a("buffer_atomic_umax v22, v20, s[84:87], 0 offen offset:4")
        a("s_mov_b64 exec, -1")
    if "k1stamp" in OPT:
        a(f"s_lshl_b32 s97, s2, 3")
        a(f"s_add_u32 s97, s97, s{sW}")
        a(f"s_lshl_b32 s97, s97, 7")
        a(f"s_add_u32 s97, s97, {PROF_OFF + 3 * 0x100000}")
        a(f"v_lshlrev_b32 v{vT}, 2, v{vLANE}")
        a("s_mov_b64 exec, 0xffffffff")
        a(f"buffer_store_dword v179, v{vT}, s[{SWS}:{SWS+3}], s97 offen")
        a("s_mov_b64 exec, -1")
    stamp(a, 5)
    if PROF: a("s_waitcnt vmcnt(0)")
    stamp(a, 6)
    stamp_flush(a, 0, 7, SWS, sW, vT)
    a.lab("K1_END")
    a("s_endpgm")
    return name, NV

K2_LDS = 163840
NEGBIG = -1.0e30

def mask_table():
    vals = []
    for j in range(6):
        for l in range(64):
            c = l & 31; h = l >> 5
            for i in range(4):
                if j < 4:
                    r = j * 4 + i
                    row = (r & 3) + 8 * (r >> 2) + 4 * h
                    diff = c + 16 - row
                else:
                    r = (j - 4) * 4 + i
                    row = (r & 3) + 8 * (r >> 2) + 4 * h
                    diff = c - 16 - row
                ok = 0 <= diff <= 14 and diff % 2 == 0
                vals.append(0 if ok else f2u(NEGBIG))
    return vals

K2_PRIO_TILE = 5
def gen_k2(a):
    FUSE = "nofuse" not in OPT
    name = "k2_attn_kernel"
    kernel_head(a, name)
    SWS = 8
    sW = 12; sHEAD = 13; sQB = 14; sS0 = 15; sT0 = 16; sT1 = 17; sT2 = 18; sT3 = 19
    sC = 20; sPASS = 21; sVM = 22
    sLO = 24
    sGRP = 26; sPR = 27
    sDS = 28; sDG = 29
    sAV = 30
    sQA = 33; sGO = 35
    sDO = 44
    sWL = 49; sWS = 58; sWS0 = 59; sWC = 66; sFAIL = 67
    vLANE = 1; vL16 = 2; vK8 = 3; vVA = 4; vKe = 5; vKo = 6; vK4c = 7
    vT = 8
    vGATE = 16; vVc = 17
    vAKO = 18
    vPFA = 22; vQO = 23
    vQ16 = [24, 28]; vQ8 = [32, 34]
    vQA16 = 36; vQA8 = 40
    vKA = 44; vKB = 52; vV1 = 56; vV2 = 64; vP = 72
    S = [84, 100]; NEG = [116, 132]; O = [148, 164]
    vAK = 180; vAV = 192; vMX = 204; vMY = 220
    vOB = 236; vDUM = 244; vOSA = 245
    NV = 248
    ONES = 0x3f803f80
    vS0, vS1 = S

    a("s_cmp_ge_u32 s2, 256")
    a("s_cbranch_scc1 K2_END")
    stamp(a, 0)
    if "dbgtime" in OPT:
        a("s_memrealtime s[90:91]")
        a("s_load_dwordx2 s[92:93], s[0:1], 64")
    a("s_load_dwordx2 s[4:5], s[0:1], 72")
    if FUSE:
        a("s_load_dwordx2 s[60:61], s[0:1], 56")
    a(f"v_and_b32 v{vLANE}, 63, v0")
    a(f"v_lshrrev_b32 v{vT}, 6, v0")
    a(f"s_and_b32 s{sHEAD}, s2, 7")
    a(f"v_readfirstlane_b32 s{sW}, v{vT}")
    a(f"s_lshl_b32 s{sHEAD}, s{sHEAD}, 2")
    a(f"s_lshr_b32 s{sT0}, s2, 6")
    a(f"s_add_u32 s{sHEAD}, s{sHEAD}, s{sT0}")
    a(f"s_lshr_b32 s{sQB}, s2, 3")
    a(f"s_and_b32 s{sQB}, s{sQB}, 7")
    a(f"v_lshlrev_b32 v{vL16}, 4, v{vLANE}")
    a(f"v_and_b32 v{vT}, 31, v{vLANE}")
    a(f"v_lshlrev_b32 v{vK8}, 3, v{vT}")
    a(f"v_lshrrev_b32 v{vT+1}, 5, v{vLANE}")
    a(f"v_lshl_add_u32 v{vQO}, v{vT+1}, 8, v{vK8}")
    a(f"s_lshr_b32 s{sGRP}, s{sW}, 2")
    a(f"s_and_b32 s{sPR}, s{sW}, 3")
    a(f"s_mul_i32 s{sDS}, s{sHEAD}, {KV_HEAD}")
    a(f"s_add_u32 s{sDS}, s{sDS}, {KVB_OFF}")
    for j in range(5):
        a(f"s_add_u32 s{sT0}, s{sW}, {8*j}")
        a(f"s_lshl_b32 s{sDO+j}, s{sT0}, 10")
        a(f"s_cmp_ge_u32 s{sT0}, 20")
        a(f"s_cselect_b32 s{sT1}, {4*KV_CH - 20*1024}, 0")
        a(f"s_add_u32 s{sDO+j}, s{sDO+j}, s{sT1}")
    a(f"s_mul_i32 s{sQA}, s{sHEAD}, {Q_HEAD}")
    a(f"s_lshl_b32 s{sT1}, s{sQB}, 3")
    a(f"s_lshl_b32 s{sT2}, s{sPR}, 1")
    a(f"s_add_u32 s{sT1}, s{sT1}, s{sT2}")
    a(f"s_mul_i32 s{sT1}, s{sT1}, 1280")
    a(f"s_add_u32 s{sQA}, s{sQA}, s{sT1}")
    a(f"s_add_u32 s{sT0}, s{sQA}, {QB_OFF}")
    a(f"s_mov_b32 s{sDG}, 0")
    a("s_waitcnt lgkmcnt(0)")
    srd(a, SWS, 4, 5, WS_USED)
    def dma1(j):
        return [f"s_add_u32 m0, s{sDO+j}, s{sDG}",
                f"s_add_u32 s{sT3}, m0, s{sDS}",
                f"buffer_load_dwordx4 v{vL16}, s[{SWS}:{SWS+3}], s{sT3} offen lds"]
    def qloads(q16, q8, sreg, off):
        return [f"buffer_load_dwordx2 v[{q16}:{q16+1}], v{vQO}, s[{SWS}:{SWS+3}], s{sreg} offen offset:{off}",
                f"buffer_load_dwordx2 v[{q16+2}:{q16+3}], v{vQO}, s[{SWS}:{SWS+3}], s{sreg} offen offset:{off+512}",
                f"buffer_load_dwordx2 v[{q8}:{q8+1}], v{vK8}, s[{SWS}:{SWS+3}], s{sreg} offen offset:{off+1024}"]
    for j in range(5):
        for x in dma1(j): a(x)
    for sg in range(2):
        for x in qloads(vQ16[sg], vQ8[sg], sT0, sg * 1280): a(x)
    a(f"s_add_u32 s{sDG}, s{sDG}, {KV_CH}")
    stamp(a, 1)
    a(f"s_mov_b32 s{sVM}, 0x000fffff")
    a(f"s_mov_b32 s{sVM+1}, 0x000fffff")
    a(f"s_mov_b32 s{sLO}, -1")
    a(f"s_mov_b32 s{sLO+1}, 0")
    a(f"v_and_b32 v{vT}, 31, v{vLANE}")
    a(f"v_lshrrev_b32 v{vT+1}, 5, v{vLANE}")
    a(f"v_mul_u32_u24 v{vVA}, 20, v{vT+1}")
    a(f"v_add_u32 v{vVA}, v{vVA}, v{vT}")
    a(f"v_lshlrev_b32 v{vVA}, 4, v{vVA}")
    for sg in range(2):
        for i in range(0, 16, 2):
            a(f"v_mov_b64 v[{O[sg]+i}:{O[sg]+i+1}], 0")
    a(f"v_mov_b64 v[{vP+4}:{vP+5}], 0")
    a(f"v_mov_b64 v[{vP+6}:{vP+7}], 0")
    a(f"s_lshl_b32 s{sS0}, s{sQB}, 8")
    a(f"s_lshl_b32 s{sT0}, s{sPR}, 6")
    a(f"s_add_u32 s{sS0}, s{sS0}, s{sT0}")
    a(f"s_lshl_b32 s{sT0}, s{sGRP}, 5")
    a(f"s_add_u32 s{sS0}, s{sS0}, s{sT0}")
    a(f"s_mul_i32 s{sT0}, s{sGRP}, 1280")
    a(f"s_add_u32 s{sQA}, s{sQA}, s{sT0}")
    a(f"s_add_u32 s{sQA}, s{sQA}, {QA_OFF}")
    a(f"s_lshl_b32 s{sT0}, s{sHEAD}, 6")
    a(f"s_lshr_b32 s{sT1}, s{sS0}, 5")
    a(f"s_add_u32 s{sT0}, s{sT0}, s{sT1}")
    for k, dT in enumerate((-1, 0, 1)):
        a(f"s_add_i32 s{sT1}, s{sT0}, {dT}")
        a(f"s_ashr_i32 s{sT2}, s{sT1}, 3")
        a(f"s_mul_i32 s{sT2}, s{sT2}, {KV_CH}")
        a(f"s_and_b32 s{sT1}, s{sT1}, 7")
        a(f"s_mul_i32 s{sT1}, s{sT1}, 1280")
        a(f"s_add_u32 s{50+k}, s{sT1}, s{sT2}")
    a(f"s_add_u32 s50, s50, 128")
    a(f"s_sub_u32 s53, s51, 128")
    a(f"s_add_u32 s51, s51, 128")
    a(f"s_sub_u32 s52, s52, 128")
    a(f"s_mov_b32 s54, 0xffff")
    a(f"s_mov_b32 s55, 0xffff")
    a(f"v_add_u32 v{vAKO+1}, s53, v{vK8}")
    a(f"v_add_u32 v{vAKO+3}, s52, v{vK8}")
    a(f"s_mov_b64 exec, s[54:55]")
    a(f"v_add_u32 v{vAKO+1}, s50, v{vK8}")
    a(f"v_add_u32 v{vAKO+3}, s51, v{vK8}")
    a("s_mov_b64 exec, -1")
    a(f"v_sub_u32 v{vT+7}, v{vQO}, v{vK8}")
    a(f"v_add_u32 v{vAKO}, v{vAKO+1}, v{vT+7}")
    a(f"v_add_u32 v{vAKO+2}, v{vAKO+3}, v{vT+7}")
    a(f"s_lshl_b32 s{sT0}, s{sHEAD}, 7")
    a(f"s_lshr_b32 s{sT1}, s{sS0}, 4")
    a(f"s_add_u32 s{sT0}, s{sT0}, s{sT1}")
    for j in range(3):
        a(f"s_add_i32 s{sT1}, s{sT0}, {j-1}")
        a(f"s_max_i32 s{sT1}, s{sT1}, 0")
        a(f"s_lshr_b32 s{sT2}, s{sT1}, 4")
        a(f"s_mul_i32 s{sT2}, s{sT2}, {KV_CH}")
        a(f"s_and_b32 s{sT1}, s{sT1}, 15")
        a(f"s_mul_i32 s{sT1}, s{sT1}, 640")
        a(f"s_add_u32 s{sT1}, s{sT1}, s{sT2}")
        a(f"s_add_u32 s{sAV+j}, s{sT1}, 10240")
    a(f"s_lshl_b32 s{sGO}, s{sS0}, 2")
    a(f"s_add_u32 s{sGO}, s{sGO}, {G_OFF}")
    a(f"v_mov_b32 v{vT+2}, 0")
    a(f"v_mov_b32 v{vT+3}, {ONES:#x}")
    if "vones" in OPT:
        a(f"v_mov_b32 v{vT+2}, {ONES:#x}")
    else:
        a(f"v_and_b32 v{vT+4}, 27, v{vT}")
        a.l.pop()
        a(f"v_cmp_eq_u32 vcc, 20, v{vT}")
        a(f"v_cmp_eq_u32 s[38:39], 24, v{vT}")
        a("s_nop 1")
        a("s_or_b64 vcc, vcc, s[38:39]")
        a("s_nop 1")
        a(f"v_cndmask_b32 v{vT+2}, v{vT+2}, v{vT+3}, vcc")
    a(f"v_mov_b32 v{vT+3}, v{vT+2}")
    for i in range(0, 12, 2):
        a(f"v_mov_b64 v[{vAV+i}:{vAV+i+1}], v[{vT+2}:{vT+3}]")
    for i in range(0, 16, 2):
        a(f"v_mov_b64 v[{vV1+i}:{vV1+i+1}], v[{vT+2}:{vT+3}]")
    a(f"s_lshr_b32 s{sT0}, s{sS0}, 4")
    a(f"s_mul_i32 s{sT0}, s{sT0}, {40*1024}")
    a(f"s_mul_i32 s{sT1}, s{sHEAD}, {5*256}")
    a(f"s_add_u32 s{sT0}, s{sT0}, s{sT1}")
    a(f"v_bfe_u32 v{vT+2}, v{vLANE}, 4, 1")
    a(f"v_mul_u32_u24 v{vT+2}, {40*1024}, v{vT+2}")
    a(f"v_and_b32 v{vT+3}, 15, v{vLANE}")
    a(f"v_lshl_add_u32 v{vT+3}, v{vT+3}, 4, v{vT+2}")
    a(f"v_lshrrev_b32 v{vT+2}, 5, v{vLANE}")
    a(f"v_lshl_add_u32 v{vT+3}, v{vT+2}, 8, v{vT+3}")
    a(f"v_add_u32 v{vOSA}, s{sT0}, v{vT+3}")
    a(f"s_getpc_b64 s[56:57]")
    a.lab("K2_PC")
    a(f"s_add_u32 s56, s56, K2_TABLE-K2_PC")
    a(f"s_addc_u32 s57, s57, 0")
    if not FUSE:
        a("s_lshr_b32 s36, s2, 3")
        a("s_lshl_b32 s36, s36, 3")
        a(f"s_add_u32 s36, s36, s{sW}")
        a("s_mul_i32 s36, s36, 50")
        a(f"v_min_u32 v{vPFA}, 49, v{vLANE}")
        a(f"v_add_u32 v{vPFA}, s36, v{vPFA}")
        a(f"v_lshlrev_b32 v{vPFA}, 7, v{vPFA}")
        a(f"v_add_u32 v{vPFA}, {WT_OFF}, v{vPFA}")
    if FUSE:
        a(f"s_mov_b32 s64, s{sHEAD}")
        a(f"s_mov_b32 s65, s{sQB}")
        a(f"s_mul_i32 s{sWS0}, s65, {200*1024}")
        a(f"s_lshl_b32 s{sT0}, s{sW}, 10")
        a(f"s_add_u32 s{sWS0}, s{sWS0}, s{sT0}")
        a(f"s_add_u32 s{sWS0}, s{sWS0}, {WT_OFF}")
        a(f"s_mov_b32 s{sWS}, s{sWS0}")
        a(f"s_mov_b32 s{sWL}, 0")
        a(f"s_mov_b32 s{sWC}, 2")
    a(f"s_mov_b32 s{sPASS}, 0")
    a(f"s_mul_i32 s37, s{sGRP}, {4*KV_CH}")
    stamp(a, 2)
    a("s_waitcnt vmcnt(0)")
    a(f"s_mov_b64 exec, s[{sLO}:{sLO+1}]")
    a(f"s_not_b64 exec, exec")
    for sg in range(2):
        a(f"v_mov_b32 v{vQ8[sg]}, 0")
        a(f"v_mov_b32 v{vQ8[sg]+1}, 0")
    a("s_mov_b64 exec, -1")
    a("s_barrier")
    stamp(a, 3)
    def rdK16(dst, rel_chunk, tt):
        base = vKe if tt % 2 == 0 else vKo
        o0 = rel_chunk * 40 + (tt >> 1) * 5
        return f"ds_read2st64_b64 v[{dst}:{dst+3}], v{base} offset0:{o0} offset1:{o0+1}"
    def rdK4(dst, rel_chunk, tt):
        return f"ds_read_b64 v[{dst}:{dst+1}], v{vK4c} offset:{rel_chunk*KV_CH + tt*1280 + 1024}"
    def voff(g):
        return (g // 16) * KV_CH + (g % 16) * 640
    def setbases():
        a(f"v_add_u32 v{vKe}, s37, v{vQO}")
        a(f"v_add_u32 v{vKo}, 1280, v{vKe}")
        a(f"v_add_u32 v{vK4c}, s37, v{vK8}")
        a(f"v_add_u32 v{vVc}, s37, v{vVA}")
        a(f"v_add_u32 v{vVc}, 10240, v{vVc}")
    def qk(dst, ka, kb, sg, c):
        return [f"v_mfma_f32_32x32x16_bf16 v[{dst}:{dst+15}], v[{ka}:{ka+3}], v[{vQ16[sg]}:{vQ16[sg]+3}], {c}",
                f"v_mfma_f32_32x32x8_bf16 v[{dst}:{dst+15}], v[{kb}:{kb+1}], v[{vQ8[sg]}:{vQ8[sg]+1}], v[{dst}:{dst+15}]"]
    def rowmax(m, regs, first=None):
        if first is None:
            a(f"v_max3_f32 v{m}, v{regs[0]}, v{regs[1]}, v{regs[2]}")
            rest = regs[3:]
        else:
            rest = regs
        i = 0
        while i + 1 < len(rest):
            a(f"v_max3_f32 v{m}, v{m}, v{rest[i]}, v{rest[i+1]}")
            i += 2
        if i < len(rest):
            a(f"v_max_f32 v{m}, v{m}, v{rest[i]}")
    a.lab("K2_START")
    setbases()
    a(rdK16(vKA, 0, 0))
    a(rdK4(vKB, 0, 0))
    a(f"s_mov_b64 exec, s[{sVM}:{sVM+1}]")
    a(f"ds_read_b128 v[{vV1}:{vV1+3}], v{vVc}")
    a("s_mov_b64 exec, -1")
    a(f"s_cmp_lg_u32 s{sPASS}, 0")
    a("s_cbranch_scc1 K2_HAVEM")
    a("s_waitcnt lgkmcnt(0)")
    for sg in range(2):
        for x in qk(S[sg], vKA, vKB, sg, "0"): a(x)
    a("s_nop 9")
    for sg in range(2):
        m = vT + 2 * sg
        rowmax(m, [S[sg] + i for i in range(16)])
        a(f"v_mov_b32 v{m+1}, v{m}")
    a("s_nop 1")
    for sg in range(2):
        m = vT + 2 * sg
        a(f"v_permlane32_swap_b32 v{m}, v{m+1}")
    a("s_nop 1")
    for sg in range(2):
        m = vT + 2 * sg
        a(f"v_max_f32 v{m}, v{m}, v{m+1}")
        a(f"v_sub_f32 v{NEG[sg]}, 0, v{m}")
        a(f"v_sub_f32 v{NEG[sg]+1}, 0, v{m}")
        for i in range(2, 16, 2):
            a(f"v_mov_b64 v[{NEG[sg]+i}:{NEG[sg]+i+1}], v[{NEG[sg]}:{NEG[sg]+1}]")
    a.lab("K2_HAVEM")
    a("s_waitcnt lgkmcnt(0)")
    a("s_nop 1")
    for x in qk(S[0], vKA, vKB, 0, f"v[{NEG[0]}:{NEG[0]+15}]"): a(x)
    a(f"s_mov_b32 s{sC}, 0")
    a("s_nop 15")
    stamp(a, 4)
    a.lab("K2_LOOP")
    if "chunkstamp" in OPT:
        a("s_memtime s[78:79]")
        a("s_waitcnt lgkmcnt(0)")
        a(f"s_mov_b32 s79, m0")
        a(f"s_mov_b32 m0, s{sC}")
        a("s_nop 0")
        a(f"v_writelane_b32 v247, s78, m0")
        a(f"s_mov_b32 m0, s79")
    aloads = [
        qloads(vQA16, vQA8, sQA, 0),
        [f"buffer_load_dwordx2 v[{vAK}:{vAK+1}], v{vAKO}, s[{SWS}:{SWS+3}], 0 offen",
         f"buffer_load_dwordx2 v[{vAK+2}:{vAK+3}], v{vAKO}, s[{SWS}:{SWS+3}], 0 offen offset:512",
         f"buffer_load_dwordx2 v[{vAK+8}:{vAK+9}], v{vAKO+1}, s[{SWS}:{SWS+3}], 0 offen offset:1024"],
        [f"buffer_load_dwordx2 v[{vAK+4}:{vAK+5}], v{vAKO+2}, s[{SWS}:{SWS+3}], 0 offen",
         f"buffer_load_dwordx2 v[{vAK+6}:{vAK+7}], v{vAKO+2}, s[{SWS}:{SWS+3}], 0 offen offset:512",
         f"buffer_load_dwordx2 v[{vAK+10}:{vAK+11}], v{vAKO+3}, s[{SWS}:{SWS+3}], 0 offen offset:1024"],
        [f"s_mov_b64 exec, s[{sVM}:{sVM+1}]"] +
        [f"buffer_load_dwordx4 v[{vAV+4*j}:{vAV+4*j+3}], v{vVA}, s[{SWS}:{SWS+3}], s{sAV+j} offen" for j in range(3)] +
        ["s_mov_b64 exec, -1"],
        [f"global_load_dwordx4 v[{vMX+4*j}:{vMX+4*j+3}], v{vL16}, s[56:57] offset:{j*1024}" for j in range(4)] +
        [f"v_add_u32 v{vT+7}, 4096, v{vL16}"] +
        [f"global_load_dwordx4 v[{vMY+4*j}:{vMY+4*j+3}], v{vT+7}, s[56:57] offset:{j*1024}" for j in range(2)] +
        [f"v_lshrrev_b32 v{vT+7}, 1, v{vK8}",
         f"buffer_load_dword v{vGATE}, v{vT+7}, s[{SWS}:{SWS+3}], s{sGO} offen"] +
        ([] if FUSE else [f"buffer_load_dword v{vDUM}, v{vPFA}, s[{SWS}:{SWS+3}], 0 offen"]),
    ]
    ool = []
    ptile = optval("ptile", 6)
    WIN = optval("win", 2)
    def wdma(j, p_expr_sgpr):
        return [f"s_add_u32 m0, s{sDO+j}, s{p_expr_sgpr}",
                f"s_add_u32 s{sT3}, s{sWS}, {j*8192}",
                f"buffer_load_dwordx4 v{vL16}, s[{SWS}:{SWS+3}], s{sT3} offen lds"]
    for tt in range(8):
        for sg in range(2):
            cur = S[sg]; nsg = sg ^ 1; nxt = S[nsg]
            nt = tt if sg == 0 else tt + 1
            ka = vKA + 4 * (nt & 1); kb = vKB + 2 * (nt & 1)
            if sg == 0 and tt == 7:
                a(f"s_cmp_lg_u32 s{sPASS}, 0")
                a(f"s_cbranch_scc1 K2_NOSYNC")
                a(f"s_cmp_ge_u32 s{sC}, 3")
                a(f"s_cbranch_scc1 K2_SYNC3" if (FUSE and WIN == 3) else f"s_cbranch_scc1 K2_NOSYNC")
                a("s_waitcnt vmcnt(0)")
                a("s_barrier")
                a.lab("K2_NOSYNC")
                if ptile >= 0: a("s_setprio 2")
                if FUSE and WIN == 3:
                    body = ["s_barrier"]
                    for j in range(5): body += wdma(j, sWL)
                    body += [f"s_add_u32 s{sWL}, s{sWL}, {KV_CH}", f"s_add_u32 s{sWS}, s{sWS}, {K3_BUF}", "s_branch K2_NOSYNC"]
                    ool.append(("K2_SYNC3", body))
            if sg == 0 and tt == ptile:
                a("s_setprio 0")
            if sg == 1:
                a("s_waitcnt lgkmcnt(0)")
            q = qk(nxt, ka, kb, nsg, f"v[{NEG[nsg]}:{NEG[nsg]+15}]")
            a(q[0])
            if sg == 0:
                n1 = tt + 1
                a(rdK16(vKA + 4 * (n1 & 1), n1 // 8, n1 % 8))
                a(rdK4(vKB + 2 * (n1 & 1), n1 // 8, n1 % 8))
            for i in range(0, 4):
                a(f"v_exp_f32 v{cur+i}, v{cur+i}")
            pt = tt - 1 if sg == 0 else tt
            v2p = vV2 + 4 * (pt & 1)
            a(f"v_mfma_f32_32x32x16_bf16 v[{O[nsg]}:{O[nsg]+15}], v[{v2p}:{v2p+3}], v[{vP+4}:{vP+7}], v[{O[nsg]}:{O[nsg]+15}]")
            if sg == 0:
                a(f"s_mov_b64 exec, s[{sVM}:{sVM+1}]")
                d = vV2 + 4 * (tt & 1)
                a(f"ds_read_b128 v[{d}:{d+3}], v{vVc} offset:{voff(2*tt+1)}")
                d = vV1 + 4 * ((tt + 1) & 1)
                a(f"ds_read_b128 v[{d}:{d+3}], v{vVc} offset:{voff(2*tt+2)}")
                a("s_mov_b64 exec, -1")
            if FUSE and WIN >= 2 and sg == 0 and 1 <= tt < 6:
                j = tt - 1
                a(f"s_cmp_ge_u32 s{sC}, s{sWC}")
                a(f"s_cbranch_scc1 K2_Y{tt}")
                body = wdma(j, sWL)
                if j == 4: body += [f"s_add_u32 s{sWL}, s{sWL}, {KV_CH}", f"s_add_u32 s{sWS}, s{sWS}, {K3_BUF}"]
                ool.append((f"K2_Y{tt}", body + [f"s_branch K2_YR{tt}"]))
                a.lab(f"K2_YR{tt}")
            if sg == 1 and tt < 5:
                a(f"s_cmp_lg_u32 s{sPASS}, 0")
                a(f"s_cbranch_scc1 K2_XR{tt}")
                a(f"s_cmp_lt_u32 s{sC}, 3")
                a(f"s_cbranch_scc0 K2_X{tt}")
                for x in dma1(tt): a(x)
                if tt == 4: a(f"s_add_u32 s{sDG}, s{sDG}, {KV_CH}")
                ool.append((f"K2_X{tt}", aloads[tt] + [f"s_branch K2_XR{tt}"]))
                a.lab(f"K2_XR{tt}")
            for i in range(4, 8):
                a(f"v_exp_f32 v{cur+i}, v{cur+i}")
            for i in range(4):
                a(f"v_cvt_pk_bf16_f32 v{vP+i}, v{cur+2*i}, v{cur+2*i+1}")
            a(q[1])
            for i in range(8, 12):
                a(f"v_exp_f32 v{cur+i}, v{cur+i}")
            v1 = vV1 + 4 * (tt & 1)
            a(f"v_mfma_f32_32x32x16_bf16 v[{O[sg]}:{O[sg]+15}], v[{v1}:{v1+3}], v[{vP}:{vP+3}], v[{O[sg]}:{O[sg]+15}]")
            for i in range(12, 16):
                a(f"v_exp_f32 v{cur+i}, v{cur+i}")
            for i in range(4, 8):
                a(f"v_cvt_pk_bf16_f32 v{vP+i}, v{cur+2*i}, v{cur+2*i+1}")
    for r in (vKe, vKo, vK4c, vVc):
        a(f"v_add_u32 v{r}, {KV_CH}, v{r}")
    a(f"s_add_u32 s{sC}, s{sC}, 1")
    a(f"s_cmp_lt_u32 s{sC}, 4")
    a("s_cbranch_scc1 K2_LOOP")
    stamp(a, 5)
    a(f"v_mfma_f32_32x32x16_bf16 v[{O[1]}:{O[1]+15}], v[{vV2+4}:{vV2+7}], v[{vP+4}:{vP+7}], v[{O[1]}:{O[1]+15}]")
    a("s_setprio 0")
    a(f"s_mov_b32 s{sFAIL}, 0")
    a(f"s_cmp_lg_u32 s{sPASS}, 0")
    a("s_cbranch_scc1 K2_XCHG")
    a(f"s_waitcnt vmcnt({(5 if WIN == 3 else 0) if FUSE else 1}) lgkmcnt(0)")
    a(f"s_mov_b64 exec, s[{sLO}:{sLO+1}]")
    a(f"s_not_b64 exec, exec")
    a(f"v_mov_b32 v{vQA8}, 0")
    a(f"v_mov_b32 v{vQA8+1}, 0")
    a("s_mov_b64 exec, -1")
    a(f"s_cmp_lg_u32 s{sS0}, 0")
    a("s_cbranch_scc1 K2_NOFIX")
    for i in range(8):
        a(f"v_mov_b32 v{vMX+i}, {f2u(NEGBIG):#x}")
    a.lab("K2_NOFIX")
    if "ts2" in OPT: stamp(a, 4)
    a(f"v_mfma_f32_32x32x16_bf16 v[{vS0}:{vS0+15}], v[{vAK}:{vAK+3}], v[{vQA16}:{vQA16+3}], v[{vMX}:{vMX+15}]")
    a(f"v_mfma_f32_32x32x16_bf16 v[{vS1}:{vS1+15}], v[{vAK+4}:{vAK+7}], v[{vQA16}:{vQA16+3}], v[{vMY}:{vMY+15}]")
    a(f"v_mfma_f32_32x32x8_bf16 v[{vS0}:{vS0+15}], v[{vAK+8}:{vAK+9}], v[{vQA8}:{vQA8+1}], v[{vS0}:{vS0+15}]")
    a(f"v_mfma_f32_32x32x8_bf16 v[{vS1}:{vS1+15}], v[{vAK+10}:{vAK+11}], v[{vQA8}:{vQA8+1}], v[{vS1}:{vS1+15}]")
    a(f"v_mov_b64 v[{vT+2}:{vT+3}], 0")
    a(f"v_mov_b64 v[{vT+4}:{vT+5}], 0")
    a(f"v_mov_b32 v{vT+1}, {f2u(2.0**64):#x}")
    a("s_nop 3")
    for i in range(0, 12, 2):
        for sg in range(2):
            a(f"v_pk_fma_f32 v[{vT+2}:{vT+3}], v[{O[sg]+i}:{O[sg]+i+1}], v[{vT+4}:{vT+5}], v[{vT+2}:{vT+3}]")
    a(f"v_add_f32 v{vT}, v{O[0]+12}, v{O[1]+12}")
    a(f"v_add_f32 v{vT+2}, v{vT+2}, v{vT+3}")
    a(f"v_add_f32 v{vT}, v{vT}, v{vT+2}")
    a(f"v_cmp_nlt_f32 vcc, v{vT}, v{vT+1}")
    a(f"v_mov_b32 v{O[0]+13}, v{NEG[0]}")
    a(f"v_mov_b32 v{O[1]+13}, v{NEG[1]}")
    a("s_nop 1")
    a("s_cmp_lg_u64 vcc, 0")
    a(f"s_cselect_b32 s{sFAIL}, 1, 0")
    if "forcefail" in OPT:
        a(f"s_cmp_eq_u32 s{sW}, 3")
        a(f"s_cselect_b32 s{sFAIL}, 1, s{sFAIL}")
    regs = [vS0 + i for i in range(16)] + [vS1 + i for i in range(8)]
    m = vT + 6
    rowmax(m, regs)
    a(f"v_mov_b32 v{m+1}, v{m}")
    a("s_nop 1")
    a(f"v_permlane32_swap_b32 v{m}, v{m+1}")
    a("s_nop 1")
    a(f"v_max_f32 v{m}, v{m}, v{m+1}")
    a(f"v_sub_f32 v{vKo}, 0, v{m}")
    a(f"v_sub_f32 v{vK4c}, 0, v{m}")
    for i in range(0, 24, 2):
        a(f"v_pk_add_f32 v[{regs[i]}:{regs[i]+1}], v[{regs[i]}:{regs[i]+1}], v[{vKo}:{vK4c}]")
    for i in range(24):
        a(f"v_exp_f32 v{regs[i]}, v{regs[i]}")
    a("s_nop 0")
    for i in range(12):
        a(f"v_cvt_pk_bf16_f32 v{vP+i}, v{regs[2*i]}, v{regs[2*i+1]}")
    OA = NEG[0]
    a("s_nop 1")
    for j in range(3):
        c = "0" if j == 0 else f"v[{OA}:{OA+15}]"
        a(f"v_mfma_f32_32x32x16_bf16 v[{OA}:{OA+15}], v[{vAV+4*j}:{vAV+4*j+3}], v[{vP+4*j}:{vP+4*j+3}], {c}")
    def rowsum(dst, acc):
        a(f"v_mov_b32 v{dst}, v{acc+12}")
        a(f"s_not_b64 exec, s[{sLO}:{sLO+1}]")
        a(f"v_mov_b32 v{dst}, v{acc+8}")
        a("s_mov_b64 exec, -1")
    OFL = " sc1" if FUSE else STORE_FLAGS
    def ostore(br, src):
        a("s_nop 1")
        a(f"v_permlane32_swap_b32 v{src}, v{src+2}")
        a(f"v_permlane32_swap_b32 v{src+1}, v{src+3}")
        a(f"s_mov_b32 s{sT1}, {O_OFF}")
        a(f"buffer_store_dwordx4 v[{src}:{src+3}], v{vOSA}, s[{SWS}:{SWS+3}], s{sT1} offen offset:{br*512}{OFL}")
    a("s_nop 15")
    rowsum(vT + 6, OA)
    a(f"v_rcp_f32 v{vT+6}, v{vT+6}")
    a("s_nop 0")
    a(f"v_mul_f32 v{vT+6}, v{vT+6}, v{vGATE}")
    for i in range(0, 12, 2):
        a(f"v_pk_mul_f32 v[{OA+i}:{OA+i+1}], v[{OA+i}:{OA+i+1}], v[{vT+6}:{vT+7}] op_sel_hi:[1,0]")
    for i in range(4):
        a(f"v_cvt_pk_bf16_f32 v{vP+i}, v{OA+2*i}, v{OA+2*i+1}")
    for i in range(2):
        a(f"v_cvt_pk_bf16_f32 v{vOB+4+i}, v{OA+8+2*i}, v{OA+9+2*i}")
    ostore(0, vP)
    a("s_branch K2_XCHG1")
    a.lab("K2_XCHG")
    a("s_nop 15")
    a(f"v_mov_b32 v{O[0]+13}, v{NEG[0]}")
    a(f"v_mov_b32 v{O[1]+13}, v{NEG[1]}")
    a.lab("K2_XCHG1")
    a(f"s_mul_i32 s{sT0}, s{sGRP}, {4*KV_CH}")
    a(f"s_lshl_b32 s{sT2}, s{sPR}, 12")
    a(f"s_add_u32 s{sT2}, s{sT2}, {3*KV_CH}")
    a(f"s_add_u32 s{sT0}, s{sT0}, s{sT2}")
    a(f"v_add_u32 v{vT}, s{sT0}, v{vL16}")
    a(f"s_xor_b32 s{sT0}, s{sGRP}, 1")
    a(f"s_mul_i32 s{sT0}, s{sT0}, {4*KV_CH}")
    a(f"s_add_u32 s{sT0}, s{sT0}, s{sT2}")
    a(f"v_add_u32 v{vT+1}, s{sT0}, v{vL16}")
    a(f"s_lshl_b32 s{sT0}, s{sW}, 2")
    a(f"s_add_u32 s{sT0}, s{sT0}, {3*KV_CH + 16384}")
    a(f"v_mov_b32 v{vT+2}, s{sT0}")
    a(f"v_mov_b32 v{vT+3}, s{sFAIL}")
    if "ts2" in OPT: stamp(a, 1)
    a("s_barrier")
    if "ts2" in OPT: stamp(a, 2)
    a(f"s_cmp_eq_u32 s{sGRP}, 0")
    a("s_cbranch_scc1 K2_XA")
    for j in range(4):
        a(f"ds_write_b128 v{vT}, v[{O[0]+4*j}:{O[0]+4*j+3}] offset:{j*1024}")
    a("s_branch K2_XB")
    a.lab("K2_XA")
    for j in range(4):
        a(f"ds_write_b128 v{vT}, v[{O[1]+4*j}:{O[1]+4*j+3}] offset:{j*1024}")
    a.lab("K2_XB")
    a(f"ds_write_b32 v{vT+2}, v{vT+3}")
    a(f"v_mov_b32 v{vT+2}, {3*KV_CH + 16384}")
    a("s_waitcnt lgkmcnt(0)")
    a("s_barrier")
    if "ts2" in OPT: stamp(a, 3)
    a(f"ds_read_b128 v[{vT+4}:{vT+7}], v{vT+2}")
    a(f"ds_read_b128 v[{vS0}:{vS0+3}], v{vT+2} offset:16")
    a(f"s_cmp_eq_u32 s{sGRP}, 0")
    a("s_cbranch_scc1 K2_XC")
    for j in range(4):
        a(f"ds_read_b128 v[{O[0]+4*j}:{O[0]+4*j+3}], v{vT+1} offset:{j*1024}")
    a("s_branch K2_XD")
    a.lab("K2_XC")
    for j in range(4):
        a(f"ds_read_b128 v[{O[1]+4*j}:{O[1]+4*j+3}], v{vT+1} offset:{j*1024}")
    a.lab("K2_XD")
    a("s_waitcnt lgkmcnt(4)")
    a(f"v_or3_b32 v{vT+4}, v{vT+4}, v{vT+5}, v{vT+6}")
    a(f"v_or3_b32 v{vT+4}, v{vT+4}, v{vT+7}, v{vS0}")
    a(f"v_or3_b32 v{vT+4}, v{vT+4}, v{vS0+1}, v{vS0+2}")
    a(f"v_or_b32 v{vT+4}, v{vT+4}, v{vS0+3}")
    a("s_nop 0")
    a(f"v_readfirstlane_b32 s{sT0}, v{vT+4}")
    a("s_nop 3")
    a(f"s_cmp_lg_u32 s{sT0}, 0")
    a("s_cbranch_scc1 K2_REDO")
    a("s_waitcnt lgkmcnt(0)")
    a(f"v_sub_f32 v{vT+2}, v{O[1]+13}, v{O[0]+13}")
    a(f"v_sub_f32 v{vT+3}, 0, v{vT+2}")
    a(f"v_min_f32 v{vT+2}, 0, v{vT+2}")
    a(f"v_min_f32 v{vT+3}, 0, v{vT+3}")
    a(f"v_exp_f32 v{vT+2}, v{vT+2}")
    a(f"v_exp_f32 v{vT+3}, v{vT+3}")
    rowsum(vT + 4, O[0])
    rowsum(vT + 5, O[1])
    a(f"v_mul_f32 v{vT+4}, v{vT+4}, v{vT+2}")
    a(f"v_fmac_f32 v{vT+4}, v{vT+5}, v{vT+3}")
    a(f"v_rcp_f32 v{vT+4}, v{vT+4}")
    a(f"v_sub_f32 v{vT+5}, 1.0, v{vGATE}")
    a("s_nop 0")
    a(f"v_mul_f32 v{vT+4}, v{vT+4}, v{vT+5}")
    a(f"v_mul_f32 v{vT+2}, v{vT+2}, v{vT+4}")
    a(f"v_mul_f32 v{vT+3}, v{vT+3}, v{vT+4}")
    for i in range(0, 12, 2):
        a(f"v_pk_mul_f32 v[{O[0]+i}:{O[0]+i+1}], v[{O[0]+i}:{O[0]+i+1}], v[{vT+2}:{vT+3}] op_sel_hi:[1,0]")
        a(f"v_pk_fma_f32 v[{O[0]+i}:{O[0]+i+1}], v[{O[1]+i}:{O[1]+i+1}], v[{vT+2}:{vT+3}], v[{O[0]+i}:{O[0]+i+1}] op_sel:[0,1,0] op_sel_hi:[1,1,1]")
    for i in range(4):
        a(f"v_cvt_pk_bf16_f32 v{vOB+i}, v{O[0]+2*i}, v{O[0]+2*i+1}")
    for i in range(2):
        a(f"v_cvt_pk_bf16_f32 v{vOB+6+i}, v{O[0]+8+2*i}, v{O[0]+9+2*i}")
    ostore(1, vOB)
    a(f"s_mov_b64 exec, s[{sLO}:{sLO+1}]")
    a(f"buffer_store_dwordx4 v[{vOB+4}:{vOB+7}], v{vOSA}, s[{SWS}:{SWS+3}], s{sT1} offen offset:1024{OFL}")
    a("s_mov_b64 exec, -1")
    if FUSE:
        if WIN:
            a(f"s_cmp_eq_u32 s{sPASS}, 0")
            a("s_cbranch_scc1 K2_WOK")
            a("s_barrier")
            a(f"s_mov_b32 s{sWL}, 0")
            a(f"s_mov_b32 s{sWS}, s{sWS0}")
            for p in range(WIN):
                for j in range(5):
                    for x in wdma(j, sWL): a(x)
                a(f"s_add_u32 s{sWL}, s{sWL}, {KV_CH}")
                a(f"s_add_u32 s{sWS}, s{sWS}, {K3_BUF}")
            a("s_waitcnt vmcnt(0)")
            a.lab("K2_WOK")
        stamp(a, 6)
        NPRE = 0
        if WIN == 3:
            a("s_barrier")
            a(f"s_mov_b32 s{sWL}, {3*KV_CH}")
            for j in range(5):
                for x in wdma(j, sWL): a(x)
            NPRE = 5
        elif WIN == 2:
            a(f"s_mov_b32 s{sWL}, {2*KV_CH}")
            for j in range(5):
                for x in wdma(j, sWL): a(x)
            a(f"s_add_u32 s{sWS}, s{sWS}, {K3_BUF}")
            NPRE = 5
        a(f"s_waitcnt vmcnt({NPRE})")
        if "tailstamps" in OPT: stamp(a, 1)
        a("s_barrier")
        if "tailstamps" in OPT: stamp(a, 2)
        a(f"s_cmp_lg_u32 s{sW}, 0")
        a("s_cbranch_scc1 K2_NOPOLL0")
        a(f"s_lshl_b32 s{sT0}, s{sQB}, 12")
        a(f"s_add_u32 s{sT0}, s{sT0}, {FL_OFF}")
        a(f"s_mov_b64 exec, s[{sLO}:{sLO+1}]")
        a(f"v_mov_b32 v{vT}, 1")
        a(f"v_lshlrev_b32 v{vT+5}, 7, v{vLANE}")
        a(f"buffer_atomic_add v{vT}, v{vT+5}, s[{SWS}:{SWS+3}], s{sT0} offen")
        a("s_mov_b64 exec, -1")
        a.lab("K2_NOPOLL0")
        WPOST = 4 if WIN == 3 else optval("wpost", 4)
        if WIN != 3:
            W0P = 3 if WIN == 2 else WIN
            a(f"s_mov_b32 s{sWL}, {W0P*KV_CH}")
            for p in range(W0P, WPOST):
                for j in range(5):
                    for x in wdma(j, sWL): a(x)
                a(f"s_add_u32 s{sWL}, s{sWL}, {KV_CH}")
                a(f"s_add_u32 s{sWS}, s{sWS}, {K3_BUF}")
        bufss = [((ss // 2) % 4) * KV_CH + (ss & 1) * 4 * KV_CH for ss in range(10)]
        pc = proj_core(a, "K2", SWS, 68, sW, 64, 65, 50, bufss,
                       lambda p, j, sM0: f"s_add_u32 m0, s{sDO+j}, {(p % 4)*KV_CH}", ({1: [4]} if WPOST == 4 else {0: [3], 1: [4]}), optval("k2opre", 4))
        pc.setup()
        srd(a, 68, 60, 61, 2048 * 1280)
        pc.addr_setup(0)
        if "tailstamps" in OPT: stamp(a, 3)
        a(f"s_cmp_lg_u32 s{sW}, 0")
        a("s_cbranch_scc1 K2_NOPOLL")
        a(f"s_lshl_b32 s{sT0}, s{sHEAD}, 3")
        a(f"s_add_u32 s{sT0}, s{sT0}, s{sQB}")
        a(f"s_lshl_b32 s{sT0}, s{sT0}, 7")
        a(f"s_add_u32 s{sT0}, s{sT0}, {FL_OFF}")
        a("s_mov_b64 exec, 1")
        a(f"v_mov_b32 v{vT+5}, 0")
        a(f"s_mov_b32 s{sT1}, 0")
        a.lab("K2_POLL")
        a(f"buffer_load_dword v{vT+4}, v{vT+5}, s[{SWS}:{SWS+3}], s{sT0} offen sc1")
        a("s_waitcnt vmcnt(0)")
        a(f"v_readfirstlane_b32 s{sT2}, v{vT+4}")
        a(f"s_add_u32 s{sT1}, s{sT1}, 1")
        a(f"s_cmp_ge_u32 s{sT2}, 32")
        a("s_cbranch_scc1 K2_POLLED")
        a(f"s_sleep {optval('psleep', 2)}")
        a(f"s_cmp_lt_u32 s{sT1}, 0x40000")
        a("s_cbranch_scc1 K2_POLL")
        a.lab("K2_POLLED")
        a("s_waitcnt vmcnt(0)")
        if "tailstamps" in OPT:
            stamp(a, 4)
        a("s_mov_b64 exec, -1")
        a.lab("K2_NOPOLL")
        a("s_waitcnt vmcnt(0)")
        a("s_barrier")
        stamp(a, 7)
        pc.body([("o", 0), ("o", 1), ("o", 2), ("o", 3)])
        if PROF: a("s_waitcnt vmcnt(0)")
        stamp(a, 8)
        stamp_flush(a, 1, 9, SWS, sW, vT)
        if "dbgtime" in OPT:
            a("s_waitcnt vmcnt(0)")
            a("s_memrealtime s[94:95]")
            a("s_waitcnt lgkmcnt(0)")
            a("s_sub_u32 s92, s92, 512")
            a("s_subb_u32 s93, s93, 0")
            srd(a, 84, 92, 93, 256)
            a("s_mov_b64 exec, 1")
            a("v_mov_b32 v20, 0")
            a("s_not_b32 s90, s90")
            a("v_mov_b32 v21, s90")
            a("buffer_atomic_umax v21, v20, s[84:87], 0 offen offset:8")
            a("v_mov_b32 v22, s94")
            a("buffer_atomic_umax v22, v20, s[84:87], 0 offen offset:12")
        a("s_endpgm")
    else:
        a("s_branch K2_DONE")
    a.lab("K2_REDO")
    a("s_waitcnt vmcnt(0) lgkmcnt(0)")
    a("s_barrier")
    a(f"s_mov_b32 s{sDG}, 0")
    for p in range(4):
        for j in range(5):
            for x in dma1(j): a(x)
        a(f"s_add_u32 s{sDG}, s{sDG}, {KV_CH}")
    a(f"s_mov_b32 s{sPASS}, 1")
    if FUSE: a(f"s_mov_b32 s{sWC}, 99")
    a(f"v_mov_b32 v{vT}, {f2u(-3.0e38):#x}")
    a(f"v_mov_b32 v{vT+2}, {f2u(-3.0e38):#x}")
    setbases()
    a(f"s_mov_b32 s{sC}, 0")
    a("s_waitcnt vmcnt(0)")
    a("s_barrier")
    a.lab("K2_MAXLOOP")
    for tt in range(8):
        a(rdK16(vKA, 0, tt))
        a(rdK4(vKB, 0, tt))
        a("s_waitcnt lgkmcnt(0)")
        for sg in range(2):
            for x in qk(S[sg], vKA, vKB, sg, "0"): a(x)
        a("s_nop 15")
        for sg in range(2):
            rowmax(vT + 2 * sg, [S[sg] + i for i in range(16)], first=True)
    for r in (vKe, vKo, vK4c):
        a(f"v_add_u32 v{r}, {KV_CH}, v{r}")
    a(f"s_add_u32 s{sC}, s{sC}, 1")
    a(f"s_cmp_lt_u32 s{sC}, 4")
    a("s_cbranch_scc1 K2_MAXLOOP")
    for sg in range(2):
        a(f"v_mov_b32 v{vT+2*sg+1}, v{vT+2*sg}")
    a("s_nop 1")
    for sg in range(2):
        a(f"v_permlane32_swap_b32 v{vT+2*sg}, v{vT+2*sg+1}")
    a("s_nop 1")
    for sg in range(2):
        a(f"v_max_f32 v{vT+2*sg}, v{vT+2*sg}, v{vT+2*sg+1}")
        for i in range(16):
            a(f"v_sub_f32 v{NEG[sg]+i}, 0, v{vT+2*sg}")
            a(f"v_mov_b32 v{O[sg]+i}, 0")
    for i in range(4):
        a(f"v_mov_b32 v{vP+4+i}, 0")
    a("s_branch K2_START")
    for lab, body in ool:
        a.lab(lab)
        for x in body: a(x)
    a.lab("K2_DONE")
    stamp(a, 6)
    if PROF: a("s_waitcnt vmcnt(0)")
    stamp(a, 7)
    if "chunkstamp" in OPT:
        a(f"s_lshl_b32 s97, s2, 3")
        a(f"s_add_u32 s97, s97, s{sW}")
        a(f"s_lshl_b32 s97, s97, 6")
        a(f"s_add_u32 s97, s97, {PROF_OFF + 3 * 0x100000}")
        a(f"v_lshlrev_b32 v{vT}, 2, v{vLANE}")
        a("s_mov_b64 exec, 0xff")
        a(f"buffer_store_dword v247, v{vT}, s[{SWS}:{SWS+3}], s97 offen")
        a("s_mov_b64 exec, -1")
    stamp_flush(a, 1, 8, SWS, sW, vT)
    a.lab("K2_END")
    a("s_endpgm")
    a.raw(".p2align 4")
    a.lab("K2_TABLE")
    tab = mask_table()
    for i in range(0, len(tab), 8):
        a.raw("    .long " + ", ".join(f"{x:#x}" for x in tab[i:i+8]))
    a.lab("K2_TEXT_END")
    return name, NV

K3_BUF = 40 * 1024
K3_NBUF = 3
K3_LDS = K3_BUF * K3_NBUF

K3_GRID = 256
def proj_core(a, pfx, SWS, SOUT, sW, sMT, sNT, sbase, bufss, wm0, wplan, OPRE, vLANE=1, vL16=2):
    sMB, sKH, sT0, sT1, sT2, sOB, sWB, sM0, sOUT = [sbase + i for i in range(9)]
    vWR = 6; vWA = 7; vT = 8
    vOF = 20; vWF = 100; vACC = 180
    oflags = " sc1" if pfx == "K2" else ""
    issued = []
    def setup():
        a(f"s_and_b32 s{sMB}, s{sW}, 3")
        a(f"s_lshr_b32 s{sKH}, s{sW}, 2")
        a(f"s_lshl_b32 s{sM0}, s{sW}, 10")
        a(f"s_mul_i32 s{sWB}, s{sNT}, {200*1024}")
        a(f"s_add_u32 s{sWB}, s{sWB}, s{sM0}")
        a(f"s_add_u32 s{sWB}, s{sWB}, {WT_OFF}")
        a(f"s_lshl_b32 s{sOB}, s{sMT}, 2")
        a(f"s_add_u32 s{sOB}, s{sOB}, s{sMB}")
        a(f"s_mul_i32 s{sOUT}, s{sOB}, {16*1280}")
        a(f"s_mul_i32 s{sOB}, s{sOB}, 40")
        a(f"s_lshl_b32 s{sT0}, s{sKH}, 1")
        a(f"s_add_u32 s{sOB}, s{sOB}, s{sT0}")
        a(f"s_lshl_b32 s{sOB}, s{sOB}, 10")
        a(f"s_add_u32 s{sOB}, s{sOB}, {O_OFF}")
        a(f"s_mul_i32 s{sT2}, s{sNT}, 160")
        a(f"s_add_u32 s{sOUT}, s{sOUT}, s{sT2}")
    def wgroup(p):
        g = []
        for j in range(5):
            g.append(([wm0(p, j, sM0),
                       f"s_add_u32 s{sT1}, s{sWB}, {p*K3_BUF + j*8192}",
                       f"buffer_load_dwordx4 v{vL16}, s[{SWS}:{SWS+3}], s{sT1} offen lds"], ("W", p)))
        return g
    def ogroup(ss):
        g = []
        for i in range(2):
            d = vOF + (ss * 2 + i) * 4
            g.append(([f"s_add_u32 s{sT0}, s{sOB}, {(ss*4 + i)*1024}",
                       f"buffer_load_dwordx4 v[{d}:{d+3}], v{vL16}, s[{SWS}:{SWS+3}], s{sT0} offen{oflags}"], ("o", ss)))
        return g
    def emit(item):
        for x in item[0]: a(x)
        issued.append(item[1])
    def vm(need):
        last = max([i for i, t in enumerate(issued) if t in need], default=-1)
        return min(63, len(issued) - 1 - last)
    def reads(ss):
        st = ss & 1
        off = bufss[ss]
        out = [f"v_add_u32 v{vWA}, {off}, v{vWR}"]
        for i in range(2):
            for b in range(5):
                r = vWF + st * 40 + (i * 5 + b) * 4
                out.append(f"ds_read_b128 v[{r}:{r+3}], v{vWA} offset:{(i*5 + b)*1024}")
        return out
    def addr_setup(xbase):
        a(f"s_mul_i32 s{sT0}, s{sKH}, {10*1024}")
        a(f"v_add_u32 v{vWR}, s{sT0}, v{vL16}")
        a(f"v_and_b32 v{vT+1}, 15, v{vLANE}")
        a(f"v_mul_u32_u24 v{vT+1}, 1280, v{vT+1}")
        a(f"v_lshrrev_b32 v{vT+2}, 4, v{vLANE}")
        a(f"v_lshl_add_u32 v{vT+1}, v{vT+2}, 3, v{vT+1}")
        a(f"s_mul_i32 s{sT0}, s{sW}, {3*1024}")
        a(f"s_add_u32 s{sT0}, s{sT0}, {xbase}")
        a(f"v_add_u32 v{vT}, s{sT0}, v{vL16}")
        a(f"s_xor_b32 s{sT2}, s{sW}, 4")
        a(f"s_mul_i32 s{sT2}, s{sT2}, {3*1024}")
        a(f"s_add_u32 s{sT2}, s{sT2}, {xbase}")
        a(f"v_add_u32 v{vT+3}, s{sT2}, v{vL16}")
    def body(first):
        for kind, idx in first:
            for it in (wgroup(idx) if kind == "W" else ogroup(idx)): emit(it)
        nxt_o = max([idx for kind, idx in first if kind == "o"], default=-1) + 1
        if pfx == "K3": stamp(a, 1)
        a(f"s_waitcnt vmcnt({vm({('W', 0)})})")
        a("s_barrier")
        if pfx == "K3": stamp(a, 2)
        for r in reads(0): a(r)
        for ss in range(10):
            p = ss // 2
            need = {("o", ss)}
            if ss % 2 == 1 and p + 1 < 5: need.add(("W", p + 1))
            a(f"s_waitcnt vmcnt({vm(need)}) lgkmcnt(0)")
            if ss % 2 == 1 and ss < 9: a("s_barrier")
            mf = []
            for i in range(2):
                for b in range(5):
                    acc = vACC + b * 4
                    wf = vWF + (ss & 1) * 40 + (i * 5 + b) * 4
                    of = vOF + (ss * 2 + i) * 4
                    c = "0" if (ss == 0 and i == 0) else f"v[{acc}:{acc+3}]"
                    mf.append(f"v_mfma_f32_16x16x32_bf16 v[{acc}:{acc+3}], v[{wf}:{wf+3}], v[{of}:{of+3}], {c}")
            rd = reads(ss + 1) if ss < 9 else []
            ld = []
            for p2 in wplan.get(ss, []): ld += wgroup(p2)
            while nxt_o < 10 and nxt_o <= ss + OPRE:
                ld += ogroup(nxt_o); nxt_o += 1
            ex = [("r", r) for r in rd]
            mixed = []
            step = max(1, len(ex) // max(1, len(ld))) if ld else 0
            k = 0
            for i, e in enumerate(ex):
                mixed.append(e)
                if ld and k < len(ld) and (i + 1) % step == 0:
                    mixed.append(("l", ld[k])); k += 1
            while k < len(ld):
                mixed.append(("l", ld[k])); k += 1
            k = 0
            for i, m in enumerate(mf):
                a(m)
                tgt = min(len(mixed), ((i + 1) * len(mixed) + 8) // 9)
                while k < tgt:
                    if mixed[k][0] == "r": a(mixed[k][1])
                    else: emit(mixed[k][1])
                    k += 1
        if pfx == "K3": stamp(a, 3)
        a("s_barrier")
        a(f"s_cmp_eq_u32 s{sKH}, 0")
        a(f"s_cbranch_scc1 {pfx}_PW0")
        a("s_nop 4")
        for b in range(3):
            a(f"ds_write_b128 v{vT}, v[{vACC+b*4}:{vACC+b*4+3}] offset:{b*1024}")
        a("s_waitcnt lgkmcnt(0)")
        a("s_barrier")
        def fin(blocks):
            for n, b in enumerate(blocks):
                a(f"ds_read_b128 v[{vOF+4*n}:{vOF+4*n+3}], v{vT+3} offset:{n*1024}")
            for n, b in enumerate(blocks):
                a(f"s_waitcnt lgkmcnt({len(blocks)-1-n})")
                for i in range(0, 4, 2):
                    a(f"v_pk_add_f32 v[{vOF+4*n+i}:{vOF+4*n+i+1}], v[{vOF+4*n+i}:{vOF+4*n+i+1}], v[{vACC+4*b+i}:{vACC+4*b+i+1}]")
                a(f"v_cvt_pk_bf16_f32 v{vWF+2*n}, v{vOF+4*n}, v{vOF+4*n+1}")
                a(f"v_cvt_pk_bf16_f32 v{vWF+2*n+1}, v{vOF+4*n+2}, v{vOF+4*n+3}")
                a(f"buffer_store_dwordx2 v[{vWF+2*n}:{vWF+2*n+1}], v{vT+1}, s[{SOUT}:{SOUT+3}], s{sOUT} offen offset:{b*32}")
        fin([3, 4])
        a(f"s_branch {pfx}_PFIN")
        a.lab(f"{pfx}_PW0")
        a("s_nop 4")
        for n, b in enumerate((3, 4)):
            a(f"ds_write_b128 v{vT}, v[{vACC+b*4}:{vACC+b*4+3}] offset:{n*1024}")
        a("s_waitcnt lgkmcnt(0)")
        a("s_barrier")
        fin([0, 1, 2])
        a.lab(f"{pfx}_PFIN")
    class C: pass
    c = C(); c.setup = setup; c.wgroup = wgroup; c.emit = emit; c.addr_setup = addr_setup; c.body = body; c.issued = issued
    return c

def gen_k3(a):
    name = "k3_proj_kernel"
    kernel_head(a, name)
    SWS = 8; SOUT = 20
    sW = 24; sMT = 27; sNT = 28
    vLANE = 1; vL16 = 2; vT = 8
    NV = 200
    a(f"s_cmp_ge_u32 s2, {K3_GRID}")
    a("s_cbranch_scc1 K3_END")
    stamp(a, 0)
    a("s_load_dwordx2 s[4:5], s[0:1], 72")
    a("s_load_dwordx2 s[36:37], s[0:1], 56")
    a(f"v_and_b32 v{vLANE}, 63, v0")
    a(f"v_lshrrev_b32 v{vT}, 6, v0")
    a(f"s_and_b32 s{sMT}, s2, 7")
    a(f"v_readfirstlane_b32 s{sW}, v{vT}")
    a(f"s_lshl_b32 s{sMT}, s{sMT}, 2")
    a(f"s_lshr_b32 s29, s2, 6")
    a(f"s_add_u32 s{sMT}, s{sMT}, s29")
    a(f"s_lshr_b32 s{sNT}, s2, 3")
    a(f"s_and_b32 s{sNT}, s{sNT}, 7")
    a(f"v_lshlrev_b32 v{vL16}, 4, v{vLANE}")
    bufss = [((ss // 2) % 3) * K3_BUF + (ss & 1) * 20 * 1024 for ss in range(10)]
    c = proj_core(a, "K3", SWS, SOUT, sW, sMT, sNT, 40, bufss, lambda p, j, sM0: f"s_add_u32 m0, s{sM0}, {(p % 3)*K3_BUF + j*8192}",
                  {0: [2], 1: [3], 3: [4]}, optval("k3opre", 4))
    c.setup()
    a("s_waitcnt lgkmcnt(0)")
    srd(a, SWS, 4, 5, WS_USED)
    srd(a, SOUT, 36, 37, 2048 * 1280)
    c.addr_setup(0)
    c.body([("W", 0), ("o", 0), ("o", 1), ("W", 1), ("o", 2), ("o", 3)])
    stamp(a, 4)
    if PROF: a("s_waitcnt vmcnt(0)")
    stamp(a, 5)
    stamp_flush(a, 2, 6, SWS, sW, vT)
    a.lab("K3_END")
    a("s_endpgm")
    return name, NV

def build(kernels=("k1", "k2", "k3")):
    a = Asm()
    fuse = "nofuse" not in OPT
    k3line = "" if fuse else f"; @launch kernel=k3_proj_kernel grid=({K3_GRID},1,1) block=(512,1,1) lds={K3_LDS}\n"
    hdr = f"""; Gated mix of sliding-window dilated attention (A) and full softmax MHA (B): three launches.
; @launch kernel=k1_qkv_kernel grid=(256,1,1) block=(512,1,1) lds={K1_LDS}
; @launch kernel=k2_attn_kernel grid=(256,1,1) block=(512,1,1) lds={K2_LDS}
{k3line}.amdgcn_target "amdgcn-amd-amdhsa--gfx950"
.text
"""
    descs = []
    for g in ((gen_k1, gen_k2) if fuse else (gen_k1, gen_k2, gen_k3)):
        n, nv = g(a)
        descs.append(kernel_desc(n, nv))
    txt = a.text()
    txt = txt.replace("K2CODE_WAVES", "((K2_TEXT_END-k2_attn_kernel) >> 13)")
    return hdr + txt + '.section .rodata,"a"\n' + "".join(".p2align 6\n" + d for d in descs)

if __name__ == "__main__":
    if len(sys.argv) > 2 and sys.argv[2] == "prof":
        PROF = True
    OPT.update(sys.argv[3:])
    if "st_plain" in OPT: STORE_FLAGS = ""
    if "st_sc1" in OPT: STORE_FLAGS = " sc1"
    if "st_nt" in OPT: STORE_FLAGS = " nt"
    if "st_sc01" in OPT: STORE_FLAGS = " sc0 sc1"
    if "st_sc1nt" in OPT: STORE_FLAGS = " sc1 nt"
    if "st_all" in OPT: STORE_FLAGS = " sc0 sc1 nt"
    out = sys.argv[1] if len(sys.argv) > 1 else f"cdna_kernels/{NAME}.s"
    open(out, "w").write(build())
    print("wrote", out)
```

```python
import sys, struct

NAME = "gated_mix__sliding_local_dilated__softmax_full_mha__prompt"

KV_HEAD = 163840
KV_CH = 20480
Q_HEAD = 81920
Q_CH = 10240
KVA_OFF = 0
KVB_OFF = 32 * KV_HEAD
QA_OFF = 2 * 32 * KV_HEAD
QB_OFF = QA_OFF + 32 * Q_HEAD
G_OFF = QB_OFF + 32 * Q_HEAD
FL_OFF = 0xF04000
WT_OFF = 0xF10000
O_OFF = 0x1100000
O_SIZE = 128 * 40 * 1024
WS_USED = 0x2400000
QSCALE = (20 ** -0.5) * 1.4426950408889634

def f2u(x):
    return struct.unpack("<I", struct.pack("<f", x))[0]

class Asm:
    def __init__(self):
        self.l = []
    def __call__(self, s):
        for x in s.strip("\n").split("\n"):
            self.l.append("    " + x.strip())
    def lab(self, s):
        self.l.append(s + ":")
    def raw(self, s):
        self.l.append(s)
    def text(self):
        return "\n".join(self.l) + "\n"

def vr(b, n=1):
    return f"v{b}" if n == 1 else f"v[{b}:{b+n-1}]"
def sr(b, n=1):
    return f"s{b}" if n == 1 else f"s[{b}:{b+n-1}]"

def kernel_head(a, name):
    a.raw(f".globl {name}")
    a.raw(".p2align 8")
    a.raw(f".type {name},@function")
    a.lab(name)

def kernel_desc(name, nv, ns=102):
    acc = (nv + 3) // 4 * 4
    return f""".amdhsa_kernel {name}
  .amdhsa_next_free_vgpr {nv}
  .amdhsa_next_free_sgpr {ns}
  .amdhsa_accum_offset {acc}
  .amdhsa_group_segment_fixed_size 0
  .amdhsa_kernarg_size 80
  .amdhsa_user_sgpr_count 2
  .amdhsa_user_sgpr_kernarg_segment_ptr 1
  .amdhsa_system_sgpr_workgroup_id_x 1
  .amdhsa_float_denorm_mode_32 3
  .amdhsa_float_denorm_mode_16_64 3
.end_amdhsa_kernel
"""

PROF = False
OPT = set()
STORE_FLAGS = " sc1"
PROF_OFF = 0x2000000
def optval(name, default):
    for o in OPT:
        if o.startswith(name + "="): return int(o.split("=")[1])
    return default
def stamp(a, i):
    if PROF:
        a(f"s_memtime s[{80+2*i}:{81+2*i}]")
        if i == 0: a("s_memrealtime s[76:77]")
def stamp_flush(a, kidx, n, srdreg, wave_sgpr, vtmp):
    if not PROF: return
    a("s_memrealtime s[98:99]")
    a("s_waitcnt lgkmcnt(0)")
    a(f"s_lshl_b32 s75, s2, 3")
    a(f"s_add_u32 s75, s75, s{wave_sgpr}")
    a(f"s_lshl_b32 s75, s75, 6")
    a(f"s_add_u32 s75, s75, {PROF_OFF + kidx * 0x100000}")
    a("s_mov_b64 exec, 1")
    a(f"v_mov_b32 v{vtmp+1}, 0")
    for i in range(n):
        a(f"v_mov_b32 v{vtmp}, s{80+2*i}")
        a(f"buffer_store_dword v{vtmp}, v{vtmp+1}, s[{srdreg}:{srdreg+3}], s75 offen offset:{4*i}")
    a(f"v_mov_b32 v{vtmp}, s76")
    a(f"buffer_store_dword v{vtmp}, v{vtmp+1}, s[{srdreg}:{srdreg+3}], s75 offen offset:56")
    a(f"v_mov_b32 v{vtmp}, s98")
    a(f"buffer_store_dword v{vtmp}, v{vtmp+1}, s[{srdreg}:{srdreg+3}], s75 offen offset:60")

def srd(a, d, lo, hi, size):
    a(f"s_mov_b32 s{d}, s{lo}")
    a(f"s_and_b32 s{d+1}, s{hi}, 0xffff")
    a(f"s_mov_b32 s{d+2}, {size}")
    a(f"s_mov_b32 s{d+3}, 0x00020000")

K1_XB = 32768
K1_BUF = 32768 + 16384
K1_NBUF = 3
K1_LDS = K1_BUF * K1_NBUF

def gen_k1(a):
    PF0 = optval("pf0", 3)
    name = "k1_qkv_kernel"
    kernel_head(a, name)
    SX = 12; SW = 16; SWS = 20; SG = 24
    sW = 32; sWM = 33; sWN = 34; sI = 35; sRD = 36; sWRB = 37
    sXS = 38; sWS1 = 39; sXM0 = 41; sWM0 = 42; sMT = 43; sNT = 44; sBR = 45
    sTMP = 46; sTMP2 = 47; sTMP3 = 48; sTMP4 = 49
    sSEC = 50; sFB = 51; sEO = 52; sD = 53; sHS = 54; sSC = 56
    vLANE = 1; vXO = 2; vWO = 4
    vXR = 6
    vWR = 10
    vXA = 12
    vWA = 16
    vT = 18
    vXF = 32
    vWF = 64
    vACC = 96
    vEO = 160
    vPF = 176
    NV = 184

    a("s_cmp_ge_u32 s2, 256")
    a("s_cbranch_scc1 K1_END")
    stamp(a, 0)
    if "dbgtime" in OPT:
        a("s_memrealtime s[90:91]")
        a("s_memtime s[88:89]")
    a("s_lshr_b32 s45, s2, 2")
    a("s_and_b32 s45, s45, 1")
    a("s_mul_i32 s46, s45, 24")
    a("s_add_u32 s46, s46, 8")
    a("s_load_dwordx2 s[10:11], s[0:1], s46")
    a("s_load_dwordx2 s[8:9], s[0:1], 0")
    a("s_load_dwordx2 s[4:5], s[0:1], 72")
    a("s_load_dwordx2 s[6:7], s[0:1], 48")
    a(f"v_and_b32 v{vLANE}, 63, v0")
    a(f"v_lshrrev_b32 v{vT}, 6, v0")
    a(f"s_lshr_b32 s{sTMP}, s2, 3")
    a(f"v_readfirstlane_b32 s{sW}, v{vT}")
    a(f"s_and_b32 s{sMT}, s2, 3")
    a(f"s_lshl_b32 s{sMT}, s{sMT}, 1")
    a(f"s_and_b32 s{sTMP2}, s{sTMP}, 1")
    a(f"s_add_u32 s{sMT}, s{sMT}, s{sTMP2}")
    a(f"s_lshr_b32 s{sNT}, s{sTMP}, 1")
    a(f"s_cmp_ge_u32 s{sNT}, 15")
    a("s_cbranch_scc1 K1_GATE")
    a(f"s_and_b32 s{sWM}, s{sW}, 3")
    a(f"s_lshr_b32 s{sWN}, s{sW}, 2")
    a(f"v_lshrrev_b32 v{vT}, 3, v{vLANE}")
    a(f"v_lshrrev_b32 v{vT+1}, 4, v{vLANE}")
    a(f"v_xor_b32 v{vT+1}, v{vT+1}, v{vLANE}")
    a(f"v_and_b32 v{vT+1}, 7, v{vT+1}")
    a(f"s_lshl_b32 s{sTMP}, s{sMT}, 8")
    a(f"s_lshl_b32 s{sTMP2}, s{sW}, 5")
    a(f"s_add_u32 s{sTMP}, s{sTMP}, s{sTMP2}")
    a(f"v_add_u32 v{vT}, s{sTMP}, v{vT}")
    a(f"v_mul_u32_u24 v{vT}, 1280, v{vT}")
    a(f"v_lshl_add_u32 v{vXO}, v{vT+1}, 4, v{vT}")
    a(f"v_xor_b32 v{vXO+1}, 64, v{vXO}")
    a(f"v_lshrrev_b32 v{vT}, 4, v{vLANE}")
    a(f"v_lshlrev_b32 v{vT+1}, 2, v{vT}")
    a(f"v_xor_b32 v{vT+1}, v{vT+1}, v{vLANE}")
    a(f"v_and_b32 v{vT+1}, 15, v{vT+1}")
    a(f"s_lshl_b32 s{sTMP}, s{sW}, 3")
    a(f"v_add_u32 v{vT}, s{sTMP}, v{vT}")
    a(f"v_mul_u32_u24 v{vT}, 3840, v{vT}")
    a(f"v_lshl_add_u32 v{vT}, v{vT+1}, 4, v{vT}")
    a(f"s_lshl_b32 s{sTMP}, s{sNT}, 8")
    a(f"v_add_u32 v{vWO}, s{sTMP}, v{vT}")
    a(f"s_lshl_b32 s{sXM0}, s{sW}, 12")
    a(f"s_lshl_b32 s{sWM0}, s{sW}, 11")
    a(f"s_add_u32 s{sWM0}, s{sWM0}, {K1_XB}")
    a("s_waitcnt lgkmcnt(0)")
    srd(a, SX, 8, 9, 2048 * 1280)
    srd(a, SW, 10, 11, 640 * 3840)

    def dma_list(buf_s, inloop=False):
        g = []
        if "k1nodma" in OPT and inloop: return [["s_nop 0"]] * 6
        for i in range(4):
            g.append([f"s_add_u32 m0, s{buf_s}, s{sXM0}" if i == 0 else f"s_add_u32 m0, m0, 1024",
                      f"s_add_u32 s{sTMP3}, s{sXS}, {i*8*1280}",
                      f"buffer_load_dwordx4 v{vXO + (i & 1)}, s[{SX}:{SX+3}], s{sTMP3} offen lds"])
        for i in range(2):
            g.append([f"s_add_u32 m0, s{buf_s}, s{sWM0}" if i == 0 else f"s_add_u32 m0, m0, 1024",
                      f"s_add_u32 s{sTMP3}, s{sWS1}, {i*4*3840}",
                      f"buffer_load_dwordx4 v{vWO}, s[{SW}:{SW+3}], s{sTMP3} offen lds"])
        g[-1] = g[-1] + [f"s_add_u32 s{sXS}, s{sXS}, 128", f"s_add_u32 s{sWS1}, s{sWS1}, {64*3840}"]
        return g
    a(f"s_mov_b32 s{sXS}, 0")
    a(f"s_mov_b32 s{sWS1}, 0")
    a(f"s_mov_b32 s{sWRB}, 0")
    for g in dma_list(sWRB):
        for x in g: a(x)
    srd(a, SWS, 4, 5, WS_USED)
    a(f"v_and_b32 v{vT}, 31, v{vLANE}")
    a(f"v_lshrrev_b32 v{vT+1}, 5, v{vLANE}")
    a(f"v_bfe_u32 v{vT+2}, v{vLANE}, 1, 3")
    a(f"v_xor_b32 v{vT+2}, v{vT+2}, v{vT+1}")
    a(f"v_lshlrev_b32 v{vT+2}, 4, v{vT+2}")
    a(f"v_lshl_add_u32 v{vXR}, v{vT}, 7, v{vT+2}")
    a(f"s_lshl_b32 s{sTMP}, s{sWM}, 13")
    a(f"v_add_u32 v{vXR}, s{sTMP}, v{vXR}")
    for kk in range(1, 4):
        a(f"v_xor_b32 v{vXR+kk}, {kk << 5}, v{vXR}")
    a(f"v_bfe_u32 v{vT+2}, v{vLANE}, 2, 2")
    a(f"v_lshl_add_u32 v{vT+3}, v{vT+1}, 3, v{vT+2}")
    a(f"v_lshlrev_b32 v{vT+3}, 8, v{vT+3}")
    a(f"v_and_b32 v{vT+4}, 3, v{vLANE}")
    a(f"v_lshl_add_u32 v{vT+3}, v{vT+4}, 3, v{vT+3}")
    a(f"v_bfe_u32 v{vT+4}, v{vLANE}, 4, 1")
    a(f"v_lshl_add_u32 v{vT+3}, v{vT+4}, 5, v{vT+3}")
    a(f"v_add_u32 v{vT+3}, {K1_XB}, v{vT+3}")
    a(f"s_lshl_b32 s{sTMP}, s{sWN}, 1")
    for bl in range(2):
        a(f"s_add_u32 s{sTMP2}, s{sTMP}, {bl}")
        a(f"v_xor_b32 v{vT+5}, s{sTMP2}, v{vT+2}")
        a(f"v_lshl_add_u32 v{vWR+bl}, v{vT+5}, 6, v{vT+3}")
    PF = "k1pf" in OPT
    if PF:
        a(f"s_lshr_b32 s{sTMP}, s2, 3")
        a(f"s_cmp_lt_u32 s{sW}, 6")
        a("s_cbranch_scc0 K1_PFX")
        a(f"s_mul_i32 s{sTMP}, s{sTMP}, 6")
        a(f"s_add_u32 s{sTMP}, s{sTMP}, s{sW}")
        a(f"s_mul_i32 s{sTMP}, s{sTMP}, 11")
        a(f"v_min_u32 v{vT}, 10, v{vLANE}")
        a(f"v_add_u32 v{vT}, s{sTMP}, v{vT}")
        a(f"v_min_u32 v{vT}, 1919, v{vT}")
        a(f"v_mul_u32_u24 v{vT+1}, 34953, v{vT}")
        a(f"v_lshrrev_b32 v{vT+1}, 20, v{vT+1}")
        a(f"v_mul_u32_u24 v{vT+2}, 30, v{vT+1}")
        a(f"v_sub_u32 v{vT+2}, v{vT}, v{vT+2}")
        a(f"v_mul_u32_u24 v{vT+1}, 3840, v{vT+1}")
        a(f"v_lshl_add_u32 v{vPF}, v{vT+2}, 7, v{vT+1}")
        for i in range(4): a(f"s_mov_b32 s{64+i}, s{SW+i}")
        a(f"s_mov_b32 s68, {64*3840}")
        a("s_branch K1_PFD")
        a.lab("K1_PFX")
        a(f"s_lshl_b32 s{sTMP}, s{sTMP}, 1")
        a(f"s_add_u32 s{sTMP}, s{sTMP}, s{sW}")
        a(f"s_sub_u32 s{sTMP}, s{sTMP}, 6")
        a(f"s_mul_i32 s{sTMP}, s{sTMP}, 9")
        a(f"v_min_u32 v{vT}, 8, v{vLANE}")
        a(f"v_add_u32 v{vT}, s{sTMP}, v{vT}")
        a(f"v_min_u32 v{vT}, 511, v{vT}")
        a(f"s_and_b32 s{sTMP}, s2, 3")
        a(f"s_lshl_b32 s{sTMP}, s{sTMP}, 9")
        a(f"v_add_u32 v{vT}, s{sTMP}, v{vT}")
        a(f"v_mul_u32_u24 v{vPF}, 1280, v{vT}")
        for i in range(4): a(f"s_mov_b32 s{64+i}, s{SX+i}")
        a(f"s_mov_b32 s68, 128")
        a.lab("K1_PFD")
        a(f"s_mul_i32 s69, s68, {PF0}")
    def pf_group():
        return [f"buffer_load_dword v{vPF+1}, v{vPF}, s[64:67], s69 offen", f"s_add_u32 s69, s69, s68"]
    a(f"s_mul_i32 s{sSEC}, s{sNT}, 52")
    a(f"s_lshr_b32 s{sSEC}, s{sSEC}, 8")
    a(f"s_mul_i32 s{sTMP}, s{sSEC}, 5")
    a(f"s_sub_u32 s{sFB}, s{sNT}, s{sTMP}")
    a(f"s_lshl_b32 s{sFB}, s{sFB}, 7")
    a(f"s_lshl_b32 s{sTMP}, s{sWN}, 6")
    a(f"s_add_u32 s{sFB}, s{sFB}, s{sTMP}")
    a(f"s_cmp_eq_u32 s{sSEC}, 2")
    a("s_cbranch_scc1 K1_VPREP")
    a(f"s_cmp_eq_u32 s{sSEC}, 0")
    a(f"s_cselect_b32 s{sSC}, {f2u(QSCALE):#x}, 1.0")
    a(f"s_mov_b32 s{sSC+1}, s{sSC}")
    a(f"s_mov_b32 s{sTMP}, {KV_HEAD}")
    a(f"s_cselect_b32 s{sHS}, {Q_HEAD}, s{sTMP}")
    a(f"s_mov_b32 s{sTMP}, {KV_CH}")
    a(f"s_cselect_b32 s{sTMP2}, {Q_CH}, s{sTMP}")
    a(f"s_mul_i32 s{sEO}, s{sMT}, s{sTMP2}")
    a(f"s_mul_i32 s{sTMP2}, s{sBR}, {QB_OFF - QA_OFF}")
    a(f"s_add_u32 s{sTMP2}, s{sTMP2}, {QA_OFF}")
    a(f"s_mul_i32 s{sTMP3}, s{sBR}, {KVB_OFF - KVA_OFF}")
    a(f"s_cmp_eq_u32 s{sSEC}, 0")
    a(f"s_cselect_b32 s{sTMP2}, s{sTMP2}, s{sTMP3}")
    a(f"s_add_u32 s{sEO}, s{sEO}, s{sTMP2}")
    a(f"s_mul_i32 s{sTMP}, s{sWM}, 2560")
    a(f"s_add_u32 s{sEO}, s{sEO}, s{sTMP}")
    a(f"s_lshr_b32 s{sTMP}, s{sFB}, 2")
    a(f"v_lshrrev_b32 v{vT+6}, 5, v{vLANE}")
    a(f"v_add_u32 v{vT+6}, s{sTMP}, v{vT+6}")
    a(f"v_and_b32 v{vT+7}, 31, v{vLANE}")
    a(f"v_lshlrev_b32 v{vT+7}, 3, v{vT+7}")
    a(f"v_mov_b32 v{vT+8}, 0x43120")
    for e in range(8):
        a(f"v_add_u32 v{vT}, {2*e}, v{vT+6}")
        a(f"v_mul_u32_u24 v{vT+1}, 52429, v{vT}")
        a(f"v_lshrrev_b32 v{vT+1}, 18, v{vT+1}")
        a(f"v_mul_u32_u24 v{vT+2}, 5, v{vT+1}")
        a(f"v_sub_u32 v{vT+2}, v{vT}, v{vT+2}")
        a(f"v_lshlrev_b32 v{vT+2}, 2, v{vT+2}")
        a(f"v_bfe_u32 v{vT+2}, v{vT+8}, v{vT+2}, 4")
        a(f"v_lshl_add_u32 v{vT+2}, v{vT+2}, 8, v{vT+7}")
        a(f"v_mad_u32_u24 v{vEO+e}, v{vT+1}, s{sHS}, v{vT+2}")
    a(f"v_and_b32 v{vT}, 1, v{vLANE}")
    a(f"v_cmp_eq_u32 vcc, 0, v{vT}")
    a(f"v_lshlrev_b32 v{vT}, 3, v{vT}")
    a("s_nop 0")
    a("s_mov_b64 s[60:61], vcc")
    for p in range(4):
        a(f"v_cndmask_b32 v{vEO+8+p}, v{vEO+2*p+1}, v{vEO+2*p}, vcc")
        a(f"v_sub_u32 v{vEO+8+p}, v{vEO+8+p}, v{vT}")
    a("s_branch K1_T")
    a.lab("K1_VPREP")
    a(f"s_mul_i32 s{sEO}, s{sMT}, {KV_CH}")
    a(f"s_mul_i32 s{sTMP}, s{sBR}, {KVB_OFF - KVA_OFF}")
    a(f"s_add_u32 s{sEO}, s{sEO}, s{sTMP}")
    a(f"s_mul_i32 s{sTMP}, s{sWM}, {4*640}")
    a(f"s_add_u32 s{sEO}, s{sEO}, s{sTMP}")
    a(f"s_add_u32 s{sEO}, s{sEO}, 10240")
    a(f"s_mov_b32 s{sHS}, {KV_HEAD}")
    for bl in range(2):
        a(f"s_add_u32 s{sTMP}, s{sFB}, {32*bl}")
        a(f"v_and_b32 v{vT}, 31, v{vLANE}")
        a(f"v_add_u32 v{vT}, s{sTMP}, v{vT}")
        a(f"v_mul_u32_u24 v{vT+1}, 52429, v{vT}")
        a(f"v_lshrrev_b32 v{vT+1}, 20, v{vT+1}")
        a(f"v_mul_u32_u24 v{vT+2}, 20, v{vT+1}")
        a(f"v_sub_u32 v{vT+2}, v{vT}, v{vT+2}")
        a(f"v_lshrrev_b32 v{vT+3}, 5, v{vLANE}")
        a(f"v_mul_u32_u24 v{vT+3}, 320, v{vT+3}")
        a(f"v_lshl_add_u32 v{vT+3}, v{vT+2}, 4, v{vT+3}")
        a(f"v_mad_u32_u24 v{vEO+bl}, v{vT+1}, s{sHS}, v{vT+3}")
    a("s_branch K1_C")

    def variant(tag):
        a.lab(f"K1_{tag}")
        def reads(st, ph):
            out = []
            if "k1noread" in OPT: return ["s_nop 0"] * 12
            for q in range(2):
                kk = 2 * ph + q
                for j in range(2):
                    r = vXF + st * 16 + (q * 2 + j) * 4
                    out.append(f"ds_read_b128 v[{r}:{r+3}], v{vXA+kk} offset:{j*4096}")
                    r = vWF + st * 16 + (q * 2 + j) * 4
                    out.append(f"ds_read_b64_tr_b16 v[{r}:{r+1}], v{vWA+j} offset:{kk*4096}")
                    out.append(f"ds_read_b64_tr_b16 v[{r+2}:{r+3}], v{vWA+j} offset:{kk*4096+1024}")
            return out
        def mfmas(st, zero=False):
            out = []
            if "k1nomfma" in OPT: return ["s_nop 0"] * 8
            for q in range(2):
                for bl in range(2):
                    for mb in range(2):
                        acc = vACC + (bl * 2 + mb) * 16
                        xf = f"v[{vXF+st*16+(q*2+mb)*4}:{vXF+st*16+(q*2+mb)*4+3}]"
                        wf = f"v[{vWF+st*16+(q*2+bl)*4}:{vWF+st*16+(q*2+bl)*4+3}]"
                        c = "0" if (zero and q == 0) else f"v[{acc}:{acc+15}]"
                        if tag == "T":
                            out.append(f"v_mfma_f32_32x32x16_bf16 v[{acc}:{acc+15}], {wf}, {xf}, {c}")
                        else:
                            out.append(f"v_mfma_f32_32x32x16_bf16 v[{acc}:{acc+15}], {xf}, {wf}, {c}")
            return out
        def setaddr(sreg):
            return [f"v_add_u32 v{vXA+i}, s{sreg}, v{vXR+i}" for i in range(4)] + [f"v_add_u32 v{vWA+i}, s{sreg}, v{vWR+i}" for i in range(2)]
        def weave(mf, extras, upto=None):
            n = upto or len(mf); m = len(extras)
            k = 0
            for i, x in enumerate(mf):
                a(x)
                tgt = min(m, ((i + 1) * m + n - 1) // n)
                while k < tgt:
                    for y in extras[k]: a(y)
                    k += 1
        def mix(rd, dm, tail):
            ex = []
            nd = len(dm)
            for i, r in enumerate(rd):
                ex.append([r])
                if nd == 3 and i % 4 == 3: ex.append(dm[i // 4])
                if nd == 6 and i % 2 == 1: ex.append(dm[i // 2])
            return ex + tail
        def phaseA(zero, dm):
            ring = [[f"s_add_u32 s{sRD}, s{sRD}, {K1_BUF}", f"s_cmp_eq_u32 s{sRD}, {K1_LDS}", f"s_cselect_b32 s{sRD}, 0, s{sRD}"]]
            mf = mfmas(0, zero)
            weave(mf[:7], mix(reads(1, 1), dm, ring), upto=6)
            return mf[7:]
        a(f"s_mov_b32 s{sWRB}, {K1_BUF}")
        for g in dma_list(sWRB):
            for x in g: a(x)
        a(f"s_mov_b32 s{sWRB}, {2*K1_BUF}")
        NP0 = (5 - PF0) if PF else 0
        for i in range(NP0):
            for x in pf_group(): a(x)
        SL = "slice" in OPT
        def slice_groups():
            pre = [f"s_lshr_b32 s70, s2, 3", f"s_lshl_b32 s70, s70, 2", f"s_and_b32 s71, s2, 3", f"s_add_u32 s70, s70, s71",
                   f"s_lshl_b32 s70, s70, 3", f"s_add_u32 s70, s70, s{sW}", f"s_lshl_b32 s70, s70, 10", f"v_lshlrev_b32 v{vPF}, 4, v{vLANE}"]
            g = []
            for i in range(3):
                g.append([f"s_add_u32 s71, s70, {i*960*1024}",
                          f"buffer_load_dwordx4 v[{vPF+4}:{vPF+7}], v{vPF}, s[{SW}:{SW+3}], s71 offen"])
            g.append([f"s_mul_i32 s71, s{sBR}, {1280*1024}", f"s_add_u32 s71, s71, s70",
                      f"buffer_load_dwordx4 v[{vPF+4}:{vPF+7}], v{vPF}, s[{SX}:{SX+3}], s71 offen"])
            g.append([f"s_add_u32 s71, s71, {960*1024}", f"s_cmp_lt_u32 s70, {320*1024}", f"s_cselect_b32 s71, s71, s70",
                      f"buffer_load_dwordx4 v[{vPF+4}:{vPF+7}], v{vPF}, s[{SX}:{SX+3}], s71 offen"])
            return pre, g
        NP = 1 if PF else 0
        if SL and 'sliceearly' in OPT:
            pre, g = slice_groups()
            for x in pre: a(x)
            for gg in g:
                for x in gg: a(x)
            NP0 += 5
        stamp(a, 2)
        a(f"s_waitcnt vmcnt({6+NP0})")
        a("s_barrier")
        stamp(a, 3)
        a(f"s_mov_b32 s{sRD}, 0")
        for x in setaddr(sRD): a(x)
        for r in reads(0, 0): a(r)
        a(f"s_mov_b32 s{sI}, 0")
        adv = [f"s_add_u32 s{sWRB}, s{sWRB}, {K1_BUF}", f"s_cmp_eq_u32 s{sWRB}, {K1_LDS}", f"s_cselect_b32 s{sWRB}, 0, s{sWRB}"]
        a("s_waitcnt lgkmcnt(0)")
        LATE = SL and 'sliceearly' not in OPT
        if LATE:
            pre, g = slice_groups()
            for x in pre: a(x)
        last = phaseA(True, dma_list(sWRB, True))
        if LATE:
            for gg in g:
                for x in gg: a(x)
        for x in last: a(x)
        a(f"s_waitcnt vmcnt({6+NP0+(5 if LATE else 0)}) lgkmcnt(0)")
        a(f"s_branch K1_{tag}_WB")
        a.lab(f"K1_{tag}_LOOP")
        a("s_waitcnt lgkmcnt(0)")
        a(f"s_cmp_ge_u32 s{sI}, 8")
        a(f"s_cbranch_scc1 K1_{tag}_AND")
        last = phaseA(False, [] if "k1allc" in OPT else dma_list(sWRB, True)[3:])
        for x in last: a(x)
        a.lab(f"K1_{tag}_B")
        if LATE:
            a(f"s_cmp_eq_u32 s{sI}, 1")
            a(f"s_cbranch_scc1 K1_{tag}_B1")
        a(f"s_waitcnt vmcnt({6+NP}) lgkmcnt(0)")
        a.lab(f"K1_{tag}_WB")
        if "k1stamp" in OPT:
            a("s_memtime s[78:79]")
        if "k1nobar" not in OPT: a("s_barrier")
        if "k1stamp" in OPT:
            a("s_memtime s[74:75]")
            a("s_waitcnt lgkmcnt(0)")
            a(f"s_mov_b32 s79, m0")
            a(f"s_mov_b32 m0, s{sI}")
            a("s_nop 0")
            a(f"v_writelane_b32 v179, s74, m0")
            a(f"s_add_u32 m0, m0, 16")
            a("s_nop 0")
            a(f"v_writelane_b32 v179, s78, m0")
            a(f"s_mov_b32 m0, s79")
        mf = mfmas(1)
        a(mf[0])
        for x in setaddr(sRD): a(x)
        for x in adv: a(x)
        rd = reads(0, 0)
        a(f"s_cmp_ge_u32 s{sI}, 7")
        a(f"s_cbranch_scc1 K1_{tag}_ND")
        cnt = [[f"s_add_u32 s{sI}, s{sI}, 1"]]
        weave(mf[1:], mix(rd, dma_list(sWRB, True)[:3], ([pf_group()] if PF else []) + cnt), upto=6)
        a(f"s_branch K1_{tag}_LOOP")
        a.lab(f"K1_{tag}_ND")
        weave(mf[1:], mix(rd, [], cnt), upto=6)
        a(f"s_cmp_lt_u32 s{sI}, 10")
        a(f"s_cbranch_scc1 K1_{tag}_LOOP")
        stamp(a, 4)
        a("s_nop 7")
        a("s_nop 3")
        n = 0
        for bl in range(2):
            for mb in range(2):
                acc = vACC + (bl * 2 + mb) * 16
                if tag == "T" and "t8" in OPT:
                    for i in range(4):
                        q = acc + 4 * i
                        t = vXF + (n % 16) * 2; n += 1
                        a(f"v_pk_mul_f32 v[{q}:{q+1}], v[{q}:{q+1}], s[{sSC}:{sSC+1}]")
                        a(f"v_pk_mul_f32 v[{q+2}:{q+3}], v[{q+2}:{q+3}], s[{sSC}:{sSC+1}]")
                        a(f"v_cvt_pk_bf16_f32 v{t}, v{q}, v{q+1}")
                        a(f"v_cvt_pk_bf16_f32 v{t+1}, v{q+2}, v{q+3}")
                        a(f"buffer_store_dwordx2 v[{t}:{t+1}], v{vEO + 4*bl + i}, s[{SWS}:{SWS+3}], s{sEO} offen offset:{mb*1280}{STORE_FLAGS}")
                elif tag == "T":
                    t = vXF + (n % 4) * 16; n += 1
                    for i in range(4):
                        q = acc + 4 * i
                        a(f"v_pk_mul_f32 v[{q}:{q+1}], v[{q}:{q+1}], s[{sSC}:{sSC+1}]")
                        a(f"v_pk_mul_f32 v[{q+2}:{q+3}], v[{q+2}:{q+3}], s[{sSC}:{sSC+1}]")
                        a(f"v_cvt_pk_bf16_f32 v{t+2*i}, v{q}, v{q+1}")
                        a(f"v_cvt_pk_bf16_f32 v{t+2*i+1}, v{q+2}, v{q+3}")
                    DP = "quad_perm:[1,0,3,2] row_mask:0xf bank_mask:0xf"
                    a("s_mov_b64 vcc, s[60:61]")
                    for pr in range(2):
                        A0 = t + 4 * pr; B0 = A0 + 2; o = t + 8 + 4 * pr
                        a(f"v_cndmask_b32_dpp v{o}, v{B0}, v{A0}, vcc {DP}")
                        a(f"v_cndmask_b32_dpp v{o+1}, v{B0+1}, v{A0+1}, vcc {DP}")
                    a("s_not_b64 vcc, vcc")
                    for pr in range(2):
                        A0 = t + 4 * pr; B0 = A0 + 2; o = t + 8 + 4 * pr
                        a(f"v_cndmask_b32_dpp v{o+2}, v{A0}, v{B0}, vcc {DP}")
                        a(f"v_cndmask_b32_dpp v{o+3}, v{A0+1}, v{B0+1}, vcc {DP}")
                    for pr in range(2):
                        o = t + 8 + 4 * pr
                        a(f"buffer_store_dwordx4 v[{o}:{o+3}], v{vEO + 8 + 2*bl + pr}, s[{SWS}:{SWS+3}], s{sEO} offen offset:{mb*1280}{STORE_FLAGS}")
                else:
                    for g2 in range(2):
                        q = acc + 8 * g2
                        t = vXF + (n % 8) * 4; n += 1
                        for i in range(4):
                            a(f"v_cvt_pk_bf16_f32 v{t+i}, v{q+2*i}, v{q+2*i+1}")
                        a(f"buffer_store_dwordx4 v[{t}:{t+3}], v{vEO+bl}, s[{SWS}:{SWS+3}], s{sEO} offen offset:{(2*mb+g2)*640}{STORE_FLAGS}")
        a("s_branch K1_FIN")
        if LATE:
            a.lab(f"K1_{tag}_B1")
            a(f"s_waitcnt vmcnt({6+NP+5}) lgkmcnt(0)")
            a(f"s_branch K1_{tag}_WB")
        a.lab(f"K1_{tag}_AND")
        last = phaseA(False, [])
        for x in last: a(x)
        a("s_waitcnt vmcnt(0) lgkmcnt(0)")
        a(f"s_branch K1_{tag}_WB")
    variant("T")
    variant("C")

    GPF0 = optval("gpf0", 3)
    a.lab("K1_GATE")
    a("s_waitcnt lgkmcnt(0)")
    srd(a, SX, 8, 9, 2048 * 1280)
    srd(a, SG, 6, 7, 1280)
    srd(a, SWS, 4, 5, WS_USED)
    if "gmall" in OPT:
        a("s_load_dwordx2 s[58:59], s[0:1], 8")
        a("s_load_dwordx2 s[70:71], s[0:1], 32")
        a(f"s_sub_u32 s{sTMP}, s2, 240")
        a(f"s_lshl_b32 s{sTMP}, s{sTMP}, 3")
        a(f"s_add_u32 s{sTMP}, s{sTMP}, s{sW}")
        a(f"v_lshlrev_b32 v{vT+1}, 4, v{vLANE}")
        a(f"v_lshrrev_b32 v{vT+2}, 3, v{vLANE}")
        a(f"s_lshl_b32 s{sTMP2}, s{sTMP}, 4")
        a(f"v_add_u32 v{vT+2}, s{sTMP2}, v{vT+2}")
        a(f"v_mul_u32_u24 v{vT+2}, 1280, v{vT+2}")
        a(f"v_and_b32 v{vT+3}, 7, v{vLANE}")
        a(f"v_lshl_add_u32 v{vT+2}, v{vT+3}, 4, v{vT+2}")
        a("s_waitcnt lgkmcnt(0)")
        srd(a, 60, 58, 59, 640 * 3840)
        srd(a, 64, 70, 71, 640 * 3840)
        a(f"s_lshl_b32 s72, s{sTMP}, 10")
        a(f"s_add_u32 s73, s72, {128*1024}")
        a(f"s_cmp_ge_u32 s{sTMP}, 112")
        a(f"s_cselect_b32 s73, s72, s73")
        a(f"s_mov_b32 s74, 0")
        for st in range(optval("mall0", 1), 10):
            wo = st * 64 * 3840
            a(f"s_add_u32 s76, s72, {wo}")
            a(f"buffer_load_dwordx4 v[{vXF}:{vXF+3}], v{vT+1}, s[60:63], s76 offen")
            a(f"buffer_load_dwordx4 v[{vXF+4}:{vXF+7}], v{vT+1}, s[64:67], s76 offen")
            a(f"s_add_u32 s76, s73, {wo}")
            a(f"buffer_load_dwordx4 v[{vXF+8}:{vXF+11}], v{vT+1}, s[60:63], s76 offen")
            a(f"buffer_load_dwordx4 v[{vXF+12}:{vXF+15}], v{vT+1}, s[64:67], s76 offen")
            a(f"s_mov_b32 s76, {st*128}")
            a(f"buffer_load_dwordx4 v[{vXF+16}:{vXF+19}], v{vT+2}, s[{SX}:{SX+3}], s76 offen")
            a(f"buffer_load_dwordx4 v[{vXF+20}:{vXF+23}], v{vT+2}, s[{SX}:{SX+3}], s76 offen offset:0" if False else
              f"s_add_u32 s76, s76, {8*1280}")
            a(f"buffer_load_dwordx4 v[{vXF+20}:{vXF+23}], v{vT+2}, s[{SX}:{SX+3}], s76 offen")
            a("s_waitcnt vmcnt(36)")
        a("s_waitcnt vmcnt(0)")
    TS = optval("tlbin", 0)
    if TS:
        srd(a, SW, 10, 11, 640 * 3840)
        sh = {4: 12, 16: 14, 64: 16}[TS]
        a(f"s_lshr_b32 s{sTMP}, s2, 3")
        a(f"s_and_b32 s{sTMP}, s{sTMP}, 1")
        a(f"s_lshl_b32 s{sTMP}, s{sTMP}, 3")
        a(f"s_add_u32 s{sTMP}, s{sTMP}, s{sW}")
        a(f"s_lshl_b32 s{sTMP}, s{sTMP}, 6")
        a(f"v_add_u32 v{vT+1}, s{sTMP}, v{vLANE}")
        a(f"v_lshlrev_b32 v{vT+1}, {sh}, v{vT+1}")
        n = max(1, -(-2621440 // ((1024) << sh)))
        for i in range(n):
            a(f"s_mov_b32 s{sTMP2}, {i * (1024 << sh)}")
            a(f"buffer_load_dword v{vPF}, v{vT+1}, s[{SW}:{SW+3}], s{sTMP2} offen")
            a(f"buffer_load_dword v{vPF+1}, v{vT+1}, s[{SX}:{SX+3}], s{sTMP2} offen")
    if "gpf" in OPT:
        srd(a, SW, 10, 11, 640 * 3840)
        a(f"s_lshr_b32 s{sTMP}, s2, 3")
        a(f"s_and_b32 s{sTMP}, s{sTMP}, 1")
        a(f"v_cmp_le_u32 vcc, 30, v{vLANE}")
        a(f"v_mov_b32 v{vT+1}, 0")
        a(f"v_mov_b32 v{vT+2}, {3840 - 30*128}")
        a(f"v_cndmask_b32 v{vT+1}, v{vT+1}, v{vT+2}, vcc")
        a(f"v_min_u32 v{vT+2}, 59, v{vLANE}")
        a(f"v_lshl_add_u32 v{vT+1}, v{vT+2}, 7, v{vT+1}")
        a(f"s_lshl_b32 s{sTMP2}, s{sTMP}, 5")
        a(f"s_lshl_b32 s{sTMP3}, s{sW}, 2")
        a(f"s_add_u32 s{sTMP2}, s{sTMP2}, s{sTMP3}")
        a(f"s_add_u32 s{sTMP2}, s{sTMP2}, {64*GPF0}")
        a(f"s_mul_i32 s{sTMP2}, s{sTMP2}, 3840")
        a(f"s_and_b32 s{sTMP3}, s2, 3")
        a(f"s_lshl_b32 s{sTMP3}, s{sTMP3}, 9")
        a(f"s_lshl_b32 s{sTMP}, s{sTMP}, 8")
        a(f"s_add_u32 s{sTMP3}, s{sTMP3}, s{sTMP}")
        a(f"s_and_b32 s{sTMP}, s{sW}, 3")
        a(f"s_lshl_b32 s{sTMP}, s{sTMP}, 6")
        a(f"s_add_u32 s{sTMP3}, s{sTMP3}, s{sTMP}")
        a(f"v_add_u32 v{vT+2}, s{sTMP3}, v{vLANE}")
        a(f"v_mul_u32_u24 v{vT+2}, 1280, v{vT+2}")
        a(f"s_mov_b32 s{sTMP3}, {128*GPF0}")
        for st in range(GPF0, 10):
            a(f"buffer_load_dword v{vPF}, v{vT+1}, s[{SW}:{SW+3}], s{sTMP2} offen")
            a(f"s_add_u32 s{sTMP}, s{sTMP2}, {2*3840}")
            a(f"buffer_load_dword v{vPF+1}, v{vT+1}, s[{SW}:{SW+3}], s{sTMP} offen")
            a(f"buffer_load_dword v{vPF+2}, v{vT+2}, s[{SX}:{SX+3}], s{sTMP3} offen")
            a(f"s_add_u32 s{sTMP2}, s{sTMP2}, {64*3840}")
            a(f"s_add_u32 s{sTMP3}, s{sTMP3}, 128")
    if "notlb" not in OPT:
        a(f"v_lshlrev_b32 v{vT+1}, 16, v{vLANE}")
        a(f"s_lshl_b32 s{sTMP}, s{sW}, 22")
        a(f"s_cmp_lt_u32 s{sW}, 6")
        a(f"s_cbranch_scc0 K1_NOTLB")
        a(f"buffer_load_dword v{vPF}, v{vT+1}, s[{SWS}:{SWS+3}], s{sTMP} offen")
        a.lab("K1_NOTLB")
    if "nocodepf" not in OPT:
        a(f"s_getpc_b64 s[78:79]")
        a.lab("K1_PC")
        a(f"s_add_u32 s78, s78, k2_attn_kernel-K1_PC")
        a(f"s_addc_u32 s79, s79, 0")
        a(f"v_lshlrev_b32 v{vT+1}, 7, v{vLANE}")
        a(f"s_lshl_b32 s{sTMP}, s{sW}, 13")
        a(f"v_add_u32 v{vT+1}, s{sTMP}, v{vT+1}")
        a(f"s_cmp_ge_u32 s{sW}, K2CODE_WAVES")
        a("s_cbranch_scc1 K1_NOCPF")
        a(f"global_load_dword v{vPF+2}, v{vT+1}, s[78:79]")
        a.lab("K1_NOCPF")
    a(f"s_cmp_lg_u32 s2, 240")
    a("s_cbranch_scc1 K1_NOZ")
    a(f"s_cmp_ge_u32 s{sW}, 4")
    a("s_cbranch_scc1 K1_NOZ")
    a(f"v_lshlrev_b32 v{vT+1}, 7, v{vLANE}")
    a(f"v_mov_b32 v{vT+2}, 0")
    a(f"s_lshl_b32 s{sTMP}, s{sW}, 13")
    a(f"s_add_u32 s{sTMP}, s{sTMP}, {FL_OFF}")
    a(f"buffer_store_dword v{vT+2}, v{vT+1}, s[{SWS}:{SWS+3}], s{sTMP} offen")
    a.lab("K1_NOZ")
    a(f"s_sub_u32 s{sTMP}, s2, 240")
    a(f"s_lshl_b32 s{sTMP}, s{sTMP}, 3")
    a(f"s_add_u32 s{sTMP}, s{sTMP}, s{sW}")
    a(f"s_cmp_ge_u32 s{sTMP}, 120")
    a("s_cbranch_scc1 K1_GATE2")
    a(f"s_mul_i32 s{sTMP2}, s{sTMP}, 171")
    a(f"s_lshr_b32 s{sTMP2}, s{sTMP2}, 9")
    a(f"s_mul_i32 s{sTMP3}, s{sTMP2}, 3")
    a(f"s_sub_u32 s{sTMP3}, s{sTMP}, s{sTMP3}")
    a("s_load_dwordx2 s[58:59], s[0:1], 16")
    a("s_load_dwordx2 s[70:71], s[0:1], 40")
    a(f"s_mul_i32 s{sD}, s{sTMP3}, 448")
    a(f"v_lshrrev_b32 v{vT+1}, 5, v{vLANE}")
    a(f"v_mul_u32_u24 v{vT+1}, 1280, v{vT+1}")
    a(f"v_and_b32 v{vT+2}, 31, v{vLANE}")
    a(f"v_lshl_add_u32 v{vT+1}, v{vT+2}, 4, v{vT+1}")
    a(f"v_add_u32 v{vT+1}, s{sD}, v{vT+1}")
    a(f"s_lshl_b32 s{sEO}, s{sW}, 14")
    a("s_waitcnt lgkmcnt(0)")
    srd(a, 60, 58, 59, 640 * 1280)
    srd(a, 64, 70, 71, 640 * 1280)
    for g in range(4):
        a(f"s_lshl_b32 s72, s{sTMP2}, 2")
        a(f"s_add_u32 s72, s72, {g}")
        a(f"s_mul_i32 s73, s72, 205")
        a(f"s_lshr_b32 s73, s73, 10")
        a(f"s_mul_i32 s74, s73, 5")
        a(f"s_sub_u32 s74, s72, s74")
        a(f"s_mul_i32 s73, s73, 20")
        for quad in range(2):
            a(f"s_and_b32 s76, s74, 1")
            a(f"s_lshl_b32 s76, s76, 3")
            a(f"s_add_u32 s76, s76, {4*quad}")
            a(f"s_lshr_b32 s77, s74, 1")
            a(f"s_cmp_eq_u32 s74, 4")
            a(f"s_cselect_b32 s76, 16, s76")
            a(f"s_cselect_b32 s77, {quad}, s77")
            a(f"s_add_u32 s76, s76, s73")
            a(f"s_mul_i32 s76, s76, 1280")
            a(f"s_cmp_eq_u32 s77, 0")
            a(f"s_cbranch_scc0 K1_WB{g}{quad}")
            for r2 in range(2):
                a(f"s_add_u32 m0, s{sEO}, {(g*4 + quad*2 + r2)*1024}")
                a(f"s_add_u32 s{sD}, s76, {r2*2*1280}")
                a(f"buffer_load_dwordx4 v{vT+1}, s[60:63], s{sD} offen lds")
            a(f"s_branch K1_WD{g}{quad}")
            a.lab(f"K1_WB{g}{quad}")
            for r2 in range(2):
                a(f"s_add_u32 m0, s{sEO}, {(g*4 + quad*2 + r2)*1024}")
                a(f"s_add_u32 s{sD}, s76, {r2*2*1280}")
                a(f"buffer_load_dwordx4 v{vT+1}, s[64:67], s{sD} offen lds")
            a.lab(f"K1_WD{g}{quad}")
    a(f"v_lshrrev_b32 v{vT+2}, 4, v{vLANE}")
    a(f"v_bfe_u32 v{vT+3}, v{vLANE}, 2, 2")
    a(f"v_lshl_add_u32 v{vT+2}, v{vT+2}, 3, v{vT+3}")
    a(f"v_lshlrev_b32 v{vT+2}, 9, v{vT+2}")
    a(f"v_and_b32 v{vT+3}, 3, v{vLANE}")
    a(f"v_lshl_add_u32 v{vT+2}, v{vT+3}, 3, v{vT+2}")
    a(f"v_add_u32 v{vT+2}, s{sEO}, v{vT+2}")
    a(f"v_lshlrev_b32 v{vT+3}, 4, v{vLANE}")
    a("s_waitcnt vmcnt(0)")
    for j in range(14):
        a(f"ds_read_b64_tr_b16 v[{vXF+4*j}:{vXF+4*j+1}], v{vT+2} offset:{j*32}")
        a(f"ds_read_b64_tr_b16 v[{vXF+4*j+2}:{vXF+4*j+3}], v{vT+2} offset:{j*32+2048}")
    a(f"s_mul_i32 s{sTMP3}, s{sTMP3}, 14")
    a("s_waitcnt lgkmcnt(0)")
    for j in range(14):
        a(f"s_add_u32 s{sTMP4}, s{sTMP3}, {j}")
        a(f"s_cmp_ge_u32 s{sTMP4}, 40")
        a("s_cbranch_scc1 K1_GATE2")
        a(f"s_mul_i32 s{sD}, s{sTMP4}, 52")
        a(f"s_lshr_b32 s{sD}, s{sD}, 8")
        a(f"s_mul_i32 s{sEO}, s{sD}, 5")
        a(f"s_sub_u32 s{sEO}, s{sTMP4}, s{sEO}")
        a(f"s_mul_i32 s{sD}, s{sD}, 40")
        a(f"s_add_u32 s{sD}, s{sD}, s{sTMP2}")
        a(f"s_mul_i32 s{sD}, s{sD}, 5")
        a(f"s_add_u32 s{sD}, s{sD}, s{sEO}")
        a(f"s_lshl_b32 s{sD}, s{sD}, 10")
        a(f"s_add_u32 s{sD}, s{sD}, {WT_OFF}")
        a(f"buffer_store_dwordx4 v[{vXF+4*j}:{vXF+4*j+3}], v{vT+3}, s[{SWS}:{SWS+3}], s{sD} offen")
    a.lab("K1_GATE2")
    a("s_nop 1")
    a(f"s_sub_u32 s{sTMP}, s2, 240")
    a(f"s_lshl_b32 s{sTMP}, s{sTMP}, 7")
    a(f"s_lshl_b32 s{sTMP2}, s{sW}, 4")
    a(f"s_add_u32 s{sI}, s{sTMP}, s{sTMP2}")
    a(f"v_lshlrev_b32 v{vT}, 2, v{vLANE}")
    for j in range(5):
        a(f"buffer_load_dword v{vT+7+j}, v{vT}, s[{SG}:{SG+3}], 0 offen offset:{j*256}")
    a(f"s_mul_i32 s{sTMP4}, s{sI}, 1280")
    for r in range(16):
        for j in range(5):
            a(f"buffer_load_dword v{vXF+r*5+j}, v{vT}, s[{SX}:{SX+3}], s{sTMP4} offen offset:{j*256}")
        a(f"s_add_u32 s{sTMP4}, s{sTMP4}, 1280")
        if r == 9: a("s_waitcnt vmcnt(20)")
    a("s_waitcnt vmcnt(0)")
    gw = vT + 7
    for j in range(5):
        a(f"v_lshlrev_b32 v{vT+2+j}, 16, v{gw+j}")
        a(f"v_and_b32 v{gw+j}, 0xffff0000, v{gw+j}")
    vG = 112
    for r in range(16):
        a(f"v_mov_b32 v{vG+r}, 0")
        for j in range(5):
            x = vXF + r * 5 + j
            a(f"v_lshlrev_b32 v{vT}, 16, v{x}")
            a(f"v_and_b32 v{x}, 0xffff0000, v{x}")
            a(f"v_fmac_f32 v{vG+r}, v{vT}, v{vT+2+j}")
            a(f"v_fmac_f32 v{vG+r}, v{x}, v{gw+j}")
    for rr in (8, 4, 2, 1):
        a("s_nop 1")
        for r in range(16):
            a(f"v_add_f32_dpp v{vG+r}, v{vG+r}, v{vG+r} row_ror:{rr} row_mask:0xf bank_mask:0xf")
    for r in range(16):
        a(f"v_mov_b32 v{vG+16+r}, v{vG+r}")
    a("s_nop 1")
    for r in range(16):
        a(f"v_permlane32_swap_b32 v{vG+r}, v{vG+16+r}")
    a("s_nop 1")
    for r in range(16):
        a(f"v_add_f32 v{vG+r}, v{vG+r}, v{vG+16+r}")
        a(f"v_mov_b32 v{vG+16+r}, v{vG+r}")
    a("s_nop 1")
    for r in range(16):
        a(f"v_permlane16_swap_b32 v{vG+r}, v{vG+16+r}")
    a("s_nop 1")
    for r in range(16):
        a(f"v_add_f32 v{vG+r}, v{vG+r}, v{vG+16+r}")
    a(f"v_and_b32 v{vT}, 15, v{vLANE}")
    a(f"v_mov_b32 v{vT+1}, v{vG}")
    for r in range(1, 16):
        a(f"v_cmp_eq_u32 vcc, {r}, v{vT}")
        a("s_nop 1")
        a(f"v_cndmask_b32 v{vT+1}, v{vT+1}, v{vG+r}, vcc")
    a(f"v_mul_f32 v{vT+1}, {f2u(-1.4426950408889634):#x}, v{vT+1}")
    a(f"v_exp_f32 v{vT+1}, v{vT+1}")
    a("s_nop 0")
    a(f"v_add_f32 v{vT+1}, 1.0, v{vT+1}")
    a(f"v_rcp_f32 v{vT+1}, v{vT+1}")
    a(f"s_lshl_b32 s{sTMP}, s{sI}, 2")
    a(f"s_add_u32 s{sTMP}, s{sTMP}, {G_OFF}")
    a(f"v_lshlrev_b32 v{vT}, 2, v{vT}")
    a("s_mov_b64 exec, 0xffff")
    a(f"buffer_store_dword v{vT+1}, v{vT}, s[{SWS}:{SWS+3}], s{sTMP} offen")
    if PROF:
        a("s_mov_b64 exec, -1")
        a("s_waitcnt vmcnt(0)")
        for i in range(1, 7): stamp(a, i)
        stamp_flush(a, 0, 7, SWS, sW, vT)
    a("s_branch K1_END")
    a.lab("K1_FIN")
    if "dbgtime" in OPT:
        a("s_cmp_lg_u32 s2, 1")
        a("s_cbranch_scc1 K1_DBGX")
        a("s_cmp_lg_u32 s32, 0")
        a("s_cbranch_scc1 K1_DBGX")
        a("s_load_dwordx2 s[92:93], s[0:1], 64")
        a("s_waitcnt vmcnt(0)")
        a("s_memrealtime s[94:95]")
        a("s_memtime s[96:97]")
        a("s_waitcnt lgkmcnt(0)")
        srd(a, 84, 92, 93, 256)
        a("s_sub_u32 s96, s96, s88")
        a("s_sub_u32 s94, s94, s90")
        a("s_mov_b64 exec, 1")
        a("v_mov_b32 v24, 0")
        a("v_mov_b32 v20, 111")
        a("v_mov_b32 v21, s96")
        a("v_mov_b32 v22, s94")
        a("v_mov_b32 v23, s90")
        a("buffer_store_dwordx4 v[20:23], v24, s[84:87], 0 offen")
        a("s_mov_b64 exec, -1")
        a.lab("K1_DBGX")
    if "k1stamp" in OPT:
        a(f"s_lshl_b32 s97, s2, 3")
        a(f"s_add_u32 s97, s97, s{sW}")
        a(f"s_lshl_b32 s97, s97, 7")
        a(f"s_add_u32 s97, s97, {PROF_OFF + 3 * 0x100000}")
        a(f"v_lshlrev_b32 v{vT}, 2, v{vLANE}")
        a("s_mov_b64 exec, 0xffffffff")
        a(f"buffer_store_dword v179, v{vT}, s[{SWS}:{SWS+3}], s97 offen")
        a("s_mov_b64 exec, -1")
    stamp(a, 5)
    if PROF: a("s_waitcnt vmcnt(0)")
    stamp(a, 6)
    stamp_flush(a, 0, 7, SWS, sW, vT)
    a.lab("K1_END")
    a("s_endpgm")
    return name, NV

K2_LDS = 163840
NEGBIG = -1.0e30

def mask_table():
    vals = []
    for j in range(6):
        for l in range(64):
            c = l & 31; h = l >> 5
            for i in range(4):
                if j < 4:
                    r = j * 4 + i
                    row = (r & 3) + 8 * (r >> 2) + 4 * h
                    diff = c + 16 - row
                else:
                    r = (j - 4) * 4 + i
                    row = (r & 3) + 8 * (r >> 2) + 4 * h
                    diff = c - 16 - row
                ok = 0 <= diff <= 14 and diff % 2 == 0
                vals.append(0 if ok else f2u(NEGBIG))
    return vals

K2_PRIO_TILE = 5
def gen_k2(a):
    FUSE = "nofuse" not in OPT
    name = "k2_attn_kernel"
    kernel_head(a, name)
    SWS = 8
    sW = 12; sHEAD = 13; sQB = 14; sS0 = 15; sT0 = 16; sT1 = 17; sT2 = 18; sT3 = 19
    sC = 20; sPASS = 21; sVM = 22
    sLO = 24
    sGRP = 26; sPR = 27
    sDS = 28; sDG = 29
    sAV = 30
    sQA = 33; sGO = 35
    sDO = 44
    sWL = 49; sWS = 58; sWS0 = 59; sWC = 66; sFAIL = 67
    vLANE = 1; vL16 = 2; vK8 = 3; vVA = 4; vKe = 5; vKo = 6; vK4c = 7
    vT = 8
    vGATE = 16; vVc = 17
    vAKO = 18
    vPFA = 22; vQO = 23
    vQ16 = [24, 28]; vQ8 = [32, 34]
    vQA16 = 36; vQA8 = 40
    vKA = 44; vKB = 52; vV1 = 56; vV2 = 64; vP = 72
    S = [84, 100]; NEG = [116, 132]; O = [148, 164]
    vAK = 180; vAV = 192; vMX = 204; vMY = 220
    vOB = 236; vDUM = 244; vOSA = 245
    NV = 248
    ONES = 0x3f803f80
    vS0, vS1 = S

    a("s_cmp_ge_u32 s2, 256")
    a("s_cbranch_scc1 K2_END")
    stamp(a, 0)
    if "dbgtime" in OPT:
        a("s_memrealtime s[90:91]")
        a("s_memtime s[88:89]")
    a("s_load_dwordx2 s[4:5], s[0:1], 72")
    if FUSE:
        a("s_load_dwordx2 s[60:61], s[0:1], 56")
    a(f"v_and_b32 v{vLANE}, 63, v0")
    a(f"v_lshrrev_b32 v{vT}, 6, v0")
    a(f"s_and_b32 s{sHEAD}, s2, 7")
    a(f"v_readfirstlane_b32 s{sW}, v{vT}")
    a(f"s_lshl_b32 s{sHEAD}, s{sHEAD}, 2")
    a(f"s_lshr_b32 s{sT0}, s2, 6")
    a(f"s_add_u32 s{sHEAD}, s{sHEAD}, s{sT0}")
    a(f"s_lshr_b32 s{sQB}, s2, 3")
    a(f"s_and_b32 s{sQB}, s{sQB}, 7")
    a(f"v_lshlrev_b32 v{vL16}, 4, v{vLANE}")
    a(f"v_and_b32 v{vT}, 31, v{vLANE}")
    a(f"v_lshlrev_b32 v{vK8}, 3, v{vT}")
    a(f"v_lshrrev_b32 v{vT+1}, 5, v{vLANE}")
    a(f"v_lshl_add_u32 v{vQO}, v{vT+1}, 8, v{vK8}")
    a(f"s_lshr_b32 s{sGRP}, s{sW}, 2")
    a(f"s_and_b32 s{sPR}, s{sW}, 3")
    a(f"s_mul_i32 s{sDS}, s{sHEAD}, {KV_HEAD}")
    a(f"s_add_u32 s{sDS}, s{sDS}, {KVB_OFF}")
    for j in range(5):
        a(f"s_add_u32 s{sT0}, s{sW}, {8*j}")
        a(f"s_lshl_b32 s{sDO+j}, s{sT0}, 10")
        a(f"s_cmp_ge_u32 s{sT0}, 20")
        a(f"s_cselect_b32 s{sT1}, {4*KV_CH - 20*1024}, 0")
        a(f"s_add_u32 s{sDO+j}, s{sDO+j}, s{sT1}")
    a(f"s_mul_i32 s{sQA}, s{sHEAD}, {Q_HEAD}")
    a(f"s_lshl_b32 s{sT1}, s{sQB}, 3")
    a(f"s_lshl_b32 s{sT2}, s{sPR}, 1")
    a(f"s_add_u32 s{sT1}, s{sT1}, s{sT2}")
    a(f"s_mul_i32 s{sT1}, s{sT1}, 1280")
    a(f"s_add_u32 s{sQA}, s{sQA}, s{sT1}")
    a(f"s_add_u32 s{sT0}, s{sQA}, {QB_OFF}")
    a(f"s_mov_b32 s{sDG}, 0")
    a("s_waitcnt lgkmcnt(0)")
    srd(a, SWS, 4, 5, WS_USED)
    def dma1(j):
        return [f"s_add_u32 m0, s{sDO+j}, s{sDG}",
                f"s_add_u32 s{sT3}, m0, s{sDS}",
                f"buffer_load_dwordx4 v{vL16}, s[{SWS}:{SWS+3}], s{sT3} offen lds"]
    def qloads(q16, q8, sreg, off):
        return [f"buffer_load_dwordx2 v[{q16}:{q16+1}], v{vQO}, s[{SWS}:{SWS+3}], s{sreg} offen offset:{off}",
                f"buffer_load_dwordx2 v[{q16+2}:{q16+3}], v{vQO}, s[{SWS}:{SWS+3}], s{sreg} offen offset:{off+512}",
                f"buffer_load_dwordx2 v[{q8}:{q8+1}], v{vK8}, s[{SWS}:{SWS+3}], s{sreg} offen offset:{off+1024}"]
    for j in range(5):
        for x in dma1(j): a(x)
    for sg in range(2):
        for x in qloads(vQ16[sg], vQ8[sg], sT0, sg * 1280): a(x)
    a(f"s_add_u32 s{sDG}, s{sDG}, {KV_CH}")
    stamp(a, 1)
    a(f"s_mov_b32 s{sVM}, 0x000fffff")
    a(f"s_mov_b32 s{sVM+1}, 0x000fffff")
    a(f"s_mov_b32 s{sLO}, -1")
    a(f"s_mov_b32 s{sLO+1}, 0")
    a(f"v_and_b32 v{vT}, 31, v{vLANE}")
    a(f"v_lshrrev_b32 v{vT+1}, 5, v{vLANE}")
    a(f"v_mul_u32_u24 v{vVA}, 20, v{vT+1}")
    a(f"v_add_u32 v{vVA}, v{vVA}, v{vT}")
    a(f"v_lshlrev_b32 v{vVA}, 4, v{vVA}")
    for sg in range(2):
        for i in range(0, 16, 2):
            a(f"v_mov_b64 v[{O[sg]+i}:{O[sg]+i+1}], 0")
    a(f"v_mov_b64 v[{vP+4}:{vP+5}], 0")
    a(f"v_mov_b64 v[{vP+6}:{vP+7}], 0")
    a(f"s_lshl_b32 s{sS0}, s{sQB}, 8")
    a(f"s_lshl_b32 s{sT0}, s{sPR}, 6")
    a(f"s_add_u32 s{sS0}, s{sS0}, s{sT0}")
    a(f"s_lshl_b32 s{sT0}, s{sGRP}, 5")
    a(f"s_add_u32 s{sS0}, s{sS0}, s{sT0}")
    a(f"s_mul_i32 s{sT0}, s{sGRP}, 1280")
    a(f"s_add_u32 s{sQA}, s{sQA}, s{sT0}")
    a(f"s_add_u32 s{sQA}, s{sQA}, {QA_OFF}")
    a(f"s_lshl_b32 s{sT0}, s{sHEAD}, 6")
    a(f"s_lshr_b32 s{sT1}, s{sS0}, 5")
    a(f"s_add_u32 s{sT0}, s{sT0}, s{sT1}")
    for k, dT in enumerate((-1, 0, 1)):
        a(f"s_add_i32 s{sT1}, s{sT0}, {dT}")
        a(f"s_ashr_i32 s{sT2}, s{sT1}, 3")
        a(f"s_mul_i32 s{sT2}, s{sT2}, {KV_CH}")
        a(f"s_and_b32 s{sT1}, s{sT1}, 7")
        a(f"s_mul_i32 s{sT1}, s{sT1}, 1280")
        a(f"s_add_u32 s{50+k}, s{sT1}, s{sT2}")
    a(f"s_add_u32 s50, s50, 128")
    a(f"s_sub_u32 s53, s51, 128")
    a(f"s_add_u32 s51, s51, 128")
    a(f"s_sub_u32 s52, s52, 128")
    a(f"s_mov_b32 s54, 0xffff")
    a(f"s_mov_b32 s55, 0xffff")
    a(f"v_add_u32 v{vAKO+1}, s53, v{vK8}")
    a(f"v_add_u32 v{vAKO+3}, s52, v{vK8}")
    a(f"s_mov_b64 exec, s[54:55]")
    a(f"v_add_u32 v{vAKO+1}, s50, v{vK8}")
    a(f"v_add_u32 v{vAKO+3}, s51, v{vK8}")
    a("s_mov_b64 exec, -1")
    a(f"v_sub_u32 v{vT+7}, v{vQO}, v{vK8}")
    a(f"v_add_u32 v{vAKO}, v{vAKO+1}, v{vT+7}")
    a(f"v_add_u32 v{vAKO+2}, v{vAKO+3}, v{vT+7}")
    a(f"s_lshl_b32 s{sT0}, s{sHEAD}, 7")
    a(f"s_lshr_b32 s{sT1}, s{sS0}, 4")
    a(f"s_add_u32 s{sT0}, s{sT0}, s{sT1}")
    for j in range(3):
        a(f"s_add_i32 s{sT1}, s{sT0}, {j-1}")
        a(f"s_max_i32 s{sT1}, s{sT1}, 0")
        a(f"s_lshr_b32 s{sT2}, s{sT1}, 4")
        a(f"s_mul_i32 s{sT2}, s{sT2}, {KV_CH}")
        a(f"s_and_b32 s{sT1}, s{sT1}, 15")
        a(f"s_mul_i32 s{sT1}, s{sT1}, 640")
        a(f"s_add_u32 s{sT1}, s{sT1}, s{sT2}")
        a(f"s_add_u32 s{sAV+j}, s{sT1}, 10240")
    a(f"s_lshl_b32 s{sGO}, s{sS0}, 2")
    a(f"s_add_u32 s{sGO}, s{sGO}, {G_OFF}")
    a(f"v_mov_b32 v{vT+2}, 0")
    a(f"v_mov_b32 v{vT+3}, {ONES:#x}")
    if "vones" in OPT:
        a(f"v_mov_b32 v{vT+2}, {ONES:#x}")
    else:
        a(f"v_and_b32 v{vT+4}, 27, v{vT}")
        a.l.pop()
        a(f"v_cmp_eq_u32 vcc, 20, v{vT}")
        a(f"v_cmp_eq_u32 s[38:39], 24, v{vT}")
        a("s_nop 1")
        a("s_or_b64 vcc, vcc, s[38:39]")
        a("s_nop 1")
        a(f"v_cndmask_b32 v{vT+2}, v{vT+2}, v{vT+3}, vcc")
    a(f"v_mov_b32 v{vT+3}, v{vT+2}")
    for i in range(0, 12, 2):
        a(f"v_mov_b64 v[{vAV+i}:{vAV+i+1}], v[{vT+2}:{vT+3}]")
    for i in range(0, 16, 2):
        a(f"v_mov_b64 v[{vV1+i}:{vV1+i+1}], v[{vT+2}:{vT+3}]")
    a(f"s_lshr_b32 s{sT0}, s{sS0}, 4")
    a(f"s_mul_i32 s{sT0}, s{sT0}, {40*1024}")
    a(f"s_mul_i32 s{sT1}, s{sHEAD}, {5*256}")
    a(f"s_add_u32 s{sT0}, s{sT0}, s{sT1}")
    a(f"v_bfe_u32 v{vT+2}, v{vLANE}, 4, 1")
    a(f"v_mul_u32_u24 v{vT+2}, {40*1024}, v{vT+2}")
    a(f"v_and_b32 v{vT+3}, 15, v{vLANE}")
    a(f"v_lshl_add_u32 v{vT+3}, v{vT+3}, 4, v{vT+2}")
    a(f"v_lshrrev_b32 v{vT+2}, 5, v{vLANE}")
    a(f"v_lshl_add_u32 v{vT+3}, v{vT+2}, 8, v{vT+3}")
    a(f"v_add_u32 v{vOSA}, s{sT0}, v{vT+3}")
    a(f"s_getpc_b64 s[56:57]")
    a.lab("K2_PC")
    a(f"s_add_u32 s56, s56, K2_TABLE-K2_PC")
    a(f"s_addc_u32 s57, s57, 0")
    if not FUSE:
        a("s_lshr_b32 s36, s2, 3")
        a("s_lshl_b32 s36, s36, 3")
        a(f"s_add_u32 s36, s36, s{sW}")
        a("s_mul_i32 s36, s36, 50")
        a(f"v_min_u32 v{vPFA}, 49, v{vLANE}")
        a(f"v_add_u32 v{vPFA}, s36, v{vPFA}")
        a(f"v_lshlrev_b32 v{vPFA}, 7, v{vPFA}")
        a(f"v_add_u32 v{vPFA}, {WT_OFF}, v{vPFA}")
    if FUSE:
        a(f"s_mov_b32 s64, s{sHEAD}")
        a(f"s_mov_b32 s65, s{sQB}")
        a(f"s_mul_i32 s{sWS0}, s65, {200*1024}")
        a(f"s_lshl_b32 s{sT0}, s{sW}, 10")
        a(f"s_add_u32 s{sWS0}, s{sWS0}, s{sT0}")
        a(f"s_add_u32 s{sWS0}, s{sWS0}, {WT_OFF}")
        a(f"s_mov_b32 s{sWS}, s{sWS0}")
        a(f"s_mov_b32 s{sWL}, 0")
        a(f"s_mov_b32 s{sWC}, 2")
    a(f"s_mov_b32 s{sPASS}, 0")
    a(f"s_mul_i32 s37, s{sGRP}, {4*KV_CH}")
    stamp(a, 2)
    a("s_waitcnt vmcnt(0)")
    a(f"s_mov_b64 exec, s[{sLO}:{sLO+1}]")
    a(f"s_not_b64 exec, exec")
    for sg in range(2):
        a(f"v_mov_b32 v{vQ8[sg]}, 0")
        a(f"v_mov_b32 v{vQ8[sg]+1}, 0")
    a("s_mov_b64 exec, -1")
    a("s_barrier")
    stamp(a, 3)
    def rdK16(dst, rel_chunk, tt):
        base = vKe if tt % 2 == 0 else vKo
        o0 = rel_chunk * 40 + (tt >> 1) * 5
        return f"ds_read2st64_b64 v[{dst}:{dst+3}], v{base} offset0:{o0} offset1:{o0+1}"
    def rdK4(dst, rel_chunk, tt):
        return f"ds_read_b64 v[{dst}:{dst+1}], v{vK4c} offset:{rel_chunk*KV_CH + tt*1280 + 1024}"
    def voff(g):
        return (g // 16) * KV_CH + (g % 16) * 640
    def setbases():
        a(f"v_add_u32 v{vKe}, s37, v{vQO}")
        a(f"v_add_u32 v{vKo}, 1280, v{vKe}")
        a(f"v_add_u32 v{vK4c}, s37, v{vK8}")
        a(f"v_add_u32 v{vVc}, s37, v{vVA}")
        a(f"v_add_u32 v{vVc}, 10240, v{vVc}")
    def qk(dst, ka, kb, sg, c):
        return [f"v_mfma_f32_32x32x16_bf16 v[{dst}:{dst+15}], v[{ka}:{ka+3}], v[{vQ16[sg]}:{vQ16[sg]+3}], {c}",
                f"v_mfma_f32_32x32x8_bf16 v[{dst}:{dst+15}], v[{kb}:{kb+1}], v[{vQ8[sg]}:{vQ8[sg]+1}], v[{dst}:{dst+15}]"]
    def rowmax(m, regs, first=None):
        if first is None:
            a(f"v_max3_f32 v{m}, v{regs[0]}, v{regs[1]}, v{regs[2]}")
            rest = regs[3:]
        else:
            rest = regs
        i = 0
        while i + 1 < len(rest):
            a(f"v_max3_f32 v{m}, v{m}, v{rest[i]}, v{rest[i+1]}")
            i += 2
        if i < len(rest):
            a(f"v_max_f32 v{m}, v{m}, v{rest[i]}")
    a.lab("K2_START")
    setbases()
    a(rdK16(vKA, 0, 0))
    a(rdK4(vKB, 0, 0))
    a(f"s_mov_b64 exec, s[{sVM}:{sVM+1}]")
    a(f"ds_read_b128 v[{vV1}:{vV1+3}], v{vVc}")
    a("s_mov_b64 exec, -1")
    a(f"s_cmp_lg_u32 s{sPASS}, 0")
    a("s_cbranch_scc1 K2_HAVEM")
    a("s_waitcnt lgkmcnt(0)")
    for sg in range(2):
        for x in qk(S[sg], vKA, vKB, sg, "0"): a(x)
    a("s_nop 9")
    for sg in range(2):
        m = vT + 2 * sg
        rowmax(m, [S[sg] + i for i in range(16)])
        a(f"v_mov_b32 v{m+1}, v{m}")
    a("s_nop 1")
    for sg in range(2):
        m = vT + 2 * sg
        a(f"v_permlane32_swap_b32 v{m}, v{m+1}")
    a("s_nop 1")
    for sg in range(2):
        m = vT + 2 * sg
        a(f"v_max_f32 v{m}, v{m}, v{m+1}")
        a(f"v_sub_f32 v{NEG[sg]}, 0, v{m}")
        a(f"v_sub_f32 v{NEG[sg]+1}, 0, v{m}")
        for i in range(2, 16, 2):
            a(f"v_mov_b64 v[{NEG[sg]+i}:{NEG[sg]+i+1}], v[{NEG[sg]}:{NEG[sg]+1}]")
    a.lab("K2_HAVEM")
    a("s_waitcnt lgkmcnt(0)")
    a("s_nop 1")
    for x in qk(S[0], vKA, vKB, 0, f"v[{NEG[0]}:{NEG[0]+15}]"): a(x)
    a(f"s_mov_b32 s{sC}, 0")
    a("s_nop 15")
    stamp(a, 4)
    a.lab("K2_LOOP")
    if "chunkstamp" in OPT:
        a("s_memtime s[78:79]")
        a("s_waitcnt lgkmcnt(0)")
        a(f"s_mov_b32 s79, m0")
        a(f"s_mov_b32 m0, s{sC}")
        a("s_nop 0")
        a(f"v_writelane_b32 v247, s78, m0")
        a(f"s_mov_b32 m0, s79")
    aloads = [
        qloads(vQA16, vQA8, sQA, 0),
        [f"buffer_load_dwordx2 v[{vAK}:{vAK+1}], v{vAKO}, s[{SWS}:{SWS+3}], 0 offen",
         f"buffer_load_dwordx2 v[{vAK+2}:{vAK+3}], v{vAKO}, s[{SWS}:{SWS+3}], 0 offen offset:512",
         f"buffer_load_dwordx2 v[{vAK+8}:{vAK+9}], v{vAKO+1}, s[{SWS}:{SWS+3}], 0 offen offset:1024"],
        [f"buffer_load_dwordx2 v[{vAK+4}:{vAK+5}], v{vAKO+2}, s[{SWS}:{SWS+3}], 0 offen",
         f"buffer_load_dwordx2 v[{vAK+6}:{vAK+7}], v{vAKO+2}, s[{SWS}:{SWS+3}], 0 offen offset:512",
         f"buffer_load_dwordx2 v[{vAK+10}:{vAK+11}], v{vAKO+3}, s[{SWS}:{SWS+3}], 0 offen offset:1024"],
        [f"s_mov_b64 exec, s[{sVM}:{sVM+1}]"] +
        [f"buffer_load_dwordx4 v[{vAV+4*j}:{vAV+4*j+3}], v{vVA}, s[{SWS}:{SWS+3}], s{sAV+j} offen" for j in range(3)] +
        ["s_mov_b64 exec, -1"],
        [f"global_load_dwordx4 v[{vMX+4*j}:{vMX+4*j+3}], v{vL16}, s[56:57] offset:{j*1024}" for j in range(4)] +
        [f"v_add_u32 v{vT+7}, 4096, v{vL16}"] +
        [f"global_load_dwordx4 v[{vMY+4*j}:{vMY+4*j+3}], v{vT+7}, s[56:57] offset:{j*1024}" for j in range(2)] +
        [f"v_lshrrev_b32 v{vT+7}, 1, v{vK8}",
         f"buffer_load_dword v{vGATE}, v{vT+7}, s[{SWS}:{SWS+3}], s{sGO} offen"] +
        ([] if FUSE else [f"buffer_load_dword v{vDUM}, v{vPFA}, s[{SWS}:{SWS+3}], 0 offen"]),
    ]
    ool = []
    ptile = optval("ptile", 6)
    WIN = optval("win", 2)
    def wdma(j, p_expr_sgpr):
        return [f"s_add_u32 m0, s{sDO+j}, s{p_expr_sgpr}",
                f"s_add_u32 s{sT3}, s{sWS}, {j*8192}",
                f"buffer_load_dwordx4 v{vL16}, s[{SWS}:{SWS+3}], s{sT3} offen lds"]
    for tt in range(8):
        for sg in range(2):
            cur = S[sg]; nsg = sg ^ 1; nxt = S[nsg]
            nt = tt if sg == 0 else tt + 1
            ka = vKA + 4 * (nt & 1); kb = vKB + 2 * (nt & 1)
            if sg == 0 and tt == 7:
                a(f"s_cmp_lg_u32 s{sPASS}, 0")
                a(f"s_cbranch_scc1 K2_NOSYNC")
                a(f"s_cmp_ge_u32 s{sC}, 3")
                a(f"s_cbranch_scc1 K2_SYNC3" if (FUSE and WIN == 3) else f"s_cbranch_scc1 K2_NOSYNC")
                a("s_waitcnt vmcnt(0)")
                a("s_barrier")
                a.lab("K2_NOSYNC")
                if ptile >= 0: a("s_setprio 2")
                if FUSE and WIN == 3:
                    body = ["s_barrier"]
                    for j in range(5): body += wdma(j, sWL)
                    body += [f"s_add_u32 s{sWL}, s{sWL}, {KV_CH}", f"s_add_u32 s{sWS}, s{sWS}, {K3_BUF}", "s_branch K2_NOSYNC"]
                    ool.append(("K2_SYNC3", body))
            if sg == 0 and tt == ptile:
                a("s_setprio 0")
            if sg == 1:
                a("s_waitcnt lgkmcnt(0)")
            q = qk(nxt, ka, kb, nsg, f"v[{NEG[nsg]}:{NEG[nsg]+15}]")
            a(q[0])
            if sg == 0:
                n1 = tt + 1
                a(rdK16(vKA + 4 * (n1 & 1), n1 // 8, n1 % 8))
                a(rdK4(vKB + 2 * (n1 & 1), n1 // 8, n1 % 8))
            for i in range(0, 4):
                a(f"v_exp_f32 v{cur+i}, v{cur+i}")
            pt = tt - 1 if sg == 0 else tt
            v2p = vV2 + 4 * (pt & 1)
            a(f"v_mfma_f32_32x32x16_bf16 v[{O[nsg]}:{O[nsg]+15}], v[{v2p}:{v2p+3}], v[{vP+4}:{vP+7}], v[{O[nsg]}:{O[nsg]+15}]")
            if sg == 0:
                a(f"s_mov_b64 exec, s[{sVM}:{sVM+1}]")
                d = vV2 + 4 * (tt & 1)
                a(f"ds_read_b128 v[{d}:{d+3}], v{vVc} offset:{voff(2*tt+1)}")
                d = vV1 + 4 * ((tt + 1) & 1)
                a(f"ds_read_b128 v[{d}:{d+3}], v{vVc} offset:{voff(2*tt+2)}")
                a("s_mov_b64 exec, -1")
            if FUSE and WIN >= 2 and sg == 0 and 1 <= tt < 6:
                j = tt - 1
                a(f"s_cmp_ge_u32 s{sC}, s{sWC}")
                a(f"s_cbranch_scc1 K2_Y{tt}")
                body = wdma(j, sWL)
                if j == 4: body += [f"s_add_u32 s{sWL}, s{sWL}, {KV_CH}", f"s_add_u32 s{sWS}, s{sWS}, {K3_BUF}"]
                ool.append((f"K2_Y{tt}", body + [f"s_branch K2_YR{tt}"]))
                a.lab(f"K2_YR{tt}")
            if sg == 1 and tt < 5:
                a(f"s_cmp_lg_u32 s{sPASS}, 0")
                a(f"s_cbranch_scc1 K2_XR{tt}")
                a(f"s_cmp_lt_u32 s{sC}, 3")
                a(f"s_cbranch_scc0 K2_X{tt}")
                for x in dma1(tt): a(x)
                if tt == 4: a(f"s_add_u32 s{sDG}, s{sDG}, {KV_CH}")
                ool.append((f"K2_X{tt}", aloads[tt] + [f"s_branch K2_XR{tt}"]))
                a.lab(f"K2_XR{tt}")
            for i in range(4, 8):
                a(f"v_exp_f32 v{cur+i}, v{cur+i}")
            for i in range(4):
                a(f"v_cvt_pk_bf16_f32 v{vP+i}, v{cur+2*i}, v{cur+2*i+1}")
            a(q[1])
            for i in range(8, 12):
                a(f"v_exp_f32 v{cur+i}, v{cur+i}")
            v1 = vV1 + 4 * (tt & 1)
            a(f"v_mfma_f32_32x32x16_bf16 v[{O[sg]}:{O[sg]+15}], v[{v1}:{v1+3}], v[{vP}:{vP+3}], v[{O[sg]}:{O[sg]+15}]")
            for i in range(12, 16):
                a(f"v_exp_f32 v{cur+i}, v{cur+i}")
            for i in range(4, 8):
                a(f"v_cvt_pk_bf16_f32 v{vP+i}, v{cur+2*i}, v{cur+2*i+1}")
    for r in (vKe, vKo, vK4c, vVc):
        a(f"v_add_u32 v{r}, {KV_CH}, v{r}")
    a(f"s_add_u32 s{sC}, s{sC}, 1")
    a(f"s_cmp_lt_u32 s{sC}, 4")
    a("s_cbranch_scc1 K2_LOOP")
    stamp(a, 5)
    a(f"v_mfma_f32_32x32x16_bf16 v[{O[1]}:{O[1]+15}], v[{vV2+4}:{vV2+7}], v[{vP+4}:{vP+7}], v[{O[1]}:{O[1]+15}]")
    a("s_setprio 0")
    a(f"s_mov_b32 s{sFAIL}, 0")
    a(f"s_cmp_lg_u32 s{sPASS}, 0")
    a("s_cbranch_scc1 K2_XCHG")
    a(f"s_waitcnt vmcnt({(5 if WIN == 3 else 0) if FUSE else 1}) lgkmcnt(0)")
    a(f"s_mov_b64 exec, s[{sLO}:{sLO+1}]")
    a(f"s_not_b64 exec, exec")
    a(f"v_mov_b32 v{vQA8}, 0")
    a(f"v_mov_b32 v{vQA8+1}, 0")
    a("s_mov_b64 exec, -1")
    a(f"s_cmp_lg_u32 s{sS0}, 0")
    a("s_cbranch_scc1 K2_NOFIX")
    for i in range(8):
        a(f"v_mov_b32 v{vMX+i}, {f2u(NEGBIG):#x}")
    a.lab("K2_NOFIX")
    if "ts2" in OPT: stamp(a, 4)
    a(f"v_mfma_f32_32x32x16_bf16 v[{vS0}:{vS0+15}], v[{vAK}:{vAK+3}], v[{vQA16}:{vQA16+3}], v[{vMX}:{vMX+15}]")
    a(f"v_mfma_f32_32x32x16_bf16 v[{vS1}:{vS1+15}], v[{vAK+4}:{vAK+7}], v[{vQA16}:{vQA16+3}], v[{vMY}:{vMY+15}]")
    a(f"v_mfma_f32_32x32x8_bf16 v[{vS0}:{vS0+15}], v[{vAK+8}:{vAK+9}], v[{vQA8}:{vQA8+1}], v[{vS0}:{vS0+15}]")
    a(f"v_mfma_f32_32x32x8_bf16 v[{vS1}:{vS1+15}], v[{vAK+10}:{vAK+11}], v[{vQA8}:{vQA8+1}], v[{vS1}:{vS1+15}]")
    a(f"v_mov_b64 v[{vT+2}:{vT+3}], 0")
    a(f"v_mov_b64 v[{vT+4}:{vT+5}], 0")
    a(f"v_mov_b32 v{vT+1}, {f2u(2.0**64):#x}")
    a("s_nop 3")
    for i in range(0, 12, 2):
        for sg in range(2):
            a(f"v_pk_fma_f32 v[{vT+2}:{vT+3}], v[{O[sg]+i}:{O[sg]+i+1}], v[{vT+4}:{vT+5}], v[{vT+2}:{vT+3}]")
    a(f"v_add_f32 v{vT}, v{O[0]+12}, v{O[1]+12}")
    a(f"v_add_f32 v{vT+2}, v{vT+2}, v{vT+3}")
    a(f"v_add_f32 v{vT}, v{vT}, v{vT+2}")
    a(f"v_cmp_nlt_f32 vcc, v{vT}, v{vT+1}")
    a(f"v_mov_b32 v{O[0]+13}, v{NEG[0]}")
    a(f"v_mov_b32 v{O[1]+13}, v{NEG[1]}")
    a("s_nop 1")
    a("s_cmp_lg_u64 vcc, 0")
    a(f"s_cselect_b32 s{sFAIL}, 1, 0")
    if "forcefail" in OPT:
        a(f"s_cmp_eq_u32 s{sW}, 3")
        a(f"s_cselect_b32 s{sFAIL}, 1, s{sFAIL}")
    regs = [vS0 + i for i in range(16)] + [vS1 + i for i in range(8)]
    m = vT + 6
    rowmax(m, regs)
    a(f"v_mov_b32 v{m+1}, v{m}")
    a("s_nop 1")
    a(f"v_permlane32_swap_b32 v{m}, v{m+1}")
    a("s_nop 1")
    a(f"v_max_f32 v{m}, v{m}, v{m+1}")
    a(f"v_sub_f32 v{vKo}, 0, v{m}")
    a(f"v_sub_f32 v{vK4c}, 0, v{m}")
    for i in range(0, 24, 2):
        a(f"v_pk_add_f32 v[{regs[i]}:{regs[i]+1}], v[{regs[i]}:{regs[i]+1}], v[{vKo}:{vK4c}]")
    for i in range(24):
        a(f"v_exp_f32 v{regs[i]}, v{regs[i]}")
    a("s_nop 0")
    for i in range(12):
        a(f"v_cvt_pk_bf16_f32 v{vP+i}, v{regs[2*i]}, v{regs[2*i+1]}")
    OA = NEG[0]
    a("s_nop 1")
    for j in range(3):
        c = "0" if j == 0 else f"v[{OA}:{OA+15}]"
        a(f"v_mfma_f32_32x32x16_bf16 v[{OA}:{OA+15}], v[{vAV+4*j}:{vAV+4*j+3}], v[{vP+4*j}:{vP+4*j+3}], {c}")
    def rowsum(dst, acc):
        a(f"v_mov_b32 v{dst}, v{acc+12}")
        a(f"s_not_b64 exec, s[{sLO}:{sLO+1}]")
        a(f"v_mov_b32 v{dst}, v{acc+8}")
        a("s_mov_b64 exec, -1")
    OFL = " sc1" if FUSE else STORE_FLAGS
    def ostore(br, src):
        a("s_nop 1")
        a(f"v_permlane32_swap_b32 v{src}, v{src+2}")
        a(f"v_permlane32_swap_b32 v{src+1}, v{src+3}")
        a(f"s_mov_b32 s{sT1}, {O_OFF}")
        a(f"buffer_store_dwordx4 v[{src}:{src+3}], v{vOSA}, s[{SWS}:{SWS+3}], s{sT1} offen offset:{br*512}{OFL}")
    a("s_nop 15")
    rowsum(vT + 6, OA)
    a(f"v_rcp_f32 v{vT+6}, v{vT+6}")
    a("s_nop 0")
    a(f"v_mul_f32 v{vT+6}, v{vT+6}, v{vGATE}")
    for i in range(0, 12, 2):
        a(f"v_pk_mul_f32 v[{OA+i}:{OA+i+1}], v[{OA+i}:{OA+i+1}], v[{vT+6}:{vT+7}] op_sel_hi:[1,0]")
    for i in range(4):
        a(f"v_cvt_pk_bf16_f32 v{vP+i}, v{OA+2*i}, v{OA+2*i+1}")
    for i in range(2):
        a(f"v_cvt_pk_bf16_f32 v{vOB+4+i}, v{OA+8+2*i}, v{OA+9+2*i}")
    ostore(0, vP)
    a("s_branch K2_XCHG1")
    a.lab("K2_XCHG")
    a("s_nop 15")
    a(f"v_mov_b32 v{O[0]+13}, v{NEG[0]}")
    a(f"v_mov_b32 v{O[1]+13}, v{NEG[1]}")
    a.lab("K2_XCHG1")
    a(f"s_mul_i32 s{sT0}, s{sGRP}, {4*KV_CH}")
    a(f"s_lshl_b32 s{sT2}, s{sPR}, 12")
    a(f"s_add_u32 s{sT2}, s{sT2}, {3*KV_CH}")
    a(f"s_add_u32 s{sT0}, s{sT0}, s{sT2}")
    a(f"v_add_u32 v{vT}, s{sT0}, v{vL16}")
    a(f"s_xor_b32 s{sT0}, s{sGRP}, 1")
    a(f"s_mul_i32 s{sT0}, s{sT0}, {4*KV_CH}")
    a(f"s_add_u32 s{sT0}, s{sT0}, s{sT2}")
    a(f"v_add_u32 v{vT+1}, s{sT0}, v{vL16}")
    a(f"s_lshl_b32 s{sT0}, s{sW}, 2")
    a(f"s_add_u32 s{sT0}, s{sT0}, {3*KV_CH + 16384}")
    a(f"v_mov_b32 v{vT+2}, s{sT0}")
    a(f"v_mov_b32 v{vT+3}, s{sFAIL}")
    if "ts2" in OPT: stamp(a, 1)
    a("s_barrier")
    if "ts2" in OPT: stamp(a, 2)
    a(f"s_cmp_eq_u32 s{sGRP}, 0")
    a("s_cbranch_scc1 K2_XA")
    for j in range(4):
        a(f"ds_write_b128 v{vT}, v[{O[0]+4*j}:{O[0]+4*j+3}] offset:{j*1024}")
    a("s_branch K2_XB")
    a.lab("K2_XA")
    for j in range(4):
        a(f"ds_write_b128 v{vT}, v[{O[1]+4*j}:{O[1]+4*j+3}] offset:{j*1024}")
    a.lab("K2_XB")
    a(f"ds_write_b32 v{vT+2}, v{vT+3}")
    a(f"v_mov_b32 v{vT+2}, {3*KV_CH + 16384}")
    a("s_waitcnt lgkmcnt(0)")
    a("s_barrier")
    if "ts2" in OPT: stamp(a, 3)
    a(f"ds_read_b128 v[{vT+4}:{vT+7}], v{vT+2}")
    a(f"ds_read_b128 v[{vS0}:{vS0+3}], v{vT+2} offset:16")
    a(f"s_cmp_eq_u32 s{sGRP}, 0")
    a("s_cbranch_scc1 K2_XC")
    for j in range(4):
        a(f"ds_read_b128 v[{O[0]+4*j}:{O[0]+4*j+3}], v{vT+1} offset:{j*1024}")
    a("s_branch K2_XD")
    a.lab("K2_XC")
    for j in range(4):
        a(f"ds_read_b128 v[{O[1]+4*j}:{O[1]+4*j+3}], v{vT+1} offset:{j*1024}")
    a.lab("K2_XD")
    a("s_waitcnt lgkmcnt(4)")
    a(f"v_or3_b32 v{vT+4}, v{vT+4}, v{vT+5}, v{vT+6}")
    a(f"v_or3_b32 v{vT+4}, v{vT+4}, v{vT+7}, v{vS0}")
    a(f"v_or3_b32 v{vT+4}, v{vT+4}, v{vS0+1}, v{vS0+2}")
    a(f"v_or_b32 v{vT+4}, v{vT+4}, v{vS0+3}")
    a("s_nop 0")
    a(f"v_readfirstlane_b32 s{sT0}, v{vT+4}")
    a("s_nop 3")
    a(f"s_cmp_lg_u32 s{sT0}, 0")
    a("s_cbranch_scc1 K2_REDO")
    a("s_waitcnt lgkmcnt(0)")
    a(f"v_sub_f32 v{vT+2}, v{O[1]+13}, v{O[0]+13}")
    a(f"v_sub_f32 v{vT+3}, 0, v{vT+2}")
    a(f"v_min_f32 v{vT+2}, 0, v{vT+2}")
    a(f"v_min_f32 v{vT+3}, 0, v{vT+3}")
    a(f"v_exp_f32 v{vT+2}, v{vT+2}")
    a(f"v_exp_f32 v{vT+3}, v{vT+3}")
    rowsum(vT + 4, O[0])
    rowsum(vT + 5, O[1])
    a(f"v_mul_f32 v{vT+4}, v{vT+4}, v{vT+2}")
    a(f"v_fmac_f32 v{vT+4}, v{vT+5}, v{vT+3}")
    a(f"v_rcp_f32 v{vT+4}, v{vT+4}")
    a(f"v_sub_f32 v{vT+5}, 1.0, v{vGATE}")
    a("s_nop 0")
    a(f"v_mul_f32 v{vT+4}, v{vT+4}, v{vT+5}")
    a(f"v_mul_f32 v{vT+2}, v{vT+2}, v{vT+4}")
    a(f"v_mul_f32 v{vT+3}, v{vT+3}, v{vT+4}")
    for i in range(0, 12, 2):
        a(f"v_pk_mul_f32 v[{O[0]+i}:{O[0]+i+1}], v[{O[0]+i}:{O[0]+i+1}], v[{vT+2}:{vT+3}] op_sel_hi:[1,0]")
        a(f"v_pk_fma_f32 v[{O[0]+i}:{O[0]+i+1}], v[{O[1]+i}:{O[1]+i+1}], v[{vT+2}:{vT+3}], v[{O[0]+i}:{O[0]+i+1}] op_sel:[0,1,0] op_sel_hi:[1,1,1]")
    for i in range(4):
        a(f"v_cvt_pk_bf16_f32 v{vOB+i}, v{O[0]+2*i}, v{O[0]+2*i+1}")
    for i in range(2):
        a(f"v_cvt_pk_bf16_f32 v{vOB+6+i}, v{O[0]+8+2*i}, v{O[0]+9+2*i}")
    ostore(1, vOB)
    a(f"s_mov_b64 exec, s[{sLO}:{sLO+1}]")
    a(f"buffer_store_dwordx4 v[{vOB+4}:{vOB+7}], v{vOSA}, s[{SWS}:{SWS+3}], s{sT1} offen offset:1024{OFL}")
    a("s_mov_b64 exec, -1")
    if FUSE:
        if WIN:
            a(f"s_cmp_eq_u32 s{sPASS}, 0")
            a("s_cbranch_scc1 K2_WOK")
            a("s_barrier")
            a(f"s_mov_b32 s{sWL}, 0")
            a(f"s_mov_b32 s{sWS}, s{sWS0}")
            for p in range(WIN):
                for j in range(5):
                    for x in wdma(j, sWL): a(x)
                a(f"s_add_u32 s{sWL}, s{sWL}, {KV_CH}")
                a(f"s_add_u32 s{sWS}, s{sWS}, {K3_BUF}")
            a("s_waitcnt vmcnt(0)")
            a.lab("K2_WOK")
        stamp(a, 6)
        NPRE = 0
        if WIN == 3:
            a("s_barrier")
            a(f"s_mov_b32 s{sWL}, {3*KV_CH}")
            for j in range(5):
                for x in wdma(j, sWL): a(x)
            NPRE = 5
        elif WIN == 2:
            a(f"s_mov_b32 s{sWL}, {2*KV_CH}")
            for j in range(5):
                for x in wdma(j, sWL): a(x)
            a(f"s_add_u32 s{sWS}, s{sWS}, {K3_BUF}")
            NPRE = 5
        a(f"s_waitcnt vmcnt({NPRE})")
        if "tailstamps" in OPT: stamp(a, 1)
        a("s_barrier")
        if "tailstamps" in OPT: stamp(a, 2)
        a(f"s_cmp_lg_u32 s{sW}, 0")
        a("s_cbranch_scc1 K2_NOPOLL0")
        a(f"s_lshl_b32 s{sT0}, s{sQB}, 12")
        a(f"s_add_u32 s{sT0}, s{sT0}, {FL_OFF}")
        a(f"s_mov_b64 exec, s[{sLO}:{sLO+1}]")
        a(f"v_mov_b32 v{vT}, 1")
        a(f"v_lshlrev_b32 v{vT+5}, 7, v{vLANE}")
        a(f"buffer_atomic_add v{vT}, v{vT+5}, s[{SWS}:{SWS+3}], s{sT0} offen")
        a("s_mov_b64 exec, -1")
        a.lab("K2_NOPOLL0")
        WPOST = 4 if WIN == 3 else optval("wpost", 4)
        if WIN != 3:
            W0P = 3 if WIN == 2 else WIN
            a(f"s_mov_b32 s{sWL}, {W0P*KV_CH}")
            for p in range(W0P, WPOST):
                for j in range(5):
                    for x in wdma(j, sWL): a(x)
                a(f"s_add_u32 s{sWL}, s{sWL}, {KV_CH}")
                a(f"s_add_u32 s{sWS}, s{sWS}, {K3_BUF}")
        bufss = [((ss // 2) % 4) * KV_CH + (ss & 1) * 4 * KV_CH for ss in range(10)]
        pc = proj_core(a, "K2", SWS, 68, sW, 64, 65, 50, bufss,
                       lambda p, j, sM0: f"s_add_u32 m0, s{sDO+j}, {(p % 4)*KV_CH}", ({1: [4]} if WPOST == 4 else {0: [3], 1: [4]}), optval("k2opre", 4))
        pc.setup()
        srd(a, 68, 60, 61, 2048 * 1280)
        pc.addr_setup(0)
        if "tailstamps" in OPT: stamp(a, 3)
        a(f"s_cmp_lg_u32 s{sW}, 0")
        a("s_cbranch_scc1 K2_NOPOLL")
        a(f"s_lshl_b32 s{sT0}, s{sHEAD}, 3")
        a(f"s_add_u32 s{sT0}, s{sT0}, s{sQB}")
        a(f"s_lshl_b32 s{sT0}, s{sT0}, 7")
        a(f"s_add_u32 s{sT0}, s{sT0}, {FL_OFF}")
        a("s_mov_b64 exec, 1")
        a(f"v_mov_b32 v{vT+5}, 0")
        a(f"s_mov_b32 s{sT1}, 0")
        a.lab("K2_POLL")
        a(f"buffer_load_dword v{vT+4}, v{vT+5}, s[{SWS}:{SWS+3}], s{sT0} offen sc1")
        a("s_waitcnt vmcnt(0)")
        a(f"v_readfirstlane_b32 s{sT2}, v{vT+4}")
        a(f"s_add_u32 s{sT1}, s{sT1}, 1")
        a(f"s_cmp_ge_u32 s{sT2}, 32")
        a("s_cbranch_scc1 K2_POLLED")
        a(f"s_sleep {optval('psleep', 2)}")
        a(f"s_cmp_lt_u32 s{sT1}, 0x40000")
        a("s_cbranch_scc1 K2_POLL")
        a.lab("K2_POLLED")
        a("s_waitcnt vmcnt(0)")
        if "tailstamps" in OPT:
            stamp(a, 4)
        a("s_mov_b64 exec, -1")
        a.lab("K2_NOPOLL")
        a("s_waitcnt vmcnt(0)")
        a("s_barrier")
        stamp(a, 7)
        pc.body([("o", 0), ("o", 1), ("o", 2), ("o", 3)])
        if PROF: a("s_waitcnt vmcnt(0)")
        stamp(a, 8)
        stamp_flush(a, 1, 9, SWS, sW, vT)
        if "dbgtime" in OPT:
            a("s_cmp_lg_u32 s2, 1")
            a("s_cbranch_scc1 K2_DBGX")
            a("s_cmp_lg_u32 s12, 0")
            a("s_cbranch_scc1 K2_DBGX")
            a("s_load_dwordx2 s[92:93], s[0:1], 64")
            a("s_waitcnt vmcnt(0)")
            a("s_memrealtime s[94:95]")
            a("s_memtime s[96:97]")
            a("s_waitcnt lgkmcnt(0)")
            srd(a, 84, 92, 93, 256)
            a("s_sub_u32 s96, s96, s88")
            a("s_sub_u32 s94, s94, s90")
            a("s_mov_b64 exec, 1")
            a("v_mov_b32 v24, 0")
            a("v_mov_b32 v20, 222")
            a("v_mov_b32 v21, s96")
            a("v_mov_b32 v22, s94")
            a("v_mov_b32 v23, s90")
            a("buffer_store_dwordx4 v[20:23], v24, s[84:87], 0 offen")
            a("s_mov_b64 exec, -1")
            a.lab("K2_DBGX")
        a("s_endpgm")
    else:
        a("s_branch K2_DONE")
    a.lab("K2_REDO")
    a("s_waitcnt vmcnt(0) lgkmcnt(0)")
    a("s_barrier")
    a(f"s_mov_b32 s{sDG}, 0")
    for p in range(4):
        for j in range(5):
            for x in dma1(j): a(x)
        a(f"s_add_u32 s{sDG}, s{sDG}, {KV_CH}")
    a(f"s_mov_b32 s{sPASS}, 1")
    if FUSE: a(f"s_mov_b32 s{sWC}, 99")
    a(f"v_mov_b32 v{vT}, {f2u(-3.0e38):#x}")
    a(f"v_mov_b32 v{vT+2}, {f2u(-3.0e38):#x}")
    setbases()
    a(f"s_mov_b32 s{sC}, 0")
    a("s_waitcnt vmcnt(0)")
    a("s_barrier")
    a.lab("K2_MAXLOOP")
    for tt in range(8):
        a(rdK16(vKA, 0, tt))
        a(rdK4(vKB, 0, tt))
        a("s_waitcnt lgkmcnt(0)")
        for sg in range(2):
            for x in qk(S[sg], vKA, vKB, sg, "0"): a(x)
        a("s_nop 15")
        for sg in range(2):
            rowmax(vT + 2 * sg, [S[sg] + i for i in range(16)], first=True)
    for r in (vKe, vKo, vK4c):
        a(f"v_add_u32 v{r}, {KV_CH}, v{r}")
    a(f"s_add_u32 s{sC}, s{sC}, 1")
    a(f"s_cmp_lt_u32 s{sC}, 4")
    a("s_cbranch_scc1 K2_MAXLOOP")
    for sg in range(2):
        a(f"v_mov_b32 v{vT+2*sg+1}, v{vT+2*sg}")
    a("s_nop 1")
    for sg in range(2):
        a(f"v_permlane32_swap_b32 v{vT+2*sg}, v{vT+2*sg+1}")
    a("s_nop 1")
    for sg in range(2):
        a(f"v_max_f32 v{vT+2*sg}, v{vT+2*sg}, v{vT+2*sg+1}")
        for i in range(16):
            a(f"v_sub_f32 v{NEG[sg]+i}, 0, v{vT+2*sg}")
            a(f"v_mov_b32 v{O[sg]+i}, 0")
    for i in range(4):
        a(f"v_mov_b32 v{vP+4+i}, 0")
    a("s_branch K2_START")
    for lab, body in ool:
        a.lab(lab)
        for x in body: a(x)
    a.lab("K2_DONE")
    stamp(a, 6)
    if PROF: a("s_waitcnt vmcnt(0)")
    stamp(a, 7)
    if "chunkstamp" in OPT:
        a(f"s_lshl_b32 s97, s2, 3")
        a(f"s_add_u32 s97, s97, s{sW}")
        a(f"s_lshl_b32 s97, s97, 6")
        a(f"s_add_u32 s97, s97, {PROF_OFF + 3 * 0x100000}")
        a(f"v_lshlrev_b32 v{vT}, 2, v{vLANE}")
        a("s_mov_b64 exec, 0xff")
        a(f"buffer_store_dword v247, v{vT}, s[{SWS}:{SWS+3}], s97 offen")
        a("s_mov_b64 exec, -1")
    stamp_flush(a, 1, 8, SWS, sW, vT)
    a.lab("K2_END")
    a("s_endpgm")
    a.raw(".p2align 4")
    a.lab("K2_TABLE")
    tab = mask_table()
    for i in range(0, len(tab), 8):
        a.raw("    .long " + ", ".join(f"{x:#x}" for x in tab[i:i+8]))
    a.lab("K2_TEXT_END")
    return name, NV

K3_BUF = 40 * 1024
K3_NBUF = 3
K3_LDS = K3_BUF * K3_NBUF

K3_GRID = 256
def proj_core(a, pfx, SWS, SOUT, sW, sMT, sNT, sbase, bufss, wm0, wplan, OPRE, vLANE=1, vL16=2):
    sMB, sKH, sT0, sT1, sT2, sOB, sWB, sM0, sOUT = [sbase + i for i in range(9)]
    vWR = 6; vWA = 7; vT = 8
    vOF = 20; vWF = 100; vACC = 180
    oflags = " sc1" if pfx == "K2" else ""
    issued = []
    def setup():
        a(f"s_and_b32 s{sMB}, s{sW}, 3")
        a(f"s_lshr_b32 s{sKH}, s{sW}, 2")
        a(f"s_lshl_b32 s{sM0}, s{sW}, 10")
        a(f"s_mul_i32 s{sWB}, s{sNT}, {200*1024}")
        a(f"s_add_u32 s{sWB}, s{sWB}, s{sM0}")
        a(f"s_add_u32 s{sWB}, s{sWB}, {WT_OFF}")
        a(f"s_lshl_b32 s{sOB}, s{sMT}, 2")
        a(f"s_add_u32 s{sOB}, s{sOB}, s{sMB}")
        a(f"s_mul_i32 s{sOUT}, s{sOB}, {16*1280}")
        a(f"s_mul_i32 s{sOB}, s{sOB}, 40")
        a(f"s_lshl_b32 s{sT0}, s{sKH}, 1")
        a(f"s_add_u32 s{sOB}, s{sOB}, s{sT0}")
        a(f"s_lshl_b32 s{sOB}, s{sOB}, 10")
        a(f"s_add_u32 s{sOB}, s{sOB}, {O_OFF}")
        a(f"s_mul_i32 s{sT2}, s{sNT}, 160")
        a(f"s_add_u32 s{sOUT}, s{sOUT}, s{sT2}")
    def wgroup(p):
        g = []
        for j in range(5):
            g.append(([wm0(p, j, sM0),
                       f"s_add_u32 s{sT1}, s{sWB}, {p*K3_BUF + j*8192}",
                       f"buffer_load_dwordx4 v{vL16}, s[{SWS}:{SWS+3}], s{sT1} offen lds"], ("W", p)))
        return g
    def ogroup(ss):
        g = []
        for i in range(2):
            d = vOF + (ss * 2 + i) * 4
            g.append(([f"s_add_u32 s{sT0}, s{sOB}, {(ss*4 + i)*1024}",
                       f"buffer_load_dwordx4 v[{d}:{d+3}], v{vL16}, s[{SWS}:{SWS+3}], s{sT0} offen{oflags}"], ("o", ss)))
        return g
    def emit(item):
        for x in item[0]: a(x)
        issued.append(item[1])
    def vm(need):
        last = max([i for i, t in enumerate(issued) if t in need], default=-1)
        return min(63, len(issued) - 1 - last)
    def reads(ss):
        st = ss & 1
        off = bufss[ss]
        out = [f"v_add_u32 v{vWA}, {off}, v{vWR}"]
        for i in range(2):
            for b in range(5):
                r = vWF + st * 40 + (i * 5 + b) * 4
                out.append(f"ds_read_b128 v[{r}:{r+3}], v{vWA} offset:{(i*5 + b)*1024}")
        return out
    def addr_setup(xbase):
        a(f"s_mul_i32 s{sT0}, s{sKH}, {10*1024}")
        a(f"v_add_u32 v{vWR}, s{sT0}, v{vL16}")
        a(f"v_and_b32 v{vT+1}, 15, v{vLANE}")
        a(f"v_mul_u32_u24 v{vT+1}, 1280, v{vT+1}")
        a(f"v_lshrrev_b32 v{vT+2}, 4, v{vLANE}")
        a(f"v_lshl_add_u32 v{vT+1}, v{vT+2}, 3, v{vT+1}")
        a(f"s_mul_i32 s{sT0}, s{sW}, {3*1024}")
        a(f"s_add_u32 s{sT0}, s{sT0}, {xbase}")
        a(f"v_add_u32 v{vT}, s{sT0}, v{vL16}")
        a(f"s_xor_b32 s{sT2}, s{sW}, 4")
        a(f"s_mul_i32 s{sT2}, s{sT2}, {3*1024}")
        a(f"s_add_u32 s{sT2}, s{sT2}, {xbase}")
        a(f"v_add_u32 v{vT+3}, s{sT2}, v{vL16}")
    def body(first):
        for kind, idx in first:
            for it in (wgroup(idx) if kind == "W" else ogroup(idx)): emit(it)
        nxt_o = max([idx for kind, idx in first if kind == "o"], default=-1) + 1
        if pfx == "K3": stamp(a, 1)
        a(f"s_waitcnt vmcnt({vm({('W', 0)})})")
        a("s_barrier")
        if pfx == "K3": stamp(a, 2)
        for r in reads(0): a(r)
        for ss in range(10):
            p = ss // 2
            need = {("o", ss)}
            if ss % 2 == 1 and p + 1 < 5: need.add(("W", p + 1))
            a(f"s_waitcnt vmcnt({vm(need)}) lgkmcnt(0)")
            if ss % 2 == 1 and ss < 9: a("s_barrier")
            mf = []
            for i in range(2):
                for b in range(5):
                    acc = vACC + b * 4
                    wf = vWF + (ss & 1) * 40 + (i * 5 + b) * 4
                    of = vOF + (ss * 2 + i) * 4
                    c = "0" if (ss == 0 and i == 0) else f"v[{acc}:{acc+3}]"
                    mf.append(f"v_mfma_f32_16x16x32_bf16 v[{acc}:{acc+3}], v[{wf}:{wf+3}], v[{of}:{of+3}], {c}")
            rd = reads(ss + 1) if ss < 9 else []
            ld = []
            for p2 in wplan.get(ss, []): ld += wgroup(p2)
            while nxt_o < 10 and nxt_o <= ss + OPRE:
                ld += ogroup(nxt_o); nxt_o += 1
            ex = [("r", r) for r in rd]
            mixed = []
            step = max(1, len(ex) // max(1, len(ld))) if ld else 0
            k = 0
            for i, e in enumerate(ex):
                mixed.append(e)
                if ld and k < len(ld) and (i + 1) % step == 0:
                    mixed.append(("l", ld[k])); k += 1
            while k < len(ld):
                mixed.append(("l", ld[k])); k += 1
            k = 0
            for i, m in enumerate(mf):
                a(m)
                tgt = min(len(mixed), ((i + 1) * len(mixed) + 8) // 9)
                while k < tgt:
                    if mixed[k][0] == "r": a(mixed[k][1])
                    else: emit(mixed[k][1])
                    k += 1
        if pfx == "K3": stamp(a, 3)
        a("s_barrier")
        a(f"s_cmp_eq_u32 s{sKH}, 0")
        a(f"s_cbranch_scc1 {pfx}_PW0")
        a("s_nop 4")
        for b in range(3):
            a(f"ds_write_b128 v{vT}, v[{vACC+b*4}:{vACC+b*4+3}] offset:{b*1024}")
        a("s_waitcnt lgkmcnt(0)")
        a("s_barrier")
        def fin(blocks):
            for n, b in enumerate(blocks):
                a(f"ds_read_b128 v[{vOF+4*n}:{vOF+4*n+3}], v{vT+3} offset:{n*1024}")
            for n, b in enumerate(blocks):
                a(f"s_waitcnt lgkmcnt({len(blocks)-1-n})")
                for i in range(0, 4, 2):
                    a(f"v_pk_add_f32 v[{vOF+4*n+i}:{vOF+4*n+i+1}], v[{vOF+4*n+i}:{vOF+4*n+i+1}], v[{vACC+4*b+i}:{vACC+4*b+i+1}]")
                a(f"v_cvt_pk_bf16_f32 v{vWF+2*n}, v{vOF+4*n}, v{vOF+4*n+1}")
                a(f"v_cvt_pk_bf16_f32 v{vWF+2*n+1}, v{vOF+4*n+2}, v{vOF+4*n+3}")
                a(f"buffer_store_dwordx2 v[{vWF+2*n}:{vWF+2*n+1}], v{vT+1}, s[{SOUT}:{SOUT+3}], s{sOUT} offen offset:{b*32}")
        fin([3, 4])
        a(f"s_branch {pfx}_PFIN")
        a.lab(f"{pfx}_PW0")
        a("s_nop 4")
        for n, b in enumerate((3, 4)):
            a(f"ds_write_b128 v{vT}, v[{vACC+b*4}:{vACC+b*4+3}] offset:{n*1024}")
        a("s_waitcnt lgkmcnt(0)")
        a("s_barrier")
        fin([0, 1, 2])
        a.lab(f"{pfx}_PFIN")
    class C: pass
    c = C(); c.setup = setup; c.wgroup = wgroup; c.emit = emit; c.addr_setup = addr_setup; c.body = body; c.issued = issued
    return c

def gen_k3(a):
    name = "k3_proj_kernel"
    kernel_head(a, name)
    SWS = 8; SOUT = 20
    sW = 24; sMT = 27; sNT = 28
    vLANE = 1; vL16 = 2; vT = 8
    NV = 200
    a(f"s_cmp_ge_u32 s2, {K3_GRID}")
    a("s_cbranch_scc1 K3_END")
    stamp(a, 0)
    a("s_load_dwordx2 s[4:5], s[0:1], 72")
    a("s_load_dwordx2 s[36:37], s[0:1], 56")
    a(f"v_and_b32 v{vLANE}, 63, v0")
    a(f"v_lshrrev_b32 v{vT}, 6, v0")
    a(f"s_and_b32 s{sMT}, s2, 7")
    a(f"v_readfirstlane_b32 s{sW}, v{vT}")
    a(f"s_lshl_b32 s{sMT}, s{sMT}, 2")
    a(f"s_lshr_b32 s29, s2, 6")
    a(f"s_add_u32 s{sMT}, s{sMT}, s29")
    a(f"s_lshr_b32 s{sNT}, s2, 3")
    a(f"s_and_b32 s{sNT}, s{sNT}, 7")
    a(f"v_lshlrev_b32 v{vL16}, 4, v{vLANE}")
    bufss = [((ss // 2) % 3) * K3_BUF + (ss & 1) * 20 * 1024 for ss in range(10)]
    c = proj_core(a, "K3", SWS, SOUT, sW, sMT, sNT, 40, bufss, lambda p, j, sM0: f"s_add_u32 m0, s{sM0}, {(p % 3)*K3_BUF + j*8192}",
                  {0: [2], 1: [3], 3: [4]}, optval("k3opre", 4))
    c.setup()
    a("s_waitcnt lgkmcnt(0)")
    srd(a, SWS, 4, 5, WS_USED)
    srd(a, SOUT, 36, 37, 2048 * 1280)
    c.addr_setup(0)
    c.body([("W", 0), ("o", 0), ("o", 1), ("W", 1), ("o", 2), ("o", 3)])
    stamp(a, 4)
    if PROF: a("s_waitcnt vmcnt(0)")
    stamp(a, 5)
    stamp_flush(a, 2, 6, SWS, sW, vT)
    a.lab("K3_END")
    a("s_endpgm")
    return name, NV

def build(kernels=("k1", "k2", "k3")):
    a = Asm()
    fuse = "nofuse" not in OPT
    k3line = "" if fuse else f"; @launch kernel=k3_proj_kernel grid=({K3_GRID},1,1) block=(512,1,1) lds={K3_LDS}\n"
    hdr = f"""; Gated mix of sliding-window dilated attention (A) and full softmax MHA (B): three launches.
; @launch kernel=k1_qkv_kernel grid=(256,1,1) block=(512,1,1) lds={K1_LDS}
; @launch kernel=k2_attn_kernel grid=(256,1,1) block=(512,1,1) lds={K2_LDS}
{k3line}.amdgcn_target "amdgcn-amd-amdhsa--gfx950"
.text
"""
    descs = []
    for g in ((gen_k1, gen_k2) if fuse else (gen_k1, gen_k2, gen_k3)):
        n, nv = g(a)
        descs.append(kernel_desc(n, nv))
    txt = a.text()
    txt = txt.replace("K2CODE_WAVES", "((K2_TEXT_END-k2_attn_kernel) >> 13)")
    return hdr + txt + '.section .rodata,"a"\n' + "".join(".p2align 6\n" + d for d in descs)

if __name__ == "__main__":
    if len(sys.argv) > 2 and sys.argv[2] == "prof":
        PROF = True
    OPT.update(sys.argv[3:])
    if "st_plain" in OPT: STORE_FLAGS = ""
    if "st_sc1" in OPT: STORE_FLAGS = " sc1"
    if "st_nt" in OPT: STORE_FLAGS = " nt"
    if "st_sc01" in OPT: STORE_FLAGS = " sc0 sc1"
    if "st_sc1nt" in OPT: STORE_FLAGS = " sc1 nt"
    if "st_all" in OPT: STORE_FLAGS = " sc0 sc1 nt"
    out = sys.argv[1] if len(sys.argv) > 1 else f"cdna_kernels/{NAME}.s"
    open(out, "w").write(build())
    print("wrote", out)
```

```python
import sys, struct

NAME = "gated_mix__sliding_local_dilated__softmax_full_mha__prompt"

KV_HEAD = 163840
KV_CH = 20480
Q_HEAD = 81920
Q_CH = 10240
KVA_OFF = 0
KVB_OFF = 32 * KV_HEAD
QA_OFF = 2 * 32 * KV_HEAD
QB_OFF = QA_OFF + 32 * Q_HEAD
G_OFF = QB_OFF + 32 * Q_HEAD
FL_OFF = 0xF04000
WT_OFF = 0xF10000
O_OFF = 0x1100000
O_SIZE = 128 * 40 * 1024
WS_USED = 0x2400000
QSCALE = (20 ** -0.5) * 1.4426950408889634

def f2u(x):
    return struct.unpack("<I", struct.pack("<f", x))[0]

class Asm:
    def __init__(self):
        self.l = []
    def __call__(self, s):
        for x in s.strip("\n").split("\n"):
            self.l.append("    " + x.strip())
    def lab(self, s):
        self.l.append(s + ":")
    def raw(self, s):
        self.l.append(s)
    def text(self):
        return "\n".join(self.l) + "\n"

def vr(b, n=1):
    return f"v{b}" if n == 1 else f"v[{b}:{b+n-1}]"
def sr(b, n=1):
    return f"s{b}" if n == 1 else f"s[{b}:{b+n-1}]"

def kernel_head(a, name):
    a.raw(f".globl {name}")
    a.raw(".p2align 8")
    a.raw(f".type {name},@function")
    a.lab(name)

def kernel_desc(name, nv, ns=102):
    acc = (nv + 3) // 4 * 4
    return f""".amdhsa_kernel {name}
  .amdhsa_next_free_vgpr {nv}
  .amdhsa_next_free_sgpr {ns}
  .amdhsa_accum_offset {acc}
  .amdhsa_group_segment_fixed_size 0
  .amdhsa_kernarg_size 80
  .amdhsa_user_sgpr_count 2
  .amdhsa_user_sgpr_kernarg_segment_ptr 1
  .amdhsa_system_sgpr_workgroup_id_x 1
  .amdhsa_float_denorm_mode_32 3
  .amdhsa_float_denorm_mode_16_64 3
.end_amdhsa_kernel
"""

PROF = False
OPT = set()
STORE_FLAGS = " sc1"
PROF_OFF = 0x2000000
def optval(name, default):
    for o in OPT:
        if o.startswith(name + "="): return int(o.split("=")[1])
    return default
def stamp(a, i):
    if PROF:
        a(f"s_memtime s[{80+2*i}:{81+2*i}]")
        if i == 0: a("s_memrealtime s[76:77]")
def stamp_flush(a, kidx, n, srdreg, wave_sgpr, vtmp):
    if not PROF: return
    a("s_memrealtime s[98:99]")
    a("s_waitcnt lgkmcnt(0)")
    a(f"s_lshl_b32 s75, s2, 3")
    a(f"s_add_u32 s75, s75, s{wave_sgpr}")
    a(f"s_lshl_b32 s75, s75, 6")
    a(f"s_add_u32 s75, s75, {PROF_OFF + kidx * 0x100000}")
    a("s_mov_b64 exec, 1")
    a(f"v_mov_b32 v{vtmp+1}, 0")
    for i in range(n):
        a(f"v_mov_b32 v{vtmp}, s{80+2*i}")
        a(f"buffer_store_dword v{vtmp}, v{vtmp+1}, s[{srdreg}:{srdreg+3}], s75 offen offset:{4*i}")
    a(f"v_mov_b32 v{vtmp}, s76")
    a(f"buffer_store_dword v{vtmp}, v{vtmp+1}, s[{srdreg}:{srdreg+3}], s75 offen offset:56")
    a(f"v_mov_b32 v{vtmp}, s98")
    a(f"buffer_store_dword v{vtmp}, v{vtmp+1}, s[{srdreg}:{srdreg+3}], s75 offen offset:60")

def srd(a, d, lo, hi, size):
    a(f"s_mov_b32 s{d}, s{lo}")
    a(f"s_and_b32 s{d+1}, s{hi}, 0xffff")
    a(f"s_mov_b32 s{d+2}, {size}")
    a(f"s_mov_b32 s{d+3}, 0x00020000")

K1_XB = 32768
K1_BUF = 32768 + 16384
K1_NBUF = 3
K1_LDS = K1_BUF * K1_NBUF

def gen_k1(a):
    PF0 = optval("pf0", 3)
    name = "k1_qkv_kernel"
    kernel_head(a, name)
    SX = 12; SW = 16; SWS = 20; SG = 24
    sW = 32; sWM = 33; sWN = 34; sI = 35; sRD = 36; sWRB = 37
    sXS = 38; sWS1 = 39; sXM0 = 41; sWM0 = 42; sMT = 43; sNT = 44; sBR = 45
    sTMP = 46; sTMP2 = 47; sTMP3 = 48; sTMP4 = 49
    sSEC = 50; sFB = 51; sEO = 52; sD = 53; sHS = 54; sSC = 56
    vLANE = 1; vXO = 2; vWO = 4
    vXR = 6
    vWR = 10
    vXA = 12
    vWA = 16
    vT = 18
    vXF = 32
    vWF = 64
    vACC = 96
    vEO = 160
    vPF = 176
    NV = 184

    a("s_cmp_ge_u32 s2, 256")
    a("s_cbranch_scc1 K1_END")
    stamp(a, 0)
    if "dbgtime" in OPT:
        a("s_memrealtime s[90:91]")
        a("s_memtime s[88:89]")
    a("s_lshr_b32 s45, s2, 2")
    a("s_and_b32 s45, s45, 1")
    a("s_mul_i32 s46, s45, 24")
    a("s_add_u32 s46, s46, 8")
    a("s_load_dwordx2 s[10:11], s[0:1], s46")
    a("s_load_dwordx2 s[8:9], s[0:1], 0")
    a("s_load_dwordx2 s[4:5], s[0:1], 72")
    a("s_load_dwordx2 s[6:7], s[0:1], 48")
    a(f"v_and_b32 v{vLANE}, 63, v0")
    a(f"v_lshrrev_b32 v{vT}, 6, v0")
    a(f"s_lshr_b32 s{sTMP}, s2, 3")
    a(f"v_readfirstlane_b32 s{sW}, v{vT}")
    a(f"s_and_b32 s{sMT}, s2, 3")
    a(f"s_lshl_b32 s{sMT}, s{sMT}, 1")
    a(f"s_and_b32 s{sTMP2}, s{sTMP}, 1")
    a(f"s_add_u32 s{sMT}, s{sMT}, s{sTMP2}")
    a(f"s_lshr_b32 s{sNT}, s{sTMP}, 1")
    a(f"s_cmp_ge_u32 s{sNT}, 15")
    a("s_cbranch_scc1 K1_GATE")
    a(f"s_and_b32 s{sWM}, s{sW}, 3")
    a(f"s_lshr_b32 s{sWN}, s{sW}, 2")
    a(f"v_lshrrev_b32 v{vT}, 3, v{vLANE}")
    a(f"v_lshrrev_b32 v{vT+1}, 4, v{vLANE}")
    a(f"v_xor_b32 v{vT+1}, v{vT+1}, v{vLANE}")
    a(f"v_and_b32 v{vT+1}, 7, v{vT+1}")
    a(f"s_lshl_b32 s{sTMP}, s{sMT}, 8")
    a(f"s_lshl_b32 s{sTMP2}, s{sW}, 5")
    a(f"s_add_u32 s{sTMP}, s{sTMP}, s{sTMP2}")
    a(f"v_add_u32 v{vT}, s{sTMP}, v{vT}")
    a(f"v_mul_u32_u24 v{vT}, 1280, v{vT}")
    a(f"v_lshl_add_u32 v{vXO}, v{vT+1}, 4, v{vT}")
    a(f"v_xor_b32 v{vXO+1}, 64, v{vXO}")
    a(f"v_lshrrev_b32 v{vT}, 4, v{vLANE}")
    a(f"v_lshlrev_b32 v{vT+1}, 2, v{vT}")
    a(f"v_xor_b32 v{vT+1}, v{vT+1}, v{vLANE}")
    a(f"v_and_b32 v{vT+1}, 15, v{vT+1}")
    a(f"s_lshl_b32 s{sTMP}, s{sW}, 3")
    a(f"v_add_u32 v{vT}, s{sTMP}, v{vT}")
    a(f"v_mul_u32_u24 v{vT}, 3840, v{vT}")
    a(f"v_lshl_add_u32 v{vT}, v{vT+1}, 4, v{vT}")
    a(f"s_lshl_b32 s{sTMP}, s{sNT}, 8")
    a(f"v_add_u32 v{vWO}, s{sTMP}, v{vT}")
    a(f"s_lshl_b32 s{sXM0}, s{sW}, 12")
    a(f"s_lshl_b32 s{sWM0}, s{sW}, 11")
    a(f"s_add_u32 s{sWM0}, s{sWM0}, {K1_XB}")
    a("s_waitcnt lgkmcnt(0)")
    srd(a, SX, 8, 9, 2048 * 1280)
    srd(a, SW, 10, 11, 640 * 3840)

    def dma_list(buf_s, inloop=False):
        g = []
        if "k1nodma" in OPT and inloop: return [["s_nop 0"]] * 6
        for i in range(4):
            g.append([f"s_add_u32 m0, s{buf_s}, s{sXM0}" if i == 0 else f"s_add_u32 m0, m0, 1024",
                      f"s_add_u32 s{sTMP3}, s{sXS}, {i*8*1280}",
                      f"buffer_load_dwordx4 v{vXO + (i & 1)}, s[{SX}:{SX+3}], s{sTMP3} offen lds"])
        for i in range(2):
            g.append([f"s_add_u32 m0, s{buf_s}, s{sWM0}" if i == 0 else f"s_add_u32 m0, m0, 1024",
                      f"s_add_u32 s{sTMP3}, s{sWS1}, {i*4*3840}",
                      f"buffer_load_dwordx4 v{vWO}, s[{SW}:{SW+3}], s{sTMP3} offen lds"])
        g[-1] = g[-1] + [f"s_add_u32 s{sXS}, s{sXS}, 128", f"s_add_u32 s{sWS1}, s{sWS1}, {64*3840}"]
        return g
    a(f"s_mov_b32 s{sXS}, 0")
    a(f"s_mov_b32 s{sWS1}, 0")
    a(f"s_mov_b32 s{sWRB}, 0")
    for g in dma_list(sWRB):
        for x in g: a(x)
    srd(a, SWS, 4, 5, WS_USED)
    a(f"v_and_b32 v{vT}, 31, v{vLANE}")
    a(f"v_lshrrev_b32 v{vT+1}, 5, v{vLANE}")
    a(f"v_bfe_u32 v{vT+2}, v{vLANE}, 1, 3")
    a(f"v_xor_b32 v{vT+2}, v{vT+2}, v{vT+1}")
    a(f"v_lshlrev_b32 v{vT+2}, 4, v{vT+2}")
    a(f"v_lshl_add_u32 v{vXR}, v{vT}, 7, v{vT+2}")
    a(f"s_lshl_b32 s{sTMP}, s{sWM}, 13")
    a(f"v_add_u32 v{vXR}, s{sTMP}, v{vXR}")
    for kk in range(1, 4):
        a(f"v_xor_b32 v{vXR+kk}, {kk << 5}, v{vXR}")
    a(f"v_bfe_u32 v{vT+2}, v{vLANE}, 2, 2")
    a(f"v_lshl_add_u32 v{vT+3}, v{vT+1}, 3, v{vT+2}")
    a(f"v_lshlrev_b32 v{vT+3}, 8, v{vT+3}")
    a(f"v_and_b32 v{vT+4}, 3, v{vLANE}")
    a(f"v_lshl_add_u32 v{vT+3}, v{vT+4}, 3, v{vT+3}")
    a(f"v_bfe_u32 v{vT+4}, v{vLANE}, 4, 1")
    a(f"v_lshl_add_u32 v{vT+3}, v{vT+4}, 5, v{vT+3}")
    a(f"v_add_u32 v{vT+3}, {K1_XB}, v{vT+3}")
    a(f"s_lshl_b32 s{sTMP}, s{sWN}, 1")
    for bl in range(2):
        a(f"s_add_u32 s{sTMP2}, s{sTMP}, {bl}")
        a(f"v_xor_b32 v{vT+5}, s{sTMP2}, v{vT+2}")
        a(f"v_lshl_add_u32 v{vWR+bl}, v{vT+5}, 6, v{vT+3}")
    PF = "k1pf" in OPT
    if PF:
        a(f"s_lshr_b32 s{sTMP}, s2, 3")
        a(f"s_cmp_lt_u32 s{sW}, 6")
        a("s_cbranch_scc0 K1_PFX")
        a(f"s_mul_i32 s{sTMP}, s{sTMP}, 6")
        a(f"s_add_u32 s{sTMP}, s{sTMP}, s{sW}")
        a(f"s_mul_i32 s{sTMP}, s{sTMP}, 11")
        a(f"v_min_u32 v{vT}, 10, v{vLANE}")
        a(f"v_add_u32 v{vT}, s{sTMP}, v{vT}")
        a(f"v_min_u32 v{vT}, 1919, v{vT}")
        a(f"v_mul_u32_u24 v{vT+1}, 34953, v{vT}")
        a(f"v_lshrrev_b32 v{vT+1}, 20, v{vT+1}")
        a(f"v_mul_u32_u24 v{vT+2}, 30, v{vT+1}")
        a(f"v_sub_u32 v{vT+2}, v{vT}, v{vT+2}")
        a(f"v_mul_u32_u24 v{vT+1}, 3840, v{vT+1}")
        a(f"v_lshl_add_u32 v{vPF}, v{vT+2}, 7, v{vT+1}")
        for i in range(4): a(f"s_mov_b32 s{64+i}, s{SW+i}")
        a(f"s_mov_b32 s68, {64*3840}")
        a("s_branch K1_PFD")
        a.lab("K1_PFX")
        a(f"s_lshl_b32 s{sTMP}, s{sTMP}, 1")
        a(f"s_add_u32 s{sTMP}, s{sTMP}, s{sW}")
        a(f"s_sub_u32 s{sTMP}, s{sTMP}, 6")
        a(f"s_mul_i32 s{sTMP}, s{sTMP}, 9")
        a(f"v_min_u32 v{vT}, 8, v{vLANE}")
        a(f"v_add_u32 v{vT}, s{sTMP}, v{vT}")
        a(f"v_min_u32 v{vT}, 511, v{vT}")
        a(f"s_and_b32 s{sTMP}, s2, 3")
        a(f"s_lshl_b32 s{sTMP}, s{sTMP}, 9")
        a(f"v_add_u32 v{vT}, s{sTMP}, v{vT}")
        a(f"v_mul_u32_u24 v{vPF}, 1280, v{vT}")
        for i in range(4): a(f"s_mov_b32 s{64+i}, s{SX+i}")
        a(f"s_mov_b32 s68, 128")
        a.lab("K1_PFD")
        a(f"s_mul_i32 s69, s68, {PF0}")
    def pf_group():
        return [f"buffer_load_dword v{vPF+1}, v{vPF}, s[64:67], s69 offen", f"s_add_u32 s69, s69, s68"]
    a(f"s_mul_i32 s{sSEC}, s{sNT}, 52")
    a(f"s_lshr_b32 s{sSEC}, s{sSEC}, 8")
    a(f"s_mul_i32 s{sTMP}, s{sSEC}, 5")
    a(f"s_sub_u32 s{sFB}, s{sNT}, s{sTMP}")
    a(f"s_lshl_b32 s{sFB}, s{sFB}, 7")
    a(f"s_lshl_b32 s{sTMP}, s{sWN}, 6")
    a(f"s_add_u32 s{sFB}, s{sFB}, s{sTMP}")
    a(f"s_cmp_eq_u32 s{sSEC}, 2")
    a("s_cbranch_scc1 K1_VPREP")
    a(f"s_cmp_eq_u32 s{sSEC}, 0")
    a(f"s_cselect_b32 s{sSC}, {f2u(QSCALE):#x}, 1.0")
    a(f"s_mov_b32 s{sSC+1}, s{sSC}")
    a(f"s_mov_b32 s{sTMP}, {KV_HEAD}")
    a(f"s_cselect_b32 s{sHS}, {Q_HEAD}, s{sTMP}")
    a(f"s_mov_b32 s{sTMP}, {KV_CH}")
    a(f"s_cselect_b32 s{sTMP2}, {Q_CH}, s{sTMP}")
    a(f"s_mul_i32 s{sEO}, s{sMT}, s{sTMP2}")
    a(f"s_mul_i32 s{sTMP2}, s{sBR}, {QB_OFF - QA_OFF}")
    a(f"s_add_u32 s{sTMP2}, s{sTMP2}, {QA_OFF}")
    a(f"s_mul_i32 s{sTMP3}, s{sBR}, {KVB_OFF - KVA_OFF}")
    a(f"s_cmp_eq_u32 s{sSEC}, 0")
    a(f"s_cselect_b32 s{sTMP2}, s{sTMP2}, s{sTMP3}")
    a(f"s_add_u32 s{sEO}, s{sEO}, s{sTMP2}")
    a(f"s_mul_i32 s{sTMP}, s{sWM}, 2560")
    a(f"s_add_u32 s{sEO}, s{sEO}, s{sTMP}")
    a(f"s_lshr_b32 s{sTMP}, s{sFB}, 2")
    a(f"v_lshrrev_b32 v{vT+6}, 5, v{vLANE}")
    a(f"v_add_u32 v{vT+6}, s{sTMP}, v{vT+6}")
    a(f"v_and_b32 v{vT+7}, 31, v{vLANE}")
    a(f"v_lshlrev_b32 v{vT+7}, 3, v{vT+7}")
    a(f"v_mov_b32 v{vT+8}, 0x43120")
    for e in range(8):
        a(f"v_add_u32 v{vT}, {2*e}, v{vT+6}")
        a(f"v_mul_u32_u24 v{vT+1}, 52429, v{vT}")
        a(f"v_lshrrev_b32 v{vT+1}, 18, v{vT+1}")
        a(f"v_mul_u32_u24 v{vT+2}, 5, v{vT+1}")
        a(f"v_sub_u32 v{vT+2}, v{vT}, v{vT+2}")
        a(f"v_lshlrev_b32 v{vT+2}, 2, v{vT+2}")
        a(f"v_bfe_u32 v{vT+2}, v{vT+8}, v{vT+2}, 4")
        a(f"v_lshl_add_u32 v{vT+2}, v{vT+2}, 8, v{vT+7}")
        a(f"v_mad_u32_u24 v{vEO+e}, v{vT+1}, s{sHS}, v{vT+2}")
    a(f"v_and_b32 v{vT}, 1, v{vLANE}")
    a(f"v_cmp_eq_u32 vcc, 0, v{vT}")
    a(f"v_lshlrev_b32 v{vT}, 3, v{vT}")
    a("s_nop 0")
    a("s_mov_b64 s[60:61], vcc")
    for p in range(4):
        a(f"v_cndmask_b32 v{vEO+8+p}, v{vEO+2*p+1}, v{vEO+2*p}, vcc")
        a(f"v_sub_u32 v{vEO+8+p}, v{vEO+8+p}, v{vT}")
    a("s_branch K1_T")
    a.lab("K1_VPREP")
    a(f"s_mul_i32 s{sEO}, s{sMT}, {KV_CH}")
    a(f"s_mul_i32 s{sTMP}, s{sBR}, {KVB_OFF - KVA_OFF}")
    a(f"s_add_u32 s{sEO}, s{sEO}, s{sTMP}")
    a(f"s_mul_i32 s{sTMP}, s{sWM}, {4*640}")
    a(f"s_add_u32 s{sEO}, s{sEO}, s{sTMP}")
    a(f"s_add_u32 s{sEO}, s{sEO}, 10240")
    a(f"s_mov_b32 s{sHS}, {KV_HEAD}")
    for bl in range(2):
        a(f"s_add_u32 s{sTMP}, s{sFB}, {32*bl}")
        a(f"v_and_b32 v{vT}, 31, v{vLANE}")
        a(f"v_add_u32 v{vT}, s{sTMP}, v{vT}")
        a(f"v_mul_u32_u24 v{vT+1}, 52429, v{vT}")
        a(f"v_lshrrev_b32 v{vT+1}, 20, v{vT+1}")
        a(f"v_mul_u32_u24 v{vT+2}, 20, v{vT+1}")
        a(f"v_sub_u32 v{vT+2}, v{vT}, v{vT+2}")
        a(f"v_lshrrev_b32 v{vT+3}, 5, v{vLANE}")
        a(f"v_mul_u32_u24 v{vT+3}, 320, v{vT+3}")
        a(f"v_lshl_add_u32 v{vT+3}, v{vT+2}, 4, v{vT+3}")
        a(f"v_mad_u32_u24 v{vEO+bl}, v{vT+1}, s{sHS}, v{vT+3}")
    a("s_branch K1_C")

    def variant(tag):
        a.lab(f"K1_{tag}")
        def reads(st, ph):
            out = []
            if "k1noread" in OPT: return ["s_nop 0"] * 12
            for q in range(2):
                kk = 2 * ph + q
                for j in range(2):
                    r = vXF + st * 16 + (q * 2 + j) * 4
                    out.append(f"ds_read_b128 v[{r}:{r+3}], v{vXA+kk} offset:{j*4096}")
                    r = vWF + st * 16 + (q * 2 + j) * 4
                    out.append(f"ds_read_b64_tr_b16 v[{r}:{r+1}], v{vWA+j} offset:{kk*4096}")
                    out.append(f"ds_read_b64_tr_b16 v[{r+2}:{r+3}], v{vWA+j} offset:{kk*4096+1024}")
            return out
        def mfmas(st, zero=False):
            out = []
            if "k1nomfma" in OPT: return ["s_nop 0"] * 8
            for q in range(2):
                for bl in range(2):
                    for mb in range(2):
                        acc = vACC + (bl * 2 + mb) * 16
                        xf = f"v[{vXF+st*16+(q*2+mb)*4}:{vXF+st*16+(q*2+mb)*4+3}]"
                        wf = f"v[{vWF+st*16+(q*2+bl)*4}:{vWF+st*16+(q*2+bl)*4+3}]"
                        c = "0" if (zero and q == 0) else f"v[{acc}:{acc+15}]"
                        if tag == "T":
                            out.append(f"v_mfma_f32_32x32x16_bf16 v[{acc}:{acc+15}], {wf}, {xf}, {c}")
                        else:
                            out.append(f"v_mfma_f32_32x32x16_bf16 v[{acc}:{acc+15}], {xf}, {wf}, {c}")
            return out
        def setaddr(sreg):
            return [f"v_add_u32 v{vXA+i}, s{sreg}, v{vXR+i}" for i in range(4)] + [f"v_add_u32 v{vWA+i}, s{sreg}, v{vWR+i}" for i in range(2)]
        def weave(mf, extras, upto=None):
            n = upto or len(mf); m = len(extras)
            k = 0
            for i, x in enumerate(mf):
                a(x)
                tgt = min(m, ((i + 1) * m + n - 1) // n)
                while k < tgt:
                    for y in extras[k]: a(y)
                    k += 1
        def mix(rd, dm, tail):
            ex = []
            nd = len(dm)
            for i, r in enumerate(rd):
                ex.append([r])
                if nd == 3 and i % 4 == 3: ex.append(dm[i // 4])
                if nd == 6 and i % 2 == 1: ex.append(dm[i // 2])
            return ex + tail
        def phaseA(zero, dm):
            ring = [[f"s_add_u32 s{sRD}, s{sRD}, {K1_BUF}", f"s_cmp_eq_u32 s{sRD}, {K1_LDS}", f"s_cselect_b32 s{sRD}, 0, s{sRD}"]]
            mf = mfmas(0, zero)
            weave(mf[:7], mix(reads(1, 1), dm, ring), upto=6)
            return mf[7:]
        a(f"s_mov_b32 s{sWRB}, {K1_BUF}")
        for g in dma_list(sWRB):
            for x in g: a(x)
        a(f"s_mov_b32 s{sWRB}, {2*K1_BUF}")
        NP0 = (5 - PF0) if PF else 0
        for i in range(NP0):
            for x in pf_group(): a(x)
        SL = "slice" in OPT
        def slice_groups():
            pre = [f"s_lshr_b32 s70, s2, 3", f"s_lshl_b32 s70, s70, 2", f"s_and_b32 s71, s2, 3", f"s_add_u32 s70, s70, s71",
                   f"s_lshl_b32 s70, s70, 3", f"s_add_u32 s70, s70, s{sW}", f"s_lshl_b32 s70, s70, 10", f"v_lshlrev_b32 v{vPF}, 4, v{vLANE}"]
            g = []
            for i in range(3):
                g.append([f"s_add_u32 s71, s70, {i*960*1024}",
                          f"buffer_load_dwordx4 v[{vPF+4}:{vPF+7}], v{vPF}, s[{SW}:{SW+3}], s71 offen"])
            g.append([f"s_mul_i32 s71, s{sBR}, {1280*1024}", f"s_add_u32 s71, s71, s70",
                      f"buffer_load_dwordx4 v[{vPF+4}:{vPF+7}], v{vPF}, s[{SX}:{SX+3}], s71 offen"])
            g.append([f"s_add_u32 s71, s71, {960*1024}", f"s_cmp_lt_u32 s70, {320*1024}", f"s_cselect_b32 s71, s71, s70",
                      f"buffer_load_dwordx4 v[{vPF+4}:{vPF+7}], v{vPF}, s[{SX}:{SX+3}], s71 offen"])
            return pre, g
        NP = 1 if PF else 0
        if SL and 'sliceearly' in OPT:
            pre, g = slice_groups()
            for x in pre: a(x)
            for gg in g:
                for x in gg: a(x)
            NP0 += 5
        stamp(a, 2)
        a(f"s_waitcnt vmcnt({6+NP0})")
        a("s_barrier")
        stamp(a, 3)
        a(f"s_mov_b32 s{sRD}, 0")
        for x in setaddr(sRD): a(x)
        for r in reads(0, 0): a(r)
        a(f"s_mov_b32 s{sI}, 0")
        adv = [f"s_add_u32 s{sWRB}, s{sWRB}, {K1_BUF}", f"s_cmp_eq_u32 s{sWRB}, {K1_LDS}", f"s_cselect_b32 s{sWRB}, 0, s{sWRB}"]
        a("s_waitcnt lgkmcnt(0)")
        LATE = SL and 'sliceearly' not in OPT
        if LATE:
            pre, g = slice_groups()
            for x in pre: a(x)
        last = phaseA(True, dma_list(sWRB, True))
        if LATE:
            for gg in g:
                for x in gg: a(x)
        for x in last: a(x)
        a(f"s_waitcnt vmcnt({6+NP0+(5 if LATE else 0)}) lgkmcnt(0)")
        a(f"s_branch K1_{tag}_WB")
        a.lab(f"K1_{tag}_LOOP")
        a("s_waitcnt lgkmcnt(0)")
        a(f"s_cmp_ge_u32 s{sI}, 8")
        a(f"s_cbranch_scc1 K1_{tag}_AND")
        last = phaseA(False, [] if "k1allc" in OPT else dma_list(sWRB, True)[3:])
        for x in last: a(x)
        a.lab(f"K1_{tag}_B")
        if LATE:
            a(f"s_cmp_eq_u32 s{sI}, 1")
            a(f"s_cbranch_scc1 K1_{tag}_B1")
        a(f"s_waitcnt vmcnt({6+NP}) lgkmcnt(0)")
        a.lab(f"K1_{tag}_WB")
        if "k1stamp" in OPT:
            a("s_memtime s[78:79]")
        if "k1nobar" not in OPT: a("s_barrier")
        if "k1stamp" in OPT:
            a("s_memtime s[74:75]")
            a("s_waitcnt lgkmcnt(0)")
            a(f"s_mov_b32 s79, m0")
            a(f"s_mov_b32 m0, s{sI}")
            a("s_nop 0")
            a(f"v_writelane_b32 v179, s74, m0")
            a(f"s_add_u32 m0, m0, 16")
            a("s_nop 0")
            a(f"v_writelane_b32 v179, s78, m0")
            a(f"s_mov_b32 m0, s79")
        mf = mfmas(1)
        a(mf[0])
        for x in setaddr(sRD): a(x)
        for x in adv: a(x)
        rd = reads(0, 0)
        a(f"s_cmp_ge_u32 s{sI}, 7")
        a(f"s_cbranch_scc1 K1_{tag}_ND")
        cnt = [[f"s_add_u32 s{sI}, s{sI}, 1"]]
        weave(mf[1:], mix(rd, dma_list(sWRB, True)[:3], ([pf_group()] if PF else []) + cnt), upto=6)
        a(f"s_branch K1_{tag}_LOOP")
        a.lab(f"K1_{tag}_ND")
        weave(mf[1:], mix(rd, [], cnt), upto=6)
        a(f"s_cmp_lt_u32 s{sI}, 10")
        a(f"s_cbranch_scc1 K1_{tag}_LOOP")
        stamp(a, 4)
        a("s_nop 7")
        a("s_nop 3")
        n = 0
        for bl in range(2):
            for mb in range(2):
                acc = vACC + (bl * 2 + mb) * 16
                if tag == "T" and "t8" in OPT:
                    for i in range(4):
                        q = acc + 4 * i
                        t = vXF + (n % 16) * 2; n += 1
                        a(f"v_pk_mul_f32 v[{q}:{q+1}], v[{q}:{q+1}], s[{sSC}:{sSC+1}]")
                        a(f"v_pk_mul_f32 v[{q+2}:{q+3}], v[{q+2}:{q+3}], s[{sSC}:{sSC+1}]")
                        a(f"v_cvt_pk_bf16_f32 v{t}, v{q}, v{q+1}")
                        a(f"v_cvt_pk_bf16_f32 v{t+1}, v{q+2}, v{q+3}")
                        a(f"buffer_store_dwordx2 v[{t}:{t+1}], v{vEO + 4*bl + i}, s[{SWS}:{SWS+3}], s{sEO} offen offset:{mb*1280}{STORE_FLAGS}")
                elif tag == "T":
                    t = vXF + (n % 4) * 16; n += 1
                    for i in range(4):
                        q = acc + 4 * i
                        a(f"v_pk_mul_f32 v[{q}:{q+1}], v[{q}:{q+1}], s[{sSC}:{sSC+1}]")
                        a(f"v_pk_mul_f32 v[{q+2}:{q+3}], v[{q+2}:{q+3}], s[{sSC}:{sSC+1}]")
                        a(f"v_cvt_pk_bf16_f32 v{t+2*i}, v{q}, v{q+1}")
                        a(f"v_cvt_pk_bf16_f32 v{t+2*i+1}, v{q+2}, v{q+3}")
                    DP = "quad_perm:[1,0,3,2] row_mask:0xf bank_mask:0xf"
                    a("s_mov_b64 vcc, s[60:61]")
                    for pr in range(2):
                        A0 = t + 4 * pr; B0 = A0 + 2; o = t + 8 + 4 * pr
                        a(f"v_cndmask_b32_dpp v{o}, v{B0}, v{A0}, vcc {DP}")
                        a(f"v_cndmask_b32_dpp v{o+1}, v{B0+1}, v{A0+1}, vcc {DP}")
                    a("s_not_b64 vcc, vcc")
                    for pr in range(2):
                        A0 = t + 4 * pr; B0 = A0 + 2; o = t + 8 + 4 * pr
                        a(f"v_cndmask_b32_dpp v{o+2}, v{A0}, v{B0}, vcc {DP}")
                        a(f"v_cndmask_b32_dpp v{o+3}, v{A0+1}, v{B0+1}, vcc {DP}")
                    for pr in range(2):
                        o = t + 8 + 4 * pr
                        a(f"buffer_store_dwordx4 v[{o}:{o+3}], v{vEO + 8 + 2*bl + pr}, s[{SWS}:{SWS+3}], s{sEO} offen offset:{mb*1280}{STORE_FLAGS}")
                else:
                    for g2 in range(2):
                        q = acc + 8 * g2
                        t = vXF + (n % 8) * 4; n += 1
                        for i in range(4):
                            a(f"v_cvt_pk_bf16_f32 v{t+i}, v{q+2*i}, v{q+2*i+1}")
                        a(f"buffer_store_dwordx4 v[{t}:{t+3}], v{vEO+bl}, s[{SWS}:{SWS+3}], s{sEO} offen offset:{(2*mb+g2)*640}{STORE_FLAGS}")
        a("s_branch K1_FIN")
        if LATE:
            a.lab(f"K1_{tag}_B1")
            a(f"s_waitcnt vmcnt({6+NP+5}) lgkmcnt(0)")
            a(f"s_branch K1_{tag}_WB")
        a.lab(f"K1_{tag}_AND")
        last = phaseA(False, [])
        for x in last: a(x)
        a("s_waitcnt vmcnt(0) lgkmcnt(0)")
        a(f"s_branch K1_{tag}_WB")
    variant("T")
    variant("C")

    GPF0 = optval("gpf0", 3)
    a.lab("K1_GATE")
    a("s_waitcnt lgkmcnt(0)")
    srd(a, SX, 8, 9, 2048 * 1280)
    srd(a, SG, 6, 7, 1280)
    srd(a, SWS, 4, 5, WS_USED)
    if "gmall" in OPT:
        a("s_load_dwordx2 s[58:59], s[0:1], 8")
        a("s_load_dwordx2 s[70:71], s[0:1], 32")
        a(f"s_sub_u32 s{sTMP}, s2, 240")
        a(f"s_lshl_b32 s{sTMP}, s{sTMP}, 3")
        a(f"s_add_u32 s{sTMP}, s{sTMP}, s{sW}")
        a(f"v_lshlrev_b32 v{vT+1}, 4, v{vLANE}")
        a(f"v_lshrrev_b32 v{vT+2}, 3, v{vLANE}")
        a(f"s_lshl_b32 s{sTMP2}, s{sTMP}, 4")
        a(f"v_add_u32 v{vT+2}, s{sTMP2}, v{vT+2}")
        a(f"v_mul_u32_u24 v{vT+2}, 1280, v{vT+2}")
        a(f"v_and_b32 v{vT+3}, 7, v{vLANE}")
        a(f"v_lshl_add_u32 v{vT+2}, v{vT+3}, 4, v{vT+2}")
        a("s_waitcnt lgkmcnt(0)")
        srd(a, 60, 58, 59, 640 * 3840)
        srd(a, 64, 70, 71, 640 * 3840)
        a(f"s_lshl_b32 s72, s{sTMP}, 10")
        a(f"s_add_u32 s73, s72, {128*1024}")
        a(f"s_cmp_ge_u32 s{sTMP}, 112")
        a(f"s_cselect_b32 s73, s72, s73")
        a(f"s_mov_b32 s74, 0")
        for st in range(optval("mall0", 1), 10):
            wo = st * 64 * 3840
            a(f"s_add_u32 s76, s72, {wo}")
            a(f"buffer_load_dwordx4 v[{vXF}:{vXF+3}], v{vT+1}, s[60:63], s76 offen")
            a(f"buffer_load_dwordx4 v[{vXF+4}:{vXF+7}], v{vT+1}, s[64:67], s76 offen")
            a(f"s_add_u32 s76, s73, {wo}")
            a(f"buffer_load_dwordx4 v[{vXF+8}:{vXF+11}], v{vT+1}, s[60:63], s76 offen")
            a(f"buffer_load_dwordx4 v[{vXF+12}:{vXF+15}], v{vT+1}, s[64:67], s76 offen")
            a(f"s_mov_b32 s76, {st*128}")
            a(f"buffer_load_dwordx4 v[{vXF+16}:{vXF+19}], v{vT+2}, s[{SX}:{SX+3}], s76 offen")
            a(f"buffer_load_dwordx4 v[{vXF+20}:{vXF+23}], v{vT+2}, s[{SX}:{SX+3}], s76 offen offset:0" if False else
              f"s_add_u32 s76, s76, {8*1280}")
            a(f"buffer_load_dwordx4 v[{vXF+20}:{vXF+23}], v{vT+2}, s[{SX}:{SX+3}], s76 offen")
            a("s_waitcnt vmcnt(36)")
        a("s_waitcnt vmcnt(0)")
    TS = optval("tlbin", 0)
    if TS:
        srd(a, SW, 10, 11, 640 * 3840)
        sh = {4: 12, 16: 14, 64: 16}[TS]
        a(f"s_lshr_b32 s{sTMP}, s2, 3")
        a(f"s_and_b32 s{sTMP}, s{sTMP}, 1")
        a(f"s_lshl_b32 s{sTMP}, s{sTMP}, 3")
        a(f"s_add_u32 s{sTMP}, s{sTMP}, s{sW}")
        a(f"s_lshl_b32 s{sTMP}, s{sTMP}, 6")
        a(f"v_add_u32 v{vT+1}, s{sTMP}, v{vLANE}")
        a(f"v_lshlrev_b32 v{vT+1}, {sh}, v{vT+1}")
        n = max(1, -(-2621440 // ((1024) << sh)))
        for i in range(n):
            a(f"s_mov_b32 s{sTMP2}, {i * (1024 << sh)}")
            a(f"buffer_load_dword v{vPF}, v{vT+1}, s[{SW}:{SW+3}], s{sTMP2} offen")
            a(f"buffer_load_dword v{vPF+1}, v{vT+1}, s[{SX}:{SX+3}], s{sTMP2} offen")
    if "gpf" in OPT:
        srd(a, SW, 10, 11, 640 * 3840)
        a(f"s_lshr_b32 s{sTMP}, s2, 3")
        a(f"s_and_b32 s{sTMP}, s{sTMP}, 1")
        a(f"v_cmp_le_u32 vcc, 30, v{vLANE}")
        a(f"v_mov_b32 v{vT+1}, 0")
        a(f"v_mov_b32 v{vT+2}, {3840 - 30*128}")
        a(f"v_cndmask_b32 v{vT+1}, v{vT+1}, v{vT+2}, vcc")
        a(f"v_min_u32 v{vT+2}, 59, v{vLANE}")
        a(f"v_lshl_add_u32 v{vT+1}, v{vT+2}, 7, v{vT+1}")
        a(f"s_lshl_b32 s{sTMP2}, s{sTMP}, 5")
        a(f"s_lshl_b32 s{sTMP3}, s{sW}, 2")
        a(f"s_add_u32 s{sTMP2}, s{sTMP2}, s{sTMP3}")
        a(f"s_add_u32 s{sTMP2}, s{sTMP2}, {64*GPF0}")
        a(f"s_mul_i32 s{sTMP2}, s{sTMP2}, 3840")
        a(f"s_and_b32 s{sTMP3}, s2, 3")
        a(f"s_lshl_b32 s{sTMP3}, s{sTMP3}, 9")
        a(f"s_lshl_b32 s{sTMP}, s{sTMP}, 8")
        a(f"s_add_u32 s{sTMP3}, s{sTMP3}, s{sTMP}")
        a(f"s_and_b32 s{sTMP}, s{sW}, 3")
        a(f"s_lshl_b32 s{sTMP}, s{sTMP}, 6")
        a(f"s_add_u32 s{sTMP3}, s{sTMP3}, s{sTMP}")
        a(f"v_add_u32 v{vT+2}, s{sTMP3}, v{vLANE}")
        a(f"v_mul_u32_u24 v{vT+2}, 1280, v{vT+2}")
        a(f"s_mov_b32 s{sTMP3}, {128*GPF0}")
        for st in range(GPF0, 10):
            a(f"buffer_load_dword v{vPF}, v{vT+1}, s[{SW}:{SW+3}], s{sTMP2} offen")
            a(f"s_add_u32 s{sTMP}, s{sTMP2}, {2*3840}")
            a(f"buffer_load_dword v{vPF+1}, v{vT+1}, s[{SW}:{SW+3}], s{sTMP} offen")
            a(f"buffer_load_dword v{vPF+2}, v{vT+2}, s[{SX}:{SX+3}], s{sTMP3} offen")
            a(f"s_add_u32 s{sTMP2}, s{sTMP2}, {64*3840}")
            a(f"s_add_u32 s{sTMP3}, s{sTMP3}, 128")
    if "notlb" not in OPT:
        a(f"v_lshlrev_b32 v{vT+1}, 16, v{vLANE}")
        a(f"s_lshl_b32 s{sTMP}, s{sW}, 22")
        a(f"s_cmp_lt_u32 s{sW}, 6")
        a(f"s_cbranch_scc0 K1_NOTLB")
        a(f"buffer_load_dword v{vPF}, v{vT+1}, s[{SWS}:{SWS+3}], s{sTMP} offen")
        a.lab("K1_NOTLB")
    if "nocodepf" not in OPT:
        a(f"s_getpc_b64 s[78:79]")
        a.lab("K1_PC")
        a(f"s_add_u32 s78, s78, k2_attn_kernel-K1_PC")
        a(f"s_addc_u32 s79, s79, 0")
        a(f"v_lshlrev_b32 v{vT+1}, 7, v{vLANE}")
        a(f"s_lshl_b32 s{sTMP}, s{sW}, 13")
        a(f"v_add_u32 v{vT+1}, s{sTMP}, v{vT+1}")
        a(f"s_cmp_ge_u32 s{sW}, K2CODE_WAVES")
        a("s_cbranch_scc1 K1_NOCPF")
        a(f"global_load_dword v{vPF+2}, v{vT+1}, s[78:79]")
        a.lab("K1_NOCPF")
    a(f"s_cmp_lg_u32 s2, 240")
    a("s_cbranch_scc1 K1_NOZ")
    a(f"s_cmp_ge_u32 s{sW}, 4")
    a("s_cbranch_scc1 K1_NOZ")
    a(f"v_lshlrev_b32 v{vT+1}, 7, v{vLANE}")
    a(f"v_mov_b32 v{vT+2}, 0")
    a(f"s_lshl_b32 s{sTMP}, s{sW}, 13")
    a(f"s_add_u32 s{sTMP}, s{sTMP}, {FL_OFF}")
    a(f"buffer_store_dword v{vT+2}, v{vT+1}, s[{SWS}:{SWS+3}], s{sTMP} offen")
    a.lab("K1_NOZ")
    a(f"s_sub_u32 s{sTMP}, s2, 240")
    a(f"s_lshl_b32 s{sTMP}, s{sTMP}, 3")
    a(f"s_add_u32 s{sTMP}, s{sTMP}, s{sW}")
    a(f"s_cmp_ge_u32 s{sTMP}, 120")
    a("s_cbranch_scc1 K1_GATE2")
    a(f"s_mul_i32 s{sTMP2}, s{sTMP}, 171")
    a(f"s_lshr_b32 s{sTMP2}, s{sTMP2}, 9")
    a(f"s_mul_i32 s{sTMP3}, s{sTMP2}, 3")
    a(f"s_sub_u32 s{sTMP3}, s{sTMP}, s{sTMP3}")
    a("s_load_dwordx2 s[58:59], s[0:1], 16")
    a("s_load_dwordx2 s[70:71], s[0:1], 40")
    a(f"s_mul_i32 s{sD}, s{sTMP3}, 448")
    a(f"v_lshrrev_b32 v{vT+1}, 5, v{vLANE}")
    a(f"v_mul_u32_u24 v{vT+1}, 1280, v{vT+1}")
    a(f"v_and_b32 v{vT+2}, 31, v{vLANE}")
    a(f"v_lshl_add_u32 v{vT+1}, v{vT+2}, 4, v{vT+1}")
    a(f"v_add_u32 v{vT+1}, s{sD}, v{vT+1}")
    a(f"s_lshl_b32 s{sEO}, s{sW}, 14")
    a("s_waitcnt lgkmcnt(0)")
    srd(a, 60, 58, 59, 640 * 1280)
    srd(a, 64, 70, 71, 640 * 1280)
    for g in range(4):
        a(f"s_lshl_b32 s72, s{sTMP2}, 2")
        a(f"s_add_u32 s72, s72, {g}")
        a(f"s_mul_i32 s73, s72, 205")
        a(f"s_lshr_b32 s73, s73, 10")
        a(f"s_mul_i32 s74, s73, 5")
        a(f"s_sub_u32 s74, s72, s74")
        a(f"s_mul_i32 s73, s73, 20")
        for quad in range(2):
            a(f"s_and_b32 s76, s74, 1")
            a(f"s_lshl_b32 s76, s76, 3")
            a(f"s_add_u32 s76, s76, {4*quad}")
            a(f"s_lshr_b32 s77, s74, 1")
            a(f"s_cmp_eq_u32 s74, 4")
            a(f"s_cselect_b32 s76, 16, s76")
            a(f"s_cselect_b32 s77, {quad}, s77")
            a(f"s_add_u32 s76, s76, s73")
            a(f"s_mul_i32 s76, s76, 1280")
            a(f"s_cmp_eq_u32 s77, 0")
            a(f"s_cbranch_scc0 K1_WB{g}{quad}")
            for r2 in range(2):
                a(f"s_add_u32 m0, s{sEO}, {(g*4 + quad*2 + r2)*1024}")
                a(f"s_add_u32 s{sD}, s76, {r2*2*1280}")
                a(f"buffer_load_dwordx4 v{vT+1}, s[60:63], s{sD} offen lds")
            a(f"s_branch K1_WD{g}{quad}")
            a.lab(f"K1_WB{g}{quad}")
            for r2 in range(2):
                a(f"s_add_u32 m0, s{sEO}, {(g*4 + quad*2 + r2)*1024}")
                a(f"s_add_u32 s{sD}, s76, {r2*2*1280}")
                a(f"buffer_load_dwordx4 v{vT+1}, s[64:67], s{sD} offen lds")
            a.lab(f"K1_WD{g}{quad}")
    a(f"v_lshrrev_b32 v{vT+2}, 4, v{vLANE}")
    a(f"v_bfe_u32 v{vT+3}, v{vLANE}, 2, 2")
    a(f"v_lshl_add_u32 v{vT+2}, v{vT+2}, 3, v{vT+3}")
    a(f"v_lshlrev_b32 v{vT+2}, 9, v{vT+2}")
    a(f"v_and_b32 v{vT+3}, 3, v{vLANE}")
    a(f"v_lshl_add_u32 v{vT+2}, v{vT+3}, 3, v{vT+2}")
    a(f"v_add_u32 v{vT+2}, s{sEO}, v{vT+2}")
    a(f"v_lshlrev_b32 v{vT+3}, 4, v{vLANE}")
    a("s_waitcnt vmcnt(0)")
    for j in range(14):
        a(f"ds_read_b64_tr_b16 v[{vXF+4*j}:{vXF+4*j+1}], v{vT+2} offset:{j*32}")
        a(f"ds_read_b64_tr_b16 v[{vXF+4*j+2}:{vXF+4*j+3}], v{vT+2} offset:{j*32+2048}")
    a(f"s_mul_i32 s{sTMP3}, s{sTMP3}, 14")
    a("s_waitcnt lgkmcnt(0)")
    for j in range(14):
        a(f"s_add_u32 s{sTMP4}, s{sTMP3}, {j}")
        a(f"s_cmp_ge_u32 s{sTMP4}, 40")
        a("s_cbranch_scc1 K1_GATE2")
        a(f"s_mul_i32 s{sD}, s{sTMP4}, 52")
        a(f"s_lshr_b32 s{sD}, s{sD}, 8")
        a(f"s_mul_i32 s{sEO}, s{sD}, 5")
        a(f"s_sub_u32 s{sEO}, s{sTMP4}, s{sEO}")
        a(f"s_mul_i32 s{sD}, s{sD}, 40")
        a(f"s_add_u32 s{sD}, s{sD}, s{sTMP2}")
        a(f"s_mul_i32 s{sD}, s{sD}, 5")
        a(f"s_add_u32 s{sD}, s{sD}, s{sEO}")
        a(f"s_lshl_b32 s{sD}, s{sD}, 10")
        a(f"s_add_u32 s{sD}, s{sD}, {WT_OFF}")
        a(f"buffer_store_dwordx4 v[{vXF+4*j}:{vXF+4*j+3}], v{vT+3}, s[{SWS}:{SWS+3}], s{sD} offen")
    a.lab("K1_GATE2")
    a("s_nop 1")
    a(f"s_sub_u32 s{sTMP}, s2, 240")
    a(f"s_lshl_b32 s{sTMP}, s{sTMP}, 7")
    a(f"s_lshl_b32 s{sTMP2}, s{sW}, 4")
    a(f"s_add_u32 s{sI}, s{sTMP}, s{sTMP2}")
    a(f"v_lshlrev_b32 v{vT}, 2, v{vLANE}")
    for j in range(5):
        a(f"buffer_load_dword v{vT+7+j}, v{vT}, s[{SG}:{SG+3}], 0 offen offset:{j*256}")
    a(f"s_mul_i32 s{sTMP4}, s{sI}, 1280")
    for r in range(16):
        for j in range(5):
            a(f"buffer_load_dword v{vXF+r*5+j}, v{vT}, s[{SX}:{SX+3}], s{sTMP4} offen offset:{j*256}")
        a(f"s_add_u32 s{sTMP4}, s{sTMP4}, 1280")
        if r == 9: a("s_waitcnt vmcnt(20)")
    a("s_waitcnt vmcnt(0)")
    gw = vT + 7
    for j in range(5):
        a(f"v_lshlrev_b32 v{vT+2+j}, 16, v{gw+j}")
        a(f"v_and_b32 v{gw+j}, 0xffff0000, v{gw+j}")
    vG = 112
    for r in range(16):
        a(f"v_mov_b32 v{vG+r}, 0")
        for j in range(5):
            x = vXF + r * 5 + j
            a(f"v_lshlrev_b32 v{vT}, 16, v{x}")
            a(f"v_and_b32 v{x}, 0xffff0000, v{x}")
            a(f"v_fmac_f32 v{vG+r}, v{vT}, v{vT+2+j}")
            a(f"v_fmac_f32 v{vG+r}, v{x}, v{gw+j}")
    for rr in (8, 4, 2, 1):
        a("s_nop 1")
        for r in range(16):
            a(f"v_add_f32_dpp v{vG+r}, v{vG+r}, v{vG+r} row_ror:{rr} row_mask:0xf bank_mask:0xf")
    for r in range(16):
        a(f"v_mov_b32 v{vG+16+r}, v{vG+r}")
    a("s_nop 1")
    for r in range(16):
        a(f"v_permlane32_swap_b32 v{vG+r}, v{vG+16+r}")
    a("s_nop 1")
    for r in range(16):
        a(f"v_add_f32 v{vG+r}, v{vG+r}, v{vG+16+r}")
        a(f"v_mov_b32 v{vG+16+r}, v{vG+r}")
    a("s_nop 1")
    for r in range(16):
        a(f"v_permlane16_swap_b32 v{vG+r}, v{vG+16+r}")
    a("s_nop 1")
    for r in range(16):
        a(f"v_add_f32 v{vG+r}, v{vG+r}, v{vG+16+r}")
    a(f"v_and_b32 v{vT}, 15, v{vLANE}")
    a(f"v_mov_b32 v{vT+1}, v{vG}")
    for r in range(1, 16):
        a(f"v_cmp_eq_u32 vcc, {r}, v{vT}")
        a("s_nop 1")
        a(f"v_cndmask_b32 v{vT+1}, v{vT+1}, v{vG+r}, vcc")
    a(f"v_mul_f32 v{vT+1}, {f2u(-1.4426950408889634):#x}, v{vT+1}")
    a(f"v_exp_f32 v{vT+1}, v{vT+1}")
    a("s_nop 0")
    a(f"v_add_f32 v{vT+1}, 1.0, v{vT+1}")
    a(f"v_rcp_f32 v{vT+1}, v{vT+1}")
    a(f"s_lshl_b32 s{sTMP}, s{sI}, 2")
    a(f"s_add_u32 s{sTMP}, s{sTMP}, {G_OFF}")
    a(f"v_lshlrev_b32 v{vT}, 2, v{vT}")
    a("s_mov_b64 exec, 0xffff")
    a(f"buffer_store_dword v{vT+1}, v{vT}, s[{SWS}:{SWS+3}], s{sTMP} offen")
    if PROF:
        a("s_mov_b64 exec, -1")
        a("s_waitcnt vmcnt(0)")
        for i in range(1, 7): stamp(a, i)
        stamp_flush(a, 0, 7, SWS, sW, vT)
    a("s_branch K1_END")
    a.lab("K1_FIN")
    if "dbgtime" in OPT:
        a("s_cmp_lg_u32 s2, 1")
        a("s_cbranch_scc1 K1_DBGX")
        a("s_cmp_lg_u32 s32, 0")
        a("s_cbranch_scc1 K1_DBGX")
        a("s_load_dwordx2 s[92:93], s[0:1], 64")
        a("s_waitcnt vmcnt(0)")
        a("s_memrealtime s[94:95]")
        a("s_memtime s[96:97]")
        a("s_waitcnt lgkmcnt(0)")
        srd(a, 84, 92, 93, 256)
        a("s_sub_u32 s96, s96, s88")
        a("s_sub_u32 s94, s94, s90")
        a("s_mov_b64 exec, 1")
        a("v_mov_b32 v24, 0")
        a("v_mov_b32 v20, 111")
        a("v_mov_b32 v21, s96")
        a("v_mov_b32 v22, s94")
        a("v_mov_b32 v23, s90")
        a("buffer_store_dwordx4 v[20:23], v24, s[84:87], 0 offen")
        a("s_mov_b64 exec, -1")
        a.lab("K1_DBGX")
    if "k1stamp" in OPT:
        a(f"s_lshl_b32 s97, s2, 3")
        a(f"s_add_u32 s97, s97, s{sW}")
        a(f"s_lshl_b32 s97, s97, 7")
        a(f"s_add_u32 s97, s97, {PROF_OFF + 3 * 0x100000}")
        a(f"v_lshlrev_b32 v{vT}, 2, v{vLANE}")
        a("s_mov_b64 exec, 0xffffffff")
        a(f"buffer_store_dword v179, v{vT}, s[{SWS}:{SWS+3}], s97 offen")
        a("s_mov_b64 exec, -1")
    stamp(a, 5)
    if PROF: a("s_waitcnt vmcnt(0)")
    stamp(a, 6)
    stamp_flush(a, 0, 7, SWS, sW, vT)
    a.lab("K1_END")
    a("s_endpgm")
    return name, NV

K2_LDS = 163840
NEGBIG = -1.0e30

def mask_table():
    vals = []
    for j in range(6):
        for l in range(64):
            c = l & 31; h = l >> 5
            for i in range(4):
                if j < 4:
                    r = j * 4 + i
                    row = (r & 3) + 8 * (r >> 2) + 4 * h
                    diff = c + 16 - row
                else:
                    r = (j - 4) * 4 + i
                    row = (r & 3) + 8 * (r >> 2) + 4 * h
                    diff = c - 16 - row
                ok = 0 <= diff <= 14 and diff % 2 == 0
                vals.append(0 if ok else f2u(NEGBIG))
    return vals

K2_PRIO_TILE = 5
def gen_k2(a):
    FUSE = "nofuse" not in OPT
    name = "k2_attn_kernel"
    kernel_head(a, name)
    SWS = 8
    sW = 12; sHEAD = 13; sQB = 14; sS0 = 15; sT0 = 16; sT1 = 17; sT2 = 18; sT3 = 19
    sC = 20; sPASS = 21; sVM = 22
    sLO = 24
    sGRP = 26; sPR = 27
    sDS = 28; sDG = 29
    sAV = 30
    sQA = 33; sGO = 35
    sDO = 44
    sWL = 49; sWS = 58; sWS0 = 59; sWC = 66; sFAIL = 67
    vLANE = 1; vL16 = 2; vK8 = 3; vVA = 4; vKe = 5; vKo = 6; vK4c = 7
    vT = 8
    vGATE = 16; vVc = 17
    vAKO = 18
    vPFA = 22; vQO = 23
    vQ16 = [24, 28]; vQ8 = [32, 34]
    vQA16 = 36; vQA8 = 40
    vKA = 44; vKB = 52; vV1 = 56; vV2 = 64; vP = 72
    S = [84, 100]; NEG = [116, 132]; O = [148, 164]
    vAK = 180; vAV = 192; vMX = 204; vMY = 220
    vOB = 236; vDUM = 244; vOSA = 245
    NV = 248
    ONES = 0x3f803f80
    vS0, vS1 = S

    a("s_cmp_ge_u32 s2, 256")
    a("s_cbranch_scc1 K2_END")
    stamp(a, 0)
    if "dbgtime" in OPT:
        a("s_memrealtime s[90:91]")
        a("s_memtime s[88:89]")
    a("s_load_dwordx2 s[4:5], s[0:1], 72")
    if FUSE:
        a("s_load_dwordx2 s[60:61], s[0:1], 56")
    a(f"v_and_b32 v{vLANE}, 63, v0")
    a(f"v_lshrrev_b32 v{vT}, 6, v0")
    a(f"s_and_b32 s{sHEAD}, s2, 7")
    a(f"v_readfirstlane_b32 s{sW}, v{vT}")
    a(f"s_lshl_b32 s{sHEAD}, s{sHEAD}, 2")
    a(f"s_lshr_b32 s{sT0}, s2, 6")
    a(f"s_add_u32 s{sHEAD}, s{sHEAD}, s{sT0}")
    a(f"s_lshr_b32 s{sQB}, s2, 3")
    a(f"s_and_b32 s{sQB}, s{sQB}, 7")
    a(f"v_lshlrev_b32 v{vL16}, 4, v{vLANE}")
    a(f"v_and_b32 v{vT}, 31, v{vLANE}")
    a(f"v_lshlrev_b32 v{vK8}, 3, v{vT}")
    a(f"v_lshrrev_b32 v{vT+1}, 5, v{vLANE}")
    a(f"v_lshl_add_u32 v{vQO}, v{vT+1}, 8, v{vK8}")
    a(f"s_lshr_b32 s{sGRP}, s{sW}, 2")
    a(f"s_and_b32 s{sPR}, s{sW}, 3")
    a(f"s_mul_i32 s{sDS}, s{sHEAD}, {KV_HEAD}")
    a(f"s_add_u32 s{sDS}, s{sDS}, {KVB_OFF}")
    for j in range(5):
        a(f"s_add_u32 s{sT0}, s{sW}, {8*j}")
        a(f"s_lshl_b32 s{sDO+j}, s{sT0}, 10")
        a(f"s_cmp_ge_u32 s{sT0}, 20")
        a(f"s_cselect_b32 s{sT1}, {4*KV_CH - 20*1024}, 0")
        a(f"s_add_u32 s{sDO+j}, s{sDO+j}, s{sT1}")
    a(f"s_mul_i32 s{sQA}, s{sHEAD}, {Q_HEAD}")
    a(f"s_lshl_b32 s{sT1}, s{sQB}, 3")
    a(f"s_lshl_b32 s{sT2}, s{sPR}, 1")
    a(f"s_add_u32 s{sT1}, s{sT1}, s{sT2}")
    a(f"s_mul_i32 s{sT1}, s{sT1}, 1280")
    a(f"s_add_u32 s{sQA}, s{sQA}, s{sT1}")
    a(f"s_add_u32 s{sT0}, s{sQA}, {QB_OFF}")
    a(f"s_mov_b32 s{sDG}, 0")
    a("s_waitcnt lgkmcnt(0)")
    srd(a, SWS, 4, 5, WS_USED)
    def dma1(j):
        return [f"s_add_u32 m0, s{sDO+j}, s{sDG}",
                f"s_add_u32 s{sT3}, m0, s{sDS}",
                f"buffer_load_dwordx4 v{vL16}, s[{SWS}:{SWS+3}], s{sT3} offen lds"]
    def qloads(q16, q8, sreg, off):
        return [f"buffer_load_dwordx2 v[{q16}:{q16+1}], v{vQO}, s[{SWS}:{SWS+3}], s{sreg} offen offset:{off}",
                f"buffer_load_dwordx2 v[{q16+2}:{q16+3}], v{vQO}, s[{SWS}:{SWS+3}], s{sreg} offen offset:{off+512}",
                f"buffer_load_dwordx2 v[{q8}:{q8+1}], v{vK8}, s[{SWS}:{SWS+3}], s{sreg} offen offset:{off+1024}"]
    for j in range(5):
        for x in dma1(j): a(x)
    for sg in range(2):
        for x in qloads(vQ16[sg], vQ8[sg], sT0, sg * 1280): a(x)
    a(f"s_add_u32 s{sDG}, s{sDG}, {KV_CH}")
    stamp(a, 1)
    a(f"s_mov_b32 s{sVM}, 0x000fffff")
    a(f"s_mov_b32 s{sVM+1}, 0x000fffff")
    a(f"s_mov_b32 s{sLO}, -1")
    a(f"s_mov_b32 s{sLO+1}, 0")
    a(f"v_and_b32 v{vT}, 31, v{vLANE}")
    a(f"v_lshrrev_b32 v{vT+1}, 5, v{vLANE}")
    a(f"v_mul_u32_u24 v{vVA}, 20, v{vT+1}")
    a(f"v_add_u32 v{vVA}, v{vVA}, v{vT}")
    a(f"v_lshlrev_b32 v{vVA}, 4, v{vVA}")
    for sg in range(2):
        for i in range(0, 16, 2):
            a(f"v_mov_b64 v[{O[sg]+i}:{O[sg]+i+1}], 0")
    a(f"v_mov_b64 v[{vP+4}:{vP+5}], 0")
    a(f"v_mov_b64 v[{vP+6}:{vP+7}], 0")
    a(f"s_lshl_b32 s{sS0}, s{sQB}, 8")
    a(f"s_lshl_b32 s{sT0}, s{sPR}, 6")
    a(f"s_add_u32 s{sS0}, s{sS0}, s{sT0}")
    a(f"s_lshl_b32 s{sT0}, s{sGRP}, 5")
    a(f"s_add_u32 s{sS0}, s{sS0}, s{sT0}")
    a(f"s_mul_i32 s{sT0}, s{sGRP}, 1280")
    a(f"s_add_u32 s{sQA}, s{sQA}, s{sT0}")
    a(f"s_add_u32 s{sQA}, s{sQA}, {QA_OFF}")
    a(f"s_lshl_b32 s{sT0}, s{sHEAD}, 6")
    a(f"s_lshr_b32 s{sT1}, s{sS0}, 5")
    a(f"s_add_u32 s{sT0}, s{sT0}, s{sT1}")
    for k, dT in enumerate((-1, 0, 1)):
        a(f"s_add_i32 s{sT1}, s{sT0}, {dT}")
        a(f"s_ashr_i32 s{sT2}, s{sT1}, 3")
        a(f"s_mul_i32 s{sT2}, s{sT2}, {KV_CH}")
        a(f"s_and_b32 s{sT1}, s{sT1}, 7")
        a(f"s_mul_i32 s{sT1}, s{sT1}, 1280")
        a(f"s_add_u32 s{50+k}, s{sT1}, s{sT2}")
    a(f"s_add_u32 s50, s50, 128")
    a(f"s_sub_u32 s53, s51, 128")
    a(f"s_add_u32 s51, s51, 128")
    a(f"s_sub_u32 s52, s52, 128")
    a(f"s_mov_b32 s54, 0xffff")
    a(f"s_mov_b32 s55, 0xffff")
    a(f"v_add_u32 v{vAKO+1}, s53, v{vK8}")
    a(f"v_add_u32 v{vAKO+3}, s52, v{vK8}")
    a(f"s_mov_b64 exec, s[54:55]")
    a(f"v_add_u32 v{vAKO+1}, s50, v{vK8}")
    a(f"v_add_u32 v{vAKO+3}, s51, v{vK8}")
    a("s_mov_b64 exec, -1")
    a(f"v_sub_u32 v{vT+7}, v{vQO}, v{vK8}")
    a(f"v_add_u32 v{vAKO}, v{vAKO+1}, v{vT+7}")
    a(f"v_add_u32 v{vAKO+2}, v{vAKO+3}, v{vT+7}")
    a(f"s_lshl_b32 s{sT0}, s{sHEAD}, 7")
    a(f"s_lshr_b32 s{sT1}, s{sS0}, 4")
    a(f"s_add_u32 s{sT0}, s{sT0}, s{sT1}")
    for j in range(3):
        a(f"s_add_i32 s{sT1}, s{sT0}, {j-1}")
        a(f"s_max_i32 s{sT1}, s{sT1}, 0")
        a(f"s_lshr_b32 s{sT2}, s{sT1}, 4")
        a(f"s_mul_i32 s{sT2}, s{sT2}, {KV_CH}")
        a(f"s_and_b32 s{sT1}, s{sT1}, 15")
        a(f"s_mul_i32 s{sT1}, s{sT1}, 640")
        a(f"s_add_u32 s{sT1}, s{sT1}, s{sT2}")
        a(f"s_add_u32 s{sAV+j}, s{sT1}, 10240")
    a(f"s_lshl_b32 s{sGO}, s{sS0}, 2")
    a(f"s_add_u32 s{sGO}, s{sGO}, {G_OFF}")
    a(f"v_mov_b32 v{vT+2}, 0")
    a(f"v_mov_b32 v{vT+3}, {ONES:#x}")
    if "vones" in OPT:
        a(f"v_mov_b32 v{vT+2}, {ONES:#x}")
    else:
        a(f"v_and_b32 v{vT+4}, 27, v{vT}")
        a.l.pop()
        a(f"v_cmp_eq_u32 vcc, 20, v{vT}")
        a(f"v_cmp_eq_u32 s[38:39], 24, v{vT}")
        a("s_nop 1")
        a("s_or_b64 vcc, vcc, s[38:39]")
        a("s_nop 1")
        a(f"v_cndmask_b32 v{vT+2}, v{vT+2}, v{vT+3}, vcc")
    a(f"v_mov_b32 v{vT+3}, v{vT+2}")
    for i in range(0, 12, 2):
        a(f"v_mov_b64 v[{vAV+i}:{vAV+i+1}], v[{vT+2}:{vT+3}]")
    for i in range(0, 16, 2):
        a(f"v_mov_b64 v[{vV1+i}:{vV1+i+1}], v[{vT+2}:{vT+3}]")
    a(f"s_lshr_b32 s{sT0}, s{sS0}, 4")
    a(f"s_mul_i32 s{sT0}, s{sT0}, {40*1024}")
    a(f"s_mul_i32 s{sT1}, s{sHEAD}, {5*256}")
    a(f"s_add_u32 s{sT0}, s{sT0}, s{sT1}")
    a(f"v_bfe_u32 v{vT+2}, v{vLANE}, 4, 1")
    a(f"v_mul_u32_u24 v{vT+2}, {40*1024}, v{vT+2}")
    a(f"v_and_b32 v{vT+3}, 15, v{vLANE}")
    a(f"v_lshl_add_u32 v{vT+3}, v{vT+3}, 4, v{vT+2}")
    a(f"v_lshrrev_b32 v{vT+2}, 5, v{vLANE}")
    a(f"v_lshl_add_u32 v{vT+3}, v{vT+2}, 8, v{vT+3}")
    a(f"v_add_u32 v{vOSA}, s{sT0}, v{vT+3}")
    a(f"s_getpc_b64 s[56:57]")
    a.lab("K2_PC")
    a(f"s_add_u32 s56, s56, K2_TABLE-K2_PC")
    a(f"s_addc_u32 s57, s57, 0")
    if not FUSE:
        a("s_lshr_b32 s36, s2, 3")
        a("s_lshl_b32 s36, s36, 3")
        a(f"s_add_u32 s36, s36, s{sW}")
        a("s_mul_i32 s36, s36, 50")
        a(f"v_min_u32 v{vPFA}, 49, v{vLANE}")
        a(f"v_add_u32 v{vPFA}, s36, v{vPFA}")
        a(f"v_lshlrev_b32 v{vPFA}, 7, v{vPFA}")
        a(f"v_add_u32 v{vPFA}, {WT_OFF}, v{vPFA}")
    if FUSE:
        a(f"s_mov_b32 s64, s{sHEAD}")
        a(f"s_mov_b32 s65, s{sQB}")
        a(f"s_mul_i32 s{sWS0}, s65, {200*1024}")
        a(f"s_lshl_b32 s{sT0}, s{sW}, 10")
        a(f"s_add_u32 s{sWS0}, s{sWS0}, s{sT0}")
        a(f"s_add_u32 s{sWS0}, s{sWS0}, {WT_OFF}")
        a(f"s_mov_b32 s{sWS}, s{sWS0}")
        a(f"s_mov_b32 s{sWL}, 0")
        a(f"s_mov_b32 s{sWC}, 2")
    a(f"s_mov_b32 s{sPASS}, 0")
    a(f"s_mul_i32 s37, s{sGRP}, {4*KV_CH}")
    stamp(a, 2)
    a("s_waitcnt vmcnt(0)")
    a(f"s_mov_b64 exec, s[{sLO}:{sLO+1}]")
    a(f"s_not_b64 exec, exec")
    for sg in range(2):
        a(f"v_mov_b32 v{vQ8[sg]}, 0")
        a(f"v_mov_b32 v{vQ8[sg]+1}, 0")
    a("s_mov_b64 exec, -1")
    a("s_barrier")
    stamp(a, 3)
    def rdK16(dst, rel_chunk, tt):
        base = vKe if tt % 2 == 0 else vKo
        o0 = rel_chunk * 40 + (tt >> 1) * 5
        return f"ds_read2st64_b64 v[{dst}:{dst+3}], v{base} offset0:{o0} offset1:{o0+1}"
    def rdK4(dst, rel_chunk, tt):
        return f"ds_read_b64 v[{dst}:{dst+1}], v{vK4c} offset:{rel_chunk*KV_CH + tt*1280 + 1024}"
    def voff(g):
        return (g // 16) * KV_CH + (g % 16) * 640
    def setbases():
        a(f"v_add_u32 v{vKe}, s37, v{vQO}")
        a(f"v_add_u32 v{vKo}, 1280, v{vKe}")
        a(f"v_add_u32 v{vK4c}, s37, v{vK8}")
        a(f"v_add_u32 v{vVc}, s37, v{vVA}")
        a(f"v_add_u32 v{vVc}, 10240, v{vVc}")
    def qk(dst, ka, kb, sg, c):
        return [f"v_mfma_f32_32x32x16_bf16 v[{dst}:{dst+15}], v[{ka}:{ka+3}], v[{vQ16[sg]}:{vQ16[sg]+3}], {c}",
                f"v_mfma_f32_32x32x8_bf16 v[{dst}:{dst+15}], v[{kb}:{kb+1}], v[{vQ8[sg]}:{vQ8[sg]+1}], v[{dst}:{dst+15}]"]
    def rowmax(m, regs, first=None):
        if first is None:
            a(f"v_max3_f32 v{m}, v{regs[0]}, v{regs[1]}, v{regs[2]}")
            rest = regs[3:]
        else:
            rest = regs
        i = 0
        while i + 1 < len(rest):
            a(f"v_max3_f32 v{m}, v{m}, v{rest[i]}, v{rest[i+1]}")
            i += 2
        if i < len(rest):
            a(f"v_max_f32 v{m}, v{m}, v{rest[i]}")
    a.lab("K2_START")
    setbases()
    a(rdK16(vKA, 0, 0))
    a(rdK4(vKB, 0, 0))
    a(f"s_mov_b64 exec, s[{sVM}:{sVM+1}]")
    a(f"ds_read_b128 v[{vV1}:{vV1+3}], v{vVc}")
    a("s_mov_b64 exec, -1")
    a(f"s_cmp_lg_u32 s{sPASS}, 0")
    a("s_cbranch_scc1 K2_HAVEM")
    a("s_waitcnt lgkmcnt(0)")
    for sg in range(2):
        for x in qk(S[sg], vKA, vKB, sg, "0"): a(x)
    a("s_nop 9")
    for sg in range(2):
        m = vT + 2 * sg
        rowmax(m, [S[sg] + i for i in range(16)])
        a(f"v_mov_b32 v{m+1}, v{m}")
    a("s_nop 1")
    for sg in range(2):
        m = vT + 2 * sg
        a(f"v_permlane32_swap_b32 v{m}, v{m+1}")
    a("s_nop 1")
    for sg in range(2):
        m = vT + 2 * sg
        a(f"v_max_f32 v{m}, v{m}, v{m+1}")
        a(f"v_sub_f32 v{NEG[sg]}, 0, v{m}")
        a(f"v_sub_f32 v{NEG[sg]+1}, 0, v{m}")
        for i in range(2, 16, 2):
            a(f"v_mov_b64 v[{NEG[sg]+i}:{NEG[sg]+i+1}], v[{NEG[sg]}:{NEG[sg]+1}]")
    a.lab("K2_HAVEM")
    a("s_waitcnt lgkmcnt(0)")
    a("s_nop 1")
    for x in qk(S[0], vKA, vKB, 0, f"v[{NEG[0]}:{NEG[0]+15}]"): a(x)
    a(f"s_mov_b32 s{sC}, 0")
    a("s_nop 15")
    stamp(a, 4)
    aloads = [
        qloads(vQA16, vQA8, sQA, 0),
        [f"buffer_load_dwordx2 v[{vAK}:{vAK+1}], v{vAKO}, s[{SWS}:{SWS+3}], 0 offen",
         f"buffer_load_dwordx2 v[{vAK+2}:{vAK+3}], v{vAKO}, s[{SWS}:{SWS+3}], 0 offen offset:512",
         f"buffer_load_dwordx2 v[{vAK+8}:{vAK+9}], v{vAKO+1}, s[{SWS}:{SWS+3}], 0 offen offset:1024"],
        [f"buffer_load_dwordx2 v[{vAK+4}:{vAK+5}], v{vAKO+2}, s[{SWS}:{SWS+3}], 0 offen",
         f"buffer_load_dwordx2 v[{vAK+6}:{vAK+7}], v{vAKO+2}, s[{SWS}:{SWS+3}], 0 offen offset:512",
         f"buffer_load_dwordx2 v[{vAK+10}:{vAK+11}], v{vAKO+3}, s[{SWS}:{SWS+3}], 0 offen offset:1024"],
        [f"s_mov_b64 exec, s[{sVM}:{sVM+1}]"] +
        [f"buffer_load_dwordx4 v[{vAV+4*j}:{vAV+4*j+3}], v{vVA}, s[{SWS}:{SWS+3}], s{sAV+j} offen" for j in range(3)] +
        ["s_mov_b64 exec, -1"],
        [f"global_load_dwordx4 v[{vMX+4*j}:{vMX+4*j+3}], v{vL16}, s[56:57] offset:{j*1024}" for j in range(4)] +
        [f"v_add_u32 v{vT+7}, 4096, v{vL16}"] +
        [f"global_load_dwordx4 v[{vMY+4*j}:{vMY+4*j+3}], v{vT+7}, s[56:57] offset:{j*1024}" for j in range(2)] +
        [f"v_lshrrev_b32 v{vT+7}, 1, v{vK8}",
         f"buffer_load_dword v{vGATE}, v{vT+7}, s[{SWS}:{SWS+3}], s{sGO} offen"] +
        ([] if FUSE else [f"buffer_load_dword v{vDUM}, v{vPFA}, s[{SWS}:{SWS+3}], 0 offen"]),
    ]
    ool = []
    ptile = optval("ptile", 6)
    WIN = optval("win", 2)
    def wdma(j, p_expr_sgpr):
        return [f"s_add_u32 m0, s{sDO+j}, s{p_expr_sgpr}",
                f"s_add_u32 s{sT3}, s{sWS}, {j*8192}",
                f"buffer_load_dwordx4 v{vL16}, s[{SWS}:{SWS+3}], s{sT3} offen lds"]
    def chunk_body(c):
        extras = {}
        if c is not None:
            if c < 3:
                for j in range(5):
                    extras.setdefault((j, 1), []).extend(dma1(j) + ([f"s_add_u32 s{sDG}, s{sDG}, {KV_CH}"] if j == 4 else []))
            else:
                flat = [x for x in aloads]
                for j in range(5):
                    extras.setdefault((j, 1), []).extend(flat[j])
            if FUSE and WIN >= 2 and c >= 2:
                for j in range(5):
                    extras.setdefault((j + 1, 0), []).extend(wdma(j, sWL) +
                        ([f"s_add_u32 s{sWL}, s{sWL}, {KV_CH}", f"s_add_u32 s{sWS}, s{sWS}, {K3_BUF}"] if j == 4 else []))
        for tt in range(8):
            for sg in range(2):
                cur = S[sg]; nsg = sg ^ 1; nxt = S[nsg]
                nt = tt if sg == 0 else tt + 1
                ka = vKA + 4 * (nt & 1); kb = vKB + 2 * (nt & 1)
                if sg == 0 and tt == 7 and c is not None:
                    if c < 3:
                        a("s_waitcnt vmcnt(0)")
                        a("s_barrier")
                    elif FUSE and WIN == 3:
                        a("s_barrier")
                        for j in range(5):
                            for x in wdma(j, sWL): a(x)
                        a(f"s_add_u32 s{sWL}, s{sWL}, {KV_CH}")
                        a(f"s_add_u32 s{sWS}, s{sWS}, {K3_BUF}")
                    if ptile >= 0: a("s_setprio 2")
                if sg == 0 and tt == ptile and c is not None:
                    a("s_setprio 0")
                if sg == 1:
                    a("s_waitcnt lgkmcnt(0)")
                q = qk(nxt, ka, kb, nsg, f"v[{NEG[nsg]}:{NEG[nsg]+15}]")
                a(q[0])
                if sg == 0:
                    n1 = tt + 1
                    a(rdK16(vKA + 4 * (n1 & 1), n1 // 8, n1 % 8))
                    a(rdK4(vKB + 2 * (n1 & 1), n1 // 8, n1 % 8))
                for i in range(0, 4):
                    a(f"v_exp_f32 v{cur+i}, v{cur+i}")
                pt = tt - 1 if sg == 0 else tt
                v2p = vV2 + 4 * (pt & 1)
                a(f"v_mfma_f32_32x32x16_bf16 v[{O[nsg]}:{O[nsg]+15}], v[{v2p}:{v2p+3}], v[{vP+4}:{vP+7}], v[{O[nsg]}:{O[nsg]+15}]")
                if sg == 0:
                    a(f"s_mov_b64 exec, s[{sVM}:{sVM+1}]")
                    d = vV2 + 4 * (tt & 1)
                    a(f"ds_read_b128 v[{d}:{d+3}], v{vVc} offset:{voff(2*tt+1)}")
                    d = vV1 + 4 * ((tt + 1) & 1)
                    a(f"ds_read_b128 v[{d}:{d+3}], v{vVc} offset:{voff(2*tt+2)}")
                    a("s_mov_b64 exec, -1")
                for x in extras.get((tt, sg), []): a(x)
                for i in range(4, 8):
                    a(f"v_exp_f32 v{cur+i}, v{cur+i}")
                for i in range(4):
                    a(f"v_cvt_pk_bf16_f32 v{vP+i}, v{cur+2*i}, v{cur+2*i+1}")
                a(q[1])
                for i in range(8, 12):
                    a(f"v_exp_f32 v{cur+i}, v{cur+i}")
                v1 = vV1 + 4 * (tt & 1)
                a(f"v_mfma_f32_32x32x16_bf16 v[{O[sg]}:{O[sg]+15}], v[{v1}:{v1+3}], v[{vP}:{vP+3}], v[{O[sg]}:{O[sg]+15}]")
                for i in range(12, 16):
                    a(f"v_exp_f32 v{cur+i}, v{cur+i}")
                for i in range(4, 8):
                    a(f"v_cvt_pk_bf16_f32 v{vP+i}, v{cur+2*i}, v{cur+2*i+1}")
        for r in (vKe, vKo, vK4c, vVc):
            a(f"v_add_u32 v{r}, {KV_CH}, v{r}")
    a(f"s_cmp_lg_u32 s{sPASS}, 0")
    a("s_cbranch_scc1 K2_RLOOP")
    for c in range(4):
        if "chunkstamp" in OPT:
            a("s_memtime s[78:79]")
            a("s_waitcnt lgkmcnt(0)")
            a(f"v_writelane_b32 v247, s78, {c}")
        chunk_body(c)
    a.lab("K2_LOOPEND")
    stamp(a, 5)
    a(f"v_mfma_f32_32x32x16_bf16 v[{O[1]}:{O[1]+15}], v[{vV2+4}:{vV2+7}], v[{vP+4}:{vP+7}], v[{O[1]}:{O[1]+15}]")
    a("s_setprio 0")
    a(f"s_mov_b32 s{sFAIL}, 0")
    a(f"s_cmp_lg_u32 s{sPASS}, 0")
    a("s_cbranch_scc1 K2_XCHG")
    a(f"s_waitcnt vmcnt({(5 if WIN == 3 else 0) if FUSE else 1}) lgkmcnt(0)")
    a(f"s_mov_b64 exec, s[{sLO}:{sLO+1}]")
    a(f"s_not_b64 exec, exec")
    a(f"v_mov_b32 v{vQA8}, 0")
    a(f"v_mov_b32 v{vQA8+1}, 0")
    a("s_mov_b64 exec, -1")
    a(f"s_cmp_lg_u32 s{sS0}, 0")
    a("s_cbranch_scc1 K2_NOFIX")
    for i in range(8):
        a(f"v_mov_b32 v{vMX+i}, {f2u(NEGBIG):#x}")
    a.lab("K2_NOFIX")
    if "ts2" in OPT: stamp(a, 4)
    a(f"v_mfma_f32_32x32x16_bf16 v[{vS0}:{vS0+15}], v[{vAK}:{vAK+3}], v[{vQA16}:{vQA16+3}], v[{vMX}:{vMX+15}]")
    a(f"v_mfma_f32_32x32x16_bf16 v[{vS1}:{vS1+15}], v[{vAK+4}:{vAK+7}], v[{vQA16}:{vQA16+3}], v[{vMY}:{vMY+15}]")
    a(f"v_mfma_f32_32x32x8_bf16 v[{vS0}:{vS0+15}], v[{vAK+8}:{vAK+9}], v[{vQA8}:{vQA8+1}], v[{vS0}:{vS0+15}]")
    a(f"v_mfma_f32_32x32x8_bf16 v[{vS1}:{vS1+15}], v[{vAK+10}:{vAK+11}], v[{vQA8}:{vQA8+1}], v[{vS1}:{vS1+15}]")
    a(f"v_mov_b64 v[{vT+2}:{vT+3}], 0")
    a(f"v_mov_b64 v[{vT+4}:{vT+5}], 0")
    a(f"v_mov_b32 v{vT+1}, {f2u(2.0**64):#x}")
    a("s_nop 3")
    for i in range(0, 12, 2):
        for sg in range(2):
            a(f"v_pk_fma_f32 v[{vT+2}:{vT+3}], v[{O[sg]+i}:{O[sg]+i+1}], v[{vT+4}:{vT+5}], v[{vT+2}:{vT+3}]")
    a(f"v_add_f32 v{vT}, v{O[0]+12}, v{O[1]+12}")
    a(f"v_add_f32 v{vT+2}, v{vT+2}, v{vT+3}")
    a(f"v_add_f32 v{vT}, v{vT}, v{vT+2}")
    a(f"v_cmp_nlt_f32 vcc, v{vT}, v{vT+1}")
    a(f"v_mov_b32 v{O[0]+13}, v{NEG[0]}")
    a(f"v_mov_b32 v{O[1]+13}, v{NEG[1]}")
    a("s_nop 1")
    a("s_cmp_lg_u64 vcc, 0")
    a(f"s_cselect_b32 s{sFAIL}, 1, 0")
    if "forcefail" in OPT:
        a(f"s_cmp_eq_u32 s{sW}, 3")
        a(f"s_cselect_b32 s{sFAIL}, 1, s{sFAIL}")
    regs = [vS0 + i for i in range(16)] + [vS1 + i for i in range(8)]
    m = vT + 6
    rowmax(m, regs)
    a(f"v_mov_b32 v{m+1}, v{m}")
    a("s_nop 1")
    a(f"v_permlane32_swap_b32 v{m}, v{m+1}")
    a("s_nop 1")
    a(f"v_max_f32 v{m}, v{m}, v{m+1}")
    a(f"v_sub_f32 v{vKo}, 0, v{m}")
    a(f"v_sub_f32 v{vK4c}, 0, v{m}")
    for i in range(0, 24, 2):
        a(f"v_pk_add_f32 v[{regs[i]}:{regs[i]+1}], v[{regs[i]}:{regs[i]+1}], v[{vKo}:{vK4c}]")
    for i in range(24):
        a(f"v_exp_f32 v{regs[i]}, v{regs[i]}")
    a("s_nop 0")
    for i in range(12):
        a(f"v_cvt_pk_bf16_f32 v{vP+i}, v{regs[2*i]}, v{regs[2*i+1]}")
    OA = NEG[0]
    a("s_nop 1")
    for j in range(3):
        c = "0" if j == 0 else f"v[{OA}:{OA+15}]"
        a(f"v_mfma_f32_32x32x16_bf16 v[{OA}:{OA+15}], v[{vAV+4*j}:{vAV+4*j+3}], v[{vP+4*j}:{vP+4*j+3}], {c}")
    def rowsum(dst, acc):
        a(f"v_mov_b32 v{dst}, v{acc+12}")
        a(f"s_not_b64 exec, s[{sLO}:{sLO+1}]")
        a(f"v_mov_b32 v{dst}, v{acc+8}")
        a("s_mov_b64 exec, -1")
    OFL = " sc1" if FUSE else STORE_FLAGS
    def ostore(br, src):
        a("s_nop 1")
        a(f"v_permlane32_swap_b32 v{src}, v{src+2}")
        a(f"v_permlane32_swap_b32 v{src+1}, v{src+3}")
        a(f"s_mov_b32 s{sT1}, {O_OFF}")
        a(f"buffer_store_dwordx4 v[{src}:{src+3}], v{vOSA}, s[{SWS}:{SWS+3}], s{sT1} offen offset:{br*512}{OFL}")
    a("s_nop 15")
    rowsum(vT + 6, OA)
    a(f"v_rcp_f32 v{vT+6}, v{vT+6}")
    a("s_nop 0")
    a(f"v_mul_f32 v{vT+6}, v{vT+6}, v{vGATE}")
    for i in range(0, 12, 2):
        a(f"v_pk_mul_f32 v[{OA+i}:{OA+i+1}], v[{OA+i}:{OA+i+1}], v[{vT+6}:{vT+7}] op_sel_hi:[1,0]")
    for i in range(4):
        a(f"v_cvt_pk_bf16_f32 v{vP+i}, v{OA+2*i}, v{OA+2*i+1}")
    for i in range(2):
        a(f"v_cvt_pk_bf16_f32 v{vOB+4+i}, v{OA+8+2*i}, v{OA+9+2*i}")
    ostore(0, vP)
    a("s_branch K2_XCHG1")
    a.lab("K2_XCHG")
    a("s_nop 15")
    a(f"v_mov_b32 v{O[0]+13}, v{NEG[0]}")
    a(f"v_mov_b32 v{O[1]+13}, v{NEG[1]}")
    a.lab("K2_XCHG1")
    a(f"s_mul_i32 s{sT0}, s{sGRP}, {4*KV_CH}")
    a(f"s_lshl_b32 s{sT2}, s{sPR}, 12")
    a(f"s_add_u32 s{sT2}, s{sT2}, {3*KV_CH}")
    a(f"s_add_u32 s{sT0}, s{sT0}, s{sT2}")
    a(f"v_add_u32 v{vT}, s{sT0}, v{vL16}")
    a(f"s_xor_b32 s{sT0}, s{sGRP}, 1")
    a(f"s_mul_i32 s{sT0}, s{sT0}, {4*KV_CH}")
    a(f"s_add_u32 s{sT0}, s{sT0}, s{sT2}")
    a(f"v_add_u32 v{vT+1}, s{sT0}, v{vL16}")
    a(f"s_lshl_b32 s{sT0}, s{sW}, 2")
    a(f"s_add_u32 s{sT0}, s{sT0}, {3*KV_CH + 16384}")
    a(f"v_mov_b32 v{vT+2}, s{sT0}")
    a(f"v_mov_b32 v{vT+3}, s{sFAIL}")
    if "ts2" in OPT: stamp(a, 1)
    a("s_barrier")
    if "ts2" in OPT: stamp(a, 2)
    a(f"s_cmp_eq_u32 s{sGRP}, 0")
    a("s_cbranch_scc1 K2_XA")
    for j in range(4):
        a(f"ds_write_b128 v{vT}, v[{O[0]+4*j}:{O[0]+4*j+3}] offset:{j*1024}")
    a("s_branch K2_XB")
    a.lab("K2_XA")
    for j in range(4):
        a(f"ds_write_b128 v{vT}, v[{O[1]+4*j}:{O[1]+4*j+3}] offset:{j*1024}")
    a.lab("K2_XB")
    a(f"ds_write_b32 v{vT+2}, v{vT+3}")
    a(f"v_mov_b32 v{vT+2}, {3*KV_CH + 16384}")
    a("s_waitcnt lgkmcnt(0)")
    a("s_barrier")
    if "ts2" in OPT: stamp(a, 3)
    a(f"ds_read_b128 v[{vT+4}:{vT+7}], v{vT+2}")
    a(f"ds_read_b128 v[{vS0}:{vS0+3}], v{vT+2} offset:16")
    a(f"s_cmp_eq_u32 s{sGRP}, 0")
    a("s_cbranch_scc1 K2_XC")
    for j in range(4):
        a(f"ds_read_b128 v[{O[0]+4*j}:{O[0]+4*j+3}], v{vT+1} offset:{j*1024}")
    a("s_branch K2_XD")
    a.lab("K2_XC")
    for j in range(4):
        a(f"ds_read_b128 v[{O[1]+4*j}:{O[1]+4*j+3}], v{vT+1} offset:{j*1024}")
    a.lab("K2_XD")
    a("s_waitcnt lgkmcnt(4)")
    a(f"v_or3_b32 v{vT+4}, v{vT+4}, v{vT+5}, v{vT+6}")
    a(f"v_or3_b32 v{vT+4}, v{vT+4}, v{vT+7}, v{vS0}")
    a(f"v_or3_b32 v{vT+4}, v{vT+4}, v{vS0+1}, v{vS0+2}")
    a(f"v_or_b32 v{vT+4}, v{vT+4}, v{vS0+3}")
    a("s_nop 0")
    a(f"v_readfirstlane_b32 s{sT0}, v{vT+4}")
    a("s_nop 3")
    a(f"s_cmp_lg_u32 s{sT0}, 0")
    a("s_cbranch_scc1 K2_REDO")
    a("s_waitcnt lgkmcnt(0)")
    a(f"v_sub_f32 v{vT+2}, v{O[1]+13}, v{O[0]+13}")
    a(f"v_sub_f32 v{vT+3}, 0, v{vT+2}")
    a(f"v_min_f32 v{vT+2}, 0, v{vT+2}")
    a(f"v_min_f32 v{vT+3}, 0, v{vT+3}")
    a(f"v_exp_f32 v{vT+2}, v{vT+2}")
    a(f"v_exp_f32 v{vT+3}, v{vT+3}")
    rowsum(vT + 4, O[0])
    rowsum(vT + 5, O[1])
    a(f"v_mul_f32 v{vT+4}, v{vT+4}, v{vT+2}")
    a(f"v_fmac_f32 v{vT+4}, v{vT+5}, v{vT+3}")
    a(f"v_rcp_f32 v{vT+4}, v{vT+4}")
    a(f"v_sub_f32 v{vT+5}, 1.0, v{vGATE}")
    a("s_nop 0")
    a(f"v_mul_f32 v{vT+4}, v{vT+4}, v{vT+5}")
    a(f"v_mul_f32 v{vT+2}, v{vT+2}, v{vT+4}")
    a(f"v_mul_f32 v{vT+3}, v{vT+3}, v{vT+4}")
    for i in range(0, 12, 2):
        a(f"v_pk_mul_f32 v[{O[0]+i}:{O[0]+i+1}], v[{O[0]+i}:{O[0]+i+1}], v[{vT+2}:{vT+3}] op_sel_hi:[1,0]")
        a(f"v_pk_fma_f32 v[{O[0]+i}:{O[0]+i+1}], v[{O[1]+i}:{O[1]+i+1}], v[{vT+2}:{vT+3}], v[{O[0]+i}:{O[0]+i+1}] op_sel:[0,1,0] op_sel_hi:[1,1,1]")
    for i in range(4):
        a(f"v_cvt_pk_bf16_f32 v{vOB+i}, v{O[0]+2*i}, v{O[0]+2*i+1}")
    for i in range(2):
        a(f"v_cvt_pk_bf16_f32 v{vOB+6+i}, v{O[0]+8+2*i}, v{O[0]+9+2*i}")
    ostore(1, vOB)
    a(f"s_mov_b64 exec, s[{sLO}:{sLO+1}]")
    a(f"buffer_store_dwordx4 v[{vOB+4}:{vOB+7}], v{vOSA}, s[{SWS}:{SWS+3}], s{sT1} offen offset:1024{OFL}")
    a("s_mov_b64 exec, -1")
    if FUSE:
        if WIN:
            a(f"s_cmp_eq_u32 s{sPASS}, 0")
            a("s_cbranch_scc1 K2_WOK")
            a("s_barrier")
            a(f"s_mov_b32 s{sWL}, 0")
            a(f"s_mov_b32 s{sWS}, s{sWS0}")
            for p in range(WIN):
                for j in range(5):
                    for x in wdma(j, sWL): a(x)
                a(f"s_add_u32 s{sWL}, s{sWL}, {KV_CH}")
                a(f"s_add_u32 s{sWS}, s{sWS}, {K3_BUF}")
            a("s_waitcnt vmcnt(0)")
            a.lab("K2_WOK")
        stamp(a, 6)
        NPRE = 0
        if WIN == 3:
            a("s_barrier")
            a(f"s_mov_b32 s{sWL}, {3*KV_CH}")
            for j in range(5):
                for x in wdma(j, sWL): a(x)
            NPRE = 5
        elif WIN == 2:
            a(f"s_mov_b32 s{sWL}, {2*KV_CH}")
            for j in range(5):
                for x in wdma(j, sWL): a(x)
            a(f"s_add_u32 s{sWS}, s{sWS}, {K3_BUF}")
            NPRE = 5
        a(f"s_waitcnt vmcnt({NPRE})")
        if "tailstamps" in OPT: stamp(a, 1)
        a("s_barrier")
        if "tailstamps" in OPT: stamp(a, 2)
        a(f"s_cmp_lg_u32 s{sW}, 0")
        a("s_cbranch_scc1 K2_NOPOLL0")
        a(f"s_lshl_b32 s{sT0}, s{sQB}, 12")
        a(f"s_add_u32 s{sT0}, s{sT0}, {FL_OFF}")
        a(f"s_mov_b64 exec, s[{sLO}:{sLO+1}]")
        a(f"v_mov_b32 v{vT}, 1")
        a(f"v_lshlrev_b32 v{vT+5}, 7, v{vLANE}")
        a(f"buffer_atomic_add v{vT}, v{vT+5}, s[{SWS}:{SWS+3}], s{sT0} offen")
        a("s_mov_b64 exec, -1")
        a.lab("K2_NOPOLL0")
        WPOST = 4 if WIN == 3 else optval("wpost", 4)
        if WIN != 3:
            W0P = 3 if WIN == 2 else WIN
            a(f"s_mov_b32 s{sWL}, {W0P*KV_CH}")
            for p in range(W0P, WPOST):
                for j in range(5):
                    for x in wdma(j, sWL): a(x)
                a(f"s_add_u32 s{sWL}, s{sWL}, {KV_CH}")
                a(f"s_add_u32 s{sWS}, s{sWS}, {K3_BUF}")
        bufss = [((ss // 2) % 4) * KV_CH + (ss & 1) * 4 * KV_CH for ss in range(10)]
        pc = proj_core(a, "K2", SWS, 68, sW, 64, 65, 50, bufss,
                       lambda p, j, sM0: f"s_add_u32 m0, s{sDO+j}, {(p % 4)*KV_CH}", ({1: [4]} if WPOST == 4 else {0: [3], 1: [4]}), optval("k2opre", 4))
        pc.setup()
        srd(a, 68, 60, 61, 2048 * 1280)
        pc.addr_setup(0)
        if "tailstamps" in OPT: stamp(a, 3)
        a(f"s_cmp_lg_u32 s{sW}, 0")
        a("s_cbranch_scc1 K2_NOPOLL")
        a(f"s_lshl_b32 s{sT0}, s{sHEAD}, 3")
        a(f"s_add_u32 s{sT0}, s{sT0}, s{sQB}")
        a(f"s_lshl_b32 s{sT0}, s{sT0}, 7")
        a(f"s_add_u32 s{sT0}, s{sT0}, {FL_OFF}")
        a("s_mov_b64 exec, 1")
        a(f"v_mov_b32 v{vT+5}, 0")
        a(f"s_mov_b32 s{sT1}, 0")
        a.lab("K2_POLL")
        a(f"buffer_load_dword v{vT+4}, v{vT+5}, s[{SWS}:{SWS+3}], s{sT0} offen sc1")
        a("s_waitcnt vmcnt(0)")
        a(f"v_readfirstlane_b32 s{sT2}, v{vT+4}")
        a(f"s_add_u32 s{sT1}, s{sT1}, 1")
        a(f"s_cmp_ge_u32 s{sT2}, 32")
        a("s_cbranch_scc1 K2_POLLED")
        a(f"s_sleep {optval('psleep', 2)}")
        a(f"s_cmp_lt_u32 s{sT1}, 0x40000")
        a("s_cbranch_scc1 K2_POLL")
        a.lab("K2_POLLED")
        a("s_waitcnt vmcnt(0)")
        if "tailstamps" in OPT:
            stamp(a, 4)
        a("s_mov_b64 exec, -1")
        a.lab("K2_NOPOLL")
        a("s_waitcnt vmcnt(0)")
        a("s_barrier")
        stamp(a, 7)
        pc.body([("o", 0), ("o", 1), ("o", 2), ("o", 3)])
        if PROF: a("s_waitcnt vmcnt(0)")
        stamp(a, 8)
        stamp_flush(a, 1, 9, SWS, sW, vT)
        if "dbgtime" in OPT:
            a("s_cmp_lg_u32 s2, 1")
            a("s_cbranch_scc1 K2_DBGX")
            a("s_cmp_lg_u32 s12, 0")
            a("s_cbranch_scc1 K2_DBGX")
            a("s_load_dwordx2 s[92:93], s[0:1], 64")
            a("s_waitcnt vmcnt(0)")
            a("s_memrealtime s[94:95]")
            a("s_memtime s[96:97]")
            a("s_waitcnt lgkmcnt(0)")
            srd(a, 84, 92, 93, 256)
            a("s_sub_u32 s96, s96, s88")
            a("s_sub_u32 s94, s94, s90")
            a("s_mov_b64 exec, 1")
            a("v_mov_b32 v24, 0")
            a("v_mov_b32 v20, 222")
            a("v_mov_b32 v21, s96")
            a("v_mov_b32 v22, s94")
            a("v_mov_b32 v23, s90")
            a("buffer_store_dwordx4 v[20:23], v24, s[84:87], 0 offen")
            a("s_mov_b64 exec, -1")
            a.lab("K2_DBGX")
        a("s_endpgm")
    else:
        a("s_branch K2_DONE")
    a.lab("K2_REDO")
    a("s_waitcnt vmcnt(0) lgkmcnt(0)")
    a("s_barrier")
    a(f"s_mov_b32 s{sDG}, 0")
    for p in range(4):
        for j in range(5):
            for x in dma1(j): a(x)
        a(f"s_add_u32 s{sDG}, s{sDG}, {KV_CH}")
    a(f"s_mov_b32 s{sPASS}, 1")
    if FUSE: a(f"s_mov_b32 s{sWC}, 99")
    a(f"v_mov_b32 v{vT}, {f2u(-3.0e38):#x}")
    a(f"v_mov_b32 v{vT+2}, {f2u(-3.0e38):#x}")
    setbases()
    a(f"s_mov_b32 s{sC}, 0")
    a("s_waitcnt vmcnt(0)")
    a("s_barrier")
    a.lab("K2_MAXLOOP")
    for tt in range(8):
        a(rdK16(vKA, 0, tt))
        a(rdK4(vKB, 0, tt))
        a("s_waitcnt lgkmcnt(0)")
        for sg in range(2):
            for x in qk(S[sg], vKA, vKB, sg, "0"): a(x)
        a("s_nop 15")
        for sg in range(2):
            rowmax(vT + 2 * sg, [S[sg] + i for i in range(16)], first=True)
    for r in (vKe, vKo, vK4c):
        a(f"v_add_u32 v{r}, {KV_CH}, v{r}")
    a(f"s_add_u32 s{sC}, s{sC}, 1")
    a(f"s_cmp_lt_u32 s{sC}, 4")
    a("s_cbranch_scc1 K2_MAXLOOP")
    for sg in range(2):
        a(f"v_mov_b32 v{vT+2*sg+1}, v{vT+2*sg}")
    a("s_nop 1")
    for sg in range(2):
        a(f"v_permlane32_swap_b32 v{vT+2*sg}, v{vT+2*sg+1}")
    a("s_nop 1")
    for sg in range(2):
        a(f"v_max_f32 v{vT+2*sg}, v{vT+2*sg}, v{vT+2*sg+1}")
        for i in range(16):
            a(f"v_sub_f32 v{NEG[sg]+i}, 0, v{vT+2*sg}")
            a(f"v_mov_b32 v{O[sg]+i}, 0")
    for i in range(4):
        a(f"v_mov_b32 v{vP+4+i}, 0")
    a("s_branch K2_START")
    a.lab("K2_RLOOP")
    chunk_body(None)
    a(f"s_add_u32 s{sC}, s{sC}, 1")
    a(f"s_cmp_lt_u32 s{sC}, 4")
    a("s_cbranch_scc1 K2_RLOOP")
    a("s_branch K2_LOOPEND")
    a.lab("K2_DONE")
    stamp(a, 6)
    if PROF: a("s_waitcnt vmcnt(0)")
    stamp(a, 7)
    if "chunkstamp" in OPT:
        a(f"s_lshl_b32 s97, s2, 3")
        a(f"s_add_u32 s97, s97, s{sW}")
        a(f"s_lshl_b32 s97, s97, 6")
        a(f"s_add_u32 s97, s97, {PROF_OFF + 3 * 0x100000}")
        a(f"v_lshlrev_b32 v{vT}, 2, v{vLANE}")
        a("s_mov_b64 exec, 0xff")
        a(f"buffer_store_dword v247, v{vT}, s[{SWS}:{SWS+3}], s97 offen")
        a("s_mov_b64 exec, -1")
    stamp_flush(a, 1, 8, SWS, sW, vT)
    a.lab("K2_END")
    a("s_endpgm")
    a.raw(".p2align 4")
    a.lab("K2_TABLE")
    tab = mask_table()
    for i in range(0, len(tab), 8):
        a.raw("    .long " + ", ".join(f"{x:#x}" for x in tab[i:i+8]))
    a.lab("K2_TEXT_END")
    return name, NV

K3_BUF = 40 * 1024
K3_NBUF = 3
K3_LDS = K3_BUF * K3_NBUF

K3_GRID = 256
def proj_core(a, pfx, SWS, SOUT, sW, sMT, sNT, sbase, bufss, wm0, wplan, OPRE, vLANE=1, vL16=2):
    sMB, sKH, sT0, sT1, sT2, sOB, sWB, sM0, sOUT = [sbase + i for i in range(9)]
    vWR = 6; vWA = 7; vT = 8
    vOF = 20; vWF = 100; vACC = 180
    oflags = " sc1" if pfx == "K2" else ""
    issued = []
    def setup():
        a(f"s_and_b32 s{sMB}, s{sW}, 3")
        a(f"s_lshr_b32 s{sKH}, s{sW}, 2")
        a(f"s_lshl_b32 s{sM0}, s{sW}, 10")
        a(f"s_mul_i32 s{sWB}, s{sNT}, {200*1024}")
        a(f"s_add_u32 s{sWB}, s{sWB}, s{sM0}")
        a(f"s_add_u32 s{sWB}, s{sWB}, {WT_OFF}")
        a(f"s_lshl_b32 s{sOB}, s{sMT}, 2")
        a(f"s_add_u32 s{sOB}, s{sOB}, s{sMB}")
        a(f"s_mul_i32 s{sOUT}, s{sOB}, {16*1280}")
        a(f"s_mul_i32 s{sOB}, s{sOB}, 40")
        a(f"s_lshl_b32 s{sT0}, s{sKH}, 1")
        a(f"s_add_u32 s{sOB}, s{sOB}, s{sT0}")
        a(f"s_lshl_b32 s{sOB}, s{sOB}, 10")
        a(f"s_add_u32 s{sOB}, s{sOB}, {O_OFF}")
        a(f"s_mul_i32 s{sT2}, s{sNT}, 160")
        a(f"s_add_u32 s{sOUT}, s{sOUT}, s{sT2}")
    def wgroup(p):
        g = []
        for j in range(5):
            g.append(([wm0(p, j, sM0),
                       f"s_add_u32 s{sT1}, s{sWB}, {p*K3_BUF + j*8192}",
                       f"buffer_load_dwordx4 v{vL16}, s[{SWS}:{SWS+3}], s{sT1} offen lds"], ("W", p)))
        return g
    def ogroup(ss):
        g = []
        for i in range(2):
            d = vOF + (ss * 2 + i) * 4
            g.append(([f"s_add_u32 s{sT0}, s{sOB}, {(ss*4 + i)*1024}",
                       f"buffer_load_dwordx4 v[{d}:{d+3}], v{vL16}, s[{SWS}:{SWS+3}], s{sT0} offen{oflags}"], ("o", ss)))
        return g
    def emit(item):
        for x in item[0]: a(x)
        issued.append(item[1])
    def vm(need):
        last = max([i for i, t in enumerate(issued) if t in need], default=-1)
        return min(63, len(issued) - 1 - last)
    def reads(ss):
        st = ss & 1
        off = bufss[ss]
        out = [f"v_add_u32 v{vWA}, {off}, v{vWR}"]
        for i in range(2):
            for b in range(5):
                r = vWF + st * 40 + (i * 5 + b) * 4
                out.append(f"ds_read_b128 v[{r}:{r+3}], v{vWA} offset:{(i*5 + b)*1024}")
        return out
    def addr_setup(xbase):
        a(f"s_mul_i32 s{sT0}, s{sKH}, {10*1024}")
        a(f"v_add_u32 v{vWR}, s{sT0}, v{vL16}")
        a(f"v_and_b32 v{vT+1}, 15, v{vLANE}")
        a(f"v_mul_u32_u24 v{vT+1}, 1280, v{vT+1}")
        a(f"v_lshrrev_b32 v{vT+2}, 4, v{vLANE}")
        a(f"v_lshl_add_u32 v{vT+1}, v{vT+2}, 3, v{vT+1}")
        a(f"s_mul_i32 s{sT0}, s{sW}, {3*1024}")
        a(f"s_add_u32 s{sT0}, s{sT0}, {xbase}")
        a(f"v_add_u32 v{vT}, s{sT0}, v{vL16}")
        a(f"s_xor_b32 s{sT2}, s{sW}, 4")
        a(f"s_mul_i32 s{sT2}, s{sT2}, {3*1024}")
        a(f"s_add_u32 s{sT2}, s{sT2}, {xbase}")
        a(f"v_add_u32 v{vT+3}, s{sT2}, v{vL16}")
    def body(first):
        for kind, idx in first:
            for it in (wgroup(idx) if kind == "W" else ogroup(idx)): emit(it)
        nxt_o = max([idx for kind, idx in first if kind == "o"], default=-1) + 1
        if pfx == "K3": stamp(a, 1)
        a(f"s_waitcnt vmcnt({vm({('W', 0)})})")
        a("s_barrier")
        if pfx == "K3": stamp(a, 2)
        for r in reads(0): a(r)
        for ss in range(10):
            p = ss // 2
            need = {("o", ss)}
            if ss % 2 == 1 and p + 1 < 5: need.add(("W", p + 1))
            a(f"s_waitcnt vmcnt({vm(need)}) lgkmcnt(0)")
            if ss % 2 == 1 and ss < 9: a("s_barrier")
            mf = []
            for i in range(2):
                for b in range(5):
                    acc = vACC + b * 4
                    wf = vWF + (ss & 1) * 40 + (i * 5 + b) * 4
                    of = vOF + (ss * 2 + i) * 4
                    c = "0" if (ss == 0 and i == 0) else f"v[{acc}:{acc+3}]"
                    mf.append(f"v_mfma_f32_16x16x32_bf16 v[{acc}:{acc+3}], v[{wf}:{wf+3}], v[{of}:{of+3}], {c}")
            rd = reads(ss + 1) if ss < 9 else []
            ld = []
            for p2 in wplan.get(ss, []): ld += wgroup(p2)
            while nxt_o < 10 and nxt_o <= ss + OPRE:
                ld += ogroup(nxt_o); nxt_o += 1
            ex = [("r", r) for r in rd]
            mixed = []
            step = max(1, len(ex) // max(1, len(ld))) if ld else 0
            k = 0
            for i, e in enumerate(ex):
                mixed.append(e)
                if ld and k < len(ld) and (i + 1) % step == 0:
                    mixed.append(("l", ld[k])); k += 1
            while k < len(ld):
                mixed.append(("l", ld[k])); k += 1
            k = 0
            for i, m in enumerate(mf):
                a(m)
                tgt = min(len(mixed), ((i + 1) * len(mixed) + 8) // 9)
                while k < tgt:
                    if mixed[k][0] == "r": a(mixed[k][1])
                    else: emit(mixed[k][1])
                    k += 1
        if pfx == "K3": stamp(a, 3)
        a("s_barrier")
        a(f"s_cmp_eq_u32 s{sKH}, 0")
        a(f"s_cbranch_scc1 {pfx}_PW0")
        a("s_nop 4")
        for b in range(3):
            a(f"ds_write_b128 v{vT}, v[{vACC+b*4}:{vACC+b*4+3}] offset:{b*1024}")
        a("s_waitcnt lgkmcnt(0)")
        a("s_barrier")
        def fin(blocks):
            for n, b in enumerate(blocks):
                a(f"ds_read_b128 v[{vOF+4*n}:{vOF+4*n+3}], v{vT+3} offset:{n*1024}")
            for n, b in enumerate(blocks):
                a(f"s_waitcnt lgkmcnt({len(blocks)-1-n})")
                for i in range(0, 4, 2):
                    a(f"v_pk_add_f32 v[{vOF+4*n+i}:{vOF+4*n+i+1}], v[{vOF+4*n+i}:{vOF+4*n+i+1}], v[{vACC+4*b+i}:{vACC+4*b+i+1}]")
                a(f"v_cvt_pk_bf16_f32 v{vWF+2*n}, v{vOF+4*n}, v{vOF+4*n+1}")
                a(f"v_cvt_pk_bf16_f32 v{vWF+2*n+1}, v{vOF+4*n+2}, v{vOF+4*n+3}")
                a(f"buffer_store_dwordx2 v[{vWF+2*n}:{vWF+2*n+1}], v{vT+1}, s[{SOUT}:{SOUT+3}], s{sOUT} offen offset:{b*32}")
        fin([3, 4])
        a(f"s_branch {pfx}_PFIN")
        a.lab(f"{pfx}_PW0")
        a("s_nop 4")
        for n, b in enumerate((3, 4)):
            a(f"ds_write_b128 v{vT}, v[{vACC+b*4}:{vACC+b*4+3}] offset:{n*1024}")
        a("s_waitcnt lgkmcnt(0)")
        a("s_barrier")
        fin([0, 1, 2])
        a.lab(f"{pfx}_PFIN")
    class C: pass
    c = C(); c.setup = setup; c.wgroup = wgroup; c.emit = emit; c.addr_setup = addr_setup; c.body = body; c.issued = issued
    return c

def gen_k3(a):
    name = "k3_proj_kernel"
    kernel_head(a, name)
    SWS = 8; SOUT = 20
    sW = 24; sMT = 27; sNT = 28
    vLANE = 1; vL16 = 2; vT = 8
    NV = 200
    a(f"s_cmp_ge_u32 s2, {K3_GRID}")
    a("s_cbranch_scc1 K3_END")
    stamp(a, 0)
    a("s_load_dwordx2 s[4:5], s[0:1], 72")
    a("s_load_dwordx2 s[36:37], s[0:1], 56")
    a(f"v_and_b32 v{vLANE}, 63, v0")
    a(f"v_lshrrev_b32 v{vT}, 6, v0")
    a(f"s_and_b32 s{sMT}, s2, 7")
    a(f"v_readfirstlane_b32 s{sW}, v{vT}")
    a(f"s_lshl_b32 s{sMT}, s{sMT}, 2")
    a(f"s_lshr_b32 s29, s2, 6")
    a(f"s_add_u32 s{sMT}, s{sMT}, s29")
    a(f"s_lshr_b32 s{sNT}, s2, 3")
    a(f"s_and_b32 s{sNT}, s{sNT}, 7")
    a(f"v_lshlrev_b32 v{vL16}, 4, v{vLANE}")
    bufss = [((ss // 2) % 3) * K3_BUF + (ss & 1) * 20 * 1024 for ss in range(10)]
    c = proj_core(a, "K3", SWS, SOUT, sW, sMT, sNT, 40, bufss, lambda p, j, sM0: f"s_add_u32 m0, s{sM0}, {(p % 3)*K3_BUF + j*8192}",
                  {0: [2], 1: [3], 3: [4]}, optval("k3opre", 4))
    c.setup()
    a("s_waitcnt lgkmcnt(0)")
    srd(a, SWS, 4, 5, WS_USED)
    srd(a, SOUT, 36, 37, 2048 * 1280)
    c.addr_setup(0)
    c.body([("W", 0), ("o", 0), ("o", 1), ("W", 1), ("o", 2), ("o", 3)])
    stamp(a, 4)
    if PROF: a("s_waitcnt vmcnt(0)")
    stamp(a, 5)
    stamp_flush(a, 2, 6, SWS, sW, vT)
    a.lab("K3_END")
    a("s_endpgm")
    return name, NV

def build(kernels=("k1", "k2", "k3")):
    a = Asm()
    fuse = "nofuse" not in OPT
    k3line = "" if fuse else f"; @launch kernel=k3_proj_kernel grid=({K3_GRID},1,1) block=(512,1,1) lds={K3_LDS}\n"
    hdr = f"""; Gated mix of sliding-window dilated attention (A) and full softmax MHA (B): three launches.
; @launch kernel=k1_qkv_kernel grid=(256,1,1) block=(512,1,1) lds={K1_LDS}
; @launch kernel=k2_attn_kernel grid=(256,1,1) block=(512,1,1) lds={K2_LDS}
{k3line}.amdgcn_target "amdgcn-amd-amdhsa--gfx950"
.text
"""
    descs = []
    for g in ((gen_k1, gen_k2) if fuse else (gen_k1, gen_k2, gen_k3)):
        n, nv = g(a)
        descs.append(kernel_desc(n, nv))
    txt = a.text()
    txt = txt.replace("K2CODE_WAVES", "((K2_TEXT_END-k2_attn_kernel) >> 13)")
    return hdr + txt + '.section .rodata,"a"\n' + "".join(".p2align 6\n" + d for d in descs)

if __name__ == "__main__":
    if len(sys.argv) > 2 and sys.argv[2] == "prof":
        PROF = True
    OPT.update(sys.argv[3:])
    if "st_plain" in OPT: STORE_FLAGS = ""
    if "st_sc1" in OPT: STORE_FLAGS = " sc1"
    if "st_nt" in OPT: STORE_FLAGS = " nt"
    if "st_sc01" in OPT: STORE_FLAGS = " sc0 sc1"
    if "st_sc1nt" in OPT: STORE_FLAGS = " sc1 nt"
    if "st_all" in OPT: STORE_FLAGS = " sc0 sc1 nt"
    out = sys.argv[1] if len(sys.argv) > 1 else f"cdna_kernels/{NAME}.s"
    open(out, "w").write(build())
    print("wrote", out)
```

```python
import sys, struct

NAME = "gated_mix__sliding_local_dilated__softmax_full_mha__prompt"

KV_HEAD = 163840
KV_CH = 20480
Q_HEAD = 81920
Q_CH = 10240
KVA_OFF = 0
KVB_OFF = 32 * KV_HEAD
QA_OFF = 2 * 32 * KV_HEAD
QB_OFF = QA_OFF + 32 * Q_HEAD
G_OFF = QB_OFF + 32 * Q_HEAD
FL_OFF = 0xF04000
WT_OFF = 0xF10000
O_OFF = 0x1100000
O_SIZE = 128 * 40 * 1024
WS_USED = 0x2400000
QSCALE = (20 ** -0.5) * 1.4426950408889634

def f2u(x):
    return struct.unpack("<I", struct.pack("<f", x))[0]

class Asm:
    def __init__(self):
        self.l = []
    def __call__(self, s):
        for x in s.strip("\n").split("\n"):
            self.l.append("    " + x.strip())
    def lab(self, s):
        self.l.append(s + ":")
    def raw(self, s):
        self.l.append(s)
    def text(self):
        return "\n".join(self.l) + "\n"

def vr(b, n=1):
    return f"v{b}" if n == 1 else f"v[{b}:{b+n-1}]"
def sr(b, n=1):
    return f"s{b}" if n == 1 else f"s[{b}:{b+n-1}]"

def kernel_head(a, name):
    a.raw(f".globl {name}")
    a.raw(".p2align 8")
    a.raw(f".type {name},@function")
    a.lab(name)

def kernel_desc(name, nv, ns=102):
    acc = (nv + 3) // 4 * 4
    return f""".amdhsa_kernel {name}
  .amdhsa_next_free_vgpr {nv}
  .amdhsa_next_free_sgpr {ns}
  .amdhsa_accum_offset {acc}
  .amdhsa_group_segment_fixed_size 0
  .amdhsa_kernarg_size 80
  .amdhsa_user_sgpr_count 2
  .amdhsa_user_sgpr_kernarg_segment_ptr 1
  .amdhsa_system_sgpr_workgroup_id_x 1
  .amdhsa_float_denorm_mode_32 3
  .amdhsa_float_denorm_mode_16_64 3
.end_amdhsa_kernel
"""

PROF = False
OPT = set()
STORE_FLAGS = " sc1"
PROF_OFF = 0x2000000
def optval(name, default):
    for o in OPT:
        if o.startswith(name + "="): return int(o.split("=")[1])
    return default
def stamp(a, i):
    if PROF:
        a(f"s_memtime s[{80+2*i}:{81+2*i}]")
        if i == 0: a("s_memrealtime s[76:77]")
def stamp_flush(a, kidx, n, srdreg, wave_sgpr, vtmp):
    if not PROF: return
    a("s_memrealtime s[98:99]")
    a("s_waitcnt lgkmcnt(0)")
    a(f"s_lshl_b32 s75, s2, 3")
    a(f"s_add_u32 s75, s75, s{wave_sgpr}")
    a(f"s_lshl_b32 s75, s75, 6")
    a(f"s_add_u32 s75, s75, {PROF_OFF + kidx * 0x100000}")
    a("s_mov_b64 exec, 1")
    a(f"v_mov_b32 v{vtmp+1}, 0")
    for i in range(n):
        a(f"v_mov_b32 v{vtmp}, s{80+2*i}")
        a(f"buffer_store_dword v{vtmp}, v{vtmp+1}, s[{srdreg}:{srdreg+3}], s75 offen offset:{4*i}")
    a(f"v_mov_b32 v{vtmp}, s76")
    a(f"buffer_store_dword v{vtmp}, v{vtmp+1}, s[{srdreg}:{srdreg+3}], s75 offen offset:56")
    a(f"v_mov_b32 v{vtmp}, s98")
    a(f"buffer_store_dword v{vtmp}, v{vtmp+1}, s[{srdreg}:{srdreg+3}], s75 offen offset:60")

def srd(a, d, lo, hi, size):
    a(f"s_mov_b32 s{d}, s{lo}")
    a(f"s_and_b32 s{d+1}, s{hi}, 0xffff")
    a(f"s_mov_b32 s{d+2}, {size}")
    a(f"s_mov_b32 s{d+3}, 0x00020000")

K1_XB = 32768
K1_BUF = 32768 + 16384
K1_NBUF = 3
K1_LDS = K1_BUF * K1_NBUF

def gen_k1(a):
    PF0 = optval("pf0", 3)
    name = "k1_qkv_kernel"
    kernel_head(a, name)
    SX = 12; SW = 16; SWS = 20; SG = 24
    sW = 32; sWM = 33; sWN = 34; sI = 35; sRD = 36; sWRB = 37
    sXS = 38; sWS1 = 39; sXM0 = 41; sWM0 = 42; sMT = 43; sNT = 44; sBR = 45
    sTMP = 46; sTMP2 = 47; sTMP3 = 48; sTMP4 = 49
    sSEC = 50; sFB = 51; sEO = 52; sD = 53; sHS = 54; sSC = 56
    vLANE = 1; vXO = 2; vWO = 4
    vXR = 6
    vWR = 10
    vXA = 12
    vWA = 16
    vT = 18
    vXF = 32
    vWF = 64
    vACC = 96
    vEO = 160
    vPF = 176
    NV = 184

    a("s_cmp_ge_u32 s2, 256")
    a("s_cbranch_scc1 K1_END")
    if "noselfpf" not in OPT:
        a("s_getpc_b64 s[78:79]")
        a.lab("K1_PC0")
        a("s_sub_u32 s78, s78, K1_PC0-k1_qkv_kernel")
        a("s_subb_u32 s79, s79, 0")
        a("v_lshlrev_b32 v180, 7, v0")
        a("v_cmp_gt_u32 vcc, K1_TEXT_SIZE, v180")
        a("s_and_saveexec_b64 s[76:77], vcc")
        a("s_cbranch_execz K1_SPF")
        a("global_load_dword v181, v180, s[78:79]")
        a.lab("K1_SPF")
        a("s_mov_b64 exec, s[76:77]")
    stamp(a, 0)
    if "dbgtime" in OPT:
        a("s_memrealtime s[90:91]")
        a("s_memtime s[88:89]")
    a("s_lshr_b32 s45, s2, 2")
    a("s_and_b32 s45, s45, 1")
    a("s_mul_i32 s46, s45, 24")
    a("s_add_u32 s46, s46, 8")
    a("s_load_dwordx2 s[10:11], s[0:1], s46")
    a("s_load_dwordx2 s[8:9], s[0:1], 0")
    a("s_load_dwordx2 s[4:5], s[0:1], 72")
    a("s_load_dwordx2 s[6:7], s[0:1], 48")
    a(f"v_and_b32 v{vLANE}, 63, v0")
    a(f"v_lshrrev_b32 v{vT}, 6, v0")
    a(f"s_lshr_b32 s{sTMP}, s2, 3")
    a(f"v_readfirstlane_b32 s{sW}, v{vT}")
    a(f"s_and_b32 s{sMT}, s2, 3")
    a(f"s_lshl_b32 s{sMT}, s{sMT}, 1")
    a(f"s_and_b32 s{sTMP2}, s{sTMP}, 1")
    a(f"s_add_u32 s{sMT}, s{sMT}, s{sTMP2}")
    a(f"s_lshr_b32 s{sNT}, s{sTMP}, 1")
    a(f"s_cmp_ge_u32 s{sNT}, 15")
    a("s_cbranch_scc1 K1_GATE")
    a(f"s_and_b32 s{sWM}, s{sW}, 3")
    a(f"s_lshr_b32 s{sWN}, s{sW}, 2")
    a(f"v_lshrrev_b32 v{vT}, 3, v{vLANE}")
    a(f"v_lshrrev_b32 v{vT+1}, 4, v{vLANE}")
    a(f"v_xor_b32 v{vT+1}, v{vT+1}, v{vLANE}")
    a(f"v_and_b32 v{vT+1}, 7, v{vT+1}")
    a(f"s_lshl_b32 s{sTMP}, s{sMT}, 8")
    a(f"s_lshl_b32 s{sTMP2}, s{sW}, 5")
    a(f"s_add_u32 s{sTMP}, s{sTMP}, s{sTMP2}")
    a(f"v_add_u32 v{vT}, s{sTMP}, v{vT}")
    a(f"v_mul_u32_u24 v{vT}, 1280, v{vT}")
    a(f"v_lshl_add_u32 v{vXO}, v{vT+1}, 4, v{vT}")
    a(f"v_xor_b32 v{vXO+1}, 64, v{vXO}")
    a(f"v_lshrrev_b32 v{vT}, 4, v{vLANE}")
    a(f"v_lshlrev_b32 v{vT+1}, 2, v{vT}")
    a(f"v_xor_b32 v{vT+1}, v{vT+1}, v{vLANE}")
    a(f"v_and_b32 v{vT+1}, 15, v{vT+1}")
    a(f"s_lshl_b32 s{sTMP}, s{sW}, 3")
    a(f"v_add_u32 v{vT}, s{sTMP}, v{vT}")
    a(f"v_mul_u32_u24 v{vT}, 3840, v{vT}")
    a(f"v_lshl_add_u32 v{vT}, v{vT+1}, 4, v{vT}")
    a(f"s_lshl_b32 s{sTMP}, s{sNT}, 8")
    a(f"v_add_u32 v{vWO}, s{sTMP}, v{vT}")
    a(f"s_lshl_b32 s{sXM0}, s{sW}, 12")
    a(f"s_lshl_b32 s{sWM0}, s{sW}, 11")
    a(f"s_add_u32 s{sWM0}, s{sWM0}, {K1_XB}")
    a("s_waitcnt lgkmcnt(0)")
    srd(a, SX, 8, 9, 2048 * 1280)
    srd(a, SW, 10, 11, 640 * 3840)

    def dma_list(buf_s, inloop=False):
        g = []
        if "k1nodma" in OPT and inloop: return [["s_nop 0"]] * 6
        for i in range(4):
            g.append([f"s_add_u32 m0, s{buf_s}, s{sXM0}" if i == 0 else f"s_add_u32 m0, m0, 1024",
                      f"s_add_u32 s{sTMP3}, s{sXS}, {i*8*1280}",
                      f"buffer_load_dwordx4 v{vXO + (i & 1)}, s[{SX}:{SX+3}], s{sTMP3} offen lds"])
        for i in range(2):
            g.append([f"s_add_u32 m0, s{buf_s}, s{sWM0}" if i == 0 else f"s_add_u32 m0, m0, 1024",
                      f"s_add_u32 s{sTMP3}, s{sWS1}, {i*4*3840}",
                      f"buffer_load_dwordx4 v{vWO}, s[{SW}:{SW+3}], s{sTMP3} offen lds"])
        g[-1] = g[-1] + [f"s_add_u32 s{sXS}, s{sXS}, 128", f"s_add_u32 s{sWS1}, s{sWS1}, {64*3840}"]
        return g
    a(f"s_mov_b32 s{sXS}, 0")
    a(f"s_mov_b32 s{sWS1}, 0")
    a(f"s_mov_b32 s{sWRB}, 0")
    for g in dma_list(sWRB):
        for x in g: a(x)
    srd(a, SWS, 4, 5, WS_USED)
    a(f"v_and_b32 v{vT}, 31, v{vLANE}")
    a(f"v_lshrrev_b32 v{vT+1}, 5, v{vLANE}")
    a(f"v_bfe_u32 v{vT+2}, v{vLANE}, 1, 3")
    a(f"v_xor_b32 v{vT+2}, v{vT+2}, v{vT+1}")
    a(f"v_lshlrev_b32 v{vT+2}, 4, v{vT+2}")
    a(f"v_lshl_add_u32 v{vXR}, v{vT}, 7, v{vT+2}")
    a(f"s_lshl_b32 s{sTMP}, s{sWM}, 13")
    a(f"v_add_u32 v{vXR}, s{sTMP}, v{vXR}")
    for kk in range(1, 4):
        a(f"v_xor_b32 v{vXR+kk}, {kk << 5}, v{vXR}")
    a(f"v_bfe_u32 v{vT+2}, v{vLANE}, 2, 2")
    a(f"v_lshl_add_u32 v{vT+3}, v{vT+1}, 3, v{vT+2}")
    a(f"v_lshlrev_b32 v{vT+3}, 8, v{vT+3}")
    a(f"v_and_b32 v{vT+4}, 3, v{vLANE}")
    a(f"v_lshl_add_u32 v{vT+3}, v{vT+4}, 3, v{vT+3}")
    a(f"v_bfe_u32 v{vT+4}, v{vLANE}, 4, 1")
    a(f"v_lshl_add_u32 v{vT+3}, v{vT+4}, 5, v{vT+3}")
    a(f"v_add_u32 v{vT+3}, {K1_XB}, v{vT+3}")
    a(f"s_lshl_b32 s{sTMP}, s{sWN}, 1")
    for bl in range(2):
        a(f"s_add_u32 s{sTMP2}, s{sTMP}, {bl}")
        a(f"v_xor_b32 v{vT+5}, s{sTMP2}, v{vT+2}")
        a(f"v_lshl_add_u32 v{vWR+bl}, v{vT+5}, 6, v{vT+3}")
    PF = "k1pf" in OPT
    if PF:
        a(f"s_lshr_b32 s{sTMP}, s2, 3")
        a(f"s_cmp_lt_u32 s{sW}, 6")
        a("s_cbranch_scc0 K1_PFX")
        a(f"s_mul_i32 s{sTMP}, s{sTMP}, 6")
        a(f"s_add_u32 s{sTMP}, s{sTMP}, s{sW}")
        a(f"s_mul_i32 s{sTMP}, s{sTMP}, 11")
        a(f"v_min_u32 v{vT}, 10, v{vLANE}")
        a(f"v_add_u32 v{vT}, s{sTMP}, v{vT}")
        a(f"v_min_u32 v{vT}, 1919, v{vT}")
        a(f"v_mul_u32_u24 v{vT+1}, 34953, v{vT}")
        a(f"v_lshrrev_b32 v{vT+1}, 20, v{vT+1}")
        a(f"v_mul_u32_u24 v{vT+2}, 30, v{vT+1}")
        a(f"v_sub_u32 v{vT+2}, v{vT}, v{vT+2}")
        a(f"v_mul_u32_u24 v{vT+1}, 3840, v{vT+1}")
        a(f"v_lshl_add_u32 v{vPF}, v{vT+2}, 7, v{vT+1}")
        for i in range(4): a(f"s_mov_b32 s{64+i}, s{SW+i}")
        a(f"s_mov_b32 s68, {64*3840}")
        a("s_branch K1_PFD")
        a.lab("K1_PFX")
        a(f"s_lshl_b32 s{sTMP}, s{sTMP}, 1")
        a(f"s_add_u32 s{sTMP}, s{sTMP}, s{sW}")
        a(f"s_sub_u32 s{sTMP}, s{sTMP}, 6")
        a(f"s_mul_i32 s{sTMP}, s{sTMP}, 9")
        a(f"v_min_u32 v{vT}, 8, v{vLANE}")
        a(f"v_add_u32 v{vT}, s{sTMP}, v{vT}")
        a(f"v_min_u32 v{vT}, 511, v{vT}")
        a(f"s_and_b32 s{sTMP}, s2, 3")
        a(f"s_lshl_b32 s{sTMP}, s{sTMP}, 9")
        a(f"v_add_u32 v{vT}, s{sTMP}, v{vT}")
        a(f"v_mul_u32_u24 v{vPF}, 1280, v{vT}")
        for i in range(4): a(f"s_mov_b32 s{64+i}, s{SX+i}")
        a(f"s_mov_b32 s68, 128")
        a.lab("K1_PFD")
        a(f"s_mul_i32 s69, s68, {PF0}")
    def pf_group():
        return [f"buffer_load_dword v{vPF+1}, v{vPF}, s[64:67], s69 offen", f"s_add_u32 s69, s69, s68"]
    a(f"s_mul_i32 s{sSEC}, s{sNT}, 52")
    a(f"s_lshr_b32 s{sSEC}, s{sSEC}, 8")
    a(f"s_mul_i32 s{sTMP}, s{sSEC}, 5")
    a(f"s_sub_u32 s{sFB}, s{sNT}, s{sTMP}")
    a(f"s_lshl_b32 s{sFB}, s{sFB}, 7")
    a(f"s_lshl_b32 s{sTMP}, s{sWN}, 6")
    a(f"s_add_u32 s{sFB}, s{sFB}, s{sTMP}")
    a(f"s_cmp_eq_u32 s{sSEC}, 2")
    a("s_cbranch_scc1 K1_VPREP")
    a(f"s_cmp_eq_u32 s{sSEC}, 0")
    a(f"s_cselect_b32 s{sSC}, {f2u(QSCALE):#x}, 1.0")
    a(f"s_mov_b32 s{sSC+1}, s{sSC}")
    a(f"s_mov_b32 s{sTMP}, {KV_HEAD}")
    a(f"s_cselect_b32 s{sHS}, {Q_HEAD}, s{sTMP}")
    a(f"s_mov_b32 s{sTMP}, {KV_CH}")
    a(f"s_cselect_b32 s{sTMP2}, {Q_CH}, s{sTMP}")
    a(f"s_mul_i32 s{sEO}, s{sMT}, s{sTMP2}")
    a(f"s_mul_i32 s{sTMP2}, s{sBR}, {QB_OFF - QA_OFF}")
    a(f"s_add_u32 s{sTMP2}, s{sTMP2}, {QA_OFF}")
    a(f"s_mul_i32 s{sTMP3}, s{sBR}, {KVB_OFF - KVA_OFF}")
    a(f"s_cmp_eq_u32 s{sSEC}, 0")
    a(f"s_cselect_b32 s{sTMP2}, s{sTMP2}, s{sTMP3}")
    a(f"s_add_u32 s{sEO}, s{sEO}, s{sTMP2}")
    a(f"s_mul_i32 s{sTMP}, s{sWM}, 2560")
    a(f"s_add_u32 s{sEO}, s{sEO}, s{sTMP}")
    a(f"s_lshr_b32 s{sTMP}, s{sFB}, 2")
    a(f"v_lshrrev_b32 v{vT+6}, 5, v{vLANE}")
    a(f"v_add_u32 v{vT+6}, s{sTMP}, v{vT+6}")
    a(f"v_and_b32 v{vT+7}, 31, v{vLANE}")
    a(f"v_lshlrev_b32 v{vT+7}, 3, v{vT+7}")
    a(f"v_mov_b32 v{vT+8}, 0x43120")
    for e in range(8):
        a(f"v_add_u32 v{vT}, {2*e}, v{vT+6}")
        a(f"v_mul_u32_u24 v{vT+1}, 52429, v{vT}")
        a(f"v_lshrrev_b32 v{vT+1}, 18, v{vT+1}")
        a(f"v_mul_u32_u24 v{vT+2}, 5, v{vT+1}")
        a(f"v_sub_u32 v{vT+2}, v{vT}, v{vT+2}")
        a(f"v_lshlrev_b32 v{vT+2}, 2, v{vT+2}")
        a(f"v_bfe_u32 v{vT+2}, v{vT+8}, v{vT+2}, 4")
        a(f"v_lshl_add_u32 v{vT+2}, v{vT+2}, 8, v{vT+7}")
        a(f"v_mad_u32_u24 v{vEO+e}, v{vT+1}, s{sHS}, v{vT+2}")
    a(f"v_and_b32 v{vT}, 1, v{vLANE}")
    a(f"v_cmp_eq_u32 vcc, 0, v{vT}")
    a(f"v_lshlrev_b32 v{vT}, 3, v{vT}")
    a("s_nop 0")
    a("s_mov_b64 s[60:61], vcc")
    for p in range(4):
        a(f"v_cndmask_b32 v{vEO+8+p}, v{vEO+2*p+1}, v{vEO+2*p}, vcc")
        a(f"v_sub_u32 v{vEO+8+p}, v{vEO+8+p}, v{vT}")
    a("s_branch K1_T")
    a.lab("K1_VPREP")
    a(f"s_mul_i32 s{sEO}, s{sMT}, {KV_CH}")
    a(f"s_mul_i32 s{sTMP}, s{sBR}, {KVB_OFF - KVA_OFF}")
    a(f"s_add_u32 s{sEO}, s{sEO}, s{sTMP}")
    a(f"s_mul_i32 s{sTMP}, s{sWM}, {4*640}")
    a(f"s_add_u32 s{sEO}, s{sEO}, s{sTMP}")
    a(f"s_add_u32 s{sEO}, s{sEO}, 10240")
    a(f"s_mov_b32 s{sHS}, {KV_HEAD}")
    for bl in range(2):
        a(f"s_add_u32 s{sTMP}, s{sFB}, {32*bl}")
        a(f"v_and_b32 v{vT}, 31, v{vLANE}")
        a(f"v_add_u32 v{vT}, s{sTMP}, v{vT}")
        a(f"v_mul_u32_u24 v{vT+1}, 52429, v{vT}")
        a(f"v_lshrrev_b32 v{vT+1}, 20, v{vT+1}")
        a(f"v_mul_u32_u24 v{vT+2}, 20, v{vT+1}")
        a(f"v_sub_u32 v{vT+2}, v{vT}, v{vT+2}")
        a(f"v_lshrrev_b32 v{vT+3}, 5, v{vLANE}")
        a(f"v_mul_u32_u24 v{vT+3}, 320, v{vT+3}")
        a(f"v_lshl_add_u32 v{vT+3}, v{vT+2}, 4, v{vT+3}")
        a(f"v_mad_u32_u24 v{vEO+bl}, v{vT+1}, s{sHS}, v{vT+3}")
    a("s_branch K1_C")

    def variant(tag):
        a.lab(f"K1_{tag}")
        def reads(st, ph):
            out = []
            if "k1noread" in OPT: return ["s_nop 0"] * 12
            for q in range(2):
                kk = 2 * ph + q
                for j in range(2):
                    r = vXF + st * 16 + (q * 2 + j) * 4
                    out.append(f"ds_read_b128 v[{r}:{r+3}], v{vXA+kk} offset:{j*4096}")
                    r = vWF + st * 16 + (q * 2 + j) * 4
                    out.append(f"ds_read_b64_tr_b16 v[{r}:{r+1}], v{vWA+j} offset:{kk*4096}")
                    out.append(f"ds_read_b64_tr_b16 v[{r+2}:{r+3}], v{vWA+j} offset:{kk*4096+1024}")
            return out
        def mfmas(st, zero=False):
            out = []
            if "k1nomfma" in OPT: return ["s_nop 0"] * 8
            for q in range(2):
                for bl in range(2):
                    for mb in range(2):
                        acc = vACC + (bl * 2 + mb) * 16
                        xf = f"v[{vXF+st*16+(q*2+mb)*4}:{vXF+st*16+(q*2+mb)*4+3}]"
                        wf = f"v[{vWF+st*16+(q*2+bl)*4}:{vWF+st*16+(q*2+bl)*4+3}]"
                        c = "0" if (zero and q == 0) else f"v[{acc}:{acc+15}]"
                        if tag == "T":
                            out.append(f"v_mfma_f32_32x32x16_bf16 v[{acc}:{acc+15}], {wf}, {xf}, {c}")
                        else:
                            out.append(f"v_mfma_f32_32x32x16_bf16 v[{acc}:{acc+15}], {xf}, {wf}, {c}")
            return out
        def setaddr(sreg):
            return [f"v_add_u32 v{vXA+i}, s{sreg}, v{vXR+i}" for i in range(4)] + [f"v_add_u32 v{vWA+i}, s{sreg}, v{vWR+i}" for i in range(2)]
        def weave(mf, extras, upto=None):
            n = upto or len(mf); m = len(extras)
            k = 0
            for i, x in enumerate(mf):
                a(x)
                tgt = min(m, ((i + 1) * m + n - 1) // n)
                while k < tgt:
                    for y in extras[k]: a(y)
                    k += 1
        def mix(rd, dm, tail):
            ex = []
            nd = len(dm)
            for i, r in enumerate(rd):
                ex.append([r])
                if nd == 3 and i % 4 == 3: ex.append(dm[i // 4])
                if nd == 6 and i % 2 == 1: ex.append(dm[i // 2])
            return ex + tail
        def phaseA(zero, dm):
            ring = [[f"s_add_u32 s{sRD}, s{sRD}, {K1_BUF}", f"s_cmp_eq_u32 s{sRD}, {K1_LDS}", f"s_cselect_b32 s{sRD}, 0, s{sRD}"]]
            mf = mfmas(0, zero)
            weave(mf[:7], mix(reads(1, 1), dm, ring), upto=6)
            return mf[7:]
        a(f"s_mov_b32 s{sWRB}, {K1_BUF}")
        for g in dma_list(sWRB):
            for x in g: a(x)
        a(f"s_mov_b32 s{sWRB}, {2*K1_BUF}")
        NP0 = (5 - PF0) if PF else 0
        for i in range(NP0):
            for x in pf_group(): a(x)
        SL = "slice" in OPT
        def slice_groups():
            pre = [f"s_lshr_b32 s70, s2, 3", f"s_lshl_b32 s70, s70, 2", f"s_and_b32 s71, s2, 3", f"s_add_u32 s70, s70, s71",
                   f"s_lshl_b32 s70, s70, 3", f"s_add_u32 s70, s70, s{sW}", f"s_lshl_b32 s70, s70, 10", f"v_lshlrev_b32 v{vPF}, 4, v{vLANE}"]
            g = []
            for i in range(3):
                g.append([f"s_add_u32 s71, s70, {i*960*1024}",
                          f"buffer_load_dwordx4 v[{vPF+4}:{vPF+7}], v{vPF}, s[{SW}:{SW+3}], s71 offen"])
            g.append([f"s_mul_i32 s71, s{sBR}, {1280*1024}", f"s_add_u32 s71, s71, s70",
                      f"buffer_load_dwordx4 v[{vPF+4}:{vPF+7}], v{vPF}, s[{SX}:{SX+3}], s71 offen"])
            g.append([f"s_add_u32 s71, s71, {960*1024}", f"s_cmp_lt_u32 s70, {320*1024}", f"s_cselect_b32 s71, s71, s70",
                      f"buffer_load_dwordx4 v[{vPF+4}:{vPF+7}], v{vPF}, s[{SX}:{SX+3}], s71 offen"])
            return pre, g
        NP = 1 if PF else 0
        if SL and 'sliceearly' in OPT:
            pre, g = slice_groups()
            for x in pre: a(x)
            for gg in g:
                for x in gg: a(x)
            NP0 += 5
        stamp(a, 2)
        a(f"s_waitcnt vmcnt({6+NP0})")
        a("s_barrier")
        stamp(a, 3)
        a(f"s_mov_b32 s{sRD}, 0")
        for x in setaddr(sRD): a(x)
        for r in reads(0, 0): a(r)
        a(f"s_mov_b32 s{sI}, 0")
        adv = [f"s_add_u32 s{sWRB}, s{sWRB}, {K1_BUF}", f"s_cmp_eq_u32 s{sWRB}, {K1_LDS}", f"s_cselect_b32 s{sWRB}, 0, s{sWRB}"]
        a("s_waitcnt lgkmcnt(0)")
        LATE = SL and 'sliceearly' not in OPT
        if LATE:
            pre, g = slice_groups()
            for x in pre: a(x)
        last = phaseA(True, dma_list(sWRB, True))
        if LATE:
            for gg in g:
                for x in gg: a(x)
        for x in last: a(x)
        a(f"s_waitcnt vmcnt({6+NP0+(5 if LATE else 0)}) lgkmcnt(0)")
        a(f"s_branch K1_{tag}_WB")
        a.lab(f"K1_{tag}_LOOP")
        a("s_waitcnt lgkmcnt(0)")
        a(f"s_cmp_ge_u32 s{sI}, 8")
        a(f"s_cbranch_scc1 K1_{tag}_AND")
        last = phaseA(False, [] if "k1allc" in OPT else dma_list(sWRB, True)[3:])
        for x in last: a(x)
        a.lab(f"K1_{tag}_B")
        if LATE:
            a(f"s_cmp_eq_u32 s{sI}, 1")
            a(f"s_cbranch_scc1 K1_{tag}_B1")
        a(f"s_waitcnt vmcnt({6+NP}) lgkmcnt(0)")
        a.lab(f"K1_{tag}_WB")
        if "k1stamp" in OPT:
            a("s_memtime s[78:79]")
        if "k1nobar" not in OPT: a("s_barrier")
        if "k1stamp" in OPT:
            a("s_memtime s[74:75]")
            a("s_waitcnt lgkmcnt(0)")
            a(f"s_mov_b32 s79, m0")
            a(f"s_mov_b32 m0, s{sI}")
            a("s_nop 0")
            a(f"v_writelane_b32 v179, s74, m0")
            a(f"s_add_u32 m0, m0, 16")
            a("s_nop 0")
            a(f"v_writelane_b32 v179, s78, m0")
            a(f"s_mov_b32 m0, s79")
        mf = mfmas(1)
        a(mf[0])
        for x in setaddr(sRD): a(x)
        for x in adv: a(x)
        rd = reads(0, 0)
        a(f"s_cmp_ge_u32 s{sI}, 7")
        a(f"s_cbranch_scc1 K1_{tag}_ND")
        cnt = [[f"s_add_u32 s{sI}, s{sI}, 1"]]
        weave(mf[1:], mix(rd, dma_list(sWRB, True)[:3], ([pf_group()] if PF else []) + cnt), upto=6)
        a(f"s_branch K1_{tag}_LOOP")
        a.lab(f"K1_{tag}_ND")
        weave(mf[1:], mix(rd, [], cnt), upto=6)
        a(f"s_cmp_lt_u32 s{sI}, 10")
        a(f"s_cbranch_scc1 K1_{tag}_LOOP")
        stamp(a, 4)
        a("s_nop 7")
        a("s_nop 3")
        n = 0
        for bl in range(2):
            for mb in range(2):
                acc = vACC + (bl * 2 + mb) * 16
                if tag == "T" and "t8" in OPT:
                    for i in range(4):
                        q = acc + 4 * i
                        t = vXF + (n % 16) * 2; n += 1
                        a(f"v_pk_mul_f32 v[{q}:{q+1}], v[{q}:{q+1}], s[{sSC}:{sSC+1}]")
                        a(f"v_pk_mul_f32 v[{q+2}:{q+3}], v[{q+2}:{q+3}], s[{sSC}:{sSC+1}]")
                        a(f"v_cvt_pk_bf16_f32 v{t}, v{q}, v{q+1}")
                        a(f"v_cvt_pk_bf16_f32 v{t+1}, v{q+2}, v{q+3}")
                        a(f"buffer_store_dwordx2 v[{t}:{t+1}], v{vEO + 4*bl + i}, s[{SWS}:{SWS+3}], s{sEO} offen offset:{mb*1280}{STORE_FLAGS}")
                elif tag == "T":
                    t = vXF + (n % 4) * 16; n += 1
                    for i in range(4):
                        q = acc + 4 * i
                        a(f"v_pk_mul_f32 v[{q}:{q+1}], v[{q}:{q+1}], s[{sSC}:{sSC+1}]")
                        a(f"v_pk_mul_f32 v[{q+2}:{q+3}], v[{q+2}:{q+3}], s[{sSC}:{sSC+1}]")
                        a(f"v_cvt_pk_bf16_f32 v{t+2*i}, v{q}, v{q+1}")
                        a(f"v_cvt_pk_bf16_f32 v{t+2*i+1}, v{q+2}, v{q+3}")
                    DP = "quad_perm:[1,0,3,2] row_mask:0xf bank_mask:0xf"
                    a("s_mov_b64 vcc, s[60:61]")
                    for pr in range(2):
                        A0 = t + 4 * pr; B0 = A0 + 2; o = t + 8 + 4 * pr
                        a(f"v_cndmask_b32_dpp v{o}, v{B0}, v{A0}, vcc {DP}")
                        a(f"v_cndmask_b32_dpp v{o+1}, v{B0+1}, v{A0+1}, vcc {DP}")
                    a("s_not_b64 vcc, vcc")
                    for pr in range(2):
                        A0 = t + 4 * pr; B0 = A0 + 2; o = t + 8 + 4 * pr
                        a(f"v_cndmask_b32_dpp v{o+2}, v{A0}, v{B0}, vcc {DP}")
                        a(f"v_cndmask_b32_dpp v{o+3}, v{A0+1}, v{B0+1}, vcc {DP}")
                    for pr in range(2):
                        o = t + 8 + 4 * pr
                        a(f"buffer_store_dwordx4 v[{o}:{o+3}], v{vEO + 8 + 2*bl + pr}, s[{SWS}:{SWS+3}], s{sEO} offen offset:{mb*1280}{STORE_FLAGS}")
                else:
                    for g2 in range(2):
                        q = acc + 8 * g2
                        t = vXF + (n % 8) * 4; n += 1
                        for i in range(4):
                            a(f"v_cvt_pk_bf16_f32 v{t+i}, v{q+2*i}, v{q+2*i+1}")
                        a(f"buffer_store_dwordx4 v[{t}:{t+3}], v{vEO+bl}, s[{SWS}:{SWS+3}], s{sEO} offen offset:{(2*mb+g2)*640}{STORE_FLAGS}")
        a("s_branch K1_FIN")
        if LATE:
            a.lab(f"K1_{tag}_B1")
            a(f"s_waitcnt vmcnt({6+NP+5}) lgkmcnt(0)")
            a(f"s_branch K1_{tag}_WB")
        a.lab(f"K1_{tag}_AND")
        last = phaseA(False, [])
        for x in last: a(x)
        a("s_waitcnt vmcnt(0) lgkmcnt(0)")
        a(f"s_branch K1_{tag}_WB")
    variant("T")
    variant("C")

    GPF0 = optval("gpf0", 3)
    a.lab("K1_GATE")
    a("s_waitcnt lgkmcnt(0)")
    srd(a, SX, 8, 9, 2048 * 1280)
    srd(a, SG, 6, 7, 1280)
    srd(a, SWS, 4, 5, WS_USED)
    if "gmall" in OPT:
        a("s_load_dwordx2 s[58:59], s[0:1], 8")
        a("s_load_dwordx2 s[70:71], s[0:1], 32")
        a(f"s_sub_u32 s{sTMP}, s2, 240")
        a(f"s_lshl_b32 s{sTMP}, s{sTMP}, 3")
        a(f"s_add_u32 s{sTMP}, s{sTMP}, s{sW}")
        a(f"v_lshlrev_b32 v{vT+1}, 4, v{vLANE}")
        a(f"v_lshrrev_b32 v{vT+2}, 3, v{vLANE}")
        a(f"s_lshl_b32 s{sTMP2}, s{sTMP}, 4")
        a(f"v_add_u32 v{vT+2}, s{sTMP2}, v{vT+2}")
        a(f"v_mul_u32_u24 v{vT+2}, 1280, v{vT+2}")
        a(f"v_and_b32 v{vT+3}, 7, v{vLANE}")
        a(f"v_lshl_add_u32 v{vT+2}, v{vT+3}, 4, v{vT+2}")
        a("s_waitcnt lgkmcnt(0)")
        srd(a, 60, 58, 59, 640 * 3840)
        srd(a, 64, 70, 71, 640 * 3840)
        a(f"s_lshl_b32 s72, s{sTMP}, 10")
        a(f"s_add_u32 s73, s72, {128*1024}")
        a(f"s_cmp_ge_u32 s{sTMP}, 112")
        a(f"s_cselect_b32 s73, s72, s73")
        a(f"s_mov_b32 s74, 0")
        for st in range(optval("mall0", 1), 10):
            wo = st * 64 * 3840
            a(f"s_add_u32 s76, s72, {wo}")
            a(f"buffer_load_dwordx4 v[{vXF}:{vXF+3}], v{vT+1}, s[60:63], s76 offen")
            a(f"buffer_load_dwordx4 v[{vXF+4}:{vXF+7}], v{vT+1}, s[64:67], s76 offen")
            a(f"s_add_u32 s76, s73, {wo}")
            a(f"buffer_load_dwordx4 v[{vXF+8}:{vXF+11}], v{vT+1}, s[60:63], s76 offen")
            a(f"buffer_load_dwordx4 v[{vXF+12}:{vXF+15}], v{vT+1}, s[64:67], s76 offen")
            a(f"s_mov_b32 s76, {st*128}")
            a(f"buffer_load_dwordx4 v[{vXF+16}:{vXF+19}], v{vT+2}, s[{SX}:{SX+3}], s76 offen")
            a(f"buffer_load_dwordx4 v[{vXF+20}:{vXF+23}], v{vT+2}, s[{SX}:{SX+3}], s76 offen offset:0" if False else
              f"s_add_u32 s76, s76, {8*1280}")
            a(f"buffer_load_dwordx4 v[{vXF+20}:{vXF+23}], v{vT+2}, s[{SX}:{SX+3}], s76 offen")
            a("s_waitcnt vmcnt(36)")
        a("s_waitcnt vmcnt(0)")
    TS = optval("tlbin", 0)
    if TS:
        srd(a, SW, 10, 11, 640 * 3840)
        sh = {4: 12, 16: 14, 64: 16}[TS]
        a(f"s_lshr_b32 s{sTMP}, s2, 3")
        a(f"s_and_b32 s{sTMP}, s{sTMP}, 1")
        a(f"s_lshl_b32 s{sTMP}, s{sTMP}, 3")
        a(f"s_add_u32 s{sTMP}, s{sTMP}, s{sW}")
        a(f"s_lshl_b32 s{sTMP}, s{sTMP}, 6")
        a(f"v_add_u32 v{vT+1}, s{sTMP}, v{vLANE}")
        a(f"v_lshlrev_b32 v{vT+1}, {sh}, v{vT+1}")
        n = max(1, -(-2621440 // ((1024) << sh)))
        for i in range(n):
            a(f"s_mov_b32 s{sTMP2}, {i * (1024 << sh)}")
            a(f"buffer_load_dword v{vPF}, v{vT+1}, s[{SW}:{SW+3}], s{sTMP2} offen")
            a(f"buffer_load_dword v{vPF+1}, v{vT+1}, s[{SX}:{SX+3}], s{sTMP2} offen")
    if "gpf" in OPT:
        srd(a, SW, 10, 11, 640 * 3840)
        a(f"s_lshr_b32 s{sTMP}, s2, 3")
        a(f"s_and_b32 s{sTMP}, s{sTMP}, 1")
        a(f"v_cmp_le_u32 vcc, 30, v{vLANE}")
        a(f"v_mov_b32 v{vT+1}, 0")
        a(f"v_mov_b32 v{vT+2}, {3840 - 30*128}")
        a(f"v_cndmask_b32 v{vT+1}, v{vT+1}, v{vT+2}, vcc")
        a(f"v_min_u32 v{vT+2}, 59, v{vLANE}")
        a(f"v_lshl_add_u32 v{vT+1}, v{vT+2}, 7, v{vT+1}")
        a(f"s_lshl_b32 s{sTMP2}, s{sTMP}, 5")
        a(f"s_lshl_b32 s{sTMP3}, s{sW}, 2")
        a(f"s_add_u32 s{sTMP2}, s{sTMP2}, s{sTMP3}")
        a(f"s_add_u32 s{sTMP2}, s{sTMP2}, {64*GPF0}")
        a(f"s_mul_i32 s{sTMP2}, s{sTMP2}, 3840")
        a(f"s_and_b32 s{sTMP3}, s2, 3")
        a(f"s_lshl_b32 s{sTMP3}, s{sTMP3}, 9")
        a(f"s_lshl_b32 s{sTMP}, s{sTMP}, 8")
        a(f"s_add_u32 s{sTMP3}, s{sTMP3}, s{sTMP}")
        a(f"s_and_b32 s{sTMP}, s{sW}, 3")
        a(f"s_lshl_b32 s{sTMP}, s{sTMP}, 6")
        a(f"s_add_u32 s{sTMP3}, s{sTMP3}, s{sTMP}")
        a(f"v_add_u32 v{vT+2}, s{sTMP3}, v{vLANE}")
        a(f"v_mul_u32_u24 v{vT+2}, 1280, v{vT+2}")
        a(f"s_mov_b32 s{sTMP3}, {128*GPF0}")
        for st in range(GPF0, 10):
            a(f"buffer_load_dword v{vPF}, v{vT+1}, s[{SW}:{SW+3}], s{sTMP2} offen")
            a(f"s_add_u32 s{sTMP}, s{sTMP2}, {2*3840}")
            a(f"buffer_load_dword v{vPF+1}, v{vT+1}, s[{SW}:{SW+3}], s{sTMP} offen")
            a(f"buffer_load_dword v{vPF+2}, v{vT+2}, s[{SX}:{SX+3}], s{sTMP3} offen")
            a(f"s_add_u32 s{sTMP2}, s{sTMP2}, {64*3840}")
            a(f"s_add_u32 s{sTMP3}, s{sTMP3}, 128")
    if "notlb" not in OPT:
        a(f"v_lshlrev_b32 v{vT+1}, 16, v{vLANE}")
        a(f"s_lshl_b32 s{sTMP}, s{sW}, 22")
        a(f"s_cmp_lt_u32 s{sW}, 6")
        a(f"s_cbranch_scc0 K1_NOTLB")
        a(f"buffer_load_dword v{vPF}, v{vT+1}, s[{SWS}:{SWS+3}], s{sTMP} offen")
        a.lab("K1_NOTLB")
    if "nocodepf" not in OPT:
        a(f"s_getpc_b64 s[78:79]")
        a.lab("K1_PC")
        a(f"s_add_u32 s78, s78, k2_attn_kernel-K1_PC")
        a(f"s_addc_u32 s79, s79, 0")
        a(f"v_lshlrev_b32 v{vT+1}, 7, v{vLANE}")
        a(f"s_lshl_b32 s{sTMP}, s{sW}, 13")
        a(f"v_add_u32 v{vT+1}, s{sTMP}, v{vT+1}")
        a(f"s_cmp_ge_u32 s{sW}, K2CODE_WAVES")
        a("s_cbranch_scc1 K1_NOCPF")
        a(f"global_load_dword v{vPF+2}, v{vT+1}, s[78:79]")
        a.lab("K1_NOCPF")
    a(f"s_cmp_lg_u32 s2, 240")
    a("s_cbranch_scc1 K1_NOZ")
    a(f"s_cmp_ge_u32 s{sW}, 4")
    a("s_cbranch_scc1 K1_NOZ")
    a(f"v_lshlrev_b32 v{vT+1}, 7, v{vLANE}")
    a(f"v_mov_b32 v{vT+2}, 0")
    a(f"s_lshl_b32 s{sTMP}, s{sW}, 13")
    a(f"s_add_u32 s{sTMP}, s{sTMP}, {FL_OFF}")
    a(f"buffer_store_dword v{vT+2}, v{vT+1}, s[{SWS}:{SWS+3}], s{sTMP} offen")
    a.lab("K1_NOZ")
    a(f"s_sub_u32 s{sTMP}, s2, 240")
    a(f"s_lshl_b32 s{sTMP}, s{sTMP}, 3")
    a(f"s_add_u32 s{sTMP}, s{sTMP}, s{sW}")
    a(f"s_cmp_ge_u32 s{sTMP}, 120")
    a("s_cbranch_scc1 K1_GATE2")
    a(f"s_mul_i32 s{sTMP2}, s{sTMP}, 171")
    a(f"s_lshr_b32 s{sTMP2}, s{sTMP2}, 9")
    a(f"s_mul_i32 s{sTMP3}, s{sTMP2}, 3")
    a(f"s_sub_u32 s{sTMP3}, s{sTMP}, s{sTMP3}")
    a("s_load_dwordx2 s[58:59], s[0:1], 16")
    a("s_load_dwordx2 s[70:71], s[0:1], 40")
    a(f"s_mul_i32 s{sD}, s{sTMP3}, 448")
    a(f"v_lshrrev_b32 v{vT+1}, 5, v{vLANE}")
    a(f"v_mul_u32_u24 v{vT+1}, 1280, v{vT+1}")
    a(f"v_and_b32 v{vT+2}, 31, v{vLANE}")
    a(f"v_lshl_add_u32 v{vT+1}, v{vT+2}, 4, v{vT+1}")
    a(f"v_add_u32 v{vT+1}, s{sD}, v{vT+1}")
    a(f"s_lshl_b32 s{sEO}, s{sW}, 14")
    a("s_waitcnt lgkmcnt(0)")
    srd(a, 60, 58, 59, 640 * 1280)
    srd(a, 64, 70, 71, 640 * 1280)
    for g in range(4):
        a(f"s_lshl_b32 s72, s{sTMP2}, 2")
        a(f"s_add_u32 s72, s72, {g}")
        a(f"s_mul_i32 s73, s72, 205")
        a(f"s_lshr_b32 s73, s73, 10")
        a(f"s_mul_i32 s74, s73, 5")
        a(f"s_sub_u32 s74, s72, s74")
        a(f"s_mul_i32 s73, s73, 20")
        for quad in range(2):
            a(f"s_and_b32 s76, s74, 1")
            a(f"s_lshl_b32 s76, s76, 3")
            a(f"s_add_u32 s76, s76, {4*quad}")
            a(f"s_lshr_b32 s77, s74, 1")
            a(f"s_cmp_eq_u32 s74, 4")
            a(f"s_cselect_b32 s76, 16, s76")
            a(f"s_cselect_b32 s77, {quad}, s77")
            a(f"s_add_u32 s76, s76, s73")
            a(f"s_mul_i32 s76, s76, 1280")
            a(f"s_cmp_eq_u32 s77, 0")
            a(f"s_cbranch_scc0 K1_WB{g}{quad}")
            for r2 in range(2):
                a(f"s_add_u32 m0, s{sEO}, {(g*4 + quad*2 + r2)*1024}")
                a(f"s_add_u32 s{sD}, s76, {r2*2*1280}")
                a(f"buffer_load_dwordx4 v{vT+1}, s[60:63], s{sD} offen lds")
            a(f"s_branch K1_WD{g}{quad}")
            a.lab(f"K1_WB{g}{quad}")
            for r2 in range(2):
                a(f"s_add_u32 m0, s{sEO}, {(g*4 + quad*2 + r2)*1024}")
                a(f"s_add_u32 s{sD}, s76, {r2*2*1280}")
                a(f"buffer_load_dwordx4 v{vT+1}, s[64:67], s{sD} offen lds")
            a.lab(f"K1_WD{g}{quad}")
    a(f"v_lshrrev_b32 v{vT+2}, 4, v{vLANE}")
    a(f"v_bfe_u32 v{vT+3}, v{vLANE}, 2, 2")
    a(f"v_lshl_add_u32 v{vT+2}, v{vT+2}, 3, v{vT+3}")
    a(f"v_lshlrev_b32 v{vT+2}, 9, v{vT+2}")
    a(f"v_and_b32 v{vT+3}, 3, v{vLANE}")
    a(f"v_lshl_add_u32 v{vT+2}, v{vT+3}, 3, v{vT+2}")
    a(f"v_add_u32 v{vT+2}, s{sEO}, v{vT+2}")
    a(f"v_lshlrev_b32 v{vT+3}, 4, v{vLANE}")
    a("s_waitcnt vmcnt(0)")
    for j in range(14):
        a(f"ds_read_b64_tr_b16 v[{vXF+4*j}:{vXF+4*j+1}], v{vT+2} offset:{j*32}")
        a(f"ds_read_b64_tr_b16 v[{vXF+4*j+2}:{vXF+4*j+3}], v{vT+2} offset:{j*32+2048}")
    a(f"s_mul_i32 s{sTMP3}, s{sTMP3}, 14")
    a("s_waitcnt lgkmcnt(0)")
    for j in range(14):
        a(f"s_add_u32 s{sTMP4}, s{sTMP3}, {j}")
        a(f"s_cmp_ge_u32 s{sTMP4}, 40")
        a("s_cbranch_scc1 K1_GATE2")
        a(f"s_mul_i32 s{sD}, s{sTMP4}, 52")
        a(f"s_lshr_b32 s{sD}, s{sD}, 8")
        a(f"s_mul_i32 s{sEO}, s{sD}, 5")
        a(f"s_sub_u32 s{sEO}, s{sTMP4}, s{sEO}")
        a(f"s_mul_i32 s{sD}, s{sD}, 40")
        a(f"s_add_u32 s{sD}, s{sD}, s{sTMP2}")
        a(f"s_mul_i32 s{sD}, s{sD}, 5")
        a(f"s_add_u32 s{sD}, s{sD}, s{sEO}")
        a(f"s_lshl_b32 s{sD}, s{sD}, 10")
        a(f"s_add_u32 s{sD}, s{sD}, {WT_OFF}")
        a(f"buffer_store_dwordx4 v[{vXF+4*j}:{vXF+4*j+3}], v{vT+3}, s[{SWS}:{SWS+3}], s{sD} offen")
    a.lab("K1_GATE2")
    a("s_nop 1")
    a(f"s_sub_u32 s{sTMP}, s2, 240")
    a(f"s_lshl_b32 s{sTMP}, s{sTMP}, 7")
    a(f"s_lshl_b32 s{sTMP2}, s{sW}, 4")
    a(f"s_add_u32 s{sI}, s{sTMP}, s{sTMP2}")
    a(f"v_lshlrev_b32 v{vT}, 2, v{vLANE}")
    for j in range(5):
        a(f"buffer_load_dword v{vT+7+j}, v{vT}, s[{SG}:{SG+3}], 0 offen offset:{j*256}")
    a(f"s_mul_i32 s{sTMP4}, s{sI}, 1280")
    for r in range(16):
        for j in range(5):
            a(f"buffer_load_dword v{vXF+r*5+j}, v{vT}, s[{SX}:{SX+3}], s{sTMP4} offen offset:{j*256}")
        a(f"s_add_u32 s{sTMP4}, s{sTMP4}, 1280")
        if r == 9: a("s_waitcnt vmcnt(20)")
    a("s_waitcnt vmcnt(0)")
    gw = vT + 7
    for j in range(5):
        a(f"v_lshlrev_b32 v{vT+2+j}, 16, v{gw+j}")
        a(f"v_and_b32 v{gw+j}, 0xffff0000, v{gw+j}")
    vG = 112
    for r in range(16):
        a(f"v_mov_b32 v{vG+r}, 0")
        for j in range(5):
            x = vXF + r * 5 + j
            a(f"v_lshlrev_b32 v{vT}, 16, v{x}")
            a(f"v_and_b32 v{x}, 0xffff0000, v{x}")
            a(f"v_fmac_f32 v{vG+r}, v{vT}, v{vT+2+j}")
            a(f"v_fmac_f32 v{vG+r}, v{x}, v{gw+j}")
    for rr in (8, 4, 2, 1):
        a("s_nop 1")
        for r in range(16):
            a(f"v_add_f32_dpp v{vG+r}, v{vG+r}, v{vG+r} row_ror:{rr} row_mask:0xf bank_mask:0xf")
    for r in range(16):
        a(f"v_mov_b32 v{vG+16+r}, v{vG+r}")
    a("s_nop 1")
    for r in range(16):
        a(f"v_permlane32_swap_b32 v{vG+r}, v{vG+16+r}")
    a("s_nop 1")
    for r in range(16):
        a(f"v_add_f32 v{vG+r}, v{vG+r}, v{vG+16+r}")
        a(f"v_mov_b32 v{vG+16+r}, v{vG+r}")
    a("s_nop 1")
    for r in range(16):
        a(f"v_permlane16_swap_b32 v{vG+r}, v{vG+16+r}")
    a("s_nop 1")
    for r in range(16):
        a(f"v_add_f32 v{vG+r}, v{vG+r}, v{vG+16+r}")
    a(f"v_and_b32 v{vT}, 15, v{vLANE}")
    a(f"v_mov_b32 v{vT+1}, v{vG}")
    for r in range(1, 16):
        a(f"v_cmp_eq_u32 vcc, {r}, v{vT}")
        a("s_nop 1")
        a(f"v_cndmask_b32 v{vT+1}, v{vT+1}, v{vG+r}, vcc")
    a(f"v_mul_f32 v{vT+1}, {f2u(-1.4426950408889634):#x}, v{vT+1}")
    a(f"v_exp_f32 v{vT+1}, v{vT+1}")
    a("s_nop 0")
    a(f"v_add_f32 v{vT+1}, 1.0, v{vT+1}")
    a(f"v_rcp_f32 v{vT+1}, v{vT+1}")
    a(f"s_lshl_b32 s{sTMP}, s{sI}, 2")
    a(f"s_add_u32 s{sTMP}, s{sTMP}, {G_OFF}")
    a(f"v_lshlrev_b32 v{vT}, 2, v{vT}")
    a("s_mov_b64 exec, 0xffff")
    a(f"buffer_store_dword v{vT+1}, v{vT}, s[{SWS}:{SWS+3}], s{sTMP} offen")
    if PROF:
        a("s_mov_b64 exec, -1")
        a("s_waitcnt vmcnt(0)")
        for i in range(1, 7): stamp(a, i)
        stamp_flush(a, 0, 7, SWS, sW, vT)
    a("s_branch K1_END")
    a.lab("K1_FIN")
    if "dbgtime" in OPT:
        a("s_cmp_lg_u32 s2, 1")
        a("s_cbranch_scc1 K1_DBGX")
        a("s_cmp_lg_u32 s32, 0")
        a("s_cbranch_scc1 K1_DBGX")
        a("s_load_dwordx2 s[92:93], s[0:1], 64")
        a("s_waitcnt vmcnt(0)")
        a("s_memrealtime s[94:95]")
        a("s_memtime s[96:97]")
        a("s_waitcnt lgkmcnt(0)")
        srd(a, 84, 92, 93, 256)
        a("s_sub_u32 s96, s96, s88")
        a("s_sub_u32 s94, s94, s90")
        a("s_mov_b64 exec, 1")
        a("v_mov_b32 v24, 0")
        a("v_mov_b32 v20, 111")
        a("v_mov_b32 v21, s96")
        a("v_mov_b32 v22, s94")
        a("v_mov_b32 v23, s90")
        a("buffer_store_dwordx4 v[20:23], v24, s[84:87], 0 offen")
        a("s_mov_b64 exec, -1")
        a.lab("K1_DBGX")
    if "k1stamp" in OPT:
        a(f"s_lshl_b32 s97, s2, 3")
        a(f"s_add_u32 s97, s97, s{sW}")
        a(f"s_lshl_b32 s97, s97, 7")
        a(f"s_add_u32 s97, s97, {PROF_OFF + 3 * 0x100000}")
        a(f"v_lshlrev_b32 v{vT}, 2, v{vLANE}")
        a("s_mov_b64 exec, 0xffffffff")
        a(f"buffer_store_dword v179, v{vT}, s[{SWS}:{SWS+3}], s97 offen")
        a("s_mov_b64 exec, -1")
    stamp(a, 5)
    if PROF: a("s_waitcnt vmcnt(0)")
    stamp(a, 6)
    stamp_flush(a, 0, 7, SWS, sW, vT)
    a.lab("K1_END")
    a("s_endpgm")
    a.lab("K1_TEXT_END")
    return name, NV

K2_LDS = 163840
NEGBIG = -1.0e30

def mask_table():
    vals = []
    for j in range(6):
        for l in range(64):
            c = l & 31; h = l >> 5
            for i in range(4):
                if j < 4:
                    r = j * 4 + i
                    row = (r & 3) + 8 * (r >> 2) + 4 * h
                    diff = c + 16 - row
                else:
                    r = (j - 4) * 4 + i
                    row = (r & 3) + 8 * (r >> 2) + 4 * h
                    diff = c - 16 - row
                ok = 0 <= diff <= 14 and diff % 2 == 0
                vals.append(0 if ok else f2u(NEGBIG))
    return vals

K2_PRIO_TILE = 5
def gen_k2(a):
    FUSE = "nofuse" not in OPT
    name = "k2_attn_kernel"
    kernel_head(a, name)
    SWS = 8
    sW = 12; sHEAD = 13; sQB = 14; sS0 = 15; sT0 = 16; sT1 = 17; sT2 = 18; sT3 = 19
    sC = 20; sPASS = 21; sVM = 22
    sLO = 24
    sGRP = 26; sPR = 27
    sDS = 28; sDG = 29
    sAV = 30
    sQA = 33; sGO = 35
    sDO = 44
    sWL = 49; sWS = 58; sWS0 = 59; sWC = 66; sFAIL = 67
    vLANE = 1; vL16 = 2; vK8 = 3; vVA = 4; vKe = 5; vKo = 6; vK4c = 7
    vT = 8
    vGATE = 16; vVc = 17
    vAKO = 18
    vPFA = 22; vQO = 23
    vQ16 = [24, 28]; vQ8 = [32, 34]
    vQA16 = 36; vQA8 = 40
    vKA = 44; vKB = 52; vV1 = 56; vV2 = 64; vP = 72
    S = [84, 100]; NEG = [116, 132]; O = [148, 164]
    vAK = 180; vAV = 192; vMX = 204; vMY = 220
    vOB = 236; vDUM = 244; vOSA = 245
    NV = 248
    ONES = 0x3f803f80
    vS0, vS1 = S

    a("s_cmp_ge_u32 s2, 256")
    a("s_cbranch_scc1 K2_END")
    stamp(a, 0)
    if "dbgtime" in OPT:
        a("s_memrealtime s[90:91]")
        a("s_memtime s[88:89]")
    a("s_load_dwordx2 s[4:5], s[0:1], 72")
    if FUSE:
        a("s_load_dwordx2 s[60:61], s[0:1], 56")
    a(f"v_and_b32 v{vLANE}, 63, v0")
    a(f"v_lshrrev_b32 v{vT}, 6, v0")
    a(f"s_and_b32 s{sHEAD}, s2, 7")
    a(f"v_readfirstlane_b32 s{sW}, v{vT}")
    a(f"s_lshl_b32 s{sHEAD}, s{sHEAD}, 2")
    a(f"s_lshr_b32 s{sT0}, s2, 6")
    a(f"s_add_u32 s{sHEAD}, s{sHEAD}, s{sT0}")
    a(f"s_lshr_b32 s{sQB}, s2, 3")
    a(f"s_and_b32 s{sQB}, s{sQB}, 7")
    a(f"v_lshlrev_b32 v{vL16}, 4, v{vLANE}")
    a(f"v_and_b32 v{vT}, 31, v{vLANE}")
    a(f"v_lshlrev_b32 v{vK8}, 3, v{vT}")
    a(f"v_lshrrev_b32 v{vT+1}, 5, v{vLANE}")
    a(f"v_lshl_add_u32 v{vQO}, v{vT+1}, 8, v{vK8}")
    a(f"s_lshr_b32 s{sGRP}, s{sW}, 2")
    a(f"s_and_b32 s{sPR}, s{sW}, 3")
    a(f"s_mul_i32 s{sDS}, s{sHEAD}, {KV_HEAD}")
    a(f"s_add_u32 s{sDS}, s{sDS}, {KVB_OFF}")
    for j in range(5):
        a(f"s_add_u32 s{sT0}, s{sW}, {8*j}")
        a(f"s_lshl_b32 s{sDO+j}, s{sT0}, 10")
        a(f"s_cmp_ge_u32 s{sT0}, 20")
        a(f"s_cselect_b32 s{sT1}, {4*KV_CH - 20*1024}, 0")
        a(f"s_add_u32 s{sDO+j}, s{sDO+j}, s{sT1}")
    a(f"s_mul_i32 s{sQA}, s{sHEAD}, {Q_HEAD}")
    a(f"s_lshl_b32 s{sT1}, s{sQB}, 3")
    a(f"s_lshl_b32 s{sT2}, s{sPR}, 1")
    a(f"s_add_u32 s{sT1}, s{sT1}, s{sT2}")
    a(f"s_mul_i32 s{sT1}, s{sT1}, 1280")
    a(f"s_add_u32 s{sQA}, s{sQA}, s{sT1}")
    a(f"s_add_u32 s{sT0}, s{sQA}, {QB_OFF}")
    a(f"s_mov_b32 s{sDG}, 0")
    a("s_waitcnt lgkmcnt(0)")
    srd(a, SWS, 4, 5, WS_USED)
    def dma1(j):
        return [f"s_add_u32 m0, s{sDO+j}, s{sDG}",
                f"s_add_u32 s{sT3}, m0, s{sDS}",
                f"buffer_load_dwordx4 v{vL16}, s[{SWS}:{SWS+3}], s{sT3} offen lds"]
    def qloads(q16, q8, sreg, off):
        return [f"buffer_load_dwordx2 v[{q16}:{q16+1}], v{vQO}, s[{SWS}:{SWS+3}], s{sreg} offen offset:{off}",
                f"buffer_load_dwordx2 v[{q16+2}:{q16+3}], v{vQO}, s[{SWS}:{SWS+3}], s{sreg} offen offset:{off+512}",
                f"buffer_load_dwordx2 v[{q8}:{q8+1}], v{vK8}, s[{SWS}:{SWS+3}], s{sreg} offen offset:{off+1024}"]
    for j in range(5):
        for x in dma1(j): a(x)
    for sg in range(2):
        for x in qloads(vQ16[sg], vQ8[sg], sT0, sg * 1280): a(x)
    a(f"s_add_u32 s{sDG}, s{sDG}, {KV_CH}")
    stamp(a, 1)
    a(f"s_mov_b32 s{sVM}, 0x000fffff")
    a(f"s_mov_b32 s{sVM+1}, 0x000fffff")
    a(f"s_mov_b32 s{sLO}, -1")
    a(f"s_mov_b32 s{sLO+1}, 0")
    a(f"v_and_b32 v{vT}, 31, v{vLANE}")
    a(f"v_lshrrev_b32 v{vT+1}, 5, v{vLANE}")
    a(f"v_mul_u32_u24 v{vVA}, 20, v{vT+1}")
    a(f"v_add_u32 v{vVA}, v{vVA}, v{vT}")
    a(f"v_lshlrev_b32 v{vVA}, 4, v{vVA}")
    for sg in range(2):
        for i in range(0, 16, 2):
            a(f"v_mov_b64 v[{O[sg]+i}:{O[sg]+i+1}], 0")
    a(f"v_mov_b64 v[{vP+4}:{vP+5}], 0")
    a(f"v_mov_b64 v[{vP+6}:{vP+7}], 0")
    a(f"s_lshl_b32 s{sS0}, s{sQB}, 8")
    a(f"s_lshl_b32 s{sT0}, s{sPR}, 6")
    a(f"s_add_u32 s{sS0}, s{sS0}, s{sT0}")
    a(f"s_lshl_b32 s{sT0}, s{sGRP}, 5")
    a(f"s_add_u32 s{sS0}, s{sS0}, s{sT0}")
    a(f"s_mul_i32 s{sT0}, s{sGRP}, 1280")
    a(f"s_add_u32 s{sQA}, s{sQA}, s{sT0}")
    a(f"s_add_u32 s{sQA}, s{sQA}, {QA_OFF}")
    a(f"s_lshl_b32 s{sT0}, s{sHEAD}, 6")
    a(f"s_lshr_b32 s{sT1}, s{sS0}, 5")
    a(f"s_add_u32 s{sT0}, s{sT0}, s{sT1}")
    for k, dT in enumerate((-1, 0, 1)):
        a(f"s_add_i32 s{sT1}, s{sT0}, {dT}")
        a(f"s_ashr_i32 s{sT2}, s{sT1}, 3")
        a(f"s_mul_i32 s{sT2}, s{sT2}, {KV_CH}")
        a(f"s_and_b32 s{sT1}, s{sT1}, 7")
        a(f"s_mul_i32 s{sT1}, s{sT1}, 1280")
        a(f"s_add_u32 s{50+k}, s{sT1}, s{sT2}")
    a(f"s_add_u32 s50, s50, 128")
    a(f"s_sub_u32 s53, s51, 128")
    a(f"s_add_u32 s51, s51, 128")
    a(f"s_sub_u32 s52, s52, 128")
    a(f"s_mov_b32 s54, 0xffff")
    a(f"s_mov_b32 s55, 0xffff")
    a(f"v_add_u32 v{vAKO+1}, s53, v{vK8}")
    a(f"v_add_u32 v{vAKO+3}, s52, v{vK8}")
    a(f"s_mov_b64 exec, s[54:55]")
    a(f"v_add_u32 v{vAKO+1}, s50, v{vK8}")
    a(f"v_add_u32 v{vAKO+3}, s51, v{vK8}")
    a("s_mov_b64 exec, -1")
    a(f"v_sub_u32 v{vT+7}, v{vQO}, v{vK8}")
    a(f"v_add_u32 v{vAKO}, v{vAKO+1}, v{vT+7}")
    a(f"v_add_u32 v{vAKO+2}, v{vAKO+3}, v{vT+7}")
    a(f"s_lshl_b32 s{sT0}, s{sHEAD}, 7")
    a(f"s_lshr_b32 s{sT1}, s{sS0}, 4")
    a(f"s_add_u32 s{sT0}, s{sT0}, s{sT1}")
    for j in range(3):
        a(f"s_add_i32 s{sT1}, s{sT0}, {j-1}")
        a(f"s_max_i32 s{sT1}, s{sT1}, 0")
        a(f"s_lshr_b32 s{sT2}, s{sT1}, 4")
        a(f"s_mul_i32 s{sT2}, s{sT2}, {KV_CH}")
        a(f"s_and_b32 s{sT1}, s{sT1}, 15")
        a(f"s_mul_i32 s{sT1}, s{sT1}, 640")
        a(f"s_add_u32 s{sT1}, s{sT1}, s{sT2}")
        a(f"s_add_u32 s{sAV+j}, s{sT1}, 10240")
    a(f"s_lshl_b32 s{sGO}, s{sS0}, 2")
    a(f"s_add_u32 s{sGO}, s{sGO}, {G_OFF}")
    a(f"v_mov_b32 v{vT+2}, 0")
    a(f"v_mov_b32 v{vT+3}, {ONES:#x}")
    if "vones" in OPT:
        a(f"v_mov_b32 v{vT+2}, {ONES:#x}")
    else:
        a(f"v_and_b32 v{vT+4}, 27, v{vT}")
        a.l.pop()
        a(f"v_cmp_eq_u32 vcc, 20, v{vT}")
        a(f"v_cmp_eq_u32 s[38:39], 24, v{vT}")
        a("s_nop 1")
        a("s_or_b64 vcc, vcc, s[38:39]")
        a("s_nop 1")
        a(f"v_cndmask_b32 v{vT+2}, v{vT+2}, v{vT+3}, vcc")
    a(f"v_mov_b32 v{vT+3}, v{vT+2}")
    for i in range(0, 12, 2):
        a(f"v_mov_b64 v[{vAV+i}:{vAV+i+1}], v[{vT+2}:{vT+3}]")
    for i in range(0, 16, 2):
        a(f"v_mov_b64 v[{vV1+i}:{vV1+i+1}], v[{vT+2}:{vT+3}]")
    a(f"s_lshr_b32 s{sT0}, s{sS0}, 4")
    a(f"s_mul_i32 s{sT0}, s{sT0}, {40*1024}")
    a(f"s_mul_i32 s{sT1}, s{sHEAD}, {5*256}")
    a(f"s_add_u32 s{sT0}, s{sT0}, s{sT1}")
    a(f"v_bfe_u32 v{vT+2}, v{vLANE}, 4, 1")
    a(f"v_mul_u32_u24 v{vT+2}, {40*1024}, v{vT+2}")
    a(f"v_and_b32 v{vT+3}, 15, v{vLANE}")
    a(f"v_lshl_add_u32 v{vT+3}, v{vT+3}, 4, v{vT+2}")
    a(f"v_lshrrev_b32 v{vT+2}, 5, v{vLANE}")
    a(f"v_lshl_add_u32 v{vT+3}, v{vT+2}, 8, v{vT+3}")
    a(f"v_add_u32 v{vOSA}, s{sT0}, v{vT+3}")
    a(f"s_getpc_b64 s[56:57]")
    a.lab("K2_PC")
    a(f"s_add_u32 s56, s56, K2_TABLE-K2_PC")
    a(f"s_addc_u32 s57, s57, 0")
    if not FUSE:
        a("s_lshr_b32 s36, s2, 3")
        a("s_lshl_b32 s36, s36, 3")
        a(f"s_add_u32 s36, s36, s{sW}")
        a("s_mul_i32 s36, s36, 50")
        a(f"v_min_u32 v{vPFA}, 49, v{vLANE}")
        a(f"v_add_u32 v{vPFA}, s36, v{vPFA}")
        a(f"v_lshlrev_b32 v{vPFA}, 7, v{vPFA}")
        a(f"v_add_u32 v{vPFA}, {WT_OFF}, v{vPFA}")
    if FUSE:
        a(f"s_mov_b32 s64, s{sHEAD}")
        a(f"s_mov_b32 s65, s{sQB}")
        a(f"s_mul_i32 s{sWS0}, s65, {200*1024}")
        a(f"s_lshl_b32 s{sT0}, s{sW}, 10")
        a(f"s_add_u32 s{sWS0}, s{sWS0}, s{sT0}")
        a(f"s_add_u32 s{sWS0}, s{sWS0}, {WT_OFF}")
        a(f"s_mov_b32 s{sWS}, s{sWS0}")
        a(f"s_mov_b32 s{sWL}, 0")
        a(f"s_mov_b32 s{sWC}, 2")
    a(f"s_mov_b32 s{sPASS}, 0")
    a(f"s_mul_i32 s37, s{sGRP}, {4*KV_CH}")
    stamp(a, 2)
    a("s_waitcnt vmcnt(0)")
    a(f"s_mov_b64 exec, s[{sLO}:{sLO+1}]")
    a(f"s_not_b64 exec, exec")
    for sg in range(2):
        a(f"v_mov_b32 v{vQ8[sg]}, 0")
        a(f"v_mov_b32 v{vQ8[sg]+1}, 0")
    a("s_mov_b64 exec, -1")
    a("s_barrier")
    stamp(a, 3)
    def rdK16(dst, rel_chunk, tt):
        base = vKe if tt % 2 == 0 else vKo
        o0 = rel_chunk * 40 + (tt >> 1) * 5
        return f"ds_read2st64_b64 v[{dst}:{dst+3}], v{base} offset0:{o0} offset1:{o0+1}"
    def rdK4(dst, rel_chunk, tt):
        return f"ds_read_b64 v[{dst}:{dst+1}], v{vK4c} offset:{rel_chunk*KV_CH + tt*1280 + 1024}"
    def voff(g):
        return (g // 16) * KV_CH + (g % 16) * 640
    def setbases():
        a(f"v_add_u32 v{vKe}, s37, v{vQO}")
        a(f"v_add_u32 v{vKo}, 1280, v{vKe}")
        a(f"v_add_u32 v{vK4c}, s37, v{vK8}")
        a(f"v_add_u32 v{vVc}, s37, v{vVA}")
        a(f"v_add_u32 v{vVc}, 10240, v{vVc}")
    def qk(dst, ka, kb, sg, c):
        return [f"v_mfma_f32_32x32x16_bf16 v[{dst}:{dst+15}], v[{ka}:{ka+3}], v[{vQ16[sg]}:{vQ16[sg]+3}], {c}",
                f"v_mfma_f32_32x32x8_bf16 v[{dst}:{dst+15}], v[{kb}:{kb+1}], v[{vQ8[sg]}:{vQ8[sg]+1}], v[{dst}:{dst+15}]"]
    def rowmax(m, regs, first=None):
        if first is None:
            a(f"v_max3_f32 v{m}, v{regs[0]}, v{regs[1]}, v{regs[2]}")
            rest = regs[3:]
        else:
            rest = regs
        i = 0
        while i + 1 < len(rest):
            a(f"v_max3_f32 v{m}, v{m}, v{rest[i]}, v{rest[i+1]}")
            i += 2
        if i < len(rest):
            a(f"v_max_f32 v{m}, v{m}, v{rest[i]}")
    a.lab("K2_START")
    setbases()
    a(rdK16(vKA, 0, 0))
    a(rdK4(vKB, 0, 0))
    a(f"s_mov_b64 exec, s[{sVM}:{sVM+1}]")
    a(f"ds_read_b128 v[{vV1}:{vV1+3}], v{vVc}")
    a("s_mov_b64 exec, -1")
    a(f"s_cmp_lg_u32 s{sPASS}, 0")
    a("s_cbranch_scc1 K2_HAVEM")
    a("s_waitcnt lgkmcnt(0)")
    for sg in range(2):
        for x in qk(S[sg], vKA, vKB, sg, "0"): a(x)
    a("s_nop 9")
    for sg in range(2):
        m = vT + 2 * sg
        rowmax(m, [S[sg] + i for i in range(16)])
        a(f"v_mov_b32 v{m+1}, v{m}")
    a("s_nop 1")
    for sg in range(2):
        m = vT + 2 * sg
        a(f"v_permlane32_swap_b32 v{m}, v{m+1}")
    a("s_nop 1")
    for sg in range(2):
        m = vT + 2 * sg
        a(f"v_max_f32 v{m}, v{m}, v{m+1}")
        a(f"v_sub_f32 v{NEG[sg]}, 0, v{m}")
        a(f"v_sub_f32 v{NEG[sg]+1}, 0, v{m}")
        for i in range(2, 16, 2):
            a(f"v_mov_b64 v[{NEG[sg]+i}:{NEG[sg]+i+1}], v[{NEG[sg]}:{NEG[sg]+1}]")
    a.lab("K2_HAVEM")
    a("s_waitcnt lgkmcnt(0)")
    a("s_nop 1")
    for x in qk(S[0], vKA, vKB, 0, f"v[{NEG[0]}:{NEG[0]+15}]"): a(x)
    a(f"s_mov_b32 s{sC}, 0")
    a("s_nop 15")
    stamp(a, 4)
    aloads = [
        qloads(vQA16, vQA8, sQA, 0),
        [f"buffer_load_dwordx2 v[{vAK}:{vAK+1}], v{vAKO}, s[{SWS}:{SWS+3}], 0 offen",
         f"buffer_load_dwordx2 v[{vAK+2}:{vAK+3}], v{vAKO}, s[{SWS}:{SWS+3}], 0 offen offset:512",
         f"buffer_load_dwordx2 v[{vAK+8}:{vAK+9}], v{vAKO+1}, s[{SWS}:{SWS+3}], 0 offen offset:1024"],
        [f"buffer_load_dwordx2 v[{vAK+4}:{vAK+5}], v{vAKO+2}, s[{SWS}:{SWS+3}], 0 offen",
         f"buffer_load_dwordx2 v[{vAK+6}:{vAK+7}], v{vAKO+2}, s[{SWS}:{SWS+3}], 0 offen offset:512",
         f"buffer_load_dwordx2 v[{vAK+10}:{vAK+11}], v{vAKO+3}, s[{SWS}:{SWS+3}], 0 offen offset:1024"],
        [f"s_mov_b64 exec, s[{sVM}:{sVM+1}]"] +
        [f"buffer_load_dwordx4 v[{vAV+4*j}:{vAV+4*j+3}], v{vVA}, s[{SWS}:{SWS+3}], s{sAV+j} offen" for j in range(3)] +
        ["s_mov_b64 exec, -1"],
        [f"global_load_dwordx4 v[{vMX+4*j}:{vMX+4*j+3}], v{vL16}, s[56:57] offset:{j*1024}" for j in range(4)] +
        [f"v_add_u32 v{vT+7}, 4096, v{vL16}"] +
        [f"global_load_dwordx4 v[{vMY+4*j}:{vMY+4*j+3}], v{vT+7}, s[56:57] offset:{j*1024}" for j in range(2)] +
        [f"v_lshrrev_b32 v{vT+7}, 1, v{vK8}",
         f"buffer_load_dword v{vGATE}, v{vT+7}, s[{SWS}:{SWS+3}], s{sGO} offen"] +
        ([] if FUSE else [f"buffer_load_dword v{vDUM}, v{vPFA}, s[{SWS}:{SWS+3}], 0 offen"]),
    ]
    ool = []
    ptile = optval("ptile", 6)
    WIN = optval("win", 2)
    def wdma(j, p_expr_sgpr):
        return [f"s_add_u32 m0, s{sDO+j}, s{p_expr_sgpr}",
                f"s_add_u32 s{sT3}, s{sWS}, {j*8192}",
                f"buffer_load_dwordx4 v{vL16}, s[{SWS}:{SWS+3}], s{sT3} offen lds"]
    def chunk_body(c):
        extras = {}
        if c is not None:
            if c < 3:
                for j in range(5):
                    extras.setdefault((j, 1), []).extend(dma1(j) + ([f"s_add_u32 s{sDG}, s{sDG}, {KV_CH}"] if j == 4 else []))
            else:
                flat = [x for x in aloads]
                for j in range(5):
                    extras.setdefault((j, 1), []).extend(flat[j])
            if FUSE and WIN >= 2 and c >= 2:
                for j in range(5):
                    extras.setdefault((j + 1, 0), []).extend(wdma(j, sWL) +
                        ([f"s_add_u32 s{sWL}, s{sWL}, {KV_CH}", f"s_add_u32 s{sWS}, s{sWS}, {K3_BUF}"] if j == 4 else []))
        for tt in range(8):
            for sg in range(2):
                cur = S[sg]; nsg = sg ^ 1; nxt = S[nsg]
                nt = tt if sg == 0 else tt + 1
                ka = vKA + 4 * (nt & 1); kb = vKB + 2 * (nt & 1)
                if sg == 0 and tt == 7 and c is not None:
                    if c < 3:
                        a("s_waitcnt vmcnt(0)")
                        a("s_barrier")
                    elif FUSE and WIN == 3:
                        a("s_barrier")
                        for j in range(5):
                            for x in wdma(j, sWL): a(x)
                        a(f"s_add_u32 s{sWL}, s{sWL}, {KV_CH}")
                        a(f"s_add_u32 s{sWS}, s{sWS}, {K3_BUF}")
                    if ptile >= 0: a("s_setprio 2")
                if sg == 0 and tt == ptile and c is not None:
                    a("s_setprio 0")
                if sg == 1:
                    a("s_waitcnt lgkmcnt(0)")
                q = qk(nxt, ka, kb, nsg, f"v[{NEG[nsg]}:{NEG[nsg]+15}]")
                a(q[0])
                if sg == 0:
                    n1 = tt + 1
                    a(rdK16(vKA + 4 * (n1 & 1), n1 // 8, n1 % 8))
                    a(rdK4(vKB + 2 * (n1 & 1), n1 // 8, n1 % 8))
                for i in range(0, 4):
                    a(f"v_exp_f32 v{cur+i}, v{cur+i}")
                pt = tt - 1 if sg == 0 else tt
                v2p = vV2 + 4 * (pt & 1)
                a(f"v_mfma_f32_32x32x16_bf16 v[{O[nsg]}:{O[nsg]+15}], v[{v2p}:{v2p+3}], v[{vP+4}:{vP+7}], v[{O[nsg]}:{O[nsg]+15}]")
                if sg == 0:
                    a(f"s_mov_b64 exec, s[{sVM}:{sVM+1}]")
                    d = vV2 + 4 * (tt & 1)
                    a(f"ds_read_b128 v[{d}:{d+3}], v{vVc} offset:{voff(2*tt+1)}")
                    d = vV1 + 4 * ((tt + 1) & 1)
                    a(f"ds_read_b128 v[{d}:{d+3}], v{vVc} offset:{voff(2*tt+2)}")
                    a("s_mov_b64 exec, -1")
                for x in extras.get((tt, sg), []): a(x)
                for i in range(4, 8):
                    a(f"v_exp_f32 v{cur+i}, v{cur+i}")
                for i in range(4):
                    a(f"v_cvt_pk_bf16_f32 v{vP+i}, v{cur+2*i}, v{cur+2*i+1}")
                a(q[1])
                for i in range(8, 12):
                    a(f"v_exp_f32 v{cur+i}, v{cur+i}")
                v1 = vV1 + 4 * (tt & 1)
                a(f"v_mfma_f32_32x32x16_bf16 v[{O[sg]}:{O[sg]+15}], v[{v1}:{v1+3}], v[{vP}:{vP+3}], v[{O[sg]}:{O[sg]+15}]")
                for i in range(12, 16):
                    a(f"v_exp_f32 v{cur+i}, v{cur+i}")
                for i in range(4, 8):
                    a(f"v_cvt_pk_bf16_f32 v{vP+i}, v{cur+2*i}, v{cur+2*i+1}")
        for r in (vKe, vKo, vK4c, vVc):
            a(f"v_add_u32 v{r}, {KV_CH}, v{r}")
    a(f"s_cmp_lg_u32 s{sPASS}, 0")
    a("s_cbranch_scc1 K2_RLOOP")
    for c in range(4):
        if "chunkstamp" in OPT:
            a("s_memtime s[78:79]")
            a("s_waitcnt lgkmcnt(0)")
            a(f"v_writelane_b32 v247, s78, {c}")
        chunk_body(c)
    a.lab("K2_LOOPEND")
    stamp(a, 5)
    a(f"v_mfma_f32_32x32x16_bf16 v[{O[1]}:{O[1]+15}], v[{vV2+4}:{vV2+7}], v[{vP+4}:{vP+7}], v[{O[1]}:{O[1]+15}]")
    a("s_setprio 0")
    a(f"s_mov_b32 s{sFAIL}, 0")
    a(f"s_cmp_lg_u32 s{sPASS}, 0")
    a("s_cbranch_scc1 K2_XCHG")
    a(f"s_waitcnt vmcnt({(5 if WIN == 3 else 0) if FUSE else 1}) lgkmcnt(0)")
    a(f"s_mov_b64 exec, s[{sLO}:{sLO+1}]")
    a(f"s_not_b64 exec, exec")
    a(f"v_mov_b32 v{vQA8}, 0")
    a(f"v_mov_b32 v{vQA8+1}, 0")
    a("s_mov_b64 exec, -1")
    a(f"s_cmp_lg_u32 s{sS0}, 0")
    a("s_cbranch_scc1 K2_NOFIX")
    for i in range(8):
        a(f"v_mov_b32 v{vMX+i}, {f2u(NEGBIG):#x}")
    a.lab("K2_NOFIX")
    if "ts2" in OPT: stamp(a, 4)
    a(f"v_mfma_f32_32x32x16_bf16 v[{vS0}:{vS0+15}], v[{vAK}:{vAK+3}], v[{vQA16}:{vQA16+3}], v[{vMX}:{vMX+15}]")
    a(f"v_mfma_f32_32x32x16_bf16 v[{vS1}:{vS1+15}], v[{vAK+4}:{vAK+7}], v[{vQA16}:{vQA16+3}], v[{vMY}:{vMY+15}]")
    a(f"v_mfma_f32_32x32x8_bf16 v[{vS0}:{vS0+15}], v[{vAK+8}:{vAK+9}], v[{vQA8}:{vQA8+1}], v[{vS0}:{vS0+15}]")
    a(f"v_mfma_f32_32x32x8_bf16 v[{vS1}:{vS1+15}], v[{vAK+10}:{vAK+11}], v[{vQA8}:{vQA8+1}], v[{vS1}:{vS1+15}]")
    a(f"v_mov_b64 v[{vT+2}:{vT+3}], 0")
    a(f"v_mov_b64 v[{vT+4}:{vT+5}], 0")
    a(f"v_mov_b32 v{vT+1}, {f2u(2.0**64):#x}")
    a("s_nop 3")
    for i in range(0, 12, 2):
        for sg in range(2):
            a(f"v_pk_fma_f32 v[{vT+2}:{vT+3}], v[{O[sg]+i}:{O[sg]+i+1}], v[{vT+4}:{vT+5}], v[{vT+2}:{vT+3}]")
    a(f"v_add_f32 v{vT}, v{O[0]+12}, v{O[1]+12}")
    a(f"v_add_f32 v{vT+2}, v{vT+2}, v{vT+3}")
    a(f"v_add_f32 v{vT}, v{vT}, v{vT+2}")
    a(f"v_cmp_nlt_f32 vcc, v{vT}, v{vT+1}")
    a(f"v_mov_b32 v{O[0]+13}, v{NEG[0]}")
    a(f"v_mov_b32 v{O[1]+13}, v{NEG[1]}")
    a("s_nop 1")
    a("s_cmp_lg_u64 vcc, 0")
    a(f"s_cselect_b32 s{sFAIL}, 1, 0")
    if "forcefail" in OPT:
        a(f"s_cmp_eq_u32 s{sW}, 3")
        a(f"s_cselect_b32 s{sFAIL}, 1, s{sFAIL}")
    regs = [vS0 + i for i in range(16)] + [vS1 + i for i in range(8)]
    m = vT + 6
    rowmax(m, regs)
    a(f"v_mov_b32 v{m+1}, v{m}")
    a("s_nop 1")
    a(f"v_permlane32_swap_b32 v{m}, v{m+1}")
    a("s_nop 1")
    a(f"v_max_f32 v{m}, v{m}, v{m+1}")
    a(f"v_sub_f32 v{vKo}, 0, v{m}")
    a(f"v_sub_f32 v{vK4c}, 0, v{m}")
    for i in range(0, 24, 2):
        a(f"v_pk_add_f32 v[{regs[i]}:{regs[i]+1}], v[{regs[i]}:{regs[i]+1}], v[{vKo}:{vK4c}]")
    for i in range(24):
        a(f"v_exp_f32 v{regs[i]}, v{regs[i]}")
    a("s_nop 0")
    for i in range(12):
        a(f"v_cvt_pk_bf16_f32 v{vP+i}, v{regs[2*i]}, v{regs[2*i+1]}")
    OA = NEG[0]
    a("s_nop 1")
    for j in range(3):
        c = "0" if j == 0 else f"v[{OA}:{OA+15}]"
        a(f"v_mfma_f32_32x32x16_bf16 v[{OA}:{OA+15}], v[{vAV+4*j}:{vAV+4*j+3}], v[{vP+4*j}:{vP+4*j+3}], {c}")
    def rowsum(dst, acc):
        a(f"v_mov_b32 v{dst}, v{acc+12}")
        a(f"s_not_b64 exec, s[{sLO}:{sLO+1}]")
        a(f"v_mov_b32 v{dst}, v{acc+8}")
        a("s_mov_b64 exec, -1")
    OFL = " sc1" if FUSE else STORE_FLAGS
    def ostore(br, src):
        a("s_nop 1")
        a(f"v_permlane32_swap_b32 v{src}, v{src+2}")
        a(f"v_permlane32_swap_b32 v{src+1}, v{src+3}")
        a(f"s_mov_b32 s{sT1}, {O_OFF}")
        a(f"buffer_store_dwordx4 v[{src}:{src+3}], v{vOSA}, s[{SWS}:{SWS+3}], s{sT1} offen offset:{br*512}{OFL}")
    a("s_nop 15")
    rowsum(vT + 6, OA)
    a(f"v_rcp_f32 v{vT+6}, v{vT+6}")
    a("s_nop 0")
    a(f"v_mul_f32 v{vT+6}, v{vT+6}, v{vGATE}")
    for i in range(0, 12, 2):
        a(f"v_pk_mul_f32 v[{OA+i}:{OA+i+1}], v[{OA+i}:{OA+i+1}], v[{vT+6}:{vT+7}] op_sel_hi:[1,0]")
    for i in range(4):
        a(f"v_cvt_pk_bf16_f32 v{vP+i}, v{OA+2*i}, v{OA+2*i+1}")
    for i in range(2):
        a(f"v_cvt_pk_bf16_f32 v{vOB+4+i}, v{OA+8+2*i}, v{OA+9+2*i}")
    ostore(0, vP)
    a("s_branch K2_XCHG1")
    a.lab("K2_XCHG")
    a("s_nop 15")
    a(f"v_mov_b32 v{O[0]+13}, v{NEG[0]}")
    a(f"v_mov_b32 v{O[1]+13}, v{NEG[1]}")
    a.lab("K2_XCHG1")
    a(f"s_mul_i32 s{sT0}, s{sGRP}, {4*KV_CH}")
    a(f"s_lshl_b32 s{sT2}, s{sPR}, 12")
    a(f"s_add_u32 s{sT2}, s{sT2}, {3*KV_CH}")
    a(f"s_add_u32 s{sT0}, s{sT0}, s{sT2}")
    a(f"v_add_u32 v{vT}, s{sT0}, v{vL16}")
    a(f"s_xor_b32 s{sT0}, s{sGRP}, 1")
    a(f"s_mul_i32 s{sT0}, s{sT0}, {4*KV_CH}")
    a(f"s_add_u32 s{sT0}, s{sT0}, s{sT2}")
    a(f"v_add_u32 v{vT+1}, s{sT0}, v{vL16}")
    a(f"s_lshl_b32 s{sT0}, s{sW}, 2")
    a(f"s_add_u32 s{sT0}, s{sT0}, {3*KV_CH + 16384}")
    a(f"v_mov_b32 v{vT+2}, s{sT0}")
    a(f"v_mov_b32 v{vT+3}, s{sFAIL}")
    if "ts2" in OPT: stamp(a, 1)
    a("s_barrier")
    if "ts2" in OPT: stamp(a, 2)
    a(f"s_cmp_eq_u32 s{sGRP}, 0")
    a("s_cbranch_scc1 K2_XA")
    for j in range(4):
        a(f"ds_write_b128 v{vT}, v[{O[0]+4*j}:{O[0]+4*j+3}] offset:{j*1024}")
    a("s_branch K2_XB")
    a.lab("K2_XA")
    for j in range(4):
        a(f"ds_write_b128 v{vT}, v[{O[1]+4*j}:{O[1]+4*j+3}] offset:{j*1024}")
    a.lab("K2_XB")
    a(f"ds_write_b32 v{vT+2}, v{vT+3}")
    a(f"v_mov_b32 v{vT+2}, {3*KV_CH + 16384}")
    a("s_waitcnt lgkmcnt(0)")
    a("s_barrier")
    if "ts2" in OPT: stamp(a, 3)
    a(f"ds_read_b128 v[{vT+4}:{vT+7}], v{vT+2}")
    a(f"ds_read_b128 v[{vS0}:{vS0+3}], v{vT+2} offset:16")
    a(f"s_cmp_eq_u32 s{sGRP}, 0")
    a("s_cbranch_scc1 K2_XC")
    for j in range(4):
        a(f"ds_read_b128 v[{O[0]+4*j}:{O[0]+4*j+3}], v{vT+1} offset:{j*1024}")
    a("s_branch K2_XD")
    a.lab("K2_XC")
    for j in range(4):
        a(f"ds_read_b128 v[{O[1]+4*j}:{O[1]+4*j+3}], v{vT+1} offset:{j*1024}")
    a.lab("K2_XD")
    a("s_waitcnt lgkmcnt(4)")
    a(f"v_or3_b32 v{vT+4}, v{vT+4}, v{vT+5}, v{vT+6}")
    a(f"v_or3_b32 v{vT+4}, v{vT+4}, v{vT+7}, v{vS0}")
    a(f"v_or3_b32 v{vT+4}, v{vT+4}, v{vS0+1}, v{vS0+2}")
    a(f"v_or_b32 v{vT+4}, v{vT+4}, v{vS0+3}")
    a("s_nop 0")
    a(f"v_readfirstlane_b32 s{sT0}, v{vT+4}")
    a("s_nop 3")
    a(f"s_cmp_lg_u32 s{sT0}, 0")
    a("s_cbranch_scc1 K2_REDO")
    a("s_waitcnt lgkmcnt(0)")
    a(f"v_sub_f32 v{vT+2}, v{O[1]+13}, v{O[0]+13}")
    a(f"v_sub_f32 v{vT+3}, 0, v{vT+2}")
    a(f"v_min_f32 v{vT+2}, 0, v{vT+2}")
    a(f"v_min_f32 v{vT+3}, 0, v{vT+3}")
    a(f"v_exp_f32 v{vT+2}, v{vT+2}")
    a(f"v_exp_f32 v{vT+3}, v{vT+3}")
    rowsum(vT + 4, O[0])
    rowsum(vT + 5, O[1])
    a(f"v_mul_f32 v{vT+4}, v{vT+4}, v{vT+2}")
    a(f"v_fmac_f32 v{vT+4}, v{vT+5}, v{vT+3}")
    a(f"v_rcp_f32 v{vT+4}, v{vT+4}")
    a(f"v_sub_f32 v{vT+5}, 1.0, v{vGATE}")
    a("s_nop 0")
    a(f"v_mul_f32 v{vT+4}, v{vT+4}, v{vT+5}")
    a(f"v_mul_f32 v{vT+2}, v{vT+2}, v{vT+4}")
    a(f"v_mul_f32 v{vT+3}, v{vT+3}, v{vT+4}")
    for i in range(0, 12, 2):
        a(f"v_pk_mul_f32 v[{O[0]+i}:{O[0]+i+1}], v[{O[0]+i}:{O[0]+i+1}], v[{vT+2}:{vT+3}] op_sel_hi:[1,0]")
        a(f"v_pk_fma_f32 v[{O[0]+i}:{O[0]+i+1}], v[{O[1]+i}:{O[1]+i+1}], v[{vT+2}:{vT+3}], v[{O[0]+i}:{O[0]+i+1}] op_sel:[0,1,0] op_sel_hi:[1,1,1]")
    for i in range(4):
        a(f"v_cvt_pk_bf16_f32 v{vOB+i}, v{O[0]+2*i}, v{O[0]+2*i+1}")
    for i in range(2):
        a(f"v_cvt_pk_bf16_f32 v{vOB+6+i}, v{O[0]+8+2*i}, v{O[0]+9+2*i}")
    ostore(1, vOB)
    a(f"s_mov_b64 exec, s[{sLO}:{sLO+1}]")
    a(f"buffer_store_dwordx4 v[{vOB+4}:{vOB+7}], v{vOSA}, s[{SWS}:{SWS+3}], s{sT1} offen offset:1024{OFL}")
    a("s_mov_b64 exec, -1")
    if FUSE:
        if WIN:
            a(f"s_cmp_eq_u32 s{sPASS}, 0")
            a("s_cbranch_scc1 K2_WOK")
            a("s_barrier")
            a(f"s_mov_b32 s{sWL}, 0")
            a(f"s_mov_b32 s{sWS}, s{sWS0}")
            for p in range(WIN):
                for j in range(5):
                    for x in wdma(j, sWL): a(x)
                a(f"s_add_u32 s{sWL}, s{sWL}, {KV_CH}")
                a(f"s_add_u32 s{sWS}, s{sWS}, {K3_BUF}")
            a("s_waitcnt vmcnt(0)")
            a.lab("K2_WOK")
        stamp(a, 6)
        NPRE = 0
        if WIN == 3:
            a("s_barrier")
            a(f"s_mov_b32 s{sWL}, {3*KV_CH}")
            for j in range(5):
                for x in wdma(j, sWL): a(x)
            NPRE = 5
        elif WIN == 2:
            a(f"s_mov_b32 s{sWL}, {2*KV_CH}")
            for j in range(5):
                for x in wdma(j, sWL): a(x)
            a(f"s_add_u32 s{sWS}, s{sWS}, {K3_BUF}")
            NPRE = 5
        a(f"s_waitcnt vmcnt({NPRE})")
        if "tailstamps" in OPT: stamp(a, 1)
        a("s_barrier")
        if "tailstamps" in OPT: stamp(a, 2)
        a(f"s_cmp_lg_u32 s{sW}, 0")
        a("s_cbranch_scc1 K2_NOPOLL0")
        a(f"s_lshl_b32 s{sT0}, s{sQB}, 12")
        a(f"s_add_u32 s{sT0}, s{sT0}, {FL_OFF}")
        a(f"s_mov_b64 exec, s[{sLO}:{sLO+1}]")
        a(f"v_mov_b32 v{vT}, 1")
        a(f"v_lshlrev_b32 v{vT+5}, 7, v{vLANE}")
        a(f"buffer_atomic_add v{vT}, v{vT+5}, s[{SWS}:{SWS+3}], s{sT0} offen")
        a("s_mov_b64 exec, -1")
        a.lab("K2_NOPOLL0")
        WPOST = 4 if WIN == 3 else optval("wpost", 4)
        if WIN != 3:
            W0P = 3 if WIN == 2 else WIN
            a(f"s_mov_b32 s{sWL}, {W0P*KV_CH}")
            for p in range(W0P, WPOST):
                for j in range(5):
                    for x in wdma(j, sWL): a(x)
                a(f"s_add_u32 s{sWL}, s{sWL}, {KV_CH}")
                a(f"s_add_u32 s{sWS}, s{sWS}, {K3_BUF}")
        bufss = [((ss // 2) % 4) * KV_CH + (ss & 1) * 4 * KV_CH for ss in range(10)]
        pc = proj_core(a, "K2", SWS, 68, sW, 64, 65, 50, bufss,
                       lambda p, j, sM0: f"s_add_u32 m0, s{sDO+j}, {(p % 4)*KV_CH}", ({1: [4]} if WPOST == 4 else {0: [3], 1: [4]}), optval("k2opre", 4))
        pc.setup()
        srd(a, 68, 60, 61, 2048 * 1280)
        pc.addr_setup(0)
        if "tailstamps" in OPT: stamp(a, 3)
        a(f"s_cmp_lg_u32 s{sW}, 0")
        a("s_cbranch_scc1 K2_NOPOLL")
        a(f"s_lshl_b32 s{sT0}, s{sHEAD}, 3")
        a(f"s_add_u32 s{sT0}, s{sT0}, s{sQB}")
        a(f"s_lshl_b32 s{sT0}, s{sT0}, 7")
        a(f"s_add_u32 s{sT0}, s{sT0}, {FL_OFF}")
        a("s_mov_b64 exec, 1")
        a(f"v_mov_b32 v{vT+5}, 0")
        a(f"s_mov_b32 s{sT1}, 0")
        a.lab("K2_POLL")
        a(f"buffer_load_dword v{vT+4}, v{vT+5}, s[{SWS}:{SWS+3}], s{sT0} offen sc1")
        a("s_waitcnt vmcnt(0)")
        a(f"v_readfirstlane_b32 s{sT2}, v{vT+4}")
        a(f"s_add_u32 s{sT1}, s{sT1}, 1")
        a(f"s_cmp_ge_u32 s{sT2}, 32")
        a("s_cbranch_scc1 K2_POLLED")
        a(f"s_sleep {optval('psleep', 2)}")
        a(f"s_cmp_lt_u32 s{sT1}, 0x40000")
        a("s_cbranch_scc1 K2_POLL")
        a.lab("K2_POLLED")
        a("s_waitcnt vmcnt(0)")
        if "tailstamps" in OPT:
            stamp(a, 4)
        a("s_mov_b64 exec, -1")
        a.lab("K2_NOPOLL")
        a("s_waitcnt vmcnt(0)")
        a("s_barrier")
        stamp(a, 7)
        pc.body([("o", 0), ("o", 1), ("o", 2), ("o", 3)])
        if PROF: a("s_waitcnt vmcnt(0)")
        stamp(a, 8)
        stamp_flush(a, 1, 9, SWS, sW, vT)
        if "dbgtime" in OPT:
            a("s_cmp_lg_u32 s2, 1")
            a("s_cbranch_scc1 K2_DBGX")
            a("s_cmp_lg_u32 s12, 0")
            a("s_cbranch_scc1 K2_DBGX")
            a("s_load_dwordx2 s[92:93], s[0:1], 64")
            a("s_waitcnt vmcnt(0)")
            a("s_memrealtime s[94:95]")
            a("s_memtime s[96:97]")
            a("s_waitcnt lgkmcnt(0)")
            srd(a, 84, 92, 93, 256)
            a("s_sub_u32 s96, s96, s88")
            a("s_sub_u32 s94, s94, s90")
            a("s_mov_b64 exec, 1")
            a("v_mov_b32 v24, 0")
            a("v_mov_b32 v20, 222")
            a("v_mov_b32 v21, s96")
            a("v_mov_b32 v22, s94")
            a("v_mov_b32 v23, s90")
            a("buffer_store_dwordx4 v[20:23], v24, s[84:87], 0 offen")
            a("s_mov_b64 exec, -1")
            a.lab("K2_DBGX")
        a("s_endpgm")
    else:
        a("s_branch K2_DONE")
    a.lab("K2_REDO")
    a("s_waitcnt vmcnt(0) lgkmcnt(0)")
    a("s_barrier")
    a(f"s_mov_b32 s{sDG}, 0")
    for p in range(4):
        for j in range(5):
            for x in dma1(j): a(x)
        a(f"s_add_u32 s{sDG}, s{sDG}, {KV_CH}")
    a(f"s_mov_b32 s{sPASS}, 1")
    if FUSE: a(f"s_mov_b32 s{sWC}, 99")
    a(f"v_mov_b32 v{vT}, {f2u(-3.0e38):#x}")
    a(f"v_mov_b32 v{vT+2}, {f2u(-3.0e38):#x}")
    setbases()
    a(f"s_mov_b32 s{sC}, 0")
    a("s_waitcnt vmcnt(0)")
    a("s_barrier")
    a.lab("K2_MAXLOOP")
    for tt in range(8):
        a(rdK16(vKA, 0, tt))
        a(rdK4(vKB, 0, tt))
        a("s_waitcnt lgkmcnt(0)")
        for sg in range(2):
            for x in qk(S[sg], vKA, vKB, sg, "0"): a(x)
        a("s_nop 15")
        for sg in range(2):
            rowmax(vT + 2 * sg, [S[sg] + i for i in range(16)], first=True)
    for r in (vKe, vKo, vK4c):
        a(f"v_add_u32 v{r}, {KV_CH}, v{r}")
    a(f"s_add_u32 s{sC}, s{sC}, 1")
    a(f"s_cmp_lt_u32 s{sC}, 4")
    a("s_cbranch_scc1 K2_MAXLOOP")
    for sg in range(2):
        a(f"v_mov_b32 v{vT+2*sg+1}, v{vT+2*sg}")
    a("s_nop 1")
    for sg in range(2):
        a(f"v_permlane32_swap_b32 v{vT+2*sg}, v{vT+2*sg+1}")
    a("s_nop 1")
    for sg in range(2):
        a(f"v_max_f32 v{vT+2*sg}, v{vT+2*sg}, v{vT+2*sg+1}")
        for i in range(16):
            a(f"v_sub_f32 v{NEG[sg]+i}, 0, v{vT+2*sg}")
            a(f"v_mov_b32 v{O[sg]+i}, 0")
    for i in range(4):
        a(f"v_mov_b32 v{vP+4+i}, 0")
    a("s_branch K2_START")
    a.lab("K2_RLOOP")
    chunk_body(None)
    a(f"s_add_u32 s{sC}, s{sC}, 1")
    a(f"s_cmp_lt_u32 s{sC}, 4")
    a("s_cbranch_scc1 K2_RLOOP")
    a("s_branch K2_LOOPEND")
    a.lab("K2_DONE")
    stamp(a, 6)
    if PROF: a("s_waitcnt vmcnt(0)")
    stamp(a, 7)
    if "chunkstamp" in OPT:
        a(f"s_lshl_b32 s97, s2, 3")
        a(f"s_add_u32 s97, s97, s{sW}")
        a(f"s_lshl_b32 s97, s97, 6")
        a(f"s_add_u32 s97, s97, {PROF_OFF + 3 * 0x100000}")
        a(f"v_lshlrev_b32 v{vT}, 2, v{vLANE}")
        a("s_mov_b64 exec, 0xff")
        a(f"buffer_store_dword v247, v{vT}, s[{SWS}:{SWS+3}], s97 offen")
        a("s_mov_b64 exec, -1")
    stamp_flush(a, 1, 8, SWS, sW, vT)
    a.lab("K2_END")
    a("s_endpgm")
    a.raw(".p2align 4")
    a.lab("K2_TABLE")
    tab = mask_table()
    for i in range(0, len(tab), 8):
        a.raw("    .long " + ", ".join(f"{x:#x}" for x in tab[i:i+8]))
    a.lab("K2_TEXT_END")
    return name, NV

K3_BUF = 40 * 1024
K3_NBUF = 3
K3_LDS = K3_BUF * K3_NBUF

K3_GRID = 256
def proj_core(a, pfx, SWS, SOUT, sW, sMT, sNT, sbase, bufss, wm0, wplan, OPRE, vLANE=1, vL16=2):
    sMB, sKH, sT0, sT1, sT2, sOB, sWB, sM0, sOUT = [sbase + i for i in range(9)]
    vWR = 6; vWA = 7; vT = 8
    vOF = 20; vWF = 100; vACC = 180
    oflags = " sc1" if pfx == "K2" else ""
    issued = []
    def setup():
        a(f"s_and_b32 s{sMB}, s{sW}, 3")
        a(f"s_lshr_b32 s{sKH}, s{sW}, 2")
        a(f"s_lshl_b32 s{sM0}, s{sW}, 10")
        a(f"s_mul_i32 s{sWB}, s{sNT}, {200*1024}")
        a(f"s_add_u32 s{sWB}, s{sWB}, s{sM0}")
        a(f"s_add_u32 s{sWB}, s{sWB}, {WT_OFF}")
        a(f"s_lshl_b32 s{sOB}, s{sMT}, 2")
        a(f"s_add_u32 s{sOB}, s{sOB}, s{sMB}")
        a(f"s_mul_i32 s{sOUT}, s{sOB}, {16*1280}")
        a(f"s_mul_i32 s{sOB}, s{sOB}, 40")
        a(f"s_lshl_b32 s{sT0}, s{sKH}, 1")
        a(f"s_add_u32 s{sOB}, s{sOB}, s{sT0}")
        a(f"s_lshl_b32 s{sOB}, s{sOB}, 10")
        a(f"s_add_u32 s{sOB}, s{sOB}, {O_OFF}")
        a(f"s_mul_i32 s{sT2}, s{sNT}, 160")
        a(f"s_add_u32 s{sOUT}, s{sOUT}, s{sT2}")
    def wgroup(p):
        g = []
        for j in range(5):
            g.append(([wm0(p, j, sM0),
                       f"s_add_u32 s{sT1}, s{sWB}, {p*K3_BUF + j*8192}",
                       f"buffer_load_dwordx4 v{vL16}, s[{SWS}:{SWS+3}], s{sT1} offen lds"], ("W", p)))
        return g
    def ogroup(ss):
        g = []
        for i in range(2):
            d = vOF + (ss * 2 + i) * 4
            g.append(([f"s_add_u32 s{sT0}, s{sOB}, {(ss*4 + i)*1024}",
                       f"buffer_load_dwordx4 v[{d}:{d+3}], v{vL16}, s[{SWS}:{SWS+3}], s{sT0} offen{oflags}"], ("o", ss)))
        return g
    def emit(item):
        for x in item[0]: a(x)
        issued.append(item[1])
    def vm(need):
        last = max([i for i, t in enumerate(issued) if t in need], default=-1)
        return min(63, len(issued) - 1 - last)
    def reads(ss):
        st = ss & 1
        off = bufss[ss]
        out = [f"v_add_u32 v{vWA}, {off}, v{vWR}"]
        for i in range(2):
            for b in range(5):
                r = vWF + st * 40 + (i * 5 + b) * 4
                out.append(f"ds_read_b128 v[{r}:{r+3}], v{vWA} offset:{(i*5 + b)*1024}")
        return out
    def addr_setup(xbase):
        a(f"s_mul_i32 s{sT0}, s{sKH}, {10*1024}")
        a(f"v_add_u32 v{vWR}, s{sT0}, v{vL16}")
        a(f"v_and_b32 v{vT+1}, 15, v{vLANE}")
        a(f"v_mul_u32_u24 v{vT+1}, 1280, v{vT+1}")
        a(f"v_lshrrev_b32 v{vT+2}, 4, v{vLANE}")
        a(f"v_lshl_add_u32 v{vT+1}, v{vT+2}, 3, v{vT+1}")
        a(f"s_mul_i32 s{sT0}, s{sW}, {3*1024}")
        a(f"s_add_u32 s{sT0}, s{sT0}, {xbase}")
        a(f"v_add_u32 v{vT}, s{sT0}, v{vL16}")
        a(f"s_xor_b32 s{sT2}, s{sW}, 4")
        a(f"s_mul_i32 s{sT2}, s{sT2}, {3*1024}")
        a(f"s_add_u32 s{sT2}, s{sT2}, {xbase}")
        a(f"v_add_u32 v{vT+3}, s{sT2}, v{vL16}")
    def body(first):
        for kind, idx in first:
            for it in (wgroup(idx) if kind == "W" else ogroup(idx)): emit(it)
        nxt_o = max([idx for kind, idx in first if kind == "o"], default=-1) + 1
        if pfx == "K3": stamp(a, 1)
        a(f"s_waitcnt vmcnt({vm({('W', 0)})})")
        a("s_barrier")
        if pfx == "K3": stamp(a, 2)
        for r in reads(0): a(r)
        for ss in range(10):
            p = ss // 2
            need = {("o", ss)}
            if ss % 2 == 1 and p + 1 < 5: need.add(("W", p + 1))
            a(f"s_waitcnt vmcnt({vm(need)}) lgkmcnt(0)")
            if ss % 2 == 1 and ss < 9: a("s_barrier")
            mf = []
            for i in range(2):
                for b in range(5):
                    acc = vACC + b * 4
                    wf = vWF + (ss & 1) * 40 + (i * 5 + b) * 4
                    of = vOF + (ss * 2 + i) * 4
                    c = "0" if (ss == 0 and i == 0) else f"v[{acc}:{acc+3}]"
                    mf.append(f"v_mfma_f32_16x16x32_bf16 v[{acc}:{acc+3}], v[{wf}:{wf+3}], v[{of}:{of+3}], {c}")
            rd = reads(ss + 1) if ss < 9 else []
            ld = []
            for p2 in wplan.get(ss, []): ld += wgroup(p2)
            while nxt_o < 10 and nxt_o <= ss + OPRE:
                ld += ogroup(nxt_o); nxt_o += 1
            ex = [("r", r) for r in rd]
            mixed = []
            step = max(1, len(ex) // max(1, len(ld))) if ld else 0
            k = 0
            for i, e in enumerate(ex):
                mixed.append(e)
                if ld and k < len(ld) and (i + 1) % step == 0:
                    mixed.append(("l", ld[k])); k += 1
            while k < len(ld):
                mixed.append(("l", ld[k])); k += 1
            k = 0
            for i, m in enumerate(mf):
                a(m)
                tgt = min(len(mixed), ((i + 1) * len(mixed) + 8) // 9)
                while k < tgt:
                    if mixed[k][0] == "r": a(mixed[k][1])
                    else: emit(mixed[k][1])
                    k += 1
        if pfx == "K3": stamp(a, 3)
        a("s_barrier")
        a(f"s_cmp_eq_u32 s{sKH}, 0")
        a(f"s_cbranch_scc1 {pfx}_PW0")
        a("s_nop 4")
        for b in range(3):
            a(f"ds_write_b128 v{vT}, v[{vACC+b*4}:{vACC+b*4+3}] offset:{b*1024}")
        a("s_waitcnt lgkmcnt(0)")
        a("s_barrier")
        def fin(blocks):
            for n, b in enumerate(blocks):
                a(f"ds_read_b128 v[{vOF+4*n}:{vOF+4*n+3}], v{vT+3} offset:{n*1024}")
            for n, b in enumerate(blocks):
                a(f"s_waitcnt lgkmcnt({len(blocks)-1-n})")
                for i in range(0, 4, 2):
                    a(f"v_pk_add_f32 v[{vOF+4*n+i}:{vOF+4*n+i+1}], v[{vOF+4*n+i}:{vOF+4*n+i+1}], v[{vACC+4*b+i}:{vACC+4*b+i+1}]")
                a(f"v_cvt_pk_bf16_f32 v{vWF+2*n}, v{vOF+4*n}, v{vOF+4*n+1}")
                a(f"v_cvt_pk_bf16_f32 v{vWF+2*n+1}, v{vOF+4*n+2}, v{vOF+4*n+3}")
                a(f"buffer_store_dwordx2 v[{vWF+2*n}:{vWF+2*n+1}], v{vT+1}, s[{SOUT}:{SOUT+3}], s{sOUT} offen offset:{b*32}")
        fin([3, 4])
        a(f"s_branch {pfx}_PFIN")
        a.lab(f"{pfx}_PW0")
        a("s_nop 4")
        for n, b in enumerate((3, 4)):
            a(f"ds_write_b128 v{vT}, v[{vACC+b*4}:{vACC+b*4+3}] offset:{n*1024}")
        a("s_waitcnt lgkmcnt(0)")
        a("s_barrier")
        fin([0, 1, 2])
        a.lab(f"{pfx}_PFIN")
    class C: pass
    c = C(); c.setup = setup; c.wgroup = wgroup; c.emit = emit; c.addr_setup = addr_setup; c.body = body; c.issued = issued
    return c

def gen_k3(a):
    name = "k3_proj_kernel"
    kernel_head(a, name)
    SWS = 8; SOUT = 20
    sW = 24; sMT = 27; sNT = 28
    vLANE = 1; vL16 = 2; vT = 8
    NV = 200
    a(f"s_cmp_ge_u32 s2, {K3_GRID}")
    a("s_cbranch_scc1 K3_END")
    stamp(a, 0)
    a("s_load_dwordx2 s[4:5], s[0:1], 72")
    a("s_load_dwordx2 s[36:37], s[0:1], 56")
    a(f"v_and_b32 v{vLANE}, 63, v0")
    a(f"v_lshrrev_b32 v{vT}, 6, v0")
    a(f"s_and_b32 s{sMT}, s2, 7")
    a(f"v_readfirstlane_b32 s{sW}, v{vT}")
    a(f"s_lshl_b32 s{sMT}, s{sMT}, 2")
    a(f"s_lshr_b32 s29, s2, 6")
    a(f"s_add_u32 s{sMT}, s{sMT}, s29")
    a(f"s_lshr_b32 s{sNT}, s2, 3")
    a(f"s_and_b32 s{sNT}, s{sNT}, 7")
    a(f"v_lshlrev_b32 v{vL16}, 4, v{vLANE}")
    bufss = [((ss // 2) % 3) * K3_BUF + (ss & 1) * 20 * 1024 for ss in range(10)]
    c = proj_core(a, "K3", SWS, SOUT, sW, sMT, sNT, 40, bufss, lambda p, j, sM0: f"s_add_u32 m0, s{sM0}, {(p % 3)*K3_BUF + j*8192}",
                  {0: [2], 1: [3], 3: [4]}, optval("k3opre", 4))
    c.setup()
    a("s_waitcnt lgkmcnt(0)")
    srd(a, SWS, 4, 5, WS_USED)
    srd(a, SOUT, 36, 37, 2048 * 1280)
    c.addr_setup(0)
    c.body([("W", 0), ("o", 0), ("o", 1), ("W", 1), ("o", 2), ("o", 3)])
    stamp(a, 4)
    if PROF: a("s_waitcnt vmcnt(0)")
    stamp(a, 5)
    stamp_flush(a, 2, 6, SWS, sW, vT)
    a.lab("K3_END")
    a("s_endpgm")
    return name, NV

def build(kernels=("k1", "k2", "k3")):
    a = Asm()
    fuse = "nofuse" not in OPT
    k3line = "" if fuse else f"; @launch kernel=k3_proj_kernel grid=({K3_GRID},1,1) block=(512,1,1) lds={K3_LDS}\n"
    hdr = f"""; Gated mix of sliding-window dilated attention (A) and full softmax MHA (B): three launches.
; @launch kernel=k1_qkv_kernel grid=(256,1,1) block=(512,1,1) lds={K1_LDS}
; @launch kernel=k2_attn_kernel grid=(256,1,1) block=(512,1,1) lds={K2_LDS}
{k3line}.amdgcn_target "amdgcn-amd-amdhsa--gfx950"
.text
"""
    descs = []
    for g in ((gen_k1, gen_k2) if fuse else (gen_k1, gen_k2, gen_k3)):
        n, nv = g(a)
        descs.append(kernel_desc(n, nv))
    txt = a.text()
    txt = txt.replace("K1_TEXT_SIZE", "(K1_TEXT_END-k1_qkv_kernel)")
    txt = txt.replace("K2CODE_WAVES", "((K2_TEXT_END-k2_attn_kernel) >> 13)")
    return hdr + txt + '.section .rodata,"a"\n' + "".join(".p2align 6\n" + d for d in descs)

if __name__ == "__main__":
    if len(sys.argv) > 2 and sys.argv[2] == "prof":
        PROF = True
    OPT.update(sys.argv[3:])
    if "st_plain" in OPT: STORE_FLAGS = ""
    if "st_sc1" in OPT: STORE_FLAGS = " sc1"
    if "st_nt" in OPT: STORE_FLAGS = " nt"
    if "st_sc01" in OPT: STORE_FLAGS = " sc0 sc1"
    if "st_sc1nt" in OPT: STORE_FLAGS = " sc1 nt"
    if "st_all" in OPT: STORE_FLAGS = " sc0 sc1 nt"
    out = sys.argv[1] if len(sys.argv) > 1 else f"cdna_kernels/{NAME}.s"
    open(out, "w").write(build())
    print("wrote", out)
```

```python
import sys, struct

NAME = "gated_mix__sliding_local_dilated__softmax_full_mha__prompt"

KV_HEAD = 163840
KV_CH = 20480
Q_HEAD = 81920
Q_CH = 10240
KVA_OFF = 0
KVB_OFF = 32 * KV_HEAD
QA_OFF = 2 * 32 * KV_HEAD
QB_OFF = QA_OFF + 32 * Q_HEAD
G_OFF = QB_OFF + 32 * Q_HEAD
FL_OFF = 0xF04000
WT_OFF = 0xF10000
O_OFF = 0x1100000
O_SIZE = 128 * 40 * 1024
WS_USED = 0x2400000
QSCALE = (20 ** -0.5) * 1.4426950408889634

def f2u(x):
    return struct.unpack("<I", struct.pack("<f", x))[0]

class Asm:
    def __init__(self):
        self.l = []
    def __call__(self, s):
        for x in s.strip("\n").split("\n"):
            self.l.append("    " + x.strip())
    def lab(self, s):
        self.l.append(s + ":")
    def raw(self, s):
        self.l.append(s)
    def text(self):
        return "\n".join(self.l) + "\n"

def vr(b, n=1):
    return f"v{b}" if n == 1 else f"v[{b}:{b+n-1}]"
def sr(b, n=1):
    return f"s{b}" if n == 1 else f"s[{b}:{b+n-1}]"

def kernel_head(a, name):
    a.raw(f".globl {name}")
    a.raw(".p2align 8")
    a.raw(f".type {name},@function")
    a.lab(name)

def kernel_desc(name, nv, ns=102):
    acc = (nv + 3) // 4 * 4
    return f""".amdhsa_kernel {name}
  .amdhsa_next_free_vgpr {nv}
  .amdhsa_next_free_sgpr {ns}
  .amdhsa_accum_offset {acc}
  .amdhsa_group_segment_fixed_size 0
  .amdhsa_kernarg_size 80
  .amdhsa_user_sgpr_count 2
  .amdhsa_user_sgpr_kernarg_segment_ptr 1
  .amdhsa_system_sgpr_workgroup_id_x 1
  .amdhsa_float_denorm_mode_32 3
  .amdhsa_float_denorm_mode_16_64 3
.end_amdhsa_kernel
"""

PROF = False
OPT = set()
STORE_FLAGS = " sc1"
PROF_OFF = 0x2000000
def optval(name, default):
    for o in OPT:
        if o.startswith(name + "="): return int(o.split("=")[1])
    return default
def stamp(a, i):
    if PROF:
        a(f"s_memtime s[{80+2*i}:{81+2*i}]")
        if i == 0: a("s_memrealtime s[76:77]")
def stamp_flush(a, kidx, n, srdreg, wave_sgpr, vtmp):
    if not PROF: return
    a("s_memrealtime s[98:99]")
    a("s_waitcnt lgkmcnt(0)")
    a(f"s_lshl_b32 s75, s2, 3")
    a(f"s_add_u32 s75, s75, s{wave_sgpr}")
    a(f"s_lshl_b32 s75, s75, 6")
    a(f"s_add_u32 s75, s75, {PROF_OFF + kidx * 0x100000}")
    a("s_mov_b64 exec, 1")
    a(f"v_mov_b32 v{vtmp+1}, 0")
    for i in range(n):
        a(f"v_mov_b32 v{vtmp}, s{80+2*i}")
        a(f"buffer_store_dword v{vtmp}, v{vtmp+1}, s[{srdreg}:{srdreg+3}], s75 offen offset:{4*i}")
    a(f"v_mov_b32 v{vtmp}, s76")
    a(f"buffer_store_dword v{vtmp}, v{vtmp+1}, s[{srdreg}:{srdreg+3}], s75 offen offset:56")
    a(f"v_mov_b32 v{vtmp}, s98")
    a(f"buffer_store_dword v{vtmp}, v{vtmp+1}, s[{srdreg}:{srdreg+3}], s75 offen offset:60")

def srd(a, d, lo, hi, size):
    a(f"s_mov_b32 s{d}, s{lo}")
    a(f"s_and_b32 s{d+1}, s{hi}, 0xffff")
    a(f"s_mov_b32 s{d+2}, {size}")
    a(f"s_mov_b32 s{d+3}, 0x00020000")

K1_XB = 32768
K1_BUF = 32768 + 16384
K1_NBUF = 3
K1_LDS = K1_BUF * K1_NBUF

def gen_k1(a):
    PF0 = optval("pf0", 3)
    name = "k1_qkv_kernel"
    kernel_head(a, name)
    SX = 12; SW = 16; SWS = 20; SG = 24
    sW = 32; sWM = 33; sWN = 34; sI = 35; sRD = 36; sWRB = 37
    sXS = 38; sWS1 = 39; sXM0 = 41; sWM0 = 42; sMT = 43; sNT = 44; sBR = 45
    sTMP = 46; sTMP2 = 47; sTMP3 = 48; sTMP4 = 49
    sSEC = 50; sFB = 51; sEO = 52; sD = 53; sHS = 54; sSC = 56
    vLANE = 1; vXO = 2; vWO = 4
    vXR = 6
    vWR = 10
    vXA = 12
    vWA = 16
    vT = 18
    vXF = 32
    vWF = 64
    vACC = 96
    vEO = 160
    vPF = 176
    NV = 184

    a("s_cmp_ge_u32 s2, 256")
    a("s_cbranch_scc1 K1_END")
    if "noselfpf" not in OPT:
        a("s_getpc_b64 s[78:79]")
        a.lab("K1_PC0")
        a("s_sub_u32 s78, s78, K1_PC0-k1_qkv_kernel")
        a("s_subb_u32 s79, s79, 0")
        a("v_lshlrev_b32 v180, 7, v0")
        a("v_cmp_gt_u32 vcc, K1_TEXT_SIZE, v180")
        a("s_and_saveexec_b64 s[72:73], vcc")
        a("s_cbranch_execz K1_SPF")
        a("global_load_dword v181, v180, s[78:79]")
        a.lab("K1_SPF")
        a("s_mov_b64 exec, s[72:73]")
    stamp(a, 0)
    if "dbgtime" in OPT:
        a("s_memrealtime s[90:91]")
        a("s_memtime s[88:89]")
    a("s_lshr_b32 s45, s2, 2")
    a("s_and_b32 s45, s45, 1")
    a("s_mul_i32 s46, s45, 24")
    a("s_add_u32 s46, s46, 8")
    a("s_load_dwordx2 s[10:11], s[0:1], s46")
    a("s_load_dwordx2 s[8:9], s[0:1], 0")
    a("s_load_dwordx2 s[4:5], s[0:1], 72")
    a("s_load_dwordx2 s[6:7], s[0:1], 48")
    a(f"v_and_b32 v{vLANE}, 63, v0")
    a(f"v_lshrrev_b32 v{vT}, 6, v0")
    a(f"s_lshr_b32 s{sTMP}, s2, 3")
    a(f"v_readfirstlane_b32 s{sW}, v{vT}")
    a(f"s_and_b32 s{sMT}, s2, 3")
    a(f"s_lshl_b32 s{sMT}, s{sMT}, 1")
    a(f"s_and_b32 s{sTMP2}, s{sTMP}, 1")
    a(f"s_add_u32 s{sMT}, s{sMT}, s{sTMP2}")
    a(f"s_lshr_b32 s{sNT}, s{sTMP}, 1")
    a(f"s_cmp_ge_u32 s{sNT}, 15")
    a("s_cbranch_scc1 K1_GATE")
    a(f"s_and_b32 s{sWM}, s{sW}, 3")
    a(f"s_lshr_b32 s{sWN}, s{sW}, 2")
    a(f"v_lshrrev_b32 v{vT}, 3, v{vLANE}")
    a(f"v_lshrrev_b32 v{vT+1}, 4, v{vLANE}")
    a(f"v_xor_b32 v{vT+1}, v{vT+1}, v{vLANE}")
    a(f"v_and_b32 v{vT+1}, 7, v{vT+1}")
    a(f"s_lshl_b32 s{sTMP}, s{sMT}, 8")
    a(f"s_lshl_b32 s{sTMP2}, s{sW}, 5")
    a(f"s_add_u32 s{sTMP}, s{sTMP}, s{sTMP2}")
    a(f"v_add_u32 v{vT}, s{sTMP}, v{vT}")
    a(f"v_mul_u32_u24 v{vT}, 1280, v{vT}")
    a(f"v_lshl_add_u32 v{vXO}, v{vT+1}, 4, v{vT}")
    a(f"v_xor_b32 v{vXO+1}, 64, v{vXO}")
    a(f"v_lshrrev_b32 v{vT}, 4, v{vLANE}")
    a(f"v_lshlrev_b32 v{vT+1}, 2, v{vT}")
    a(f"v_xor_b32 v{vT+1}, v{vT+1}, v{vLANE}")
    a(f"v_and_b32 v{vT+1}, 15, v{vT+1}")
    a(f"s_lshl_b32 s{sTMP}, s{sW}, 3")
    a(f"v_add_u32 v{vT}, s{sTMP}, v{vT}")
    a(f"v_mul_u32_u24 v{vT}, 3840, v{vT}")
    a(f"v_lshl_add_u32 v{vT}, v{vT+1}, 4, v{vT}")
    a(f"s_lshl_b32 s{sTMP}, s{sNT}, 8")
    a(f"v_add_u32 v{vWO}, s{sTMP}, v{vT}")
    a(f"s_lshl_b32 s{sXM0}, s{sW}, 12")
    a(f"s_lshl_b32 s{sWM0}, s{sW}, 11")
    a(f"s_add_u32 s{sWM0}, s{sWM0}, {K1_XB}")
    a("s_waitcnt lgkmcnt(0)")
    srd(a, SX, 8, 9, 2048 * 1280)
    srd(a, SW, 10, 11, 640 * 3840)

    def dma_list(buf_s, inloop=False):
        g = []
        if "k1nodma" in OPT and inloop: return [["s_nop 0"]] * 6
        for i in range(4):
            g.append([f"s_add_u32 m0, s{buf_s}, s{sXM0}" if i == 0 else f"s_add_u32 m0, m0, 1024",
                      f"s_add_u32 s{sTMP3}, s{sXS}, {i*8*1280}",
                      f"buffer_load_dwordx4 v{vXO + (i & 1)}, s[{SX}:{SX+3}], s{sTMP3} offen lds"])
        for i in range(2):
            g.append([f"s_add_u32 m0, s{buf_s}, s{sWM0}" if i == 0 else f"s_add_u32 m0, m0, 1024",
                      f"s_add_u32 s{sTMP3}, s{sWS1}, {i*4*3840}",
                      f"buffer_load_dwordx4 v{vWO}, s[{SW}:{SW+3}], s{sTMP3} offen lds"])
        g[-1] = g[-1] + [f"s_add_u32 s{sXS}, s{sXS}, 128", f"s_add_u32 s{sWS1}, s{sWS1}, {64*3840}"]
        return g
    a(f"s_mov_b32 s{sXS}, 0")
    a(f"s_mov_b32 s{sWS1}, 0")
    a(f"s_mov_b32 s{sWRB}, 0")
    for g in dma_list(sWRB):
        for x in g: a(x)
    srd(a, SWS, 4, 5, WS_USED)
    a(f"v_and_b32 v{vT}, 31, v{vLANE}")
    a(f"v_lshrrev_b32 v{vT+1}, 5, v{vLANE}")
    a(f"v_bfe_u32 v{vT+2}, v{vLANE}, 1, 3")
    a(f"v_xor_b32 v{vT+2}, v{vT+2}, v{vT+1}")
    a(f"v_lshlrev_b32 v{vT+2}, 4, v{vT+2}")
    a(f"v_lshl_add_u32 v{vXR}, v{vT}, 7, v{vT+2}")
    a(f"s_lshl_b32 s{sTMP}, s{sWM}, 13")
    a(f"v_add_u32 v{vXR}, s{sTMP}, v{vXR}")
    for kk in range(1, 4):
        a(f"v_xor_b32 v{vXR+kk}, {kk << 5}, v{vXR}")
    a(f"v_bfe_u32 v{vT+2}, v{vLANE}, 2, 2")
    a(f"v_lshl_add_u32 v{vT+3}, v{vT+1}, 3, v{vT+2}")
    a(f"v_lshlrev_b32 v{vT+3}, 8, v{vT+3}")
    a(f"v_and_b32 v{vT+4}, 3, v{vLANE}")
    a(f"v_lshl_add_u32 v{vT+3}, v{vT+4}, 3, v{vT+3}")
    a(f"v_bfe_u32 v{vT+4}, v{vLANE}, 4, 1")
    a(f"v_lshl_add_u32 v{vT+3}, v{vT+4}, 5, v{vT+3}")
    a(f"v_add_u32 v{vT+3}, {K1_XB}, v{vT+3}")
    a(f"s_lshl_b32 s{sTMP}, s{sWN}, 1")
    for bl in range(2):
        a(f"s_add_u32 s{sTMP2}, s{sTMP}, {bl}")
        a(f"v_xor_b32 v{vT+5}, s{sTMP2}, v{vT+2}")
        a(f"v_lshl_add_u32 v{vWR+bl}, v{vT+5}, 6, v{vT+3}")
    PF = "k1pf" in OPT
    if PF:
        a(f"s_lshr_b32 s{sTMP}, s2, 3")
        a(f"s_cmp_lt_u32 s{sW}, 6")
        a("s_cbranch_scc0 K1_PFX")
        a(f"s_mul_i32 s{sTMP}, s{sTMP}, 6")
        a(f"s_add_u32 s{sTMP}, s{sTMP}, s{sW}")
        a(f"s_mul_i32 s{sTMP}, s{sTMP}, 11")
        a(f"v_min_u32 v{vT}, 10, v{vLANE}")
        a(f"v_add_u32 v{vT}, s{sTMP}, v{vT}")
        a(f"v_min_u32 v{vT}, 1919, v{vT}")
        a(f"v_mul_u32_u24 v{vT+1}, 34953, v{vT}")
        a(f"v_lshrrev_b32 v{vT+1}, 20, v{vT+1}")
        a(f"v_mul_u32_u24 v{vT+2}, 30, v{vT+1}")
        a(f"v_sub_u32 v{vT+2}, v{vT}, v{vT+2}")
        a(f"v_mul_u32_u24 v{vT+1}, 3840, v{vT+1}")
        a(f"v_lshl_add_u32 v{vPF}, v{vT+2}, 7, v{vT+1}")
        for i in range(4): a(f"s_mov_b32 s{64+i}, s{SW+i}")
        a(f"s_mov_b32 s68, {64*3840}")
        a("s_branch K1_PFD")
        a.lab("K1_PFX")
        a(f"s_lshl_b32 s{sTMP}, s{sTMP}, 1")
        a(f"s_add_u32 s{sTMP}, s{sTMP}, s{sW}")
        a(f"s_sub_u32 s{sTMP}, s{sTMP}, 6")
        a(f"s_mul_i32 s{sTMP}, s{sTMP}, 9")
        a(f"v_min_u32 v{vT}, 8, v{vLANE}")
        a(f"v_add_u32 v{vT}, s{sTMP}, v{vT}")
        a(f"v_min_u32 v{vT}, 511, v{vT}")
        a(f"s_and_b32 s{sTMP}, s2, 3")
        a(f"s_lshl_b32 s{sTMP}, s{sTMP}, 9")
        a(f"v_add_u32 v{vT}, s{sTMP}, v{vT}")
        a(f"v_mul_u32_u24 v{vPF}, 1280, v{vT}")
        for i in range(4): a(f"s_mov_b32 s{64+i}, s{SX+i}")
        a(f"s_mov_b32 s68, 128")
        a.lab("K1_PFD")
        a(f"s_mul_i32 s69, s68, {PF0}")
    def pf_group():
        return [f"buffer_load_dword v{vPF+1}, v{vPF}, s[64:67], s69 offen", f"s_add_u32 s69, s69, s68"]
    a(f"s_mul_i32 s{sSEC}, s{sNT}, 52")
    a(f"s_lshr_b32 s{sSEC}, s{sSEC}, 8")
    a(f"s_mul_i32 s{sTMP}, s{sSEC}, 5")
    a(f"s_sub_u32 s{sFB}, s{sNT}, s{sTMP}")
    a(f"s_lshl_b32 s{sFB}, s{sFB}, 7")
    a(f"s_lshl_b32 s{sTMP}, s{sWN}, 6")
    a(f"s_add_u32 s{sFB}, s{sFB}, s{sTMP}")
    a(f"s_cmp_eq_u32 s{sSEC}, 2")
    a("s_cbranch_scc1 K1_VPREP")
    a(f"s_cmp_eq_u32 s{sSEC}, 0")
    a(f"s_cselect_b32 s{sSC}, {f2u(QSCALE):#x}, 1.0")
    a(f"s_mov_b32 s{sSC+1}, s{sSC}")
    a(f"s_mov_b32 s{sTMP}, {KV_HEAD}")
    a(f"s_cselect_b32 s{sHS}, {Q_HEAD}, s{sTMP}")
    a(f"s_mov_b32 s{sTMP}, {KV_CH}")
    a(f"s_cselect_b32 s{sTMP2}, {Q_CH}, s{sTMP}")
    a(f"s_mul_i32 s{sEO}, s{sMT}, s{sTMP2}")
    a(f"s_mul_i32 s{sTMP2}, s{sBR}, {QB_OFF - QA_OFF}")
    a(f"s_add_u32 s{sTMP2}, s{sTMP2}, {QA_OFF}")
    a(f"s_mul_i32 s{sTMP3}, s{sBR}, {KVB_OFF - KVA_OFF}")
    a(f"s_cmp_eq_u32 s{sSEC}, 0")
    a(f"s_cselect_b32 s{sTMP2}, s{sTMP2}, s{sTMP3}")
    a(f"s_add_u32 s{sEO}, s{sEO}, s{sTMP2}")
    a(f"s_mul_i32 s{sTMP}, s{sWM}, 2560")
    a(f"s_add_u32 s{sEO}, s{sEO}, s{sTMP}")
    a(f"s_lshr_b32 s{sTMP}, s{sFB}, 2")
    a(f"v_lshrrev_b32 v{vT+6}, 5, v{vLANE}")
    a(f"v_add_u32 v{vT+6}, s{sTMP}, v{vT+6}")
    a(f"v_and_b32 v{vT+7}, 31, v{vLANE}")
    a(f"v_lshlrev_b32 v{vT+7}, 3, v{vT+7}")
    a(f"v_mov_b32 v{vT+8}, 0x43120")
    for e in range(8):
        a(f"v_add_u32 v{vT}, {2*e}, v{vT+6}")
        a(f"v_mul_u32_u24 v{vT+1}, 52429, v{vT}")
        a(f"v_lshrrev_b32 v{vT+1}, 18, v{vT+1}")
        a(f"v_mul_u32_u24 v{vT+2}, 5, v{vT+1}")
        a(f"v_sub_u32 v{vT+2}, v{vT}, v{vT+2}")
        a(f"v_lshlrev_b32 v{vT+2}, 2, v{vT+2}")
        a(f"v_bfe_u32 v{vT+2}, v{vT+8}, v{vT+2}, 4")
        a(f"v_lshl_add_u32 v{vT+2}, v{vT+2}, 8, v{vT+7}")
        a(f"v_mad_u32_u24 v{vEO+e}, v{vT+1}, s{sHS}, v{vT+2}")
    a(f"v_and_b32 v{vT}, 1, v{vLANE}")
    a(f"v_cmp_eq_u32 vcc, 0, v{vT}")
    a(f"v_lshlrev_b32 v{vT}, 3, v{vT}")
    a("s_nop 0")
    a("s_mov_b64 s[60:61], vcc")
    for p in range(4):
        a(f"v_cndmask_b32 v{vEO+8+p}, v{vEO+2*p+1}, v{vEO+2*p}, vcc")
        a(f"v_sub_u32 v{vEO+8+p}, v{vEO+8+p}, v{vT}")
    a("s_branch K1_T")
    a.lab("K1_VPREP")
    a(f"s_mul_i32 s{sEO}, s{sMT}, {KV_CH}")
    a(f"s_mul_i32 s{sTMP}, s{sBR}, {KVB_OFF - KVA_OFF}")
    a(f"s_add_u32 s{sEO}, s{sEO}, s{sTMP}")
    a(f"s_mul_i32 s{sTMP}, s{sWM}, {4*640}")
    a(f"s_add_u32 s{sEO}, s{sEO}, s{sTMP}")
    a(f"s_add_u32 s{sEO}, s{sEO}, 10240")
    a(f"s_mov_b32 s{sHS}, {KV_HEAD}")
    for bl in range(2):
        a(f"s_add_u32 s{sTMP}, s{sFB}, {32*bl}")
        a(f"v_and_b32 v{vT}, 31, v{vLANE}")
        a(f"v_add_u32 v{vT}, s{sTMP}, v{vT}")
        a(f"v_mul_u32_u24 v{vT+1}, 52429, v{vT}")
        a(f"v_lshrrev_b32 v{vT+1}, 20, v{vT+1}")
        a(f"v_mul_u32_u24 v{vT+2}, 20, v{vT+1}")
        a(f"v_sub_u32 v{vT+2}, v{vT}, v{vT+2}")
        a(f"v_lshrrev_b32 v{vT+3}, 5, v{vLANE}")
        a(f"v_mul_u32_u24 v{vT+3}, 320, v{vT+3}")
        a(f"v_lshl_add_u32 v{vT+3}, v{vT+2}, 4, v{vT+3}")
        a(f"v_mad_u32_u24 v{vEO+bl}, v{vT+1}, s{sHS}, v{vT+3}")
    a("s_branch K1_C")

    def variant(tag):
        a.lab(f"K1_{tag}")
        def reads(st, ph):
            out = []
            if "k1noread" in OPT: return ["s_nop 0"] * 12
            for q in range(2):
                kk = 2 * ph + q
                for j in range(2):
                    r = vXF + st * 16 + (q * 2 + j) * 4
                    out.append(f"ds_read_b128 v[{r}:{r+3}], v{vXA+kk} offset:{j*4096}")
                    r = vWF + st * 16 + (q * 2 + j) * 4
                    out.append(f"ds_read_b64_tr_b16 v[{r}:{r+1}], v{vWA+j} offset:{kk*4096}")
                    out.append(f"ds_read_b64_tr_b16 v[{r+2}:{r+3}], v{vWA+j} offset:{kk*4096+1024}")
            return out
        def mfmas(st, zero=False):
            out = []
            if "k1nomfma" in OPT: return ["s_nop 0"] * 8
            for q in range(2):
                for bl in range(2):
                    for mb in range(2):
                        acc = vACC + (bl * 2 + mb) * 16
                        xf = f"v[{vXF+st*16+(q*2+mb)*4}:{vXF+st*16+(q*2+mb)*4+3}]"
                        wf = f"v[{vWF+st*16+(q*2+bl)*4}:{vWF+st*16+(q*2+bl)*4+3}]"
                        c = "0" if (zero and q == 0) else f"v[{acc}:{acc+15}]"
                        if tag == "T":
                            out.append(f"v_mfma_f32_32x32x16_bf16 v[{acc}:{acc+15}], {wf}, {xf}, {c}")
                        else:
                            out.append(f"v_mfma_f32_32x32x16_bf16 v[{acc}:{acc+15}], {xf}, {wf}, {c}")
            return out
        def setaddr(sreg):
            return [f"v_add_u32 v{vXA+i}, s{sreg}, v{vXR+i}" for i in range(4)] + [f"v_add_u32 v{vWA+i}, s{sreg}, v{vWR+i}" for i in range(2)]
        def weave(mf, extras, upto=None):
            n = upto or len(mf); m = len(extras)
            k = 0
            for i, x in enumerate(mf):
                a(x)
                tgt = min(m, ((i + 1) * m + n - 1) // n)
                while k < tgt:
                    for y in extras[k]: a(y)
                    k += 1
        def mix(rd, dm, tail):
            ex = []
            nd = len(dm)
            for i, r in enumerate(rd):
                ex.append([r])
                if nd == 3 and i % 4 == 3: ex.append(dm[i // 4])
                if nd == 6 and i % 2 == 1: ex.append(dm[i // 2])
            return ex + tail
        def phaseA(zero, dm):
            ring = [[f"s_add_u32 s{sRD}, s{sRD}, {K1_BUF}", f"s_cmp_eq_u32 s{sRD}, {K1_LDS}", f"s_cselect_b32 s{sRD}, 0, s{sRD}"]]
            mf = mfmas(0, zero)
            weave(mf[:7], mix(reads(1, 1), dm, ring), upto=6)
            return mf[7:]
        a(f"s_mov_b32 s{sWRB}, {K1_BUF}")
        for g in dma_list(sWRB):
            for x in g: a(x)
        a(f"s_mov_b32 s{sWRB}, {2*K1_BUF}")
        NP0 = (5 - PF0) if PF else 0
        for i in range(NP0):
            for x in pf_group(): a(x)
        SL = "slice" in OPT
        def slice_groups():
            pre = [f"s_lshr_b32 s70, s2, 3", f"s_lshl_b32 s70, s70, 2", f"s_and_b32 s71, s2, 3", f"s_add_u32 s70, s70, s71",
                   f"s_lshl_b32 s70, s70, 3", f"s_add_u32 s70, s70, s{sW}", f"s_lshl_b32 s70, s70, 10", f"v_lshlrev_b32 v{vPF}, 4, v{vLANE}"]
            g = []
            for i in range(3):
                g.append([f"s_add_u32 s71, s70, {i*960*1024}",
                          f"buffer_load_dwordx4 v[{vPF+4}:{vPF+7}], v{vPF}, s[{SW}:{SW+3}], s71 offen"])
            g.append([f"s_mul_i32 s71, s{sBR}, {1280*1024}", f"s_add_u32 s71, s71, s70",
                      f"buffer_load_dwordx4 v[{vPF+4}:{vPF+7}], v{vPF}, s[{SX}:{SX+3}], s71 offen"])
            g.append([f"s_add_u32 s71, s71, {960*1024}", f"s_cmp_lt_u32 s70, {320*1024}", f"s_cselect_b32 s71, s71, s70",
                      f"buffer_load_dwordx4 v[{vPF+4}:{vPF+7}], v{vPF}, s[{SX}:{SX+3}], s71 offen"])
            return pre, g
        NP = 1 if PF else 0
        if SL and 'sliceearly' in OPT:
            pre, g = slice_groups()
            for x in pre: a(x)
            for gg in g:
                for x in gg: a(x)
            NP0 += 5
        stamp(a, 2)
        a(f"s_waitcnt vmcnt({6+NP0})")
        a("s_barrier")
        stamp(a, 3)
        a(f"s_mov_b32 s{sRD}, 0")
        for x in setaddr(sRD): a(x)
        for r in reads(0, 0): a(r)
        a(f"s_mov_b32 s{sI}, 0")
        adv = [f"s_add_u32 s{sWRB}, s{sWRB}, {K1_BUF}", f"s_cmp_eq_u32 s{sWRB}, {K1_LDS}", f"s_cselect_b32 s{sWRB}, 0, s{sWRB}"]
        a("s_waitcnt lgkmcnt(0)")
        LATE = SL and 'sliceearly' not in OPT
        if LATE:
            pre, g = slice_groups()
            for x in pre: a(x)
        last = phaseA(True, dma_list(sWRB, True))
        if LATE:
            for gg in g:
                for x in gg: a(x)
        for x in last: a(x)
        a(f"s_waitcnt vmcnt({6+NP0+(5 if LATE else 0)}) lgkmcnt(0)")
        a(f"s_branch K1_{tag}_WB")
        a.lab(f"K1_{tag}_LOOP")
        a("s_waitcnt lgkmcnt(0)")
        a(f"s_cmp_ge_u32 s{sI}, 8")
        a(f"s_cbranch_scc1 K1_{tag}_AND")
        last = phaseA(False, [] if "k1allc" in OPT else dma_list(sWRB, True)[3:])
        for x in last: a(x)
        a.lab(f"K1_{tag}_B")
        if LATE:
            a(f"s_cmp_eq_u32 s{sI}, 1")
            a(f"s_cbranch_scc1 K1_{tag}_B1")
        a(f"s_waitcnt vmcnt({6+NP}) lgkmcnt(0)")
        a.lab(f"K1_{tag}_WB")
        if "k1stamp" in OPT:
            a("s_memtime s[78:79]")
        if "k1nobar" not in OPT: a("s_barrier")
        if "k1stamp" in OPT:
            a("s_memtime s[74:75]")
            a("s_waitcnt lgkmcnt(0)")
            a(f"s_mov_b32 s79, m0")
            a(f"s_mov_b32 m0, s{sI}")
            a("s_nop 0")
            a(f"v_writelane_b32 v179, s74, m0")
            a(f"s_add_u32 m0, m0, 16")
            a("s_nop 0")
            a(f"v_writelane_b32 v179, s78, m0")
            a(f"s_mov_b32 m0, s79")
        mf = mfmas(1)
        a(mf[0])
        for x in setaddr(sRD): a(x)
        for x in adv: a(x)
        rd = reads(0, 0)
        a(f"s_cmp_ge_u32 s{sI}, 7")
        a(f"s_cbranch_scc1 K1_{tag}_ND")
        cnt = [[f"s_add_u32 s{sI}, s{sI}, 1"]]
        weave(mf[1:], mix(rd, dma_list(sWRB, True)[:3], ([pf_group()] if PF else []) + cnt), upto=6)
        a(f"s_branch K1_{tag}_LOOP")
        a.lab(f"K1_{tag}_ND")
        weave(mf[1:], mix(rd, [], cnt), upto=6)
        a(f"s_cmp_lt_u32 s{sI}, 10")
        a(f"s_cbranch_scc1 K1_{tag}_LOOP")
        stamp(a, 4)
        a("s_nop 7")
        a("s_nop 3")
        n = 0
        for bl in range(2):
            for mb in range(2):
                acc = vACC + (bl * 2 + mb) * 16
                if tag == "T" and "t8" in OPT:
                    for i in range(4):
                        q = acc + 4 * i
                        t = vXF + (n % 16) * 2; n += 1
                        a(f"v_pk_mul_f32 v[{q}:{q+1}], v[{q}:{q+1}], s[{sSC}:{sSC+1}]")
                        a(f"v_pk_mul_f32 v[{q+2}:{q+3}], v[{q+2}:{q+3}], s[{sSC}:{sSC+1}]")
                        a(f"v_cvt_pk_bf16_f32 v{t}, v{q}, v{q+1}")
                        a(f"v_cvt_pk_bf16_f32 v{t+1}, v{q+2}, v{q+3}")
                        a(f"buffer_store_dwordx2 v[{t}:{t+1}], v{vEO + 4*bl + i}, s[{SWS}:{SWS+3}], s{sEO} offen offset:{mb*1280}{STORE_FLAGS}")
                elif tag == "T":
                    t = vXF + (n % 4) * 16; n += 1
                    for i in range(4):
                        q = acc + 4 * i
                        a(f"v_pk_mul_f32 v[{q}:{q+1}], v[{q}:{q+1}], s[{sSC}:{sSC+1}]")
                        a(f"v_pk_mul_f32 v[{q+2}:{q+3}], v[{q+2}:{q+3}], s[{sSC}:{sSC+1}]")
                        a(f"v_cvt_pk_bf16_f32 v{t+2*i}, v{q}, v{q+1}")
                        a(f"v_cvt_pk_bf16_f32 v{t+2*i+1}, v{q+2}, v{q+3}")
                    DP = "quad_perm:[1,0,3,2] row_mask:0xf bank_mask:0xf"
                    a("s_mov_b64 vcc, s[60:61]")
                    for pr in range(2):
                        A0 = t + 4 * pr; B0 = A0 + 2; o = t + 8 + 4 * pr
                        a(f"v_cndmask_b32_dpp v{o}, v{B0}, v{A0}, vcc {DP}")
                        a(f"v_cndmask_b32_dpp v{o+1}, v{B0+1}, v{A0+1}, vcc {DP}")
                    a("s_not_b64 vcc, vcc")
                    for pr in range(2):
                        A0 = t + 4 * pr; B0 = A0 + 2; o = t + 8 + 4 * pr
                        a(f"v_cndmask_b32_dpp v{o+2}, v{A0}, v{B0}, vcc {DP}")
                        a(f"v_cndmask_b32_dpp v{o+3}, v{A0+1}, v{B0+1}, vcc {DP}")
                    for pr in range(2):
                        o = t + 8 + 4 * pr
                        a(f"buffer_store_dwordx4 v[{o}:{o+3}], v{vEO + 8 + 2*bl + pr}, s[{SWS}:{SWS+3}], s{sEO} offen offset:{mb*1280}{STORE_FLAGS}")
                else:
                    for g2 in range(2):
                        q = acc + 8 * g2
                        t = vXF + (n % 8) * 4; n += 1
                        for i in range(4):
                            a(f"v_cvt_pk_bf16_f32 v{t+i}, v{q+2*i}, v{q+2*i+1}")
                        a(f"buffer_store_dwordx4 v[{t}:{t+3}], v{vEO+bl}, s[{SWS}:{SWS+3}], s{sEO} offen offset:{(2*mb+g2)*640}{STORE_FLAGS}")
        a("s_branch K1_FIN")
        if LATE:
            a.lab(f"K1_{tag}_B1")
            a(f"s_waitcnt vmcnt({6+NP+5}) lgkmcnt(0)")
            a(f"s_branch K1_{tag}_WB")
        a.lab(f"K1_{tag}_AND")
        last = phaseA(False, [])
        for x in last: a(x)
        a("s_waitcnt vmcnt(0) lgkmcnt(0)")
        a(f"s_branch K1_{tag}_WB")
    variant("T")
    variant("C")

    GPF0 = optval("gpf0", 3)
    a.lab("K1_GATE")
    a("s_waitcnt lgkmcnt(0)")
    srd(a, SX, 8, 9, 2048 * 1280)
    srd(a, SG, 6, 7, 1280)
    srd(a, SWS, 4, 5, WS_USED)
    if "gmall" in OPT:
        a("s_load_dwordx2 s[58:59], s[0:1], 8")
        a("s_load_dwordx2 s[70:71], s[0:1], 32")
        a(f"s_sub_u32 s{sTMP}, s2, 240")
        a(f"s_lshl_b32 s{sTMP}, s{sTMP}, 3")
        a(f"s_add_u32 s{sTMP}, s{sTMP}, s{sW}")
        a(f"v_lshlrev_b32 v{vT+1}, 4, v{vLANE}")
        a(f"v_lshrrev_b32 v{vT+2}, 3, v{vLANE}")
        a(f"s_lshl_b32 s{sTMP2}, s{sTMP}, 4")
        a(f"v_add_u32 v{vT+2}, s{sTMP2}, v{vT+2}")
        a(f"v_mul_u32_u24 v{vT+2}, 1280, v{vT+2}")
        a(f"v_and_b32 v{vT+3}, 7, v{vLANE}")
        a(f"v_lshl_add_u32 v{vT+2}, v{vT+3}, 4, v{vT+2}")
        a("s_waitcnt lgkmcnt(0)")
        srd(a, 60, 58, 59, 640 * 3840)
        srd(a, 64, 70, 71, 640 * 3840)
        a(f"s_lshl_b32 s72, s{sTMP}, 10")
        a(f"s_add_u32 s73, s72, {128*1024}")
        a(f"s_cmp_ge_u32 s{sTMP}, 112")
        a(f"s_cselect_b32 s73, s72, s73")
        a(f"s_mov_b32 s74, 0")
        for st in range(optval("mall0", 1), 10):
            wo = st * 64 * 3840
            a(f"s_add_u32 s76, s72, {wo}")
            a(f"buffer_load_dwordx4 v[{vXF}:{vXF+3}], v{vT+1}, s[60:63], s76 offen")
            a(f"buffer_load_dwordx4 v[{vXF+4}:{vXF+7}], v{vT+1}, s[64:67], s76 offen")
            a(f"s_add_u32 s76, s73, {wo}")
            a(f"buffer_load_dwordx4 v[{vXF+8}:{vXF+11}], v{vT+1}, s[60:63], s76 offen")
            a(f"buffer_load_dwordx4 v[{vXF+12}:{vXF+15}], v{vT+1}, s[64:67], s76 offen")
            a(f"s_mov_b32 s76, {st*128}")
            a(f"buffer_load_dwordx4 v[{vXF+16}:{vXF+19}], v{vT+2}, s[{SX}:{SX+3}], s76 offen")
            a(f"buffer_load_dwordx4 v[{vXF+20}:{vXF+23}], v{vT+2}, s[{SX}:{SX+3}], s76 offen offset:0" if False else
              f"s_add_u32 s76, s76, {8*1280}")
            a(f"buffer_load_dwordx4 v[{vXF+20}:{vXF+23}], v{vT+2}, s[{SX}:{SX+3}], s76 offen")
            a("s_waitcnt vmcnt(36)")
        a("s_waitcnt vmcnt(0)")
    TS = optval("tlbin", 0)
    if TS:
        srd(a, SW, 10, 11, 640 * 3840)
        sh = {4: 12, 16: 14, 64: 16}[TS]
        a(f"s_lshr_b32 s{sTMP}, s2, 3")
        a(f"s_and_b32 s{sTMP}, s{sTMP}, 1")
        a(f"s_lshl_b32 s{sTMP}, s{sTMP}, 3")
        a(f"s_add_u32 s{sTMP}, s{sTMP}, s{sW}")
        a(f"s_lshl_b32 s{sTMP}, s{sTMP}, 6")
        a(f"v_add_u32 v{vT+1}, s{sTMP}, v{vLANE}")
        a(f"v_lshlrev_b32 v{vT+1}, {sh}, v{vT+1}")
        n = max(1, -(-2621440 // ((1024) << sh)))
        for i in range(n):
            a(f"s_mov_b32 s{sTMP2}, {i * (1024 << sh)}")
            a(f"buffer_load_dword v{vPF}, v{vT+1}, s[{SW}:{SW+3}], s{sTMP2} offen")
            a(f"buffer_load_dword v{vPF+1}, v{vT+1}, s[{SX}:{SX+3}], s{sTMP2} offen")
    if "gpf" in OPT:
        srd(a, SW, 10, 11, 640 * 3840)
        a(f"s_lshr_b32 s{sTMP}, s2, 3")
        a(f"s_and_b32 s{sTMP}, s{sTMP}, 1")
        a(f"v_cmp_le_u32 vcc, 30, v{vLANE}")
        a(f"v_mov_b32 v{vT+1}, 0")
        a(f"v_mov_b32 v{vT+2}, {3840 - 30*128}")
        a(f"v_cndmask_b32 v{vT+1}, v{vT+1}, v{vT+2}, vcc")
        a(f"v_min_u32 v{vT+2}, 59, v{vLANE}")
        a(f"v_lshl_add_u32 v{vT+1}, v{vT+2}, 7, v{vT+1}")
        a(f"s_lshl_b32 s{sTMP2}, s{sTMP}, 5")
        a(f"s_lshl_b32 s{sTMP3}, s{sW}, 2")
        a(f"s_add_u32 s{sTMP2}, s{sTMP2}, s{sTMP3}")
        a(f"s_add_u32 s{sTMP2}, s{sTMP2}, {64*GPF0}")
        a(f"s_mul_i32 s{sTMP2}, s{sTMP2}, 3840")
        a(f"s_and_b32 s{sTMP3}, s2, 3")
        a(f"s_lshl_b32 s{sTMP3}, s{sTMP3}, 9")
        a(f"s_lshl_b32 s{sTMP}, s{sTMP}, 8")
        a(f"s_add_u32 s{sTMP3}, s{sTMP3}, s{sTMP}")
        a(f"s_and_b32 s{sTMP}, s{sW}, 3")
        a(f"s_lshl_b32 s{sTMP}, s{sTMP}, 6")
        a(f"s_add_u32 s{sTMP3}, s{sTMP3}, s{sTMP}")
        a(f"v_add_u32 v{vT+2}, s{sTMP3}, v{vLANE}")
        a(f"v_mul_u32_u24 v{vT+2}, 1280, v{vT+2}")
        a(f"s_mov_b32 s{sTMP3}, {128*GPF0}")
        for st in range(GPF0, 10):
            a(f"buffer_load_dword v{vPF}, v{vT+1}, s[{SW}:{SW+3}], s{sTMP2} offen")
            a(f"s_add_u32 s{sTMP}, s{sTMP2}, {2*3840}")
            a(f"buffer_load_dword v{vPF+1}, v{vT+1}, s[{SW}:{SW+3}], s{sTMP} offen")
            a(f"buffer_load_dword v{vPF+2}, v{vT+2}, s[{SX}:{SX+3}], s{sTMP3} offen")
            a(f"s_add_u32 s{sTMP2}, s{sTMP2}, {64*3840}")
            a(f"s_add_u32 s{sTMP3}, s{sTMP3}, 128")
    if "notlb" not in OPT:
        a(f"v_lshlrev_b32 v{vT+1}, 16, v{vLANE}")
        a(f"s_lshl_b32 s{sTMP}, s{sW}, 22")
        a(f"s_cmp_lt_u32 s{sW}, 6")
        a(f"s_cbranch_scc0 K1_NOTLB")
        a(f"buffer_load_dword v{vPF}, v{vT+1}, s[{SWS}:{SWS+3}], s{sTMP} offen")
        a.lab("K1_NOTLB")
    if "nocodepf" not in OPT:
        a(f"s_getpc_b64 s[78:79]")
        a.lab("K1_PC")
        a(f"s_add_u32 s78, s78, k2_attn_kernel-K1_PC")
        a(f"s_addc_u32 s79, s79, 0")
        a(f"v_lshlrev_b32 v{vT+1}, 7, v{vLANE}")
        a(f"s_lshl_b32 s{sTMP}, s{sW}, 13")
        a(f"v_add_u32 v{vT+1}, s{sTMP}, v{vT+1}")
        a(f"s_cmp_ge_u32 s{sW}, K2CODE_WAVES")
        a("s_cbranch_scc1 K1_NOCPF")
        a(f"global_load_dword v{vPF+2}, v{vT+1}, s[78:79]")
        a.lab("K1_NOCPF")
    a(f"s_cmp_lg_u32 s2, 240")
    a("s_cbranch_scc1 K1_NOZ")
    a(f"s_cmp_ge_u32 s{sW}, 4")
    a("s_cbranch_scc1 K1_NOZ")
    a(f"v_lshlrev_b32 v{vT+1}, 7, v{vLANE}")
    a(f"v_mov_b32 v{vT+2}, 0")
    a(f"s_lshl_b32 s{sTMP}, s{sW}, 13")
    a(f"s_add_u32 s{sTMP}, s{sTMP}, {FL_OFF}")
    a(f"buffer_store_dword v{vT+2}, v{vT+1}, s[{SWS}:{SWS+3}], s{sTMP} offen")
    a.lab("K1_NOZ")
    a(f"s_sub_u32 s{sTMP}, s2, 240")
    a(f"s_lshl_b32 s{sTMP}, s{sTMP}, 3")
    a(f"s_add_u32 s{sTMP}, s{sTMP}, s{sW}")
    a(f"s_cmp_ge_u32 s{sTMP}, 120")
    a("s_cbranch_scc1 K1_GATE2")
    a(f"s_mul_i32 s{sTMP2}, s{sTMP}, 171")
    a(f"s_lshr_b32 s{sTMP2}, s{sTMP2}, 9")
    a(f"s_mul_i32 s{sTMP3}, s{sTMP2}, 3")
    a(f"s_sub_u32 s{sTMP3}, s{sTMP}, s{sTMP3}")
    a("s_load_dwordx2 s[58:59], s[0:1], 16")
    a("s_load_dwordx2 s[70:71], s[0:1], 40")
    a(f"s_mul_i32 s{sD}, s{sTMP3}, 448")
    a(f"v_lshrrev_b32 v{vT+1}, 5, v{vLANE}")
    a(f"v_mul_u32_u24 v{vT+1}, 1280, v{vT+1}")
    a(f"v_and_b32 v{vT+2}, 31, v{vLANE}")
    a(f"v_lshl_add_u32 v{vT+1}, v{vT+2}, 4, v{vT+1}")
    a(f"v_add_u32 v{vT+1}, s{sD}, v{vT+1}")
    a(f"s_lshl_b32 s{sEO}, s{sW}, 14")
    a("s_waitcnt lgkmcnt(0)")
    srd(a, 60, 58, 59, 640 * 1280)
    srd(a, 64, 70, 71, 640 * 1280)
    for g in range(4):
        a(f"s_lshl_b32 s72, s{sTMP2}, 2")
        a(f"s_add_u32 s72, s72, {g}")
        a(f"s_mul_i32 s73, s72, 205")
        a(f"s_lshr_b32 s73, s73, 10")
        a(f"s_mul_i32 s74, s73, 5")
        a(f"s_sub_u32 s74, s72, s74")
        a(f"s_mul_i32 s73, s73, 20")
        for quad in range(2):
            a(f"s_and_b32 s76, s74, 1")
            a(f"s_lshl_b32 s76, s76, 3")
            a(f"s_add_u32 s76, s76, {4*quad}")
            a(f"s_lshr_b32 s77, s74, 1")
            a(f"s_cmp_eq_u32 s74, 4")
            a(f"s_cselect_b32 s76, 16, s76")
            a(f"s_cselect_b32 s77, {quad}, s77")
            a(f"s_add_u32 s76, s76, s73")
            a(f"s_mul_i32 s76, s76, 1280")
            a(f"s_cmp_eq_u32 s77, 0")
            a(f"s_cbranch_scc0 K1_WB{g}{quad}")
            for r2 in range(2):
                a(f"s_add_u32 m0, s{sEO}, {(g*4 + quad*2 + r2)*1024}")
                a(f"s_add_u32 s{sD}, s76, {r2*2*1280}")
                a(f"buffer_load_dwordx4 v{vT+1}, s[60:63], s{sD} offen lds")
            a(f"s_branch K1_WD{g}{quad}")
            a.lab(f"K1_WB{g}{quad}")
            for r2 in range(2):
                a(f"s_add_u32 m0, s{sEO}, {(g*4 + quad*2 + r2)*1024}")
                a(f"s_add_u32 s{sD}, s76, {r2*2*1280}")
                a(f"buffer_load_dwordx4 v{vT+1}, s[64:67], s{sD} offen lds")
            a.lab(f"K1_WD{g}{quad}")
    a(f"v_lshrrev_b32 v{vT+2}, 4, v{vLANE}")
    a(f"v_bfe_u32 v{vT+3}, v{vLANE}, 2, 2")
    a(f"v_lshl_add_u32 v{vT+2}, v{vT+2}, 3, v{vT+3}")
    a(f"v_lshlrev_b32 v{vT+2}, 9, v{vT+2}")
    a(f"v_and_b32 v{vT+3}, 3, v{vLANE}")
    a(f"v_lshl_add_u32 v{vT+2}, v{vT+3}, 3, v{vT+2}")
    a(f"v_add_u32 v{vT+2}, s{sEO}, v{vT+2}")
    a(f"v_lshlrev_b32 v{vT+3}, 4, v{vLANE}")
    a("s_waitcnt vmcnt(0)")
    for j in range(14):
        a(f"ds_read_b64_tr_b16 v[{vXF+4*j}:{vXF+4*j+1}], v{vT+2} offset:{j*32}")
        a(f"ds_read_b64_tr_b16 v[{vXF+4*j+2}:{vXF+4*j+3}], v{vT+2} offset:{j*32+2048}")
    a(f"s_mul_i32 s{sTMP3}, s{sTMP3}, 14")
    a("s_waitcnt lgkmcnt(0)")
    for j in range(14):
        a(f"s_add_u32 s{sTMP4}, s{sTMP3}, {j}")
        a(f"s_cmp_ge_u32 s{sTMP4}, 40")
        a("s_cbranch_scc1 K1_GATE2")
        a(f"s_mul_i32 s{sD}, s{sTMP4}, 52")
        a(f"s_lshr_b32 s{sD}, s{sD}, 8")
        a(f"s_mul_i32 s{sEO}, s{sD}, 5")
        a(f"s_sub_u32 s{sEO}, s{sTMP4}, s{sEO}")
        a(f"s_mul_i32 s{sD}, s{sD}, 40")
        a(f"s_add_u32 s{sD}, s{sD}, s{sTMP2}")
        a(f"s_mul_i32 s{sD}, s{sD}, 5")
        a(f"s_add_u32 s{sD}, s{sD}, s{sEO}")
        a(f"s_lshl_b32 s{sD}, s{sD}, 10")
        a(f"s_add_u32 s{sD}, s{sD}, {WT_OFF}")
        a(f"buffer_store_dwordx4 v[{vXF+4*j}:{vXF+4*j+3}], v{vT+3}, s[{SWS}:{SWS+3}], s{sD} offen")
    a.lab("K1_GATE2")
    a("s_nop 1")
    a(f"s_sub_u32 s{sTMP}, s2, 240")
    a(f"s_lshl_b32 s{sTMP}, s{sTMP}, 7")
    a(f"s_lshl_b32 s{sTMP2}, s{sW}, 4")
    a(f"s_add_u32 s{sI}, s{sTMP}, s{sTMP2}")
    a(f"v_lshlrev_b32 v{vT}, 2, v{vLANE}")
    for j in range(5):
        a(f"buffer_load_dword v{vT+7+j}, v{vT}, s[{SG}:{SG+3}], 0 offen offset:{j*256}")
    a(f"s_mul_i32 s{sTMP4}, s{sI}, 1280")
    for r in range(16):
        for j in range(5):
            a(f"buffer_load_dword v{vXF+r*5+j}, v{vT}, s[{SX}:{SX+3}], s{sTMP4} offen offset:{j*256}")
        a(f"s_add_u32 s{sTMP4}, s{sTMP4}, 1280")
        if r == 9: a("s_waitcnt vmcnt(20)")
    a("s_waitcnt vmcnt(0)")
    gw = vT + 7
    for j in range(5):
        a(f"v_lshlrev_b32 v{vT+2+j}, 16, v{gw+j}")
        a(f"v_and_b32 v{gw+j}, 0xffff0000, v{gw+j}")
    vG = 112
    for r in range(16):
        a(f"v_mov_b32 v{vG+r}, 0")
        for j in range(5):
            x = vXF + r * 5 + j
            a(f"v_lshlrev_b32 v{vT}, 16, v{x}")
            a(f"v_and_b32 v{x}, 0xffff0000, v{x}")
            a(f"v_fmac_f32 v{vG+r}, v{vT}, v{vT+2+j}")
            a(f"v_fmac_f32 v{vG+r}, v{x}, v{gw+j}")
    for rr in (8, 4, 2, 1):
        a("s_nop 1")
        for r in range(16):
            a(f"v_add_f32_dpp v{vG+r}, v{vG+r}, v{vG+r} row_ror:{rr} row_mask:0xf bank_mask:0xf")
    for r in range(16):
        a(f"v_mov_b32 v{vG+16+r}, v{vG+r}")
    a("s_nop 1")
    for r in range(16):
        a(f"v_permlane32_swap_b32 v{vG+r}, v{vG+16+r}")
    a("s_nop 1")
    for r in range(16):
        a(f"v_add_f32 v{vG+r}, v{vG+r}, v{vG+16+r}")
        a(f"v_mov_b32 v{vG+16+r}, v{vG+r}")
    a("s_nop 1")
    for r in range(16):
        a(f"v_permlane16_swap_b32 v{vG+r}, v{vG+16+r}")
    a("s_nop 1")
    for r in range(16):
        a(f"v_add_f32 v{vG+r}, v{vG+r}, v{vG+16+r}")
    a(f"v_and_b32 v{vT}, 15, v{vLANE}")
    a(f"v_mov_b32 v{vT+1}, v{vG}")
    for r in range(1, 16):
        a(f"v_cmp_eq_u32 vcc, {r}, v{vT}")
        a("s_nop 1")
        a(f"v_cndmask_b32 v{vT+1}, v{vT+1}, v{vG+r}, vcc")
    a(f"v_mul_f32 v{vT+1}, {f2u(-1.4426950408889634):#x}, v{vT+1}")
    a(f"v_exp_f32 v{vT+1}, v{vT+1}")
    a("s_nop 0")
    a(f"v_add_f32 v{vT+1}, 1.0, v{vT+1}")
    a(f"v_rcp_f32 v{vT+1}, v{vT+1}")
    a(f"s_lshl_b32 s{sTMP}, s{sI}, 2")
    a(f"s_add_u32 s{sTMP}, s{sTMP}, {G_OFF}")
    a(f"v_lshlrev_b32 v{vT}, 2, v{vT}")
    a("s_mov_b64 exec, 0xffff")
    a(f"buffer_store_dword v{vT+1}, v{vT}, s[{SWS}:{SWS+3}], s{sTMP} offen")
    if PROF:
        a("s_mov_b64 exec, -1")
        a("s_waitcnt vmcnt(0)")
        for i in range(1, 7): stamp(a, i)
        stamp_flush(a, 0, 7, SWS, sW, vT)
    a("s_branch K1_END")
    a.lab("K1_FIN")
    if "noendpf" not in OPT:
        a("s_getpc_b64 s[78:79]")
        a.lab("K1_PC2")
        a("s_add_u32 s78, s78, k2_attn_kernel-K1_PC2")
        a("s_addc_u32 s79, s79, 0")
        a("v_lshlrev_b32 v180, 7, v0")
        a("v_cmp_gt_u32 vcc, K2_TEXT_SIZE, v180")
        a("s_and_saveexec_b64 s[72:73], vcc")
        a("s_cbranch_execz K1_EPF")
        a("global_load_dword v181, v180, s[78:79]")
        a.lab("K1_EPF")
        a("s_mov_b64 exec, s[72:73]")
    if "dbgtime" in OPT:
        a("s_cmp_lg_u32 s2, 1")
        a("s_cbranch_scc1 K1_DBGX")
        a("s_cmp_lg_u32 s32, 0")
        a("s_cbranch_scc1 K1_DBGX")
        a("s_load_dwordx2 s[92:93], s[0:1], 64")
        a("s_waitcnt vmcnt(0)")
        a("s_memrealtime s[94:95]")
        a("s_memtime s[96:97]")
        a("s_waitcnt lgkmcnt(0)")
        srd(a, 84, 92, 93, 256)
        a("s_sub_u32 s96, s96, s88")
        a("s_sub_u32 s94, s94, s90")
        a("s_mov_b64 exec, 1")
        a("v_mov_b32 v24, 0")
        a("v_mov_b32 v20, 111")
        a("v_mov_b32 v21, s96")
        a("v_mov_b32 v22, s94")
        a("v_mov_b32 v23, s90")
        a("buffer_store_dwordx4 v[20:23], v24, s[84:87], 0 offen")
        a("s_mov_b64 exec, -1")
        a.lab("K1_DBGX")
    if "k1stamp" in OPT:
        a(f"s_lshl_b32 s97, s2, 3")
        a(f"s_add_u32 s97, s97, s{sW}")
        a(f"s_lshl_b32 s97, s97, 7")
        a(f"s_add_u32 s97, s97, {PROF_OFF + 3 * 0x100000}")
        a(f"v_lshlrev_b32 v{vT}, 2, v{vLANE}")
        a("s_mov_b64 exec, 0xffffffff")
        a(f"buffer_store_dword v179, v{vT}, s[{SWS}:{SWS+3}], s97 offen")
        a("s_mov_b64 exec, -1")
    stamp(a, 5)
    if PROF: a("s_waitcnt vmcnt(0)")
    stamp(a, 6)
    stamp_flush(a, 0, 7, SWS, sW, vT)
    a.lab("K1_END")
    a("s_endpgm")
    a.lab("K1_TEXT_END")
    return name, NV

K2_LDS = 163840
NEGBIG = -1.0e30

def mask_table():
    vals = []
    for j in range(6):
        for l in range(64):
            c = l & 31; h = l >> 5
            for i in range(4):
                if j < 4:
                    r = j * 4 + i
                    row = (r & 3) + 8 * (r >> 2) + 4 * h
                    diff = c + 16 - row
                else:
                    r = (j - 4) * 4 + i
                    row = (r & 3) + 8 * (r >> 2) + 4 * h
                    diff = c - 16 - row
                ok = 0 <= diff <= 14 and diff % 2 == 0
                vals.append(0 if ok else f2u(NEGBIG))
    return vals

K2_PRIO_TILE = 5
def gen_k2(a):
    FUSE = "nofuse" not in OPT
    name = "k2_attn_kernel"
    kernel_head(a, name)
    SWS = 8
    sW = 12; sHEAD = 13; sQB = 14; sS0 = 15; sT0 = 16; sT1 = 17; sT2 = 18; sT3 = 19
    sC = 20; sPASS = 21; sVM = 22
    sLO = 24
    sGRP = 26; sPR = 27
    sDS = 28; sDG = 29
    sAV = 30
    sQA = 33; sGO = 35
    sDO = 44
    sWL = 49; sWS = 58; sWS0 = 59; sWC = 66; sFAIL = 67
    vLANE = 1; vL16 = 2; vK8 = 3; vVA = 4; vKe = 5; vKo = 6; vK4c = 7
    vT = 8
    vGATE = 16; vVc = 17
    vAKO = 18
    vPFA = 22; vQO = 23
    vQ16 = [24, 28]; vQ8 = [32, 34]
    vQA16 = 36; vQA8 = 40
    vKA = 44; vKB = 52; vV1 = 56; vV2 = 64; vP = 72
    S = [84, 100]; NEG = [116, 132]; O = [148, 164]
    vAK = 180; vAV = 192; vMX = 204; vMY = 220
    vOB = 236; vDUM = 244; vOSA = 245
    NV = 248
    ONES = 0x3f803f80
    vS0, vS1 = S

    a("s_cmp_ge_u32 s2, 256")
    a("s_cbranch_scc1 K2_END")
    stamp(a, 0)
    if "dbgtime" in OPT:
        a("s_memrealtime s[90:91]")
        a("s_memtime s[88:89]")
    a("s_load_dwordx2 s[4:5], s[0:1], 72")
    if FUSE:
        a("s_load_dwordx2 s[60:61], s[0:1], 56")
    a(f"v_and_b32 v{vLANE}, 63, v0")
    a(f"v_lshrrev_b32 v{vT}, 6, v0")
    a(f"s_and_b32 s{sHEAD}, s2, 7")
    a(f"v_readfirstlane_b32 s{sW}, v{vT}")
    a(f"s_lshl_b32 s{sHEAD}, s{sHEAD}, 2")
    a(f"s_lshr_b32 s{sT0}, s2, 6")
    a(f"s_add_u32 s{sHEAD}, s{sHEAD}, s{sT0}")
    a(f"s_lshr_b32 s{sQB}, s2, 3")
    a(f"s_and_b32 s{sQB}, s{sQB}, 7")
    a(f"v_lshlrev_b32 v{vL16}, 4, v{vLANE}")
    a(f"v_and_b32 v{vT}, 31, v{vLANE}")
    a(f"v_lshlrev_b32 v{vK8}, 3, v{vT}")
    a(f"v_lshrrev_b32 v{vT+1}, 5, v{vLANE}")
    a(f"v_lshl_add_u32 v{vQO}, v{vT+1}, 8, v{vK8}")
    a(f"s_lshr_b32 s{sGRP}, s{sW}, 2")
    a(f"s_and_b32 s{sPR}, s{sW}, 3")
    a(f"s_mul_i32 s{sDS}, s{sHEAD}, {KV_HEAD}")
    a(f"s_add_u32 s{sDS}, s{sDS}, {KVB_OFF}")
    for j in range(5):
        a(f"s_add_u32 s{sT0}, s{sW}, {8*j}")
        a(f"s_lshl_b32 s{sDO+j}, s{sT0}, 10")
        a(f"s_cmp_ge_u32 s{sT0}, 20")
        a(f"s_cselect_b32 s{sT1}, {4*KV_CH - 20*1024}, 0")
        a(f"s_add_u32 s{sDO+j}, s{sDO+j}, s{sT1}")
    a(f"s_mul_i32 s{sQA}, s{sHEAD}, {Q_HEAD}")
    a(f"s_lshl_b32 s{sT1}, s{sQB}, 3")
    a(f"s_lshl_b32 s{sT2}, s{sPR}, 1")
    a(f"s_add_u32 s{sT1}, s{sT1}, s{sT2}")
    a(f"s_mul_i32 s{sT1}, s{sT1}, 1280")
    a(f"s_add_u32 s{sQA}, s{sQA}, s{sT1}")
    a(f"s_add_u32 s{sT0}, s{sQA}, {QB_OFF}")
    a(f"s_mov_b32 s{sDG}, 0")
    a("s_waitcnt lgkmcnt(0)")
    srd(a, SWS, 4, 5, WS_USED)
    def dma1(j):
        return [f"s_add_u32 m0, s{sDO+j}, s{sDG}",
                f"s_add_u32 s{sT3}, m0, s{sDS}",
                f"buffer_load_dwordx4 v{vL16}, s[{SWS}:{SWS+3}], s{sT3} offen lds"]
    def qloads(q16, q8, sreg, off):
        return [f"buffer_load_dwordx2 v[{q16}:{q16+1}], v{vQO}, s[{SWS}:{SWS+3}], s{sreg} offen offset:{off}",
                f"buffer_load_dwordx2 v[{q16+2}:{q16+3}], v{vQO}, s[{SWS}:{SWS+3}], s{sreg} offen offset:{off+512}",
                f"buffer_load_dwordx2 v[{q8}:{q8+1}], v{vK8}, s[{SWS}:{SWS+3}], s{sreg} offen offset:{off+1024}"]
    for j in range(5):
        for x in dma1(j): a(x)
    for sg in range(2):
        for x in qloads(vQ16[sg], vQ8[sg], sT0, sg * 1280): a(x)
    a(f"s_add_u32 s{sDG}, s{sDG}, {KV_CH}")
    stamp(a, 1)
    a(f"s_mov_b32 s{sVM}, 0x000fffff")
    a(f"s_mov_b32 s{sVM+1}, 0x000fffff")
    a(f"s_mov_b32 s{sLO}, -1")
    a(f"s_mov_b32 s{sLO+1}, 0")
    a(f"v_and_b32 v{vT}, 31, v{vLANE}")
    a(f"v_lshrrev_b32 v{vT+1}, 5, v{vLANE}")
    a(f"v_mul_u32_u24 v{vVA}, 20, v{vT+1}")
    a(f"v_add_u32 v{vVA}, v{vVA}, v{vT}")
    a(f"v_lshlrev_b32 v{vVA}, 4, v{vVA}")
    for sg in range(2):
        for i in range(0, 16, 2):
            a(f"v_mov_b64 v[{O[sg]+i}:{O[sg]+i+1}], 0")
    a(f"v_mov_b64 v[{vP+4}:{vP+5}], 0")
    a(f"v_mov_b64 v[{vP+6}:{vP+7}], 0")
    a(f"s_lshl_b32 s{sS0}, s{sQB}, 8")
    a(f"s_lshl_b32 s{sT0}, s{sPR}, 6")
    a(f"s_add_u32 s{sS0}, s{sS0}, s{sT0}")
    a(f"s_lshl_b32 s{sT0}, s{sGRP}, 5")
    a(f"s_add_u32 s{sS0}, s{sS0}, s{sT0}")
    a(f"s_mul_i32 s{sT0}, s{sGRP}, 1280")
    a(f"s_add_u32 s{sQA}, s{sQA}, s{sT0}")
    a(f"s_add_u32 s{sQA}, s{sQA}, {QA_OFF}")
    a(f"s_lshl_b32 s{sT0}, s{sHEAD}, 6")
    a(f"s_lshr_b32 s{sT1}, s{sS0}, 5")
    a(f"s_add_u32 s{sT0}, s{sT0}, s{sT1}")
    for k, dT in enumerate((-1, 0, 1)):
        a(f"s_add_i32 s{sT1}, s{sT0}, {dT}")
        a(f"s_ashr_i32 s{sT2}, s{sT1}, 3")
        a(f"s_mul_i32 s{sT2}, s{sT2}, {KV_CH}")
        a(f"s_and_b32 s{sT1}, s{sT1}, 7")
        a(f"s_mul_i32 s{sT1}, s{sT1}, 1280")
        a(f"s_add_u32 s{50+k}, s{sT1}, s{sT2}")
    a(f"s_add_u32 s50, s50, 128")
    a(f"s_sub_u32 s53, s51, 128")
    a(f"s_add_u32 s51, s51, 128")
    a(f"s_sub_u32 s52, s52, 128")
    a(f"s_mov_b32 s54, 0xffff")
    a(f"s_mov_b32 s55, 0xffff")
    a(f"v_add_u32 v{vAKO+1}, s53, v{vK8}")
    a(f"v_add_u32 v{vAKO+3}, s52, v{vK8}")
    a(f"s_mov_b64 exec, s[54:55]")
    a(f"v_add_u32 v{vAKO+1}, s50, v{vK8}")
    a(f"v_add_u32 v{vAKO+3}, s51, v{vK8}")
    a("s_mov_b64 exec, -1")
    a(f"v_sub_u32 v{vT+7}, v{vQO}, v{vK8}")
    a(f"v_add_u32 v{vAKO}, v{vAKO+1}, v{vT+7}")
    a(f"v_add_u32 v{vAKO+2}, v{vAKO+3}, v{vT+7}")
    a(f"s_lshl_b32 s{sT0}, s{sHEAD}, 7")
    a(f"s_lshr_b32 s{sT1}, s{sS0}, 4")
    a(f"s_add_u32 s{sT0}, s{sT0}, s{sT1}")
    for j in range(3):
        a(f"s_add_i32 s{sT1}, s{sT0}, {j-1}")
        a(f"s_max_i32 s{sT1}, s{sT1}, 0")
        a(f"s_lshr_b32 s{sT2}, s{sT1}, 4")
        a(f"s_mul_i32 s{sT2}, s{sT2}, {KV_CH}")
        a(f"s_and_b32 s{sT1}, s{sT1}, 15")
        a(f"s_mul_i32 s{sT1}, s{sT1}, 640")
        a(f"s_add_u32 s{sT1}, s{sT1}, s{sT2}")
        a(f"s_add_u32 s{sAV+j}, s{sT1}, 10240")
    a(f"s_lshl_b32 s{sGO}, s{sS0}, 2")
    a(f"s_add_u32 s{sGO}, s{sGO}, {G_OFF}")
    a(f"v_mov_b32 v{vT+2}, 0")
    a(f"v_mov_b32 v{vT+3}, {ONES:#x}")
    if "vones" in OPT:
        a(f"v_mov_b32 v{vT+2}, {ONES:#x}")
    else:
        a(f"v_and_b32 v{vT+4}, 27, v{vT}")
        a.l.pop()
        a(f"v_cmp_eq_u32 vcc, 20, v{vT}")
        a(f"v_cmp_eq_u32 s[38:39], 24, v{vT}")
        a("s_nop 1")
        a("s_or_b64 vcc, vcc, s[38:39]")
        a("s_nop 1")
        a(f"v_cndmask_b32 v{vT+2}, v{vT+2}, v{vT+3}, vcc")
    a(f"v_mov_b32 v{vT+3}, v{vT+2}")
    for i in range(0, 12, 2):
        a(f"v_mov_b64 v[{vAV+i}:{vAV+i+1}], v[{vT+2}:{vT+3}]")
    for i in range(0, 16, 2):
        a(f"v_mov_b64 v[{vV1+i}:{vV1+i+1}], v[{vT+2}:{vT+3}]")
    a(f"s_lshr_b32 s{sT0}, s{sS0}, 4")
    a(f"s_mul_i32 s{sT0}, s{sT0}, {40*1024}")
    a(f"s_mul_i32 s{sT1}, s{sHEAD}, {5*256}")
    a(f"s_add_u32 s{sT0}, s{sT0}, s{sT1}")
    a(f"v_bfe_u32 v{vT+2}, v{vLANE}, 4, 1")
    a(f"v_mul_u32_u24 v{vT+2}, {40*1024}, v{vT+2}")
    a(f"v_and_b32 v{vT+3}, 15, v{vLANE}")
    a(f"v_lshl_add_u32 v{vT+3}, v{vT+3}, 4, v{vT+2}")
    a(f"v_lshrrev_b32 v{vT+2}, 5, v{vLANE}")
    a(f"v_lshl_add_u32 v{vT+3}, v{vT+2}, 8, v{vT+3}")
    a(f"v_add_u32 v{vOSA}, s{sT0}, v{vT+3}")
    a(f"s_getpc_b64 s[56:57]")
    a.lab("K2_PC")
    a(f"s_add_u32 s56, s56, K2_TABLE-K2_PC")
    a(f"s_addc_u32 s57, s57, 0")
    if not FUSE:
        a("s_lshr_b32 s36, s2, 3")
        a("s_lshl_b32 s36, s36, 3")
        a(f"s_add_u32 s36, s36, s{sW}")
        a("s_mul_i32 s36, s36, 50")
        a(f"v_min_u32 v{vPFA}, 49, v{vLANE}")
        a(f"v_add_u32 v{vPFA}, s36, v{vPFA}")
        a(f"v_lshlrev_b32 v{vPFA}, 7, v{vPFA}")
        a(f"v_add_u32 v{vPFA}, {WT_OFF}, v{vPFA}")
    if FUSE:
        a(f"s_mov_b32 s64, s{sHEAD}")
        a(f"s_mov_b32 s65, s{sQB}")
        a(f"s_mul_i32 s{sWS0}, s65, {200*1024}")
        a(f"s_lshl_b32 s{sT0}, s{sW}, 10")
        a(f"s_add_u32 s{sWS0}, s{sWS0}, s{sT0}")
        a(f"s_add_u32 s{sWS0}, s{sWS0}, {WT_OFF}")
        a(f"s_mov_b32 s{sWS}, s{sWS0}")
        a(f"s_mov_b32 s{sWL}, 0")
        a(f"s_mov_b32 s{sWC}, 2")
    a(f"s_mov_b32 s{sPASS}, 0")
    a(f"s_mul_i32 s37, s{sGRP}, {4*KV_CH}")
    stamp(a, 2)
    a("s_waitcnt vmcnt(0)")
    a(f"s_mov_b64 exec, s[{sLO}:{sLO+1}]")
    a(f"s_not_b64 exec, exec")
    for sg in range(2):
        a(f"v_mov_b32 v{vQ8[sg]}, 0")
        a(f"v_mov_b32 v{vQ8[sg]+1}, 0")
    a("s_mov_b64 exec, -1")
    a("s_barrier")
    stamp(a, 3)
    def rdK16(dst, rel_chunk, tt):
        base = vKe if tt % 2 == 0 else vKo
        o0 = rel_chunk * 40 + (tt >> 1) * 5
        return f"ds_read2st64_b64 v[{dst}:{dst+3}], v{base} offset0:{o0} offset1:{o0+1}"
    def rdK4(dst, rel_chunk, tt):
        return f"ds_read_b64 v[{dst}:{dst+1}], v{vK4c} offset:{rel_chunk*KV_CH + tt*1280 + 1024}"
    def voff(g):
        return (g // 16) * KV_CH + (g % 16) * 640
    def setbases():
        a(f"v_add_u32 v{vKe}, s37, v{vQO}")
        a(f"v_add_u32 v{vKo}, 1280, v{vKe}")
        a(f"v_add_u32 v{vK4c}, s37, v{vK8}")
        a(f"v_add_u32 v{vVc}, s37, v{vVA}")
        a(f"v_add_u32 v{vVc}, 10240, v{vVc}")
    def qk(dst, ka, kb, sg, c):
        return [f"v_mfma_f32_32x32x16_bf16 v[{dst}:{dst+15}], v[{ka}:{ka+3}], v[{vQ16[sg]}:{vQ16[sg]+3}], {c}",
                f"v_mfma_f32_32x32x8_bf16 v[{dst}:{dst+15}], v[{kb}:{kb+1}], v[{vQ8[sg]}:{vQ8[sg]+1}], v[{dst}:{dst+15}]"]
    def rowmax(m, regs, first=None):
        if first is None:
            a(f"v_max3_f32 v{m}, v{regs[0]}, v{regs[1]}, v{regs[2]}")
            rest = regs[3:]
        else:
            rest = regs
        i = 0
        while i + 1 < len(rest):
            a(f"v_max3_f32 v{m}, v{m}, v{rest[i]}, v{rest[i+1]}")
            i += 2
        if i < len(rest):
            a(f"v_max_f32 v{m}, v{m}, v{rest[i]}")
    a.lab("K2_START")
    setbases()
    a(rdK16(vKA, 0, 0))
    a(rdK4(vKB, 0, 0))
    a(f"s_mov_b64 exec, s[{sVM}:{sVM+1}]")
    a(f"ds_read_b128 v[{vV1}:{vV1+3}], v{vVc}")
    a("s_mov_b64 exec, -1")
    a(f"s_cmp_lg_u32 s{sPASS}, 0")
    a("s_cbranch_scc1 K2_HAVEM")
    a("s_waitcnt lgkmcnt(0)")
    for sg in range(2):
        for x in qk(S[sg], vKA, vKB, sg, "0"): a(x)
    a("s_nop 9")
    for sg in range(2):
        m = vT + 2 * sg
        rowmax(m, [S[sg] + i for i in range(16)])
        a(f"v_mov_b32 v{m+1}, v{m}")
    a("s_nop 1")
    for sg in range(2):
        m = vT + 2 * sg
        a(f"v_permlane32_swap_b32 v{m}, v{m+1}")
    a("s_nop 1")
    for sg in range(2):
        m = vT + 2 * sg
        a(f"v_max_f32 v{m}, v{m}, v{m+1}")
        a(f"v_sub_f32 v{NEG[sg]}, 0, v{m}")
        a(f"v_sub_f32 v{NEG[sg]+1}, 0, v{m}")
        for i in range(2, 16, 2):
            a(f"v_mov_b64 v[{NEG[sg]+i}:{NEG[sg]+i+1}], v[{NEG[sg]}:{NEG[sg]+1}]")
    a.lab("K2_HAVEM")
    a("s_waitcnt lgkmcnt(0)")
    a("s_nop 1")
    for x in qk(S[0], vKA, vKB, 0, f"v[{NEG[0]}:{NEG[0]+15}]"): a(x)
    a(f"s_mov_b32 s{sC}, 0")
    a("s_nop 15")
    stamp(a, 4)
    aloads = [
        qloads(vQA16, vQA8, sQA, 0),
        [f"buffer_load_dwordx2 v[{vAK}:{vAK+1}], v{vAKO}, s[{SWS}:{SWS+3}], 0 offen",
         f"buffer_load_dwordx2 v[{vAK+2}:{vAK+3}], v{vAKO}, s[{SWS}:{SWS+3}], 0 offen offset:512",
         f"buffer_load_dwordx2 v[{vAK+8}:{vAK+9}], v{vAKO+1}, s[{SWS}:{SWS+3}], 0 offen offset:1024"],
        [f"buffer_load_dwordx2 v[{vAK+4}:{vAK+5}], v{vAKO+2}, s[{SWS}:{SWS+3}], 0 offen",
         f"buffer_load_dwordx2 v[{vAK+6}:{vAK+7}], v{vAKO+2}, s[{SWS}:{SWS+3}], 0 offen offset:512",
         f"buffer_load_dwordx2 v[{vAK+10}:{vAK+11}], v{vAKO+3}, s[{SWS}:{SWS+3}], 0 offen offset:1024"],
        [f"s_mov_b64 exec, s[{sVM}:{sVM+1}]"] +
        [f"buffer_load_dwordx4 v[{vAV+4*j}:{vAV+4*j+3}], v{vVA}, s[{SWS}:{SWS+3}], s{sAV+j} offen" for j in range(3)] +
        ["s_mov_b64 exec, -1"],
        [f"global_load_dwordx4 v[{vMX+4*j}:{vMX+4*j+3}], v{vL16}, s[56:57] offset:{j*1024}" for j in range(4)] +
        [f"v_add_u32 v{vT+7}, 4096, v{vL16}"] +
        [f"global_load_dwordx4 v[{vMY+4*j}:{vMY+4*j+3}], v{vT+7}, s[56:57] offset:{j*1024}" for j in range(2)] +
        [f"v_lshrrev_b32 v{vT+7}, 1, v{vK8}",
         f"buffer_load_dword v{vGATE}, v{vT+7}, s[{SWS}:{SWS+3}], s{sGO} offen"] +
        ([] if FUSE else [f"buffer_load_dword v{vDUM}, v{vPFA}, s[{SWS}:{SWS+3}], 0 offen"]),
    ]
    ool = []
    ptile = optval("ptile", 6)
    WIN = optval("win", 2)
    def wdma(j, p_expr_sgpr):
        return [f"s_add_u32 m0, s{sDO+j}, s{p_expr_sgpr}",
                f"s_add_u32 s{sT3}, s{sWS}, {j*8192}",
                f"buffer_load_dwordx4 v{vL16}, s[{SWS}:{SWS+3}], s{sT3} offen lds"]
    def chunk_body(c):
        extras = {}
        if c is not None:
            if c < 3:
                for j in range(5):
                    extras.setdefault((j, 1), []).extend(dma1(j) + ([f"s_add_u32 s{sDG}, s{sDG}, {KV_CH}"] if j == 4 else []))
            else:
                flat = [x for x in aloads]
                for j in range(5):
                    extras.setdefault((j, 1), []).extend(flat[j])
            if FUSE and WIN >= 2 and c >= 2:
                for j in range(5):
                    extras.setdefault((j + 1, 0), []).extend(wdma(j, sWL) +
                        ([f"s_add_u32 s{sWL}, s{sWL}, {KV_CH}", f"s_add_u32 s{sWS}, s{sWS}, {K3_BUF}"] if j == 4 else []))
        for tt in range(8):
            for sg in range(2):
                cur = S[sg]; nsg = sg ^ 1; nxt = S[nsg]
                nt = tt if sg == 0 else tt + 1
                ka = vKA + 4 * (nt & 1); kb = vKB + 2 * (nt & 1)
                if sg == 0 and tt == 7 and c is not None:
                    if c < 3:
                        a("s_waitcnt vmcnt(0)")
                        a("s_barrier")
                    elif FUSE and WIN == 3:
                        a("s_barrier")
                        for j in range(5):
                            for x in wdma(j, sWL): a(x)
                        a(f"s_add_u32 s{sWL}, s{sWL}, {KV_CH}")
                        a(f"s_add_u32 s{sWS}, s{sWS}, {K3_BUF}")
                    if ptile >= 0: a("s_setprio 2")
                if sg == 0 and tt == ptile and c is not None:
                    a("s_setprio 0")
                if sg == 1:
                    a("s_waitcnt lgkmcnt(0)")
                q = qk(nxt, ka, kb, nsg, f"v[{NEG[nsg]}:{NEG[nsg]+15}]")
                a(q[0])
                if sg == 0:
                    n1 = tt + 1
                    a(rdK16(vKA + 4 * (n1 & 1), n1 // 8, n1 % 8))
                    a(rdK4(vKB + 2 * (n1 & 1), n1 // 8, n1 % 8))
                for i in range(0, 4):
                    a(f"v_exp_f32 v{cur+i}, v{cur+i}")
                pt = tt - 1 if sg == 0 else tt
                v2p = vV2 + 4 * (pt & 1)
                a(f"v_mfma_f32_32x32x16_bf16 v[{O[nsg]}:{O[nsg]+15}], v[{v2p}:{v2p+3}], v[{vP+4}:{vP+7}], v[{O[nsg]}:{O[nsg]+15}]")
                if sg == 0:
                    a(f"s_mov_b64 exec, s[{sVM}:{sVM+1}]")
                    d = vV2 + 4 * (tt & 1)
                    a(f"ds_read_b128 v[{d}:{d+3}], v{vVc} offset:{voff(2*tt+1)}")
                    d = vV1 + 4 * ((tt + 1) & 1)
                    a(f"ds_read_b128 v[{d}:{d+3}], v{vVc} offset:{voff(2*tt+2)}")
                    a("s_mov_b64 exec, -1")
                for x in extras.get((tt, sg), []): a(x)
                for i in range(4, 8):
                    a(f"v_exp_f32 v{cur+i}, v{cur+i}")
                for i in range(4):
                    a(f"v_cvt_pk_bf16_f32 v{vP+i}, v{cur+2*i}, v{cur+2*i+1}")
                a(q[1])
                for i in range(8, 12):
                    a(f"v_exp_f32 v{cur+i}, v{cur+i}")
                v1 = vV1 + 4 * (tt & 1)
                a(f"v_mfma_f32_32x32x16_bf16 v[{O[sg]}:{O[sg]+15}], v[{v1}:{v1+3}], v[{vP}:{vP+3}], v[{O[sg]}:{O[sg]+15}]")
                for i in range(12, 16):
                    a(f"v_exp_f32 v{cur+i}, v{cur+i}")
                for i in range(4, 8):
                    a(f"v_cvt_pk_bf16_f32 v{vP+i}, v{cur+2*i}, v{cur+2*i+1}")
        for r in (vKe, vKo, vK4c, vVc):
            a(f"v_add_u32 v{r}, {KV_CH}, v{r}")
    a(f"s_cmp_lg_u32 s{sPASS}, 0")
    a("s_cbranch_scc1 K2_RLOOP")
    for c in range(4):
        if "chunkstamp" in OPT:
            a("s_memtime s[78:79]")
            a("s_waitcnt lgkmcnt(0)")
            a(f"v_writelane_b32 v247, s78, {c}")
        chunk_body(c)
    a.lab("K2_LOOPEND")
    stamp(a, 5)
    a(f"v_mfma_f32_32x32x16_bf16 v[{O[1]}:{O[1]+15}], v[{vV2+4}:{vV2+7}], v[{vP+4}:{vP+7}], v[{O[1]}:{O[1]+15}]")
    a("s_setprio 0")
    a(f"s_mov_b32 s{sFAIL}, 0")
    a(f"s_cmp_lg_u32 s{sPASS}, 0")
    a("s_cbranch_scc1 K2_XCHG")
    a(f"s_waitcnt vmcnt({(5 if WIN == 3 else 0) if FUSE else 1}) lgkmcnt(0)")
    a(f"s_mov_b64 exec, s[{sLO}:{sLO+1}]")
    a(f"s_not_b64 exec, exec")
    a(f"v_mov_b32 v{vQA8}, 0")
    a(f"v_mov_b32 v{vQA8+1}, 0")
    a("s_mov_b64 exec, -1")
    a(f"s_cmp_lg_u32 s{sS0}, 0")
    a("s_cbranch_scc1 K2_NOFIX")
    for i in range(8):
        a(f"v_mov_b32 v{vMX+i}, {f2u(NEGBIG):#x}")
    a.lab("K2_NOFIX")
    if "ts2" in OPT: stamp(a, 4)
    a(f"v_mfma_f32_32x32x16_bf16 v[{vS0}:{vS0+15}], v[{vAK}:{vAK+3}], v[{vQA16}:{vQA16+3}], v[{vMX}:{vMX+15}]")
    a(f"v_mfma_f32_32x32x16_bf16 v[{vS1}:{vS1+15}], v[{vAK+4}:{vAK+7}], v[{vQA16}:{vQA16+3}], v[{vMY}:{vMY+15}]")
    a(f"v_mfma_f32_32x32x8_bf16 v[{vS0}:{vS0+15}], v[{vAK+8}:{vAK+9}], v[{vQA8}:{vQA8+1}], v[{vS0}:{vS0+15}]")
    a(f"v_mfma_f32_32x32x8_bf16 v[{vS1}:{vS1+15}], v[{vAK+10}:{vAK+11}], v[{vQA8}:{vQA8+1}], v[{vS1}:{vS1+15}]")
    a(f"v_mov_b64 v[{vT+2}:{vT+3}], 0")
    a(f"v_mov_b64 v[{vT+4}:{vT+5}], 0")
    a(f"v_mov_b32 v{vT+1}, {f2u(2.0**64):#x}")
    a("s_nop 3")
    for i in range(0, 12, 2):
        for sg in range(2):
            a(f"v_pk_fma_f32 v[{vT+2}:{vT+3}], v[{O[sg]+i}:{O[sg]+i+1}], v[{vT+4}:{vT+5}], v[{vT+2}:{vT+3}]")
    a(f"v_add_f32 v{vT}, v{O[0]+12}, v{O[1]+12}")
    a(f"v_add_f32 v{vT+2}, v{vT+2}, v{vT+3}")
    a(f"v_add_f32 v{vT}, v{vT}, v{vT+2}")
    a(f"v_cmp_nlt_f32 vcc, v{vT}, v{vT+1}")
    a(f"v_mov_b32 v{O[0]+13}, v{NEG[0]}")
    a(f"v_mov_b32 v{O[1]+13}, v{NEG[1]}")
    a("s_nop 1")
    a("s_cmp_lg_u64 vcc, 0")
    a(f"s_cselect_b32 s{sFAIL}, 1, 0")
    if "forcefail" in OPT:
        a(f"s_cmp_eq_u32 s{sW}, 3")
        a(f"s_cselect_b32 s{sFAIL}, 1, s{sFAIL}")
    regs = [vS0 + i for i in range(16)] + [vS1 + i for i in range(8)]
    m = vT + 6
    rowmax(m, regs)
    a(f"v_mov_b32 v{m+1}, v{m}")
    a("s_nop 1")
    a(f"v_permlane32_swap_b32 v{m}, v{m+1}")
    a("s_nop 1")
    a(f"v_max_f32 v{m}, v{m}, v{m+1}")
    a(f"v_sub_f32 v{vKo}, 0, v{m}")
    a(f"v_sub_f32 v{vK4c}, 0, v{m}")
    for i in range(0, 24, 2):
        a(f"v_pk_add_f32 v[{regs[i]}:{regs[i]+1}], v[{regs[i]}:{regs[i]+1}], v[{vKo}:{vK4c}]")
    for i in range(24):
        a(f"v_exp_f32 v{regs[i]}, v{regs[i]}")
    a("s_nop 0")
    for i in range(12):
        a(f"v_cvt_pk_bf16_f32 v{vP+i}, v{regs[2*i]}, v{regs[2*i+1]}")
    OA = NEG[0]
    a("s_nop 1")
    for j in range(3):
        c = "0" if j == 0 else f"v[{OA}:{OA+15}]"
        a(f"v_mfma_f32_32x32x16_bf16 v[{OA}:{OA+15}], v[{vAV+4*j}:{vAV+4*j+3}], v[{vP+4*j}:{vP+4*j+3}], {c}")
    def rowsum(dst, acc):
        a(f"v_mov_b32 v{dst}, v{acc+12}")
        a(f"s_not_b64 exec, s[{sLO}:{sLO+1}]")
        a(f"v_mov_b32 v{dst}, v{acc+8}")
        a("s_mov_b64 exec, -1")
    OFL = " sc1" if FUSE else STORE_FLAGS
    def ostore(br, src):
        a("s_nop 1")
        a(f"v_permlane32_swap_b32 v{src}, v{src+2}")
        a(f"v_permlane32_swap_b32 v{src+1}, v{src+3}")
        a(f"s_mov_b32 s{sT1}, {O_OFF}")
        a(f"buffer_store_dwordx4 v[{src}:{src+3}], v{vOSA}, s[{SWS}:{SWS+3}], s{sT1} offen offset:{br*512}{OFL}")
    a("s_nop 15")
    rowsum(vT + 6, OA)
    a(f"v_rcp_f32 v{vT+6}, v{vT+6}")
    a("s_nop 0")
    a(f"v_mul_f32 v{vT+6}, v{vT+6}, v{vGATE}")
    for i in range(0, 12, 2):
        a(f"v_pk_mul_f32 v[{OA+i}:{OA+i+1}], v[{OA+i}:{OA+i+1}], v[{vT+6}:{vT+7}] op_sel_hi:[1,0]")
    for i in range(4):
        a(f"v_cvt_pk_bf16_f32 v{vP+i}, v{OA+2*i}, v{OA+2*i+1}")
    for i in range(2):
        a(f"v_cvt_pk_bf16_f32 v{vOB+4+i}, v{OA+8+2*i}, v{OA+9+2*i}")
    ostore(0, vP)
    a("s_branch K2_XCHG1")
    a.lab("K2_XCHG")
    a("s_nop 15")
    a(f"v_mov_b32 v{O[0]+13}, v{NEG[0]}")
    a(f"v_mov_b32 v{O[1]+13}, v{NEG[1]}")
    a.lab("K2_XCHG1")
    a(f"s_mul_i32 s{sT0}, s{sGRP}, {4*KV_CH}")
    a(f"s_lshl_b32 s{sT2}, s{sPR}, 12")
    a(f"s_add_u32 s{sT2}, s{sT2}, {3*KV_CH}")
    a(f"s_add_u32 s{sT0}, s{sT0}, s{sT2}")
    a(f"v_add_u32 v{vT}, s{sT0}, v{vL16}")
    a(f"s_xor_b32 s{sT0}, s{sGRP}, 1")
    a(f"s_mul_i32 s{sT0}, s{sT0}, {4*KV_CH}")
    a(f"s_add_u32 s{sT0}, s{sT0}, s{sT2}")
    a(f"v_add_u32 v{vT+1}, s{sT0}, v{vL16}")
    a(f"s_lshl_b32 s{sT0}, s{sW}, 2")
    a(f"s_add_u32 s{sT0}, s{sT0}, {3*KV_CH + 16384}")
    a(f"v_mov_b32 v{vT+2}, s{sT0}")
    a(f"v_mov_b32 v{vT+3}, s{sFAIL}")
    if "ts2" in OPT: stamp(a, 1)
    a("s_barrier")
    if "ts2" in OPT: stamp(a, 2)
    a(f"s_cmp_eq_u32 s{sGRP}, 0")
    a("s_cbranch_scc1 K2_XA")
    for j in range(4):
        a(f"ds_write_b128 v{vT}, v[{O[0]+4*j}:{O[0]+4*j+3}] offset:{j*1024}")
    a("s_branch K2_XB")
    a.lab("K2_XA")
    for j in range(4):
        a(f"ds_write_b128 v{vT}, v[{O[1]+4*j}:{O[1]+4*j+3}] offset:{j*1024}")
    a.lab("K2_XB")
    a(f"ds_write_b32 v{vT+2}, v{vT+3}")
    a(f"v_mov_b32 v{vT+2}, {3*KV_CH + 16384}")
    a("s_waitcnt lgkmcnt(0)")
    a("s_barrier")
    if "ts2" in OPT: stamp(a, 3)
    a(f"ds_read_b128 v[{vT+4}:{vT+7}], v{vT+2}")
    a(f"ds_read_b128 v[{vS0}:{vS0+3}], v{vT+2} offset:16")
    a(f"s_cmp_eq_u32 s{sGRP}, 0")
    a("s_cbranch_scc1 K2_XC")
    for j in range(4):
        a(f"ds_read_b128 v[{O[0]+4*j}:{O[0]+4*j+3}], v{vT+1} offset:{j*1024}")
    a("s_branch K2_XD")
    a.lab("K2_XC")
    for j in range(4):
        a(f"ds_read_b128 v[{O[1]+4*j}:{O[1]+4*j+3}], v{vT+1} offset:{j*1024}")
    a.lab("K2_XD")
    a("s_waitcnt lgkmcnt(4)")
    a(f"v_or3_b32 v{vT+4}, v{vT+4}, v{vT+5}, v{vT+6}")
    a(f"v_or3_b32 v{vT+4}, v{vT+4}, v{vT+7}, v{vS0}")
    a(f"v_or3_b32 v{vT+4}, v{vT+4}, v{vS0+1}, v{vS0+2}")
    a(f"v_or_b32 v{vT+4}, v{vT+4}, v{vS0+3}")
    a("s_nop 0")
    a(f"v_readfirstlane_b32 s{sT0}, v{vT+4}")
    a("s_nop 3")
    a(f"s_cmp_lg_u32 s{sT0}, 0")
    a("s_cbranch_scc1 K2_REDO")
    a("s_waitcnt lgkmcnt(0)")
    a(f"v_sub_f32 v{vT+2}, v{O[1]+13}, v{O[0]+13}")
    a(f"v_sub_f32 v{vT+3}, 0, v{vT+2}")
    a(f"v_min_f32 v{vT+2}, 0, v{vT+2}")
    a(f"v_min_f32 v{vT+3}, 0, v{vT+3}")
    a(f"v_exp_f32 v{vT+2}, v{vT+2}")
    a(f"v_exp_f32 v{vT+3}, v{vT+3}")
    rowsum(vT + 4, O[0])
    rowsum(vT + 5, O[1])
    a(f"v_mul_f32 v{vT+4}, v{vT+4}, v{vT+2}")
    a(f"v_fmac_f32 v{vT+4}, v{vT+5}, v{vT+3}")
    a(f"v_rcp_f32 v{vT+4}, v{vT+4}")
    a(f"v_sub_f32 v{vT+5}, 1.0, v{vGATE}")
    a("s_nop 0")
    a(f"v_mul_f32 v{vT+4}, v{vT+4}, v{vT+5}")
    a(f"v_mul_f32 v{vT+2}, v{vT+2}, v{vT+4}")
    a(f"v_mul_f32 v{vT+3}, v{vT+3}, v{vT+4}")
    for i in range(0, 12, 2):
        a(f"v_pk_mul_f32 v[{O[0]+i}:{O[0]+i+1}], v[{O[0]+i}:{O[0]+i+1}], v[{vT+2}:{vT+3}] op_sel_hi:[1,0]")
        a(f"v_pk_fma_f32 v[{O[0]+i}:{O[0]+i+1}], v[{O[1]+i}:{O[1]+i+1}], v[{vT+2}:{vT+3}], v[{O[0]+i}:{O[0]+i+1}] op_sel:[0,1,0] op_sel_hi:[1,1,1]")
    for i in range(4):
        a(f"v_cvt_pk_bf16_f32 v{vOB+i}, v{O[0]+2*i}, v{O[0]+2*i+1}")
    for i in range(2):
        a(f"v_cvt_pk_bf16_f32 v{vOB+6+i}, v{O[0]+8+2*i}, v{O[0]+9+2*i}")
    ostore(1, vOB)
    a(f"s_mov_b64 exec, s[{sLO}:{sLO+1}]")
    a(f"buffer_store_dwordx4 v[{vOB+4}:{vOB+7}], v{vOSA}, s[{SWS}:{SWS+3}], s{sT1} offen offset:1024{OFL}")
    a("s_mov_b64 exec, -1")
    if FUSE:
        if WIN:
            a(f"s_cmp_eq_u32 s{sPASS}, 0")
            a("s_cbranch_scc1 K2_WOK")
            a("s_barrier")
            a(f"s_mov_b32 s{sWL}, 0")
            a(f"s_mov_b32 s{sWS}, s{sWS0}")
            for p in range(WIN):
                for j in range(5):
                    for x in wdma(j, sWL): a(x)
                a(f"s_add_u32 s{sWL}, s{sWL}, {KV_CH}")
                a(f"s_add_u32 s{sWS}, s{sWS}, {K3_BUF}")
            a("s_waitcnt vmcnt(0)")
            a.lab("K2_WOK")
        stamp(a, 6)
        NPRE = 0
        if WIN == 3:
            a("s_barrier")
            a(f"s_mov_b32 s{sWL}, {3*KV_CH}")
            for j in range(5):
                for x in wdma(j, sWL): a(x)
            NPRE = 5
        elif WIN == 2:
            a(f"s_mov_b32 s{sWL}, {2*KV_CH}")
            for j in range(5):
                for x in wdma(j, sWL): a(x)
            a(f"s_add_u32 s{sWS}, s{sWS}, {K3_BUF}")
            NPRE = 5
        a(f"s_waitcnt vmcnt({NPRE})")
        if "tailstamps" in OPT: stamp(a, 1)
        a("s_barrier")
        if "tailstamps" in OPT: stamp(a, 2)
        a(f"s_cmp_lg_u32 s{sW}, 0")
        a("s_cbranch_scc1 K2_NOPOLL0")
        a(f"s_lshl_b32 s{sT0}, s{sQB}, 12")
        a(f"s_add_u32 s{sT0}, s{sT0}, {FL_OFF}")
        a(f"s_mov_b64 exec, s[{sLO}:{sLO+1}]")
        a(f"v_mov_b32 v{vT}, 1")
        a(f"v_lshlrev_b32 v{vT+5}, 7, v{vLANE}")
        a(f"buffer_atomic_add v{vT}, v{vT+5}, s[{SWS}:{SWS+3}], s{sT0} offen")
        a("s_mov_b64 exec, -1")
        a.lab("K2_NOPOLL0")
        WPOST = 4 if WIN == 3 else optval("wpost", 4)
        if WIN != 3:
            W0P = 3 if WIN == 2 else WIN
            a(f"s_mov_b32 s{sWL}, {W0P*KV_CH}")
            for p in range(W0P, WPOST):
                for j in range(5):
                    for x in wdma(j, sWL): a(x)
                a(f"s_add_u32 s{sWL}, s{sWL}, {KV_CH}")
                a(f"s_add_u32 s{sWS}, s{sWS}, {K3_BUF}")
        bufss = [((ss // 2) % 4) * KV_CH + (ss & 1) * 4 * KV_CH for ss in range(10)]
        pc = proj_core(a, "K2", SWS, 68, sW, 64, 65, 50, bufss,
                       lambda p, j, sM0: f"s_add_u32 m0, s{sDO+j}, {(p % 4)*KV_CH}", ({1: [4]} if WPOST == 4 else {0: [3], 1: [4]}), optval("k2opre", 4))
        pc.setup()
        srd(a, 68, 60, 61, 2048 * 1280)
        pc.addr_setup(0)
        if "tailstamps" in OPT: stamp(a, 3)
        a(f"s_cmp_lg_u32 s{sW}, 0")
        a("s_cbranch_scc1 K2_NOPOLL")
        a(f"s_lshl_b32 s{sT0}, s{sHEAD}, 3")
        a(f"s_add_u32 s{sT0}, s{sT0}, s{sQB}")
        a(f"s_lshl_b32 s{sT0}, s{sT0}, 7")
        a(f"s_add_u32 s{sT0}, s{sT0}, {FL_OFF}")
        a("s_mov_b64 exec, 1")
        a(f"v_mov_b32 v{vT+5}, 0")
        a(f"s_mov_b32 s{sT1}, 0")
        a.lab("K2_POLL")
        a(f"buffer_load_dword v{vT+4}, v{vT+5}, s[{SWS}:{SWS+3}], s{sT0} offen sc1")
        a("s_waitcnt vmcnt(0)")
        a(f"v_readfirstlane_b32 s{sT2}, v{vT+4}")
        a(f"s_add_u32 s{sT1}, s{sT1}, 1")
        a(f"s_cmp_ge_u32 s{sT2}, 32")
        a("s_cbranch_scc1 K2_POLLED")
        a(f"s_sleep {optval('psleep', 2)}")
        a(f"s_cmp_lt_u32 s{sT1}, 0x40000")
        a("s_cbranch_scc1 K2_POLL")
        a.lab("K2_POLLED")
        a("s_waitcnt vmcnt(0)")
        if "tailstamps" in OPT:
            stamp(a, 4)
        a("s_mov_b64 exec, -1")
        a.lab("K2_NOPOLL")
        a("s_waitcnt vmcnt(0)")
        a("s_barrier")
        stamp(a, 7)
        pc.body([("o", 0), ("o", 1), ("o", 2), ("o", 3)])
        if PROF: a("s_waitcnt vmcnt(0)")
        stamp(a, 8)
        stamp_flush(a, 1, 9, SWS, sW, vT)
        if "dbgtime" in OPT:
            a("s_cmp_lg_u32 s2, 1")
            a("s_cbranch_scc1 K2_DBGX")
            a("s_cmp_lg_u32 s12, 0")
            a("s_cbranch_scc1 K2_DBGX")
            a("s_load_dwordx2 s[92:93], s[0:1], 64")
            a("s_waitcnt vmcnt(0)")
            a("s_memrealtime s[94:95]")
            a("s_memtime s[96:97]")
            a("s_waitcnt lgkmcnt(0)")
            srd(a, 84, 92, 93, 256)
            a("s_sub_u32 s96, s96, s88")
            a("s_sub_u32 s94, s94, s90")
            a("s_mov_b64 exec, 1")
            a("v_mov_b32 v24, 0")
            a("v_mov_b32 v20, 222")
            a("v_mov_b32 v21, s96")
            a("v_mov_b32 v22, s94")
            a("v_mov_b32 v23, s90")
            a("buffer_store_dwordx4 v[20:23], v24, s[84:87], 0 offen")
            a("s_mov_b64 exec, -1")
            a.lab("K2_DBGX")
        a("s_endpgm")
    else:
        a("s_branch K2_DONE")
    a.lab("K2_REDO")
    a("s_waitcnt vmcnt(0) lgkmcnt(0)")
    a("s_barrier")
    a(f"s_mov_b32 s{sDG}, 0")
    for p in range(4):
        for j in range(5):
            for x in dma1(j): a(x)
        a(f"s_add_u32 s{sDG}, s{sDG}, {KV_CH}")
    a(f"s_mov_b32 s{sPASS}, 1")
    if FUSE: a(f"s_mov_b32 s{sWC}, 99")
    a(f"v_mov_b32 v{vT}, {f2u(-3.0e38):#x}")
    a(f"v_mov_b32 v{vT+2}, {f2u(-3.0e38):#x}")
    setbases()
    a(f"s_mov_b32 s{sC}, 0")
    a("s_waitcnt vmcnt(0)")
    a("s_barrier")
    a.lab("K2_MAXLOOP")
    for tt in range(8):
        a(rdK16(vKA, 0, tt))
        a(rdK4(vKB, 0, tt))
        a("s_waitcnt lgkmcnt(0)")
        for sg in range(2):
            for x in qk(S[sg], vKA, vKB, sg, "0"): a(x)
        a("s_nop 15")
        for sg in range(2):
            rowmax(vT + 2 * sg, [S[sg] + i for i in range(16)], first=True)
    for r in (vKe, vKo, vK4c):
        a(f"v_add_u32 v{r}, {KV_CH}, v{r}")
    a(f"s_add_u32 s{sC}, s{sC}, 1")
    a(f"s_cmp_lt_u32 s{sC}, 4")
    a("s_cbranch_scc1 K2_MAXLOOP")
    for sg in range(2):
        a(f"v_mov_b32 v{vT+2*sg+1}, v{vT+2*sg}")
    a("s_nop 1")
    for sg in range(2):
        a(f"v_permlane32_swap_b32 v{vT+2*sg}, v{vT+2*sg+1}")
    a("s_nop 1")
    for sg in range(2):
        a(f"v_max_f32 v{vT+2*sg}, v{vT+2*sg}, v{vT+2*sg+1}")
        for i in range(16):
            a(f"v_sub_f32 v{NEG[sg]+i}, 0, v{vT+2*sg}")
            a(f"v_mov_b32 v{O[sg]+i}, 0")
    for i in range(4):
        a(f"v_mov_b32 v{vP+4+i}, 0")
    a("s_branch K2_START")
    a.lab("K2_RLOOP")
    chunk_body(None)
    a(f"s_add_u32 s{sC}, s{sC}, 1")
    a(f"s_cmp_lt_u32 s{sC}, 4")
    a("s_cbranch_scc1 K2_RLOOP")
    a("s_branch K2_LOOPEND")
    a.lab("K2_DONE")
    stamp(a, 6)
    if PROF: a("s_waitcnt vmcnt(0)")
    stamp(a, 7)
    if "chunkstamp" in OPT:
        a(f"s_lshl_b32 s97, s2, 3")
        a(f"s_add_u32 s97, s97, s{sW}")
        a(f"s_lshl_b32 s97, s97, 6")
        a(f"s_add_u32 s97, s97, {PROF_OFF + 3 * 0x100000}")
        a(f"v_lshlrev_b32 v{vT}, 2, v{vLANE}")
        a("s_mov_b64 exec, 0xff")
        a(f"buffer_store_dword v247, v{vT}, s[{SWS}:{SWS+3}], s97 offen")
        a("s_mov_b64 exec, -1")
    stamp_flush(a, 1, 8, SWS, sW, vT)
    a.lab("K2_END")
    a("s_endpgm")
    a.raw(".p2align 4")
    a.lab("K2_TABLE")
    tab = mask_table()
    for i in range(0, len(tab), 8):
        a.raw("    .long " + ", ".join(f"{x:#x}" for x in tab[i:i+8]))
    a.lab("K2_TEXT_END")
    return name, NV

K3_BUF = 40 * 1024
K3_NBUF = 3
K3_LDS = K3_BUF * K3_NBUF

K3_GRID = 256
def proj_core(a, pfx, SWS, SOUT, sW, sMT, sNT, sbase, bufss, wm0, wplan, OPRE, vLANE=1, vL16=2):
    sMB, sKH, sT0, sT1, sT2, sOB, sWB, sM0, sOUT = [sbase + i for i in range(9)]
    vWR = 6; vWA = 7; vT = 8
    vOF = 20; vWF = 100; vACC = 180
    oflags = " sc1" if pfx == "K2" else ""
    issued = []
    def setup():
        a(f"s_and_b32 s{sMB}, s{sW}, 3")
        a(f"s_lshr_b32 s{sKH}, s{sW}, 2")
        a(f"s_lshl_b32 s{sM0}, s{sW}, 10")
        a(f"s_mul_i32 s{sWB}, s{sNT}, {200*1024}")
        a(f"s_add_u32 s{sWB}, s{sWB}, s{sM0}")
        a(f"s_add_u32 s{sWB}, s{sWB}, {WT_OFF}")
        a(f"s_lshl_b32 s{sOB}, s{sMT}, 2")
        a(f"s_add_u32 s{sOB}, s{sOB}, s{sMB}")
        a(f"s_mul_i32 s{sOUT}, s{sOB}, {16*1280}")
        a(f"s_mul_i32 s{sOB}, s{sOB}, 40")
        a(f"s_lshl_b32 s{sT0}, s{sKH}, 1")
        a(f"s_add_u32 s{sOB}, s{sOB}, s{sT0}")
        a(f"s_lshl_b32 s{sOB}, s{sOB}, 10")
        a(f"s_add_u32 s{sOB}, s{sOB}, {O_OFF}")
        a(f"s_mul_i32 s{sT2}, s{sNT}, 160")
        a(f"s_add_u32 s{sOUT}, s{sOUT}, s{sT2}")
    def wgroup(p):
        g = []
        for j in range(5):
            g.append(([wm0(p, j, sM0),
                       f"s_add_u32 s{sT1}, s{sWB}, {p*K3_BUF + j*8192}",
                       f"buffer_load_dwordx4 v{vL16}, s[{SWS}:{SWS+3}], s{sT1} offen lds"], ("W", p)))
        return g
    def ogroup(ss):
        g = []
        for i in range(2):
            d = vOF + (ss * 2 + i) * 4
            g.append(([f"s_add_u32 s{sT0}, s{sOB}, {(ss*4 + i)*1024}",
                       f"buffer_load_dwordx4 v[{d}:{d+3}], v{vL16}, s[{SWS}:{SWS+3}], s{sT0} offen{oflags}"], ("o", ss)))
        return g
    def emit(item):
        for x in item[0]: a(x)
        issued.append(item[1])
    def vm(need):
        last = max([i for i, t in enumerate(issued) if t in need], default=-1)
        return min(63, len(issued) - 1 - last)
    def reads(ss):
        st = ss & 1
        off = bufss[ss]
        out = [f"v_add_u32 v{vWA}, {off}, v{vWR}"]
        for i in range(2):
            for b in range(5):
                r = vWF + st * 40 + (i * 5 + b) * 4
                out.append(f"ds_read_b128 v[{r}:{r+3}], v{vWA} offset:{(i*5 + b)*1024}")
        return out
    def addr_setup(xbase):
        a(f"s_mul_i32 s{sT0}, s{sKH}, {10*1024}")
        a(f"v_add_u32 v{vWR}, s{sT0}, v{vL16}")
        a(f"v_and_b32 v{vT+1}, 15, v{vLANE}")
        a(f"v_mul_u32_u24 v{vT+1}, 1280, v{vT+1}")
        a(f"v_lshrrev_b32 v{vT+2}, 4, v{vLANE}")
        a(f"v_lshl_add_u32 v{vT+1}, v{vT+2}, 3, v{vT+1}")
        a(f"s_mul_i32 s{sT0}, s{sW}, {3*1024}")
        a(f"s_add_u32 s{sT0}, s{sT0}, {xbase}")
        a(f"v_add_u32 v{vT}, s{sT0}, v{vL16}")
        a(f"s_xor_b32 s{sT2}, s{sW}, 4")
        a(f"s_mul_i32 s{sT2}, s{sT2}, {3*1024}")
        a(f"s_add_u32 s{sT2}, s{sT2}, {xbase}")
        a(f"v_add_u32 v{vT+3}, s{sT2}, v{vL16}")
    def body(first):
        for kind, idx in first:
            for it in (wgroup(idx) if kind == "W" else ogroup(idx)): emit(it)
        nxt_o = max([idx for kind, idx in first if kind == "o"], default=-1) + 1
        if pfx == "K3": stamp(a, 1)
        a(f"s_waitcnt vmcnt({vm({('W', 0)})})")
        a("s_barrier")
        if pfx == "K3": stamp(a, 2)
        for r in reads(0): a(r)
        for ss in range(10):
            p = ss // 2
            need = {("o", ss)}
            if ss % 2 == 1 and p + 1 < 5: need.add(("W", p + 1))
            a(f"s_waitcnt vmcnt({vm(need)}) lgkmcnt(0)")
            if ss % 2 == 1 and ss < 9: a("s_barrier")
            mf = []
            for i in range(2):
                for b in range(5):
                    acc = vACC + b * 4
                    wf = vWF + (ss & 1) * 40 + (i * 5 + b) * 4
                    of = vOF + (ss * 2 + i) * 4
                    c = "0" if (ss == 0 and i == 0) else f"v[{acc}:{acc+3}]"
                    mf.append(f"v_mfma_f32_16x16x32_bf16 v[{acc}:{acc+3}], v[{wf}:{wf+3}], v[{of}:{of+3}], {c}")
            rd = reads(ss + 1) if ss < 9 else []
            ld = []
            for p2 in wplan.get(ss, []): ld += wgroup(p2)
            while nxt_o < 10 and nxt_o <= ss + OPRE:
                ld += ogroup(nxt_o); nxt_o += 1
            ex = [("r", r) for r in rd]
            mixed = []
            step = max(1, len(ex) // max(1, len(ld))) if ld else 0
            k = 0
            for i, e in enumerate(ex):
                mixed.append(e)
                if ld and k < len(ld) and (i + 1) % step == 0:
                    mixed.append(("l", ld[k])); k += 1
            while k < len(ld):
                mixed.append(("l", ld[k])); k += 1
            k = 0
            for i, m in enumerate(mf):
                a(m)
                tgt = min(len(mixed), ((i + 1) * len(mixed) + 8) // 9)
                while k < tgt:
                    if mixed[k][0] == "r": a(mixed[k][1])
                    else: emit(mixed[k][1])
                    k += 1
        if pfx == "K3": stamp(a, 3)
        a("s_barrier")
        a(f"s_cmp_eq_u32 s{sKH}, 0")
        a(f"s_cbranch_scc1 {pfx}_PW0")
        a("s_nop 4")
        for b in range(3):
            a(f"ds_write_b128 v{vT}, v[{vACC+b*4}:{vACC+b*4+3}] offset:{b*1024}")
        a("s_waitcnt lgkmcnt(0)")
        a("s_barrier")
        def fin(blocks):
            for n, b in enumerate(blocks):
                a(f"ds_read_b128 v[{vOF+4*n}:{vOF+4*n+3}], v{vT+3} offset:{n*1024}")
            for n, b in enumerate(blocks):
                a(f"s_waitcnt lgkmcnt({len(blocks)-1-n})")
                for i in range(0, 4, 2):
                    a(f"v_pk_add_f32 v[{vOF+4*n+i}:{vOF+4*n+i+1}], v[{vOF+4*n+i}:{vOF+4*n+i+1}], v[{vACC+4*b+i}:{vACC+4*b+i+1}]")
                a(f"v_cvt_pk_bf16_f32 v{vWF+2*n}, v{vOF+4*n}, v{vOF+4*n+1}")
                a(f"v_cvt_pk_bf16_f32 v{vWF+2*n+1}, v{vOF+4*n+2}, v{vOF+4*n+3}")
                a(f"buffer_store_dwordx2 v[{vWF+2*n}:{vWF+2*n+1}], v{vT+1}, s[{SOUT}:{SOUT+3}], s{sOUT} offen offset:{b*32}")
        fin([3, 4])
        a(f"s_branch {pfx}_PFIN")
        a.lab(f"{pfx}_PW0")
        a("s_nop 4")
        for n, b in enumerate((3, 4)):
            a(f"ds_write_b128 v{vT}, v[{vACC+b*4}:{vACC+b*4+3}] offset:{n*1024}")
        a("s_waitcnt lgkmcnt(0)")
        a("s_barrier")
        fin([0, 1, 2])
        a.lab(f"{pfx}_PFIN")
    class C: pass
    c = C(); c.setup = setup; c.wgroup = wgroup; c.emit = emit; c.addr_setup = addr_setup; c.body = body; c.issued = issued
    return c

def gen_k3(a):
    name = "k3_proj_kernel"
    kernel_head(a, name)
    SWS = 8; SOUT = 20
    sW = 24; sMT = 27; sNT = 28
    vLANE = 1; vL16 = 2; vT = 8
    NV = 200
    a(f"s_cmp_ge_u32 s2, {K3_GRID}")
    a("s_cbranch_scc1 K3_END")
    stamp(a, 0)
    a("s_load_dwordx2 s[4:5], s[0:1], 72")
    a("s_load_dwordx2 s[36:37], s[0:1], 56")
    a(f"v_and_b32 v{vLANE}, 63, v0")
    a(f"v_lshrrev_b32 v{vT}, 6, v0")
    a(f"s_and_b32 s{sMT}, s2, 7")
    a(f"v_readfirstlane_b32 s{sW}, v{vT}")
    a(f"s_lshl_b32 s{sMT}, s{sMT}, 2")
    a(f"s_lshr_b32 s29, s2, 6")
    a(f"s_add_u32 s{sMT}, s{sMT}, s29")
    a(f"s_lshr_b32 s{sNT}, s2, 3")
    a(f"s_and_b32 s{sNT}, s{sNT}, 7")
    a(f"v_lshlrev_b32 v{vL16}, 4, v{vLANE}")
    bufss = [((ss // 2) % 3) * K3_BUF + (ss & 1) * 20 * 1024 for ss in range(10)]
    c = proj_core(a, "K3", SWS, SOUT, sW, sMT, sNT, 40, bufss, lambda p, j, sM0: f"s_add_u32 m0, s{sM0}, {(p % 3)*K3_BUF + j*8192}",
                  {0: [2], 1: [3], 3: [4]}, optval("k3opre", 4))
    c.setup()
    a("s_waitcnt lgkmcnt(0)")
    srd(a, SWS, 4, 5, WS_USED)
    srd(a, SOUT, 36, 37, 2048 * 1280)
    c.addr_setup(0)
    c.body([("W", 0), ("o", 0), ("o", 1), ("W", 1), ("o", 2), ("o", 3)])
    stamp(a, 4)
    if PROF: a("s_waitcnt vmcnt(0)")
    stamp(a, 5)
    stamp_flush(a, 2, 6, SWS, sW, vT)
    a.lab("K3_END")
    a("s_endpgm")
    return name, NV

def build(kernels=("k1", "k2", "k3")):
    a = Asm()
    fuse = "nofuse" not in OPT
    k3line = "" if fuse else f"; @launch kernel=k3_proj_kernel grid=({K3_GRID},1,1) block=(512,1,1) lds={K3_LDS}\n"
    hdr = f"""; Gated mix of sliding-window dilated attention (A) and full softmax MHA (B): three launches.
; @launch kernel=k1_qkv_kernel grid=(256,1,1) block=(512,1,1) lds={K1_LDS}
; @launch kernel=k2_attn_kernel grid=(256,1,1) block=(512,1,1) lds={K2_LDS}
{k3line}.amdgcn_target "amdgcn-amd-amdhsa--gfx950"
.text
"""
    descs = []
    for g in ((gen_k1, gen_k2) if fuse else (gen_k1, gen_k2, gen_k3)):
        n, nv = g(a)
        descs.append(kernel_desc(n, nv))
    txt = a.text()
    txt = txt.replace("K1_TEXT_SIZE", "(K1_TEXT_END-k1_qkv_kernel)")
    txt = txt.replace("K2_TEXT_SIZE", "(K2_TEXT_END-k2_attn_kernel)")
    txt = txt.replace("K2CODE_WAVES", "((K2_TEXT_END-k2_attn_kernel) >> 13)")
    return hdr + txt + '.section .rodata,"a"\n' + "".join(".p2align 6\n" + d for d in descs)

if __name__ == "__main__":
    if len(sys.argv) > 2 and sys.argv[2] == "prof":
        PROF = True
    OPT.update(sys.argv[3:])
    if "st_plain" in OPT: STORE_FLAGS = ""
    if "st_sc1" in OPT: STORE_FLAGS = " sc1"
    if "st_nt" in OPT: STORE_FLAGS = " nt"
    if "st_sc01" in OPT: STORE_FLAGS = " sc0 sc1"
    if "st_sc1nt" in OPT: STORE_FLAGS = " sc1 nt"
    if "st_all" in OPT: STORE_FLAGS = " sc0 sc1 nt"
    out = sys.argv[1] if len(sys.argv) > 1 else f"cdna_kernels/{NAME}.s"
    open(out, "w").write(build())
    print("wrote", out)
```

```python
import sys, struct

NAME = "gated_mix__sliding_local_dilated__softmax_full_mha__prompt"

KV_HEAD = 163840
KV_CH = 20480
Q_HEAD = 81920
Q_CH = 10240
KVA_OFF = 0
KVB_OFF = 32 * KV_HEAD
QA_OFF = 2 * 32 * KV_HEAD
QB_OFF = QA_OFF + 32 * Q_HEAD
G_OFF = QB_OFF + 32 * Q_HEAD
FL_OFF = 0xF04000
WT_OFF = 0xF10000
O_OFF = 0x1100000
O_SIZE = 128 * 40 * 1024
WS_USED = 0x2400000
QSCALE = (20 ** -0.5) * 1.4426950408889634

def f2u(x):
    return struct.unpack("<I", struct.pack("<f", x))[0]

class Asm:
    def __init__(self):
        self.l = []
    def __call__(self, s):
        for x in s.strip("\n").split("\n"):
            self.l.append("    " + x.strip())
    def lab(self, s):
        self.l.append(s + ":")
    def raw(self, s):
        self.l.append(s)
    def text(self):
        return "\n".join(self.l) + "\n"

def vr(b, n=1):
    return f"v{b}" if n == 1 else f"v[{b}:{b+n-1}]"
def sr(b, n=1):
    return f"s{b}" if n == 1 else f"s[{b}:{b+n-1}]"

def kernel_head(a, name):
    a.raw(f".globl {name}")
    a.raw(".p2align 8")
    a.raw(f".type {name},@function")
    a.lab(name)

def kernel_desc(name, nv, ns=102):
    acc = (nv + 3) // 4 * 4
    return f""".amdhsa_kernel {name}
  .amdhsa_next_free_vgpr {nv}
  .amdhsa_next_free_sgpr {ns}
  .amdhsa_accum_offset {acc}
  .amdhsa_group_segment_fixed_size 0
  .amdhsa_kernarg_size 80
  .amdhsa_user_sgpr_count 2
  .amdhsa_user_sgpr_kernarg_segment_ptr 1
  .amdhsa_system_sgpr_workgroup_id_x 1
  .amdhsa_float_denorm_mode_32 3
  .amdhsa_float_denorm_mode_16_64 3
.end_amdhsa_kernel
"""

PROF = False
OPT = set()
STORE_FLAGS = " sc1"
PROF_OFF = 0x2000000
def optval(name, default):
    for o in OPT:
        if o.startswith(name + "="): return int(o.split("=")[1])
    return default
def stamp(a, i):
    if PROF:
        a(f"s_memtime s[{80+2*i}:{81+2*i}]")
        if i == 0: a("s_memrealtime s[76:77]")
def stamp_flush(a, kidx, n, srdreg, wave_sgpr, vtmp):
    if not PROF: return
    a("s_memrealtime s[98:99]")
    a("s_waitcnt lgkmcnt(0)")
    a(f"s_lshl_b32 s75, s2, 3")
    a(f"s_add_u32 s75, s75, s{wave_sgpr}")
    a(f"s_lshl_b32 s75, s75, 6")
    a(f"s_add_u32 s75, s75, {PROF_OFF + kidx * 0x100000}")
    a("s_mov_b64 exec, 1")
    a(f"v_mov_b32 v{vtmp+1}, 0")
    for i in range(n):
        a(f"v_mov_b32 v{vtmp}, s{80+2*i}")
        a(f"buffer_store_dword v{vtmp}, v{vtmp+1}, s[{srdreg}:{srdreg+3}], s75 offen offset:{4*i}")
    a(f"v_mov_b32 v{vtmp}, s76")
    a(f"buffer_store_dword v{vtmp}, v{vtmp+1}, s[{srdreg}:{srdreg+3}], s75 offen offset:56")
    a(f"v_mov_b32 v{vtmp}, s98")
    a(f"buffer_store_dword v{vtmp}, v{vtmp+1}, s[{srdreg}:{srdreg+3}], s75 offen offset:60")

def srd(a, d, lo, hi, size):
    a(f"s_mov_b32 s{d}, s{lo}")
    a(f"s_and_b32 s{d+1}, s{hi}, 0xffff")
    a(f"s_mov_b32 s{d+2}, {size}")
    a(f"s_mov_b32 s{d+3}, 0x00020000")

K1_XB = 32768
K1_BUF = 32768 + 16384
K1_NBUF = 3
K1_LDS = K1_BUF * K1_NBUF

def gen_k1(a):
    PF0 = optval("pf0", 3)
    name = "k1_qkv_kernel"
    kernel_head(a, name)
    SX = 12; SW = 16; SWS = 20; SG = 24
    sW = 32; sWM = 33; sWN = 34; sI = 35; sRD = 36; sWRB = 37
    sXS = 38; sWS1 = 39; sXM0 = 41; sWM0 = 42; sMT = 43; sNT = 44; sBR = 45
    sTMP = 46; sTMP2 = 47; sTMP3 = 48; sTMP4 = 49
    sSEC = 50; sFB = 51; sEO = 52; sD = 53; sHS = 54; sSC = 56
    vLANE = 1; vXO = 2; vWO = 4
    vXR = 6
    vWR = 10
    vXA = 12
    vWA = 16
    vT = 18
    vXF = 32
    vWF = 64
    vACC = 96
    vEO = 160
    vPF = 176
    NV = 184

    a("s_cmp_ge_u32 s2, 256")
    a("s_cbranch_scc1 K1_END")
    if "noselfpf" not in OPT:
        a("s_getpc_b64 s[78:79]")
        a.lab("K1_PC0")
        a("s_sub_u32 s78, s78, K1_PC0-k1_qkv_kernel")
        a("s_subb_u32 s79, s79, 0")
        a("v_lshlrev_b32 v180, 7, v0")
        a("v_cmp_gt_u32 vcc, K1_TEXT_SIZE, v180")
        a("s_and_saveexec_b64 s[72:73], vcc")
        a("s_cbranch_execz K1_SPF")
        a("global_load_dword v181, v180, s[78:79]")
        a.lab("K1_SPF")
        a("s_mov_b64 exec, s[72:73]")
    stamp(a, 0)
    for _ in range(optval("k1pad", 0)): a("s_nop 0")
    if "dbgtime" in OPT:
        a("s_memrealtime s[90:91]")
        a("s_memtime s[88:89]")
    a("s_lshr_b32 s45, s2, 2")
    a("s_and_b32 s45, s45, 1")
    a("s_mul_i32 s46, s45, 24")
    a("s_add_u32 s46, s46, 8")
    a("s_load_dwordx2 s[10:11], s[0:1], s46")
    a("s_load_dwordx2 s[8:9], s[0:1], 0")
    a("s_load_dwordx2 s[4:5], s[0:1], 72")
    a("s_load_dwordx2 s[6:7], s[0:1], 48")
    a(f"v_and_b32 v{vLANE}, 63, v0")
    a(f"v_lshrrev_b32 v{vT}, 6, v0")
    a(f"s_lshr_b32 s{sTMP}, s2, 3")
    a(f"v_readfirstlane_b32 s{sW}, v{vT}")
    a(f"s_and_b32 s{sMT}, s2, 3")
    a(f"s_lshl_b32 s{sMT}, s{sMT}, 1")
    a(f"s_and_b32 s{sTMP2}, s{sTMP}, 1")
    a(f"s_add_u32 s{sMT}, s{sMT}, s{sTMP2}")
    a(f"s_lshr_b32 s{sNT}, s{sTMP}, 1")
    a(f"s_cmp_ge_u32 s{sNT}, 15")
    a("s_cbranch_scc1 K1_GATE")
    a(f"s_and_b32 s{sWM}, s{sW}, 3")
    a(f"s_lshr_b32 s{sWN}, s{sW}, 2")
    a(f"v_lshrrev_b32 v{vT}, 3, v{vLANE}")
    a(f"v_lshrrev_b32 v{vT+1}, 4, v{vLANE}")
    a(f"v_xor_b32 v{vT+1}, v{vT+1}, v{vLANE}")
    a(f"v_and_b32 v{vT+1}, 7, v{vT+1}")
    a(f"s_lshl_b32 s{sTMP}, s{sMT}, 8")
    a(f"s_lshl_b32 s{sTMP2}, s{sW}, 5")
    a(f"s_add_u32 s{sTMP}, s{sTMP}, s{sTMP2}")
    a(f"v_add_u32 v{vT}, s{sTMP}, v{vT}")
    a(f"v_mul_u32_u24 v{vT}, 1280, v{vT}")
    a(f"v_lshl_add_u32 v{vXO}, v{vT+1}, 4, v{vT}")
    a(f"v_xor_b32 v{vXO+1}, 64, v{vXO}")
    a(f"v_lshrrev_b32 v{vT}, 4, v{vLANE}")
    a(f"v_lshlrev_b32 v{vT+1}, 2, v{vT}")
    a(f"v_xor_b32 v{vT+1}, v{vT+1}, v{vLANE}")
    a(f"v_and_b32 v{vT+1}, 15, v{vT+1}")
    a(f"s_lshl_b32 s{sTMP}, s{sW}, 3")
    a(f"v_add_u32 v{vT}, s{sTMP}, v{vT}")
    a(f"v_mul_u32_u24 v{vT}, 3840, v{vT}")
    a(f"v_lshl_add_u32 v{vT}, v{vT+1}, 4, v{vT}")
    a(f"s_lshl_b32 s{sTMP}, s{sNT}, 8")
    a(f"v_add_u32 v{vWO}, s{sTMP}, v{vT}")
    a(f"s_lshl_b32 s{sXM0}, s{sW}, 12")
    a(f"s_lshl_b32 s{sWM0}, s{sW}, 11")
    a(f"s_add_u32 s{sWM0}, s{sWM0}, {K1_XB}")
    a("s_waitcnt lgkmcnt(0)")
    srd(a, SX, 8, 9, 2048 * 1280)
    srd(a, SW, 10, 11, 640 * 3840)

    def dma_list(buf_s, inloop=False):
        g = []
        if "k1nodma" in OPT and inloop: return [["s_nop 0"]] * 6
        for i in range(4):
            g.append([f"s_add_u32 m0, s{buf_s}, s{sXM0}" if i == 0 else f"s_add_u32 m0, m0, 1024",
                      f"s_add_u32 s{sTMP3}, s{sXS}, {i*8*1280}",
                      f"buffer_load_dwordx4 v{vXO + (i & 1)}, s[{SX}:{SX+3}], s{sTMP3} offen lds"])
        for i in range(2):
            g.append([f"s_add_u32 m0, s{buf_s}, s{sWM0}" if i == 0 else f"s_add_u32 m0, m0, 1024",
                      f"s_add_u32 s{sTMP3}, s{sWS1}, {i*4*3840}",
                      f"buffer_load_dwordx4 v{vWO}, s[{SW}:{SW+3}], s{sTMP3} offen lds"])
        g[-1] = g[-1] + [f"s_add_u32 s{sXS}, s{sXS}, 128", f"s_add_u32 s{sWS1}, s{sWS1}, {64*3840}"]
        return g
    a(f"s_mov_b32 s{sXS}, 0")
    a(f"s_mov_b32 s{sWS1}, 0")
    a(f"s_mov_b32 s{sWRB}, 0")
    for g in dma_list(sWRB):
        for x in g: a(x)
    srd(a, SWS, 4, 5, WS_USED)
    a(f"v_and_b32 v{vT}, 31, v{vLANE}")
    a(f"v_lshrrev_b32 v{vT+1}, 5, v{vLANE}")
    a(f"v_bfe_u32 v{vT+2}, v{vLANE}, 1, 3")
    a(f"v_xor_b32 v{vT+2}, v{vT+2}, v{vT+1}")
    a(f"v_lshlrev_b32 v{vT+2}, 4, v{vT+2}")
    a(f"v_lshl_add_u32 v{vXR}, v{vT}, 7, v{vT+2}")
    a(f"s_lshl_b32 s{sTMP}, s{sWM}, 13")
    a(f"v_add_u32 v{vXR}, s{sTMP}, v{vXR}")
    for kk in range(1, 4):
        a(f"v_xor_b32 v{vXR+kk}, {kk << 5}, v{vXR}")
    a(f"v_bfe_u32 v{vT+2}, v{vLANE}, 2, 2")
    a(f"v_lshl_add_u32 v{vT+3}, v{vT+1}, 3, v{vT+2}")
    a(f"v_lshlrev_b32 v{vT+3}, 8, v{vT+3}")
    a(f"v_and_b32 v{vT+4}, 3, v{vLANE}")
    a(f"v_lshl_add_u32 v{vT+3}, v{vT+4}, 3, v{vT+3}")
    a(f"v_bfe_u32 v{vT+4}, v{vLANE}, 4, 1")
    a(f"v_lshl_add_u32 v{vT+3}, v{vT+4}, 5, v{vT+3}")
    a(f"v_add_u32 v{vT+3}, {K1_XB}, v{vT+3}")
    a(f"s_lshl_b32 s{sTMP}, s{sWN}, 1")
    for bl in range(2):
        a(f"s_add_u32 s{sTMP2}, s{sTMP}, {bl}")
        a(f"v_xor_b32 v{vT+5}, s{sTMP2}, v{vT+2}")
        a(f"v_lshl_add_u32 v{vWR+bl}, v{vT+5}, 6, v{vT+3}")
    PF = "k1pf" in OPT
    if PF:
        a(f"s_lshr_b32 s{sTMP}, s2, 3")
        a(f"s_cmp_lt_u32 s{sW}, 6")
        a("s_cbranch_scc0 K1_PFX")
        a(f"s_mul_i32 s{sTMP}, s{sTMP}, 6")
        a(f"s_add_u32 s{sTMP}, s{sTMP}, s{sW}")
        a(f"s_mul_i32 s{sTMP}, s{sTMP}, 11")
        a(f"v_min_u32 v{vT}, 10, v{vLANE}")
        a(f"v_add_u32 v{vT}, s{sTMP}, v{vT}")
        a(f"v_min_u32 v{vT}, 1919, v{vT}")
        a(f"v_mul_u32_u24 v{vT+1}, 34953, v{vT}")
        a(f"v_lshrrev_b32 v{vT+1}, 20, v{vT+1}")
        a(f"v_mul_u32_u24 v{vT+2}, 30, v{vT+1}")
        a(f"v_sub_u32 v{vT+2}, v{vT}, v{vT+2}")
        a(f"v_mul_u32_u24 v{vT+1}, 3840, v{vT+1}")
        a(f"v_lshl_add_u32 v{vPF}, v{vT+2}, 7, v{vT+1}")
        for i in range(4): a(f"s_mov_b32 s{64+i}, s{SW+i}")
        a(f"s_mov_b32 s68, {64*3840}")
        a("s_branch K1_PFD")
        a.lab("K1_PFX")
        a(f"s_lshl_b32 s{sTMP}, s{sTMP}, 1")
        a(f"s_add_u32 s{sTMP}, s{sTMP}, s{sW}")
        a(f"s_sub_u32 s{sTMP}, s{sTMP}, 6")
        a(f"s_mul_i32 s{sTMP}, s{sTMP}, 9")
        a(f"v_min_u32 v{vT}, 8, v{vLANE}")
        a(f"v_add_u32 v{vT}, s{sTMP}, v{vT}")
        a(f"v_min_u32 v{vT}, 511, v{vT}")
        a(f"s_and_b32 s{sTMP}, s2, 3")
        a(f"s_lshl_b32 s{sTMP}, s{sTMP}, 9")
        a(f"v_add_u32 v{vT}, s{sTMP}, v{vT}")
        a(f"v_mul_u32_u24 v{vPF}, 1280, v{vT}")
        for i in range(4): a(f"s_mov_b32 s{64+i}, s{SX+i}")
        a(f"s_mov_b32 s68, 128")
        a.lab("K1_PFD")
        a(f"s_mul_i32 s69, s68, {PF0}")
    def pf_group():
        return [f"buffer_load_dword v{vPF+1}, v{vPF}, s[64:67], s69 offen", f"s_add_u32 s69, s69, s68"]
    a(f"s_mul_i32 s{sSEC}, s{sNT}, 52")
    a(f"s_lshr_b32 s{sSEC}, s{sSEC}, 8")
    a(f"s_mul_i32 s{sTMP}, s{sSEC}, 5")
    a(f"s_sub_u32 s{sFB}, s{sNT}, s{sTMP}")
    a(f"s_lshl_b32 s{sFB}, s{sFB}, 7")
    a(f"s_lshl_b32 s{sTMP}, s{sWN}, 6")
    a(f"s_add_u32 s{sFB}, s{sFB}, s{sTMP}")
    a(f"s_cmp_eq_u32 s{sSEC}, 2")
    a("s_cbranch_scc1 K1_VPREP")
    a(f"s_cmp_eq_u32 s{sSEC}, 0")
    a(f"s_cselect_b32 s{sSC}, {f2u(QSCALE):#x}, 1.0")
    a(f"s_mov_b32 s{sSC+1}, s{sSC}")
    a(f"s_mov_b32 s{sTMP}, {KV_HEAD}")
    a(f"s_cselect_b32 s{sHS}, {Q_HEAD}, s{sTMP}")
    a(f"s_mov_b32 s{sTMP}, {KV_CH}")
    a(f"s_cselect_b32 s{sTMP2}, {Q_CH}, s{sTMP}")
    a(f"s_mul_i32 s{sEO}, s{sMT}, s{sTMP2}")
    a(f"s_mul_i32 s{sTMP2}, s{sBR}, {QB_OFF - QA_OFF}")
    a(f"s_add_u32 s{sTMP2}, s{sTMP2}, {QA_OFF}")
    a(f"s_mul_i32 s{sTMP3}, s{sBR}, {KVB_OFF - KVA_OFF}")
    a(f"s_cmp_eq_u32 s{sSEC}, 0")
    a(f"s_cselect_b32 s{sTMP2}, s{sTMP2}, s{sTMP3}")
    a(f"s_add_u32 s{sEO}, s{sEO}, s{sTMP2}")
    a(f"s_mul_i32 s{sTMP}, s{sWM}, 2560")
    a(f"s_add_u32 s{sEO}, s{sEO}, s{sTMP}")
    a(f"s_lshr_b32 s{sTMP}, s{sFB}, 2")
    a(f"v_lshrrev_b32 v{vT+6}, 5, v{vLANE}")
    a(f"v_add_u32 v{vT+6}, s{sTMP}, v{vT+6}")
    a(f"v_and_b32 v{vT+7}, 31, v{vLANE}")
    a(f"v_lshlrev_b32 v{vT+7}, 3, v{vT+7}")
    a(f"v_mov_b32 v{vT+8}, 0x43120")
    for e in range(8):
        a(f"v_add_u32 v{vT}, {2*e}, v{vT+6}")
        a(f"v_mul_u32_u24 v{vT+1}, 52429, v{vT}")
        a(f"v_lshrrev_b32 v{vT+1}, 18, v{vT+1}")
        a(f"v_mul_u32_u24 v{vT+2}, 5, v{vT+1}")
        a(f"v_sub_u32 v{vT+2}, v{vT}, v{vT+2}")
        a(f"v_lshlrev_b32 v{vT+2}, 2, v{vT+2}")
        a(f"v_bfe_u32 v{vT+2}, v{vT+8}, v{vT+2}, 4")
        a(f"v_lshl_add_u32 v{vT+2}, v{vT+2}, 8, v{vT+7}")
        a(f"v_mad_u32_u24 v{vEO+e}, v{vT+1}, s{sHS}, v{vT+2}")
    a(f"v_and_b32 v{vT}, 1, v{vLANE}")
    a(f"v_cmp_eq_u32 vcc, 0, v{vT}")
    a(f"v_lshlrev_b32 v{vT}, 3, v{vT}")
    a("s_nop 0")
    a("s_mov_b64 s[60:61], vcc")
    for p in range(4):
        a(f"v_cndmask_b32 v{vEO+8+p}, v{vEO+2*p+1}, v{vEO+2*p}, vcc")
        a(f"v_sub_u32 v{vEO+8+p}, v{vEO+8+p}, v{vT}")
    a("s_branch K1_T")
    a.lab("K1_VPREP")
    a(f"s_mul_i32 s{sEO}, s{sMT}, {KV_CH}")
    a(f"s_mul_i32 s{sTMP}, s{sBR}, {KVB_OFF - KVA_OFF}")
    a(f"s_add_u32 s{sEO}, s{sEO}, s{sTMP}")
    a(f"s_mul_i32 s{sTMP}, s{sWM}, {4*640}")
    a(f"s_add_u32 s{sEO}, s{sEO}, s{sTMP}")
    a(f"s_add_u32 s{sEO}, s{sEO}, 10240")
    a(f"s_mov_b32 s{sHS}, {KV_HEAD}")
    for bl in range(2):
        a(f"s_add_u32 s{sTMP}, s{sFB}, {32*bl}")
        a(f"v_and_b32 v{vT}, 31, v{vLANE}")
        a(f"v_add_u32 v{vT}, s{sTMP}, v{vT}")
        a(f"v_mul_u32_u24 v{vT+1}, 52429, v{vT}")
        a(f"v_lshrrev_b32 v{vT+1}, 20, v{vT+1}")
        a(f"v_mul_u32_u24 v{vT+2}, 20, v{vT+1}")
        a(f"v_sub_u32 v{vT+2}, v{vT}, v{vT+2}")
        a(f"v_lshrrev_b32 v{vT+3}, 5, v{vLANE}")
        a(f"v_mul_u32_u24 v{vT+3}, 320, v{vT+3}")
        a(f"v_lshl_add_u32 v{vT+3}, v{vT+2}, 4, v{vT+3}")
        a(f"v_mad_u32_u24 v{vEO+bl}, v{vT+1}, s{sHS}, v{vT+3}")
    a("s_branch K1_C")

    def variant(tag):
        a.lab(f"K1_{tag}")
        def reads(st, ph):
            out = []
            if "k1noread" in OPT: return ["s_nop 0"] * 12
            for q in range(2):
                kk = 2 * ph + q
                for j in range(2):
                    r = vXF + st * 16 + (q * 2 + j) * 4
                    out.append(f"ds_read_b128 v[{r}:{r+3}], v{vXA+kk} offset:{j*4096}")
                    r = vWF + st * 16 + (q * 2 + j) * 4
                    out.append(f"ds_read_b64_tr_b16 v[{r}:{r+1}], v{vWA+j} offset:{kk*4096}")
                    out.append(f"ds_read_b64_tr_b16 v[{r+2}:{r+3}], v{vWA+j} offset:{kk*4096+1024}")
            return out
        def mfmas(st, zero=False):
            out = []
            if "k1nomfma" in OPT: return ["s_nop 0"] * 8
            for q in range(2):
                for bl in range(2):
                    for mb in range(2):
                        acc = vACC + (bl * 2 + mb) * 16
                        xf = f"v[{vXF+st*16+(q*2+mb)*4}:{vXF+st*16+(q*2+mb)*4+3}]"
                        wf = f"v[{vWF+st*16+(q*2+bl)*4}:{vWF+st*16+(q*2+bl)*4+3}]"
                        c = "0" if (zero and q == 0) else f"v[{acc}:{acc+15}]"
                        if tag == "T":
                            out.append(f"v_mfma_f32_32x32x16_bf16 v[{acc}:{acc+15}], {wf}, {xf}, {c}")
                        else:
                            out.append(f"v_mfma_f32_32x32x16_bf16 v[{acc}:{acc+15}], {xf}, {wf}, {c}")
            return out
        def setaddr(sreg):
            return [f"v_add_u32 v{vXA+i}, s{sreg}, v{vXR+i}" for i in range(4)] + [f"v_add_u32 v{vWA+i}, s{sreg}, v{vWR+i}" for i in range(2)]
        def weave(mf, extras, upto=None):
            n = upto or len(mf); m = len(extras)
            k = 0
            for i, x in enumerate(mf):
                a(x)
                tgt = min(m, ((i + 1) * m + n - 1) // n)
                while k < tgt:
                    for y in extras[k]: a(y)
                    k += 1
        def mix(rd, dm, tail):
            ex = []
            nd = len(dm)
            for i, r in enumerate(rd):
                ex.append([r])
                if nd == 3 and i % 4 == 3: ex.append(dm[i // 4])
                if nd == 6 and i % 2 == 1: ex.append(dm[i // 2])
            return ex + tail
        def phaseA(zero, dm):
            ring = [[f"s_add_u32 s{sRD}, s{sRD}, {K1_BUF}", f"s_cmp_eq_u32 s{sRD}, {K1_LDS}", f"s_cselect_b32 s{sRD}, 0, s{sRD}"]]
            mf = mfmas(0, zero)
            weave(mf[:7], mix(reads(1, 1), dm, ring), upto=6)
            return mf[7:]
        a(f"s_mov_b32 s{sWRB}, {K1_BUF}")
        for g in dma_list(sWRB):
            for x in g: a(x)
        a(f"s_mov_b32 s{sWRB}, {2*K1_BUF}")
        NP0 = (5 - PF0) if PF else 0
        for i in range(NP0):
            for x in pf_group(): a(x)
        SL = "slice" in OPT
        def slice_groups():
            pre = [f"s_lshr_b32 s70, s2, 3", f"s_lshl_b32 s70, s70, 2", f"s_and_b32 s71, s2, 3", f"s_add_u32 s70, s70, s71",
                   f"s_lshl_b32 s70, s70, 3", f"s_add_u32 s70, s70, s{sW}", f"s_lshl_b32 s70, s70, 10", f"v_lshlrev_b32 v{vPF}, 4, v{vLANE}"]
            g = []
            for i in range(3):
                g.append([f"s_add_u32 s71, s70, {i*960*1024}",
                          f"buffer_load_dwordx4 v[{vPF+4}:{vPF+7}], v{vPF}, s[{SW}:{SW+3}], s71 offen"])
            g.append([f"s_mul_i32 s71, s{sBR}, {1280*1024}", f"s_add_u32 s71, s71, s70",
                      f"buffer_load_dwordx4 v[{vPF+4}:{vPF+7}], v{vPF}, s[{SX}:{SX+3}], s71 offen"])
            g.append([f"s_add_u32 s71, s71, {960*1024}", f"s_cmp_lt_u32 s70, {320*1024}", f"s_cselect_b32 s71, s71, s70",
                      f"buffer_load_dwordx4 v[{vPF+4}:{vPF+7}], v{vPF}, s[{SX}:{SX+3}], s71 offen"])
            return pre, g
        NP = 1 if PF else 0
        if SL and 'sliceearly' in OPT:
            pre, g = slice_groups()
            for x in pre: a(x)
            for gg in g:
                for x in gg: a(x)
            NP0 += 5
        stamp(a, 2)
        a(f"s_waitcnt vmcnt({6+NP0})")
        a("s_barrier")
        stamp(a, 3)
        a(f"s_mov_b32 s{sRD}, 0")
        for x in setaddr(sRD): a(x)
        for r in reads(0, 0): a(r)
        a(f"s_mov_b32 s{sI}, 0")
        adv = [f"s_add_u32 s{sWRB}, s{sWRB}, {K1_BUF}", f"s_cmp_eq_u32 s{sWRB}, {K1_LDS}", f"s_cselect_b32 s{sWRB}, 0, s{sWRB}"]
        a("s_waitcnt lgkmcnt(0)")
        LATE = SL and 'sliceearly' not in OPT
        if LATE:
            pre, g = slice_groups()
            for x in pre: a(x)
        last = phaseA(True, dma_list(sWRB, True))
        if LATE:
            for gg in g:
                for x in gg: a(x)
        for x in last: a(x)
        a(f"s_waitcnt vmcnt({6+NP0+(5 if LATE else 0)}) lgkmcnt(0)")
        a(f"s_branch K1_{tag}_WB")
        a.lab(f"K1_{tag}_LOOP")
        a("s_waitcnt lgkmcnt(0)")
        a(f"s_cmp_ge_u32 s{sI}, 8")
        a(f"s_cbranch_scc1 K1_{tag}_AND")
        last = phaseA(False, [] if "k1allc" in OPT else dma_list(sWRB, True)[3:])
        for x in last: a(x)
        a.lab(f"K1_{tag}_B")
        if LATE:
            a(f"s_cmp_eq_u32 s{sI}, 1")
            a(f"s_cbranch_scc1 K1_{tag}_B1")
        a(f"s_waitcnt vmcnt({6+NP}) lgkmcnt(0)")
        a.lab(f"K1_{tag}_WB")
        if "k1stamp" in OPT:
            a("s_memtime s[78:79]")
        if "k1nobar" not in OPT: a("s_barrier")
        if "k1stamp" in OPT:
            a("s_memtime s[74:75]")
            a("s_waitcnt lgkmcnt(0)")
            a(f"s_mov_b32 s79, m0")
            a(f"s_mov_b32 m0, s{sI}")
            a("s_nop 0")
            a(f"v_writelane_b32 v179, s74, m0")
            a(f"s_add_u32 m0, m0, 16")
            a("s_nop 0")
            a(f"v_writelane_b32 v179, s78, m0")
            a(f"s_mov_b32 m0, s79")
        mf = mfmas(1)
        a(mf[0])
        for x in setaddr(sRD): a(x)
        for x in adv: a(x)
        rd = reads(0, 0)
        a(f"s_cmp_ge_u32 s{sI}, 7")
        a(f"s_cbranch_scc1 K1_{tag}_ND")
        cnt = [[f"s_add_u32 s{sI}, s{sI}, 1"]]
        weave(mf[1:], mix(rd, dma_list(sWRB, True)[:3], ([pf_group()] if PF else []) + cnt), upto=6)
        a(f"s_branch K1_{tag}_LOOP")
        a.lab(f"K1_{tag}_ND")
        weave(mf[1:], mix(rd, [], cnt), upto=6)
        a(f"s_cmp_lt_u32 s{sI}, 10")
        a(f"s_cbranch_scc1 K1_{tag}_LOOP")
        stamp(a, 4)
        a("s_nop 7")
        a("s_nop 3")
        n = 0
        for bl in range(2):
            for mb in range(2):
                acc = vACC + (bl * 2 + mb) * 16
                if tag == "T" and "t8" in OPT:
                    for i in range(4):
                        q = acc + 4 * i
                        t = vXF + (n % 16) * 2; n += 1
                        a(f"v_pk_mul_f32 v[{q}:{q+1}], v[{q}:{q+1}], s[{sSC}:{sSC+1}]")
                        a(f"v_pk_mul_f32 v[{q+2}:{q+3}], v[{q+2}:{q+3}], s[{sSC}:{sSC+1}]")
                        a(f"v_cvt_pk_bf16_f32 v{t}, v{q}, v{q+1}")
                        a(f"v_cvt_pk_bf16_f32 v{t+1}, v{q+2}, v{q+3}")
                        a(f"buffer_store_dwordx2 v[{t}:{t+1}], v{vEO + 4*bl + i}, s[{SWS}:{SWS+3}], s{sEO} offen offset:{mb*1280}{STORE_FLAGS}")
                elif tag == "T":
                    t = vXF + (n % 4) * 16; n += 1
                    for i in range(4):
                        q = acc + 4 * i
                        a(f"v_pk_mul_f32 v[{q}:{q+1}], v[{q}:{q+1}], s[{sSC}:{sSC+1}]")
                        a(f"v_pk_mul_f32 v[{q+2}:{q+3}], v[{q+2}:{q+3}], s[{sSC}:{sSC+1}]")
                        a(f"v_cvt_pk_bf16_f32 v{t+2*i}, v{q}, v{q+1}")
                        a(f"v_cvt_pk_bf16_f32 v{t+2*i+1}, v{q+2}, v{q+3}")
                    DP = "quad_perm:[1,0,3,2] row_mask:0xf bank_mask:0xf"
                    a("s_mov_b64 vcc, s[60:61]")
                    for pr in range(2):
                        A0 = t + 4 * pr; B0 = A0 + 2; o = t + 8 + 4 * pr
                        a(f"v_cndmask_b32_dpp v{o}, v{B0}, v{A0}, vcc {DP}")
                        a(f"v_cndmask_b32_dpp v{o+1}, v{B0+1}, v{A0+1}, vcc {DP}")
                    a("s_not_b64 vcc, vcc")
                    for pr in range(2):
                        A0 = t + 4 * pr; B0 = A0 + 2; o = t + 8 + 4 * pr
                        a(f"v_cndmask_b32_dpp v{o+2}, v{A0}, v{B0}, vcc {DP}")
                        a(f"v_cndmask_b32_dpp v{o+3}, v{A0+1}, v{B0+1}, vcc {DP}")
                    for pr in range(2):
                        o = t + 8 + 4 * pr
                        a(f"buffer_store_dwordx4 v[{o}:{o+3}], v{vEO + 8 + 2*bl + pr}, s[{SWS}:{SWS+3}], s{sEO} offen offset:{mb*1280}{STORE_FLAGS}")
                else:
                    for g2 in range(2):
                        q = acc + 8 * g2
                        t = vXF + (n % 8) * 4; n += 1
                        for i in range(4):
                            a(f"v_cvt_pk_bf16_f32 v{t+i}, v{q+2*i}, v{q+2*i+1}")
                        a(f"buffer_store_dwordx4 v[{t}:{t+3}], v{vEO+bl}, s[{SWS}:{SWS+3}], s{sEO} offen offset:{(2*mb+g2)*640}{STORE_FLAGS}")
        a("s_branch K1_FIN")
        if LATE:
            a.lab(f"K1_{tag}_B1")
            a(f"s_waitcnt vmcnt({6+NP+5}) lgkmcnt(0)")
            a(f"s_branch K1_{tag}_WB")
        a.lab(f"K1_{tag}_AND")
        last = phaseA(False, [])
        for x in last: a(x)
        a("s_waitcnt vmcnt(0) lgkmcnt(0)")
        a(f"s_branch K1_{tag}_WB")
    variant("T")
    variant("C")

    GPF0 = optval("gpf0", 3)
    a.lab("K1_GATE")
    a("s_waitcnt lgkmcnt(0)")
    srd(a, SX, 8, 9, 2048 * 1280)
    srd(a, SG, 6, 7, 1280)
    srd(a, SWS, 4, 5, WS_USED)
    if "gmall" in OPT:
        a("s_load_dwordx2 s[58:59], s[0:1], 8")
        a("s_load_dwordx2 s[70:71], s[0:1], 32")
        a(f"s_sub_u32 s{sTMP}, s2, 240")
        a(f"s_lshl_b32 s{sTMP}, s{sTMP}, 3")
        a(f"s_add_u32 s{sTMP}, s{sTMP}, s{sW}")
        a(f"v_lshlrev_b32 v{vT+1}, 4, v{vLANE}")
        a(f"v_lshrrev_b32 v{vT+2}, 3, v{vLANE}")
        a(f"s_lshl_b32 s{sTMP2}, s{sTMP}, 4")
        a(f"v_add_u32 v{vT+2}, s{sTMP2}, v{vT+2}")
        a(f"v_mul_u32_u24 v{vT+2}, 1280, v{vT+2}")
        a(f"v_and_b32 v{vT+3}, 7, v{vLANE}")
        a(f"v_lshl_add_u32 v{vT+2}, v{vT+3}, 4, v{vT+2}")
        a("s_waitcnt lgkmcnt(0)")
        srd(a, 60, 58, 59, 640 * 3840)
        srd(a, 64, 70, 71, 640 * 3840)
        a(f"s_lshl_b32 s72, s{sTMP}, 10")
        a(f"s_add_u32 s73, s72, {128*1024}")
        a(f"s_cmp_ge_u32 s{sTMP}, 112")
        a(f"s_cselect_b32 s73, s72, s73")
        a(f"s_mov_b32 s74, 0")
        for st in range(optval("mall0", 1), 10):
            wo = st * 64 * 3840
            a(f"s_add_u32 s76, s72, {wo}")
            a(f"buffer_load_dwordx4 v[{vXF}:{vXF+3}], v{vT+1}, s[60:63], s76 offen")
            a(f"buffer_load_dwordx4 v[{vXF+4}:{vXF+7}], v{vT+1}, s[64:67], s76 offen")
            a(f"s_add_u32 s76, s73, {wo}")
            a(f"buffer_load_dwordx4 v[{vXF+8}:{vXF+11}], v{vT+1}, s[60:63], s76 offen")
            a(f"buffer_load_dwordx4 v[{vXF+12}:{vXF+15}], v{vT+1}, s[64:67], s76 offen")
            a(f"s_mov_b32 s76, {st*128}")
            a(f"buffer_load_dwordx4 v[{vXF+16}:{vXF+19}], v{vT+2}, s[{SX}:{SX+3}], s76 offen")
            a(f"buffer_load_dwordx4 v[{vXF+20}:{vXF+23}], v{vT+2}, s[{SX}:{SX+3}], s76 offen offset:0" if False else
              f"s_add_u32 s76, s76, {8*1280}")
            a(f"buffer_load_dwordx4 v[{vXF+20}:{vXF+23}], v{vT+2}, s[{SX}:{SX+3}], s76 offen")
            a("s_waitcnt vmcnt(36)")
        a("s_waitcnt vmcnt(0)")
    TS = optval("tlbin", 0)
    if TS:
        srd(a, SW, 10, 11, 640 * 3840)
        sh = {4: 12, 16: 14, 64: 16}[TS]
        a(f"s_lshr_b32 s{sTMP}, s2, 3")
        a(f"s_and_b32 s{sTMP}, s{sTMP}, 1")
        a(f"s_lshl_b32 s{sTMP}, s{sTMP}, 3")
        a(f"s_add_u32 s{sTMP}, s{sTMP}, s{sW}")
        a(f"s_lshl_b32 s{sTMP}, s{sTMP}, 6")
        a(f"v_add_u32 v{vT+1}, s{sTMP}, v{vLANE}")
        a(f"v_lshlrev_b32 v{vT+1}, {sh}, v{vT+1}")
        n = max(1, -(-2621440 // ((1024) << sh)))
        for i in range(n):
            a(f"s_mov_b32 s{sTMP2}, {i * (1024 << sh)}")
            a(f"buffer_load_dword v{vPF}, v{vT+1}, s[{SW}:{SW+3}], s{sTMP2} offen")
            a(f"buffer_load_dword v{vPF+1}, v{vT+1}, s[{SX}:{SX+3}], s{sTMP2} offen")
    if "gpf" in OPT:
        srd(a, SW, 10, 11, 640 * 3840)
        a(f"s_lshr_b32 s{sTMP}, s2, 3")
        a(f"s_and_b32 s{sTMP}, s{sTMP}, 1")
        a(f"v_cmp_le_u32 vcc, 30, v{vLANE}")
        a(f"v_mov_b32 v{vT+1}, 0")
        a(f"v_mov_b32 v{vT+2}, {3840 - 30*128}")
        a(f"v_cndmask_b32 v{vT+1}, v{vT+1}, v{vT+2}, vcc")
        a(f"v_min_u32 v{vT+2}, 59, v{vLANE}")
        a(f"v_lshl_add_u32 v{vT+1}, v{vT+2}, 7, v{vT+1}")
        a(f"s_lshl_b32 s{sTMP2}, s{sTMP}, 5")
        a(f"s_lshl_b32 s{sTMP3}, s{sW}, 2")
        a(f"s_add_u32 s{sTMP2}, s{sTMP2}, s{sTMP3}")
        a(f"s_add_u32 s{sTMP2}, s{sTMP2}, {64*GPF0}")
        a(f"s_mul_i32 s{sTMP2}, s{sTMP2}, 3840")
        a(f"s_and_b32 s{sTMP3}, s2, 3")
        a(f"s_lshl_b32 s{sTMP3}, s{sTMP3}, 9")
        a(f"s_lshl_b32 s{sTMP}, s{sTMP}, 8")
        a(f"s_add_u32 s{sTMP3}, s{sTMP3}, s{sTMP}")
        a(f"s_and_b32 s{sTMP}, s{sW}, 3")
        a(f"s_lshl_b32 s{sTMP}, s{sTMP}, 6")
        a(f"s_add_u32 s{sTMP3}, s{sTMP3}, s{sTMP}")
        a(f"v_add_u32 v{vT+2}, s{sTMP3}, v{vLANE}")
        a(f"v_mul_u32_u24 v{vT+2}, 1280, v{vT+2}")
        a(f"s_mov_b32 s{sTMP3}, {128*GPF0}")
        for st in range(GPF0, 10):
            a(f"buffer_load_dword v{vPF}, v{vT+1}, s[{SW}:{SW+3}], s{sTMP2} offen")
            a(f"s_add_u32 s{sTMP}, s{sTMP2}, {2*3840}")
            a(f"buffer_load_dword v{vPF+1}, v{vT+1}, s[{SW}:{SW+3}], s{sTMP} offen")
            a(f"buffer_load_dword v{vPF+2}, v{vT+2}, s[{SX}:{SX+3}], s{sTMP3} offen")
            a(f"s_add_u32 s{sTMP2}, s{sTMP2}, {64*3840}")
            a(f"s_add_u32 s{sTMP3}, s{sTMP3}, 128")
    if "notlb" not in OPT:
        a(f"v_lshlrev_b32 v{vT+1}, 16, v{vLANE}")
        a(f"s_lshl_b32 s{sTMP}, s{sW}, 22")
        a(f"s_cmp_lt_u32 s{sW}, 6")
        a(f"s_cbranch_scc0 K1_NOTLB")
        a(f"buffer_load_dword v{vPF}, v{vT+1}, s[{SWS}:{SWS+3}], s{sTMP} offen")
        a.lab("K1_NOTLB")
    if "codepf" in OPT:
        a(f"s_getpc_b64 s[78:79]")
        a.lab("K1_PC")
        a(f"s_add_u32 s78, s78, k2_attn_kernel-K1_PC")
        a(f"s_addc_u32 s79, s79, 0")
        a(f"v_lshlrev_b32 v{vT+1}, 7, v{vLANE}")
        a(f"s_lshl_b32 s{sTMP}, s{sW}, 13")
        a(f"v_add_u32 v{vT+1}, s{sTMP}, v{vT+1}")
        a(f"s_cmp_ge_u32 s{sW}, K2CODE_WAVES")
        a("s_cbranch_scc1 K1_NOCPF")
        a(f"global_load_dword v{vPF+2}, v{vT+1}, s[78:79]")
        a.lab("K1_NOCPF")
    a(f"s_cmp_lg_u32 s2, 240")
    a("s_cbranch_scc1 K1_NOZ")
    a(f"s_cmp_ge_u32 s{sW}, 4")
    a("s_cbranch_scc1 K1_NOZ")
    a(f"v_lshlrev_b32 v{vT+1}, 7, v{vLANE}")
    a(f"v_mov_b32 v{vT+2}, 0")
    a(f"s_lshl_b32 s{sTMP}, s{sW}, 13")
    a(f"s_add_u32 s{sTMP}, s{sTMP}, {FL_OFF}")
    a(f"buffer_store_dword v{vT+2}, v{vT+1}, s[{SWS}:{SWS+3}], s{sTMP} offen")
    a.lab("K1_NOZ")
    a(f"s_sub_u32 s{sTMP}, s2, 240")
    a(f"s_lshl_b32 s{sTMP}, s{sTMP}, 3")
    a(f"s_add_u32 s{sTMP}, s{sTMP}, s{sW}")
    a(f"s_cmp_ge_u32 s{sTMP}, 120")
    a("s_cbranch_scc1 K1_GATE2")
    a(f"s_mul_i32 s{sTMP2}, s{sTMP}, 171")
    a(f"s_lshr_b32 s{sTMP2}, s{sTMP2}, 9")
    a(f"s_mul_i32 s{sTMP3}, s{sTMP2}, 3")
    a(f"s_sub_u32 s{sTMP3}, s{sTMP}, s{sTMP3}")
    a("s_load_dwordx2 s[58:59], s[0:1], 16")
    a("s_load_dwordx2 s[70:71], s[0:1], 40")
    a(f"s_mul_i32 s{sD}, s{sTMP3}, 448")
    a(f"v_lshrrev_b32 v{vT+1}, 5, v{vLANE}")
    a(f"v_mul_u32_u24 v{vT+1}, 1280, v{vT+1}")
    a(f"v_and_b32 v{vT+2}, 31, v{vLANE}")
    a(f"v_lshl_add_u32 v{vT+1}, v{vT+2}, 4, v{vT+1}")
    a(f"v_add_u32 v{vT+1}, s{sD}, v{vT+1}")
    a(f"s_lshl_b32 s{sEO}, s{sW}, 14")
    a("s_waitcnt lgkmcnt(0)")
    srd(a, 60, 58, 59, 640 * 1280)
    srd(a, 64, 70, 71, 640 * 1280)
    for g in range(4):
        a(f"s_lshl_b32 s72, s{sTMP2}, 2")
        a(f"s_add_u32 s72, s72, {g}")
        a(f"s_mul_i32 s73, s72, 205")
        a(f"s_lshr_b32 s73, s73, 10")
        a(f"s_mul_i32 s74, s73, 5")
        a(f"s_sub_u32 s74, s72, s74")
        a(f"s_mul_i32 s73, s73, 20")
        for quad in range(2):
            a(f"s_and_b32 s76, s74, 1")
            a(f"s_lshl_b32 s76, s76, 3")
            a(f"s_add_u32 s76, s76, {4*quad}")
            a(f"s_lshr_b32 s77, s74, 1")
            a(f"s_cmp_eq_u32 s74, 4")
            a(f"s_cselect_b32 s76, 16, s76")
            a(f"s_cselect_b32 s77, {quad}, s77")
            a(f"s_add_u32 s76, s76, s73")
            a(f"s_mul_i32 s76, s76, 1280")
            a(f"s_cmp_eq_u32 s77, 0")
            a(f"s_cbranch_scc0 K1_WB{g}{quad}")
            for r2 in range(2):
                a(f"s_add_u32 m0, s{sEO}, {(g*4 + quad*2 + r2)*1024}")
                a(f"s_add_u32 s{sD}, s76, {r2*2*1280}")
                a(f"buffer_load_dwordx4 v{vT+1}, s[60:63], s{sD} offen lds")
            a(f"s_branch K1_WD{g}{quad}")
            a.lab(f"K1_WB{g}{quad}")
            for r2 in range(2):
                a(f"s_add_u32 m0, s{sEO}, {(g*4 + quad*2 + r2)*1024}")
                a(f"s_add_u32 s{sD}, s76, {r2*2*1280}")
                a(f"buffer_load_dwordx4 v{vT+1}, s[64:67], s{sD} offen lds")
            a.lab(f"K1_WD{g}{quad}")
    a(f"v_lshrrev_b32 v{vT+2}, 4, v{vLANE}")
    a(f"v_bfe_u32 v{vT+3}, v{vLANE}, 2, 2")
    a(f"v_lshl_add_u32 v{vT+2}, v{vT+2}, 3, v{vT+3}")
    a(f"v_lshlrev_b32 v{vT+2}, 9, v{vT+2}")
    a(f"v_and_b32 v{vT+3}, 3, v{vLANE}")
    a(f"v_lshl_add_u32 v{vT+2}, v{vT+3}, 3, v{vT+2}")
    a(f"v_add_u32 v{vT+2}, s{sEO}, v{vT+2}")
    a(f"v_lshlrev_b32 v{vT+3}, 4, v{vLANE}")
    a("s_waitcnt vmcnt(0)")
    for j in range(14):
        a(f"ds_read_b64_tr_b16 v[{vXF+4*j}:{vXF+4*j+1}], v{vT+2} offset:{j*32}")
        a(f"ds_read_b64_tr_b16 v[{vXF+4*j+2}:{vXF+4*j+3}], v{vT+2} offset:{j*32+2048}")
    a(f"s_mul_i32 s{sTMP3}, s{sTMP3}, 14")
    a("s_waitcnt lgkmcnt(0)")
    for j in range(14):
        a(f"s_add_u32 s{sTMP4}, s{sTMP3}, {j}")
        a(f"s_cmp_ge_u32 s{sTMP4}, 40")
        a("s_cbranch_scc1 K1_GATE2")
        a(f"s_mul_i32 s{sD}, s{sTMP4}, 52")
        a(f"s_lshr_b32 s{sD}, s{sD}, 8")
        a(f"s_mul_i32 s{sEO}, s{sD}, 5")
        a(f"s_sub_u32 s{sEO}, s{sTMP4}, s{sEO}")
        a(f"s_mul_i32 s{sD}, s{sD}, 40")
        a(f"s_add_u32 s{sD}, s{sD}, s{sTMP2}")
        a(f"s_mul_i32 s{sD}, s{sD}, 5")
        a(f"s_add_u32 s{sD}, s{sD}, s{sEO}")
        a(f"s_lshl_b32 s{sD}, s{sD}, 10")
        a(f"s_add_u32 s{sD}, s{sD}, {WT_OFF}")
        a(f"buffer_store_dwordx4 v[{vXF+4*j}:{vXF+4*j+3}], v{vT+3}, s[{SWS}:{SWS+3}], s{sD} offen")
    a.lab("K1_GATE2")
    a("s_nop 1")
    a(f"s_sub_u32 s{sTMP}, s2, 240")
    a(f"s_lshl_b32 s{sTMP}, s{sTMP}, 7")
    a(f"s_lshl_b32 s{sTMP2}, s{sW}, 4")
    a(f"s_add_u32 s{sI}, s{sTMP}, s{sTMP2}")
    a(f"v_lshlrev_b32 v{vT}, 2, v{vLANE}")
    for j in range(5):
        a(f"buffer_load_dword v{vT+7+j}, v{vT}, s[{SG}:{SG+3}], 0 offen offset:{j*256}")
    a(f"s_mul_i32 s{sTMP4}, s{sI}, 1280")
    for r in range(16):
        for j in range(5):
            a(f"buffer_load_dword v{vXF+r*5+j}, v{vT}, s[{SX}:{SX+3}], s{sTMP4} offen offset:{j*256}")
        a(f"s_add_u32 s{sTMP4}, s{sTMP4}, 1280")
        if r == 9: a("s_waitcnt vmcnt(20)")
    a("s_waitcnt vmcnt(0)")
    gw = vT + 7
    for j in range(5):
        a(f"v_lshlrev_b32 v{vT+2+j}, 16, v{gw+j}")
        a(f"v_and_b32 v{gw+j}, 0xffff0000, v{gw+j}")
    vG = 112
    for r in range(16):
        a(f"v_mov_b32 v{vG+r}, 0")
        for j in range(5):
            x = vXF + r * 5 + j
            a(f"v_lshlrev_b32 v{vT}, 16, v{x}")
            a(f"v_and_b32 v{x}, 0xffff0000, v{x}")
            a(f"v_fmac_f32 v{vG+r}, v{vT}, v{vT+2+j}")
            a(f"v_fmac_f32 v{vG+r}, v{x}, v{gw+j}")
    for rr in (8, 4, 2, 1):
        a("s_nop 1")
        for r in range(16):
            a(f"v_add_f32_dpp v{vG+r}, v{vG+r}, v{vG+r} row_ror:{rr} row_mask:0xf bank_mask:0xf")
    for r in range(16):
        a(f"v_mov_b32 v{vG+16+r}, v{vG+r}")
    a("s_nop 1")
    for r in range(16):
        a(f"v_permlane32_swap_b32 v{vG+r}, v{vG+16+r}")
    a("s_nop 1")
    for r in range(16):
        a(f"v_add_f32 v{vG+r}, v{vG+r}, v{vG+16+r}")
        a(f"v_mov_b32 v{vG+16+r}, v{vG+r}")
    a("s_nop 1")
    for r in range(16):
        a(f"v_permlane16_swap_b32 v{vG+r}, v{vG+16+r}")
    a("s_nop 1")
    for r in range(16):
        a(f"v_add_f32 v{vG+r}, v{vG+r}, v{vG+16+r}")
    a(f"v_and_b32 v{vT}, 15, v{vLANE}")
    a(f"v_mov_b32 v{vT+1}, v{vG}")
    for r in range(1, 16):
        a(f"v_cmp_eq_u32 vcc, {r}, v{vT}")
        a("s_nop 1")
        a(f"v_cndmask_b32 v{vT+1}, v{vT+1}, v{vG+r}, vcc")
    a(f"v_mul_f32 v{vT+1}, {f2u(-1.4426950408889634):#x}, v{vT+1}")
    a(f"v_exp_f32 v{vT+1}, v{vT+1}")
    a("s_nop 0")
    a(f"v_add_f32 v{vT+1}, 1.0, v{vT+1}")
    a(f"v_rcp_f32 v{vT+1}, v{vT+1}")
    a(f"s_lshl_b32 s{sTMP}, s{sI}, 2")
    a(f"s_add_u32 s{sTMP}, s{sTMP}, {G_OFF}")
    a(f"v_lshlrev_b32 v{vT}, 2, v{vT}")
    a("s_mov_b64 exec, 0xffff")
    a(f"buffer_store_dword v{vT+1}, v{vT}, s[{SWS}:{SWS+3}], s{sTMP} offen")
    if PROF:
        a("s_mov_b64 exec, -1")
        a("s_waitcnt vmcnt(0)")
        for i in range(1, 7): stamp(a, i)
        stamp_flush(a, 0, 7, SWS, sW, vT)
    a("s_branch K1_END")
    a.lab("K1_FIN")
    if "endpf" in OPT:
        a("s_getpc_b64 s[78:79]")
        a.lab("K1_PC2")
        a("s_add_u32 s78, s78, k2_attn_kernel-K1_PC2")
        a("s_addc_u32 s79, s79, 0")
        a("v_lshlrev_b32 v180, 7, v0")
        a("v_cmp_gt_u32 vcc, K2_TEXT_SIZE, v180")
        a("s_and_saveexec_b64 s[72:73], vcc")
        a("s_cbranch_execz K1_EPF")
        a("global_load_dword v181, v180, s[78:79]")
        a.lab("K1_EPF")
        a("s_mov_b64 exec, s[72:73]")
    if "dbgtime" in OPT:
        a("s_cmp_lg_u32 s2, 1")
        a("s_cbranch_scc1 K1_DBGX")
        a("s_cmp_lg_u32 s32, 0")
        a("s_cbranch_scc1 K1_DBGX")
        a("s_load_dwordx2 s[92:93], s[0:1], 64")
        a("s_waitcnt vmcnt(0)")
        a("s_memrealtime s[94:95]")
        a("s_memtime s[96:97]")
        a("s_waitcnt lgkmcnt(0)")
        srd(a, 84, 92, 93, 256)
        a("s_sub_u32 s96, s96, s88")
        a("s_sub_u32 s94, s94, s90")
        a("s_mov_b64 exec, 1")
        a("v_mov_b32 v24, 0")
        a("v_mov_b32 v20, 111")
        a("v_mov_b32 v21, s96")
        a("v_mov_b32 v22, s94")
        a("v_mov_b32 v23, s90")
        a("buffer_store_dwordx4 v[20:23], v24, s[84:87], 0 offen")
        a("s_mov_b64 exec, -1")
        a.lab("K1_DBGX")
    if "k1stamp" in OPT:
        a(f"s_lshl_b32 s97, s2, 3")
        a(f"s_add_u32 s97, s97, s{sW}")
        a(f"s_lshl_b32 s97, s97, 7")
        a(f"s_add_u32 s97, s97, {PROF_OFF + 3 * 0x100000}")
        a(f"v_lshlrev_b32 v{vT}, 2, v{vLANE}")
        a("s_mov_b64 exec, 0xffffffff")
        a(f"buffer_store_dword v179, v{vT}, s[{SWS}:{SWS+3}], s97 offen")
        a("s_mov_b64 exec, -1")
    stamp(a, 5)
    if PROF: a("s_waitcnt vmcnt(0)")
    stamp(a, 6)
    stamp_flush(a, 0, 7, SWS, sW, vT)
    a.lab("K1_END")
    a("s_endpgm")
    a.lab("K1_TEXT_END")
    return name, NV

K2_LDS = 163840
NEGBIG = -1.0e30

def mask_table():
    vals = []
    for j in range(6):
        for l in range(64):
            c = l & 31; h = l >> 5
            for i in range(4):
                if j < 4:
                    r = j * 4 + i
                    row = (r & 3) + 8 * (r >> 2) + 4 * h
                    diff = c + 16 - row
                else:
                    r = (j - 4) * 4 + i
                    row = (r & 3) + 8 * (r >> 2) + 4 * h
                    diff = c - 16 - row
                ok = 0 <= diff <= 14 and diff % 2 == 0
                vals.append(0 if ok else f2u(NEGBIG))
    return vals

K2_PRIO_TILE = 5
def gen_k2(a):
    FUSE = "nofuse" not in OPT
    name = "k2_attn_kernel"
    kernel_head(a, name)
    SWS = 8
    sW = 12; sHEAD = 13; sQB = 14; sS0 = 15; sT0 = 16; sT1 = 17; sT2 = 18; sT3 = 19
    sC = 20; sPASS = 21; sVM = 22
    sLO = 24
    sGRP = 26; sPR = 27
    sDS = 28; sDG = 29
    sAV = 30
    sQA = 33; sGO = 35
    sDO = 44
    sWL = 49; sWS = 58; sWS0 = 59; sWC = 66; sFAIL = 67
    vLANE = 1; vL16 = 2; vK8 = 3; vVA = 4; vKe = 5; vKo = 6; vK4c = 7
    vT = 8
    vGATE = 16; vVc = 17
    vAKO = 18
    vPFA = 22; vQO = 23
    vQ16 = [24, 28]; vQ8 = [32, 34]
    vQA16 = 36; vQA8 = 40
    vKA = 44; vKB = 52; vV1 = 56; vV2 = 64; vP = 72
    S = [84, 100]; NEG = [116, 132]; O = [148, 164]
    vAK = 180; vAV = 192; vMX = 204; vMY = 220
    vOB = 236; vDUM = 244; vOSA = 245
    NV = 248
    ONES = 0x3f803f80
    vS0, vS1 = S

    a("s_cmp_ge_u32 s2, 256")
    a("s_cbranch_scc1 K2_END")
    stamp(a, 0)
    if "dbgtime" in OPT:
        a("s_memrealtime s[90:91]")
        a("s_memtime s[88:89]")
    a("s_load_dwordx2 s[4:5], s[0:1], 72")
    if FUSE:
        a("s_load_dwordx2 s[60:61], s[0:1], 56")
    a(f"v_and_b32 v{vLANE}, 63, v0")
    a(f"v_lshrrev_b32 v{vT}, 6, v0")
    a(f"s_and_b32 s{sHEAD}, s2, 7")
    a(f"v_readfirstlane_b32 s{sW}, v{vT}")
    a(f"s_lshl_b32 s{sHEAD}, s{sHEAD}, 2")
    a(f"s_lshr_b32 s{sT0}, s2, 6")
    a(f"s_add_u32 s{sHEAD}, s{sHEAD}, s{sT0}")
    a(f"s_lshr_b32 s{sQB}, s2, 3")
    a(f"s_and_b32 s{sQB}, s{sQB}, 7")
    a(f"v_lshlrev_b32 v{vL16}, 4, v{vLANE}")
    a(f"v_and_b32 v{vT}, 31, v{vLANE}")
    a(f"v_lshlrev_b32 v{vK8}, 3, v{vT}")
    a(f"v_lshrrev_b32 v{vT+1}, 5, v{vLANE}")
    a(f"v_lshl_add_u32 v{vQO}, v{vT+1}, 8, v{vK8}")
    a(f"s_lshr_b32 s{sGRP}, s{sW}, 2")
    a(f"s_and_b32 s{sPR}, s{sW}, 3")
    a(f"s_mul_i32 s{sDS}, s{sHEAD}, {KV_HEAD}")
    a(f"s_add_u32 s{sDS}, s{sDS}, {KVB_OFF}")
    for j in range(5):
        a(f"s_add_u32 s{sT0}, s{sW}, {8*j}")
        a(f"s_lshl_b32 s{sDO+j}, s{sT0}, 10")
        a(f"s_cmp_ge_u32 s{sT0}, 20")
        a(f"s_cselect_b32 s{sT1}, {4*KV_CH - 20*1024}, 0")
        a(f"s_add_u32 s{sDO+j}, s{sDO+j}, s{sT1}")
    a(f"s_mul_i32 s{sQA}, s{sHEAD}, {Q_HEAD}")
    a(f"s_lshl_b32 s{sT1}, s{sQB}, 3")
    a(f"s_lshl_b32 s{sT2}, s{sPR}, 1")
    a(f"s_add_u32 s{sT1}, s{sT1}, s{sT2}")
    a(f"s_mul_i32 s{sT1}, s{sT1}, 1280")
    a(f"s_add_u32 s{sQA}, s{sQA}, s{sT1}")
    a(f"s_add_u32 s{sT0}, s{sQA}, {QB_OFF}")
    a(f"s_mov_b32 s{sDG}, 0")
    a("s_waitcnt lgkmcnt(0)")
    srd(a, SWS, 4, 5, WS_USED)
    def dma1(j):
        return [f"s_add_u32 m0, s{sDO+j}, s{sDG}",
                f"s_add_u32 s{sT3}, m0, s{sDS}",
                f"buffer_load_dwordx4 v{vL16}, s[{SWS}:{SWS+3}], s{sT3} offen lds"]
    def qloads(q16, q8, sreg, off):
        return [f"buffer_load_dwordx2 v[{q16}:{q16+1}], v{vQO}, s[{SWS}:{SWS+3}], s{sreg} offen offset:{off}",
                f"buffer_load_dwordx2 v[{q16+2}:{q16+3}], v{vQO}, s[{SWS}:{SWS+3}], s{sreg} offen offset:{off+512}",
                f"buffer_load_dwordx2 v[{q8}:{q8+1}], v{vK8}, s[{SWS}:{SWS+3}], s{sreg} offen offset:{off+1024}"]
    for j in range(5):
        for x in dma1(j): a(x)
    for sg in range(2):
        for x in qloads(vQ16[sg], vQ8[sg], sT0, sg * 1280): a(x)
    a(f"s_add_u32 s{sDG}, s{sDG}, {KV_CH}")
    NSELF = 0
    if "k2self" in OPT:
        a("s_getpc_b64 s[78:79]")
        a.lab("K2_PC0")
        a("s_sub_u32 s78, s78, K2_PC0-k2_attn_kernel")
        a("s_subb_u32 s79, s79, 0")
        a(f"v_lshlrev_b32 v{vT}, 7, v0")
        a(f"v_min_u32 v{vT}, K2_TEXT_SIZE - 128, v{vT}")
        a(f"global_load_dword v{vDUM}, v{vT}, s[78:79]")
        NSELF = 1
    stamp(a, 1)
    a(f"s_mov_b32 s{sVM}, 0x000fffff")
    a(f"s_mov_b32 s{sVM+1}, 0x000fffff")
    a(f"s_mov_b32 s{sLO}, -1")
    a(f"s_mov_b32 s{sLO+1}, 0")
    a(f"v_and_b32 v{vT}, 31, v{vLANE}")
    a(f"v_lshrrev_b32 v{vT+1}, 5, v{vLANE}")
    a(f"v_mul_u32_u24 v{vVA}, 20, v{vT+1}")
    a(f"v_add_u32 v{vVA}, v{vVA}, v{vT}")
    a(f"v_lshlrev_b32 v{vVA}, 4, v{vVA}")
    for sg in range(2):
        for i in range(0, 16, 2):
            a(f"v_mov_b64 v[{O[sg]+i}:{O[sg]+i+1}], 0")
    a(f"v_mov_b64 v[{vP+4}:{vP+5}], 0")
    a(f"v_mov_b64 v[{vP+6}:{vP+7}], 0")
    a(f"s_lshl_b32 s{sS0}, s{sQB}, 8")
    a(f"s_lshl_b32 s{sT0}, s{sPR}, 6")
    a(f"s_add_u32 s{sS0}, s{sS0}, s{sT0}")
    a(f"s_lshl_b32 s{sT0}, s{sGRP}, 5")
    a(f"s_add_u32 s{sS0}, s{sS0}, s{sT0}")
    a(f"s_mul_i32 s{sT0}, s{sGRP}, 1280")
    a(f"s_add_u32 s{sQA}, s{sQA}, s{sT0}")
    a(f"s_add_u32 s{sQA}, s{sQA}, {QA_OFF}")
    a(f"s_lshl_b32 s{sT0}, s{sHEAD}, 6")
    a(f"s_lshr_b32 s{sT1}, s{sS0}, 5")
    a(f"s_add_u32 s{sT0}, s{sT0}, s{sT1}")
    for k, dT in enumerate((-1, 0, 1)):
        a(f"s_add_i32 s{sT1}, s{sT0}, {dT}")
        a(f"s_ashr_i32 s{sT2}, s{sT1}, 3")
        a(f"s_mul_i32 s{sT2}, s{sT2}, {KV_CH}")
        a(f"s_and_b32 s{sT1}, s{sT1}, 7")
        a(f"s_mul_i32 s{sT1}, s{sT1}, 1280")
        a(f"s_add_u32 s{50+k}, s{sT1}, s{sT2}")
    a(f"s_add_u32 s50, s50, 128")
    a(f"s_sub_u32 s53, s51, 128")
    a(f"s_add_u32 s51, s51, 128")
    a(f"s_sub_u32 s52, s52, 128")
    a(f"s_mov_b32 s54, 0xffff")
    a(f"s_mov_b32 s55, 0xffff")
    a(f"v_add_u32 v{vAKO+1}, s53, v{vK8}")
    a(f"v_add_u32 v{vAKO+3}, s52, v{vK8}")
    a(f"s_mov_b64 exec, s[54:55]")
    a(f"v_add_u32 v{vAKO+1}, s50, v{vK8}")
    a(f"v_add_u32 v{vAKO+3}, s51, v{vK8}")
    a("s_mov_b64 exec, -1")
    a(f"v_sub_u32 v{vT+7}, v{vQO}, v{vK8}")
    a(f"v_add_u32 v{vAKO}, v{vAKO+1}, v{vT+7}")
    a(f"v_add_u32 v{vAKO+2}, v{vAKO+3}, v{vT+7}")
    a(f"s_lshl_b32 s{sT0}, s{sHEAD}, 7")
    a(f"s_lshr_b32 s{sT1}, s{sS0}, 4")
    a(f"s_add_u32 s{sT0}, s{sT0}, s{sT1}")
    for j in range(3):
        a(f"s_add_i32 s{sT1}, s{sT0}, {j-1}")
        a(f"s_max_i32 s{sT1}, s{sT1}, 0")
        a(f"s_lshr_b32 s{sT2}, s{sT1}, 4")
        a(f"s_mul_i32 s{sT2}, s{sT2}, {KV_CH}")
        a(f"s_and_b32 s{sT1}, s{sT1}, 15")
        a(f"s_mul_i32 s{sT1}, s{sT1}, 640")
        a(f"s_add_u32 s{sT1}, s{sT1}, s{sT2}")
        a(f"s_add_u32 s{sAV+j}, s{sT1}, 10240")
    a(f"s_lshl_b32 s{sGO}, s{sS0}, 2")
    a(f"s_add_u32 s{sGO}, s{sGO}, {G_OFF}")
    a(f"v_mov_b32 v{vT+2}, 0")
    a(f"v_mov_b32 v{vT+3}, {ONES:#x}")
    if "vones" in OPT:
        a(f"v_mov_b32 v{vT+2}, {ONES:#x}")
    else:
        a(f"v_and_b32 v{vT+4}, 27, v{vT}")
        a.l.pop()
        a(f"v_cmp_eq_u32 vcc, 20, v{vT}")
        a(f"v_cmp_eq_u32 s[38:39], 24, v{vT}")
        a("s_nop 1")
        a("s_or_b64 vcc, vcc, s[38:39]")
        a("s_nop 1")
        a(f"v_cndmask_b32 v{vT+2}, v{vT+2}, v{vT+3}, vcc")
    a(f"v_mov_b32 v{vT+3}, v{vT+2}")
    for i in range(0, 12, 2):
        a(f"v_mov_b64 v[{vAV+i}:{vAV+i+1}], v[{vT+2}:{vT+3}]")
    for i in range(0, 16, 2):
        a(f"v_mov_b64 v[{vV1+i}:{vV1+i+1}], v[{vT+2}:{vT+3}]")
    a(f"s_lshr_b32 s{sT0}, s{sS0}, 4")
    a(f"s_mul_i32 s{sT0}, s{sT0}, {40*1024}")
    a(f"s_mul_i32 s{sT1}, s{sHEAD}, {5*256}")
    a(f"s_add_u32 s{sT0}, s{sT0}, s{sT1}")
    a(f"v_bfe_u32 v{vT+2}, v{vLANE}, 4, 1")
    a(f"v_mul_u32_u24 v{vT+2}, {40*1024}, v{vT+2}")
    a(f"v_and_b32 v{vT+3}, 15, v{vLANE}")
    a(f"v_lshl_add_u32 v{vT+3}, v{vT+3}, 4, v{vT+2}")
    a(f"v_lshrrev_b32 v{vT+2}, 5, v{vLANE}")
    a(f"v_lshl_add_u32 v{vT+3}, v{vT+2}, 8, v{vT+3}")
    a(f"v_add_u32 v{vOSA}, s{sT0}, v{vT+3}")
    a(f"s_getpc_b64 s[56:57]")
    a.lab("K2_PC")
    a(f"s_add_u32 s56, s56, K2_TABLE-K2_PC")
    a(f"s_addc_u32 s57, s57, 0")
    if not FUSE:
        a("s_lshr_b32 s36, s2, 3")
        a("s_lshl_b32 s36, s36, 3")
        a(f"s_add_u32 s36, s36, s{sW}")
        a("s_mul_i32 s36, s36, 50")
        a(f"v_min_u32 v{vPFA}, 49, v{vLANE}")
        a(f"v_add_u32 v{vPFA}, s36, v{vPFA}")
        a(f"v_lshlrev_b32 v{vPFA}, 7, v{vPFA}")
        a(f"v_add_u32 v{vPFA}, {WT_OFF}, v{vPFA}")
    if FUSE:
        a(f"s_mov_b32 s64, s{sHEAD}")
        a(f"s_mov_b32 s65, s{sQB}")
        a(f"s_mul_i32 s{sWS0}, s65, {200*1024}")
        a(f"s_lshl_b32 s{sT0}, s{sW}, 10")
        a(f"s_add_u32 s{sWS0}, s{sWS0}, s{sT0}")
        a(f"s_add_u32 s{sWS0}, s{sWS0}, {WT_OFF}")
        a(f"s_mov_b32 s{sWS}, s{sWS0}")
        a(f"s_mov_b32 s{sWL}, 0")
        a(f"s_mov_b32 s{sWC}, 2")
    a(f"s_mov_b32 s{sPASS}, 0")
    a(f"s_mul_i32 s37, s{sGRP}, {4*KV_CH}")
    stamp(a, 2)
    a(f"s_waitcnt vmcnt({NSELF})")
    a(f"s_mov_b64 exec, s[{sLO}:{sLO+1}]")
    a(f"s_not_b64 exec, exec")
    for sg in range(2):
        a(f"v_mov_b32 v{vQ8[sg]}, 0")
        a(f"v_mov_b32 v{vQ8[sg]+1}, 0")
    a("s_mov_b64 exec, -1")
    a("s_barrier")
    stamp(a, 3)
    def rdK16(dst, rel_chunk, tt):
        base = vKe if tt % 2 == 0 else vKo
        o0 = rel_chunk * 40 + (tt >> 1) * 5
        return f"ds_read2st64_b64 v[{dst}:{dst+3}], v{base} offset0:{o0} offset1:{o0+1}"
    def rdK4(dst, rel_chunk, tt):
        return f"ds_read_b64 v[{dst}:{dst+1}], v{vK4c} offset:{rel_chunk*KV_CH + tt*1280 + 1024}"
    def voff(g):
        return (g // 16) * KV_CH + (g % 16) * 640
    def setbases():
        a(f"v_add_u32 v{vKe}, s37, v{vQO}")
        a(f"v_add_u32 v{vKo}, 1280, v{vKe}")
        a(f"v_add_u32 v{vK4c}, s37, v{vK8}")
        a(f"v_add_u32 v{vVc}, s37, v{vVA}")
        a(f"v_add_u32 v{vVc}, 10240, v{vVc}")
    def qk(dst, ka, kb, sg, c):
        return [f"v_mfma_f32_32x32x16_bf16 v[{dst}:{dst+15}], v[{ka}:{ka+3}], v[{vQ16[sg]}:{vQ16[sg]+3}], {c}",
                f"v_mfma_f32_32x32x8_bf16 v[{dst}:{dst+15}], v[{kb}:{kb+1}], v[{vQ8[sg]}:{vQ8[sg]+1}], v[{dst}:{dst+15}]"]
    def rowmax(m, regs, first=None):
        if first is None:
            a(f"v_max3_f32 v{m}, v{regs[0]}, v{regs[1]}, v{regs[2]}")
            rest = regs[3:]
        else:
            rest = regs
        i = 0
        while i + 1 < len(rest):
            a(f"v_max3_f32 v{m}, v{m}, v{rest[i]}, v{rest[i+1]}")
            i += 2
        if i < len(rest):
            a(f"v_max_f32 v{m}, v{m}, v{rest[i]}")
    a.lab("K2_START")
    setbases()
    a(rdK16(vKA, 0, 0))
    a(rdK4(vKB, 0, 0))
    a(f"s_mov_b64 exec, s[{sVM}:{sVM+1}]")
    a(f"ds_read_b128 v[{vV1}:{vV1+3}], v{vVc}")
    a("s_mov_b64 exec, -1")
    a(f"s_cmp_lg_u32 s{sPASS}, 0")
    a("s_cbranch_scc1 K2_HAVEM")
    a("s_waitcnt lgkmcnt(0)")
    for sg in range(2):
        for x in qk(S[sg], vKA, vKB, sg, "0"): a(x)
    a("s_nop 9")
    for sg in range(2):
        m = vT + 2 * sg
        rowmax(m, [S[sg] + i for i in range(16)])
        a(f"v_mov_b32 v{m+1}, v{m}")
    a("s_nop 1")
    for sg in range(2):
        m = vT + 2 * sg
        a(f"v_permlane32_swap_b32 v{m}, v{m+1}")
    a("s_nop 1")
    for sg in range(2):
        m = vT + 2 * sg
        a(f"v_max_f32 v{m}, v{m}, v{m+1}")
        a(f"v_sub_f32 v{NEG[sg]}, 0, v{m}")
        a(f"v_sub_f32 v{NEG[sg]+1}, 0, v{m}")
        for i in range(2, 16, 2):
            a(f"v_mov_b64 v[{NEG[sg]+i}:{NEG[sg]+i+1}], v[{NEG[sg]}:{NEG[sg]+1}]")
    a.lab("K2_HAVEM")
    a("s_waitcnt lgkmcnt(0)")
    a("s_nop 1")
    for x in qk(S[0], vKA, vKB, 0, f"v[{NEG[0]}:{NEG[0]+15}]"): a(x)
    a(f"s_mov_b32 s{sC}, 0")
    a("s_nop 15")
    stamp(a, 4)
    aloads = [
        qloads(vQA16, vQA8, sQA, 0),
        [f"buffer_load_dwordx2 v[{vAK}:{vAK+1}], v{vAKO}, s[{SWS}:{SWS+3}], 0 offen",
         f"buffer_load_dwordx2 v[{vAK+2}:{vAK+3}], v{vAKO}, s[{SWS}:{SWS+3}], 0 offen offset:512",
         f"buffer_load_dwordx2 v[{vAK+8}:{vAK+9}], v{vAKO+1}, s[{SWS}:{SWS+3}], 0 offen offset:1024"],
        [f"buffer_load_dwordx2 v[{vAK+4}:{vAK+5}], v{vAKO+2}, s[{SWS}:{SWS+3}], 0 offen",
         f"buffer_load_dwordx2 v[{vAK+6}:{vAK+7}], v{vAKO+2}, s[{SWS}:{SWS+3}], 0 offen offset:512",
         f"buffer_load_dwordx2 v[{vAK+10}:{vAK+11}], v{vAKO+3}, s[{SWS}:{SWS+3}], 0 offen offset:1024"],
        [f"s_mov_b64 exec, s[{sVM}:{sVM+1}]"] +
        [f"buffer_load_dwordx4 v[{vAV+4*j}:{vAV+4*j+3}], v{vVA}, s[{SWS}:{SWS+3}], s{sAV+j} offen" for j in range(3)] +
        ["s_mov_b64 exec, -1"],
        [f"global_load_dwordx4 v[{vMX+4*j}:{vMX+4*j+3}], v{vL16}, s[56:57] offset:{j*1024}" for j in range(4)] +
        [f"v_add_u32 v{vT+7}, 4096, v{vL16}"] +
        [f"global_load_dwordx4 v[{vMY+4*j}:{vMY+4*j+3}], v{vT+7}, s[56:57] offset:{j*1024}" for j in range(2)] +
        [f"v_lshrrev_b32 v{vT+7}, 1, v{vK8}",
         f"buffer_load_dword v{vGATE}, v{vT+7}, s[{SWS}:{SWS+3}], s{sGO} offen"] +
        ([] if FUSE else [f"buffer_load_dword v{vDUM}, v{vPFA}, s[{SWS}:{SWS+3}], 0 offen"]),
    ]
    ool = []
    ptile = optval("ptile", 6)
    WIN = optval("win", 2)
    def wdma(j, p_expr_sgpr):
        return [f"s_add_u32 m0, s{sDO+j}, s{p_expr_sgpr}",
                f"s_add_u32 s{sT3}, s{sWS}, {j*8192}",
                f"buffer_load_dwordx4 v{vL16}, s[{SWS}:{SWS+3}], s{sT3} offen lds"]
    def chunk_body(c):
        extras = {}
        if c is not None:
            if c < 3:
                for j in range(5):
                    extras.setdefault((j, 1), []).extend(dma1(j) + ([f"s_add_u32 s{sDG}, s{sDG}, {KV_CH}"] if j == 4 else []))
            else:
                flat = [x for x in aloads]
                for j in range(5):
                    extras.setdefault((j, 1), []).extend(flat[j])
            if FUSE and WIN >= 2 and c >= 2:
                for j in range(5):
                    extras.setdefault((j + 1, 0), []).extend(wdma(j, sWL) +
                        ([f"s_add_u32 s{sWL}, s{sWL}, {KV_CH}", f"s_add_u32 s{sWS}, s{sWS}, {K3_BUF}"] if j == 4 else []))
        for tt in range(8):
            for sg in range(2):
                cur = S[sg]; nsg = sg ^ 1; nxt = S[nsg]
                nt = tt if sg == 0 else tt + 1
                ka = vKA + 4 * (nt & 1); kb = vKB + 2 * (nt & 1)
                if sg == 0 and tt == 7 and c is not None:
                    if c < 3:
                        a("s_waitcnt vmcnt(0)")
                        a("s_barrier")
                    elif FUSE and WIN == 3:
                        a("s_barrier")
                        for j in range(5):
                            for x in wdma(j, sWL): a(x)
                        a(f"s_add_u32 s{sWL}, s{sWL}, {KV_CH}")
                        a(f"s_add_u32 s{sWS}, s{sWS}, {K3_BUF}")
                    if ptile >= 0: a("s_setprio 2")
                if sg == 0 and tt == ptile and c is not None:
                    a("s_setprio 0")
                if sg == 1:
                    a("s_waitcnt lgkmcnt(0)")
                q = qk(nxt, ka, kb, nsg, f"v[{NEG[nsg]}:{NEG[nsg]+15}]")
                a(q[0])
                if sg == 0:
                    n1 = tt + 1
                    a(rdK16(vKA + 4 * (n1 & 1), n1 // 8, n1 % 8))
                    a(rdK4(vKB + 2 * (n1 & 1), n1 // 8, n1 % 8))
                for i in range(0, 4):
                    a(f"v_exp_f32 v{cur+i}, v{cur+i}")
                pt = tt - 1 if sg == 0 else tt
                v2p = vV2 + 4 * (pt & 1)
                a(f"v_mfma_f32_32x32x16_bf16 v[{O[nsg]}:{O[nsg]+15}], v[{v2p}:{v2p+3}], v[{vP+4}:{vP+7}], v[{O[nsg]}:{O[nsg]+15}]")
                if sg == 0:
                    a(f"s_mov_b64 exec, s[{sVM}:{sVM+1}]")
                    d = vV2 + 4 * (tt & 1)
                    a(f"ds_read_b128 v[{d}:{d+3}], v{vVc} offset:{voff(2*tt+1)}")
                    d = vV1 + 4 * ((tt + 1) & 1)
                    a(f"ds_read_b128 v[{d}:{d+3}], v{vVc} offset:{voff(2*tt+2)}")
                    a("s_mov_b64 exec, -1")
                for x in extras.get((tt, sg), []): a(x)
                for i in range(4, 8):
                    a(f"v_exp_f32 v{cur+i}, v{cur+i}")
                for i in range(4):
                    a(f"v_cvt_pk_bf16_f32 v{vP+i}, v{cur+2*i}, v{cur+2*i+1}")
                a(q[1])
                for i in range(8, 12):
                    a(f"v_exp_f32 v{cur+i}, v{cur+i}")
                v1 = vV1 + 4 * (tt & 1)
                a(f"v_mfma_f32_32x32x16_bf16 v[{O[sg]}:{O[sg]+15}], v[{v1}:{v1+3}], v[{vP}:{vP+3}], v[{O[sg]}:{O[sg]+15}]")
                for i in range(12, 16):
                    a(f"v_exp_f32 v{cur+i}, v{cur+i}")
                for i in range(4, 8):
                    a(f"v_cvt_pk_bf16_f32 v{vP+i}, v{cur+2*i}, v{cur+2*i+1}")
        for r in (vKe, vKo, vK4c, vVc):
            a(f"v_add_u32 v{r}, {KV_CH}, v{r}")
    a(f"s_cmp_lg_u32 s{sPASS}, 0")
    a("s_cbranch_scc1 K2_RLOOP")
    for c in range(4):
        if "chunkstamp" in OPT:
            a("s_memtime s[78:79]")
            a("s_waitcnt lgkmcnt(0)")
            a(f"v_writelane_b32 v247, s78, {c}")
        chunk_body(c)
    a.lab("K2_LOOPEND")
    stamp(a, 5)
    a(f"v_mfma_f32_32x32x16_bf16 v[{O[1]}:{O[1]+15}], v[{vV2+4}:{vV2+7}], v[{vP+4}:{vP+7}], v[{O[1]}:{O[1]+15}]")
    a("s_setprio 0")
    a(f"s_mov_b32 s{sFAIL}, 0")
    a(f"s_cmp_lg_u32 s{sPASS}, 0")
    a("s_cbranch_scc1 K2_XCHG")
    a(f"s_waitcnt vmcnt({(5 if WIN == 3 else 0) if FUSE else 1}) lgkmcnt(0)")
    a(f"s_mov_b64 exec, s[{sLO}:{sLO+1}]")
    a(f"s_not_b64 exec, exec")
    a(f"v_mov_b32 v{vQA8}, 0")
    a(f"v_mov_b32 v{vQA8+1}, 0")
    a("s_mov_b64 exec, -1")
    a(f"s_cmp_lg_u32 s{sS0}, 0")
    a("s_cbranch_scc1 K2_NOFIX")
    for i in range(8):
        a(f"v_mov_b32 v{vMX+i}, {f2u(NEGBIG):#x}")
    a.lab("K2_NOFIX")
    if "ts2" in OPT: stamp(a, 4)
    a(f"v_mfma_f32_32x32x16_bf16 v[{vS0}:{vS0+15}], v[{vAK}:{vAK+3}], v[{vQA16}:{vQA16+3}], v[{vMX}:{vMX+15}]")
    a(f"v_mfma_f32_32x32x16_bf16 v[{vS1}:{vS1+15}], v[{vAK+4}:{vAK+7}], v[{vQA16}:{vQA16+3}], v[{vMY}:{vMY+15}]")
    a(f"v_mfma_f32_32x32x8_bf16 v[{vS0}:{vS0+15}], v[{vAK+8}:{vAK+9}], v[{vQA8}:{vQA8+1}], v[{vS0}:{vS0+15}]")
    a(f"v_mfma_f32_32x32x8_bf16 v[{vS1}:{vS1+15}], v[{vAK+10}:{vAK+11}], v[{vQA8}:{vQA8+1}], v[{vS1}:{vS1+15}]")
    a(f"v_mov_b64 v[{vT+2}:{vT+3}], 0")
    a(f"v_mov_b64 v[{vT+4}:{vT+5}], 0")
    a(f"v_mov_b32 v{vT+1}, {f2u(2.0**64):#x}")
    a("s_nop 3")
    for i in range(0, 12, 2):
        for sg in range(2):
            a(f"v_pk_fma_f32 v[{vT+2}:{vT+3}], v[{O[sg]+i}:{O[sg]+i+1}], v[{vT+4}:{vT+5}], v[{vT+2}:{vT+3}]")
    a(f"v_add_f32 v{vT}, v{O[0]+12}, v{O[1]+12}")
    a(f"v_add_f32 v{vT+2}, v{vT+2}, v{vT+3}")
    a(f"v_add_f32 v{vT}, v{vT}, v{vT+2}")
    a(f"v_cmp_nlt_f32 vcc, v{vT}, v{vT+1}")
    a(f"v_mov_b32 v{O[0]+13}, v{NEG[0]}")
    a(f"v_mov_b32 v{O[1]+13}, v{NEG[1]}")
    a("s_nop 1")
    a("s_cmp_lg_u64 vcc, 0")
    a(f"s_cselect_b32 s{sFAIL}, 1, 0")
    if "forcefail" in OPT:
        a(f"s_cmp_eq_u32 s{sW}, 3")
        a(f"s_cselect_b32 s{sFAIL}, 1, s{sFAIL}")
    regs = [vS0 + i for i in range(16)] + [vS1 + i for i in range(8)]
    m = vT + 6
    rowmax(m, regs)
    a(f"v_mov_b32 v{m+1}, v{m}")
    a("s_nop 1")
    a(f"v_permlane32_swap_b32 v{m}, v{m+1}")
    a("s_nop 1")
    a(f"v_max_f32 v{m}, v{m}, v{m+1}")
    a(f"v_sub_f32 v{vKo}, 0, v{m}")
    a(f"v_sub_f32 v{vK4c}, 0, v{m}")
    for i in range(0, 24, 2):
        a(f"v_pk_add_f32 v[{regs[i]}:{regs[i]+1}], v[{regs[i]}:{regs[i]+1}], v[{vKo}:{vK4c}]")
    for i in range(24):
        a(f"v_exp_f32 v{regs[i]}, v{regs[i]}")
    a("s_nop 0")
    for i in range(12):
        a(f"v_cvt_pk_bf16_f32 v{vP+i}, v{regs[2*i]}, v{regs[2*i+1]}")
    OA = NEG[0]
    a("s_nop 1")
    for j in range(3):
        c = "0" if j == 0 else f"v[{OA}:{OA+15}]"
        a(f"v_mfma_f32_32x32x16_bf16 v[{OA}:{OA+15}], v[{vAV+4*j}:{vAV+4*j+3}], v[{vP+4*j}:{vP+4*j+3}], {c}")
    def rowsum(dst, acc):
        a(f"v_mov_b32 v{dst}, v{acc+12}")
        a(f"s_not_b64 exec, s[{sLO}:{sLO+1}]")
        a(f"v_mov_b32 v{dst}, v{acc+8}")
        a("s_mov_b64 exec, -1")
    OFL = " sc1" if FUSE else STORE_FLAGS
    def ostore(br, src):
        a("s_nop 1")
        a(f"v_permlane32_swap_b32 v{src}, v{src+2}")
        a(f"v_permlane32_swap_b32 v{src+1}, v{src+3}")
        a(f"s_mov_b32 s{sT1}, {O_OFF}")
        a(f"buffer_store_dwordx4 v[{src}:{src+3}], v{vOSA}, s[{SWS}:{SWS+3}], s{sT1} offen offset:{br*512}{OFL}")
    a("s_nop 15")
    rowsum(vT + 6, OA)
    a(f"v_rcp_f32 v{vT+6}, v{vT+6}")
    a("s_nop 0")
    a(f"v_mul_f32 v{vT+6}, v{vT+6}, v{vGATE}")
    for i in range(0, 12, 2):
        a(f"v_pk_mul_f32 v[{OA+i}:{OA+i+1}], v[{OA+i}:{OA+i+1}], v[{vT+6}:{vT+7}] op_sel_hi:[1,0]")
    for i in range(4):
        a(f"v_cvt_pk_bf16_f32 v{vP+i}, v{OA+2*i}, v{OA+2*i+1}")
    for i in range(2):
        a(f"v_cvt_pk_bf16_f32 v{vOB+4+i}, v{OA+8+2*i}, v{OA+9+2*i}")
    ostore(0, vP)
    a("s_branch K2_XCHG1")
    a.lab("K2_XCHG")
    a("s_nop 15")
    a(f"v_mov_b32 v{O[0]+13}, v{NEG[0]}")
    a(f"v_mov_b32 v{O[1]+13}, v{NEG[1]}")
    a.lab("K2_XCHG1")
    a(f"s_mul_i32 s{sT0}, s{sGRP}, {4*KV_CH}")
    a(f"s_lshl_b32 s{sT2}, s{sPR}, 12")
    a(f"s_add_u32 s{sT2}, s{sT2}, {3*KV_CH}")
    a(f"s_add_u32 s{sT0}, s{sT0}, s{sT2}")
    a(f"v_add_u32 v{vT}, s{sT0}, v{vL16}")
    a(f"s_xor_b32 s{sT0}, s{sGRP}, 1")
    a(f"s_mul_i32 s{sT0}, s{sT0}, {4*KV_CH}")
    a(f"s_add_u32 s{sT0}, s{sT0}, s{sT2}")
    a(f"v_add_u32 v{vT+1}, s{sT0}, v{vL16}")
    a(f"s_lshl_b32 s{sT0}, s{sW}, 2")
    a(f"s_add_u32 s{sT0}, s{sT0}, {3*KV_CH + 16384}")
    a(f"v_mov_b32 v{vT+2}, s{sT0}")
    a(f"v_mov_b32 v{vT+3}, s{sFAIL}")
    if "ts2" in OPT: stamp(a, 1)
    a("s_barrier")
    if "ts2" in OPT: stamp(a, 2)
    a(f"s_cmp_eq_u32 s{sGRP}, 0")
    a("s_cbranch_scc1 K2_XA")
    for j in range(4):
        a(f"ds_write_b128 v{vT}, v[{O[0]+4*j}:{O[0]+4*j+3}] offset:{j*1024}")
    a("s_branch K2_XB")
    a.lab("K2_XA")
    for j in range(4):
        a(f"ds_write_b128 v{vT}, v[{O[1]+4*j}:{O[1]+4*j+3}] offset:{j*1024}")
    a.lab("K2_XB")
    a(f"ds_write_b32 v{vT+2}, v{vT+3}")
    a(f"v_mov_b32 v{vT+2}, {3*KV_CH + 16384}")
    a("s_waitcnt lgkmcnt(0)")
    a("s_barrier")
    if "ts2" in OPT: stamp(a, 3)
    a(f"ds_read_b128 v[{vT+4}:{vT+7}], v{vT+2}")
    a(f"ds_read_b128 v[{vS0}:{vS0+3}], v{vT+2} offset:16")
    a(f"s_cmp_eq_u32 s{sGRP}, 0")
    a("s_cbranch_scc1 K2_XC")
    for j in range(4):
        a(f"ds_read_b128 v[{O[0]+4*j}:{O[0]+4*j+3}], v{vT+1} offset:{j*1024}")
    a("s_branch K2_XD")
    a.lab("K2_XC")
    for j in range(4):
        a(f"ds_read_b128 v[{O[1]+4*j}:{O[1]+4*j+3}], v{vT+1} offset:{j*1024}")
    a.lab("K2_XD")
    a("s_waitcnt lgkmcnt(4)")
    a(f"v_or3_b32 v{vT+4}, v{vT+4}, v{vT+5}, v{vT+6}")
    a(f"v_or3_b32 v{vT+4}, v{vT+4}, v{vT+7}, v{vS0}")
    a(f"v_or3_b32 v{vT+4}, v{vT+4}, v{vS0+1}, v{vS0+2}")
    a(f"v_or_b32 v{vT+4}, v{vT+4}, v{vS0+3}")
    a("s_nop 0")
    a(f"v_readfirstlane_b32 s{sT0}, v{vT+4}")
    a("s_nop 3")
    a(f"s_cmp_lg_u32 s{sT0}, 0")
    a("s_cbranch_scc1 K2_REDO")
    a("s_waitcnt lgkmcnt(0)")
    a(f"v_sub_f32 v{vT+2}, v{O[1]+13}, v{O[0]+13}")
    a(f"v_sub_f32 v{vT+3}, 0, v{vT+2}")
    a(f"v_min_f32 v{vT+2}, 0, v{vT+2}")
    a(f"v_min_f32 v{vT+3}, 0, v{vT+3}")
    a(f"v_exp_f32 v{vT+2}, v{vT+2}")
    a(f"v_exp_f32 v{vT+3}, v{vT+3}")
    rowsum(vT + 4, O[0])
    rowsum(vT + 5, O[1])
    a(f"v_mul_f32 v{vT+4}, v{vT+4}, v{vT+2}")
    a(f"v_fmac_f32 v{vT+4}, v{vT+5}, v{vT+3}")
    a(f"v_rcp_f32 v{vT+4}, v{vT+4}")
    a(f"v_sub_f32 v{vT+5}, 1.0, v{vGATE}")
    a("s_nop 0")
    a(f"v_mul_f32 v{vT+4}, v{vT+4}, v{vT+5}")
    a(f"v_mul_f32 v{vT+2}, v{vT+2}, v{vT+4}")
    a(f"v_mul_f32 v{vT+3}, v{vT+3}, v{vT+4}")
    for i in range(0, 12, 2):
        a(f"v_pk_mul_f32 v[{O[0]+i}:{O[0]+i+1}], v[{O[0]+i}:{O[0]+i+1}], v[{vT+2}:{vT+3}] op_sel_hi:[1,0]")
        a(f"v_pk_fma_f32 v[{O[0]+i}:{O[0]+i+1}], v[{O[1]+i}:{O[1]+i+1}], v[{vT+2}:{vT+3}], v[{O[0]+i}:{O[0]+i+1}] op_sel:[0,1,0] op_sel_hi:[1,1,1]")
    for i in range(4):
        a(f"v_cvt_pk_bf16_f32 v{vOB+i}, v{O[0]+2*i}, v{O[0]+2*i+1}")
    for i in range(2):
        a(f"v_cvt_pk_bf16_f32 v{vOB+6+i}, v{O[0]+8+2*i}, v{O[0]+9+2*i}")
    ostore(1, vOB)
    a(f"s_mov_b64 exec, s[{sLO}:{sLO+1}]")
    a(f"buffer_store_dwordx4 v[{vOB+4}:{vOB+7}], v{vOSA}, s[{SWS}:{SWS+3}], s{sT1} offen offset:1024{OFL}")
    a("s_mov_b64 exec, -1")
    if FUSE:
        if WIN:
            a(f"s_cmp_eq_u32 s{sPASS}, 0")
            a("s_cbranch_scc1 K2_WOK")
            a("s_barrier")
            a(f"s_mov_b32 s{sWL}, 0")
            a(f"s_mov_b32 s{sWS}, s{sWS0}")
            for p in range(WIN):
                for j in range(5):
                    for x in wdma(j, sWL): a(x)
                a(f"s_add_u32 s{sWL}, s{sWL}, {KV_CH}")
                a(f"s_add_u32 s{sWS}, s{sWS}, {K3_BUF}")
            a("s_waitcnt vmcnt(0)")
            a.lab("K2_WOK")
        stamp(a, 6)
        NPRE = 0
        if WIN == 3:
            a("s_barrier")
            a(f"s_mov_b32 s{sWL}, {3*KV_CH}")
            for j in range(5):
                for x in wdma(j, sWL): a(x)
            NPRE = 5
        elif WIN == 2:
            a(f"s_mov_b32 s{sWL}, {2*KV_CH}")
            for j in range(5):
                for x in wdma(j, sWL): a(x)
            a(f"s_add_u32 s{sWS}, s{sWS}, {K3_BUF}")
            NPRE = 5
        a(f"s_waitcnt vmcnt({NPRE})")
        if "tailstamps" in OPT: stamp(a, 1)
        a("s_barrier")
        if "tailstamps" in OPT: stamp(a, 2)
        a(f"s_cmp_lg_u32 s{sW}, 0")
        a("s_cbranch_scc1 K2_NOPOLL0")
        a(f"s_lshl_b32 s{sT0}, s{sQB}, 12")
        a(f"s_add_u32 s{sT0}, s{sT0}, {FL_OFF}")
        a(f"s_mov_b64 exec, s[{sLO}:{sLO+1}]")
        a(f"v_mov_b32 v{vT}, 1")
        a(f"v_lshlrev_b32 v{vT+5}, 7, v{vLANE}")
        a(f"buffer_atomic_add v{vT}, v{vT+5}, s[{SWS}:{SWS+3}], s{sT0} offen")
        a("s_mov_b64 exec, -1")
        a.lab("K2_NOPOLL0")
        WPOST = 4 if WIN == 3 else optval("wpost", 4)
        if WIN != 3:
            W0P = 3 if WIN == 2 else WIN
            a(f"s_mov_b32 s{sWL}, {W0P*KV_CH}")
            for p in range(W0P, WPOST):
                for j in range(5):
                    for x in wdma(j, sWL): a(x)
                a(f"s_add_u32 s{sWL}, s{sWL}, {KV_CH}")
                a(f"s_add_u32 s{sWS}, s{sWS}, {K3_BUF}")
        bufss = [((ss // 2) % 4) * KV_CH + (ss & 1) * 4 * KV_CH for ss in range(10)]
        pc = proj_core(a, "K2", SWS, 68, sW, 64, 65, 50, bufss,
                       lambda p, j, sM0: f"s_add_u32 m0, s{sDO+j}, {(p % 4)*KV_CH}", ({1: [4]} if WPOST == 4 else {0: [3], 1: [4]}), optval("k2opre", 4))
        pc.setup()
        srd(a, 68, 60, 61, 2048 * 1280)
        pc.addr_setup(0)
        if "tailstamps" in OPT: stamp(a, 3)
        a(f"s_cmp_lg_u32 s{sW}, 0")
        a("s_cbranch_scc1 K2_NOPOLL")
        a(f"s_lshl_b32 s{sT0}, s{sHEAD}, 3")
        a(f"s_add_u32 s{sT0}, s{sT0}, s{sQB}")
        a(f"s_lshl_b32 s{sT0}, s{sT0}, 7")
        a(f"s_add_u32 s{sT0}, s{sT0}, {FL_OFF}")
        a("s_mov_b64 exec, 1")
        a(f"v_mov_b32 v{vT+5}, 0")
        a(f"s_mov_b32 s{sT1}, 0")
        a.lab("K2_POLL")
        a(f"buffer_load_dword v{vT+4}, v{vT+5}, s[{SWS}:{SWS+3}], s{sT0} offen sc1")
        a("s_waitcnt vmcnt(0)")
        a(f"v_readfirstlane_b32 s{sT2}, v{vT+4}")
        a(f"s_add_u32 s{sT1}, s{sT1}, 1")
        a(f"s_cmp_ge_u32 s{sT2}, 32")
        a("s_cbranch_scc1 K2_POLLED")
        a(f"s_sleep {optval('psleep', 2)}")
        a(f"s_cmp_lt_u32 s{sT1}, 0x40000")
        a("s_cbranch_scc1 K2_POLL")
        a.lab("K2_POLLED")
        a("s_waitcnt vmcnt(0)")
        if "tailstamps" in OPT:
            stamp(a, 4)
        a("s_mov_b64 exec, -1")
        a.lab("K2_NOPOLL")
        a("s_waitcnt vmcnt(0)")
        a("s_barrier")
        stamp(a, 7)
        pc.body([("o", 0), ("o", 1), ("o", 2), ("o", 3)])
        if PROF: a("s_waitcnt vmcnt(0)")
        stamp(a, 8)
        stamp_flush(a, 1, 9, SWS, sW, vT)
        if "dbgtime" in OPT:
            a("s_cmp_lg_u32 s2, 1")
            a("s_cbranch_scc1 K2_DBGX")
            a("s_cmp_lg_u32 s12, 0")
            a("s_cbranch_scc1 K2_DBGX")
            a("s_load_dwordx2 s[92:93], s[0:1], 64")
            a("s_waitcnt vmcnt(0)")
            a("s_memrealtime s[94:95]")
            a("s_memtime s[96:97]")
            a("s_waitcnt lgkmcnt(0)")
            srd(a, 84, 92, 93, 256)
            a("s_sub_u32 s96, s96, s88")
            a("s_sub_u32 s94, s94, s90")
            a("s_mov_b64 exec, 1")
            a("v_mov_b32 v24, 0")
            a("v_mov_b32 v20, 222")
            a("v_mov_b32 v21, s96")
            a("v_mov_b32 v22, s94")
            a("v_mov_b32 v23, s90")
            a("buffer_store_dwordx4 v[20:23], v24, s[84:87], 0 offen")
            a("s_mov_b64 exec, -1")
            a.lab("K2_DBGX")
        a("s_endpgm")
    else:
        a("s_branch K2_DONE")
    a.lab("K2_REDO")
    a("s_waitcnt vmcnt(0) lgkmcnt(0)")
    a("s_barrier")
    a(f"s_mov_b32 s{sDG}, 0")
    for p in range(4):
        for j in range(5):
            for x in dma1(j): a(x)
        a(f"s_add_u32 s{sDG}, s{sDG}, {KV_CH}")
    a(f"s_mov_b32 s{sPASS}, 1")
    if FUSE: a(f"s_mov_b32 s{sWC}, 99")
    a(f"v_mov_b32 v{vT}, {f2u(-3.0e38):#x}")
    a(f"v_mov_b32 v{vT+2}, {f2u(-3.0e38):#x}")
    setbases()
    a(f"s_mov_b32 s{sC}, 0")
    a("s_waitcnt vmcnt(0)")
    a("s_barrier")
    a.lab("K2_MAXLOOP")
    for tt in range(8):
        a(rdK16(vKA, 0, tt))
        a(rdK4(vKB, 0, tt))
        a("s_waitcnt lgkmcnt(0)")
        for sg in range(2):
            for x in qk(S[sg], vKA, vKB, sg, "0"): a(x)
        a("s_nop 15")
        for sg in range(2):
            rowmax(vT + 2 * sg, [S[sg] + i for i in range(16)], first=True)
    for r in (vKe, vKo, vK4c):
        a(f"v_add_u32 v{r}, {KV_CH}, v{r}")
    a(f"s_add_u32 s{sC}, s{sC}, 1")
    a(f"s_cmp_lt_u32 s{sC}, 4")
    a("s_cbranch_scc1 K2_MAXLOOP")
    for sg in range(2):
        a(f"v_mov_b32 v{vT+2*sg+1}, v{vT+2*sg}")
    a("s_nop 1")
    for sg in range(2):
        a(f"v_permlane32_swap_b32 v{vT+2*sg}, v{vT+2*sg+1}")
    a("s_nop 1")
    for sg in range(2):
        a(f"v_max_f32 v{vT+2*sg}, v{vT+2*sg}, v{vT+2*sg+1}")
        for i in range(16):
            a(f"v_sub_f32 v{NEG[sg]+i}, 0, v{vT+2*sg}")
            a(f"v_mov_b32 v{O[sg]+i}, 0")
    for i in range(4):
        a(f"v_mov_b32 v{vP+4+i}, 0")
    a("s_branch K2_START")
    a.lab("K2_RLOOP")
    chunk_body(None)
    a(f"s_add_u32 s{sC}, s{sC}, 1")
    a(f"s_cmp_lt_u32 s{sC}, 4")
    a("s_cbranch_scc1 K2_RLOOP")
    a("s_branch K2_LOOPEND")
    a.lab("K2_DONE")
    stamp(a, 6)
    if PROF: a("s_waitcnt vmcnt(0)")
    stamp(a, 7)
    if "chunkstamp" in OPT:
        a(f"s_lshl_b32 s97, s2, 3")
        a(f"s_add_u32 s97, s97, s{sW}")
        a(f"s_lshl_b32 s97, s97, 6")
        a(f"s_add_u32 s97, s97, {PROF_OFF + 3 * 0x100000}")
        a(f"v_lshlrev_b32 v{vT}, 2, v{vLANE}")
        a("s_mov_b64 exec, 0xff")
        a(f"buffer_store_dword v247, v{vT}, s[{SWS}:{SWS+3}], s97 offen")
        a("s_mov_b64 exec, -1")
    stamp_flush(a, 1, 8, SWS, sW, vT)
    a.lab("K2_END")
    a("s_endpgm")
    a.raw(".p2align 4")
    a.lab("K2_TABLE")
    tab = mask_table()
    for i in range(0, len(tab), 8):
        a.raw("    .long " + ", ".join(f"{x:#x}" for x in tab[i:i+8]))
    a.lab("K2_TEXT_END")
    return name, NV

K3_BUF = 40 * 1024
K3_NBUF = 3
K3_LDS = K3_BUF * K3_NBUF

K3_GRID = 256
def proj_core(a, pfx, SWS, SOUT, sW, sMT, sNT, sbase, bufss, wm0, wplan, OPRE, vLANE=1, vL16=2):
    sMB, sKH, sT0, sT1, sT2, sOB, sWB, sM0, sOUT = [sbase + i for i in range(9)]
    vWR = 6; vWA = 7; vT = 8
    vOF = 20; vWF = 100; vACC = 180
    oflags = " sc1" if pfx == "K2" else ""
    issued = []
    def setup():
        a(f"s_and_b32 s{sMB}, s{sW}, 3")
        a(f"s_lshr_b32 s{sKH}, s{sW}, 2")
        a(f"s_lshl_b32 s{sM0}, s{sW}, 10")
        a(f"s_mul_i32 s{sWB}, s{sNT}, {200*1024}")
        a(f"s_add_u32 s{sWB}, s{sWB}, s{sM0}")
        a(f"s_add_u32 s{sWB}, s{sWB}, {WT_OFF}")
        a(f"s_lshl_b32 s{sOB}, s{sMT}, 2")
        a(f"s_add_u32 s{sOB}, s{sOB}, s{sMB}")
        a(f"s_mul_i32 s{sOUT}, s{sOB}, {16*1280}")
        a(f"s_mul_i32 s{sOB}, s{sOB}, 40")
        a(f"s_lshl_b32 s{sT0}, s{sKH}, 1")
        a(f"s_add_u32 s{sOB}, s{sOB}, s{sT0}")
        a(f"s_lshl_b32 s{sOB}, s{sOB}, 10")
        a(f"s_add_u32 s{sOB}, s{sOB}, {O_OFF}")
        a(f"s_mul_i32 s{sT2}, s{sNT}, 160")
        a(f"s_add_u32 s{sOUT}, s{sOUT}, s{sT2}")
    def wgroup(p):
        g = []
        for j in range(5):
            g.append(([wm0(p, j, sM0),
                       f"s_add_u32 s{sT1}, s{sWB}, {p*K3_BUF + j*8192}",
                       f"buffer_load_dwordx4 v{vL16}, s[{SWS}:{SWS+3}], s{sT1} offen lds"], ("W", p)))
        return g
    def ogroup(ss):
        g = []
        for i in range(2):
            d = vOF + (ss * 2 + i) * 4
            g.append(([f"s_add_u32 s{sT0}, s{sOB}, {(ss*4 + i)*1024}",
                       f"buffer_load_dwordx4 v[{d}:{d+3}], v{vL16}, s[{SWS}:{SWS+3}], s{sT0} offen{oflags}"], ("o", ss)))
        return g
    def emit(item):
        for x in item[0]: a(x)
        issued.append(item[1])
    def vm(need):
        last = max([i for i, t in enumerate(issued) if t in need], default=-1)
        return min(63, len(issued) - 1 - last)
    def reads(ss):
        st = ss & 1
        off = bufss[ss]
        out = [f"v_add_u32 v{vWA}, {off}, v{vWR}"]
        for i in range(2):
            for b in range(5):
                r = vWF + st * 40 + (i * 5 + b) * 4
                out.append(f"ds_read_b128 v[{r}:{r+3}], v{vWA} offset:{(i*5 + b)*1024}")
        return out
    def addr_setup(xbase):
        a(f"s_mul_i32 s{sT0}, s{sKH}, {10*1024}")
        a(f"v_add_u32 v{vWR}, s{sT0}, v{vL16}")
        a(f"v_and_b32 v{vT+1}, 15, v{vLANE}")
        a(f"v_mul_u32_u24 v{vT+1}, 1280, v{vT+1}")
        a(f"v_lshrrev_b32 v{vT+2}, 4, v{vLANE}")
        a(f"v_lshl_add_u32 v{vT+1}, v{vT+2}, 3, v{vT+1}")
        a(f"s_mul_i32 s{sT0}, s{sW}, {3*1024}")
        a(f"s_add_u32 s{sT0}, s{sT0}, {xbase}")
        a(f"v_add_u32 v{vT}, s{sT0}, v{vL16}")
        a(f"s_xor_b32 s{sT2}, s{sW}, 4")
        a(f"s_mul_i32 s{sT2}, s{sT2}, {3*1024}")
        a(f"s_add_u32 s{sT2}, s{sT2}, {xbase}")
        a(f"v_add_u32 v{vT+3}, s{sT2}, v{vL16}")
    def body(first):
        for kind, idx in first:
            for it in (wgroup(idx) if kind == "W" else ogroup(idx)): emit(it)
        nxt_o = max([idx for kind, idx in first if kind == "o"], default=-1) + 1
        if pfx == "K3": stamp(a, 1)
        a(f"s_waitcnt vmcnt({vm({('W', 0)})})")
        a("s_barrier")
        if pfx == "K3": stamp(a, 2)
        for r in reads(0): a(r)
        for ss in range(10):
            p = ss // 2
            need = {("o", ss)}
            if ss % 2 == 1 and p + 1 < 5: need.add(("W", p + 1))
            a(f"s_waitcnt vmcnt({vm(need)}) lgkmcnt(0)")
            if ss % 2 == 1 and ss < 9: a("s_barrier")
            mf = []
            for i in range(2):
                for b in range(5):
                    acc = vACC + b * 4
                    wf = vWF + (ss & 1) * 40 + (i * 5 + b) * 4
                    of = vOF + (ss * 2 + i) * 4
                    c = "0" if (ss == 0 and i == 0) else f"v[{acc}:{acc+3}]"
                    mf.append(f"v_mfma_f32_16x16x32_bf16 v[{acc}:{acc+3}], v[{wf}:{wf+3}], v[{of}:{of+3}], {c}")
            rd = reads(ss + 1) if ss < 9 else []
            ld = []
            for p2 in wplan.get(ss, []): ld += wgroup(p2)
            while nxt_o < 10 and nxt_o <= ss + OPRE:
                ld += ogroup(nxt_o); nxt_o += 1
            ex = [("r", r) for r in rd]
            mixed = []
            step = max(1, len(ex) // max(1, len(ld))) if ld else 0
            k = 0
            for i, e in enumerate(ex):
                mixed.append(e)
                if ld and k < len(ld) and (i + 1) % step == 0:
                    mixed.append(("l", ld[k])); k += 1
            while k < len(ld):
                mixed.append(("l", ld[k])); k += 1
            k = 0
            for i, m in enumerate(mf):
                a(m)
                tgt = min(len(mixed), ((i + 1) * len(mixed) + 8) // 9)
                while k < tgt:
                    if mixed[k][0] == "r": a(mixed[k][1])
                    else: emit(mixed[k][1])
                    k += 1
        if pfx == "K3": stamp(a, 3)
        a("s_barrier")
        a(f"s_cmp_eq_u32 s{sKH}, 0")
        a(f"s_cbranch_scc1 {pfx}_PW0")
        a("s_nop 4")
        for b in range(3):
            a(f"ds_write_b128 v{vT}, v[{vACC+b*4}:{vACC+b*4+3}] offset:{b*1024}")
        a("s_waitcnt lgkmcnt(0)")
        a("s_barrier")
        def fin(blocks):
            for n, b in enumerate(blocks):
                a(f"ds_read_b128 v[{vOF+4*n}:{vOF+4*n+3}], v{vT+3} offset:{n*1024}")
            for n, b in enumerate(blocks):
                a(f"s_waitcnt lgkmcnt({len(blocks)-1-n})")
                for i in range(0, 4, 2):
                    a(f"v_pk_add_f32 v[{vOF+4*n+i}:{vOF+4*n+i+1}], v[{vOF+4*n+i}:{vOF+4*n+i+1}], v[{vACC+4*b+i}:{vACC+4*b+i+1}]")
                a(f"v_cvt_pk_bf16_f32 v{vWF+2*n}, v{vOF+4*n}, v{vOF+4*n+1}")
                a(f"v_cvt_pk_bf16_f32 v{vWF+2*n+1}, v{vOF+4*n+2}, v{vOF+4*n+3}")
                a(f"buffer_store_dwordx2 v[{vWF+2*n}:{vWF+2*n+1}], v{vT+1}, s[{SOUT}:{SOUT+3}], s{sOUT} offen offset:{b*32}")
        fin([3, 4])
        a(f"s_branch {pfx}_PFIN")
        a.lab(f"{pfx}_PW0")
        a("s_nop 4")
        for n, b in enumerate((3, 4)):
            a(f"ds_write_b128 v{vT}, v[{vACC+b*4}:{vACC+b*4+3}] offset:{n*1024}")
        a("s_waitcnt lgkmcnt(0)")
        a("s_barrier")
        fin([0, 1, 2])
        a.lab(f"{pfx}_PFIN")
    class C: pass
    c = C(); c.setup = setup; c.wgroup = wgroup; c.emit = emit; c.addr_setup = addr_setup; c.body = body; c.issued = issued
    return c

def gen_k3(a):
    name = "k3_proj_kernel"
    kernel_head(a, name)
    SWS = 8; SOUT = 20
    sW = 24; sMT = 27; sNT = 28
    vLANE = 1; vL16 = 2; vT = 8
    NV = 200
    a(f"s_cmp_ge_u32 s2, {K3_GRID}")
    a("s_cbranch_scc1 K3_END")
    stamp(a, 0)
    a("s_load_dwordx2 s[4:5], s[0:1], 72")
    a("s_load_dwordx2 s[36:37], s[0:1], 56")
    a(f"v_and_b32 v{vLANE}, 63, v0")
    a(f"v_lshrrev_b32 v{vT}, 6, v0")
    a(f"s_and_b32 s{sMT}, s2, 7")
    a(f"v_readfirstlane_b32 s{sW}, v{vT}")
    a(f"s_lshl_b32 s{sMT}, s{sMT}, 2")
    a(f"s_lshr_b32 s29, s2, 6")
    a(f"s_add_u32 s{sMT}, s{sMT}, s29")
    a(f"s_lshr_b32 s{sNT}, s2, 3")
    a(f"s_and_b32 s{sNT}, s{sNT}, 7")
    a(f"v_lshlrev_b32 v{vL16}, 4, v{vLANE}")
    bufss = [((ss // 2) % 3) * K3_BUF + (ss & 1) * 20 * 1024 for ss in range(10)]
    c = proj_core(a, "K3", SWS, SOUT, sW, sMT, sNT, 40, bufss, lambda p, j, sM0: f"s_add_u32 m0, s{sM0}, {(p % 3)*K3_BUF + j*8192}",
                  {0: [2], 1: [3], 3: [4]}, optval("k3opre", 4))
    c.setup()
    a("s_waitcnt lgkmcnt(0)")
    srd(a, SWS, 4, 5, WS_USED)
    srd(a, SOUT, 36, 37, 2048 * 1280)
    c.addr_setup(0)
    c.body([("W", 0), ("o", 0), ("o", 1), ("W", 1), ("o", 2), ("o", 3)])
    stamp(a, 4)
    if PROF: a("s_waitcnt vmcnt(0)")
    stamp(a, 5)
    stamp_flush(a, 2, 6, SWS, sW, vT)
    a.lab("K3_END")
    a("s_endpgm")
    return name, NV

def build(kernels=("k1", "k2", "k3")):
    a = Asm()
    fuse = "nofuse" not in OPT
    k3line = "" if fuse else f"; @launch kernel=k3_proj_kernel grid=({K3_GRID},1,1) block=(512,1,1) lds={K3_LDS}\n"
    hdr = f"""; Gated mix of sliding-window dilated attention (A) and full softmax MHA (B): three launches.
; @launch kernel=k1_qkv_kernel grid=(256,1,1) block=(512,1,1) lds={K1_LDS}
; @launch kernel=k2_attn_kernel grid=(256,1,1) block=(512,1,1) lds={K2_LDS}
{k3line}.amdgcn_target "amdgcn-amd-amdhsa--gfx950"
.text
"""
    descs = []
    for g in ((gen_k1, gen_k2) if fuse else (gen_k1, gen_k2, gen_k3)):
        n, nv = g(a)
        descs.append(kernel_desc(n, nv))
    txt = a.text()
    txt = txt.replace("K1_TEXT_SIZE", "(K1_TEXT_END-k1_qkv_kernel)")
    txt = txt.replace("K2_TEXT_SIZE", "(K2_TEXT_END-k2_attn_kernel)")
    txt = txt.replace("K2CODE_WAVES", "((K2_TEXT_END-k2_attn_kernel) >> 13)")
    return hdr + txt + '.section .rodata,"a"\n' + "".join(".p2align 6\n" + d for d in descs)

if __name__ == "__main__":
    if len(sys.argv) > 2 and sys.argv[2] == "prof":
        PROF = True
    OPT.update(sys.argv[3:])
    if "st_plain" in OPT: STORE_FLAGS = ""
    if "st_sc1" in OPT: STORE_FLAGS = " sc1"
    if "st_nt" in OPT: STORE_FLAGS = " nt"
    if "st_sc01" in OPT: STORE_FLAGS = " sc0 sc1"
    if "st_sc1nt" in OPT: STORE_FLAGS = " sc1 nt"
    if "st_all" in OPT: STORE_FLAGS = " sc0 sc1 nt"
    out = sys.argv[1] if len(sys.argv) > 1 else f"cdna_kernels/{NAME}.s"
    open(out, "w").write(build())
    print("wrote", out)
```

```python
import sys, struct

NAME = "gated_mix__sliding_local_dilated__softmax_full_mha__prompt"

KV_HEAD = 163840
KV_CH = 20480
Q_HEAD = 81920
Q_CH = 10240
KVA_OFF = 0
KVB_OFF = 32 * KV_HEAD
QA_OFF = 2 * 32 * KV_HEAD
QB_OFF = QA_OFF + 32 * Q_HEAD
G_OFF = QB_OFF + 32 * Q_HEAD
FL_OFF = 0xF04000
WT_OFF = 0xF10000
O_OFF = 0x1100000
O_SIZE = 128 * 40 * 1024
WS_USED = 0x2400000
QSCALE = (20 ** -0.5) * 1.4426950408889634

def f2u(x):
    return struct.unpack("<I", struct.pack("<f", x))[0]

class Asm:
    def __init__(self):
        self.l = []
    def __call__(self, s):
        for x in s.strip("\n").split("\n"):
            self.l.append("    " + x.strip())
    def lab(self, s):
        self.l.append(s + ":")
    def raw(self, s):
        self.l.append(s)
    def text(self):
        return "\n".join(self.l) + "\n"

def vr(b, n=1):
    return f"v{b}" if n == 1 else f"v[{b}:{b+n-1}]"
def sr(b, n=1):
    return f"s{b}" if n == 1 else f"s[{b}:{b+n-1}]"

def kernel_head(a, name):
    a.raw(f".globl {name}")
    a.raw(".p2align 8")
    a.raw(f".type {name},@function")
    a.lab(name)

def kernel_desc(name, nv, ns=102):
    acc = (nv + 3) // 4 * 4
    return f""".amdhsa_kernel {name}
  .amdhsa_next_free_vgpr {nv}
  .amdhsa_next_free_sgpr {ns}
  .amdhsa_accum_offset {acc}
  .amdhsa_group_segment_fixed_size 0
  .amdhsa_kernarg_size 80
  .amdhsa_user_sgpr_count 2
  .amdhsa_user_sgpr_kernarg_segment_ptr 1
  .amdhsa_system_sgpr_workgroup_id_x 1
  .amdhsa_float_denorm_mode_32 3
  .amdhsa_float_denorm_mode_16_64 3
.end_amdhsa_kernel
"""

PROF = False
OPT = set()
STORE_FLAGS = " sc1"
PROF_OFF = 0x2000000
def optval(name, default):
    for o in OPT:
        if o.startswith(name + "="): return int(o.split("=")[1])
    return default
def stamp(a, i):
    if PROF:
        a(f"s_memtime s[{80+2*i}:{81+2*i}]")
        if i == 0: a("s_memrealtime s[76:77]")
def stamp_flush(a, kidx, n, srdreg, wave_sgpr, vtmp):
    if not PROF: return
    a("s_memrealtime s[98:99]")
    a("s_waitcnt lgkmcnt(0)")
    a(f"s_lshl_b32 s75, s2, 3")
    a(f"s_add_u32 s75, s75, s{wave_sgpr}")
    a(f"s_lshl_b32 s75, s75, 6")
    a(f"s_add_u32 s75, s75, {PROF_OFF + kidx * 0x100000}")
    a("s_mov_b64 exec, 1")
    a(f"v_mov_b32 v{vtmp+1}, 0")
    for i in range(n):
        a(f"v_mov_b32 v{vtmp}, s{80+2*i}")
        a(f"buffer_store_dword v{vtmp}, v{vtmp+1}, s[{srdreg}:{srdreg+3}], s75 offen offset:{4*i}")
    a(f"v_mov_b32 v{vtmp}, s76")
    a(f"buffer_store_dword v{vtmp}, v{vtmp+1}, s[{srdreg}:{srdreg+3}], s75 offen offset:56")
    a(f"v_mov_b32 v{vtmp}, s98")
    a(f"buffer_store_dword v{vtmp}, v{vtmp+1}, s[{srdreg}:{srdreg+3}], s75 offen offset:60")

def srd(a, d, lo, hi, size):
    a(f"s_mov_b32 s{d}, s{lo}")
    a(f"s_and_b32 s{d+1}, s{hi}, 0xffff")
    a(f"s_mov_b32 s{d+2}, {size}")
    a(f"s_mov_b32 s{d+3}, 0x00020000")

K1_XB = 32768
K1_BUF = 32768 + 16384
K1_NBUF = 3
K1_LDS = K1_BUF * K1_NBUF

def gen_k1(a):
    PF0 = optval("pf0", 3)
    name = "k1_qkv_kernel"
    kernel_head(a, name)
    SX = 12; SW = 16; SWS = 20; SG = 24
    sW = 32; sWM = 33; sWN = 34; sI = 35; sRD = 36; sWRB = 37
    sXS = 38; sWS1 = 39; sXM0 = 41; sWM0 = 42; sMT = 43; sNT = 44; sBR = 45
    sTMP = 46; sTMP2 = 47; sTMP3 = 48; sTMP4 = 49
    sSEC = 50; sFB = 51; sEO = 52; sD = 53; sHS = 54; sSC = 56
    vLANE = 1; vXO = 2; vWO = 4
    vXR = 6
    vWR = 10
    vXA = 12
    vWA = 16
    vT = 18
    vXF = 32
    vWF = 64
    vACC = 96
    vEO = 160
    vPF = 176
    NV = 184

    a("s_cmp_ge_u32 s2, 256")
    a("s_cbranch_scc1 K1_END")
    if "noselfpf" not in OPT:
        a("s_getpc_b64 s[78:79]")
        a.lab("K1_PC0")
        a("s_sub_u32 s78, s78, K1_PC0-k1_qkv_kernel")
        a("s_subb_u32 s79, s79, 0")
        a("v_lshlrev_b32 v180, 7, v0")
        a("v_cmp_gt_u32 vcc, K1_TEXT_SIZE, v180")
        a("s_and_saveexec_b64 s[72:73], vcc")
        a("s_cbranch_execz K1_SPF")
        a("global_load_dword v181, v180, s[78:79]")
        a.lab("K1_SPF")
        a("s_mov_b64 exec, s[72:73]")
    stamp(a, 0)
    for _ in range(optval("k1pad", 0)): a("s_nop 0")
    if "dbgtime" in OPT:
        a("s_memrealtime s[90:91]")
        a("s_memtime s[88:89]")
    a("s_lshr_b32 s45, s2, 2")
    a("s_and_b32 s45, s45, 1")
    a("s_mul_i32 s46, s45, 24")
    a("s_add_u32 s46, s46, 8")
    a("s_load_dwordx2 s[10:11], s[0:1], s46")
    a("s_load_dwordx2 s[8:9], s[0:1], 0")
    a("s_load_dwordx2 s[4:5], s[0:1], 72")
    a("s_load_dwordx2 s[6:7], s[0:1], 48")
    a(f"v_and_b32 v{vLANE}, 63, v0")
    a(f"v_lshrrev_b32 v{vT}, 6, v0")
    a(f"s_lshr_b32 s{sTMP}, s2, 3")
    a(f"v_readfirstlane_b32 s{sW}, v{vT}")
    a(f"s_and_b32 s{sMT}, s2, 3")
    a(f"s_lshl_b32 s{sMT}, s{sMT}, 1")
    a(f"s_and_b32 s{sTMP2}, s{sTMP}, 1")
    a(f"s_add_u32 s{sMT}, s{sMT}, s{sTMP2}")
    a(f"s_lshr_b32 s{sNT}, s{sTMP}, 1")
    a(f"s_cmp_ge_u32 s{sNT}, 15")
    a("s_cbranch_scc1 K1_GATE")
    a(f"s_and_b32 s{sWM}, s{sW}, 3")
    a(f"s_lshr_b32 s{sWN}, s{sW}, 2")
    a(f"v_lshrrev_b32 v{vT}, 3, v{vLANE}")
    a(f"v_lshrrev_b32 v{vT+1}, 4, v{vLANE}")
    a(f"v_xor_b32 v{vT+1}, v{vT+1}, v{vLANE}")
    a(f"v_and_b32 v{vT+1}, 7, v{vT+1}")
    a(f"s_lshl_b32 s{sTMP}, s{sMT}, 8")
    a(f"s_lshl_b32 s{sTMP2}, s{sW}, 5")
    a(f"s_add_u32 s{sTMP}, s{sTMP}, s{sTMP2}")
    a(f"v_add_u32 v{vT}, s{sTMP}, v{vT}")
    a(f"v_mul_u32_u24 v{vT}, 1280, v{vT}")
    a(f"v_lshl_add_u32 v{vXO}, v{vT+1}, 4, v{vT}")
    a(f"v_xor_b32 v{vXO+1}, 64, v{vXO}")
    a(f"v_lshrrev_b32 v{vT}, 4, v{vLANE}")
    a(f"v_lshlrev_b32 v{vT+1}, 2, v{vT}")
    a(f"v_xor_b32 v{vT+1}, v{vT+1}, v{vLANE}")
    a(f"v_and_b32 v{vT+1}, 15, v{vT+1}")
    a(f"s_lshl_b32 s{sTMP}, s{sW}, 3")
    a(f"v_add_u32 v{vT}, s{sTMP}, v{vT}")
    a(f"v_mul_u32_u24 v{vT}, 3840, v{vT}")
    a(f"v_lshl_add_u32 v{vT}, v{vT+1}, 4, v{vT}")
    a(f"s_lshl_b32 s{sTMP}, s{sNT}, 8")
    a(f"v_add_u32 v{vWO}, s{sTMP}, v{vT}")
    a(f"s_lshl_b32 s{sXM0}, s{sW}, 12")
    a(f"s_lshl_b32 s{sWM0}, s{sW}, 11")
    a(f"s_add_u32 s{sWM0}, s{sWM0}, {K1_XB}")
    a("s_waitcnt lgkmcnt(0)")
    srd(a, SX, 8, 9, 2048 * 1280)
    srd(a, SW, 10, 11, 640 * 3840)

    def dma_list(buf_s, inloop=False):
        g = []
        if "k1nodma" in OPT and inloop: return [["s_nop 0"]] * 6
        for i in range(4):
            g.append([f"s_add_u32 m0, s{buf_s}, s{sXM0}" if i == 0 else f"s_add_u32 m0, m0, 1024",
                      f"s_add_u32 s{sTMP3}, s{sXS}, {i*8*1280}",
                      f"buffer_load_dwordx4 v{vXO + (i & 1)}, s[{SX}:{SX+3}], s{sTMP3} offen lds"])
        for i in range(2):
            g.append([f"s_add_u32 m0, s{buf_s}, s{sWM0}" if i == 0 else f"s_add_u32 m0, m0, 1024",
                      f"s_add_u32 s{sTMP3}, s{sWS1}, {i*4*3840}",
                      f"buffer_load_dwordx4 v{vWO}, s[{SW}:{SW+3}], s{sTMP3} offen lds"])
        g[-1] = g[-1] + [f"s_add_u32 s{sXS}, s{sXS}, 128", f"s_add_u32 s{sWS1}, s{sWS1}, {64*3840}"]
        return g
    a(f"s_mov_b32 s{sXS}, 0")
    a(f"s_mov_b32 s{sWS1}, 0")
    a(f"s_mov_b32 s{sWRB}, 0")
    for g in dma_list(sWRB):
        for x in g: a(x)
    srd(a, SWS, 4, 5, WS_USED)
    a(f"v_and_b32 v{vT}, 31, v{vLANE}")
    a(f"v_lshrrev_b32 v{vT+1}, 5, v{vLANE}")
    a(f"v_bfe_u32 v{vT+2}, v{vLANE}, 1, 3")
    a(f"v_xor_b32 v{vT+2}, v{vT+2}, v{vT+1}")
    a(f"v_lshlrev_b32 v{vT+2}, 4, v{vT+2}")
    a(f"v_lshl_add_u32 v{vXR}, v{vT}, 7, v{vT+2}")
    a(f"s_lshl_b32 s{sTMP}, s{sWM}, 13")
    a(f"v_add_u32 v{vXR}, s{sTMP}, v{vXR}")
    for kk in range(1, 4):
        a(f"v_xor_b32 v{vXR+kk}, {kk << 5}, v{vXR}")
    a(f"v_bfe_u32 v{vT+2}, v{vLANE}, 2, 2")
    a(f"v_lshl_add_u32 v{vT+3}, v{vT+1}, 3, v{vT+2}")
    a(f"v_lshlrev_b32 v{vT+3}, 8, v{vT+3}")
    a(f"v_and_b32 v{vT+4}, 3, v{vLANE}")
    a(f"v_lshl_add_u32 v{vT+3}, v{vT+4}, 3, v{vT+3}")
    a(f"v_bfe_u32 v{vT+4}, v{vLANE}, 4, 1")
    a(f"v_lshl_add_u32 v{vT+3}, v{vT+4}, 5, v{vT+3}")
    a(f"v_add_u32 v{vT+3}, {K1_XB}, v{vT+3}")
    a(f"s_lshl_b32 s{sTMP}, s{sWN}, 1")
    for bl in range(2):
        a(f"s_add_u32 s{sTMP2}, s{sTMP}, {bl}")
        a(f"v_xor_b32 v{vT+5}, s{sTMP2}, v{vT+2}")
        a(f"v_lshl_add_u32 v{vWR+bl}, v{vT+5}, 6, v{vT+3}")
    PF = "k1pf" in OPT
    if PF:
        a(f"s_lshr_b32 s{sTMP}, s2, 3")
        a(f"s_cmp_lt_u32 s{sW}, 6")
        a("s_cbranch_scc0 K1_PFX")
        a(f"s_mul_i32 s{sTMP}, s{sTMP}, 6")
        a(f"s_add_u32 s{sTMP}, s{sTMP}, s{sW}")
        a(f"s_mul_i32 s{sTMP}, s{sTMP}, 11")
        a(f"v_min_u32 v{vT}, 10, v{vLANE}")
        a(f"v_add_u32 v{vT}, s{sTMP}, v{vT}")
        a(f"v_min_u32 v{vT}, 1919, v{vT}")
        a(f"v_mul_u32_u24 v{vT+1}, 34953, v{vT}")
        a(f"v_lshrrev_b32 v{vT+1}, 20, v{vT+1}")
        a(f"v_mul_u32_u24 v{vT+2}, 30, v{vT+1}")
        a(f"v_sub_u32 v{vT+2}, v{vT}, v{vT+2}")
        a(f"v_mul_u32_u24 v{vT+1}, 3840, v{vT+1}")
        a(f"v_lshl_add_u32 v{vPF}, v{vT+2}, 7, v{vT+1}")
        for i in range(4): a(f"s_mov_b32 s{64+i}, s{SW+i}")
        a(f"s_mov_b32 s68, {64*3840}")
        a("s_branch K1_PFD")
        a.lab("K1_PFX")
        a(f"s_lshl_b32 s{sTMP}, s{sTMP}, 1")
        a(f"s_add_u32 s{sTMP}, s{sTMP}, s{sW}")
        a(f"s_sub_u32 s{sTMP}, s{sTMP}, 6")
        a(f"s_mul_i32 s{sTMP}, s{sTMP}, 9")
        a(f"v_min_u32 v{vT}, 8, v{vLANE}")
        a(f"v_add_u32 v{vT}, s{sTMP}, v{vT}")
        a(f"v_min_u32 v{vT}, 511, v{vT}")
        a(f"s_and_b32 s{sTMP}, s2, 3")
        a(f"s_lshl_b32 s{sTMP}, s{sTMP}, 9")
        a(f"v_add_u32 v{vT}, s{sTMP}, v{vT}")
        a(f"v_mul_u32_u24 v{vPF}, 1280, v{vT}")
        for i in range(4): a(f"s_mov_b32 s{64+i}, s{SX+i}")
        a(f"s_mov_b32 s68, 128")
        a.lab("K1_PFD")
        a(f"s_mul_i32 s69, s68, {PF0}")
    def pf_group():
        return [f"buffer_load_dword v{vPF+1}, v{vPF}, s[64:67], s69 offen", f"s_add_u32 s69, s69, s68"]
    a(f"s_mul_i32 s{sSEC}, s{sNT}, 52")
    a(f"s_lshr_b32 s{sSEC}, s{sSEC}, 8")
    a(f"s_mul_i32 s{sTMP}, s{sSEC}, 5")
    a(f"s_sub_u32 s{sFB}, s{sNT}, s{sTMP}")
    a(f"s_lshl_b32 s{sFB}, s{sFB}, 7")
    a(f"s_lshl_b32 s{sTMP}, s{sWN}, 6")
    a(f"s_add_u32 s{sFB}, s{sFB}, s{sTMP}")
    a(f"s_cmp_eq_u32 s{sSEC}, 2")
    a("s_cbranch_scc1 K1_VPREP")
    a(f"s_cmp_eq_u32 s{sSEC}, 0")
    a(f"s_cselect_b32 s{sSC}, {f2u(QSCALE):#x}, 1.0")
    a(f"s_mov_b32 s{sSC+1}, s{sSC}")
    a(f"s_mov_b32 s{sTMP}, {KV_HEAD}")
    a(f"s_cselect_b32 s{sHS}, {Q_HEAD}, s{sTMP}")
    a(f"s_mov_b32 s{sTMP}, {KV_CH}")
    a(f"s_cselect_b32 s{sTMP2}, {Q_CH}, s{sTMP}")
    a(f"s_mul_i32 s{sEO}, s{sMT}, s{sTMP2}")
    a(f"s_mul_i32 s{sTMP2}, s{sBR}, {QB_OFF - QA_OFF}")
    a(f"s_add_u32 s{sTMP2}, s{sTMP2}, {QA_OFF}")
    a(f"s_mul_i32 s{sTMP3}, s{sBR}, {KVB_OFF - KVA_OFF}")
    a(f"s_cmp_eq_u32 s{sSEC}, 0")
    a(f"s_cselect_b32 s{sTMP2}, s{sTMP2}, s{sTMP3}")
    a(f"s_add_u32 s{sEO}, s{sEO}, s{sTMP2}")
    a(f"s_mul_i32 s{sTMP}, s{sWM}, 2560")
    a(f"s_add_u32 s{sEO}, s{sEO}, s{sTMP}")
    a(f"s_lshr_b32 s{sTMP}, s{sFB}, 2")
    a(f"v_lshrrev_b32 v{vT+6}, 5, v{vLANE}")
    a(f"v_add_u32 v{vT+6}, s{sTMP}, v{vT+6}")
    a(f"v_and_b32 v{vT+7}, 31, v{vLANE}")
    a(f"v_lshlrev_b32 v{vT+7}, 3, v{vT+7}")
    a(f"v_mov_b32 v{vT+8}, 0x43120")
    for e in range(8):
        a(f"v_add_u32 v{vT}, {2*e}, v{vT+6}")
        a(f"v_mul_u32_u24 v{vT+1}, 52429, v{vT}")
        a(f"v_lshrrev_b32 v{vT+1}, 18, v{vT+1}")
        a(f"v_mul_u32_u24 v{vT+2}, 5, v{vT+1}")
        a(f"v_sub_u32 v{vT+2}, v{vT}, v{vT+2}")
        a(f"v_lshlrev_b32 v{vT+2}, 2, v{vT+2}")
        a(f"v_bfe_u32 v{vT+2}, v{vT+8}, v{vT+2}, 4")
        a(f"v_lshl_add_u32 v{vT+2}, v{vT+2}, 8, v{vT+7}")
        a(f"v_mad_u32_u24 v{vEO+e}, v{vT+1}, s{sHS}, v{vT+2}")
    a(f"v_and_b32 v{vT}, 1, v{vLANE}")
    a(f"v_cmp_eq_u32 vcc, 0, v{vT}")
    a(f"v_lshlrev_b32 v{vT}, 3, v{vT}")
    a("s_nop 0")
    a("s_mov_b64 s[60:61], vcc")
    for p in range(4):
        a(f"v_cndmask_b32 v{vEO+8+p}, v{vEO+2*p+1}, v{vEO+2*p}, vcc")
        a(f"v_sub_u32 v{vEO+8+p}, v{vEO+8+p}, v{vT}")
    a("s_branch K1_T")
    a.lab("K1_VPREP")
    a(f"s_mul_i32 s{sEO}, s{sMT}, {KV_CH}")
    a(f"s_mul_i32 s{sTMP}, s{sBR}, {KVB_OFF - KVA_OFF}")
    a(f"s_add_u32 s{sEO}, s{sEO}, s{sTMP}")
    a(f"s_mul_i32 s{sTMP}, s{sWM}, {4*640}")
    a(f"s_add_u32 s{sEO}, s{sEO}, s{sTMP}")
    a(f"s_add_u32 s{sEO}, s{sEO}, 10240")
    a(f"s_mov_b32 s{sHS}, {KV_HEAD}")
    for bl in range(2):
        a(f"s_add_u32 s{sTMP}, s{sFB}, {32*bl}")
        a(f"v_and_b32 v{vT}, 31, v{vLANE}")
        a(f"v_add_u32 v{vT}, s{sTMP}, v{vT}")
        a(f"v_mul_u32_u24 v{vT+1}, 52429, v{vT}")
        a(f"v_lshrrev_b32 v{vT+1}, 20, v{vT+1}")
        a(f"v_mul_u32_u24 v{vT+2}, 20, v{vT+1}")
        a(f"v_sub_u32 v{vT+2}, v{vT}, v{vT+2}")
        a(f"v_lshrrev_b32 v{vT+3}, 5, v{vLANE}")
        a(f"v_mul_u32_u24 v{vT+3}, 320, v{vT+3}")
        a(f"v_lshl_add_u32 v{vT+3}, v{vT+2}, 4, v{vT+3}")
        a(f"v_mad_u32_u24 v{vEO+bl}, v{vT+1}, s{sHS}, v{vT+3}")
    a("s_branch K1_C")

    def variant(tag):
        a.lab(f"K1_{tag}")
        def reads(st, ph):
            out = []
            if "k1noread" in OPT: return ["s_nop 0"] * 12
            for q in range(2):
                kk = 2 * ph + q
                for j in range(2):
                    r = vXF + st * 16 + (q * 2 + j) * 4
                    out.append(f"ds_read_b128 v[{r}:{r+3}], v{vXA+kk} offset:{j*4096}")
                    r = vWF + st * 16 + (q * 2 + j) * 4
                    out.append(f"ds_read_b64_tr_b16 v[{r}:{r+1}], v{vWA+j} offset:{kk*4096}")
                    out.append(f"ds_read_b64_tr_b16 v[{r+2}:{r+3}], v{vWA+j} offset:{kk*4096+1024}")
            return out
        def mfmas(st, zero=False):
            out = []
            if "k1nomfma" in OPT: return ["s_nop 0"] * 8
            for q in range(2):
                for bl in range(2):
                    for mb in range(2):
                        acc = vACC + (bl * 2 + mb) * 16
                        xf = f"v[{vXF+st*16+(q*2+mb)*4}:{vXF+st*16+(q*2+mb)*4+3}]"
                        wf = f"v[{vWF+st*16+(q*2+bl)*4}:{vWF+st*16+(q*2+bl)*4+3}]"
                        c = "0" if (zero and q == 0) else f"v[{acc}:{acc+15}]"
                        if tag == "T":
                            out.append(f"v_mfma_f32_32x32x16_bf16 v[{acc}:{acc+15}], {wf}, {xf}, {c}")
                        else:
                            out.append(f"v_mfma_f32_32x32x16_bf16 v[{acc}:{acc+15}], {xf}, {wf}, {c}")
            return out
        def setaddr(sreg):
            return [f"v_add_u32 v{vXA+i}, s{sreg}, v{vXR+i}" for i in range(4)] + [f"v_add_u32 v{vWA+i}, s{sreg}, v{vWR+i}" for i in range(2)]
        def weave(mf, extras, upto=None):
            n = upto or len(mf); m = len(extras)
            k = 0
            for i, x in enumerate(mf):
                a(x)
                tgt = min(m, ((i + 1) * m + n - 1) // n)
                while k < tgt:
                    for y in extras[k]: a(y)
                    k += 1
        def mix(rd, dm, tail):
            ex = []
            nd = len(dm)
            for i, r in enumerate(rd):
                ex.append([r])
                if nd == 3 and i % 4 == 3: ex.append(dm[i // 4])
                if nd == 6 and i % 2 == 1: ex.append(dm[i // 2])
            return ex + tail
        def phaseA(zero, dm):
            ring = [[f"s_add_u32 s{sRD}, s{sRD}, {K1_BUF}", f"s_cmp_eq_u32 s{sRD}, {K1_LDS}", f"s_cselect_b32 s{sRD}, 0, s{sRD}"]]
            mf = mfmas(0, zero)
            weave(mf[:7], mix(reads(1, 1), dm, ring), upto=6)
            return mf[7:]
        a(f"s_mov_b32 s{sWRB}, {K1_BUF}")
        for g in dma_list(sWRB):
            for x in g: a(x)
        a(f"s_mov_b32 s{sWRB}, {2*K1_BUF}")
        NP0 = (5 - PF0) if PF else 0
        for i in range(NP0):
            for x in pf_group(): a(x)
        SL = "slice" in OPT
        def slice_groups():
            pre = [f"s_lshr_b32 s70, s2, 3", f"s_lshl_b32 s70, s70, 2", f"s_and_b32 s71, s2, 3", f"s_add_u32 s70, s70, s71",
                   f"s_lshl_b32 s70, s70, 3", f"s_add_u32 s70, s70, s{sW}", f"s_lshl_b32 s70, s70, 10", f"v_lshlrev_b32 v{vPF}, 4, v{vLANE}"]
            g = []
            for i in range(3):
                g.append([f"s_add_u32 s71, s70, {i*960*1024}",
                          f"buffer_load_dwordx4 v[{vPF+4}:{vPF+7}], v{vPF}, s[{SW}:{SW+3}], s71 offen"])
            g.append([f"s_mul_i32 s71, s{sBR}, {1280*1024}", f"s_add_u32 s71, s71, s70",
                      f"buffer_load_dwordx4 v[{vPF+4}:{vPF+7}], v{vPF}, s[{SX}:{SX+3}], s71 offen"])
            g.append([f"s_add_u32 s71, s71, {960*1024}", f"s_cmp_lt_u32 s70, {320*1024}", f"s_cselect_b32 s71, s71, s70",
                      f"buffer_load_dwordx4 v[{vPF+4}:{vPF+7}], v{vPF}, s[{SX}:{SX+3}], s71 offen"])
            return pre, g
        NP = 1 if PF else 0
        if SL and 'sliceearly' in OPT:
            pre, g = slice_groups()
            for x in pre: a(x)
            for gg in g:
                for x in gg: a(x)
            NP0 += 5
        stamp(a, 2)
        a(f"s_waitcnt vmcnt({6+NP0})")
        a("s_barrier")
        stamp(a, 3)
        a(f"s_mov_b32 s{sRD}, 0")
        for x in setaddr(sRD): a(x)
        for r in reads(0, 0): a(r)
        a(f"s_mov_b32 s{sI}, 0")
        adv = [f"s_add_u32 s{sWRB}, s{sWRB}, {K1_BUF}", f"s_cmp_eq_u32 s{sWRB}, {K1_LDS}", f"s_cselect_b32 s{sWRB}, 0, s{sWRB}"]
        a("s_waitcnt lgkmcnt(0)")
        LATE = SL and 'sliceearly' not in OPT
        if LATE:
            pre, g = slice_groups()
            for x in pre: a(x)
        last = phaseA(True, dma_list(sWRB, True))
        if LATE:
            for gg in g:
                for x in gg: a(x)
        for x in last: a(x)
        a(f"s_waitcnt vmcnt({6+NP0+(5 if LATE else 0)}) lgkmcnt(0)")
        a(f"s_branch K1_{tag}_WB")
        a.lab(f"K1_{tag}_LOOP")
        a("s_waitcnt lgkmcnt(0)")
        a(f"s_cmp_ge_u32 s{sI}, 8")
        a(f"s_cbranch_scc1 K1_{tag}_AND")
        last = phaseA(False, [] if "k1allc" in OPT else dma_list(sWRB, True)[3:])
        for x in last: a(x)
        a.lab(f"K1_{tag}_B")
        if LATE:
            a(f"s_cmp_eq_u32 s{sI}, 1")
            a(f"s_cbranch_scc1 K1_{tag}_B1")
        a(f"s_waitcnt vmcnt({6+NP}) lgkmcnt(0)")
        a.lab(f"K1_{tag}_WB")
        if "k1stamp" in OPT:
            a("s_memtime s[78:79]")
        if "k1nobar" not in OPT: a("s_barrier")
        if "k1stamp" in OPT:
            a("s_memtime s[74:75]")
            a("s_waitcnt lgkmcnt(0)")
            a(f"s_mov_b32 s79, m0")
            a(f"s_mov_b32 m0, s{sI}")
            a("s_nop 0")
            a(f"v_writelane_b32 v179, s74, m0")
            a(f"s_add_u32 m0, m0, 16")
            a("s_nop 0")
            a(f"v_writelane_b32 v179, s78, m0")
            a(f"s_mov_b32 m0, s79")
        mf = mfmas(1)
        a(mf[0])
        for x in setaddr(sRD): a(x)
        for x in adv: a(x)
        rd = reads(0, 0)
        a(f"s_cmp_ge_u32 s{sI}, 7")
        a(f"s_cbranch_scc1 K1_{tag}_ND")
        cnt = [[f"s_add_u32 s{sI}, s{sI}, 1"]]
        weave(mf[1:], mix(rd, dma_list(sWRB, True)[:3], ([pf_group()] if PF else []) + cnt), upto=6)
        a(f"s_branch K1_{tag}_LOOP")
        a.lab(f"K1_{tag}_ND")
        weave(mf[1:], mix(rd, [], cnt), upto=6)
        a(f"s_cmp_lt_u32 s{sI}, 10")
        a(f"s_cbranch_scc1 K1_{tag}_LOOP")
        stamp(a, 4)
        a("s_nop 7")
        a("s_nop 3")
        n = 0
        for bl in range(2):
            for mb in range(2):
                acc = vACC + (bl * 2 + mb) * 16
                if tag == "T" and "t8" in OPT:
                    for i in range(4):
                        q = acc + 4 * i
                        t = vXF + (n % 16) * 2; n += 1
                        a(f"v_pk_mul_f32 v[{q}:{q+1}], v[{q}:{q+1}], s[{sSC}:{sSC+1}]")
                        a(f"v_pk_mul_f32 v[{q+2}:{q+3}], v[{q+2}:{q+3}], s[{sSC}:{sSC+1}]")
                        a(f"v_cvt_pk_bf16_f32 v{t}, v{q}, v{q+1}")
                        a(f"v_cvt_pk_bf16_f32 v{t+1}, v{q+2}, v{q+3}")
                        a(f"buffer_store_dwordx2 v[{t}:{t+1}], v{vEO + 4*bl + i}, s[{SWS}:{SWS+3}], s{sEO} offen offset:{mb*1280}{STORE_FLAGS}")
                elif tag == "T":
                    t = vXF + (n % 4) * 16; n += 1
                    for i in range(4):
                        q = acc + 4 * i
                        a(f"v_pk_mul_f32 v[{q}:{q+1}], v[{q}:{q+1}], s[{sSC}:{sSC+1}]")
                        a(f"v_pk_mul_f32 v[{q+2}:{q+3}], v[{q+2}:{q+3}], s[{sSC}:{sSC+1}]")
                        a(f"v_cvt_pk_bf16_f32 v{t+2*i}, v{q}, v{q+1}")
                        a(f"v_cvt_pk_bf16_f32 v{t+2*i+1}, v{q+2}, v{q+3}")
                    DP = "quad_perm:[1,0,3,2] row_mask:0xf bank_mask:0xf"
                    a("s_mov_b64 vcc, s[60:61]")
                    for pr in range(2):
                        A0 = t + 4 * pr; B0 = A0 + 2; o = t + 8 + 4 * pr
                        a(f"v_cndmask_b32_dpp v{o}, v{B0}, v{A0}, vcc {DP}")
                        a(f"v_cndmask_b32_dpp v{o+1}, v{B0+1}, v{A0+1}, vcc {DP}")
                    a("s_not_b64 vcc, vcc")
                    for pr in range(2):
                        A0 = t + 4 * pr; B0 = A0 + 2; o = t + 8 + 4 * pr
                        a(f"v_cndmask_b32_dpp v{o+2}, v{A0}, v{B0}, vcc {DP}")
                        a(f"v_cndmask_b32_dpp v{o+3}, v{A0+1}, v{B0+1}, vcc {DP}")
                    for pr in range(2):
                        o = t + 8 + 4 * pr
                        a(f"buffer_store_dwordx4 v[{o}:{o+3}], v{vEO + 8 + 2*bl + pr}, s[{SWS}:{SWS+3}], s{sEO} offen offset:{mb*1280}{STORE_FLAGS}")
                else:
                    for g2 in range(2):
                        q = acc + 8 * g2
                        t = vXF + (n % 8) * 4; n += 1
                        for i in range(4):
                            a(f"v_cvt_pk_bf16_f32 v{t+i}, v{q+2*i}, v{q+2*i+1}")
                        a(f"buffer_store_dwordx4 v[{t}:{t+3}], v{vEO+bl}, s[{SWS}:{SWS+3}], s{sEO} offen offset:{(2*mb+g2)*640}{STORE_FLAGS}")
        a("s_branch K1_FIN")
        if LATE:
            a.lab(f"K1_{tag}_B1")
            a(f"s_waitcnt vmcnt({6+NP+5}) lgkmcnt(0)")
            a(f"s_branch K1_{tag}_WB")
        a.lab(f"K1_{tag}_AND")
        last = phaseA(False, [])
        for x in last: a(x)
        a("s_waitcnt vmcnt(0) lgkmcnt(0)")
        a(f"s_branch K1_{tag}_WB")
    variant("T")
    variant("C")

    GPF0 = optval("gpf0", 3)
    a.lab("K1_GATE")
    a("s_waitcnt lgkmcnt(0)")
    srd(a, SX, 8, 9, 2048 * 1280)
    srd(a, SG, 6, 7, 1280)
    srd(a, SWS, 4, 5, WS_USED)
    if "gmall" in OPT:
        a("s_load_dwordx2 s[58:59], s[0:1], 8")
        a("s_load_dwordx2 s[70:71], s[0:1], 32")
        a(f"s_sub_u32 s{sTMP}, s2, 240")
        a(f"s_lshl_b32 s{sTMP}, s{sTMP}, 3")
        a(f"s_add_u32 s{sTMP}, s{sTMP}, s{sW}")
        a(f"v_lshlrev_b32 v{vT+1}, 4, v{vLANE}")
        a(f"v_lshrrev_b32 v{vT+2}, 3, v{vLANE}")
        a(f"s_lshl_b32 s{sTMP2}, s{sTMP}, 4")
        a(f"v_add_u32 v{vT+2}, s{sTMP2}, v{vT+2}")
        a(f"v_mul_u32_u24 v{vT+2}, 1280, v{vT+2}")
        a(f"v_and_b32 v{vT+3}, 7, v{vLANE}")
        a(f"v_lshl_add_u32 v{vT+2}, v{vT+3}, 4, v{vT+2}")
        a("s_waitcnt lgkmcnt(0)")
        srd(a, 60, 58, 59, 640 * 3840)
        srd(a, 64, 70, 71, 640 * 3840)
        a(f"s_lshl_b32 s72, s{sTMP}, 10")
        a(f"s_add_u32 s73, s72, {128*1024}")
        a(f"s_cmp_ge_u32 s{sTMP}, 112")
        a(f"s_cselect_b32 s73, s72, s73")
        a(f"s_mov_b32 s74, 0")
        for st in range(optval("mall0", 1), 10):
            wo = st * 64 * 3840
            a(f"s_add_u32 s76, s72, {wo}")
            a(f"buffer_load_dwordx4 v[{vXF}:{vXF+3}], v{vT+1}, s[60:63], s76 offen")
            a(f"buffer_load_dwordx4 v[{vXF+4}:{vXF+7}], v{vT+1}, s[64:67], s76 offen")
            a(f"s_add_u32 s76, s73, {wo}")
            a(f"buffer_load_dwordx4 v[{vXF+8}:{vXF+11}], v{vT+1}, s[60:63], s76 offen")
            a(f"buffer_load_dwordx4 v[{vXF+12}:{vXF+15}], v{vT+1}, s[64:67], s76 offen")
            a(f"s_mov_b32 s76, {st*128}")
            a(f"buffer_load_dwordx4 v[{vXF+16}:{vXF+19}], v{vT+2}, s[{SX}:{SX+3}], s76 offen")
            a(f"buffer_load_dwordx4 v[{vXF+20}:{vXF+23}], v{vT+2}, s[{SX}:{SX+3}], s76 offen offset:0" if False else
              f"s_add_u32 s76, s76, {8*1280}")
            a(f"buffer_load_dwordx4 v[{vXF+20}:{vXF+23}], v{vT+2}, s[{SX}:{SX+3}], s76 offen")
            a("s_waitcnt vmcnt(36)")
        a("s_waitcnt vmcnt(0)")
    TS = optval("tlbin", 0)
    if TS:
        srd(a, SW, 10, 11, 640 * 3840)
        sh = {4: 12, 16: 14, 64: 16}[TS]
        a(f"s_lshr_b32 s{sTMP}, s2, 3")
        a(f"s_and_b32 s{sTMP}, s{sTMP}, 1")
        a(f"s_lshl_b32 s{sTMP}, s{sTMP}, 3")
        a(f"s_add_u32 s{sTMP}, s{sTMP}, s{sW}")
        a(f"s_lshl_b32 s{sTMP}, s{sTMP}, 6")
        a(f"v_add_u32 v{vT+1}, s{sTMP}, v{vLANE}")
        a(f"v_lshlrev_b32 v{vT+1}, {sh}, v{vT+1}")
        n = max(1, -(-2621440 // ((1024) << sh)))
        for i in range(n):
            a(f"s_mov_b32 s{sTMP2}, {i * (1024 << sh)}")
            a(f"buffer_load_dword v{vPF}, v{vT+1}, s[{SW}:{SW+3}], s{sTMP2} offen")
            a(f"buffer_load_dword v{vPF+1}, v{vT+1}, s[{SX}:{SX+3}], s{sTMP2} offen")
    if "gpf" in OPT:
        srd(a, SW, 10, 11, 640 * 3840)
        a(f"s_lshr_b32 s{sTMP}, s2, 3")
        a(f"s_and_b32 s{sTMP}, s{sTMP}, 1")
        a(f"v_cmp_le_u32 vcc, 30, v{vLANE}")
        a(f"v_mov_b32 v{vT+1}, 0")
        a(f"v_mov_b32 v{vT+2}, {3840 - 30*128}")
        a(f"v_cndmask_b32 v{vT+1}, v{vT+1}, v{vT+2}, vcc")
        a(f"v_min_u32 v{vT+2}, 59, v{vLANE}")
        a(f"v_lshl_add_u32 v{vT+1}, v{vT+2}, 7, v{vT+1}")
        a(f"s_lshl_b32 s{sTMP2}, s{sTMP}, 5")
        a(f"s_lshl_b32 s{sTMP3}, s{sW}, 2")
        a(f"s_add_u32 s{sTMP2}, s{sTMP2}, s{sTMP3}")
        a(f"s_add_u32 s{sTMP2}, s{sTMP2}, {64*GPF0}")
        a(f"s_mul_i32 s{sTMP2}, s{sTMP2}, 3840")
        a(f"s_and_b32 s{sTMP3}, s2, 3")
        a(f"s_lshl_b32 s{sTMP3}, s{sTMP3}, 9")
        a(f"s_lshl_b32 s{sTMP}, s{sTMP}, 8")
        a(f"s_add_u32 s{sTMP3}, s{sTMP3}, s{sTMP}")
        a(f"s_and_b32 s{sTMP}, s{sW}, 3")
        a(f"s_lshl_b32 s{sTMP}, s{sTMP}, 6")
        a(f"s_add_u32 s{sTMP3}, s{sTMP3}, s{sTMP}")
        a(f"v_add_u32 v{vT+2}, s{sTMP3}, v{vLANE}")
        a(f"v_mul_u32_u24 v{vT+2}, 1280, v{vT+2}")
        a(f"s_mov_b32 s{sTMP3}, {128*GPF0}")
        for st in range(GPF0, 10):
            a(f"buffer_load_dword v{vPF}, v{vT+1}, s[{SW}:{SW+3}], s{sTMP2} offen")
            a(f"s_add_u32 s{sTMP}, s{sTMP2}, {2*3840}")
            a(f"buffer_load_dword v{vPF+1}, v{vT+1}, s[{SW}:{SW+3}], s{sTMP} offen")
            a(f"buffer_load_dword v{vPF+2}, v{vT+2}, s[{SX}:{SX+3}], s{sTMP3} offen")
            a(f"s_add_u32 s{sTMP2}, s{sTMP2}, {64*3840}")
            a(f"s_add_u32 s{sTMP3}, s{sTMP3}, 128")
    if "notlb" not in OPT:
        a(f"v_lshlrev_b32 v{vT+1}, 16, v{vLANE}")
        a(f"s_lshl_b32 s{sTMP}, s{sW}, 22")
        a(f"s_cmp_lt_u32 s{sW}, 6")
        a(f"s_cbranch_scc0 K1_NOTLB")
        a(f"buffer_load_dword v{vPF}, v{vT+1}, s[{SWS}:{SWS+3}], s{sTMP} offen")
        a.lab("K1_NOTLB")
    if "codepf" in OPT:
        a(f"s_getpc_b64 s[78:79]")
        a.lab("K1_PC")
        a(f"s_add_u32 s78, s78, k2_attn_kernel-K1_PC")
        a(f"s_addc_u32 s79, s79, 0")
        a(f"v_lshlrev_b32 v{vT+1}, 7, v{vLANE}")
        a(f"s_lshl_b32 s{sTMP}, s{sW}, 13")
        a(f"v_add_u32 v{vT+1}, s{sTMP}, v{vT+1}")
        a(f"s_cmp_ge_u32 s{sW}, K2CODE_WAVES")
        a("s_cbranch_scc1 K1_NOCPF")
        a(f"global_load_dword v{vPF+2}, v{vT+1}, s[78:79]")
        a.lab("K1_NOCPF")
    a(f"s_cmp_lg_u32 s2, 240")
    a("s_cbranch_scc1 K1_NOZ")
    a(f"s_cmp_ge_u32 s{sW}, 4")
    a("s_cbranch_scc1 K1_NOZ")
    a(f"v_lshlrev_b32 v{vT+1}, 7, v{vLANE}")
    a(f"v_mov_b32 v{vT+2}, 0")
    a(f"s_lshl_b32 s{sTMP}, s{sW}, 13")
    a(f"s_add_u32 s{sTMP}, s{sTMP}, {FL_OFF}")
    a(f"buffer_store_dword v{vT+2}, v{vT+1}, s[{SWS}:{SWS+3}], s{sTMP} offen")
    a.lab("K1_NOZ")
    a(f"s_sub_u32 s{sTMP}, s2, 240")
    a(f"s_lshl_b32 s{sTMP}, s{sTMP}, 3")
    a(f"s_add_u32 s{sTMP}, s{sTMP}, s{sW}")
    a(f"s_cmp_ge_u32 s{sTMP}, 120")
    a("s_cbranch_scc1 K1_GATE2")
    a(f"s_mul_i32 s{sTMP2}, s{sTMP}, 171")
    a(f"s_lshr_b32 s{sTMP2}, s{sTMP2}, 9")
    a(f"s_mul_i32 s{sTMP3}, s{sTMP2}, 3")
    a(f"s_sub_u32 s{sTMP3}, s{sTMP}, s{sTMP3}")
    a("s_load_dwordx2 s[58:59], s[0:1], 16")
    a("s_load_dwordx2 s[70:71], s[0:1], 40")
    a(f"s_mul_i32 s{sD}, s{sTMP3}, 448")
    a(f"v_lshrrev_b32 v{vT+1}, 5, v{vLANE}")
    a(f"v_mul_u32_u24 v{vT+1}, 1280, v{vT+1}")
    a(f"v_and_b32 v{vT+2}, 31, v{vLANE}")
    a(f"v_lshl_add_u32 v{vT+1}, v{vT+2}, 4, v{vT+1}")
    a(f"v_add_u32 v{vT+1}, s{sD}, v{vT+1}")
    a(f"s_lshl_b32 s{sEO}, s{sW}, 14")
    a("s_waitcnt lgkmcnt(0)")
    srd(a, 60, 58, 59, 640 * 1280)
    srd(a, 64, 70, 71, 640 * 1280)
    for g in range(4):
        a(f"s_lshl_b32 s72, s{sTMP2}, 2")
        a(f"s_add_u32 s72, s72, {g}")
        a(f"s_mul_i32 s73, s72, 205")
        a(f"s_lshr_b32 s73, s73, 10")
        a(f"s_mul_i32 s74, s73, 5")
        a(f"s_sub_u32 s74, s72, s74")
        a(f"s_mul_i32 s73, s73, 20")
        for quad in range(2):
            a(f"s_and_b32 s76, s74, 1")
            a(f"s_lshl_b32 s76, s76, 3")
            a(f"s_add_u32 s76, s76, {4*quad}")
            a(f"s_lshr_b32 s77, s74, 1")
            a(f"s_cmp_eq_u32 s74, 4")
            a(f"s_cselect_b32 s76, 16, s76")
            a(f"s_cselect_b32 s77, {quad}, s77")
            a(f"s_add_u32 s76, s76, s73")
            a(f"s_mul_i32 s76, s76, 1280")
            a(f"s_cmp_eq_u32 s77, 0")
            a(f"s_cbranch_scc0 K1_WB{g}{quad}")
            for r2 in range(2):
                a(f"s_add_u32 m0, s{sEO}, {(g*4 + quad*2 + r2)*1024}")
                a(f"s_add_u32 s{sD}, s76, {r2*2*1280}")
                a(f"buffer_load_dwordx4 v{vT+1}, s[60:63], s{sD} offen lds")
            a(f"s_branch K1_WD{g}{quad}")
            a.lab(f"K1_WB{g}{quad}")
            for r2 in range(2):
                a(f"s_add_u32 m0, s{sEO}, {(g*4 + quad*2 + r2)*1024}")
                a(f"s_add_u32 s{sD}, s76, {r2*2*1280}")
                a(f"buffer_load_dwordx4 v{vT+1}, s[64:67], s{sD} offen lds")
            a.lab(f"K1_WD{g}{quad}")
    a(f"v_lshrrev_b32 v{vT+2}, 4, v{vLANE}")
    a(f"v_bfe_u32 v{vT+3}, v{vLANE}, 2, 2")
    a(f"v_lshl_add_u32 v{vT+2}, v{vT+2}, 3, v{vT+3}")
    a(f"v_lshlrev_b32 v{vT+2}, 9, v{vT+2}")
    a(f"v_and_b32 v{vT+3}, 3, v{vLANE}")
    a(f"v_lshl_add_u32 v{vT+2}, v{vT+3}, 3, v{vT+2}")
    a(f"v_add_u32 v{vT+2}, s{sEO}, v{vT+2}")
    a(f"v_lshlrev_b32 v{vT+3}, 4, v{vLANE}")
    a("s_waitcnt vmcnt(0)")
    for j in range(14):
        a(f"ds_read_b64_tr_b16 v[{vXF+4*j}:{vXF+4*j+1}], v{vT+2} offset:{j*32}")
        a(f"ds_read_b64_tr_b16 v[{vXF+4*j+2}:{vXF+4*j+3}], v{vT+2} offset:{j*32+2048}")
    a(f"s_mul_i32 s{sTMP3}, s{sTMP3}, 14")
    a("s_waitcnt lgkmcnt(0)")
    for j in range(14):
        a(f"s_add_u32 s{sTMP4}, s{sTMP3}, {j}")
        a(f"s_cmp_ge_u32 s{sTMP4}, 40")
        a("s_cbranch_scc1 K1_GATE2")
        a(f"s_mul_i32 s{sD}, s{sTMP4}, 52")
        a(f"s_lshr_b32 s{sD}, s{sD}, 8")
        a(f"s_mul_i32 s{sEO}, s{sD}, 5")
        a(f"s_sub_u32 s{sEO}, s{sTMP4}, s{sEO}")
        a(f"s_mul_i32 s{sD}, s{sD}, 40")
        a(f"s_add_u32 s{sD}, s{sD}, s{sTMP2}")
        a(f"s_mul_i32 s{sD}, s{sD}, 5")
        a(f"s_add_u32 s{sD}, s{sD}, s{sEO}")
        a(f"s_lshl_b32 s{sD}, s{sD}, 10")
        a(f"s_add_u32 s{sD}, s{sD}, {WT_OFF}")
        a(f"buffer_store_dwordx4 v[{vXF+4*j}:{vXF+4*j+3}], v{vT+3}, s[{SWS}:{SWS+3}], s{sD} offen")
    a.lab("K1_GATE2")
    a("s_nop 1")
    a(f"s_sub_u32 s{sTMP}, s2, 240")
    a(f"s_lshl_b32 s{sTMP}, s{sTMP}, 7")
    a(f"s_lshl_b32 s{sTMP2}, s{sW}, 4")
    a(f"s_add_u32 s{sI}, s{sTMP}, s{sTMP2}")
    a(f"v_lshlrev_b32 v{vT}, 2, v{vLANE}")
    for j in range(5):
        a(f"buffer_load_dword v{vT+7+j}, v{vT}, s[{SG}:{SG+3}], 0 offen offset:{j*256}")
    a(f"s_mul_i32 s{sTMP4}, s{sI}, 1280")
    for r in range(16):
        for j in range(5):
            a(f"buffer_load_dword v{vXF+r*5+j}, v{vT}, s[{SX}:{SX+3}], s{sTMP4} offen offset:{j*256}")
        a(f"s_add_u32 s{sTMP4}, s{sTMP4}, 1280")
        if r == 9: a("s_waitcnt vmcnt(20)")
    a("s_waitcnt vmcnt(0)")
    gw = vT + 7
    for j in range(5):
        a(f"v_lshlrev_b32 v{vT+2+j}, 16, v{gw+j}")
        a(f"v_and_b32 v{gw+j}, 0xffff0000, v{gw+j}")
    vG = 112
    for r in range(16):
        a(f"v_mov_b32 v{vG+r}, 0")
        for j in range(5):
            x = vXF + r * 5 + j
            a(f"v_lshlrev_b32 v{vT}, 16, v{x}")
            a(f"v_and_b32 v{x}, 0xffff0000, v{x}")
            a(f"v_fmac_f32 v{vG+r}, v{vT}, v{vT+2+j}")
            a(f"v_fmac_f32 v{vG+r}, v{x}, v{gw+j}")
    for rr in (8, 4, 2, 1):
        a("s_nop 1")
        for r in range(16):
            a(f"v_add_f32_dpp v{vG+r}, v{vG+r}, v{vG+r} row_ror:{rr} row_mask:0xf bank_mask:0xf")
    for r in range(16):
        a(f"v_mov_b32 v{vG+16+r}, v{vG+r}")
    a("s_nop 1")
    for r in range(16):
        a(f"v_permlane32_swap_b32 v{vG+r}, v{vG+16+r}")
    a("s_nop 1")
    for r in range(16):
        a(f"v_add_f32 v{vG+r}, v{vG+r}, v{vG+16+r}")
        a(f"v_mov_b32 v{vG+16+r}, v{vG+r}")
    a("s_nop 1")
    for r in range(16):
        a(f"v_permlane16_swap_b32 v{vG+r}, v{vG+16+r}")
    a("s_nop 1")
    for r in range(16):
        a(f"v_add_f32 v{vG+r}, v{vG+r}, v{vG+16+r}")
    a(f"v_and_b32 v{vT}, 15, v{vLANE}")
    a(f"v_mov_b32 v{vT+1}, v{vG}")
    for r in range(1, 16):
        a(f"v_cmp_eq_u32 vcc, {r}, v{vT}")
        a("s_nop 1")
        a(f"v_cndmask_b32 v{vT+1}, v{vT+1}, v{vG+r}, vcc")
    a(f"v_mul_f32 v{vT+1}, {f2u(-1.4426950408889634):#x}, v{vT+1}")
    a(f"v_exp_f32 v{vT+1}, v{vT+1}")
    a("s_nop 0")
    a(f"v_add_f32 v{vT+1}, 1.0, v{vT+1}")
    a(f"v_rcp_f32 v{vT+1}, v{vT+1}")
    a(f"s_lshl_b32 s{sTMP}, s{sI}, 2")
    a(f"s_add_u32 s{sTMP}, s{sTMP}, {G_OFF}")
    a(f"v_lshlrev_b32 v{vT}, 2, v{vT}")
    a("s_mov_b64 exec, 0xffff")
    a(f"buffer_store_dword v{vT+1}, v{vT}, s[{SWS}:{SWS+3}], s{sTMP} offen")
    if PROF:
        a("s_mov_b64 exec, -1")
        a("s_waitcnt vmcnt(0)")
        for i in range(1, 7): stamp(a, i)
        stamp_flush(a, 0, 7, SWS, sW, vT)
    a("s_branch K1_END")
    a.lab("K1_FIN")
    if "endpf" in OPT:
        a("s_getpc_b64 s[78:79]")
        a.lab("K1_PC2")
        a("s_add_u32 s78, s78, k2_attn_kernel-K1_PC2")
        a("s_addc_u32 s79, s79, 0")
        a("v_lshlrev_b32 v180, 7, v0")
        a("v_cmp_gt_u32 vcc, K2_TEXT_SIZE, v180")
        a("s_and_saveexec_b64 s[72:73], vcc")
        a("s_cbranch_execz K1_EPF")
        a("global_load_dword v181, v180, s[78:79]")
        a.lab("K1_EPF")
        a("s_mov_b64 exec, s[72:73]")
    if "dbgtime" in OPT:
        a("s_cmp_lg_u32 s2, 1")
        a("s_cbranch_scc1 K1_DBGX")
        a("s_cmp_lg_u32 s32, 0")
        a("s_cbranch_scc1 K1_DBGX")
        a("s_load_dwordx2 s[92:93], s[0:1], 64")
        a("s_waitcnt vmcnt(0)")
        a("s_memrealtime s[94:95]")
        a("s_memtime s[96:97]")
        a("s_waitcnt lgkmcnt(0)")
        srd(a, 84, 92, 93, 256)
        a("s_sub_u32 s96, s96, s88")
        a("s_sub_u32 s94, s94, s90")
        a("s_mov_b64 exec, 1")
        a("v_mov_b32 v24, 0")
        a("v_mov_b32 v20, 111")
        a("v_mov_b32 v21, s96")
        a("v_mov_b32 v22, s94")
        a("v_mov_b32 v23, s90")
        a("buffer_store_dwordx4 v[20:23], v24, s[84:87], 0 offen")
        a("s_mov_b64 exec, -1")
        a.lab("K1_DBGX")
    if "k1stamp" in OPT:
        a(f"s_lshl_b32 s97, s2, 3")
        a(f"s_add_u32 s97, s97, s{sW}")
        a(f"s_lshl_b32 s97, s97, 7")
        a(f"s_add_u32 s97, s97, {PROF_OFF + 3 * 0x100000}")
        a(f"v_lshlrev_b32 v{vT}, 2, v{vLANE}")
        a("s_mov_b64 exec, 0xffffffff")
        a(f"buffer_store_dword v179, v{vT}, s[{SWS}:{SWS+3}], s97 offen")
        a("s_mov_b64 exec, -1")
    stamp(a, 5)
    if PROF: a("s_waitcnt vmcnt(0)")
    stamp(a, 6)
    stamp_flush(a, 0, 7, SWS, sW, vT)
    a.lab("K1_END")
    a("s_endpgm")
    a.lab("K1_TEXT_END")
    return name, NV

K2_LDS = 163840
NEGBIG = -1.0e30

def mask_table():
    vals = []
    for j in range(6):
        for l in range(64):
            c = l & 31; h = l >> 5
            for i in range(4):
                if j < 4:
                    r = j * 4 + i
                    row = (r & 3) + 8 * (r >> 2) + 4 * h
                    diff = c + 16 - row
                else:
                    r = (j - 4) * 4 + i
                    row = (r & 3) + 8 * (r >> 2) + 4 * h
                    diff = c - 16 - row
                ok = 0 <= diff <= 14 and diff % 2 == 0
                vals.append(0 if ok else f2u(NEGBIG))
    return vals

K2_PRIO_TILE = 5
def gen_k2(a):
    FUSE = "nofuse" not in OPT
    name = "k2_attn_kernel"
    kernel_head(a, name)
    SWS = 8
    sW = 12; sHEAD = 13; sQB = 14; sS0 = 15; sT0 = 16; sT1 = 17; sT2 = 18; sT3 = 19
    sC = 20; sPASS = 21; sVM = 22
    sLO = 24
    sGRP = 26; sPR = 27
    sDS = 28; sDG = 29
    sAV = 30
    sQA = 33; sGO = 35
    sDO = 44
    sWL = 49; sWS = 58; sWS0 = 59; sWC = 66; sFAIL = 67
    vLANE = 1; vL16 = 2; vK8 = 3; vVA = 4; vKe = 5; vKo = 6; vK4c = 7
    vT = 8
    vGATE = 16; vVc = 17
    vAKO = 18
    vPFA = 22; vQO = 23
    vQ16 = [24, 28]; vQ8 = [32, 34]
    vQA16 = 36; vQA8 = 40
    vKA = 44; vKB = 52; vV1 = 56; vV2 = 64; vP = 72
    S = [84, 100]; NEG = [116, 132]; O = [148, 164]
    vAK = 180; vAV = 192; vMX = 204; vMY = 220
    vOB = 236; vDUM = 244; vOSA = 245
    NV = 248
    ONES = 0x3f803f80
    vS0, vS1 = S

    a("s_cmp_ge_u32 s2, 256")
    a("s_cbranch_scc1 K2_END")
    stamp(a, 0)
    if "dbgtime" in OPT:
        a("s_memrealtime s[90:91]")
        a("s_memtime s[88:89]")
    a("s_load_dwordx2 s[4:5], s[0:1], 72")
    if FUSE:
        a("s_load_dwordx2 s[60:61], s[0:1], 56")
    a(f"v_and_b32 v{vLANE}, 63, v0")
    a(f"v_lshrrev_b32 v{vT}, 6, v0")
    a(f"s_and_b32 s{sHEAD}, s2, 7")
    a(f"v_readfirstlane_b32 s{sW}, v{vT}")
    a(f"s_lshl_b32 s{sHEAD}, s{sHEAD}, 2")
    a(f"s_lshr_b32 s{sT0}, s2, 6")
    a(f"s_add_u32 s{sHEAD}, s{sHEAD}, s{sT0}")
    a(f"s_lshr_b32 s{sQB}, s2, 3")
    a(f"s_and_b32 s{sQB}, s{sQB}, 7")
    a(f"v_lshlrev_b32 v{vL16}, 4, v{vLANE}")
    a(f"v_and_b32 v{vT}, 31, v{vLANE}")
    a(f"v_lshlrev_b32 v{vK8}, 3, v{vT}")
    a(f"v_lshrrev_b32 v{vT+1}, 5, v{vLANE}")
    a(f"v_lshl_add_u32 v{vQO}, v{vT+1}, 8, v{vK8}")
    a(f"s_lshr_b32 s{sGRP}, s{sW}, 2")
    a(f"s_and_b32 s{sPR}, s{sW}, 3")
    a(f"s_mul_i32 s{sDS}, s{sHEAD}, {KV_HEAD}")
    a(f"s_add_u32 s{sDS}, s{sDS}, {KVB_OFF}")
    for j in range(5):
        a(f"s_add_u32 s{sT0}, s{sW}, {8*j}")
        a(f"s_lshl_b32 s{sDO+j}, s{sT0}, 10")
        a(f"s_cmp_ge_u32 s{sT0}, 20")
        a(f"s_cselect_b32 s{sT1}, {4*KV_CH - 20*1024}, 0")
        a(f"s_add_u32 s{sDO+j}, s{sDO+j}, s{sT1}")
    a(f"s_mul_i32 s{sQA}, s{sHEAD}, {Q_HEAD}")
    a(f"s_lshl_b32 s{sT1}, s{sQB}, 3")
    a(f"s_lshl_b32 s{sT2}, s{sPR}, 1")
    a(f"s_add_u32 s{sT1}, s{sT1}, s{sT2}")
    a(f"s_mul_i32 s{sT1}, s{sT1}, 1280")
    a(f"s_add_u32 s{sQA}, s{sQA}, s{sT1}")
    a(f"s_add_u32 s{sT0}, s{sQA}, {QB_OFF}")
    a(f"s_mov_b32 s{sDG}, 0")
    a("s_waitcnt lgkmcnt(0)")
    srd(a, SWS, 4, 5, WS_USED)
    def dma1(j):
        return [f"s_add_u32 m0, s{sDO+j}, s{sDG}",
                f"s_add_u32 s{sT3}, m0, s{sDS}",
                f"buffer_load_dwordx4 v{vL16}, s[{SWS}:{SWS+3}], s{sT3} offen lds"]
    def qloads(q16, q8, sreg, off):
        return [f"buffer_load_dwordx2 v[{q16}:{q16+1}], v{vQO}, s[{SWS}:{SWS+3}], s{sreg} offen offset:{off}",
                f"buffer_load_dwordx2 v[{q16+2}:{q16+3}], v{vQO}, s[{SWS}:{SWS+3}], s{sreg} offen offset:{off+512}",
                f"buffer_load_dwordx2 v[{q8}:{q8+1}], v{vK8}, s[{SWS}:{SWS+3}], s{sreg} offen offset:{off+1024}"]
    for j in range(5):
        for x in dma1(j): a(x)
    for sg in range(2):
        for x in qloads(vQ16[sg], vQ8[sg], sT0, sg * 1280): a(x)
    a(f"s_add_u32 s{sDG}, s{sDG}, {KV_CH}")
    NSELF = 0
    if "k2self" in OPT:
        a("s_getpc_b64 s[78:79]")
        a.lab("K2_PC0")
        a("s_sub_u32 s78, s78, K2_PC0-k2_attn_kernel")
        a("s_subb_u32 s79, s79, 0")
        a(f"v_lshlrev_b32 v{vT}, 7, v0")
        a(f"v_min_u32 v{vT}, K2_TEXT_SIZE - 128, v{vT}")
        a(f"global_load_dword v{vDUM}, v{vT}, s[78:79]")
        NSELF = 1
    stamp(a, 1)
    a(f"s_mov_b32 s{sVM}, 0x000fffff")
    a(f"s_mov_b32 s{sVM+1}, 0x000fffff")
    a(f"s_mov_b32 s{sLO}, -1")
    a(f"s_mov_b32 s{sLO+1}, 0")
    a(f"v_and_b32 v{vT}, 31, v{vLANE}")
    a(f"v_lshrrev_b32 v{vT+1}, 5, v{vLANE}")
    a(f"v_mul_u32_u24 v{vVA}, 20, v{vT+1}")
    a(f"v_add_u32 v{vVA}, v{vVA}, v{vT}")
    a(f"v_lshlrev_b32 v{vVA}, 4, v{vVA}")
    for sg in range(2):
        for i in range(0, 16, 2):
            a(f"v_mov_b64 v[{O[sg]+i}:{O[sg]+i+1}], 0")
    a(f"v_mov_b64 v[{vP+4}:{vP+5}], 0")
    a(f"v_mov_b64 v[{vP+6}:{vP+7}], 0")
    a(f"s_lshl_b32 s{sS0}, s{sQB}, 8")
    a(f"s_lshl_b32 s{sT0}, s{sPR}, 6")
    a(f"s_add_u32 s{sS0}, s{sS0}, s{sT0}")
    a(f"s_lshl_b32 s{sT0}, s{sGRP}, 5")
    a(f"s_add_u32 s{sS0}, s{sS0}, s{sT0}")
    a(f"s_mul_i32 s{sT0}, s{sGRP}, 1280")
    a(f"s_add_u32 s{sQA}, s{sQA}, s{sT0}")
    a(f"s_add_u32 s{sQA}, s{sQA}, {QA_OFF}")
    a(f"s_lshl_b32 s{sT0}, s{sHEAD}, 6")
    a(f"s_lshr_b32 s{sT1}, s{sS0}, 5")
    a(f"s_add_u32 s{sT0}, s{sT0}, s{sT1}")
    for k, dT in enumerate((-1, 0, 1)):
        a(f"s_add_i32 s{sT1}, s{sT0}, {dT}")
        a(f"s_ashr_i32 s{sT2}, s{sT1}, 3")
        a(f"s_mul_i32 s{sT2}, s{sT2}, {KV_CH}")
        a(f"s_and_b32 s{sT1}, s{sT1}, 7")
        a(f"s_mul_i32 s{sT1}, s{sT1}, 1280")
        a(f"s_add_u32 s{50+k}, s{sT1}, s{sT2}")
    a(f"s_add_u32 s50, s50, 128")
    a(f"s_sub_u32 s53, s51, 128")
    a(f"s_add_u32 s51, s51, 128")
    a(f"s_sub_u32 s52, s52, 128")
    a(f"s_mov_b32 s54, 0xffff")
    a(f"s_mov_b32 s55, 0xffff")
    a(f"v_add_u32 v{vAKO+1}, s53, v{vK8}")
    a(f"v_add_u32 v{vAKO+3}, s52, v{vK8}")
    a(f"s_mov_b64 exec, s[54:55]")
    a(f"v_add_u32 v{vAKO+1}, s50, v{vK8}")
    a(f"v_add_u32 v{vAKO+3}, s51, v{vK8}")
    a("s_mov_b64 exec, -1")
    a(f"v_sub_u32 v{vT+7}, v{vQO}, v{vK8}")
    a(f"v_add_u32 v{vAKO}, v{vAKO+1}, v{vT+7}")
    a(f"v_add_u32 v{vAKO+2}, v{vAKO+3}, v{vT+7}")
    a(f"s_lshl_b32 s{sT0}, s{sHEAD}, 7")
    a(f"s_lshr_b32 s{sT1}, s{sS0}, 4")
    a(f"s_add_u32 s{sT0}, s{sT0}, s{sT1}")
    for j in range(3):
        a(f"s_add_i32 s{sT1}, s{sT0}, {j-1}")
        a(f"s_max_i32 s{sT1}, s{sT1}, 0")
        a(f"s_lshr_b32 s{sT2}, s{sT1}, 4")
        a(f"s_mul_i32 s{sT2}, s{sT2}, {KV_CH}")
        a(f"s_and_b32 s{sT1}, s{sT1}, 15")
        a(f"s_mul_i32 s{sT1}, s{sT1}, 640")
        a(f"s_add_u32 s{sT1}, s{sT1}, s{sT2}")
        a(f"s_add_u32 s{sAV+j}, s{sT1}, 10240")
    a(f"s_lshl_b32 s{sGO}, s{sS0}, 2")
    a(f"s_add_u32 s{sGO}, s{sGO}, {G_OFF}")
    a(f"v_mov_b32 v{vT+2}, 0")
    a(f"v_mov_b32 v{vT+3}, {ONES:#x}")
    if "vones" in OPT:
        a(f"v_mov_b32 v{vT+2}, {ONES:#x}")
    else:
        a(f"v_and_b32 v{vT+4}, 27, v{vT}")
        a.l.pop()
        a(f"v_cmp_eq_u32 vcc, 20, v{vT}")
        a(f"v_cmp_eq_u32 s[38:39], 24, v{vT}")
        a("s_nop 1")
        a("s_or_b64 vcc, vcc, s[38:39]")
        a("s_nop 1")
        a(f"v_cndmask_b32 v{vT+2}, v{vT+2}, v{vT+3}, vcc")
    a(f"v_mov_b32 v{vT+3}, v{vT+2}")
    for i in range(0, 12, 2):
        a(f"v_mov_b64 v[{vAV+i}:{vAV+i+1}], v[{vT+2}:{vT+3}]")
    for i in range(0, 16, 2):
        a(f"v_mov_b64 v[{vV1+i}:{vV1+i+1}], v[{vT+2}:{vT+3}]")
    a(f"s_lshr_b32 s{sT0}, s{sS0}, 4")
    a(f"s_mul_i32 s{sT0}, s{sT0}, {40*1024}")
    a(f"s_mul_i32 s{sT1}, s{sHEAD}, {5*256}")
    a(f"s_add_u32 s{sT0}, s{sT0}, s{sT1}")
    a(f"v_bfe_u32 v{vT+2}, v{vLANE}, 4, 1")
    a(f"v_mul_u32_u24 v{vT+2}, {40*1024}, v{vT+2}")
    a(f"v_and_b32 v{vT+3}, 15, v{vLANE}")
    a(f"v_lshl_add_u32 v{vT+3}, v{vT+3}, 4, v{vT+2}")
    a(f"v_lshrrev_b32 v{vT+2}, 5, v{vLANE}")
    a(f"v_lshl_add_u32 v{vT+3}, v{vT+2}, 8, v{vT+3}")
    a(f"v_add_u32 v{vOSA}, s{sT0}, v{vT+3}")
    a(f"s_getpc_b64 s[56:57]")
    a.lab("K2_PC")
    a(f"s_add_u32 s56, s56, K2_TABLE-K2_PC")
    a(f"s_addc_u32 s57, s57, 0")
    if not FUSE:
        a("s_lshr_b32 s36, s2, 3")
        a("s_lshl_b32 s36, s36, 3")
        a(f"s_add_u32 s36, s36, s{sW}")
        a("s_mul_i32 s36, s36, 50")
        a(f"v_min_u32 v{vPFA}, 49, v{vLANE}")
        a(f"v_add_u32 v{vPFA}, s36, v{vPFA}")
        a(f"v_lshlrev_b32 v{vPFA}, 7, v{vPFA}")
        a(f"v_add_u32 v{vPFA}, {WT_OFF}, v{vPFA}")
    if FUSE:
        a(f"s_mov_b32 s64, s{sHEAD}")
        a(f"s_mov_b32 s65, s{sQB}")
        a(f"s_mul_i32 s{sWS0}, s65, {200*1024}")
        a(f"s_lshl_b32 s{sT0}, s{sW}, 10")
        a(f"s_add_u32 s{sWS0}, s{sWS0}, s{sT0}")
        a(f"s_add_u32 s{sWS0}, s{sWS0}, {WT_OFF}")
        a(f"s_mov_b32 s{sWS}, s{sWS0}")
        a(f"s_mov_b32 s{sWL}, 0")
        a(f"s_mov_b32 s{sWC}, 2")
    a(f"s_mov_b32 s{sPASS}, 0")
    a(f"s_mul_i32 s37, s{sGRP}, {4*KV_CH}")
    stamp(a, 2)
    a(f"s_waitcnt vmcnt({NSELF})")
    a(f"s_mov_b64 exec, s[{sLO}:{sLO+1}]")
    a(f"s_not_b64 exec, exec")
    for sg in range(2):
        a(f"v_mov_b32 v{vQ8[sg]}, 0")
        a(f"v_mov_b32 v{vQ8[sg]+1}, 0")
    a("s_mov_b64 exec, -1")
    a("s_barrier")
    stamp(a, 3)
    def rdK16(dst, rel_chunk, tt):
        base = vKe if tt % 2 == 0 else vKo
        o0 = rel_chunk * 40 + (tt >> 1) * 5
        return f"ds_read2st64_b64 v[{dst}:{dst+3}], v{base} offset0:{o0} offset1:{o0+1}"
    def rdK4(dst, rel_chunk, tt):
        return f"ds_read_b64 v[{dst}:{dst+1}], v{vK4c} offset:{rel_chunk*KV_CH + tt*1280 + 1024}"
    def voff(g):
        return (g // 16) * KV_CH + (g % 16) * 640
    def setbases():
        a(f"v_add_u32 v{vKe}, s37, v{vQO}")
        a(f"v_add_u32 v{vKo}, 1280, v{vKe}")
        a(f"v_add_u32 v{vK4c}, s37, v{vK8}")
        a(f"v_add_u32 v{vVc}, s37, v{vVA}")
        a(f"v_add_u32 v{vVc}, 10240, v{vVc}")
    def qk(dst, ka, kb, sg, c):
        return [f"v_mfma_f32_32x32x16_bf16 v[{dst}:{dst+15}], v[{ka}:{ka+3}], v[{vQ16[sg]}:{vQ16[sg]+3}], {c}",
                f"v_mfma_f32_32x32x8_bf16 v[{dst}:{dst+15}], v[{kb}:{kb+1}], v[{vQ8[sg]}:{vQ8[sg]+1}], v[{dst}:{dst+15}]"]
    def rowmax(m, regs, first=None):
        if first is None:
            a(f"v_max3_f32 v{m}, v{regs[0]}, v{regs[1]}, v{regs[2]}")
            rest = regs[3:]
        else:
            rest = regs
        i = 0
        while i + 1 < len(rest):
            a(f"v_max3_f32 v{m}, v{m}, v{rest[i]}, v{rest[i+1]}")
            i += 2
        if i < len(rest):
            a(f"v_max_f32 v{m}, v{m}, v{rest[i]}")
    a.lab("K2_START")
    setbases()
    a(rdK16(vKA, 0, 0))
    a(rdK4(vKB, 0, 0))
    a(f"s_mov_b64 exec, s[{sVM}:{sVM+1}]")
    a(f"ds_read_b128 v[{vV1}:{vV1+3}], v{vVc}")
    a("s_mov_b64 exec, -1")
    a(f"s_cmp_lg_u32 s{sPASS}, 0")
    a("s_cbranch_scc1 K2_HAVEM")
    a("s_waitcnt lgkmcnt(0)")
    for sg in range(2):
        for x in qk(S[sg], vKA, vKB, sg, "0"): a(x)
    a("s_nop 9")
    for sg in range(2):
        m = vT + 2 * sg
        rowmax(m, [S[sg] + i for i in range(16)])
        a(f"v_mov_b32 v{m+1}, v{m}")
    a("s_nop 1")
    for sg in range(2):
        m = vT + 2 * sg
        a(f"v_permlane32_swap_b32 v{m}, v{m+1}")
    a("s_nop 1")
    for sg in range(2):
        m = vT + 2 * sg
        a(f"v_max_f32 v{m}, v{m}, v{m+1}")
        a(f"v_sub_f32 v{NEG[sg]}, 0, v{m}")
        a(f"v_sub_f32 v{NEG[sg]+1}, 0, v{m}")
        for i in range(2, 16, 2):
            a(f"v_mov_b64 v[{NEG[sg]+i}:{NEG[sg]+i+1}], v[{NEG[sg]}:{NEG[sg]+1}]")
    for i in range(0, 16, 2):
        a(f"v_pk_add_f32 v[{S[0]+i}:{S[0]+i+1}], v[{S[0]+i}:{S[0]+i+1}], v[{NEG[0]}:{NEG[0]+1}]")
    a(f"s_mov_b32 s{sC}, 0")
    a("s_branch K2_GO")
    a.lab("K2_HAVEM")
    a("s_waitcnt lgkmcnt(0)")
    a("s_nop 1")
    for x in qk(S[0], vKA, vKB, 0, f"v[{NEG[0]}:{NEG[0]+15}]"): a(x)
    a(f"s_mov_b32 s{sC}, 0")
    a("s_nop 15")
    a.lab("K2_GO")
    stamp(a, 4)
    aloads = [
        qloads(vQA16, vQA8, sQA, 0),
        [f"buffer_load_dwordx2 v[{vAK}:{vAK+1}], v{vAKO}, s[{SWS}:{SWS+3}], 0 offen",
         f"buffer_load_dwordx2 v[{vAK+2}:{vAK+3}], v{vAKO}, s[{SWS}:{SWS+3}], 0 offen offset:512",
         f"buffer_load_dwordx2 v[{vAK+8}:{vAK+9}], v{vAKO+1}, s[{SWS}:{SWS+3}], 0 offen offset:1024"],
        [f"buffer_load_dwordx2 v[{vAK+4}:{vAK+5}], v{vAKO+2}, s[{SWS}:{SWS+3}], 0 offen",
         f"buffer_load_dwordx2 v[{vAK+6}:{vAK+7}], v{vAKO+2}, s[{SWS}:{SWS+3}], 0 offen offset:512",
         f"buffer_load_dwordx2 v[{vAK+10}:{vAK+11}], v{vAKO+3}, s[{SWS}:{SWS+3}], 0 offen offset:1024"],
        [f"s_mov_b64 exec, s[{sVM}:{sVM+1}]"] +
        [f"buffer_load_dwordx4 v[{vAV+4*j}:{vAV+4*j+3}], v{vVA}, s[{SWS}:{SWS+3}], s{sAV+j} offen" for j in range(3)] +
        ["s_mov_b64 exec, -1"],
        [f"global_load_dwordx4 v[{vMX+4*j}:{vMX+4*j+3}], v{vL16}, s[56:57] offset:{j*1024}" for j in range(4)] +
        [f"v_add_u32 v{vT+7}, 4096, v{vL16}"] +
        [f"global_load_dwordx4 v[{vMY+4*j}:{vMY+4*j+3}], v{vT+7}, s[56:57] offset:{j*1024}" for j in range(2)] +
        [f"v_lshrrev_b32 v{vT+7}, 1, v{vK8}",
         f"buffer_load_dword v{vGATE}, v{vT+7}, s[{SWS}:{SWS+3}], s{sGO} offen"] +
        ([] if FUSE else [f"buffer_load_dword v{vDUM}, v{vPFA}, s[{SWS}:{SWS+3}], 0 offen"]),
    ]
    ool = []
    ptile = optval("ptile", 6)
    WIN = optval("win", 2)
    def wdma(j, p_expr_sgpr):
        return [f"s_add_u32 m0, s{sDO+j}, s{p_expr_sgpr}",
                f"s_add_u32 s{sT3}, s{sWS}, {j*8192}",
                f"buffer_load_dwordx4 v{vL16}, s[{SWS}:{SWS+3}], s{sT3} offen lds"]
    def chunk_body(c):
        extras = {}
        if c is not None:
            if c < 3:
                for j in range(5):
                    extras.setdefault((j, 1), []).extend(dma1(j) + ([f"s_add_u32 s{sDG}, s{sDG}, {KV_CH}"] if j == 4 else []))
            else:
                flat = [x for x in aloads]
                for j in range(5):
                    extras.setdefault((j, 1), []).extend(flat[j])
            if FUSE and WIN >= 2 and c >= 2:
                for j in range(5):
                    extras.setdefault((j + 1, 0), []).extend(wdma(j, sWL) +
                        ([f"s_add_u32 s{sWL}, s{sWL}, {KV_CH}", f"s_add_u32 s{sWS}, s{sWS}, {K3_BUF}"] if j == 4 else []))
        for tt in range(8):
            for sg in range(2):
                cur = S[sg]; nsg = sg ^ 1; nxt = S[nsg]
                nt = tt if sg == 0 else tt + 1
                ka = vKA + 4 * (nt & 1); kb = vKB + 2 * (nt & 1)
                if sg == 0 and tt == 7 and c is not None:
                    if c < 3:
                        a("s_waitcnt vmcnt(0)")
                        a("s_barrier")
                    elif FUSE and WIN == 3:
                        a("s_barrier")
                        for j in range(5):
                            for x in wdma(j, sWL): a(x)
                        a(f"s_add_u32 s{sWL}, s{sWL}, {KV_CH}")
                        a(f"s_add_u32 s{sWS}, s{sWS}, {K3_BUF}")
                    if ptile >= 0 and c < 3: a("s_setprio 2")
                lastp = optval("lastp", 12)
                if c is not None and c < 3 and sg == 0 and tt == ptile:
                    a("s_setprio 0")
                if c == 3 and 2 * tt + sg == lastp:
                    a(f"s_cmp_lg_u32 s{sGRP}, 0")
                    a("s_cbranch_scc1 K2_KEEPP")
                    a("s_setprio 0")
                    a.lab("K2_KEEPP")
                if sg == 1:
                    a("s_waitcnt lgkmcnt(0)")
                q = qk(nxt, ka, kb, nsg, f"v[{NEG[nsg]}:{NEG[nsg]+15}]")
                a(q[0])
                if sg == 0:
                    n1 = tt + 1
                    a(rdK16(vKA + 4 * (n1 & 1), n1 // 8, n1 % 8))
                    a(rdK4(vKB + 2 * (n1 & 1), n1 // 8, n1 % 8))
                for i in range(0, 4):
                    a(f"v_exp_f32 v{cur+i}, v{cur+i}")
                pt = tt - 1 if sg == 0 else tt
                v2p = vV2 + 4 * (pt & 1)
                a(f"v_mfma_f32_32x32x16_bf16 v[{O[nsg]}:{O[nsg]+15}], v[{v2p}:{v2p+3}], v[{vP+4}:{vP+7}], v[{O[nsg]}:{O[nsg]+15}]")
                if sg == 0:
                    a(f"s_mov_b64 exec, s[{sVM}:{sVM+1}]")
                    d = vV2 + 4 * (tt & 1)
                    a(f"ds_read_b128 v[{d}:{d+3}], v{vVc} offset:{voff(2*tt+1)}")
                    d = vV1 + 4 * ((tt + 1) & 1)
                    a(f"ds_read_b128 v[{d}:{d+3}], v{vVc} offset:{voff(2*tt+2)}")
                    a("s_mov_b64 exec, -1")
                for x in extras.get((tt, sg), []): a(x)
                for i in range(4, 8):
                    a(f"v_exp_f32 v{cur+i}, v{cur+i}")
                for i in range(4):
                    a(f"v_cvt_pk_bf16_f32 v{vP+i}, v{cur+2*i}, v{cur+2*i+1}")
                a(q[1])
                for i in range(8, 12):
                    a(f"v_exp_f32 v{cur+i}, v{cur+i}")
                v1 = vV1 + 4 * (tt & 1)
                a(f"v_mfma_f32_32x32x16_bf16 v[{O[sg]}:{O[sg]+15}], v[{v1}:{v1+3}], v[{vP}:{vP+3}], v[{O[sg]}:{O[sg]+15}]")
                for i in range(12, 16):
                    a(f"v_exp_f32 v{cur+i}, v{cur+i}")
                for i in range(4, 8):
                    a(f"v_cvt_pk_bf16_f32 v{vP+i}, v{cur+2*i}, v{cur+2*i+1}")
        for r in (vKe, vKo, vK4c, vVc):
            a(f"v_add_u32 v{r}, {KV_CH}, v{r}")
    a(f"s_cmp_lg_u32 s{sPASS}, 0")
    a("s_cbranch_scc1 K2_RLOOP")
    for c in range(4):
        if "chunkstamp" in OPT:
            a("s_memtime s[78:79]")
            a("s_waitcnt lgkmcnt(0)")
            a(f"v_writelane_b32 v247, s78, {c}")
        chunk_body(c)
    a.lab("K2_LOOPEND")
    stamp(a, 5)
    a(f"v_mfma_f32_32x32x16_bf16 v[{O[1]}:{O[1]+15}], v[{vV2+4}:{vV2+7}], v[{vP+4}:{vP+7}], v[{O[1]}:{O[1]+15}]")
    a("s_setprio 0")
    a(f"s_mov_b32 s{sFAIL}, 0")
    a(f"s_cmp_lg_u32 s{sPASS}, 0")
    a("s_cbranch_scc1 K2_XCHG")
    a(f"s_waitcnt vmcnt({(5 if WIN == 3 else 0) if FUSE else 1}) lgkmcnt(0)")
    a(f"s_mov_b64 exec, s[{sLO}:{sLO+1}]")
    a(f"s_not_b64 exec, exec")
    a(f"v_mov_b32 v{vQA8}, 0")
    a(f"v_mov_b32 v{vQA8+1}, 0")
    a("s_mov_b64 exec, -1")
    a(f"s_cmp_lg_u32 s{sS0}, 0")
    a("s_cbranch_scc1 K2_NOFIX")
    for i in range(8):
        a(f"v_mov_b32 v{vMX+i}, {f2u(NEGBIG):#x}")
    a("s_nop 1")
    a.lab("K2_NOFIX")
    if "ts2" in OPT: stamp(a, 4)
    a(f"v_mfma_f32_32x32x16_bf16 v[{vS0}:{vS0+15}], v[{vAK}:{vAK+3}], v[{vQA16}:{vQA16+3}], v[{vMX}:{vMX+15}]")
    a(f"v_mfma_f32_32x32x16_bf16 v[{vS1}:{vS1+15}], v[{vAK+4}:{vAK+7}], v[{vQA16}:{vQA16+3}], v[{vMY}:{vMY+15}]")
    a(f"v_mfma_f32_32x32x8_bf16 v[{vS0}:{vS0+15}], v[{vAK+8}:{vAK+9}], v[{vQA8}:{vQA8+1}], v[{vS0}:{vS0+15}]")
    a(f"v_mfma_f32_32x32x8_bf16 v[{vS1}:{vS1+15}], v[{vAK+10}:{vAK+11}], v[{vQA8}:{vQA8+1}], v[{vS1}:{vS1+15}]")
    a(f"v_mov_b64 v[{vT+2}:{vT+3}], 0")
    a(f"v_mov_b64 v[{vT+4}:{vT+5}], 0")
    a(f"v_mov_b32 v{vT+1}, {f2u(2.0**64):#x}")
    a("s_nop 3")
    for i in range(0, 12, 2):
        for sg in range(2):
            a(f"v_pk_fma_f32 v[{vT+2}:{vT+3}], v[{O[sg]+i}:{O[sg]+i+1}], v[{vT+4}:{vT+5}], v[{vT+2}:{vT+3}]")
    a(f"v_add_f32 v{vT}, v{O[0]+12}, v{O[1]+12}")
    a(f"v_add_f32 v{vT+2}, v{vT+2}, v{vT+3}")
    a(f"v_add_f32 v{vT}, v{vT}, v{vT+2}")
    a(f"v_cmp_nlt_f32 vcc, v{vT}, v{vT+1}")
    a(f"v_mov_b32 v{O[0]+13}, v{NEG[0]}")
    a(f"v_mov_b32 v{O[1]+13}, v{NEG[1]}")
    a("s_nop 1")
    a("s_cmp_lg_u64 vcc, 0")
    a(f"s_cselect_b32 s{sFAIL}, 1, 0")
    if "forcefail" in OPT:
        a(f"s_cmp_eq_u32 s{sW}, 3")
        a(f"s_cselect_b32 s{sFAIL}, 1, s{sFAIL}")
    regs = [vS0 + i for i in range(16)] + [vS1 + i for i in range(8)]
    m = vT + 6
    rowmax(m, regs)
    a(f"v_mov_b32 v{m+1}, v{m}")
    a("s_nop 1")
    a(f"v_permlane32_swap_b32 v{m}, v{m+1}")
    a("s_nop 1")
    a(f"v_max_f32 v{m}, v{m}, v{m+1}")
    a(f"v_sub_f32 v{vKo}, 0, v{m}")
    a(f"v_sub_f32 v{vK4c}, 0, v{m}")
    for i in range(0, 24, 2):
        a(f"v_pk_add_f32 v[{regs[i]}:{regs[i]+1}], v[{regs[i]}:{regs[i]+1}], v[{vKo}:{vK4c}]")
    for i in range(24):
        a(f"v_exp_f32 v{regs[i]}, v{regs[i]}")
    a("s_nop 0")
    for i in range(12):
        a(f"v_cvt_pk_bf16_f32 v{vP+i}, v{regs[2*i]}, v{regs[2*i+1]}")
    OA = NEG[0]
    a("s_nop 1")
    for j in range(3):
        c = "0" if j == 0 else f"v[{OA}:{OA+15}]"
        a(f"v_mfma_f32_32x32x16_bf16 v[{OA}:{OA+15}], v[{vAV+4*j}:{vAV+4*j+3}], v[{vP+4*j}:{vP+4*j+3}], {c}")
    def rowsum(dst, acc):
        a(f"v_mov_b32 v{dst}, v{acc+12}")
        a(f"s_not_b64 exec, s[{sLO}:{sLO+1}]")
        a(f"v_mov_b32 v{dst}, v{acc+8}")
        a("s_mov_b64 exec, -1")
    OFL = " sc1" if FUSE else STORE_FLAGS
    def ostore(br, src):
        a("s_nop 1")
        a(f"v_permlane32_swap_b32 v{src}, v{src+2}")
        a(f"v_permlane32_swap_b32 v{src+1}, v{src+3}")
        a(f"s_mov_b32 s{sT1}, {O_OFF}")
        a(f"buffer_store_dwordx4 v[{src}:{src+3}], v{vOSA}, s[{SWS}:{SWS+3}], s{sT1} offen offset:{br*512}{OFL}")
    a("s_nop 15")
    rowsum(vT + 6, OA)
    a(f"v_rcp_f32 v{vT+6}, v{vT+6}")
    a("s_nop 0")
    a(f"v_mul_f32 v{vT+6}, v{vT+6}, v{vGATE}")
    for i in range(0, 12, 2):
        a(f"v_pk_mul_f32 v[{OA+i}:{OA+i+1}], v[{OA+i}:{OA+i+1}], v[{vT+6}:{vT+7}] op_sel_hi:[1,0]")
    for i in range(4):
        a(f"v_cvt_pk_bf16_f32 v{vP+i}, v{OA+2*i}, v{OA+2*i+1}")
    for i in range(2):
        a(f"v_cvt_pk_bf16_f32 v{vOB+4+i}, v{OA+8+2*i}, v{OA+9+2*i}")
    ostore(0, vP)
    a("s_branch K2_XCHG1")
    a.lab("K2_XCHG")
    a("s_nop 15")
    a(f"v_mov_b32 v{O[0]+13}, v{NEG[0]}")
    a(f"v_mov_b32 v{O[1]+13}, v{NEG[1]}")
    a.lab("K2_XCHG1")
    a(f"s_mul_i32 s{sT0}, s{sGRP}, {4*KV_CH}")
    a(f"s_lshl_b32 s{sT2}, s{sPR}, 12")
    a(f"s_add_u32 s{sT2}, s{sT2}, {3*KV_CH}")
    a(f"s_add_u32 s{sT0}, s{sT0}, s{sT2}")
    a(f"v_add_u32 v{vT}, s{sT0}, v{vL16}")
    a(f"s_xor_b32 s{sT0}, s{sGRP}, 1")
    a(f"s_mul_i32 s{sT0}, s{sT0}, {4*KV_CH}")
    a(f"s_add_u32 s{sT0}, s{sT0}, s{sT2}")
    a(f"v_add_u32 v{vT+1}, s{sT0}, v{vL16}")
    a(f"s_lshl_b32 s{sT0}, s{sW}, 2")
    a(f"s_add_u32 s{sT0}, s{sT0}, {3*KV_CH + 16384}")
    a(f"v_mov_b32 v{vT+2}, s{sT0}")
    a(f"v_mov_b32 v{vT+3}, s{sFAIL}")
    if "ts2" in OPT: stamp(a, 1)
    a("s_barrier")
    if "ts2" in OPT: stamp(a, 2)
    a(f"s_cmp_eq_u32 s{sGRP}, 0")
    a("s_cbranch_scc1 K2_XA")
    for j in range(4):
        a(f"ds_write_b128 v{vT}, v[{O[0]+4*j}:{O[0]+4*j+3}] offset:{j*1024}")
    a("s_branch K2_XB")
    a.lab("K2_XA")
    for j in range(4):
        a(f"ds_write_b128 v{vT}, v[{O[1]+4*j}:{O[1]+4*j+3}] offset:{j*1024}")
    a.lab("K2_XB")
    a(f"ds_write_b32 v{vT+2}, v{vT+3}")
    a(f"v_mov_b32 v{vT+2}, {3*KV_CH + 16384}")
    a("s_waitcnt lgkmcnt(0)")
    a("s_barrier")
    if "ts2" in OPT: stamp(a, 3)
    a(f"ds_read_b128 v[{vT+4}:{vT+7}], v{vT+2}")
    a(f"ds_read_b128 v[{vS0}:{vS0+3}], v{vT+2} offset:16")
    a(f"s_cmp_eq_u32 s{sGRP}, 0")
    a("s_cbranch_scc1 K2_XC")
    for j in range(4):
        a(f"ds_read_b128 v[{O[0]+4*j}:{O[0]+4*j+3}], v{vT+1} offset:{j*1024}")
    a("s_branch K2_XD")
    a.lab("K2_XC")
    for j in range(4):
        a(f"ds_read_b128 v[{O[1]+4*j}:{O[1]+4*j+3}], v{vT+1} offset:{j*1024}")
    a.lab("K2_XD")
    a("s_waitcnt lgkmcnt(4)")
    a(f"v_or3_b32 v{vT+4}, v{vT+4}, v{vT+5}, v{vT+6}")
    a(f"v_or3_b32 v{vT+4}, v{vT+4}, v{vT+7}, v{vS0}")
    a(f"v_or3_b32 v{vT+4}, v{vT+4}, v{vS0+1}, v{vS0+2}")
    a(f"v_or_b32 v{vT+4}, v{vT+4}, v{vS0+3}")
    a("s_nop 0")
    a(f"v_readfirstlane_b32 s{sT0}, v{vT+4}")
    a("s_nop 3")
    a(f"s_cmp_lg_u32 s{sT0}, 0")
    a("s_cbranch_scc1 K2_REDO")
    a("s_waitcnt lgkmcnt(0)")
    a(f"v_sub_f32 v{vT+2}, v{O[1]+13}, v{O[0]+13}")
    a(f"v_sub_f32 v{vT+3}, 0, v{vT+2}")
    a(f"v_min_f32 v{vT+2}, 0, v{vT+2}")
    a(f"v_min_f32 v{vT+3}, 0, v{vT+3}")
    a(f"v_exp_f32 v{vT+2}, v{vT+2}")
    a(f"v_exp_f32 v{vT+3}, v{vT+3}")
    rowsum(vT + 4, O[0])
    rowsum(vT + 5, O[1])
    a(f"v_mul_f32 v{vT+4}, v{vT+4}, v{vT+2}")
    a(f"v_fmac_f32 v{vT+4}, v{vT+5}, v{vT+3}")
    a(f"v_rcp_f32 v{vT+4}, v{vT+4}")
    a(f"v_sub_f32 v{vT+5}, 1.0, v{vGATE}")
    a("s_nop 0")
    a(f"v_mul_f32 v{vT+4}, v{vT+4}, v{vT+5}")
    a(f"v_mul_f32 v{vT+2}, v{vT+2}, v{vT+4}")
    a(f"v_mul_f32 v{vT+3}, v{vT+3}, v{vT+4}")
    for i in range(0, 12, 2):
        a(f"v_pk_mul_f32 v[{O[0]+i}:{O[0]+i+1}], v[{O[0]+i}:{O[0]+i+1}], v[{vT+2}:{vT+3}] op_sel_hi:[1,0]")
        a(f"v_pk_fma_f32 v[{O[0]+i}:{O[0]+i+1}], v[{O[1]+i}:{O[1]+i+1}], v[{vT+2}:{vT+3}], v[{O[0]+i}:{O[0]+i+1}] op_sel:[0,1,0] op_sel_hi:[1,1,1]")
    for i in range(4):
        a(f"v_cvt_pk_bf16_f32 v{vOB+i}, v{O[0]+2*i}, v{O[0]+2*i+1}")
    for i in range(2):
        a(f"v_cvt_pk_bf16_f32 v{vOB+6+i}, v{O[0]+8+2*i}, v{O[0]+9+2*i}")
    ostore(1, vOB)
    a(f"s_mov_b64 exec, s[{sLO}:{sLO+1}]")
    a(f"buffer_store_dwordx4 v[{vOB+4}:{vOB+7}], v{vOSA}, s[{SWS}:{SWS+3}], s{sT1} offen offset:1024{OFL}")
    a("s_mov_b64 exec, -1")
    if FUSE:
        if WIN:
            a(f"s_cmp_eq_u32 s{sPASS}, 0")
            a("s_cbranch_scc1 K2_WOK")
            a("s_barrier")
            a(f"s_mov_b32 s{sWL}, 0")
            a(f"s_mov_b32 s{sWS}, s{sWS0}")
            for p in range(WIN):
                for j in range(5):
                    for x in wdma(j, sWL): a(x)
                a(f"s_add_u32 s{sWL}, s{sWL}, {KV_CH}")
                a(f"s_add_u32 s{sWS}, s{sWS}, {K3_BUF}")
            a("s_waitcnt vmcnt(0)")
            a.lab("K2_WOK")
        stamp(a, 6)
        NPRE = 0
        if WIN == 3:
            a("s_barrier")
            a(f"s_mov_b32 s{sWL}, {3*KV_CH}")
            for j in range(5):
                for x in wdma(j, sWL): a(x)
            NPRE = 5
        elif WIN == 2:
            a(f"s_mov_b32 s{sWL}, {2*KV_CH}")
            for j in range(5):
                for x in wdma(j, sWL): a(x)
            a(f"s_add_u32 s{sWS}, s{sWS}, {K3_BUF}")
            NPRE = 5
        a(f"s_waitcnt vmcnt({NPRE})")
        if "tailstamps" in OPT: stamp(a, 1)
        a("s_barrier")
        if "tailstamps" in OPT: stamp(a, 2)
        a(f"s_cmp_lg_u32 s{sW}, 0")
        a("s_cbranch_scc1 K2_NOPOLL0")
        a(f"s_lshl_b32 s{sT0}, s{sQB}, 12")
        a(f"s_add_u32 s{sT0}, s{sT0}, {FL_OFF}")
        a(f"s_mov_b64 exec, s[{sLO}:{sLO+1}]")
        a(f"v_mov_b32 v{vT}, 1")
        a(f"v_lshlrev_b32 v{vT+5}, 7, v{vLANE}")
        a(f"buffer_atomic_add v{vT}, v{vT+5}, s[{SWS}:{SWS+3}], s{sT0} offen")
        a("s_mov_b64 exec, -1")
        a.lab("K2_NOPOLL0")
        WPOST = 4 if WIN == 3 else optval("wpost", 4)
        if WIN != 3:
            W0P = 3 if WIN == 2 else WIN
            a(f"s_mov_b32 s{sWL}, {W0P*KV_CH}")
            for p in range(W0P, WPOST):
                for j in range(5):
                    for x in wdma(j, sWL): a(x)
                a(f"s_add_u32 s{sWL}, s{sWL}, {KV_CH}")
                a(f"s_add_u32 s{sWS}, s{sWS}, {K3_BUF}")
        bufss = [((ss // 2) % 4) * KV_CH + (ss & 1) * 4 * KV_CH for ss in range(10)]
        pc = proj_core(a, "K2", SWS, 68, sW, 64, 65, 50, bufss,
                       lambda p, j, sM0: f"s_add_u32 m0, s{sDO+j}, {(p % 4)*KV_CH}", ({1: [4]} if WPOST == 4 else {0: [3], 1: [4]}), optval("k2opre", 4))
        pc.setup()
        srd(a, 68, 60, 61, 2048 * 1280)
        pc.addr_setup(0)
        if "tailstamps" in OPT: stamp(a, 3)
        a(f"s_cmp_lg_u32 s{sW}, 0")
        a("s_cbranch_scc1 K2_NOPOLL")
        a(f"s_lshl_b32 s{sT0}, s{sHEAD}, 3")
        a(f"s_add_u32 s{sT0}, s{sT0}, s{sQB}")
        a(f"s_lshl_b32 s{sT0}, s{sT0}, 7")
        a(f"s_add_u32 s{sT0}, s{sT0}, {FL_OFF}")
        a("s_mov_b64 exec, 1")
        a(f"v_mov_b32 v{vT+5}, 0")
        a(f"s_mov_b32 s{sT1}, 0")
        a.lab("K2_POLL")
        a(f"buffer_load_dword v{vT+4}, v{vT+5}, s[{SWS}:{SWS+3}], s{sT0} offen sc1")
        a("s_waitcnt vmcnt(0)")
        a(f"v_readfirstlane_b32 s{sT2}, v{vT+4}")
        a(f"s_add_u32 s{sT1}, s{sT1}, 1")
        a(f"s_cmp_ge_u32 s{sT2}, 32")
        a("s_cbranch_scc1 K2_POLLED")
        a(f"s_sleep {optval('psleep', 2)}")
        a(f"s_cmp_lt_u32 s{sT1}, 0x40000")
        a("s_cbranch_scc1 K2_POLL")
        a.lab("K2_POLLED")
        a("s_waitcnt vmcnt(0)")
        if "tailstamps" in OPT:
            stamp(a, 4)
        a("s_mov_b64 exec, -1")
        a.lab("K2_NOPOLL")
        a("s_waitcnt vmcnt(0)")
        a("s_barrier")
        stamp(a, 7)
        pc.body([("o", 0), ("o", 1), ("o", 2), ("o", 3)])
        if PROF: a("s_waitcnt vmcnt(0)")
        stamp(a, 8)
        stamp_flush(a, 1, 9, SWS, sW, vT)
        if "dbgtime" in OPT:
            a("s_cmp_lg_u32 s2, 1")
            a("s_cbranch_scc1 K2_DBGX")
            a("s_cmp_lg_u32 s12, 0")
            a("s_cbranch_scc1 K2_DBGX")
            a("s_load_dwordx2 s[92:93], s[0:1], 64")
            a("s_waitcnt vmcnt(0)")
            a("s_memrealtime s[94:95]")
            a("s_memtime s[96:97]")
            a("s_waitcnt lgkmcnt(0)")
            srd(a, 84, 92, 93, 256)
            a("s_sub_u32 s96, s96, s88")
            a("s_sub_u32 s94, s94, s90")
            a("s_mov_b64 exec, 1")
            a("v_mov_b32 v24, 0")
            a("v_mov_b32 v20, 222")
            a("v_mov_b32 v21, s96")
            a("v_mov_b32 v22, s94")
            a("v_mov_b32 v23, s90")
            a("buffer_store_dwordx4 v[20:23], v24, s[84:87], 0 offen")
            a("s_mov_b64 exec, -1")
            a.lab("K2_DBGX")
        a("s_endpgm")
    else:
        a("s_branch K2_DONE")
    a.lab("K2_REDO")
    a("s_waitcnt vmcnt(0) lgkmcnt(0)")
    a("s_barrier")
    a(f"s_mov_b32 s{sDG}, 0")
    for p in range(4):
        for j in range(5):
            for x in dma1(j): a(x)
        a(f"s_add_u32 s{sDG}, s{sDG}, {KV_CH}")
    a(f"s_mov_b32 s{sPASS}, 1")
    if FUSE: a(f"s_mov_b32 s{sWC}, 99")
    a(f"v_mov_b32 v{vT}, {f2u(-3.0e38):#x}")
    a(f"v_mov_b32 v{vT+2}, {f2u(-3.0e38):#x}")
    setbases()
    a(f"s_mov_b32 s{sC}, 0")
    a("s_waitcnt vmcnt(0)")
    a("s_barrier")
    a.lab("K2_MAXLOOP")
    for tt in range(8):
        a(rdK16(vKA, 0, tt))
        a(rdK4(vKB, 0, tt))
        a("s_waitcnt lgkmcnt(0)")
        for sg in range(2):
            for x in qk(S[sg], vKA, vKB, sg, "0"): a(x)
        a("s_nop 15")
        for sg in range(2):
            rowmax(vT + 2 * sg, [S[sg] + i for i in range(16)], first=True)
    for r in (vKe, vKo, vK4c):
        a(f"v_add_u32 v{r}, {KV_CH}, v{r}")
    a(f"s_add_u32 s{sC}, s{sC}, 1")
    a(f"s_cmp_lt_u32 s{sC}, 4")
    a("s_cbranch_scc1 K2_MAXLOOP")
    for sg in range(2):
        a(f"v_mov_b32 v{vT+2*sg+1}, v{vT+2*sg}")
    a("s_nop 1")
    for sg in range(2):
        a(f"v_permlane32_swap_b32 v{vT+2*sg}, v{vT+2*sg+1}")
    a("s_nop 1")
    for sg in range(2):
        a(f"v_max_f32 v{vT+2*sg}, v{vT+2*sg}, v{vT+2*sg+1}")
        for i in range(16):
            a(f"v_sub_f32 v{NEG[sg]+i}, 0, v{vT+2*sg}")
            a(f"v_mov_b32 v{O[sg]+i}, 0")
    for i in range(4):
        a(f"v_mov_b32 v{vP+4+i}, 0")
    a("s_branch K2_START")
    a.lab("K2_RLOOP")
    chunk_body(None)
    a(f"s_add_u32 s{sC}, s{sC}, 1")
    a(f"s_cmp_lt_u32 s{sC}, 4")
    a("s_cbranch_scc1 K2_RLOOP")
    a("s_branch K2_LOOPEND")
    a.lab("K2_DONE")
    stamp(a, 6)
    if PROF: a("s_waitcnt vmcnt(0)")
    stamp(a, 7)
    if "chunkstamp" in OPT:
        a(f"s_lshl_b32 s97, s2, 3")
        a(f"s_add_u32 s97, s97, s{sW}")
        a(f"s_lshl_b32 s97, s97, 6")
        a(f"s_add_u32 s97, s97, {PROF_OFF + 3 * 0x100000}")
        a(f"v_lshlrev_b32 v{vT}, 2, v{vLANE}")
        a("s_mov_b64 exec, 0xff")
        a(f"buffer_store_dword v247, v{vT}, s[{SWS}:{SWS+3}], s97 offen")
        a("s_mov_b64 exec, -1")
    stamp_flush(a, 1, 8, SWS, sW, vT)
    a.lab("K2_END")
    a("s_endpgm")
    a.raw(".p2align 4")
    a.lab("K2_TABLE")
    tab = mask_table()
    for i in range(0, len(tab), 8):
        a.raw("    .long " + ", ".join(f"{x:#x}" for x in tab[i:i+8]))
    a.lab("K2_TEXT_END")
    return name, NV

K3_BUF = 40 * 1024
K3_NBUF = 3
K3_LDS = K3_BUF * K3_NBUF

K3_GRID = 256
def proj_core(a, pfx, SWS, SOUT, sW, sMT, sNT, sbase, bufss, wm0, wplan, OPRE, vLANE=1, vL16=2):
    sMB, sKH, sT0, sT1, sT2, sOB, sWB, sM0, sOUT = [sbase + i for i in range(9)]
    vWR = 6; vWA = 7; vT = 8
    vOF = 20; vWF = 100; vACC = 180
    oflags = " sc1" if pfx == "K2" else ""
    issued = []
    def setup():
        a(f"s_and_b32 s{sMB}, s{sW}, 3")
        a(f"s_lshr_b32 s{sKH}, s{sW}, 2")
        a(f"s_lshl_b32 s{sM0}, s{sW}, 10")
        a(f"s_mul_i32 s{sWB}, s{sNT}, {200*1024}")
        a(f"s_add_u32 s{sWB}, s{sWB}, s{sM0}")
        a(f"s_add_u32 s{sWB}, s{sWB}, {WT_OFF}")
        a(f"s_lshl_b32 s{sOB}, s{sMT}, 2")
        a(f"s_add_u32 s{sOB}, s{sOB}, s{sMB}")
        a(f"s_mul_i32 s{sOUT}, s{sOB}, {16*1280}")
        a(f"s_mul_i32 s{sOB}, s{sOB}, 40")
        a(f"s_lshl_b32 s{sT0}, s{sKH}, 1")
        a(f"s_add_u32 s{sOB}, s{sOB}, s{sT0}")
        a(f"s_lshl_b32 s{sOB}, s{sOB}, 10")
        a(f"s_add_u32 s{sOB}, s{sOB}, {O_OFF}")
        a(f"s_mul_i32 s{sT2}, s{sNT}, 160")
        a(f"s_add_u32 s{sOUT}, s{sOUT}, s{sT2}")
    def wgroup(p):
        g = []
        for j in range(5):
            g.append(([wm0(p, j, sM0),
                       f"s_add_u32 s{sT1}, s{sWB}, {p*K3_BUF + j*8192}",
                       f"buffer_load_dwordx4 v{vL16}, s[{SWS}:{SWS+3}], s{sT1} offen lds"], ("W", p)))
        return g
    def ogroup(ss):
        g = []
        for i in range(2):
            d = vOF + (ss * 2 + i) * 4
            g.append(([f"s_add_u32 s{sT0}, s{sOB}, {(ss*4 + i)*1024}",
                       f"buffer_load_dwordx4 v[{d}:{d+3}], v{vL16}, s[{SWS}:{SWS+3}], s{sT0} offen{oflags}"], ("o", ss)))
        return g
    def emit(item):
        for x in item[0]: a(x)
        issued.append(item[1])
    def vm(need):
        last = max([i for i, t in enumerate(issued) if t in need], default=-1)
        return min(63, len(issued) - 1 - last)
    def reads(ss):
        st = ss & 1
        off = bufss[ss]
        out = [f"v_add_u32 v{vWA}, {off}, v{vWR}"]
        for i in range(2):
            for b in range(5):
                r = vWF + st * 40 + (i * 5 + b) * 4
                out.append(f"ds_read_b128 v[{r}:{r+3}], v{vWA} offset:{(i*5 + b)*1024}")
        return out
    def addr_setup(xbase):
        a(f"s_mul_i32 s{sT0}, s{sKH}, {10*1024}")
        a(f"v_add_u32 v{vWR}, s{sT0}, v{vL16}")
        a(f"v_and_b32 v{vT+1}, 15, v{vLANE}")
        a(f"v_mul_u32_u24 v{vT+1}, 1280, v{vT+1}")
        a(f"v_lshrrev_b32 v{vT+2}, 4, v{vLANE}")
        a(f"v_lshl_add_u32 v{vT+1}, v{vT+2}, 3, v{vT+1}")
        a(f"s_mul_i32 s{sT0}, s{sW}, {3*1024}")
        a(f"s_add_u32 s{sT0}, s{sT0}, {xbase}")
        a(f"v_add_u32 v{vT}, s{sT0}, v{vL16}")
        a(f"s_xor_b32 s{sT2}, s{sW}, 4")
        a(f"s_mul_i32 s{sT2}, s{sT2}, {3*1024}")
        a(f"s_add_u32 s{sT2}, s{sT2}, {xbase}")
        a(f"v_add_u32 v{vT+3}, s{sT2}, v{vL16}")
    def body(first):
        for kind, idx in first:
            for it in (wgroup(idx) if kind == "W" else ogroup(idx)): emit(it)
        nxt_o = max([idx for kind, idx in first if kind == "o"], default=-1) + 1
        if pfx == "K3": stamp(a, 1)
        a(f"s_waitcnt vmcnt({vm({('W', 0)})})")
        a("s_barrier")
        if pfx == "K3": stamp(a, 2)
        for r in reads(0): a(r)
        for ss in range(10):
            p = ss // 2
            need = {("o", ss)}
            if ss % 2 == 1 and p + 1 < 5: need.add(("W", p + 1))
            a(f"s_waitcnt vmcnt({vm(need)}) lgkmcnt(0)")
            if ss % 2 == 1 and ss < 9: a("s_barrier")
            mf = []
            for i in range(2):
                for b in range(5):
                    acc = vACC + b * 4
                    wf = vWF + (ss & 1) * 40 + (i * 5 + b) * 4
                    of = vOF + (ss * 2 + i) * 4
                    c = "0" if (ss == 0 and i == 0) else f"v[{acc}:{acc+3}]"
                    mf.append(f"v_mfma_f32_16x16x32_bf16 v[{acc}:{acc+3}], v[{wf}:{wf+3}], v[{of}:{of+3}], {c}")
            rd = reads(ss + 1) if ss < 9 else []
            ld = []
            for p2 in wplan.get(ss, []): ld += wgroup(p2)
            while nxt_o < 10 and nxt_o <= ss + OPRE:
                ld += ogroup(nxt_o); nxt_o += 1
            ex = [("r", r) for r in rd]
            mixed = []
            step = max(1, len(ex) // max(1, len(ld))) if ld else 0
            k = 0
            for i, e in enumerate(ex):
                mixed.append(e)
                if ld and k < len(ld) and (i + 1) % step == 0:
                    mixed.append(("l", ld[k])); k += 1
            while k < len(ld):
                mixed.append(("l", ld[k])); k += 1
            k = 0
            for i, m in enumerate(mf):
                a(m)
                tgt = min(len(mixed), ((i + 1) * len(mixed) + 8) // 9)
                while k < tgt:
                    if mixed[k][0] == "r": a(mixed[k][1])
                    else: emit(mixed[k][1])
                    k += 1
        if pfx == "K3": stamp(a, 3)
        a("s_barrier")
        a(f"s_cmp_eq_u32 s{sKH}, 0")
        a(f"s_cbranch_scc1 {pfx}_PW0")
        a("s_nop 4")
        for b in range(3):
            a(f"ds_write_b128 v{vT}, v[{vACC+b*4}:{vACC+b*4+3}] offset:{b*1024}")
        a("s_waitcnt lgkmcnt(0)")
        a("s_barrier")
        def fin(blocks):
            for n, b in enumerate(blocks):
                a(f"ds_read_b128 v[{vOF+4*n}:{vOF+4*n+3}], v{vT+3} offset:{n*1024}")
            for n, b in enumerate(blocks):
                a(f"s_waitcnt lgkmcnt({len(blocks)-1-n})")
                for i in range(0, 4, 2):
                    a(f"v_pk_add_f32 v[{vOF+4*n+i}:{vOF+4*n+i+1}], v[{vOF+4*n+i}:{vOF+4*n+i+1}], v[{vACC+4*b+i}:{vACC+4*b+i+1}]")
                a(f"v_cvt_pk_bf16_f32 v{vWF+2*n}, v{vOF+4*n}, v{vOF+4*n+1}")
                a(f"v_cvt_pk_bf16_f32 v{vWF+2*n+1}, v{vOF+4*n+2}, v{vOF+4*n+3}")
                a(f"buffer_store_dwordx2 v[{vWF+2*n}:{vWF+2*n+1}], v{vT+1}, s[{SOUT}:{SOUT+3}], s{sOUT} offen offset:{b*32}")
        fin([3, 4])
        a(f"s_branch {pfx}_PFIN")
        a.lab(f"{pfx}_PW0")
        a("s_nop 4")
        for n, b in enumerate((3, 4)):
            a(f"ds_write_b128 v{vT}, v[{vACC+b*4}:{vACC+b*4+3}] offset:{n*1024}")
        a("s_waitcnt lgkmcnt(0)")
        a("s_barrier")
        fin([0, 1, 2])
        a.lab(f"{pfx}_PFIN")
    class C: pass
    c = C(); c.setup = setup; c.wgroup = wgroup; c.emit = emit; c.addr_setup = addr_setup; c.body = body; c.issued = issued
    return c

def gen_k3(a):
    name = "k3_proj_kernel"
    kernel_head(a, name)
    SWS = 8; SOUT = 20
    sW = 24; sMT = 27; sNT = 28
    vLANE = 1; vL16 = 2; vT = 8
    NV = 200
    a(f"s_cmp_ge_u32 s2, {K3_GRID}")
    a("s_cbranch_scc1 K3_END")
    stamp(a, 0)
    a("s_load_dwordx2 s[4:5], s[0:1], 72")
    a("s_load_dwordx2 s[36:37], s[0:1], 56")
    a(f"v_and_b32 v{vLANE}, 63, v0")
    a(f"v_lshrrev_b32 v{vT}, 6, v0")
    a(f"s_and_b32 s{sMT}, s2, 7")
    a(f"v_readfirstlane_b32 s{sW}, v{vT}")
    a(f"s_lshl_b32 s{sMT}, s{sMT}, 2")
    a(f"s_lshr_b32 s29, s2, 6")
    a(f"s_add_u32 s{sMT}, s{sMT}, s29")
    a(f"s_lshr_b32 s{sNT}, s2, 3")
    a(f"s_and_b32 s{sNT}, s{sNT}, 7")
    a(f"v_lshlrev_b32 v{vL16}, 4, v{vLANE}")
    bufss = [((ss // 2) % 3) * K3_BUF + (ss & 1) * 20 * 1024 for ss in range(10)]
    c = proj_core(a, "K3", SWS, SOUT, sW, sMT, sNT, 40, bufss, lambda p, j, sM0: f"s_add_u32 m0, s{sM0}, {(p % 3)*K3_BUF + j*8192}",
                  {0: [2], 1: [3], 3: [4]}, optval("k3opre", 4))
    c.setup()
    a("s_waitcnt lgkmcnt(0)")
    srd(a, SWS, 4, 5, WS_USED)
    srd(a, SOUT, 36, 37, 2048 * 1280)
    c.addr_setup(0)
    c.body([("W", 0), ("o", 0), ("o", 1), ("W", 1), ("o", 2), ("o", 3)])
    stamp(a, 4)
    if PROF: a("s_waitcnt vmcnt(0)")
    stamp(a, 5)
    stamp_flush(a, 2, 6, SWS, sW, vT)
    a.lab("K3_END")
    a("s_endpgm")
    return name, NV

def build(kernels=("k1", "k2", "k3")):
    a = Asm()
    fuse = "nofuse" not in OPT
    k3line = "" if fuse else f"; @launch kernel=k3_proj_kernel grid=({K3_GRID},1,1) block=(512,1,1) lds={K3_LDS}\n"
    hdr = f"""; Gated mix of sliding-window dilated attention (branch A) and full softmax MHA (branch B), gfx950.
; @launch kernel=k1_qkv_kernel grid=(256,1,1) block=(512,1,1) lds={K1_LDS}
; @launch kernel=k2_attn_kernel grid=(256,1,1) block=(512,1,1) lds={K2_LDS}
{k3line}.amdgcn_target "amdgcn-amd-amdhsa--gfx950"
.text
"""
    descs = []
    for g in ((gen_k1, gen_k2) if fuse else (gen_k1, gen_k2, gen_k3)):
        n, nv = g(a)
        descs.append(kernel_desc(n, nv))
    txt = a.text()
    txt = txt.replace("K1_TEXT_SIZE", "(K1_TEXT_END-k1_qkv_kernel)")
    txt = txt.replace("K2_TEXT_SIZE", "(K2_TEXT_END-k2_attn_kernel)")
    txt = txt.replace("K2CODE_WAVES", "((K2_TEXT_END-k2_attn_kernel) >> 13)")
    return hdr + txt + '.section .rodata,"a"\n' + "".join(".p2align 6\n" + d for d in descs)

if __name__ == "__main__":
    if len(sys.argv) > 2 and sys.argv[2] == "prof":
        PROF = True
    OPT.update(sys.argv[3:])
    if "st_plain" in OPT: STORE_FLAGS = ""
    if "st_sc1" in OPT: STORE_FLAGS = " sc1"
    if "st_nt" in OPT: STORE_FLAGS = " nt"
    if "st_sc01" in OPT: STORE_FLAGS = " sc0 sc1"
    if "st_sc1nt" in OPT: STORE_FLAGS = " sc1 nt"
    if "st_all" in OPT: STORE_FLAGS = " sc0 sc1 nt"
    out = sys.argv[1] if len(sys.argv) > 1 else f"cdna_kernels/{NAME}.s"
    open(out, "w").write(build())
    print("wrote", out)
```
